```python
import torch

def _softmax(x, axis=-1):
    return torch.softmax(x, dim=axis)
def _gelu(x):
    return torch.nn.functional.gelu(x, approximate="tanh")
def _silu(x):
    return torch.nn.functional.silu(x)
def _sigmoid(x):
    return torch.sigmoid(x)
def _layernorm(x, axis=-1, eps=1e-5):
    m = x.mean(dim=axis, keepdim=True)
    v = x.var(dim=axis, keepdim=True, unbiased=False)
    return (x - m) / torch.sqrt(v + eps)
def _scatter_add(tgt, idx, src, axis=0):
    return tgt.clone().index_add_(axis, idx, src)
def _segment_sum(src, seg, n):
    out = torch.zeros((n,) + src.shape[1:], dtype=src.dtype)
    return out.index_add_(0, seg, src)
def _pad(x, pw):
    flat = tuple(v for pair in reversed(pw) for v in pair)
    return torch.nn.functional.pad(x, flat)

kernel_name = 'parallel_sum__linear_attn_block__dense_activation_gelu__prompt'

def setup_inputs():

    _w = (lambda a: (lambda t: t.to(torch.bfloat16) if t.is_floating_point() else t)(torch.as_tensor(a)))
    def _A_setup():
        B, S, D = 1, 2048, 640
        return {
            "x": _w((lambda *s: torch.randn(*s, dtype=torch.bfloat16) * 0.05)(B, S, D)),
            "wqkv": _w((lambda *s: torch.randn(*s, dtype=torch.bfloat16) * 0.05)(D, 3 * D)),
            "wo": _w((lambda *s: torch.randn(*s, dtype=torch.bfloat16) * 0.05)(D, D)),
        }
    _A_in = _A_setup()

    def _B_setup():
        B, S, D, F = 1, 2048, 640, 1536
        return {
            "x": _w((lambda *s: torch.randn(*s, dtype=torch.bfloat16) * 0.05)(B, S, D)),
            "w1": _w((lambda *s: torch.randn(*s, dtype=torch.bfloat16) * 0.4)(D, F) * (D ** -0.5)),
            "b1": _w((lambda *s: torch.randn(*s, dtype=torch.bfloat16) * 12.8)(F) * 0.01),
            "w2": _w((lambda *s: torch.randn(*s, dtype=torch.bfloat16) * 0.1)(F, D) * (F ** -0.5)),
            "b2": _w((lambda *s: torch.randn(*s, dtype=torch.bfloat16) * 1.6)(D) * 0.01),
        }
    _B_in = _B_setup()

    return {
        "A_x": _A_in["x"],
        "A_wqkv": _A_in["wqkv"],
        "A_wo": _A_in["wo"],
        "B_x": _B_in["x"],
        "B_w1": _B_in["w1"],
        "B_b1": _B_in["b1"],
        "B_w2": _B_in["w2"],
        "B_b2": _B_in["b2"],
    }

def reference(A_x, A_wqkv, A_wo, B_x, B_w1, B_b1, B_w2, B_b2):
    def _A_ref(x, wqkv, wo):
        B, S, D = x.shape
        H = 32; Dh = D // H
        qkv = (lambda x, *d: x.permute(*d))((x @ wqkv).reshape(B, S, 3, H, Dh), 2, 0, 3, 1, 4)
        q, k, v = qkv[0], qkv[1], qkv[2]
        phi = lambda t: torch.where(t > 0, t + 1, torch.exp(t)) + 1e-6
        pq, pk = phi(q), phi(k)
        kv = torch.einsum("bhsd,bhse->bhde", pk, v)
        z = torch.einsum("bhsd->bhd", pk)
        num = torch.einsum("bhqd,bhde->bhqe", pq, kv)
        den = torch.einsum("bhqd,bhd->bhq", pq, z)[..., None] + 1e-6
        o = num / den
        return (lambda x, *d: x.permute(*d))(o, 0, 2, 1, 3).reshape(B, S, D) @ wo

    def _B_ref(x, w1, b1, w2, b2):
        h = torch.einsum("bsd,df->bsf", x, w1) + b1
        h = _gelu(h)
        return torch.einsum("bsf,fd->bsd", h, w2) + b2

    x = A_x
    xn = _layernorm(x, axis=-1)
    return x + _A_ref(xn, A_wqkv, A_wo) + _B_ref(xn, B_w1, B_b1, B_w2, B_b2)
```

```python
class Asm:
    def __init__(self):
        self.lines = []
        self.nlab = 0
    def __call__(self, s, *a):
        if a: s = s % a
        for ln in s.split("\n"):
            self.lines.append("  " + ln.strip() if not ln.strip().endswith(":") else ln.strip())
    def raw(self, s): self.lines.append(s)
    def c(self, s): self.lines.append("  ; " + s)
    def label(self, name): self.lines.append(name + ":")
    def newlabel(self, p="L"):
        self.nlab += 1
        return "%s_%d" % (p, self.nlab)
    def text(self): return "\n".join(self.lines) + "\n"

def vr(b, n=1): return "v%d" % b if n == 1 else "v[%d:%d]" % (b, b + n - 1)
def sr(b, n=1): return "s%d" % b if n == 1 else "s[%d:%d]" % (b, b + n - 1)

class Regs:
    def __init__(self, start, limit, kind="v"):
        self.p = start; self.limit = limit; self.kind = kind; self.names = {}
    def alloc(self, name, n=1, align=1):
        self.p = (self.p + align - 1) // align * align
        b = self.p; self.p += n
        assert self.p <= self.limit, "out of %s regs at %s (%d)" % (self.kind, name, self.p)
        self.names[name] = b
        return b

def kernel_header(a, name):
    a.raw(".globl %s\n.p2align 8\n.type %s,@function\n%s:" % (name, name, name))

def kernel_desc(a, name, vgpr, sgpr):
    a.raw('''.p2align 6
.amdhsa_kernel %s
  .amdhsa_next_free_vgpr %d
  .amdhsa_next_free_sgpr %d
  .amdhsa_accum_offset %d
  .amdhsa_group_segment_fixed_size 0
  .amdhsa_kernarg_size 88
  .amdhsa_user_sgpr_count 2
  .amdhsa_user_sgpr_kernarg_segment_ptr 1
  .amdhsa_system_sgpr_workgroup_id_x 1
.end_amdhsa_kernel''' % (name, vgpr, sgpr, (vgpr + 3) // 4 * 4))
```

```python
import sys
from asmlib import *
BASE = "parallel_sum__linear_attn_block__dense_activation_gelu__prompt"
OPT = dict(fused=1, stamps=0)
for arg in sys.argv[1:]:
    k, v = arg.split("="); OPT[k] = int(v)
FUSED = OPT["fused"]; STAMPS = OPT["stamps"]

A2_OFF = 0
B2_OFF = 0x900000
KVP_OFF = 0xC00000; KVP_STRIDE = 6912
STAT_OFF = 0xD00000
FLAG_OFF = 0xD10000
EPOCH = FLAG_OFF; FB2 = FLAG_OFF + 0x1000; FKV = FLAG_OFF + 0x2000; FH = FLAG_OFF + 0x3000; FO = FLAG_OFF + 0x4000
STAMP_OFF = 0xE00000
WS_SIZE = 0x1000000
SLOT = 45184
K_OFF = 16384; V_OFF = 26640; HKV_OFF = 36992; HQ_OFF = 26624; DUMMY_OFF = 43008
MISC = 3 * SLOT
STATL = MISC
RELAY = MISC + 1024
IMG = MISC + 1024
TAGL = MISC + 20480
CSX = SLOT
XK = 2 * SLOT
SPIN = 200000
S_X, S_WQ, S_W1, S_WS, S_P, S_OUT, S_B1, S_B2 = 4, 8, 12, 16, 20, 24, 28, 32
KA = 36
sRB, sJJ, sTY, sWV, sTAG = 58, 59, 60, 61, 62
sM, sN = 63, 64
sT0, sT1, sT2, sT3 = 3, 65, 66, 67
sLA, sLP, sLP4, sLH, sIncP, sA, sP, sH, sSlot, sCnt = 68, 69, 70, 71, 72, 73, 74, 75, 76, 77
sEX = 78
sSpin = 80
sRT, sCT = 81, 82
sK0, sK1 = 83, 84
sST = 86

a = Asm()
def srd(d, p, n):
    a("s_mov_b32 s%d, s%d\ns_mov_b32 s%d, s%d\ns_mov_b32 s%d, 0x%x\ns_mov_b32 s%d, 0x20000" % (d, p, d+1, p+1, d+2, n, d+3))
def S(d): return "s[%d:%d]" % (d, d+3)
stamp_n = [0]
def stamp(idx, wave, vt=250):
    if not STAMPS: return
    a("s_memrealtime s[%d:%d]\ns_waitcnt lgkmcnt(0)" % (sST, sST+1))
    a("v_mov_b32 v%d, s%d\nv_mov_b32 v%d, s%d\nv_mov_b32 v%d, 0" % (vt, sST, vt+1, sST+1, vt+2))
    a("s_lshl_b32 s%d, s2, 8\ns_add_u32 s%d, s%d, 0x%x" % (sST, sST, sST, STAMP_OFF + idx * 8))
    l = a.newlabel("Lst")
    a("s_cmp_lg_u32 s%d, %d\ns_cbranch_scc1 %s" % (sWV, wave, l))
    a("buffer_store_dwordx2 v[%d:%d], v%d, %s, s%d offen" % (vt, vt+1, vt+2, S(S_WS), sST))
    a.label(l)

def prologue_common(k2=False):
    a("s_cmp_ge_u32 s2, 256\ns_cbranch_scc1 L_end%s" % ("2" if k2 else ""))
    a("s_load_dwordx16 s[36:51], s[0:1], 0\ns_load_dwordx4 s[52:55], s[0:1], 64\ns_load_dwordx2 s[56:57], s[0:1], 80")
    a("v_lshrrev_b32 v1, 6, v0\nv_and_b32 v0, 63, v0\nv_readfirstlane_b32 s%d, v1" % sWV)
    a("s_and_b32 s3, s2, 1\ns_lshl_b32 s3, s3, 3\ns_bfe_u32 s%d, s2, 0x30003\ns_add_u32 s%d, s%d, s3" % (sRB, sRB, sRB))
    a("s_bfe_u32 s%d, s2, 0x10006" % sTY)
    a("s_and_b32 s3, s2, 6\ns_lshr_b32 s%d, s2, 7\ns_add_u32 s%d, s%d, s3" % (sJJ, sJJ, sJJ))
    a("s_and_b32 s3, s2, 7\ns_lshl_b32 s3, s3, 2\ns_bfe_u32 s%d, s2, 0x20003\ns_add_u32 s%d, s%d, s3\ns_lshr_b32 s%d, s2, 5" % (sRT, sRT, sRT, sCT))

def build_srds():
    srd(S_X, 36, 2048*1280); srd(S_WQ, 38, 640*3840); srd(S_W1, 44, 640*3072); srd(S_WS, 56, WS_SIZE)
    srd(S_OUT, 52, 2048*1280); srd(S_B1, 46, 3072); srd(S_B2, 50, 1280)

def load_tag():
    a("s_add_u32 s%d, s56, 0x%x\ns_addc_u32 s%d, s57, 0" % (sEX, EPOCH, sEX+1))
    a("s_load_dword s%d, s[%d:%d], 0 glc" % (sTAG, sEX, sEX+1))
def finish_tag():
    a("s_waitcnt lgkmcnt(0)\ns_mul_i32 s%d, s%d, 0x9E3779B1\ns_add_u32 s%d, s%d, 0x7F4A7C15" % (sTAG, sTAG, sTAG, sTAG))

def poll(voff, soff, nlanes, vt, name):
    lp = a.newlabel("Lpoll_" + name); dn = a.newlabel("Lpolld_" + name)
    a("s_mov_b32 s%d, %d" % (sSpin, SPIN))
    if nlanes < 64:
        a("s_mov_b32 exec_lo, 0x%x\ns_mov_b32 exec_hi, 0" % ((1 << nlanes) - 1))
    a.label(lp)
    a("buffer_load_dword v%d, v%d, %s, s%d offen sc1" % (vt, voff, S(S_WS), soff))
    a("s_waitcnt vmcnt(0)")
    a("v_cmp_ne_u32 vcc, s%d, v%d" % (sTAG, vt))
    a("s_cbranch_vccz %s" % dn)
    a("s_sleep 1\ns_sub_u32 s%d, s%d, 1\ns_cbranch_scc0 %s" % (sSpin, sSpin, lp))
    a.label(dn)
    if nlanes < 64:
        a("s_mov_b64 exec, -1")

def flag_store(soff, vt):
    a("v_mov_b32 v%d, s%d\nv_mov_b32 v%d, 0\ns_mov_b64 exec, 1" % (vt, sTAG, vt+1))
    a("buffer_store_dword v%d, v%d, %s, s%d offen sc1" % (vt, vt+1, S(S_WS), soff))
    a("s_mov_b64 exec, -1")

def loader_k1():
    lw = sM
    a("s_sub_u32 s%d, s%d, 4" % (lw, sWV))
    a("v_lshrrev_b32 v2, 3, v0\nv_lshrrev_b32 v3, 4, v0\nv_and_b32 v4, 7, v0")
    a("v_xor_b32 v5, v4, v3\nv_lshlrev_b32 v5, 4, v5")
    a("s_lshl_b32 s3, s%d, 7\ns_lshl_b32 s%d, s%d, 5\ns_add_u32 s3, s3, s%d\ns_mul_i32 s3, s3, 1280" % (sRB, sT1, lw, sT1))
    a("v_mul_u32_u24 v6, 1280, v2\nv_add3_u32 v10, v6, v5, s3")
    a("v_xor_b32 v11, 64, v10\nv_add_u32 v11, 10240, v11\nv_add_u32 v12, 20480, v10\nv_add_u32 v13, 20480, v11")
    a("s_lshl_b32 s%d, s%d, 12" % (sLA, lw))
    a("v_and_b32 v6, 3, v2\nv_lshrrev_b32 v7, 2, v2\nv_lshl_add_u32 v6, v7, 3, v6\nv_mul_u32_u24 v6, 3072, v6")
    a("v_and_b32 v7, 6, v2\nv_xor_b32 v7, v4, v7\nv_lshl_add_u32 v6, v7, 4, v6")
    a("s_mul_i32 s%d, s%d, 384\ns_lshl_b32 s3, s%d, 7\ns_add_u32 s%d, s%d, s3" % (sT1, sJJ, sTY, sT1, sT1))
    a("s_and_b32 s%d, s%d, 1" % (sT2, lw))
    a("s_lshr_b32 s3, s%d, 1\ns_lshl_b32 s3, s3, 3\ns_add_u32 s3, s3, s%d\ns_mul_i32 s3, s3, 12288\ns_add_u32 s3, s3, s%d" % (lw, sT2, sT1))
    a("v_add_u32 v19, s3, v6\nv_add_u32 v20, 49152, v19")
    a("s_movk_i32 s%d, %d\ns_cmp_eq_u32 s%d, 0\ns_cselect_b32 s%d, %d, s%d\ns_lshl_b32 s3, s%d, 11\ns_add_u32 s%d, s%d, s3" % (sLH, HQ_OFF, sTY, sLH, HKV_OFF, sLH, lw, sLH, sLH))
    a("s_lshr_b32 s3, s%d, 1\ns_and_b32 s3, s3, s%d\ns_cmp_eq_u32 s3, 1\ns_cbranch_scc1 L_phmode" % (lw, sTY))
    a("s_mov_b32 s%d, %d" % (sIncP, 64*3840))
    a("s_lshr_b32 s3, s%d, 1\ns_add_u32 s3, s3, 1\ns_cmp_eq_u32 s%d, 0\ns_cselect_b32 s3, s3, 0" % (lw, sTY))
    a("s_mul_i32 s%d, s3, 1280\ns_mul_i32 s%d, s%d, 160\ns_add_u32 s%d, s%d, s%d\ns_mul_i32 s%d, s%d, %d\ns_add_u32 s%d, s%d, s%d" % (sT1, sT3, sJJ, sT1, sT1, sT3, sT3, sT2, 32*3840, sT1, sT1, sT3))
    a("s_movk_i32 s%d, %d\ns_cmp_eq_u32 s3, 2\ns_cselect_b32 s%d, %d, s%d\ns_mul_i32 s%d, s%d, 5120\ns_add_u32 s%d, s%d, s%d" % (sLP, K_OFF, sLP, V_OFF, sLP, sT3, sT2, sLP, sLP, sT3))
    for i in range(5):
        a("v_add_u32 v7, %d, v0" % (64*i))
        a("v_mul_u32_u24 v8, 6554, v7\nv_lshrrev_b32 v8, 16, v8")
        a("v_mul_u32_u24 v9, 10, v8\nv_sub_u32 v7, v7, v9")
        a("v_and_b32 v9, 12, v8\nv_lshlrev_b32 v9, 1, v9\nv_and_or_b32 v9, v8, 3, v9\nv_lshrrev_b32 v8, 4, v8\nv_lshl_add_u32 v9, v8, 2, v9")
        a("v_mul_u32_u24 v9, 3840, v9\nv_lshl_add_u32 v9, v7, 4, v9\nv_add_u32 v%d, s%d, v9" % (14+i, sT1))
    a("s_add_u32 s%d, s%d, 4096" % (sLP4, sLP))
    a("s_waitcnt lgkmcnt(0)")
    srd(S_P, 38, 640*3840)
    a("s_branch L_pdone")
    a.label("L_phmode")
    a("s_mov_b32 s%d, %d" % (sIncP, 64*3072))
    a("s_mul_i32 s3, s%d, %d\ns_add_u32 s3, s3, s%d\ns_add_u32 s3, s3, 128" % (sT2, 32*3072, sT1))
    a("v_add_u32 v14, s3, v6\nv_add_u32 v15, 49152, v14\nv_add_u32 v16, 12288, v14\nv_add_u32 v17, 61440, v14\nv_mov_b32 v18, 0x7f000000")
    a("s_lshl_b32 s3, s%d, 12\ns_add_u32 s%d, s3, %d\ns_mov_b32 s%d, %d" % (sT2, sLP, HQ_OFF + 8192, sLP4, DUMMY_OFF))
    a("s_waitcnt lgkmcnt(0)")
    srd(S_P, 44, 640*3072)
    a.label("L_pdone")
    build_srds()
    a("s_mov_b32 s%d, 0\ns_mov_b32 s%d, 0\ns_mov_b32 s%d, 0\ns_mov_b32 s%d, 0\ns_mov_b32 s%d, 0" % (sA, sP, sH, sSlot, sCnt))
    def issue():
        for i in range(4):
            a("s_add_u32 m0, s%d, s%d" % (sSlot, sLA) if i == 0 else "s_add_u32 m0, m0, 0x400")
            a("s_nop 0\nbuffer_load_dwordx4 v%d, %s, s%d offen lds" % (10+i, S(S_X), sA))
        for i in range(5):
            if i == 0: a("s_add_u32 m0, s%d, s%d" % (sSlot, sLP))
            elif i == 4: a("s_add_u32 m0, s%d, s%d" % (sSlot, sLP4))
            else: a("s_add_u32 m0, m0, 0x400")
            a("s_nop 0\nbuffer_load_dwordx4 v%d, %s, s%d offen lds" % (14+i, S(S_P), sP))
        for i in range(2):
            a("s_add_u32 m0, s%d, s%d" % (sSlot, sLH) if i == 0 else "s_add_u32 m0, m0, 0x400")
            a("s_nop 0\nbuffer_load_dwordx4 v%d, %s, s%d offen lds" % (19+i, S(S_W1), sH))
        a("s_add_u32 s%d, s%d, 128\ns_add_u32 s%d, s%d, s%d\ns_add_u32 s%d, s%d, %d" % (sA, sA, sP, sP, sIncP, sH, sH, 64*3072))
        a("s_add_u32 s%d, s%d, %d\ns_cmp_eq_u32 s%d, %d\ns_cselect_b32 s%d, 0, s%d" % (sSlot, sSlot, SLOT, sSlot, 3*SLOT, sSlot, sSlot))
    a("s_branch L_lissue")
    a.label("L_lloop")
    a("s_waitcnt vmcnt(11)\ns_barrier")
    a.label("L_lissue")
    issue()
    a("s_add_u32 s%d, s%d, 1\ns_cmp_lt_u32 s%d, 3\ns_cbranch_scc1 L_lissue" % (sCnt, sCnt, sCnt))
    a("s_cmp_lg_u32 s%d, 3\ns_cbranch_scc1 L_lnot3" % sCnt)
    a("s_waitcnt vmcnt(22)\ns_barrier")
    a.label("L_lnot3")
    a("s_cmp_lt_u32 s%d, 10\ns_cbranch_scc1 L_lloop" % sCnt)
    a("v_mov_b32 v2, %d\nds_read_b32 v2, v2\ns_waitcnt lgkmcnt(0)\nv_readfirstlane_b32 s%d, v2" % (TAGL, sTAG))
    a("s_waitcnt vmcnt(11)\ns_barrier")
    a("s_waitcnt vmcnt(0)\ns_barrier")
    a("s_cmp_lg_u32 s%d, 0\ns_cbranch_scc1 L_nostats" % lw)
    a("v_lshlrev_b32 v2, 4, v0\ns_lshl_b32 s3, s%d, 11\ns_add_u32 s3, s3, 0x%x\ns_mov_b32 s%d, %d" % (sRB, STAT_OFF, sSpin, SPIN))
    a.label("L_stpoll")
    a("buffer_load_dwordx4 v[24:27], v2, %s, s3 offen sc1\nbuffer_load_dwordx4 v[28:31], v2, %s, s3 offen offset:1024 sc1" % (S(S_WS), S(S_WS)))
    a("s_waitcnt vmcnt(0)")
    a("v_xor_b32 v3, s%d, v25\nv_xor_b32 v4, s%d, v27\nv_xor_b32 v5, s%d, v29\nv_xor_b32 v7, s%d, v31" % (sTAG, sTAG, sTAG, sTAG))
    a("v_or3_b32 v3, v3, v4, v5\nv_or_b32 v3, v3, v7\nv_cmp_ne_u32 vcc, 0, v3\ns_cbranch_vccz L_stok")
    a("s_sleep 1\ns_sub_u32 s%d, s%d, 1\ns_cbranch_scc0 L_stpoll" % (sSpin, sSpin))
    a.label("L_stok")
    a("v_lshlrev_b32 v2, 2, v0\nv_add_u32 v2, %d, v2" % STATL)
    a("ds_write2st64_b32 v2, v24, v28 offset0:0 offset1:1\nds_write2st64_b32 v2, v26, v30 offset0:2 offset1:3")
    a.label("L_nostats")
    a("s_lshl_b32 s3, s%d, 6\nv_add_u32 v2, s3, v0" % lw)
    for rnd in range(2):
        o = 32 + rnd
        a("v_add_u32 v3, %d, v2" % (256 * rnd))
        a("v_cmp_le_u32 vcc, 210, v3\ns_nop 1\nv_cndmask_b32 v4, 0, 1, vcc")
        a("v_mul_u32_u24 v5, 210, v4\nv_sub_u32 v3, v3, v5")
        a("v_cmp_le_u32 vcc, 105, v3\ns_nop 1\nv_cndmask_b32 v5, 0, 1, vcc")
        a("v_mul_u32_u24 v7, 105, v5\nv_sub_u32 v3, v3, v7")
        a("v_mul_u32_u24 v7, 52429, v3\nv_lshrrev_b32 v7, 18, v7")
        a("v_mul_u32_u24 v8, 5, v7\nv_sub_u32 v3, v3, v8")
        a("v_mad_u32_u24 v3, v5, 5, v3")
        a("v_lshrrev_b32 v8, 2, v3\nv_and_b32 v3, 3, v3")
        a("v_mad_u32_u24 v9, v5, 20, v7")
        a("v_cmp_eq_u32 vcc, 20, v7")
        a("s_cmp_lg_u32 s%d, 0" % sTY)
        lq = a.newlabel("Lgq"); ld = a.newlabel("Lgd")
        a("s_cbranch_scc1 %s" % lq)
        a("v_add_u32 v9, 8, v9\nv_cndmask_b32 v9, v9, 0, vcc")
        a("v_lshrrev_b32 v7, 4, v9\nv_and_b32 v9, 15, v9\nv_mad_u32_u24 v7, v8, 3, v7")
        a("v_lshl_add_u32 v9, v3, 4, v9\nv_lshlrev_b32 v9, 4, v9\nv_lshl_add_u32 v9, v7, 10, v9")
        a("v_mul_u32_u24 v4, 9216, v4\nv_add_u32 v9, v9, v4\nv_add_u32 v%d, %d, v9" % (o, XK))
        a("s_branch %s" % ld)
        a.label(lq)
        a("v_add_u32 v5, 40, v5\nv_cndmask_b32 v9, v9, v5, vcc")
        a("v_lshl_add_u32 v7, v9, 2, v3\nv_lshlrev_b32 v7, 3, v7")
        a("v_lshlrev_b32 v5, 1, v7\nv_lshl_add_u32 v5, v8, 3, v5")
        a("v_add_u32 v7, 3072, v7\nv_cmp_eq_u32 vcc, 2, v8\ns_nop 1\nv_cndmask_b32 v7, v5, v7, vcc")
        a("v_mul_u32_u24 v4, 4608, v4\nv_add_u32 v7, v7, v4\nv_add_u32 v%d, %d, v7" % (o, IMG))
        a.label(ld)
    a("v_lshlrev_b32 v34, 4, v2")
    a("s_cmp_lg_u32 s%d, 0\ns_cbranch_scc1 L_ldr_qh" % sTY)
    a("s_waitcnt lgkmcnt(0)\ns_barrier")
    a("s_barrier")
    a("ds_read_b128 v[36:39], v32\nds_read_b128 v[40:43], v32 offset:%d" % (2*9216))
    a("v_cmp_gt_u32 vcc, %d, v2\ns_and_saveexec_b64 s[%d:%d], vcc" % (420 - 256, sEX, sEX+1))
    a("ds_read_b128 v[44:47], v33\nds_read_b128 v[48:51], v33 offset:%d" % (2*9216))
    a("s_mov_b64 exec, -1")
    a("s_lshl_b32 s3, s%d, 4\ns_add_u32 s3, s3, s%d\ns_mul_i32 s3, s3, %d\ns_add_u32 s3, s3, 0x%x" % (sJJ, sRB, KVP_STRIDE, KVP_OFF))
    a("s_add_u32 s%d, s3, 4096" % sT1)
    a("s_waitcnt lgkmcnt(0)")
    a("v_pk_add_f32 v[36:37], v[36:37], v[40:41]\nv_pk_add_f32 v[38:39], v[38:39], v[42:43]")
    a("v_pk_add_f32 v[44:45], v[44:45], v[48:49]\nv_pk_add_f32 v[46:47], v[46:47], v[50:51]")
    a("buffer_store_dwordx4 v[36:39], v34, %s, s3 offen sc1" % S(S_WS))
    a("s_and_b64 exec, exec, vcc\ns_cbranch_execz L_kvst1")
    a("buffer_store_dwordx4 v[44:47], v34, %s, s%d offen sc1" % (S(S_WS), sT1))
    a.label("L_kvst1")
    a("s_mov_b64 exec, -1")
    a("s_lshl_b32 s3, s%d, 8\ns_lshl_b32 s%d, s%d, 4\ns_add_u32 s3, s3, s%d\ns_lshl_b32 s%d, s%d, 2\ns_add_u32 s3, s3, s%d\ns_add_u32 s3, s3, 0x%x" % (sJJ, sT1, sRB, sT1, sT1, lw, sT1, FKV))
    a("s_waitcnt vmcnt(0)")
    flag_store(3, 36)
    a("s_branch L_k1done")
    a.label("L_ldr_qh")
    a("v_mov_b32 v36, 0\nv_mov_b32 v37, 0\nv_mov_b32 v38, 0\nv_mov_b32 v39, 0\nv_add_u32 v35, %d, v34" % IMG)
    a("ds_write_b128 v35, v[36:39]\nds_write_b128 v35, v[36:39] offset:4096")
    a("s_cmp_lg_u32 s%d, 0\ns_cbranch_scc1 L_z3\nds_write_b128 v35, v[36:39] offset:8192" % lw)
    a.label("L_z3")
    a("s_waitcnt lgkmcnt(0)\ns_barrier")
    a("v_lshlrev_b32 v3, 2, v0\ns_lshl_b32 s3, s%d, 8\ns_add_u32 s3, s3, 0x%x" % (sJJ, FKV))
    poll(3, 3, 64, 4, "kv")
    a("s_lshl_b32 s3, s%d, 4\ns_mul_i32 s3, s3, %d\ns_add_u32 s3, s3, 0x%x" % (sJJ, KVP_STRIDE, KVP_OFF))
    a("v_add_u32 v35, 4096, v34\nv_cmp_gt_u32 vcc, %d, v2\nv_mov_b32 v3, 0x7f000000\ns_nop 0\nv_cndmask_b32 v35, v3, v35, vcc" % (420 - 256))
    for p in range(16):
        a("buffer_load_dwordx4 v[%d:%d], v34, %s, s3 offen sc1" % (64 + 8*p, 67 + 8*p, S(S_WS)))
        a("buffer_load_dwordx4 v[%d:%d], v35, %s, s3 offen sc1" % (68 + 8*p, 71 + 8*p, S(S_WS)))
        if p < 15: a("s_add_u32 s3, s3, %d" % KVP_STRIDE)
    for p in range(1, 16):
        a("s_waitcnt vmcnt(%d)" % (2 * (15 - p)))
        for q in range(4):
            a("v_pk_add_f32 v[%d:%d], v[%d:%d], v[%d:%d]" % (64+2*q, 65+2*q, 64+2*q, 65+2*q, 64+8*p+2*q, 65+8*p+2*q))
    a("v_cvt_pk_bf16_f32 v36, v64, v65\nv_cvt_pk_bf16_f32 v37, v66, v67\nv_cvt_pk_bf16_f32 v38, v68, v69\nv_cvt_pk_bf16_f32 v39, v70, v71")
    a("ds_write_b64 v32, v[36:37]")
    a("s_and_b64 exec, exec, vcc\ns_cbranch_execz L_im1\nds_write_b64 v33, v[38:39]")
    a.label("L_im1")
    a("s_mov_b64 exec, -1")
    a("s_waitcnt lgkmcnt(0)\ns_barrier")
    a("s_branch L_k1done")

ACC = 8; CS = 120; F0 = 136; F1 = 180; ONES = 224
vA0, vA1, vS, vS2, vH = 228, 229, 230, 231, 232
vB1 = 236
def acc(i, t): return ACC + (i * 7 + t) * 4
def R4(b): return "v[%d:%d]" % (b, b + 3)
def R2(b): return "v[%d:%d]" % (b, b + 1)

def bf16_round(v, t=None):
    a("v_cvt_pk_bf16_f32 v%d, v%d, v%d\nv_lshlrev_b32 v%d, 16, v%d" % (v, v, v, v, v))

def allreduce32(v, t):
    for ctl in ("quad_perm:[1,0,3,2]", "quad_perm:[2,3,0,1]", "row_half_mirror", "row_mirror"):
        a("s_nop 1\nv_add_f32_dpp v%d, v%d, v%d %s row_mask:0xf bank_mask:0xf" % (v, v, v, ctl))
    a("v_mov_b32 v%d, v%d\ns_nop 1\nv_permlane16_swap_b32 v%d, v%d\ns_nop 1\nv_add_f32 v%d, v%d, v%d" % (t, v, v, t, v, v, t))

def compute_prologue():
    a("s_lshr_b32 s%d, s%d, 1\ns_and_b32 s%d, s%d, 1" % (sM, sWV, sN, sWV))
    a("s_lshl_b32 s3, s%d, 3\ns_add_u32 s3, s3, s%d\ns_lshl_b32 s3, s3, 2\ns_add_u32 s3, s3, s%d\ns_lshl_b32 s3, s3, 1\ns_lshl_b32 s%d, s%d, 7\ns_add_u32 s%d, s%d, s3" % (sTY, sJJ, sWV, sT1, sRB, sT1, sT1))
    a("v_lshrrev_b32 v1, 5, v0\nv_and_b32 v2, 31, v0\nv_mul_u32_u24 v3, 1280, v1\nv_lshl_add_u32 v4, v2, 4, v3\nv_lshl_add_u32 v5, v2, 3, v3")
    a("s_mul_i32 s%d, s%d, 1280" % (sT2, sT1))
    a("s_lshl_b32 s3, s%d, 8\ns_add_u32 s%d, s3, s2" % (sWV, sK0))
    a("s_mul_i32 s3, s%d, 6554\ns_lshr_b32 s%d, s3, 16\ns_mul_i32 s3, s%d, 10\ns_sub_u32 s%d, s%d, s3" % (sK0, sK1, sK1, sT3, sK0))
    a("s_waitcnt lgkmcnt(0)")
    build_srds()
    load_tag()
    a("buffer_load_dwordx4 v[140:143], v4, %s, s%d offen\nbuffer_load_dwordx4 v[144:147], v4, %s, s%d offen offset:512\nbuffer_load_dwordx2 v[148:149], v5, %s, s%d offen offset:1024" % (S(S_X), sT2, S(S_X), sT2, S(S_X), sT2))
    a("s_cmp_ge_u32 s%d, 680\ns_cbranch_scc1 L_norelay1" % sK0)
    a("s_cmp_lt_u32 s%d, 48\ns_cselect_b32 s%d, s48, s40\ns_cselect_b32 s%d, s49, s41\ns_mov_b32 s%d, %d\ns_cselect_b32 s%d, %d, s%d\ns_mov_b32 s%d, 0x20000" % (sK1, S_P, S_P+1, S_P+2, 640*1280, S_P+2, 1536*1280, S_P+2, S_P+3))
    a("s_lshl_b32 s%d, s%d, 5\ns_mul_i32 s3, s%d, 40\ns_sub_u32 s3, s3, %d\ns_cmp_lt_u32 s%d, 48\ns_cselect_b32 s%d, s%d, s3" % (sLA, sK1, sK1, 48*40, sK1, sLA, sLA))
    a("s_mul_i32 s3, s%d, 160\ns_sub_u32 s3, s3, %d\ns_cmp_lt_u32 s%d, 64\ns_cselect_b32 s%d, s%d, s3" % (sK1, 64*160 - 32, sK1, sLA, sLA))
    a("s_cselect_b32 s%d, 4, 40\ns_cselect_b32 s%d, 16, 4" % (sLP, sLH))
    a("v_lshrrev_b32 v6, 3, v0\nv_and_b32 v7, 7, v0\nv_and_b32 v1, 6, v6\nv_xor_b32 v7, v7, v1\nv_lshlrev_b32 v7, 4, v7")
    a("v_lshrrev_b32 v1, 5, v0\nv_mul_u32_u24 v1, s%d, v1\nv_and_b32 v6, 3, v6\nv_add_u32 v6, v6, v1\nv_mul_u32_u24 v6, 1280, v6\nv_add_u32 v6, v6, v7" % sLP)
    a("s_mul_i32 s%d, s%d, 1280\ns_lshl_b32 s3, s%d, 7\ns_add_u32 s%d, s%d, s3" % (sLA, sLA, sT3, sLA, sLA))
    a("s_mul_i32 s%d, s%d, 2560\ns_mul_i32 s%d, s%d, 1280" % (sLP, sLP, sLH, sLH))
    a("s_lshl_b32 s3, s%d, 12\ns_add_u32 m0, s3, %d" % (sWV, RELAY))
    a("s_nop 0\nbuffer_load_dwordx4 v6, %s, s%d offen lds" % (S(S_P), sLA))
    a("s_add_u32 m0, m0, 0x400\ns_add_u32 s3, s%d, s%d\nbuffer_load_dwordx4 v6, %s, s3 offen lds" % (sLA, sLP, S(S_P)))
    a("s_add_u32 m0, m0, 0x400\ns_add_u32 s%d, s%d, s%d\nbuffer_load_dwordx4 v6, %s, s%d offen lds" % (sLA, sLA, sLH, S(S_P), sLA))
    a("s_add_u32 m0, m0, 0x400\ns_add_u32 s3, s%d, s%d\nbuffer_load_dwordx4 v6, %s, s3 offen lds" % (sLA, sLP, S(S_P)))
    a.label("L_norelay1")
    a("v_lshrrev_b32 v1, 4, v0\nv_lshlrev_b32 v1, 3, v1")
    a("s_lshl_b32 s3, s%d, 6\ns_lshl_b32 s3, s3, s%d\ns_lshl_b32 s%d, s%d, 7\ns_add_u32 s3, s3, s%d\ns_mul_i32 s%d, s%d, 384\ns_add_u32 s3, s3, s%d" % (sN, sTY, sLP, sTY, sLP, sLP, sJJ, sLP))
    for t in range(4):
        a("buffer_load_dwordx2 %s, v1, %s, s3 offen offset:%d" % (R2(vB1 + 2*t), S(S_B1), 32*t))
    a("v_and_b32 v2, 15, v0\nv_lshrrev_b32 v3, 4, v0\nv_lshrrev_b32 v4, 1, v2\nv_xor_b32 v4, v4, v3\nv_lshlrev_b32 v4, 4, v4\nv_lshl_add_u32 v4, v2, 7, v4")
    a("s_lshl_b32 s3, s%d, 13\nv_add_u32 v%d, s3, v4\nv_xor_b32 v%d, 64, v%d" % (sM, vA0, vA1, vA0))
    a("v_lshrrev_b32 v2, 2, v0\nv_and_b32 v3, 3, v0\nv_mul_u32_u24 v4, 160, v2\ns_mul_i32 s3, s%d, 80\nv_add_u32 v4, s3, v4\nv_lshl_add_u32 v%d, v3, 3, v4" % (sN, vS))
    a("v_and_b32 v5, 1, v3\nv_lshl_add_u32 v4, v5, 3, v4\nv_add_u32 v4, %d, v4" % (K_OFF + 64))
    a("s_cmp_eq_u32 s%d, 0\ns_cselect_b32 s3, %d, 0\nv_lshrrev_b32 v5, 1, v3\nv_mad_u32_u24 v%d, v5, s3, v4" % (sTY, V_OFF - K_OFF - 64, vS2))
    a("v_lshlrev_b32 v4, 7, v2\nv_lshl_add_u32 v4, v3, 3, v4\nv_bfe_u32 v5, v0, 3, 2\nv_lshl_add_u32 v4, v5, 5, v4")
    a("s_lshl_b32 s3, s%d, 6\ns_cmp_eq_u32 s%d, 0\ns_cselect_b32 s3, s3, 0\nv_xor_b32 v4, s3, v4" % (sN, sTY))
    a("s_lshl_b32 s3, s%d, 13\ns_add_u32 s3, s3, %d\ns_cmp_eq_u32 s%d, 0\ns_cselect_b32 s3, %d, s3" % (sN, HQ_OFF, sTY, HKV_OFF))
    for t in range(4):
        a("v_xor_b32 v5, %d, v4\nv_add_u32 v%d, s3, v5" % (32*t, vH + t))
    for i in range(4): a("v_mov_b32 v%d, 0x3f803f80" % (ONES + i))
    for r in range(ACC, CS + 16): a("v_mov_b32 v%d, 0" % r)
    finish_tag()
    a("v_mov_b32 v2, %d\nv_mov_b32 v3, s%d\nds_write_b32 v2, v3" % (TAGL, sTAG))
    a("s_cmp_ge_u32 s%d, 680\ns_cbranch_scc1 L_w4\ns_waitcnt vmcnt(8)\ns_branch L_w8" % sK0)
    a.label("L_w4"); a("s_waitcnt vmcnt(4)"); a.label("L_w8")
    for i in range(10):
        a("v_lshlrev_b32 v%d, 16, v%d\nv_and_b32 v%d, 0xffff0000, v%d" % (150 + 2*i, 140 + i, 151 + 2*i, 140 + i))
    a("v_pk_add_f32 v[2:3], v[150:151], v[152:153]")
    for i in range(2, 10): a("v_pk_add_f32 v[2:3], v[2:3], v[%d:%d]" % (150 + 2*i, 151 + 2*i))
    a("v_add_f32 v2, v2, v3")
    allreduce32(2, 3)
    a("v_mul_f32 v2, 0x3acccccd, v2")
    for i in range(10): a("v_pk_add_f32 v[%d:%d], v[%d:%d], v[2:3] op_sel_hi:[1,0] neg_lo:[0,1] neg_hi:[0,1]" % (150+2*i, 151+2*i, 150+2*i, 151+2*i))
    a("v_pk_mul_f32 v[4:5], v[150:151], v[150:151]")
    for i in range(1, 10): a("v_pk_fma_f32 v[4:5], v[%d:%d], v[%d:%d], v[4:5]" % (150+2*i, 151+2*i, 150+2*i, 151+2*i))
    a("v_add_f32 v4, v4, v5")
    allreduce32(4, 5)
    a("v_mul_f32 v4, 0x3acccccd, v4")
    bf16_round(4); a("v_add_f32 v4, 0x3727c5ac, v4"); bf16_round(4)
    a("v_sqrt_f32 v4, v4\ns_nop 0"); bf16_round(4); bf16_round(2)
    a("v_rcp_f32 v140, v4\nv_mov_b32 v141, s%d\nv_mov_b32 v143, s%d\nv_mul_f32 v142, v140, v2" % (sTAG, sTAG))
    a("v_lshrrev_b32 v1, 1, v0\ns_lshl_b32 s3, s%d, 4\ns_add_u32 s3, s3, 0x%x" % (sT1, STAT_OFF))
    a("s_mov_b32 exec_lo, 1\ns_mov_b32 exec_hi, 1")
    a("buffer_store_dwordx4 v[140:143], v1, %s, s3 offen sc1" % S(S_WS))
    a("s_mov_b64 exec, -1")
    a("s_cmp_ge_u32 s%d, 680\ns_cbranch_scc1 L_norelay2" % sK0)
    a("v_lshrrev_b32 v2, 2, v0\nv_and_b32 v3, 3, v0\nv_lshlrev_b32 v4, 7, v2\nv_lshl_add_u32 v4, v3, 3, v4\nv_bfe_u32 v5, v0, 3, 2\nv_lshl_add_u32 v4, v5, 5, v4")
    a("s_lshl_b32 s3, s%d, 12\ns_add_u32 s3, s3, %d" % (sWV, RELAY))
    for t in range(4): a("v_xor_b32 v5, %d, v4\nv_add_u32 v%d, s3, v5" % (32*t, 170 + t))
    a("s_waitcnt vmcnt(5)")
    for t in range(4):
        a("ds_read_b64_tr_b16 %s, v%d\nds_read_b64_tr_b16 %s, v%d offset:2048" % (R2(180 + 4*t), 170 + t, R2(182 + 4*t), 170 + t))
    a("v_lshlrev_b32 v1, 4, v0\ns_mul_i32 s3, s%d, 40\ns_lshl_b32 s%d, s%d, 2\ns_add_u32 s3, s3, s%d\ns_lshl_b32 s3, s3, 10\ns_add_u32 s3, s3, 0x%x" % (sK1, sT3, sT3, sT3, B2_OFF))
    a("s_waitcnt lgkmcnt(0)")
    for t in range(4):
        a("buffer_store_dwordx4 %s, v1, %s, s3 offen offset:%d sc1" % (R4(180 + 4*t), S(S_WS), 1024*t))
    a.label("L_norelay2")
    a("s_waitcnt vmcnt(0) lgkmcnt(0)")

def frag_reads(ty, F, ks2):
    r = []
    for i in range(4):
        r.append("ds_read_b128 %s, v%d offset:%d" % (R4(F + 4*i), vA1 if ks2 else vA0, 2048*i))
    nseg = 5 if ty == 0 else 3
    for t in range(7):
        d = F + 16 + 4*t
        for rd in range(2):
            if t < nseg:
                if t == 2: reg, off = vS2, 0
                elif t < 2: reg, off = vS, K_OFF + 32*t
                else: reg, off = vS, V_OFF + 16 + 32*(t - 3)
                off += ks2 * 5120 + rd * 2560
            else:
                reg, off = vH + (t - nseg), ks2 * 4096 + rd * 2048
            r.append("ds_read_b64_tr_b16 %s, v%d offset:%d" % (R2(d + 2*rd), reg, off))
    return r

def transposed(ty, t): return ty == 1 or t >= 5

def mfmas(ty, m, F):
    r = []
    for t in range(7):
        B = R4(F + 16 + 4*t)
        for i in range(4):
            A = R4(F + 4*i); D = R4(acc(i, t))
            r.append("v_mfma_f32_16x16x32_bf16 %s, %s, %s, %s" % ((D, B, A, D) if transposed(ty, t) else (D, A, B, D)))
        if t % 2 == m:
            D = R4(CS + 4*(t // 2)); O = R4(ONES)
            r.append("v_mfma_f32_16x16x32_bf16 %s, %s, %s, %s" % ((D, B, O, D) if transposed(ty, t) else (D, O, B, D)))
    return r

def interleave(mm, rr):
    for k, x in enumerate(mm):
        a(x)
        if k < len(rr): a(rr[k])

def addr_regs(ty): return [vA0, vA1, vS, vS2] + [vH + t for t in range(2 if ty == 0 else 4)]

def main_loop(ty, m):
    tag = "%d%d" % (ty, m)
    a("s_mov_b32 s%d, 0\ns_mov_b32 s%d, 0" % (sCnt, sSlot))
    a("s_barrier")
    for x in frag_reads(ty, F0, 0): a(x)
    a("s_waitcnt lgkmcnt(0)")
    a("s_branch L_mid%s" % tag)
    a.raw(".p2align 3")
    a.label("L_top%s" % tag)
    a("s_barrier")
    a("s_nop 0")
    interleave(mfmas(ty, m, F1), frag_reads(ty, F0, 0))
    a("s_waitcnt lgkmcnt(0)\ns_nop 0")
    a.label("L_mid%s" % tag)
    upd = ["v_add_u32_e64 v%d, s%d, v%d" % (r, sT1, r) for r in addr_regs(ty)]
    a("s_add_u32 s%d, s%d, 1\ns_cmp_eq_u32 s%d, 3\ns_cselect_b32 s%d, 0, s%d\ns_mov_b32 s%d, %d\ns_cselect_b32 s%d, %d, s%d\ns_add_u32 s%d, s%d, 1" % (sSlot, sSlot, sSlot, sSlot, sSlot, sT1, SLOT, sT1, (-2*SLOT) & 0xffffffff, sT1, sCnt, sCnt))
    interleave(mfmas(ty, m, F0), frag_reads(ty, F1, 1) + upd)
    a("s_cmp_lt_u32 s%d, 10\ns_waitcnt lgkmcnt(0)\ns_cbranch_scc1 L_top%s" % (sCnt, tag))
    for x in mfmas(ty, m, F1): a(x)
    a("v_lshlrev_b32 v1, 4, v0\ns_lshl_b32 s3, s%d, 12\ns_add_u32 s3, s3, %d\nv_add_u32 v2, s3, v1\nv_xor_b32 v3, 0x2000, v2" % (sWV, 0))
    a("s_nop 4")
    for k in range(4 - m):
        a("ds_write_b128 v2, %s offset:%d" % (R4(CS + 4*k), CSX + 1024*k))
    a("s_waitcnt lgkmcnt(0)\ns_barrier")
    for t in range(7):
        if t % 2 == m:
            for j in range(0, 4, 2): a("v_mov_b64 %s, %s" % (R2(F0 + 4*t + j), R2(CS + 4*(t//2) + j)))
        else:
            a("ds_read_b128 %s, v3 offset:%d" % (R4(F0 + 4*t), CSX + 1024*(t//2)))

CT = F0
RS = 164
BF = 172
KC = 188
TMP = 192
R4S = 224

def load_T_stats():
    a("v_and_b32 v4, 15, v0\nv_lshlrev_b32 v4, 2, v4\ns_lshl_b32 s3, s%d, 8\ns_add_u32 s3, s3, %d\nv_add_u32 v4, s3, v4" % (sM, STATL))
    for i in range(4):
        a("ds_read2_b32 %s, v4 offset0:%d offset1:%d" % (R2(RS + 2*i), 16*i, 128 + 16*i))
def unpack_b1(nt):
    for k in range(2*nt):
        a("v_lshlrev_b32 v%d, 16, v%d\nv_and_b32 v%d, 0xffff0000, v%d" % (BF + 2*k, vB1 + k, BF + 2*k + 1, vB1 + k))
def consts():
    import struct
    f = lambda x: struct.unpack("<I", struct.pack("<f", x))[0]
    c0 = -2.0 * 0.7978845608028654 * 1.4426950408889634; c1 = c0 * 0.044715
    a("v_mov_b32 v%d, 0x%x\nv_mov_b32 v%d, 0x%x\nv_mov_b32 v%d, 0x%x\nv_mov_b32 v%d, 0x%x" % (KC, f(c1), KC+1, f(c0), KC+2, f(1.4426950408889634), KC+3, f(1e-6)))

def gelu_block(i, t0, bt0, voff, soff):
    P = [(acc(i, t0 + q//2) + 2*(q % 2), CT + 4*(t0 + q//2) + 2*(q % 2), BF + 4*(bt0 + q//2) + 2*(q % 2), TMP + 2*q, TMP + 8 + 2*q) for q in range(4)]
    rs = R2(RS + 2*i)
    for (h, c, b, u, w) in P: a("v_pk_fma_f32 %s, %s, %s, %s op_sel:[1,0,0] op_sel_hi:[1,1,1] neg_lo:[1,0,0] neg_hi:[1,0,0]" % (R2(u), rs, R2(c), R2(b)))
    for (h, c, b, u, w) in P: a("v_pk_fma_f32 %s, %s, %s, %s op_sel:[0,0,0] op_sel_hi:[0,1,1]" % (R2(h), rs, R2(h), R2(u)))
    for (h, c, b, u, w) in P: a("v_pk_mul_f32 %s, %s, %s" % (R2(u), R2(h), R2(h)))
    for (h, c, b, u, w) in P: a("v_pk_fma_f32 %s, %s, %s, %s op_sel:[0,0,1] op_sel_hi:[1,0,1]" % (R2(u), R2(u), R2(KC), R2(KC)))
    for (h, c, b, u, w) in P: a("v_pk_mul_f32 %s, %s, %s" % (R2(u), R2(u), R2(h)))
    for (h, c, b, u, w) in P: a("v_exp_f32 v%d, v%d\nv_exp_f32 v%d, v%d" % (u, u, u+1, u+1))
    for (h, c, b, u, w) in P: a("v_pk_add_f32 %s, %s, 1.0 op_sel_hi:[1,0]" % (R2(u), R2(u)))
    for (h, c, b, u, w) in P: a("v_rcp_f32 v%d, v%d\nv_rcp_f32 v%d, v%d" % (u, u, u+1, u+1))
    for (h, c, b, u, w) in P: a("v_pk_mul_f32 %s, %s, %s" % (R2(u), R2(u), R2(h)))
    o = acc(i, t0)
    for q, (h, c, b, u, w) in enumerate(P): a("v_cvt_pk_bf16_f32 v%d, v%d, v%d" % (o + q, u, u+1))
    a("buffer_store_dwordx4 %s, v%d, %s, s%d offen offset:%d sc1" % (R4(o), voff, S(S_WS), soff, 1024*i))

def phi_pairs(P):
    for (h, u) in P: a("v_pk_mul_f32 %s, %s, %s op_sel:[0,0] op_sel_hi:[1,0]" % (R2(u), R2(h), R2(KC + 2)))
    for (h, u) in P: a("v_exp_f32_e64 v%d, v%d clamp\nv_exp_f32_e64 v%d, v%d clamp" % (u, u, u+1, u+1))
    for (h, u) in P: a("v_max_f32 v%d, v%d, v%d\nv_max_f32 v%d, v%d, v%d" % (h, h, KC+3, h+1, h+1, KC+3))
    for (h, u) in P: a("v_pk_add_f32 %s, %s, %s" % (R2(h), R2(h), R2(u)))

def a2_soff(dst, ks_expr_emit):
    ks_expr_emit()
    a("s_lshl_b32 s%d, s%d, 1\ns_add_u32 s%d, s%d, s%d\ns_mul_i32 s%d, s%d, 68\ns_add_u32 s%d, s%d, s3\ns_lshl_b32 s%d, s%d, 12" % (dst, sRB, dst, dst, sM, dst, dst, dst, dst, dst, dst))

def h_flag():
    a("s_lshl_b32 s3, s%d, 1\ns_add_u32 s3, s3, s%d\ns_lshl_b32 s3, s3, 7\ns_lshl_b32 s%d, s%d, 6\ns_add_u32 s3, s3, s%d\ns_lshl_b32 s%d, s%d, 3\ns_add_u32 s3, s3, s%d\ns_lshl_b32 s%d, s%d, 2\ns_add_u32 s3, s3, s%d\ns_add_u32 s3, s3, 0x%x" % (sRB, sM, sT1, sTY, sT1, sT1, sJJ, sT1, sT1, sN, sT1, FH))
    a("s_waitcnt vmcnt(0)")
    flag_store(3, 2)

def epilogue_kv():
    unpack_b1(2); consts()
    load_T_stats()
    a("v_lshrrev_b32 v4, 4, v0\nv_lshlrev_b32 v4, 4, v4\ns_lshl_b32 s3, s%d, 8\ns_add_u32 s3, s3, %d\nv_add_u32 v4, s3, v4" % (sM, STATL))
    for i in range(4):
        a("ds_read_b128 %s, v4 offset:%d\nds_read_b128 %s, v4 offset:%d" % (R4(R4S + 4*i), 64*i, R4(R4S + 16 + 4*i), 512 + 64*i))
    a("v_and_b32 v5, 8, v0\nv_cmp_eq_u32 vcc, 0, v5")
    a("v_mov_b32 v6, 0\nv_mov_b32 v7, 0x3f803f80")
    a("v_cndmask_b32 v5, v6, v%d, vcc" % (KC + 3))
    a("v_mov_b32 v4, v5")
    a("s_waitcnt lgkmcnt(0)")
    for i in range(4):
        for t in range(5):
            for q in range(2):
                h = acc(i, t) + 2*q; u = TMP + 4*t + 2*q
                rm = R2(R4S + 16 + 4*i + 2*q); c = R2(CT + 4*t)
                if t < 2: a("v_pk_fma_f32 %s, %s, %s, %s op_sel:[0,0,1] op_sel_hi:[1,0,1] neg_lo:[1,0,0] neg_hi:[1,0,0]" % (R2(u), rm, c, R2(KC + 2)))
                elif t == 2: a("v_pk_fma_f32 %s, %s, %s, v[4:5] op_sel:[0,0,0] op_sel_hi:[1,0,1] neg_lo:[1,0,0] neg_hi:[1,0,0]" % (R2(u), rm, c))
                else: a("v_pk_mul_f32 %s, %s, %s op_sel:[0,0] op_sel_hi:[1,0] neg_lo:[1,0] neg_hi:[1,0]" % (R2(u), rm, c))
        for t in range(5):
            for q in range(2):
                h = acc(i, t) + 2*q; u = TMP + 4*t + 2*q
                a("v_pk_fma_f32 %s, %s, %s, %s" % (R2(h), R2(R4S + 4*i + 2*q), R2(h), R2(u)))
        a("v_cvt_pk_bf16_f32 v%d, v%d, v%d\nv_cvt_pk_bf16_f32 v%d, v%d, v%d" % (TMP+20, acc(i,2), acc(i,2)+1, TMP+21, acc(i,2)+2, acc(i,2)+3))
        phi_pairs([(acc(i, t) + 2*q, TMP + 4*t + 2*q) for t in range(3) for q in range(2)])
        e = 2 * (i >> 1); o = 2 * (i & 1)
        for t in range(5):
            a("v_cvt_pk_bf16_f32 v%d, v%d, v%d\nv_cvt_pk_bf16_f32 v%d, v%d, v%d" % (acc(e,t)+o, acc(i,t), acc(i,t)+1, acc(e,t)+o+1, acc(i,t)+2, acc(i,t)+3))
        a("v_cndmask_b32 v%d, v%d, v7, vcc\nv_cndmask_b32 v%d, v%d, v7, vcc" % (CS + 4*(i>>1) + o, TMP+20, CS + 4*(i>>1) + o + 1, TMP+21))
    prods = [(0,2),(0,3),(1,2),(1,3),(1,4),(2,2),(2,3),(2,4)]
    a("s_nop 1")
    for ksr in range(2):
        for k, (ti, tj) in enumerate(prods):
            B = R4(CS + 4*ksr) if tj == 2 else R4(acc(2*ksr, tj))
            D = R4(TMP + 4*k)
            a("v_mfma_f32_16x16x32_bf16 %s, %s, %s, %s" % (D, R4(acc(2*ksr, ti)), B, "0" if ksr == 0 else D))
    a("v_lshlrev_b32 v1, 4, v0\ns_mul_i32 s3, s%d, 9216\ns_add_u32 s3, s3, %d\nv_add_u32 v2, s3, v1" % (sWV, XK))
    a("s_nop 4")
    for k, (ti, tj) in enumerate(prods):
        a("ds_write_b128 v2, %s offset:%d" % (R4(TMP + 4*k), 1024 * (3*ti + tj - 2)))
    a2_soff(sT2, lambda: a("s_mul_i32 s3, s%d, 6\ns_add_u32 s3, s3, s%d" % (sJJ, sN)))
    a("s_waitcnt lgkmcnt(0)\ns_barrier")
    for i in range(4): gelu_block(i, 5, 0, 1, sT2)
    if FUSED: h_flag()

def epilogue_qh():
    unpack_b1(4); consts()
    load_T_stats()
    a("v_lshlrev_b32 v1, 4, v0")
    a2_soff(sT2, lambda: a("s_mul_i32 s3, s%d, 6\ns_lshl_b32 s%d, s%d, 1\ns_add_u32 s3, s3, s%d\ns_add_u32 s3, s3, 2" % (sJJ, sT1, sN, sT1)))
    a("s_add_u32 s%d, s%d, 4096" % (sT3, sT2))
    a("s_waitcnt lgkmcnt(0)")
    for i in range(4):
        gelu_block(i, 3, 0, 1, sT2)
        gelu_block(i, 5, 2, 1, sT3)
    for i in range(4):
        rs = R2(RS + 2*i)
        P = [(acc(i, t) + 2*q, TMP + 4*t + 2*q, CT + 4*t + 2*q) for t in range(3) for q in range(2)]
        for (h, u, c) in P: a("v_pk_fma_f32 %s, %s, %s, %s op_sel:[1,0,1] op_sel_hi:[1,1,1] neg_lo:[1,0,0] neg_hi:[1,0,0]" % (R2(u), rs, R2(c), R2(KC + 2)))
        for (h, u, c) in P: a("v_pk_fma_f32 %s, %s, %s, %s op_sel:[0,0,0] op_sel_hi:[0,1,1]" % (R2(h), rs, R2(h), R2(u)))
        phi_pairs([(h, u) for (h, u, c) in P])
        for k, (h, u, c) in enumerate(P): a("v_cvt_pk_bf16_f32 v%d, v%d, v%d" % (acc(i, 0) + k, h, h + 1))
    if FUSED: h_flag()
    a("v_and_b32 v2, 15, v0\nv_lshrrev_b32 v3, 4, v0\ns_mul_i32 s3, s%d, 4608\ns_add_u32 s3, s3, %d" % (sN, IMG))
    a("v_lshl_add_u32 v4, v2, 2, v3\nv_lshlrev_b32 v5, 3, v4\nv_lshlrev_b32 v4, 4, v4\nv_add_u32 v4, s3, v4\nv_add_u32 v5, s3, v5")
    a("v_and_b32 v6, 3, v2\nv_cmp_ne_u32 vcc, 0, v6\ns_nop 1\nv_cndmask_b32 v6, 0, 1, vcc\nv_cmp_eq_u32 vcc, 2, v2\ns_nop 1\nv_cndmask_b32 v6, v6, 0, vcc")
    a("v_add_u32 v6, 40, v6\nv_lshl_add_u32 v6, v6, 2, v3\nv_lshlrev_b32 v7, 3, v6\nv_lshlrev_b32 v6, 4, v6\nv_add_u32 v6, s3, v6\nv_add_u32 v7, s3, v7")
    a2_soff(sT2, lambda: a("s_lshl_b32 s3, s%d, 1\ns_add_u32 s3, s3, s%d\ns_add_u32 s3, s3, 48" % (sJJ, sN)))
    a2_soff(sT3, lambda: a("s_lshr_b32 s3, s%d, 1\ns_add_u32 s3, s3, 64" % sJJ))
    a("s_lshl_b32 s3, s%d, 1\ns_add_u32 s3, s3, s%d\ns_and_b32 s3, s3, 3\ns_lshl_b32 s3, s3, 8\ns_add_u32 s%d, s%d, s3" % (sJJ, sN, sT3, sT3))
    a("v_lshlrev_b32 v2, 4, v2\nv_lshl_add_u32 v2, v3, 3, v2")
    a("s_barrier")
    W32 = 136; W16 = 152
    for to in range(3): a("ds_read_b128 %s, v4 offset:%d" % (R4(W32 + 4*to), 1024*to))
    a("ds_read_b128 %s, v6" % R4(W32 + 12))
    for to in range(1, 3): a("ds_read_b64 %s, v5 offset:%d" % (R2(W16 + 2*to), 3072 + 512*to))
    a("ds_read_b64 %s, v7 offset:3072" % R2(W16 + 6))
    a("s_waitcnt lgkmcnt(0)")
    O = 192
    for i in range(4):
        for to in range(4): a("v_mfma_f32_16x16x32_bf16 %s, %s, %s, 0" % (R4(O + 16*i + 4*to), R4(W32 + 4*to), R4(acc(i, 0))))
    a("s_nop 7")
    for i in range(4):
        for to in range(1, 4): a("v_mfma_f32_16x16x16_bf16 %s, %s, %s, %s" % (R4(O + 16*i + 4*to), R2(W16 + 2*to), R2(acc(i, 1)), R4(O + 16*i + 4*to)))
    a("s_nop 7")
    for i in range(4):
        d = O + 16*i + 12
        for j in range(3): a("v_add_f32 v%d, v%d, v%d" % (d + j, d + j, KC + 3))
        for j in range(3): a("v_rcp_f32 v%d, v%d" % (d + j, d + j))
        a("s_nop 0")
        for to, sel in ((0, 0), (1, 2), (2, 1)):
            for q in range(2):
                x = O + 16*i + 4*to + 2*q
                a("v_pk_mul_f32 %s, %s, %s op_sel:[0,%d] op_sel_hi:[1,%d]" % (R2(x), R2(x), R2(d + (sel & 2)), sel & 1, sel & 1))
        for k in range(6): a("v_cvt_pk_bf16_f32 v%d, v%d, v%d" % (acc(i, 0) + k, O + 16*i + 2*k, O + 16*i + 2*k + 1))
        a("buffer_store_dwordx4 %s, v1, %s, s%d offen offset:%d sc1" % (R4(acc(i, 0)), S(S_WS), sT2, 1024*i))
    a("s_mov_b32 exec_hi, 0")
    for i in range(4):
        a("buffer_store_dwordx2 %s, v2, %s, s%d offen offset:%d sc1" % (R2(acc(i, 1)), S(S_WS), sT3, 1024*i))
    a("s_mov_b64 exec, -1")
    if FUSED:
        a("s_lshl_b32 s3, s%d, 1\ns_add_u32 s3, s3, s%d\ns_lshl_b32 s3, s3, 7\ns_lshl_b32 s%d, s%d, 3\ns_add_u32 s3, s3, s%d\ns_lshl_b32 s%d, s%d, 2\ns_add_u32 s3, s3, s%d\ns_add_u32 s3, s3, 0x%x" % (sRB, sM, sT1, sJJ, sT1, sT1, sN, sT1, FO))
        a("s_waitcnt vmcnt(0)")
        flag_store(3, 2)

def compute_k1():
    compute_prologue()
    if FUSED:
        a("s_lshl_b32 s3, s%d, 2\ns_add_u32 s3, s3, 0x%x" % (sK0, FB2))
        flag_store(3, 2)
    a("s_lshl_b32 s3, s%d, 1\ns_add_u32 s3, s3, s%d" % (sTY, sM))
    a("s_cmp_eq_u32 s3, 1\ns_cbranch_scc1 L_c01\ns_cmp_eq_u32 s3, 2\ns_cbranch_scc1 L_c10\ns_cmp_eq_u32 s3, 3\ns_cbranch_scc1 L_c11")
    main_loop(0, 0); a("s_branch L_epi_kv")
    a.label("L_c01"); main_loop(0, 1)
    a.label("L_epi_kv"); epilogue_kv(); a("s_branch L_k1done")
    a.label("L_c10"); main_loop(1, 0); a("s_branch L_epi_qh")
    a.label("L_c11"); main_loop(1, 1)
    a.label("L_epi_qh"); epilogue_qh()

G_ACC = 4; G_B = 84; G_A = 224
def gemm2():
    a("v_lshlrev_b32 v1, 4, v0\nv_add_u32 v2, 4096, v1")
    a("s_lshl_b32 s%d, s%d, 3\ns_add_u32 s%d, s%d, 4" % (sK0, sWV, sK1, sK0))
    a("s_cmp_lt_u32 s%d, 4\ns_cbranch_scc1 L_g2e" % sWV)
    a("s_lshl_b32 s%d, s%d, 2\ns_add_u32 s%d, s%d, 16\ns_mul_i32 s%d, s%d, 5\ns_add_u32 s%d, s%d, 28" % (sK0, sWV, sK0, sK0, sK1, sWV, sK1, sK1))
    a.label("L_g2e")
    sAo0, sAo1, sBo0, sBo1 = sLA, sLP, sLP4, sLH
    a("s_mul_i32 s3, s%d, 68\ns_add_u32 s%d, s3, s%d\ns_lshl_b32 s%d, s%d, 12\ns_add_u32 s%d, s3, s%d\ns_lshl_b32 s%d, s%d, 12" % (sRT, sAo0, sK0, sAo0, sAo0, sAo1, sK1, sAo1, sAo1))
    a("s_mul_i32 s3, s%d, 5120\ns_add_u32 s3, s3, 0x%x\ns_mul_i32 s%d, s%d, 40960\ns_add_u32 s%d, s%d, s3\ns_mul_i32 s%d, s%d, 40960\ns_add_u32 s%d, s%d, s3" % (sCT, B2_OFF, sBo0, sK0, sBo0, sBo0, sBo1, sK1, sBo1, sBo1))
    def loadB(s):
        d = G_B + 20 * (s % 7)
        base, k = (sBo0, s) if s < 4 else (sBo1, s - 4)
        a("s_add_u32 s3, s%d, %d" % (base, 40960 * k))
        if s == 8: a("s_cmp_lt_u32 s%d, 4\ns_cselect_b32 s3, 0x7f000000, s3" % sWV)
        for t in range(4): a("buffer_load_dwordx4 %s, v1, %s, s3 offen offset:%d sc1" % (R4(d + 4*t), S(S_WS), 1024*t))
        a("buffer_load_dwordx4 %s, v2, %s, s3 offen sc1" % (R4(d + 16), S(S_WS)))
    def loadA(s):
        d = G_A + 16 * (s % 2)
        base, k = (sAo0, s) if s < 4 else (sAo1, s - 4)
        a("s_add_u32 s3, s%d, %d" % (base, 4096 * k))
        if s == 8: a("s_cmp_lt_u32 s%d, 4\ns_cselect_b32 s3, 0x7f000000, s3" % sWV)
        for i in range(4): a("buffer_load_dwordx4 %s, v1, %s, s3 offen offset:%d sc1" % (R4(d + 4*i), S(S_WS), 1024*i))
    if FUSED:
        lp = "L_b2poll"
        a("s_mov_b32 s%d, %d\ns_mov_b32 s3, 0x%x" % (sSpin, SPIN, FB2))
        a.label(lp)
        for q in range(4): a("buffer_load_dwordx4 %s, v1, %s, s3 offen offset:%d sc1" % (R4(G_A + 4*q), S(S_WS), 1024*q))
        a("s_waitcnt vmcnt(0)")
        for q in range(16): a("v_xor_b32 v%d, s%d, v%d" % (G_A + q, sTAG, G_A + q))
        for q in range(1, 15, 2): a("v_or3_b32 v%d, v%d, v%d, v%d" % (G_A, G_A, G_A + q, G_A + q + 1))
        a("v_or_b32 v%d, v%d, v%d\nv_cmp_ne_u32 vcc, 0, v%d\ns_cbranch_vccz L_b2ok" % (G_A, G_A, G_A + 15, G_A))
        a("s_sleep 1\ns_sub_u32 s%d, s%d, 1\ns_cbranch_scc0 %s" % (sSpin, sSpin, lp))
        a.label("L_b2ok")
    for s in range(7): loadB(s)
    if FUSED:
        a("v_lshlrev_b32 v3, 2, v0\ns_lshl_b32 s%d, s%d, 7\ns_add_u32 s%d, s%d, 0x%x" % (sT1, sRT, sT1, sT1, FH))
        poll(3, sT1, 32, G_A, "h")
    loadA(0); loadA(1)
    out = ["B%d" % s for s in range(7) for _ in range(5)] + ["A0"] * 4 + ["A1"] * 4
    for s in range(9):
        if s == 8:
            a("s_cmp_lt_u32 s%d, 4\ns_cbranch_scc1 L_g2done" % sWV)
        need = max(i for i, x in enumerate(out) if x in ("A%d" % s, "B%d" % s))
        a("s_waitcnt vmcnt(%d)" % (len(out) - 1 - need))
        out = out[need + 1:]
        for t in range(5):
            for i in range(4):
                D = R4(G_ACC + (i*5 + t) * 4)
                a("v_mfma_f32_16x16x32_bf16 %s, %s, %s, %s" % (D, R4(G_B + 20*(s % 7) + 4*t), R4(G_A + 16*(s % 2) + 4*i), "0" if s == 0 else D))
        if s + 2 < 9:
            if FUSED and s + 2 == 4:
                a("s_cmp_lt_u32 s%d, 4\ns_cbranch_scc1 L_noopoll" % sWV)
                a("s_lshl_b32 s%d, s%d, 7\ns_add_u32 s%d, s%d, 0x%x" % (sT1, sRT, sT1, sT1, FO))
                poll(3, sT1, 16, G_A + 16*(s % 2), "o")
                a.label("L_noopoll")
            loadA(s + 2); out += ["A%d" % (s + 2)] * 4
        if s + 7 < 9:
            loadB(s + 7); out += ["B%d" % (s + 7)] * 5
    a.label("L_g2done")
    a("s_waitcnt vmcnt(0)")
    REG = 21504
    a("s_and_b32 s3, s%d, 3\ns_mul_i32 s3, s3, %d\nv_add_u32 v3, s3, v1" % (sWV, REG))
    XR = 84
    for rnd in range(2):
        a("v_add_u32 v%d, %d, v0\nv_mul_u32_u24 v%d, 6554, v%d\nv_lshrrev_b32 v%d, 16, v%d\nv_mul_u32_u24 v%d, 10, v%d\nv_sub_u32 v%d, v%d, v%d" % (224, 64*rnd, 225, 224, 225, 225, 226, 225, 224, 224, 226))
        a("s_lshl_b32 s3, s%d, 3\nv_add_u32 v225, s3, v225" % sWV)
        a("v_mul_u32_u24 v226, 336, v225\nv_lshl_add_u32 v%d, v224, 5, v226" % (228 + rnd))
        a("v_mul_u32_u24 v226, 1280, v225\nv_lshl_add_u32 v%d, v224, 4, v226" % (230 + rnd))
        a("v_lshlrev_b32 v%d, 4, v224" % (232 + rnd))
    a("v_mov_b32 v226, 0x7f000000\nv_cmp_gt_u32 vcc, 16, v0\ns_nop 1\nv_cndmask_b32 v231, v226, v231, vcc\nv_cndmask_b32 v229, 0, v229, vcc")
    a("s_mul_i32 s%d, s%d, %d\ns_mul_i32 s%d, s%d, 160\ns_add_u32 s%d, s%d, s%d" % (sT1, sRT, 64*1280, sT2, sCT, sT1, sT1, sT2))
    for rnd in range(2):
        a("buffer_load_dwordx4 %s, v%d, %s, s%d offen" % (R4(XR + 8*rnd), 230 + rnd, S(S_X), sT1))
        a("buffer_load_dwordx4 %s, v%d, %s, s%d offen" % (R4(XR + 4 + 8*rnd), 232 + rnd, S(S_B2), sT2))
    if FUSED: a("s_barrier")
    a("s_cmp_ge_u32 s%d, 4\ns_cbranch_scc1 L_late" % sWV)
    for k in range(20): a("ds_write_b128 v3, %s offset:%d" % (R4(G_ACC + 4*k), 1024*k))
    a("s_waitcnt lgkmcnt(0)\ns_barrier\ns_branch L_fin")
    a.label("L_late")
    a("s_barrier")
    for k in range(20): a("ds_read_b128 %s, v3 offset:%d" % (R4(104 + 4*k), 1024*k))
    a("v_and_b32 v234, 15, v0\nv_lshrrev_b32 v235, 4, v0\nv_mul_u32_u24 v234, 336, v234\nv_lshl_add_u32 v234, v235, 4, v234")
    a("s_and_b32 s3, s%d, 3\ns_mul_i32 s3, s3, %d\nv_add_u32 v234, s3, v234" % (sWV, REG))
    a("s_waitcnt lgkmcnt(0)")
    for k in range(40): a("v_pk_add_f32 %s, %s, %s" % (R2(G_ACC + 2*k), R2(G_ACC + 2*k), R2(104 + 2*k)))
    for i in range(4):
        for t in range(5): a("ds_write_b128 v234, %s offset:%d" % (R4(G_ACC + (i*5 + t)*4), 16*336*i + 64*t))
    a("s_waitcnt lgkmcnt(0)")
    a.label("L_fin")
    a("s_barrier")
    for rnd in range(2):
        for p in range(4):
            if p == 3: a("v_add_u32 v%d, %d, v%d" % (228 + rnd, 3*REG, 228 + rnd))
            off = REG*p if p < 3 else 0
            a("ds_read_b128 %s, v%d offset:%d\nds_read_b128 %s, v%d offset:%d" % (R4(104 + 32*rnd + 8*p), 228 + rnd, off, R4(108 + 32*rnd + 8*p), 228 + rnd, off + 16))
    a("s_waitcnt vmcnt(0)")
    for rnd in range(2):
        for k in range(4):
            for (src, dst) in ((XR + 8*rnd + k, 4 + 16*rnd + 2*k), (XR + 4 + 8*rnd + k, 12 + 16*rnd + 2*k)):
                a("v_lshlrev_b32 v%d, 16, v%d\nv_and_b32 v%d, 0xffff0000, v%d" % (dst, src, dst + 1, src))
        for k in range(4): a("v_pk_add_f32 %s, %s, %s" % (R2(4 + 16*rnd + 2*k), R2(4 + 16*rnd + 2*k), R2(12 + 16*rnd + 2*k)))
    a("s_waitcnt lgkmcnt(0)")
    for rnd in range(2):
        b = 104 + 32*rnd
        for k in range(4):
            a("v_pk_add_f32 %s, %s, %s\nv_pk_add_f32 %s, %s, %s" % (R2(b + 2*k), R2(b + 2*k), R2(b + 8 + 2*k), R2(b + 16 + 2*k), R2(b + 16 + 2*k), R2(b + 24 + 2*k)))
        for k in range(4): a("v_pk_add_f32 %s, %s, %s" % (R2(b + 2*k), R2(b + 2*k), R2(b + 16 + 2*k)))
        for k in range(4): a("v_pk_add_f32 %s, %s, %s" % (R2(b + 2*k), R2(b + 2*k), R2(4 + 16*rnd + 2*k)))
        for k in range(4): a("v_cvt_pk_bf16_f32 v%d, v%d, v%d" % (b + k, b + 2*k, b + 2*k + 1))
        a("buffer_store_dwordx4 %s, v%d, %s, s%d offen" % (R4(b), 230 + rnd, S(S_OUT), sT1))

def bump_epoch():
    a("s_mov_b32 s3, 0x%x" % EPOCH)
    flag_store(3, 2)

K1 = BASE + "_kernel"; K2 = "gemm2_kernel"
hdr = open("cdna_kernels/%s.s.ref" % BASE).read().split("; Override")[0]
a.raw(hdr.rstrip())
if FUSED:
    a.raw("; @launch grid=(256,1,1) block=(512,1,1) lds=163840")
else:
    a.raw("; @launch kernel=%s grid=(256,1,1) block=(512,1,1) lds=163840" % K1)
    a.raw("; @launch kernel=%s grid=(256,1,1) block=(512,1,1) lds=163840" % K2)
a.raw('.amdgcn_target "amdgcn-amd-amdhsa--gfx950"\n.text')
kernel_header(a, K1)
prologue_common()
a("s_cmp_lt_u32 s%d, 4\ns_cbranch_scc1 L_compute" % sWV)
loader_k1()
a.label("L_compute")
compute_k1()
a.label("L_k1done")
if FUSED:
    gemm2()
    a("s_cmp_lg_u32 s2, 0\ns_cbranch_scc1 L_end\ns_cmp_lg_u32 s%d, 4\ns_cbranch_scc1 L_end" % sWV)
    bump_epoch()
else:
    a("s_cmp_lg_u32 s2, 64\ns_cbranch_scc1 L_end\ns_cmp_lg_u32 s%d, 4\ns_cbranch_scc1 L_end" % sWV)
    bump_epoch()
a.label("L_end")
a("s_endpgm")
if not FUSED:
    kernel_header(a, K2)
    prologue_common(True)
    a("s_waitcnt lgkmcnt(0)")
    build_srds()
    gemm2()
    a.label("L_end2")
    a("s_endpgm")
a.raw('.section .rodata,"a"')
kernel_desc(a, K1, 256, 100)
if not FUSED: kernel_desc(a, K2, 256, 100)
sys.stdout.write(a.text())
```

```python
import sys
from asmlib import *
BASE = "parallel_sum__linear_attn_block__dense_activation_gelu__prompt"
OPT = dict(fused=1, stamps=0, nodma=0, noread=0, nomfma=0, cyc=0, norst=0, noreld=0, plainst=0, xmap=0)
for arg in sys.argv[1:]:
    k, v = arg.split("="); OPT[k] = int(v)
FUSED = OPT["fused"]; STAMPS = OPT["stamps"]

A2_OFF = 0
B2_OFF = 0x900000
KVP_OFF = 0xC00000; KVP_STRIDE = 6912
STAT_OFF = 0xD00000
FLAG_OFF = 0xD10000
EPOCH = FLAG_OFF; FB2 = FLAG_OFF + 0x1000; FKV = FLAG_OFF + 0x2000; FH = FLAG_OFF + 0x3000; FO = FLAG_OFF + 0x4000
STAMP_OFF = 0xE00000
WS_SIZE = 0x1000000
SLOT = 45184
K_OFF = 16384; V_OFF = 26640; HKV_OFF = 36992; HQ_OFF = 26624; DUMMY_OFF = 43008
MISC = 3 * SLOT
STATL = MISC
RELAY = MISC + 1024
IMG = MISC + 1024
TAGL = MISC + 20480
CSX = SLOT
XK = 2 * SLOT
SPIN = 200000
S_X, S_WQ, S_W1, S_WS, S_P, S_OUT, S_B1, S_B2 = 4, 8, 12, 16, 20, 24, 28, 32
KA = 36
sRB, sJJ, sTY, sWV, sTAG = 58, 59, 60, 61, 62
sM, sN = 63, 64
sT0, sT1, sT2, sT3 = 3, 65, 66, 67
sLA, sLP, sLP4, sLH, sIncP, sA, sP, sH, sSlot, sCnt = 68, 69, 70, 71, 72, 73, 74, 75, 76, 77
sEX = 78
sSpin = 80
sRT, sCT = 81, 82
sK0, sK1 = 83, 84
sST = 86

a = Asm()
def srd(d, p, n):
    a("s_mov_b32 s%d, s%d\ns_mov_b32 s%d, s%d\ns_mov_b32 s%d, 0x%x\ns_mov_b32 s%d, 0x20000" % (d, p, d+1, p+1, d+2, n, d+3))
def S(d): return "s[%d:%d]" % (d, d+3)
def stamp(idx):
    if not STAMPS: return
    a("%s s[%d:%d]\ns_waitcnt lgkmcnt(0)\ns_mov_b32 s%d, s%d" % ("s_memtime" if OPT["cyc"] else "s_memrealtime", sST, sST+1, sST + 2 + idx, sST))
def stamp_init():
    if not STAMPS: return
    for i in range(14): a("s_mov_b32 s%d, 0" % (sST + 2 + i))
def stamp_store(extra=0):
    if not STAMPS: return
    a("s_waitcnt vmcnt(0)")
    stamp(13)
    for i in range(14): a("v_mov_b32 v%d, s%d" % (4 + i, sST + 2 + i))
    a("v_mov_b32 v18, 0\nv_mov_b32 v19, 0\nv_mov_b32 v2, 0\ns_lshl_b32 s3, s2, 3\ns_add_u32 s3, s3, s%d\ns_lshl_b32 s3, s3, 6\ns_add_u32 s3, s3, 0x%x\ns_mov_b64 exec, 1" % (sWV, STAMP_OFF + extra))
    for i in range(4): a("buffer_store_dwordx4 v[%d:%d], v2, %s, s3 offen offset:%d" % (4 + 4*i, 7 + 4*i, S(S_WS), 16*i))
    a("s_mov_b64 exec, -1")

def prologue_common(k2=False):
    a("s_cmp_ge_u32 s2, 256\ns_cbranch_scc1 L_end%s" % ("2" if k2 else ""))
    a("s_load_dwordx16 s[36:51], s[0:1], 0\ns_load_dwordx4 s[52:55], s[0:1], 64\ns_load_dwordx2 s[56:57], s[0:1], 80")
    stamp_init(); stamp(0)
    a("v_lshrrev_b32 v1, 6, v0\nv_and_b32 v0, 63, v0\nv_readfirstlane_b32 s%d, v1" % sWV)
    a("s_and_b32 s3, s2, 1\ns_lshl_b32 s3, s3, 3\ns_bfe_u32 s%d, s2, 0x30003\ns_add_u32 s%d, s%d, s3" % (sRB, sRB, sRB))
    a("s_bfe_u32 s%d, s2, 0x10006" % sTY)
    a("s_and_b32 s3, s2, 6\ns_lshr_b32 s%d, s2, 7\ns_add_u32 s%d, s%d, s3" % (sJJ, sJJ, sJJ))
    if OPT["xmap"]:
        a("s_and_b32 s3, s2, 7\ns_lshl_b32 s3, s3, 1\ns_bfe_u32 s%d, s2, 0x10003\ns_add_u32 s%d, s%d, s3" % (sRB, sRB, sRB))
        a("s_bfe_u32 s3, s2, 0x20004\ns_lshr_b32 s%d, s2, 7\ns_lshl_b32 s%d, s%d, 2\ns_add_u32 s%d, s%d, s3" % (sJJ, sJJ, sJJ, sJJ, sJJ))
    a("s_and_b32 s3, s2, 7\ns_lshl_b32 s3, s3, 2\ns_bfe_u32 s%d, s2, 0x20003\ns_add_u32 s%d, s%d, s3\ns_lshr_b32 s%d, s2, 5" % (sRT, sRT, sRT, sCT))

def build_srds():
    srd(S_X, 36, 2048*1280); srd(S_WQ, 38, 640*3840); srd(S_W1, 44, 640*3072); srd(S_WS, 56, WS_SIZE)
    srd(S_OUT, 52, 2048*1280); srd(S_B1, 46, 3072); srd(S_B2, 50, 1280)

def load_tag():
    a("s_add_u32 s%d, s56, 0x%x\ns_addc_u32 s%d, s57, 0" % (sEX, EPOCH, sEX+1))
    a("s_load_dword s%d, s[%d:%d], 0" % (sTAG, sEX, sEX+1))
def finish_tag():
    a("s_waitcnt lgkmcnt(0)\ns_mul_i32 s%d, s%d, 0x9E3779B1\ns_add_u32 s%d, s%d, 0x7F4A7C15" % (sTAG, sTAG, sTAG, sTAG))

def poll(voff, soff, nlanes, vt, name):
    lp = a.newlabel("Lpoll_" + name); dn = a.newlabel("Lpolld_" + name)
    a("s_mov_b32 s%d, %d" % (sSpin, SPIN))
    if nlanes < 64:
        a("s_mov_b32 exec_lo, 0x%x\ns_mov_b32 exec_hi, 0" % ((1 << nlanes) - 1))
    a.label(lp)
    a("buffer_load_dword v%d, v%d, %s, s%d offen sc1" % (vt, voff, S(S_WS), soff))
    a("s_waitcnt vmcnt(0)")
    a("v_cmp_ne_u32 vcc, s%d, v%d" % (sTAG, vt))
    a("s_cbranch_vccz %s" % dn)
    a("s_sleep 1\ns_sub_u32 s%d, s%d, 1\ns_cbranch_scc0 %s" % (sSpin, sSpin, lp))
    a.label(dn)
    if nlanes < 64:
        a("s_mov_b64 exec, -1")

def flag_store(soff, vt):
    a("v_mov_b32 v%d, s%d\nv_mov_b32 v%d, 0\ns_mov_b64 exec, 1" % (vt, sTAG, vt+1))
    a("buffer_store_dword v%d, v%d, %s, s%d offen sc1" % (vt, vt+1, S(S_WS), soff))
    a("s_mov_b64 exec, -1")

def loader_k1():
    lw = sM
    a("s_setprio 3")
    a("s_sub_u32 s%d, s%d, 4" % (lw, sWV))
    a("v_lshrrev_b32 v2, 3, v0\nv_lshrrev_b32 v3, 4, v0\nv_and_b32 v4, 7, v0")
    a("v_xor_b32 v5, v4, v3\nv_lshlrev_b32 v5, 4, v5")
    a("s_lshl_b32 s3, s%d, 7\ns_lshl_b32 s%d, s%d, 5\ns_add_u32 s3, s3, s%d\ns_mul_i32 s3, s3, 1280" % (sRB, sT1, lw, sT1))
    a("v_mul_u32_u24 v6, 1280, v2\nv_add3_u32 v10, v6, v5, s3")
    a("v_xor_b32 v11, 64, v10\nv_add_u32 v11, 10240, v11\nv_add_u32 v12, 20480, v10\nv_add_u32 v13, 20480, v11")
    a("s_lshl_b32 s%d, s%d, 12" % (sLA, lw))
    a("v_and_b32 v6, 3, v2\nv_lshrrev_b32 v7, 2, v2\nv_lshl_add_u32 v6, v7, 3, v6\nv_mul_u32_u24 v6, 3072, v6")
    a("v_and_b32 v7, 6, v2\nv_xor_b32 v7, v4, v7\nv_lshl_add_u32 v6, v7, 4, v6")
    a("s_mul_i32 s%d, s%d, 384\ns_lshl_b32 s3, s%d, 7\ns_add_u32 s%d, s%d, s3" % (sT1, sJJ, sTY, sT1, sT1))
    a("s_and_b32 s%d, s%d, 1" % (sT2, lw))
    a("s_lshr_b32 s3, s%d, 1\ns_lshl_b32 s3, s3, 3\ns_add_u32 s3, s3, s%d\ns_mul_i32 s3, s3, 12288\ns_add_u32 s3, s3, s%d" % (lw, sT2, sT1))
    a("v_add_u32 v19, s3, v6\nv_add_u32 v20, 49152, v19")
    a("s_movk_i32 s%d, %d\ns_cmp_eq_u32 s%d, 0\ns_cselect_b32 s%d, %d, s%d\ns_lshl_b32 s3, s%d, 11\ns_add_u32 s%d, s%d, s3" % (sLH, HQ_OFF, sTY, sLH, HKV_OFF, sLH, lw, sLH, sLH))
    a("s_lshr_b32 s3, s%d, 1\ns_and_b32 s3, s3, s%d\ns_cmp_eq_u32 s3, 1\ns_cbranch_scc1 L_phmode" % (lw, sTY))
    a("s_mov_b32 s%d, %d" % (sIncP, 64*3840))
    a("s_lshr_b32 s3, s%d, 1\ns_add_u32 s3, s3, 1\ns_cmp_eq_u32 s%d, 0\ns_cselect_b32 s3, s3, 0" % (lw, sTY))
    a("s_mul_i32 s%d, s3, 1280\ns_mul_i32 s%d, s%d, 160\ns_add_u32 s%d, s%d, s%d\ns_mul_i32 s%d, s%d, %d\ns_add_u32 s%d, s%d, s%d" % (sT1, sT3, sJJ, sT1, sT1, sT3, sT3, sT2, 32*3840, sT1, sT1, sT3))
    a("s_movk_i32 s%d, %d\ns_cmp_eq_u32 s3, 2\ns_cselect_b32 s%d, %d, s%d\ns_mul_i32 s%d, s%d, 5120\ns_add_u32 s%d, s%d, s%d" % (sLP, K_OFF, sLP, V_OFF, sLP, sT3, sT2, sLP, sLP, sT3))
    for i in range(5):
        a("v_add_u32 v7, %d, v0" % (64*i))
        a("v_mul_u32_u24 v8, 6554, v7\nv_lshrrev_b32 v8, 16, v8")
        a("v_mul_u32_u24 v9, 10, v8\nv_sub_u32 v7, v7, v9")
        a("v_and_b32 v9, 12, v8\nv_lshlrev_b32 v9, 1, v9\nv_and_or_b32 v9, v8, 3, v9\nv_lshrrev_b32 v8, 4, v8\nv_lshl_add_u32 v9, v8, 2, v9")
        a("v_mul_u32_u24 v9, 3840, v9\nv_lshl_add_u32 v9, v7, 4, v9\nv_add_u32 v%d, s%d, v9" % (14+i, sT1))
    a("s_add_u32 s%d, s%d, 4096" % (sLP4, sLP))
    a("s_waitcnt lgkmcnt(0)")
    srd(S_P, 38, 640*3840)
    a("s_branch L_pdone")
    a.label("L_phmode")
    a("s_mov_b32 s%d, %d" % (sIncP, 64*3072))
    a("s_mul_i32 s3, s%d, %d\ns_add_u32 s3, s3, s%d\ns_add_u32 s3, s3, 128" % (sT2, 32*3072, sT1))
    a("v_add_u32 v14, s3, v6\nv_add_u32 v15, 49152, v14\nv_add_u32 v16, 12288, v14\nv_add_u32 v17, 61440, v14\nv_mov_b32 v18, 0x7f000000")
    a("s_lshl_b32 s3, s%d, 12\ns_add_u32 s%d, s3, %d\ns_mov_b32 s%d, %d" % (sT2, sLP, HQ_OFF + 8192, sLP4, DUMMY_OFF))
    a("s_waitcnt lgkmcnt(0)")
    srd(S_P, 44, 640*3072)
    a.label("L_pdone")
    build_srds()
    a("s_mov_b32 s%d, 0\ns_mov_b32 s%d, 0\ns_mov_b32 s%d, 0\ns_mov_b32 s%d, 0\ns_mov_b32 s%d, 0" % (sA, sP, sH, sSlot, sCnt))
    def issue():
        for i in range(4):
            a("s_add_u32 m0, s%d, s%d" % (sSlot, sLA) if i == 0 else "s_add_u32 m0, m0, 0x400")
            a("s_nop 0\nbuffer_load_dwordx4 v%d, %s, s%d offen lds" % (10+i, S(S_X), sA))
        for i in range(5):
            if i == 0: a("s_add_u32 m0, s%d, s%d" % (sSlot, sLP))
            elif i == 4: a("s_add_u32 m0, s%d, s%d" % (sSlot, sLP4))
            else: a("s_add_u32 m0, m0, 0x400")
            a("s_nop 0\nbuffer_load_dwordx4 v%d, %s, s%d offen lds" % (14+i, S(S_P), sP))
        for i in range(2):
            a("s_add_u32 m0, s%d, s%d" % (sSlot, sLH) if i == 0 else "s_add_u32 m0, m0, 0x400")
            a("s_nop 0\nbuffer_load_dwordx4 v%d, %s, s%d offen lds" % (19+i, S(S_W1), sH))
        a("s_add_u32 s%d, s%d, 128\ns_add_u32 s%d, s%d, s%d\ns_add_u32 s%d, s%d, %d" % (sA, sA, sP, sP, sIncP, sH, sH, 64*3072))
        a("s_add_u32 s%d, s%d, %d\ns_cmp_eq_u32 s%d, %d\ns_cselect_b32 s%d, 0, s%d" % (sSlot, sSlot, SLOT, sSlot, 3*SLOT, sSlot, sSlot))
    stamp(1)
    a("s_branch L_lissue")
    a.label("L_lloop")
    a("s_waitcnt vmcnt(11)\ns_barrier")
    if OPT["nodma"]: a("s_branch L_skipissue")
    a.label("L_lissue")
    issue()
    a.label("L_skipissue")
    a("s_add_u32 s%d, s%d, 1\ns_cmp_lt_u32 s%d, 2\ns_cbranch_scc1 L_lissue" % (sCnt, sCnt, sCnt))
    a("s_cmp_lt_u32 s%d, 10\ns_cbranch_scc1 L_lloop" % sCnt)
    a("v_mov_b32 v2, %d\nds_read_b32 v2, v2\ns_waitcnt lgkmcnt(0)\nv_readfirstlane_b32 s%d, v2" % (TAGL, sTAG))
    a("s_waitcnt vmcnt(11)\ns_barrier")
    a("s_waitcnt vmcnt(0)\ns_barrier")
    stamp(4)
    a("s_cmp_lg_u32 s%d, 0\ns_cbranch_scc1 L_nostats" % lw)
    a("v_lshlrev_b32 v2, 4, v0\ns_lshl_b32 s3, s%d, 11\ns_add_u32 s3, s3, 0x%x\ns_mov_b32 s%d, %d" % (sRB, STAT_OFF, sSpin, SPIN))
    a.label("L_stpoll")
    a("buffer_load_dwordx4 v[24:27], v2, %s, s3 offen sc1\nbuffer_load_dwordx4 v[28:31], v2, %s, s3 offen offset:1024 sc1" % (S(S_WS), S(S_WS)))
    a("s_waitcnt vmcnt(0)")
    a("v_xor_b32 v3, s%d, v25\nv_xor_b32 v4, s%d, v27\nv_xor_b32 v5, s%d, v29\nv_xor_b32 v7, s%d, v31" % (sTAG, sTAG, sTAG, sTAG))
    a("v_or3_b32 v3, v3, v4, v5\nv_or_b32 v3, v3, v7\nv_cmp_ne_u32 vcc, 0, v3\ns_cbranch_vccz L_stok")
    a("s_sleep 1\ns_sub_u32 s%d, s%d, 1\ns_cbranch_scc0 L_stpoll" % (sSpin, sSpin))
    a.label("L_stok")
    a("v_lshlrev_b32 v2, 2, v0\nv_add_u32 v2, %d, v2" % STATL)
    a("ds_write2st64_b32 v2, v24, v28 offset0:0 offset1:1\nds_write2st64_b32 v2, v26, v30 offset0:2 offset1:3")
    a.label("L_nostats")
    a("s_lshl_b32 s3, s%d, 6\nv_add_u32 v2, s3, v0" % lw)
    for rnd in range(2):
        o = 32 + rnd
        a("v_add_u32 v3, %d, v2" % (256 * rnd))
        a("v_cmp_le_u32 vcc, 210, v3\ns_nop 1\nv_cndmask_b32 v4, 0, 1, vcc")
        a("v_mul_u32_u24 v5, 210, v4\nv_sub_u32 v3, v3, v5")
        a("v_cmp_le_u32 vcc, 105, v3\ns_nop 1\nv_cndmask_b32 v5, 0, 1, vcc")
        a("v_mul_u32_u24 v7, 105, v5\nv_sub_u32 v3, v3, v7")
        a("v_mul_u32_u24 v7, 52429, v3\nv_lshrrev_b32 v7, 18, v7")
        a("v_mul_u32_u24 v8, 5, v7\nv_sub_u32 v3, v3, v8")
        a("v_mad_u32_u24 v3, v5, 5, v3")
        a("v_lshrrev_b32 v8, 2, v3\nv_and_b32 v3, 3, v3")
        a("v_mad_u32_u24 v9, v5, 20, v7")
        a("v_cmp_eq_u32 vcc, 20, v7")
        a("s_cmp_lg_u32 s%d, 0" % sTY)
        lq = a.newlabel("Lgq"); ld = a.newlabel("Lgd")
        a("s_cbranch_scc1 %s" % lq)
        a("v_add_u32 v9, 8, v9\nv_cndmask_b32 v9, v9, 0, vcc")
        a("v_lshrrev_b32 v7, 4, v9\nv_and_b32 v9, 15, v9\nv_mad_u32_u24 v7, v8, 3, v7")
        a("v_lshl_add_u32 v9, v3, 4, v9\nv_lshlrev_b32 v9, 4, v9\nv_lshl_add_u32 v9, v7, 10, v9")
        a("v_mul_u32_u24 v4, 9216, v4\nv_add_u32 v9, v9, v4\nv_add_u32 v%d, %d, v9" % (o, XK))
        a("s_branch %s" % ld)
        a.label(lq)
        a("v_add_u32 v5, 40, v5\nv_cndmask_b32 v9, v9, v5, vcc")
        a("v_lshl_add_u32 v7, v9, 2, v3\nv_lshlrev_b32 v7, 3, v7")
        a("v_lshlrev_b32 v5, 1, v7\nv_lshl_add_u32 v5, v8, 3, v5")
        a("v_add_u32 v7, 3072, v7\nv_cmp_eq_u32 vcc, 2, v8\ns_nop 1\nv_cndmask_b32 v7, v5, v7, vcc")
        a("v_mul_u32_u24 v4, 4608, v4\nv_add_u32 v7, v7, v4\nv_add_u32 v%d, %d, v7" % (o, IMG))
        a.label(ld)
    a("v_lshlrev_b32 v34, 4, v2")
    a("s_cmp_lg_u32 s%d, 0\ns_cbranch_scc1 L_ldr_qh" % sTY)
    stamp(5)
    a("s_waitcnt lgkmcnt(0)\ns_barrier")
    stamp(6)
    a("s_barrier")
    stamp(7)
    a("ds_read_b128 v[36:39], v32\nds_read_b128 v[40:43], v32 offset:%d" % (2*9216))
    a("v_cmp_gt_u32 vcc, %d, v2\ns_and_saveexec_b64 s[%d:%d], vcc" % (420 - 256, sEX, sEX+1))
    a("ds_read_b128 v[44:47], v33\nds_read_b128 v[48:51], v33 offset:%d" % (2*9216))
    a("s_mov_b64 exec, -1")
    a("s_lshl_b32 s3, s%d, 4\ns_add_u32 s3, s3, s%d\ns_mul_i32 s3, s3, %d\ns_add_u32 s3, s3, 0x%x" % (sJJ, sRB, KVP_STRIDE, KVP_OFF))
    a("s_add_u32 s%d, s3, 4096" % sT1)
    a("s_waitcnt lgkmcnt(0)")
    a("v_pk_add_f32 v[36:37], v[36:37], v[40:41]\nv_pk_add_f32 v[38:39], v[38:39], v[42:43]")
    a("v_pk_add_f32 v[44:45], v[44:45], v[48:49]\nv_pk_add_f32 v[46:47], v[46:47], v[50:51]")
    a("buffer_store_dwordx4 v[36:39], v34, %s, s3 offen sc1" % S(S_WS))
    a("s_and_b64 exec, exec, vcc\ns_cbranch_execz L_kvst1")
    a("buffer_store_dwordx4 v[44:47], v34, %s, s%d offen sc1" % (S(S_WS), sT1))
    a.label("L_kvst1")
    a("s_mov_b64 exec, -1")
    a("s_lshl_b32 s3, s%d, 8\ns_lshl_b32 s%d, s%d, 4\ns_add_u32 s3, s3, s%d\ns_lshl_b32 s%d, s%d, 2\ns_add_u32 s3, s3, s%d\ns_add_u32 s3, s3, 0x%x" % (sJJ, sT1, sRB, sT1, sT1, lw, sT1, FKV))
    a("s_waitcnt vmcnt(0)")
    flag_store(3, 36)
    a("s_branch L_k1done")
    a.label("L_ldr_qh")
    a("v_mov_b32 v36, 0\nv_mov_b32 v37, 0\nv_mov_b32 v38, 0\nv_mov_b32 v39, 0\nv_add_u32 v35, %d, v34" % IMG)
    a("ds_write_b128 v35, v[36:39]\nds_write_b128 v35, v[36:39] offset:4096")
    a("s_cmp_lg_u32 s%d, 0\ns_cbranch_scc1 L_z3\nds_write_b128 v35, v[36:39] offset:8192" % lw)
    a.label("L_z3")
    stamp(5)
    a("s_waitcnt lgkmcnt(0)\ns_barrier")
    stamp(6)
    a("v_lshlrev_b32 v3, 2, v0\ns_lshl_b32 s3, s%d, 8\ns_add_u32 s3, s3, 0x%x" % (sJJ, FKV))
    poll(3, 3, 64, 4, "kv")
    stamp(7)
    a("s_lshl_b32 s3, s%d, 4\ns_mul_i32 s3, s3, %d\ns_add_u32 s3, s3, 0x%x" % (sJJ, KVP_STRIDE, KVP_OFF))
    a("v_add_u32 v35, 4096, v34\nv_cmp_gt_u32 vcc, %d, v2\nv_mov_b32 v3, 0x7f000000\ns_nop 0\nv_cndmask_b32 v35, v3, v35, vcc" % (420 - 256))
    for p in range(16):
        a("buffer_load_dwordx4 v[%d:%d], v34, %s, s3 offen sc1" % (64 + 8*p, 67 + 8*p, S(S_WS)))
        a("buffer_load_dwordx4 v[%d:%d], v35, %s, s3 offen sc1" % (68 + 8*p, 71 + 8*p, S(S_WS)))
        if p < 15: a("s_add_u32 s3, s3, %d" % KVP_STRIDE)
    for p in range(1, 16):
        a("s_waitcnt vmcnt(%d)" % (2 * (15 - p)))
        for q in range(4):
            a("v_pk_add_f32 v[%d:%d], v[%d:%d], v[%d:%d]" % (64+2*q, 65+2*q, 64+2*q, 65+2*q, 64+8*p+2*q, 65+8*p+2*q))
    a("v_cvt_pk_bf16_f32 v36, v64, v65\nv_cvt_pk_bf16_f32 v37, v66, v67\nv_cvt_pk_bf16_f32 v38, v68, v69\nv_cvt_pk_bf16_f32 v39, v70, v71")
    a("ds_write_b64 v32, v[36:37]")
    a("s_and_b64 exec, exec, vcc\ns_cbranch_execz L_im1\nds_write_b64 v33, v[38:39]")
    a.label("L_im1")
    a("s_mov_b64 exec, -1")
    a("s_waitcnt lgkmcnt(0)\ns_barrier")
    a("s_branch L_k1done")

ACC = 8; CS = 120; F0 = 136; F1 = 180; ONES = 224
vA0, vA1, vS, vS2, vH = 228, 229, 230, 231, 232
vB1 = 236
def acc(i, t): return ACC + (i * 7 + t) * 4
def R4(b): return "v[%d:%d]" % (b, b + 3)
def R2(b): return "v[%d:%d]" % (b, b + 1)

def bf16_round(v, t=None):
    a("v_cvt_pk_bf16_f32 v%d, v%d, v%d\nv_lshlrev_b32 v%d, 16, v%d" % (v, v, v, v, v))

def allreduce32(v, t):
    for ctl in ("quad_perm:[1,0,3,2]", "quad_perm:[2,3,0,1]", "row_half_mirror", "row_mirror"):
        a("s_nop 1\nv_add_f32_dpp v%d, v%d, v%d %s row_mask:0xf bank_mask:0xf" % (v, v, v, ctl))
    a("v_mov_b32 v%d, v%d\ns_nop 1\nv_permlane16_swap_b32 v%d, v%d\ns_nop 1\nv_add_f32 v%d, v%d, v%d" % (t, v, v, t, v, v, t))

def compute_prologue():
    a("s_lshr_b32 s%d, s%d, 1\ns_and_b32 s%d, s%d, 1" % (sM, sWV, sN, sWV))
    a("s_lshl_b32 s3, s%d, 3\ns_add_u32 s3, s3, s%d\ns_lshl_b32 s3, s3, 2\ns_add_u32 s3, s3, s%d\ns_lshl_b32 s3, s3, 1\ns_lshl_b32 s%d, s%d, 7\ns_add_u32 s%d, s%d, s3" % (sTY, sJJ, sWV, sT1, sRB, sT1, sT1))
    a("v_lshrrev_b32 v1, 5, v0\nv_and_b32 v2, 31, v0\nv_mul_u32_u24 v3, 1280, v1\nv_lshl_add_u32 v4, v2, 4, v3\nv_lshl_add_u32 v5, v2, 3, v3")
    a("s_mul_i32 s%d, s%d, 1280" % (sT2, sT1))
    a("s_lshl_b32 s3, s%d, 8\ns_add_u32 s%d, s3, s2" % (sWV, sK0))
    global NRELAY
    NRELAY = 0 if OPT["noreld"] else 680
    a("s_mul_i32 s3, s%d, 6554\ns_lshr_b32 s%d, s3, 16\ns_mul_i32 s3, s%d, 10\ns_sub_u32 s%d, s%d, s3" % (sK0, sK1, sK1, sT3, sK0))
    a("s_waitcnt lgkmcnt(0)")
    build_srds()
    load_tag()
    a("buffer_load_dwordx4 v[140:143], v4, %s, s%d offen\nbuffer_load_dwordx4 v[144:147], v4, %s, s%d offen offset:512\nbuffer_load_dwordx2 v[148:149], v5, %s, s%d offen offset:1024" % (S(S_X), sT2, S(S_X), sT2, S(S_X), sT2))
    a("s_cmp_ge_u32 s%d, %d\ns_cbranch_scc1 L_norelay1" % (sK0, NRELAY))
    a("s_cmp_lt_u32 s%d, 48\ns_cselect_b32 s%d, s48, s40\ns_cselect_b32 s%d, s49, s41\ns_mov_b32 s%d, %d\ns_cselect_b32 s%d, %d, s%d\ns_mov_b32 s%d, 0x20000" % (sK1, S_P, S_P+1, S_P+2, 640*1280, S_P+2, 1536*1280, S_P+2, S_P+3))
    a("s_lshl_b32 s%d, s%d, 5\ns_mul_i32 s3, s%d, 40\ns_sub_u32 s3, s3, %d\ns_cmp_lt_u32 s%d, 48\ns_cselect_b32 s%d, s%d, s3" % (sLA, sK1, sK1, 48*40, sK1, sLA, sLA))
    a("s_mul_i32 s3, s%d, 160\ns_sub_u32 s3, s3, %d\ns_cmp_lt_u32 s%d, 64\ns_cselect_b32 s%d, s%d, s3" % (sK1, 64*160 - 32, sK1, sLA, sLA))
    a("s_cselect_b32 s%d, 4, 40\ns_cselect_b32 s%d, 16, 4" % (sLP, sLH))
    a("v_lshrrev_b32 v6, 3, v0\nv_and_b32 v7, 7, v0\nv_and_b32 v1, 6, v6\nv_xor_b32 v7, v7, v1\nv_lshlrev_b32 v7, 4, v7")
    a("v_lshrrev_b32 v1, 5, v0\nv_mul_u32_u24 v1, s%d, v1\nv_and_b32 v6, 3, v6\nv_add_u32 v6, v6, v1\nv_mul_u32_u24 v6, 1280, v6\nv_add_u32 v6, v6, v7" % sLP)
    a("s_mul_i32 s%d, s%d, 1280\ns_lshl_b32 s3, s%d, 7\ns_add_u32 s%d, s%d, s3" % (sLA, sLA, sT3, sLA, sLA))
    a("s_mul_i32 s%d, s%d, 2560\ns_mul_i32 s%d, s%d, 1280" % (sLP, sLP, sLH, sLH))
    a("s_lshl_b32 s3, s%d, 12\ns_add_u32 m0, s3, %d" % (sWV, RELAY))
    a("s_nop 0\nbuffer_load_dwordx4 v6, %s, s%d offen lds" % (S(S_P), sLA))
    a("s_add_u32 m0, m0, 0x400\ns_add_u32 s3, s%d, s%d\nbuffer_load_dwordx4 v6, %s, s3 offen lds" % (sLA, sLP, S(S_P)))
    a("s_add_u32 m0, m0, 0x400\ns_add_u32 s%d, s%d, s%d\nbuffer_load_dwordx4 v6, %s, s%d offen lds" % (sLA, sLA, sLH, S(S_P), sLA))
    a("s_add_u32 m0, m0, 0x400\ns_add_u32 s3, s%d, s%d\nbuffer_load_dwordx4 v6, %s, s3 offen lds" % (sLA, sLP, S(S_P)))
    a.label("L_norelay1")
    a("v_lshrrev_b32 v1, 4, v0\nv_lshlrev_b32 v1, 3, v1")
    a("s_lshl_b32 s3, s%d, 6\ns_lshl_b32 s3, s3, s%d\ns_lshl_b32 s%d, s%d, 7\ns_add_u32 s3, s3, s%d\ns_mul_i32 s%d, s%d, 384\ns_add_u32 s3, s3, s%d" % (sN, sTY, sLP, sTY, sLP, sLP, sJJ, sLP))
    for t in range(4):
        a("buffer_load_dwordx2 %s, v1, %s, s3 offen offset:%d" % (R2(vB1 + 2*t), S(S_B1), 32*t))
    a("v_and_b32 v2, 15, v0\nv_lshrrev_b32 v3, 4, v0\nv_lshrrev_b32 v4, 1, v2\nv_xor_b32 v4, v4, v3\nv_lshlrev_b32 v4, 4, v4\nv_lshl_add_u32 v4, v2, 7, v4")
    a("s_lshl_b32 s3, s%d, 13\nv_add_u32 v%d, s3, v4\nv_xor_b32 v%d, 64, v%d" % (sM, vA0, vA1, vA0))
    a("v_lshrrev_b32 v2, 2, v0\nv_and_b32 v3, 3, v0\nv_mul_u32_u24 v4, 160, v2\ns_mul_i32 s3, s%d, 80\nv_add_u32 v4, s3, v4\nv_lshl_add_u32 v%d, v3, 3, v4" % (sN, vS))
    a("v_and_b32 v5, 1, v3\nv_lshl_add_u32 v4, v5, 3, v4\nv_add_u32 v4, %d, v4" % (K_OFF + 64))
    a("s_cmp_eq_u32 s%d, 0\ns_cselect_b32 s3, %d, 0\nv_lshrrev_b32 v5, 1, v3\nv_mad_u32_u24 v%d, v5, s3, v4" % (sTY, V_OFF - K_OFF - 64, vS2))
    a("v_lshlrev_b32 v4, 7, v2\nv_lshl_add_u32 v4, v3, 3, v4\nv_bfe_u32 v5, v0, 3, 2\nv_lshl_add_u32 v4, v5, 5, v4")
    a("s_lshl_b32 s3, s%d, 6\ns_cmp_eq_u32 s%d, 0\ns_cselect_b32 s3, s3, 0\nv_xor_b32 v4, s3, v4" % (sN, sTY))
    a("s_lshl_b32 s3, s%d, 13\ns_add_u32 s3, s3, %d\ns_cmp_eq_u32 s%d, 0\ns_cselect_b32 s3, %d, s3" % (sN, HQ_OFF, sTY, HKV_OFF))
    for t in range(4):
        a("v_xor_b32 v5, %d, v4\nv_add_u32 v%d, s3, v5" % (32*t, vH + t))
    for i in range(4): a("v_mov_b32 v%d, 0x3f803f80" % (ONES + i))
    for r in range(ACC, CS + 16): a("v_mov_b32 v%d, 0" % r)
    finish_tag()
    a("v_mov_b32 v2, %d\nv_mov_b32 v3, s%d\nds_write_b32 v2, v3" % (TAGL, sTAG))
    stamp(1)
    a("s_cmp_ge_u32 s%d, %d\ns_cbranch_scc1 L_w4\ns_waitcnt vmcnt(8)\ns_branch L_w8" % (sK0, NRELAY))
    a.label("L_w4"); a("s_waitcnt vmcnt(4)"); a.label("L_w8")
    for i in range(10):
        a("v_lshlrev_b32 v%d, 16, v%d\nv_and_b32 v%d, 0xffff0000, v%d" % (150 + 2*i, 140 + i, 151 + 2*i, 140 + i))
    a("v_pk_add_f32 v[2:3], v[150:151], v[152:153]")
    for i in range(2, 10): a("v_pk_add_f32 v[2:3], v[2:3], v[%d:%d]" % (150 + 2*i, 151 + 2*i))
    a("v_add_f32 v2, v2, v3")
    allreduce32(2, 3)
    a("v_mul_f32 v2, 0x3acccccd, v2")
    for i in range(10): a("v_pk_add_f32 v[%d:%d], v[%d:%d], v[2:3] op_sel_hi:[1,0] neg_lo:[0,1] neg_hi:[0,1]" % (150+2*i, 151+2*i, 150+2*i, 151+2*i))
    a("v_pk_mul_f32 v[4:5], v[150:151], v[150:151]")
    for i in range(1, 10): a("v_pk_fma_f32 v[4:5], v[%d:%d], v[%d:%d], v[4:5]" % (150+2*i, 151+2*i, 150+2*i, 151+2*i))
    a("v_add_f32 v4, v4, v5")
    allreduce32(4, 5)
    a("v_mul_f32 v4, 0x3acccccd, v4")
    bf16_round(4); a("v_add_f32 v4, 0x3727c5ac, v4"); bf16_round(4)
    a("v_sqrt_f32 v4, v4\ns_nop 0"); bf16_round(4); bf16_round(2)
    a("v_rcp_f32 v140, v4\nv_mov_b32 v141, s%d\nv_mov_b32 v143, s%d\nv_mul_f32 v142, v140, v2" % (sTAG, sTAG))
    a("v_lshrrev_b32 v1, 1, v0\ns_lshl_b32 s3, s%d, 4\ns_add_u32 s3, s3, 0x%x" % (sT1, STAT_OFF))
    a("s_mov_b32 exec_lo, 1\ns_mov_b32 exec_hi, 1")
    a("buffer_store_dwordx4 v[140:143], v1, %s, s3 offen sc1" % S(S_WS))
    a("s_mov_b64 exec, -1")
    stamp(2)
    a("s_cmp_ge_u32 s%d, %d\ns_cbranch_scc1 L_norelay2" % (sK0, NRELAY))
    a("v_lshrrev_b32 v2, 2, v0\nv_and_b32 v3, 3, v0\nv_lshlrev_b32 v4, 7, v2\nv_lshl_add_u32 v4, v3, 3, v4\nv_bfe_u32 v5, v0, 3, 2\nv_lshl_add_u32 v4, v5, 5, v4")
    a("s_lshl_b32 s3, s%d, 12\ns_add_u32 s3, s3, %d" % (sWV, RELAY))
    for t in range(4): a("v_xor_b32 v5, %d, v4\nv_add_u32 v%d, s3, v5" % (32*t, 170 + t))
    a("s_waitcnt vmcnt(5)")
    for t in range(4):
        a("ds_read_b64_tr_b16 %s, v%d\nds_read_b64_tr_b16 %s, v%d offset:2048" % (R2(180 + 4*t), 170 + t, R2(182 + 4*t), 170 + t))
    a("v_lshlrev_b32 v1, 4, v0\ns_mul_i32 s3, s%d, 40\ns_lshl_b32 s%d, s%d, 2\ns_add_u32 s3, s3, s%d\ns_lshl_b32 s3, s3, 10\ns_add_u32 s3, s3, 0x%x" % (sK1, sT3, sT3, sT3, B2_OFF))
    a("s_waitcnt lgkmcnt(0)")
    for t in range(4):
        if not OPT["norst"]: a("buffer_store_dwordx4 %s, v1, %s, s3 offen offset:%d %s" % (R4(180 + 4*t), S(S_WS), 1024*t, "" if OPT["plainst"] else "sc1"))
    a.label("L_norelay2")
    a("s_waitcnt lgkmcnt(0)")

def frag_reads(ty, F, ks2):
    r = []
    for i in range(4):
        r.append("ds_read_b128 %s, v%d offset:%d" % (R4(F + 4*i), vA1 if ks2 else vA0, 2048*i))
    nseg = 5 if ty == 0 else 3
    for t in range(7):
        d = F + 16 + 4*t
        for rd in range(2):
            if t < nseg:
                if t == 2: reg, off = vS2, 0
                elif t < 2: reg, off = vS, K_OFF + 32*t
                else: reg, off = vS, V_OFF + 16 + 32*(t - 3)
                off += ks2 * 5120 + rd * 2560
            else:
                reg, off = vH + (t - nseg), ks2 * 4096 + rd * 2048
            r.append("ds_read_b64_tr_b16 %s, v%d offset:%d" % (R2(d + 2*rd), reg, off))
    return r

def transposed(ty, t): return ty == 1 or t >= 5

def mfmas(ty, m, F):
    r = []
    for t in range(7):
        B = R4(F + 16 + 4*t)
        for i in range(4):
            A = R4(F + 4*i); D = R4(acc(i, t))
            r.append("v_mfma_f32_16x16x32_bf16 %s, %s, %s, %s" % ((D, B, A, D) if transposed(ty, t) else (D, A, B, D)))
        if t % 2 == m:
            D = R4(CS + 4*(t // 2)); O = R4(ONES)
            r.append("v_mfma_f32_16x16x32_bf16 %s, %s, %s, %s" % ((D, B, O, D) if transposed(ty, t) else (D, O, B, D)))
    return r

def interleave(mm, rr):
    for k, x in enumerate(mm):
        if not OPT["nomfma"]: a(x)
        if k < len(rr) and not (OPT["noread"] and rr[k].startswith("ds_")): a(rr[k])

def addr_regs(ty): return [vA0, vA1, vS, vS2] + [vH + t for t in range(2 if ty == 0 else 4)]

def main_loop(ty, m):
    tag = "%d%d" % (ty, m)
    a("s_mov_b32 s%d, 0\ns_mov_b32 s%d, 0" % (sCnt, sSlot))
    stamp(3)
    a("s_barrier")
    stamp(4)
    for x in frag_reads(ty, F0, 0): a(x)
    a("s_waitcnt lgkmcnt(0)")
    a("s_branch L_mid%s" % tag)
    a.raw(".p2align 3")
    a.label("L_top%s" % tag)
    a("s_barrier")
    a("s_nop 0")
    interleave(mfmas(ty, m, F1), frag_reads(ty, F0, 0))
    a("s_waitcnt lgkmcnt(0)\ns_nop 0")
    a.label("L_mid%s" % tag)
    if FUSED:
        a("s_cmp_lg_u32 s%d, 3\ns_cbranch_scc1 L_nofl%s" % (sCnt, tag))
        a("s_lshl_b32 s3, s%d, 2\ns_add_u32 s3, s3, 0x%x\ns_waitcnt vmcnt(0)" % (sK0, FB2))
        flag_store(3, 2)
        a.label("L_nofl%s" % tag)
    upd = ["v_add_u32_e64 v%d, s%d, v%d" % (r, sT1, r) for r in addr_regs(ty)]
    a("s_add_u32 s%d, s%d, 1\ns_cmp_eq_u32 s%d, 3\ns_cselect_b32 s%d, 0, s%d\ns_mov_b32 s%d, %d\ns_cselect_b32 s%d, %d, s%d\ns_add_u32 s%d, s%d, 1" % (sSlot, sSlot, sSlot, sSlot, sSlot, sT1, SLOT, sT1, (-2*SLOT) & 0xffffffff, sT1, sCnt, sCnt))
    interleave(mfmas(ty, m, F0), frag_reads(ty, F1, 1) + upd)
    a("s_cmp_lt_u32 s%d, 10\ns_waitcnt lgkmcnt(0)\ns_cbranch_scc1 L_top%s" % (sCnt, tag))
    for x in mfmas(ty, m, F1): a(x)
    a("v_lshlrev_b32 v1, 4, v0\ns_lshl_b32 s3, s%d, 12\ns_add_u32 s3, s3, %d\nv_add_u32 v2, s3, v1\nv_xor_b32 v3, 0x2000, v2" % (sWV, 0))
    a("s_nop 4")
    for k in range(4 - m):
        a("ds_write_b128 v2, %s offset:%d" % (R4(CS + 4*k), CSX + 1024*k))
    stamp(5)
    a("s_waitcnt lgkmcnt(0)\ns_barrier")
    stamp(6)
    for t in range(7):
        if t % 2 == m:
            for j in range(0, 4, 2): a("v_mov_b64 %s, %s" % (R2(F0 + 4*t + j), R2(CS + 4*(t//2) + j)))
        else:
            a("ds_read_b128 %s, v3 offset:%d" % (R4(F0 + 4*t), CSX + 1024*(t//2)))

CT = F0
RS = 164
BF = 172
KC = 188
TMP = 192
R4S = 224

def load_T_stats():
    a("v_and_b32 v4, 15, v0\nv_lshlrev_b32 v4, 2, v4\ns_lshl_b32 s3, s%d, 8\ns_add_u32 s3, s3, %d\nv_add_u32 v4, s3, v4" % (sM, STATL))
    for i in range(4):
        a("ds_read2_b32 %s, v4 offset0:%d offset1:%d" % (R2(RS + 2*i), 16*i, 128 + 16*i))
def unpack_b1(nt):
    for k in range(2*nt):
        a("v_lshlrev_b32 v%d, 16, v%d\nv_and_b32 v%d, 0xffff0000, v%d" % (BF + 2*k, vB1 + k, BF + 2*k + 1, vB1 + k))
def consts():
    import struct
    f = lambda x: struct.unpack("<I", struct.pack("<f", x))[0]
    c0 = -2.0 * 0.7978845608028654 * 1.4426950408889634; c1 = c0 * 0.044715
    a("v_mov_b32 v%d, 0x%x\nv_mov_b32 v%d, 0x%x\nv_mov_b32 v%d, 0x%x\nv_mov_b32 v%d, 0x%x" % (KC, f(c1), KC+1, f(c0), KC+2, f(1.4426950408889634), KC+3, f(1e-6)))

def gelu_block(i, t0, bt0, voff, soff):
    P = [(acc(i, t0 + q//2) + 2*(q % 2), CT + 4*(t0 + q//2) + 2*(q % 2), BF + 4*(bt0 + q//2) + 2*(q % 2), TMP + 2*q, TMP + 8 + 2*q) for q in range(4)]
    rs = R2(RS + 2*i)
    for (h, c, b, u, w) in P: a("v_pk_fma_f32 %s, %s, %s, %s op_sel:[1,0,0] op_sel_hi:[1,1,1] neg_lo:[1,0,0] neg_hi:[1,0,0]" % (R2(u), rs, R2(c), R2(b)))
    for (h, c, b, u, w) in P: a("v_pk_fma_f32 %s, %s, %s, %s op_sel:[0,0,0] op_sel_hi:[0,1,1]" % (R2(h), rs, R2(h), R2(u)))
    for (h, c, b, u, w) in P: a("v_pk_mul_f32 %s, %s, %s" % (R2(u), R2(h), R2(h)))
    for (h, c, b, u, w) in P: a("v_pk_fma_f32 %s, %s, %s, %s op_sel:[0,0,1] op_sel_hi:[1,0,1]" % (R2(u), R2(u), R2(KC), R2(KC)))
    for (h, c, b, u, w) in P: a("v_pk_mul_f32 %s, %s, %s" % (R2(u), R2(u), R2(h)))
    for (h, c, b, u, w) in P: a("v_exp_f32 v%d, v%d\nv_exp_f32 v%d, v%d" % (u, u, u+1, u+1))
    for (h, c, b, u, w) in P: a("v_pk_add_f32 %s, %s, 1.0 op_sel_hi:[1,0]" % (R2(u), R2(u)))
    for (h, c, b, u, w) in P: a("v_rcp_f32 v%d, v%d\nv_rcp_f32 v%d, v%d" % (u, u, u+1, u+1))
    for (h, c, b, u, w) in P: a("v_pk_mul_f32 %s, %s, %s" % (R2(u), R2(u), R2(h)))
    o = acc(i, t0)
    for q, (h, c, b, u, w) in enumerate(P): a("v_cvt_pk_bf16_f32 v%d, v%d, v%d" % (o + q, u, u+1))
    a("buffer_store_dwordx4 %s, v%d, %s, s%d offen offset:%d sc1" % (R4(o), voff, S(S_WS), soff, 1024*i))

def phi_pairs(P):
    for (h, u) in P: a("v_pk_mul_f32 %s, %s, %s op_sel:[0,0] op_sel_hi:[1,0]" % (R2(u), R2(h), R2(KC + 2)))
    for (h, u) in P: a("v_exp_f32_e64 v%d, v%d clamp\nv_exp_f32_e64 v%d, v%d clamp" % (u, u, u+1, u+1))
    for (h, u) in P: a("v_max_f32 v%d, v%d, v%d\nv_max_f32 v%d, v%d, v%d" % (h, h, KC+3, h+1, h+1, KC+3))
    for (h, u) in P: a("v_pk_add_f32 %s, %s, %s" % (R2(h), R2(h), R2(u)))

def a2_soff(dst, ks_expr_emit):
    ks_expr_emit()
    a("s_lshl_b32 s%d, s%d, 1\ns_add_u32 s%d, s%d, s%d\ns_mul_i32 s%d, s%d, 68\ns_add_u32 s%d, s%d, s3\ns_lshl_b32 s%d, s%d, 12" % (dst, sRB, dst, dst, sM, dst, dst, dst, dst, dst, dst))

def h_flag():
    a("s_lshl_b32 s3, s%d, 1\ns_add_u32 s3, s3, s%d\ns_lshl_b32 s3, s3, 7\ns_lshl_b32 s%d, s%d, 6\ns_add_u32 s3, s3, s%d\ns_lshl_b32 s%d, s%d, 3\ns_add_u32 s3, s3, s%d\ns_lshl_b32 s%d, s%d, 2\ns_add_u32 s3, s3, s%d\ns_add_u32 s3, s3, 0x%x" % (sRB, sM, sT1, sTY, sT1, sT1, sJJ, sT1, sT1, sN, sT1, FH))
    a("s_waitcnt vmcnt(0)")
    flag_store(3, 2)

def epilogue_kv():
    unpack_b1(2); consts()
    load_T_stats()
    a("v_lshrrev_b32 v4, 4, v0\nv_lshlrev_b32 v4, 4, v4\ns_lshl_b32 s3, s%d, 8\ns_add_u32 s3, s3, %d\nv_add_u32 v4, s3, v4" % (sM, STATL))
    for i in range(4):
        a("ds_read_b128 %s, v4 offset:%d\nds_read_b128 %s, v4 offset:%d" % (R4(R4S + 4*i), 64*i, R4(R4S + 16 + 4*i), 512 + 64*i))
    a("v_and_b32 v5, 8, v0\nv_cmp_eq_u32 vcc, 0, v5")
    a("v_mov_b32 v6, 0\nv_mov_b32 v7, 0x3f803f80")
    a("v_cndmask_b32 v5, v6, v%d, vcc" % (KC + 3))
    a("v_mov_b32 v4, v5")
    a("s_waitcnt lgkmcnt(0)")
    for i in range(4):
        for t in range(5):
            for q in range(2):
                h = acc(i, t) + 2*q; u = TMP + 4*t + 2*q
                rm = R2(R4S + 16 + 4*i + 2*q); c = R2(CT + 4*t)
                if t < 2: a("v_pk_fma_f32 %s, %s, %s, %s op_sel:[0,0,1] op_sel_hi:[1,0,1] neg_lo:[1,0,0] neg_hi:[1,0,0]" % (R2(u), rm, c, R2(KC + 2)))
                elif t == 2: a("v_pk_fma_f32 %s, %s, %s, v[4:5] op_sel:[0,0,0] op_sel_hi:[1,0,1] neg_lo:[1,0,0] neg_hi:[1,0,0]" % (R2(u), rm, c))
                else: a("v_pk_mul_f32 %s, %s, %s op_sel:[0,0] op_sel_hi:[1,0] neg_lo:[1,0] neg_hi:[1,0]" % (R2(u), rm, c))
        for t in range(5):
            for q in range(2):
                h = acc(i, t) + 2*q; u = TMP + 4*t + 2*q
                a("v_pk_fma_f32 %s, %s, %s, %s" % (R2(h), R2(R4S + 4*i + 2*q), R2(h), R2(u)))
        a("v_cvt_pk_bf16_f32 v%d, v%d, v%d\nv_cvt_pk_bf16_f32 v%d, v%d, v%d" % (TMP+20, acc(i,2), acc(i,2)+1, TMP+21, acc(i,2)+2, acc(i,2)+3))
        phi_pairs([(acc(i, t) + 2*q, TMP + 4*t + 2*q) for t in range(3) for q in range(2)])
        e = 2 * (i >> 1); o = 2 * (i & 1)
        for t in range(5):
            a("v_cvt_pk_bf16_f32 v%d, v%d, v%d\nv_cvt_pk_bf16_f32 v%d, v%d, v%d" % (acc(e,t)+o, acc(i,t), acc(i,t)+1, acc(e,t)+o+1, acc(i,t)+2, acc(i,t)+3))
        a("v_cndmask_b32 v%d, v%d, v7, vcc\nv_cndmask_b32 v%d, v%d, v7, vcc" % (CS + 4*(i>>1) + o, TMP+20, CS + 4*(i>>1) + o + 1, TMP+21))
    prods = [(0,2),(0,3),(1,2),(1,3),(1,4),(2,2),(2,3),(2,4)]
    a("s_nop 1")
    for ksr in range(2):
        for k, (ti, tj) in enumerate(prods):
            B = R4(CS + 4*ksr) if tj == 2 else R4(acc(2*ksr, tj))
            D = R4(TMP + 4*k)
            a("v_mfma_f32_16x16x32_bf16 %s, %s, %s, %s" % (D, R4(acc(2*ksr, ti)), B, "0" if ksr == 0 else D))
    a("v_lshlrev_b32 v1, 4, v0\ns_mul_i32 s3, s%d, 9216\ns_add_u32 s3, s3, %d\nv_add_u32 v2, s3, v1" % (sWV, XK))
    a("s_nop 4")
    for k, (ti, tj) in enumerate(prods):
        a("ds_write_b128 v2, %s offset:%d" % (R4(TMP + 4*k), 1024 * (3*ti + tj - 2)))
    a2_soff(sT2, lambda: a("s_mul_i32 s3, s%d, 6\ns_add_u32 s3, s3, s%d" % (sJJ, sN)))
    a("s_waitcnt lgkmcnt(0)\ns_barrier")
    stamp(7)
    for i in range(4): gelu_block(i, 5, 0, 1, sT2)
    if FUSED: h_flag()

def epilogue_qh():
    unpack_b1(4); consts()
    load_T_stats()
    a("v_lshlrev_b32 v1, 4, v0")
    a2_soff(sT2, lambda: a("s_mul_i32 s3, s%d, 6\ns_lshl_b32 s%d, s%d, 1\ns_add_u32 s3, s3, s%d\ns_add_u32 s3, s3, 2" % (sJJ, sT1, sN, sT1)))
    a("s_add_u32 s%d, s%d, 4096" % (sT3, sT2))
    a("s_waitcnt lgkmcnt(0)")
    for i in range(4):
        gelu_block(i, 3, 0, 1, sT2)
        gelu_block(i, 5, 2, 1, sT3)
    for i in range(4):
        rs = R2(RS + 2*i)
        P = [(acc(i, t) + 2*q, TMP + 4*t + 2*q, CT + 4*t + 2*q) for t in range(3) for q in range(2)]
        for (h, u, c) in P: a("v_pk_fma_f32 %s, %s, %s, %s op_sel:[1,0,1] op_sel_hi:[1,1,1] neg_lo:[1,0,0] neg_hi:[1,0,0]" % (R2(u), rs, R2(c), R2(KC + 2)))
        for (h, u, c) in P: a("v_pk_fma_f32 %s, %s, %s, %s op_sel:[0,0,0] op_sel_hi:[0,1,1]" % (R2(h), rs, R2(h), R2(u)))
        phi_pairs([(h, u) for (h, u, c) in P])
        for k, (h, u, c) in enumerate(P): a("v_cvt_pk_bf16_f32 v%d, v%d, v%d" % (acc(i, 0) + k, h, h + 1))
    if FUSED: h_flag()
    a("v_and_b32 v2, 15, v0\nv_lshrrev_b32 v3, 4, v0\ns_mul_i32 s3, s%d, 4608\ns_add_u32 s3, s3, %d" % (sN, IMG))
    a("v_lshl_add_u32 v4, v2, 2, v3\nv_lshlrev_b32 v5, 3, v4\nv_lshlrev_b32 v4, 4, v4\nv_add_u32 v4, s3, v4\nv_add_u32 v5, s3, v5")
    a("v_and_b32 v6, 3, v2\nv_cmp_ne_u32 vcc, 0, v6\ns_nop 1\nv_cndmask_b32 v6, 0, 1, vcc\nv_cmp_eq_u32 vcc, 2, v2\ns_nop 1\nv_cndmask_b32 v6, v6, 0, vcc")
    a("v_add_u32 v6, 40, v6\nv_lshl_add_u32 v6, v6, 2, v3\nv_lshlrev_b32 v7, 3, v6\nv_lshlrev_b32 v6, 4, v6\nv_add_u32 v6, s3, v6\nv_add_u32 v7, s3, v7")
    a2_soff(sT2, lambda: a("s_lshl_b32 s3, s%d, 1\ns_add_u32 s3, s3, s%d\ns_add_u32 s3, s3, 48" % (sJJ, sN)))
    a2_soff(sT3, lambda: a("s_lshr_b32 s3, s%d, 1\ns_add_u32 s3, s3, 64" % sJJ))
    a("s_lshl_b32 s3, s%d, 1\ns_add_u32 s3, s3, s%d\ns_and_b32 s3, s3, 3\ns_lshl_b32 s3, s3, 8\ns_add_u32 s%d, s%d, s3" % (sJJ, sN, sT3, sT3))
    a("v_lshlrev_b32 v2, 4, v2\nv_lshl_add_u32 v2, v3, 3, v2")
    stamp(7)
    a("s_barrier")
    W32 = 136; W16 = 152
    for to in range(3): a("ds_read_b128 %s, v4 offset:%d" % (R4(W32 + 4*to), 1024*to))
    a("ds_read_b128 %s, v6" % R4(W32 + 12))
    for to in range(1, 3): a("ds_read_b64 %s, v5 offset:%d" % (R2(W16 + 2*to), 3072 + 512*to))
    a("ds_read_b64 %s, v7 offset:3072" % R2(W16 + 6))
    a("s_waitcnt lgkmcnt(0)")
    O = 192
    for i in range(4):
        for to in range(4): a("v_mfma_f32_16x16x32_bf16 %s, %s, %s, 0" % (R4(O + 16*i + 4*to), R4(W32 + 4*to), R4(acc(i, 0))))
    a("s_nop 7")
    for i in range(4):
        for to in range(1, 4): a("v_mfma_f32_16x16x16_bf16 %s, %s, %s, %s" % (R4(O + 16*i + 4*to), R2(W16 + 2*to), R2(acc(i, 1)), R4(O + 16*i + 4*to)))
    a("s_nop 7")
    for i in range(4):
        d = O + 16*i + 12
        for j in range(3): a("v_add_f32 v%d, v%d, v%d" % (d + j, d + j, KC + 3))
        for j in range(3): a("v_rcp_f32 v%d, v%d" % (d + j, d + j))
        a("s_nop 0")
        for to, sel in ((0, 0), (1, 2), (2, 1)):
            for q in range(2):
                x = O + 16*i + 4*to + 2*q
                a("v_pk_mul_f32 %s, %s, %s op_sel:[0,%d] op_sel_hi:[1,%d]" % (R2(x), R2(x), R2(d + (sel & 2)), sel & 1, sel & 1))
        for k in range(6): a("v_cvt_pk_bf16_f32 v%d, v%d, v%d" % (acc(i, 0) + k, O + 16*i + 2*k, O + 16*i + 2*k + 1))
        a("buffer_store_dwordx4 %s, v1, %s, s%d offen offset:%d sc1" % (R4(acc(i, 0)), S(S_WS), sT2, 1024*i))
    a("s_mov_b32 exec_hi, 0")
    for i in range(4):
        a("buffer_store_dwordx2 %s, v2, %s, s%d offen offset:%d sc1" % (R2(acc(i, 1)), S(S_WS), sT3, 1024*i))
    a("s_mov_b64 exec, -1")
    if FUSED:
        a("s_lshl_b32 s3, s%d, 1\ns_add_u32 s3, s3, s%d\ns_lshl_b32 s3, s3, 7\ns_lshl_b32 s%d, s%d, 3\ns_add_u32 s3, s3, s%d\ns_lshl_b32 s%d, s%d, 2\ns_add_u32 s3, s3, s%d\ns_add_u32 s3, s3, 0x%x" % (sRB, sM, sT1, sJJ, sT1, sT1, sN, sT1, FO))
        a("s_waitcnt vmcnt(0)")
        flag_store(3, 2)

def compute_k1():
    compute_prologue()
    a("s_lshl_b32 s3, s%d, 1\ns_add_u32 s3, s3, s%d" % (sTY, sM))
    a("s_cmp_eq_u32 s3, 1\ns_cbranch_scc1 L_c01\ns_cmp_eq_u32 s3, 2\ns_cbranch_scc1 L_c10\ns_cmp_eq_u32 s3, 3\ns_cbranch_scc1 L_c11")
    main_loop(0, 0); a("s_branch L_epi_kv")
    a.label("L_c01"); main_loop(0, 1)
    a.label("L_epi_kv"); epilogue_kv(); a("s_branch L_k1done")
    a.label("L_c10"); main_loop(1, 0); a("s_branch L_epi_qh")
    a.label("L_c11"); main_loop(1, 1)
    a.label("L_epi_qh"); epilogue_qh()

G_ACC = 4; G_B = 84; G_A = 224
def gemm2():
    a("v_lshlrev_b32 v1, 4, v0\nv_add_u32 v2, 4096, v1")
    a("s_lshl_b32 s%d, s%d, 3\ns_add_u32 s%d, s%d, 4" % (sK0, sWV, sK1, sK0))
    a("s_cmp_lt_u32 s%d, 4\ns_cbranch_scc1 L_g2e" % sWV)
    a("s_lshl_b32 s%d, s%d, 2\ns_add_u32 s%d, s%d, 16\ns_mul_i32 s%d, s%d, 5\ns_add_u32 s%d, s%d, 28" % (sK0, sWV, sK0, sK0, sK1, sWV, sK1, sK1))
    a.label("L_g2e")
    sAo0, sAo1, sBo0, sBo1 = sLA, sLP, sLP4, sLH
    a("s_mul_i32 s3, s%d, 68\ns_add_u32 s%d, s3, s%d\ns_lshl_b32 s%d, s%d, 12\ns_add_u32 s%d, s3, s%d\ns_lshl_b32 s%d, s%d, 12" % (sRT, sAo0, sK0, sAo0, sAo0, sAo1, sK1, sAo1, sAo1))
    a("s_mul_i32 s3, s%d, 5120\ns_add_u32 s3, s3, 0x%x\ns_mul_i32 s%d, s%d, 40960\ns_add_u32 s%d, s%d, s3\ns_mul_i32 s%d, s%d, 40960\ns_add_u32 s%d, s%d, s3" % (sCT, B2_OFF, sBo0, sK0, sBo0, sBo0, sBo1, sK1, sBo1, sBo1))
    def loadB(s):
        d = G_B + 20 * (s % 7)
        base, k = (sBo0, s) if s < 4 else (sBo1, s - 4)
        a("s_add_u32 s3, s%d, %d" % (base, 40960 * k))
        if s == 8: a("s_cmp_lt_u32 s%d, 4\ns_cselect_b32 s3, 0x7f000000, s3" % sWV)
        for t in range(4): a("buffer_load_dwordx4 %s, v1, %s, s3 offen offset:%d sc1" % (R4(d + 4*t), S(S_WS), 1024*t))
        a("buffer_load_dwordx4 %s, v2, %s, s3 offen sc1" % (R4(d + 16), S(S_WS)))
    def loadA(s):
        d = G_A + 16 * (s % 2)
        base, k = (sAo0, s) if s < 4 else (sAo1, s - 4)
        a("s_add_u32 s3, s%d, %d" % (base, 4096 * k))
        if s == 8: a("s_cmp_lt_u32 s%d, 4\ns_cselect_b32 s3, 0x7f000000, s3" % sWV)
        for i in range(4): a("buffer_load_dwordx4 %s, v1, %s, s3 offen offset:%d sc1" % (R4(d + 4*i), S(S_WS), 1024*i))
    if FUSED:
        lp = "L_b2poll"
        a("s_mov_b32 s%d, %d\ns_mov_b32 s3, 0x%x" % (sSpin, SPIN, FB2))
        a.label(lp)
        for q in range(4): a("buffer_load_dwordx4 %s, v1, %s, s3 offen offset:%d sc1" % (R4(G_A + 4*q), S(S_WS), 1024*q))
        a("s_waitcnt vmcnt(0)")
        for q in range(16): a("v_xor_b32 v%d, s%d, v%d" % (G_A + q, sTAG, G_A + q))
        for q in range(1, 15, 2): a("v_or3_b32 v%d, v%d, v%d, v%d" % (G_A, G_A, G_A + q, G_A + q + 1))
        a("v_or_b32 v%d, v%d, v%d\nv_cmp_ne_u32 vcc, 0, v%d\ns_cbranch_vccz L_b2ok" % (G_A, G_A, G_A + 15, G_A))
        a("s_sleep 1\ns_sub_u32 s%d, s%d, 1\ns_cbranch_scc0 %s" % (sSpin, sSpin, lp))
        a.label("L_b2ok")
    for s in range(7): loadB(s)
    if FUSED:
        a("v_lshlrev_b32 v3, 2, v0\ns_lshl_b32 s%d, s%d, 7\ns_add_u32 s%d, s%d, 0x%x" % (sT1, sRT, sT1, sT1, FH))
        poll(3, sT1, 32, G_A, "h")
    stamp(9)
    loadA(0); loadA(1)
    out = ["B%d" % s for s in range(7) for _ in range(5)] + ["A0"] * 4 + ["A1"] * 4
    for s in range(9):
        if s == 8:
            a("s_cmp_lt_u32 s%d, 4\ns_cbranch_scc1 L_g2done" % sWV)
        need = max(i for i, x in enumerate(out) if x in ("A%d" % s, "B%d" % s))
        a("s_waitcnt vmcnt(%d)" % (len(out) - 1 - need))
        out = out[need + 1:]
        for t in range(5):
            for i in range(4):
                D = R4(G_ACC + (i*5 + t) * 4)
                a("v_mfma_f32_16x16x32_bf16 %s, %s, %s, %s" % (D, R4(G_B + 20*(s % 7) + 4*t), R4(G_A + 16*(s % 2) + 4*i), "0" if s == 0 else D))
        if s + 2 < 9:
            if FUSED and s + 2 == 4:
                a("s_cmp_lt_u32 s%d, 4\ns_cbranch_scc1 L_noopoll" % sWV)
                a("s_lshl_b32 s%d, s%d, 7\ns_add_u32 s%d, s%d, 0x%x" % (sT1, sRT, sT1, sT1, FO))
                poll(3, sT1, 16, G_A + 16*(s % 2), "o")
                a.label("L_noopoll")
                stamp(10)
            loadA(s + 2); out += ["A%d" % (s + 2)] * 4
        if s + 7 < 9:
            loadB(s + 7); out += ["B%d" % (s + 7)] * 5
    a.label("L_g2done")
    a("s_waitcnt vmcnt(0)")
    stamp(11)
    REG = 21504
    a("s_and_b32 s3, s%d, 3\ns_mul_i32 s3, s3, %d\nv_add_u32 v3, s3, v1" % (sWV, REG))
    XR = 84
    for rnd in range(2):
        a("v_add_u32 v%d, %d, v0\nv_mul_u32_u24 v%d, 6554, v%d\nv_lshrrev_b32 v%d, 16, v%d\nv_mul_u32_u24 v%d, 10, v%d\nv_sub_u32 v%d, v%d, v%d" % (224, 64*rnd, 225, 224, 225, 225, 226, 225, 224, 224, 226))
        a("s_lshl_b32 s3, s%d, 3\nv_add_u32 v225, s3, v225" % sWV)
        a("v_mul_u32_u24 v226, 336, v225\nv_lshl_add_u32 v%d, v224, 5, v226" % (228 + rnd))
        a("v_mul_u32_u24 v226, 1280, v225\nv_lshl_add_u32 v%d, v224, 4, v226" % (230 + rnd))
        a("v_lshlrev_b32 v%d, 4, v224" % (232 + rnd))
    a("v_mov_b32 v226, 0x7f000000\nv_cmp_gt_u32 vcc, 16, v0\ns_nop 1\nv_cndmask_b32 v231, v226, v231, vcc\nv_cndmask_b32 v229, 0, v229, vcc")
    a("s_mul_i32 s%d, s%d, %d\ns_mul_i32 s%d, s%d, 160\ns_add_u32 s%d, s%d, s%d" % (sT1, sRT, 64*1280, sT2, sCT, sT1, sT1, sT2))
    for rnd in range(2):
        a("buffer_load_dwordx4 %s, v%d, %s, s%d offen" % (R4(XR + 8*rnd), 230 + rnd, S(S_X), sT1))
        a("buffer_load_dwordx4 %s, v%d, %s, s%d offen" % (R4(XR + 4 + 8*rnd), 232 + rnd, S(S_B2), sT2))
    if FUSED: a("s_barrier")
    a("s_cmp_ge_u32 s%d, 4\ns_cbranch_scc1 L_late" % sWV)
    for k in range(20): a("ds_write_b128 v3, %s offset:%d" % (R4(G_ACC + 4*k), 1024*k))
    a("s_waitcnt lgkmcnt(0)\ns_barrier\ns_branch L_fin")
    a.label("L_late")
    a("s_barrier")
    for k in range(20): a("ds_read_b128 %s, v3 offset:%d" % (R4(104 + 4*k), 1024*k))
    a("v_and_b32 v234, 15, v0\nv_lshrrev_b32 v235, 4, v0\nv_mul_u32_u24 v234, 336, v234\nv_lshl_add_u32 v234, v235, 4, v234")
    a("s_and_b32 s3, s%d, 3\ns_mul_i32 s3, s3, %d\nv_add_u32 v234, s3, v234" % (sWV, REG))
    a("s_waitcnt lgkmcnt(0)")
    for k in range(40): a("v_pk_add_f32 %s, %s, %s" % (R2(G_ACC + 2*k), R2(G_ACC + 2*k), R2(104 + 2*k)))
    for i in range(4):
        for t in range(5): a("ds_write_b128 v234, %s offset:%d" % (R4(G_ACC + (i*5 + t)*4), 16*336*i + 64*t))
    a("s_waitcnt lgkmcnt(0)")
    a.label("L_fin")
    a("s_barrier")
    stamp(12)
    for rnd in range(2):
        for p in range(4):
            if p == 3: a("v_add_u32 v%d, %d, v%d" % (228 + rnd, 3*REG, 228 + rnd))
            off = REG*p if p < 3 else 0
            a("ds_read_b128 %s, v%d offset:%d\nds_read_b128 %s, v%d offset:%d" % (R4(104 + 32*rnd + 8*p), 228 + rnd, off, R4(108 + 32*rnd + 8*p), 228 + rnd, off + 16))
    a("s_waitcnt vmcnt(0)")
    for rnd in range(2):
        for k in range(4):
            for (src, dst) in ((XR + 8*rnd + k, 4 + 16*rnd + 2*k), (XR + 4 + 8*rnd + k, 12 + 16*rnd + 2*k)):
                a("v_lshlrev_b32 v%d, 16, v%d\nv_and_b32 v%d, 0xffff0000, v%d" % (dst, src, dst + 1, src))
        for k in range(4): a("v_pk_add_f32 %s, %s, %s" % (R2(4 + 16*rnd + 2*k), R2(4 + 16*rnd + 2*k), R2(12 + 16*rnd + 2*k)))
    a("s_waitcnt lgkmcnt(0)")
    for rnd in range(2):
        b = 104 + 32*rnd
        for k in range(4):
            a("v_pk_add_f32 %s, %s, %s\nv_pk_add_f32 %s, %s, %s" % (R2(b + 2*k), R2(b + 2*k), R2(b + 8 + 2*k), R2(b + 16 + 2*k), R2(b + 16 + 2*k), R2(b + 24 + 2*k)))
        for k in range(4): a("v_pk_add_f32 %s, %s, %s" % (R2(b + 2*k), R2(b + 2*k), R2(b + 16 + 2*k)))
        for k in range(4): a("v_pk_add_f32 %s, %s, %s" % (R2(b + 2*k), R2(b + 2*k), R2(4 + 16*rnd + 2*k)))
        for k in range(4): a("v_cvt_pk_bf16_f32 v%d, v%d, v%d" % (b + k, b + 2*k, b + 2*k + 1))
        a("buffer_store_dwordx4 %s, v%d, %s, s%d offen" % (R4(b), 230 + rnd, S(S_OUT), sT1))

def bump_epoch():
    a("s_mov_b32 s3, 0x%x" % EPOCH)
    flag_store(3, 2)

K1 = BASE + "_kernel"; K2 = "gemm2_kernel"
hdr = open("cdna_kernels/%s.s.ref" % BASE).read().split("; Override")[0]
a.raw(hdr.rstrip())
if FUSED:
    a.raw("; @launch grid=(256,1,1) block=(512,1,1) lds=163840")
else:
    a.raw("; @launch kernel=%s grid=(256,1,1) block=(512,1,1) lds=163840" % K1)
    a.raw("; @launch kernel=%s grid=(256,1,1) block=(512,1,1) lds=163840" % K2)
a.raw('.amdgcn_target "amdgcn-amd-amdhsa--gfx950"\n.text')
kernel_header(a, K1)
prologue_common()
a("s_cmp_lt_u32 s%d, 4\ns_cbranch_scc1 L_compute" % sWV)
loader_k1()
a.label("L_compute")
compute_k1()
a.label("L_k1done")
stamp(8)
if FUSED:
    gemm2()
    stamp_store()
    a("s_cmp_lg_u32 s2, 0\ns_cbranch_scc1 L_end\ns_cmp_lg_u32 s%d, 4\ns_cbranch_scc1 L_end" % sWV)
    bump_epoch()
else:
    stamp_store()
    a("s_cmp_lg_u32 s2, 64\ns_cbranch_scc1 L_end\ns_cmp_lg_u32 s%d, 4\ns_cbranch_scc1 L_end" % sWV)
    bump_epoch()
a.label("L_end")
a("s_endpgm")
if not FUSED:
    kernel_header(a, K2)
    prologue_common(True)
    a("s_waitcnt lgkmcnt(0)")
    build_srds()
    gemm2()
    stamp_store(0x20000)
    a.label("L_end2")
    a("s_endpgm")
a.raw('.section .rodata,"a"')
kernel_desc(a, K1, 256, 102)
if not FUSED: kernel_desc(a, K2, 256, 102)
sys.stdout.write(a.text())
```

```python
import sys
from asmlib import *
BASE = "parallel_sum__linear_attn_block__dense_activation_gelu__prompt"
OPT = dict(fused=1, stamps=0, nodma=0, noread=0, nomfma=0, cyc=0, norst=0, noreld=0, plainst=0, xmap=0, probe=-1, pcls=0)
for arg in sys.argv[1:]:
    k, v = arg.split("="); OPT[k] = int(v)
FUSED = OPT["fused"]; STAMPS = OPT["stamps"]

A2_OFF = 0
B2_OFF = 0x900000
KVP_OFF = 0xC00000; KVP_STRIDE = 6912
STAT_OFF = 0xD00000
FLAG_OFF = 0xD10000
EPOCH = FLAG_OFF; FB2 = FLAG_OFF + 0x1000; FKV = FLAG_OFF + 0x2000; FH = FLAG_OFF + 0x3000; FO = FLAG_OFF + 0x4000
STAMP_OFF = 0xE00000
WS_SIZE = 0x1000000
SLOT = 45184
K_OFF = 16384; V_OFF = 26640; HKV_OFF = 36992; HQ_OFF = 26624; DUMMY_OFF = 43008
MISC = 3 * SLOT
STATL = MISC
RELAY = MISC + 1024
IMG = MISC + 1024
TAGL = MISC + 20480
CSX = SLOT
XK = 2 * SLOT
SPIN = 200000
S_X, S_WQ, S_W1, S_WS, S_P, S_OUT, S_B1, S_B2 = 4, 8, 12, 16, 20, 24, 28, 32
KA = 36
sRB, sJJ, sTY, sWV, sTAG = 58, 59, 60, 61, 62
sM, sN = 63, 64
sT0, sT1, sT2, sT3 = 3, 65, 66, 67
sLA, sLP, sLP4, sLH, sIncP, sA, sP, sH, sSlot, sCnt = 68, 69, 70, 71, 72, 73, 74, 75, 76, 77
sEX = 78
sSpin = 80
sRT, sCT = 81, 82
sK0, sK1 = 83, 84
sST = 86

a = Asm()
def srd(d, p, n):
    a("s_mov_b32 s%d, s%d\ns_mov_b32 s%d, s%d\ns_mov_b32 s%d, 0x%x\ns_mov_b32 s%d, 0x20000" % (d, p, d+1, p+1, d+2, n, d+3))
def S(d): return "s[%d:%d]" % (d, d+3)
def stamp(idx):
    if OPT["probe"] == idx:
        a("s_memrealtime s[%d:%d]\ns_waitcnt lgkmcnt(0)\ns_mov_b32 s%d, s%d" % (sST, sST+1, sST + 2, sST))
    if not STAMPS: return
    a("%s s[%d:%d]\ns_waitcnt lgkmcnt(0)\ns_mov_b32 s%d, s%d" % ("s_memtime" if OPT["cyc"] else "s_memrealtime", sST, sST+1, sST + 2 + idx, sST))
def stamp_init():
    if not STAMPS: return
    for i in range(14): a("s_mov_b32 s%d, 0" % (sST + 2 + i))
def stamp_store(extra=0):
    if OPT["probe"] >= 0:
        a("s_waitcnt vmcnt(0)")
        stamp(13)
        a("s_lshr_b32 s3, s%d, 2\ns_cmp_lg_u32 s3, %d\ns_cbranch_scc1 L_pspd" % (sWV, OPT["pcls"]))
        a.label("L_psp")
        a("s_memrealtime s[%d:%d]\ns_waitcnt lgkmcnt(0)\ns_sub_u32 s3, s%d, s%d\ns_cmp_lt_u32 s3, 10000\ns_cbranch_scc1 L_psp" % (sST, sST+1, sST, sST + 2))
        a.label("L_pspd")
    if not STAMPS: return
    a("s_waitcnt vmcnt(0)")
    stamp(13)
    for i in range(14): a("v_mov_b32 v%d, s%d" % (4 + i, sST + 2 + i))
    a("v_mov_b32 v18, 0\nv_mov_b32 v19, 0\nv_mov_b32 v2, 0\ns_lshl_b32 s3, s2, 3\ns_add_u32 s3, s3, s%d\ns_lshl_b32 s3, s3, 6\ns_add_u32 s3, s3, 0x%x\ns_mov_b64 exec, 1" % (sWV, STAMP_OFF + extra))
    for i in range(4): a("buffer_store_dwordx4 v[%d:%d], v2, %s, s3 offen offset:%d" % (4 + 4*i, 7 + 4*i, S(S_WS), 16*i))
    a("s_mov_b64 exec, -1")

def prologue_common(k2=False):
    a("s_cmp_ge_u32 s2, 256\ns_cbranch_scc1 L_end%s" % ("2" if k2 else ""))
    a("s_load_dwordx16 s[36:51], s[0:1], 0\ns_load_dwordx4 s[52:55], s[0:1], 64\ns_load_dwordx2 s[56:57], s[0:1], 80")
    stamp_init(); stamp(0)
    a("v_lshrrev_b32 v1, 6, v0\nv_and_b32 v0, 63, v0\nv_readfirstlane_b32 s%d, v1" % sWV)
    a("s_and_b32 s3, s2, 1\ns_lshl_b32 s3, s3, 3\ns_bfe_u32 s%d, s2, 0x30003\ns_add_u32 s%d, s%d, s3" % (sRB, sRB, sRB))
    a("s_bfe_u32 s%d, s2, 0x10006" % sTY)
    a("s_and_b32 s3, s2, 6\ns_lshr_b32 s%d, s2, 7\ns_add_u32 s%d, s%d, s3" % (sJJ, sJJ, sJJ))
    if OPT["xmap"]:
        a("s_and_b32 s3, s2, 7\ns_lshl_b32 s3, s3, 1\ns_bfe_u32 s%d, s2, 0x10003\ns_add_u32 s%d, s%d, s3" % (sRB, sRB, sRB))
        a("s_bfe_u32 s3, s2, 0x20004\ns_lshr_b32 s%d, s2, 7\ns_lshl_b32 s%d, s%d, 2\ns_add_u32 s%d, s%d, s3" % (sJJ, sJJ, sJJ, sJJ, sJJ))
    a("s_and_b32 s3, s2, 7\ns_lshl_b32 s3, s3, 2\ns_bfe_u32 s%d, s2, 0x20003\ns_add_u32 s%d, s%d, s3\ns_lshr_b32 s%d, s2, 5" % (sRT, sRT, sRT, sCT))

def build_srds():
    srd(S_X, 36, 2048*1280); srd(S_WQ, 38, 640*3840); srd(S_W1, 44, 640*3072); srd(S_WS, 56, WS_SIZE)
    srd(S_OUT, 52, 2048*1280); srd(S_B1, 46, 3072); srd(S_B2, 50, 1280)

def load_tag():
    a("s_add_u32 s%d, s56, 0x%x\ns_addc_u32 s%d, s57, 0" % (sEX, EPOCH, sEX+1))
    a("s_load_dword s%d, s[%d:%d], 0" % (sTAG, sEX, sEX+1))
def finish_tag():
    a("s_waitcnt lgkmcnt(0)\ns_mul_i32 s%d, s%d, 0x9E3779B1\ns_add_u32 s%d, s%d, 0x7F4A7C15" % (sTAG, sTAG, sTAG, sTAG))

def poll(voff, soff, nlanes, vt, name):
    lp = a.newlabel("Lpoll_" + name); dn = a.newlabel("Lpolld_" + name)
    a("s_mov_b32 s%d, %d" % (sSpin, SPIN))
    if nlanes < 64:
        a("s_mov_b32 exec_lo, 0x%x\ns_mov_b32 exec_hi, 0" % ((1 << nlanes) - 1))
    a.label(lp)
    a("buffer_load_dword v%d, v%d, %s, s%d offen sc1" % (vt, voff, S(S_WS), soff))
    a("s_waitcnt vmcnt(0)")
    a("v_cmp_ne_u32 vcc, s%d, v%d" % (sTAG, vt))
    a("s_cbranch_vccz %s" % dn)
    a("s_sleep 1\ns_sub_u32 s%d, s%d, 1\ns_cbranch_scc0 %s" % (sSpin, sSpin, lp))
    a.label(dn)
    if nlanes < 64:
        a("s_mov_b64 exec, -1")

def flag_store(soff, vt):
    a("v_mov_b32 v%d, s%d\nv_mov_b32 v%d, 0\ns_mov_b64 exec, 1" % (vt, sTAG, vt+1))
    a("buffer_store_dword v%d, v%d, %s, s%d offen sc1" % (vt, vt+1, S(S_WS), soff))
    a("s_mov_b64 exec, -1")

def loader_k1():
    lw = sM
    a("s_setprio 3")
    a("s_sub_u32 s%d, s%d, 4" % (lw, sWV))
    a("v_lshrrev_b32 v2, 3, v0\nv_lshrrev_b32 v3, 4, v0\nv_and_b32 v4, 7, v0")
    a("v_xor_b32 v5, v4, v3\nv_lshlrev_b32 v5, 4, v5")
    a("s_lshl_b32 s3, s%d, 7\ns_lshl_b32 s%d, s%d, 5\ns_add_u32 s3, s3, s%d\ns_mul_i32 s3, s3, 1280" % (sRB, sT1, lw, sT1))
    a("v_mul_u32_u24 v6, 1280, v2\nv_add3_u32 v10, v6, v5, s3")
    a("v_xor_b32 v11, 64, v10\nv_add_u32 v11, 10240, v11\nv_add_u32 v12, 20480, v10\nv_add_u32 v13, 20480, v11")
    a("s_lshl_b32 s%d, s%d, 12" % (sLA, lw))
    a("v_and_b32 v6, 3, v2\nv_lshrrev_b32 v7, 2, v2\nv_lshl_add_u32 v6, v7, 3, v6\nv_mul_u32_u24 v6, 3072, v6")
    a("v_and_b32 v7, 6, v2\nv_xor_b32 v7, v4, v7\nv_lshl_add_u32 v6, v7, 4, v6")
    a("s_mul_i32 s%d, s%d, 384\ns_lshl_b32 s3, s%d, 7\ns_add_u32 s%d, s%d, s3" % (sT1, sJJ, sTY, sT1, sT1))
    a("s_and_b32 s%d, s%d, 1" % (sT2, lw))
    a("s_lshr_b32 s3, s%d, 1\ns_lshl_b32 s3, s3, 3\ns_add_u32 s3, s3, s%d\ns_mul_i32 s3, s3, 12288\ns_add_u32 s3, s3, s%d" % (lw, sT2, sT1))
    a("v_add_u32 v19, s3, v6\nv_add_u32 v20, 49152, v19")
    a("s_movk_i32 s%d, %d\ns_cmp_eq_u32 s%d, 0\ns_cselect_b32 s%d, %d, s%d\ns_lshl_b32 s3, s%d, 11\ns_add_u32 s%d, s%d, s3" % (sLH, HQ_OFF, sTY, sLH, HKV_OFF, sLH, lw, sLH, sLH))
    a("s_lshr_b32 s3, s%d, 1\ns_and_b32 s3, s3, s%d\ns_cmp_eq_u32 s3, 1\ns_cbranch_scc1 L_phmode" % (lw, sTY))
    a("s_mov_b32 s%d, %d" % (sIncP, 64*3840))
    a("s_lshr_b32 s3, s%d, 1\ns_add_u32 s3, s3, 1\ns_cmp_eq_u32 s%d, 0\ns_cselect_b32 s3, s3, 0" % (lw, sTY))
    a("s_mul_i32 s%d, s3, 1280\ns_mul_i32 s%d, s%d, 160\ns_add_u32 s%d, s%d, s%d\ns_mul_i32 s%d, s%d, %d\ns_add_u32 s%d, s%d, s%d" % (sT1, sT3, sJJ, sT1, sT1, sT3, sT3, sT2, 32*3840, sT1, sT1, sT3))
    a("s_movk_i32 s%d, %d\ns_cmp_eq_u32 s3, 2\ns_cselect_b32 s%d, %d, s%d\ns_mul_i32 s%d, s%d, 5120\ns_add_u32 s%d, s%d, s%d" % (sLP, K_OFF, sLP, V_OFF, sLP, sT3, sT2, sLP, sLP, sT3))
    for i in range(5):
        a("v_add_u32 v7, %d, v0" % (64*i))
        a("v_mul_u32_u24 v8, 6554, v7\nv_lshrrev_b32 v8, 16, v8")
        a("v_mul_u32_u24 v9, 10, v8\nv_sub_u32 v7, v7, v9")
        a("v_and_b32 v9, 12, v8\nv_lshlrev_b32 v9, 1, v9\nv_and_or_b32 v9, v8, 3, v9\nv_lshrrev_b32 v8, 4, v8\nv_lshl_add_u32 v9, v8, 2, v9")
        a("v_mul_u32_u24 v9, 3840, v9\nv_lshl_add_u32 v9, v7, 4, v9\nv_add_u32 v%d, s%d, v9" % (14+i, sT1))
    a("s_add_u32 s%d, s%d, 4096" % (sLP4, sLP))
    a("s_waitcnt lgkmcnt(0)")
    srd(S_P, 38, 640*3840)
    a("s_branch L_pdone")
    a.label("L_phmode")
    a("s_mov_b32 s%d, %d" % (sIncP, 64*3072))
    a("s_mul_i32 s3, s%d, %d\ns_add_u32 s3, s3, s%d\ns_add_u32 s3, s3, 128" % (sT2, 32*3072, sT1))
    a("v_add_u32 v14, s3, v6\nv_add_u32 v15, 49152, v14\nv_add_u32 v16, 12288, v14\nv_add_u32 v17, 61440, v14\nv_mov_b32 v18, 0x7f000000")
    a("s_lshl_b32 s3, s%d, 12\ns_add_u32 s%d, s3, %d\ns_mov_b32 s%d, %d" % (sT2, sLP, HQ_OFF + 8192, sLP4, DUMMY_OFF))
    a("s_waitcnt lgkmcnt(0)")
    srd(S_P, 44, 640*3072)
    a.label("L_pdone")
    build_srds()
    a("s_mov_b32 s%d, 0\ns_mov_b32 s%d, 0\ns_mov_b32 s%d, 0\ns_mov_b32 s%d, 0\ns_mov_b32 s%d, 0" % (sA, sP, sH, sSlot, sCnt))
    def issue():
        for i in range(4):
            a("s_add_u32 m0, s%d, s%d" % (sSlot, sLA) if i == 0 else "s_add_u32 m0, m0, 0x400")
            a("s_nop 0\nbuffer_load_dwordx4 v%d, %s, s%d offen lds" % (10+i, S(S_X), sA))
        for i in range(5):
            if i == 0: a("s_add_u32 m0, s%d, s%d" % (sSlot, sLP))
            elif i == 4: a("s_add_u32 m0, s%d, s%d" % (sSlot, sLP4))
            else: a("s_add_u32 m0, m0, 0x400")
            a("s_nop 0\nbuffer_load_dwordx4 v%d, %s, s%d offen lds" % (14+i, S(S_P), sP))
        for i in range(2):
            a("s_add_u32 m0, s%d, s%d" % (sSlot, sLH) if i == 0 else "s_add_u32 m0, m0, 0x400")
            a("s_nop 0\nbuffer_load_dwordx4 v%d, %s, s%d offen lds" % (19+i, S(S_W1), sH))
        a("s_add_u32 s%d, s%d, 128\ns_add_u32 s%d, s%d, s%d\ns_add_u32 s%d, s%d, %d" % (sA, sA, sP, sP, sIncP, sH, sH, 64*3072))
        a("s_add_u32 s%d, s%d, %d\ns_cmp_eq_u32 s%d, %d\ns_cselect_b32 s%d, 0, s%d" % (sSlot, sSlot, SLOT, sSlot, 3*SLOT, sSlot, sSlot))
    stamp(1)
    a("s_branch L_lissue")
    a.label("L_lloop")
    a("s_waitcnt vmcnt(11)\ns_barrier")
    if OPT["nodma"]: a("s_branch L_skipissue")
    a.label("L_lissue")
    issue()
    a.label("L_skipissue")
    a("s_add_u32 s%d, s%d, 1\ns_cmp_lt_u32 s%d, 2\ns_cbranch_scc1 L_lissue" % (sCnt, sCnt, sCnt))
    a("s_cmp_lt_u32 s%d, 10\ns_cbranch_scc1 L_lloop" % sCnt)
    a("v_mov_b32 v2, %d\nds_read_b32 v2, v2\ns_waitcnt lgkmcnt(0)\nv_readfirstlane_b32 s%d, v2" % (TAGL, sTAG))
    a("s_waitcnt vmcnt(11)\ns_barrier")
    a("s_waitcnt vmcnt(0)\ns_barrier")
    stamp(4)
    a("s_cmp_lg_u32 s%d, 0\ns_cbranch_scc1 L_nostats" % lw)
    a("v_lshlrev_b32 v2, 4, v0\ns_lshl_b32 s3, s%d, 11\ns_add_u32 s3, s3, 0x%x\ns_mov_b32 s%d, %d" % (sRB, STAT_OFF, sSpin, SPIN))
    a.label("L_stpoll")
    a("buffer_load_dwordx4 v[24:27], v2, %s, s3 offen sc1\nbuffer_load_dwordx4 v[28:31], v2, %s, s3 offen offset:1024 sc1" % (S(S_WS), S(S_WS)))
    a("s_waitcnt vmcnt(0)")
    a("v_xor_b32 v3, s%d, v25\nv_xor_b32 v4, s%d, v27\nv_xor_b32 v5, s%d, v29\nv_xor_b32 v7, s%d, v31" % (sTAG, sTAG, sTAG, sTAG))
    a("v_or3_b32 v3, v3, v4, v5\nv_or_b32 v3, v3, v7\nv_cmp_ne_u32 vcc, 0, v3\ns_cbranch_vccz L_stok")
    a("s_sleep 1\ns_sub_u32 s%d, s%d, 1\ns_cbranch_scc0 L_stpoll" % (sSpin, sSpin))
    a.label("L_stok")
    a("v_lshlrev_b32 v2, 2, v0\nv_add_u32 v2, %d, v2" % STATL)
    a("ds_write2st64_b32 v2, v24, v28 offset0:0 offset1:1\nds_write2st64_b32 v2, v26, v30 offset0:2 offset1:3")
    a.label("L_nostats")
    a("s_lshl_b32 s3, s%d, 6\nv_add_u32 v2, s3, v0" % lw)
    for rnd in range(2):
        o = 32 + rnd
        a("v_add_u32 v3, %d, v2" % (256 * rnd))
        a("v_cmp_le_u32 vcc, 210, v3\ns_nop 1\nv_cndmask_b32 v4, 0, 1, vcc")
        a("v_mul_u32_u24 v5, 210, v4\nv_sub_u32 v3, v3, v5")
        a("v_cmp_le_u32 vcc, 105, v3\ns_nop 1\nv_cndmask_b32 v5, 0, 1, vcc")
        a("v_mul_u32_u24 v7, 105, v5\nv_sub_u32 v3, v3, v7")
        a("v_mul_u32_u24 v7, 52429, v3\nv_lshrrev_b32 v7, 18, v7")
        a("v_mul_u32_u24 v8, 5, v7\nv_sub_u32 v3, v3, v8")
        a("v_mad_u32_u24 v3, v5, 5, v3")
        a("v_lshrrev_b32 v8, 2, v3\nv_and_b32 v3, 3, v3")
        a("v_mad_u32_u24 v9, v5, 20, v7")
        a("v_cmp_eq_u32 vcc, 20, v7")
        a("s_cmp_lg_u32 s%d, 0" % sTY)
        lq = a.newlabel("Lgq"); ld = a.newlabel("Lgd")
        a("s_cbranch_scc1 %s" % lq)
        a("v_add_u32 v9, 8, v9\nv_cndmask_b32 v9, v9, 0, vcc")
        a("v_lshrrev_b32 v7, 4, v9\nv_and_b32 v9, 15, v9\nv_mad_u32_u24 v7, v8, 3, v7")
        a("v_lshl_add_u32 v9, v3, 4, v9\nv_lshlrev_b32 v9, 4, v9\nv_lshl_add_u32 v9, v7, 10, v9")
        a("v_mul_u32_u24 v4, 9216, v4\nv_add_u32 v9, v9, v4\nv_add_u32 v%d, %d, v9" % (o, XK))
        a("s_branch %s" % ld)
        a.label(lq)
        a("v_add_u32 v5, 40, v5\nv_cndmask_b32 v9, v9, v5, vcc")
        a("v_lshl_add_u32 v7, v9, 2, v3\nv_lshlrev_b32 v7, 3, v7")
        a("v_lshlrev_b32 v5, 1, v7\nv_lshl_add_u32 v5, v8, 3, v5")
        a("v_add_u32 v7, 3072, v7\nv_cmp_eq_u32 vcc, 2, v8\ns_nop 1\nv_cndmask_b32 v7, v5, v7, vcc")
        a("v_mul_u32_u24 v4, 4608, v4\nv_add_u32 v7, v7, v4\nv_add_u32 v%d, %d, v7" % (o, IMG))
        a.label(ld)
    a("v_lshlrev_b32 v34, 4, v2")
    a("s_cmp_lg_u32 s%d, 0\ns_cbranch_scc1 L_ldr_qh" % sTY)
    stamp(5)
    a("s_waitcnt lgkmcnt(0)\ns_barrier")
    stamp(6)
    a("s_barrier")
    stamp(7)
    a("ds_read_b128 v[36:39], v32\nds_read_b128 v[40:43], v32 offset:%d" % (2*9216))
    a("v_cmp_gt_u32 vcc, %d, v2\ns_and_saveexec_b64 s[%d:%d], vcc" % (420 - 256, sEX, sEX+1))
    a("ds_read_b128 v[44:47], v33\nds_read_b128 v[48:51], v33 offset:%d" % (2*9216))
    a("s_mov_b64 exec, -1")
    a("s_lshl_b32 s3, s%d, 4\ns_add_u32 s3, s3, s%d\ns_mul_i32 s3, s3, %d\ns_add_u32 s3, s3, 0x%x" % (sJJ, sRB, KVP_STRIDE, KVP_OFF))
    a("s_add_u32 s%d, s3, 4096" % sT1)
    a("s_waitcnt lgkmcnt(0)")
    a("v_pk_add_f32 v[36:37], v[36:37], v[40:41]\nv_pk_add_f32 v[38:39], v[38:39], v[42:43]")
    a("v_pk_add_f32 v[44:45], v[44:45], v[48:49]\nv_pk_add_f32 v[46:47], v[46:47], v[50:51]")
    a("buffer_store_dwordx4 v[36:39], v34, %s, s3 offen sc1" % S(S_WS))
    a("s_and_b64 exec, exec, vcc\ns_cbranch_execz L_kvst1")
    a("buffer_store_dwordx4 v[44:47], v34, %s, s%d offen sc1" % (S(S_WS), sT1))
    a.label("L_kvst1")
    a("s_mov_b64 exec, -1")
    a("s_lshl_b32 s3, s%d, 8\ns_lshl_b32 s%d, s%d, 4\ns_add_u32 s3, s3, s%d\ns_lshl_b32 s%d, s%d, 2\ns_add_u32 s3, s3, s%d\ns_add_u32 s3, s3, 0x%x" % (sJJ, sT1, sRB, sT1, sT1, lw, sT1, FKV))
    a("s_waitcnt vmcnt(0)")
    flag_store(3, 36)
    a("s_branch L_k1done")
    a.label("L_ldr_qh")
    a("v_mov_b32 v36, 0\nv_mov_b32 v37, 0\nv_mov_b32 v38, 0\nv_mov_b32 v39, 0\nv_add_u32 v35, %d, v34" % IMG)
    a("ds_write_b128 v35, v[36:39]\nds_write_b128 v35, v[36:39] offset:4096")
    a("s_cmp_lg_u32 s%d, 0\ns_cbranch_scc1 L_z3\nds_write_b128 v35, v[36:39] offset:8192" % lw)
    a.label("L_z3")
    stamp(5)
    a("s_waitcnt lgkmcnt(0)\ns_barrier")
    stamp(6)
    a("v_lshlrev_b32 v3, 2, v0\ns_lshl_b32 s3, s%d, 8\ns_add_u32 s3, s3, 0x%x" % (sJJ, FKV))
    poll(3, 3, 64, 4, "kv")
    stamp(7)
    a("s_lshl_b32 s3, s%d, 4\ns_mul_i32 s3, s3, %d\ns_add_u32 s3, s3, 0x%x" % (sJJ, KVP_STRIDE, KVP_OFF))
    a("v_add_u32 v35, 4096, v34\nv_cmp_gt_u32 vcc, %d, v2\nv_mov_b32 v3, 0x7f000000\ns_nop 0\nv_cndmask_b32 v35, v3, v35, vcc" % (420 - 256))
    for p in range(16):
        a("buffer_load_dwordx4 v[%d:%d], v34, %s, s3 offen sc1" % (64 + 8*p, 67 + 8*p, S(S_WS)))
        a("buffer_load_dwordx4 v[%d:%d], v35, %s, s3 offen sc1" % (68 + 8*p, 71 + 8*p, S(S_WS)))
        if p < 15: a("s_add_u32 s3, s3, %d" % KVP_STRIDE)
    for p in range(1, 16):
        a("s_waitcnt vmcnt(%d)" % (2 * (15 - p)))
        for q in range(4):
            a("v_pk_add_f32 v[%d:%d], v[%d:%d], v[%d:%d]" % (64+2*q, 65+2*q, 64+2*q, 65+2*q, 64+8*p+2*q, 65+8*p+2*q))
    a("v_cvt_pk_bf16_f32 v36, v64, v65\nv_cvt_pk_bf16_f32 v37, v66, v67\nv_cvt_pk_bf16_f32 v38, v68, v69\nv_cvt_pk_bf16_f32 v39, v70, v71")
    a("ds_write_b64 v32, v[36:37]")
    a("s_and_b64 exec, exec, vcc\ns_cbranch_execz L_im1\nds_write_b64 v33, v[38:39]")
    a.label("L_im1")
    a("s_mov_b64 exec, -1")
    a("s_waitcnt lgkmcnt(0)\ns_barrier")
    a("s_branch L_k1done")

ACC = 8; CS = 120; F0 = 136; F1 = 180; ONES = 224
vA0, vA1, vS, vS2, vH = 228, 229, 230, 231, 232
vB1 = 236
def acc(i, t): return ACC + (i * 7 + t) * 4
def R4(b): return "v[%d:%d]" % (b, b + 3)
def R2(b): return "v[%d:%d]" % (b, b + 1)

def bf16_round(v, t=None):
    a("v_cvt_pk_bf16_f32 v%d, v%d, v%d\nv_lshlrev_b32 v%d, 16, v%d" % (v, v, v, v, v))

def allreduce32(v, t):
    for ctl in ("quad_perm:[1,0,3,2]", "quad_perm:[2,3,0,1]", "row_half_mirror", "row_mirror"):
        a("s_nop 1\nv_add_f32_dpp v%d, v%d, v%d %s row_mask:0xf bank_mask:0xf" % (v, v, v, ctl))
    a("v_mov_b32 v%d, v%d\ns_nop 1\nv_permlane16_swap_b32 v%d, v%d\ns_nop 1\nv_add_f32 v%d, v%d, v%d" % (t, v, v, t, v, v, t))

def compute_prologue():
    a("s_lshr_b32 s%d, s%d, 1\ns_and_b32 s%d, s%d, 1" % (sM, sWV, sN, sWV))
    a("s_lshl_b32 s3, s%d, 3\ns_add_u32 s3, s3, s%d\ns_lshl_b32 s3, s3, 2\ns_add_u32 s3, s3, s%d\ns_lshl_b32 s3, s3, 1\ns_lshl_b32 s%d, s%d, 7\ns_add_u32 s%d, s%d, s3" % (sTY, sJJ, sWV, sT1, sRB, sT1, sT1))
    a("v_lshrrev_b32 v1, 5, v0\nv_and_b32 v2, 31, v0\nv_mul_u32_u24 v3, 1280, v1\nv_lshl_add_u32 v4, v2, 4, v3\nv_lshl_add_u32 v5, v2, 3, v3")
    a("s_mul_i32 s%d, s%d, 1280" % (sT2, sT1))
    a("s_lshl_b32 s3, s%d, 8\ns_add_u32 s%d, s3, s2" % (sWV, sK0))
    global NRELAY
    NRELAY = 0 if OPT["noreld"] else 680
    a("s_mul_i32 s3, s%d, 6554\ns_lshr_b32 s%d, s3, 16\ns_mul_i32 s3, s%d, 10\ns_sub_u32 s%d, s%d, s3" % (sK0, sK1, sK1, sT3, sK0))
    a("s_waitcnt lgkmcnt(0)")
    build_srds()
    load_tag()
    a("buffer_load_dwordx4 v[140:143], v4, %s, s%d offen\nbuffer_load_dwordx4 v[144:147], v4, %s, s%d offen offset:512\nbuffer_load_dwordx2 v[148:149], v5, %s, s%d offen offset:1024" % (S(S_X), sT2, S(S_X), sT2, S(S_X), sT2))
    a("s_cmp_ge_u32 s%d, %d\ns_cbranch_scc1 L_norelay1" % (sK0, NRELAY))
    a("s_cmp_lt_u32 s%d, 48\ns_cselect_b32 s%d, s48, s40\ns_cselect_b32 s%d, s49, s41\ns_mov_b32 s%d, %d\ns_cselect_b32 s%d, %d, s%d\ns_mov_b32 s%d, 0x20000" % (sK1, S_P, S_P+1, S_P+2, 640*1280, S_P+2, 1536*1280, S_P+2, S_P+3))
    a("s_lshl_b32 s%d, s%d, 5\ns_mul_i32 s3, s%d, 40\ns_sub_u32 s3, s3, %d\ns_cmp_lt_u32 s%d, 48\ns_cselect_b32 s%d, s%d, s3" % (sLA, sK1, sK1, 48*40, sK1, sLA, sLA))
    a("s_mul_i32 s3, s%d, 160\ns_sub_u32 s3, s3, %d\ns_cmp_lt_u32 s%d, 64\ns_cselect_b32 s%d, s%d, s3" % (sK1, 64*160 - 32, sK1, sLA, sLA))
    a("s_cselect_b32 s%d, 4, 40\ns_cselect_b32 s%d, 16, 4" % (sLP, sLH))
    a("v_lshrrev_b32 v6, 3, v0\nv_and_b32 v7, 7, v0\nv_and_b32 v1, 6, v6\nv_xor_b32 v7, v7, v1\nv_lshlrev_b32 v7, 4, v7")
    a("v_lshrrev_b32 v1, 5, v0\nv_mul_u32_u24 v1, s%d, v1\nv_and_b32 v6, 3, v6\nv_add_u32 v6, v6, v1\nv_mul_u32_u24 v6, 1280, v6\nv_add_u32 v6, v6, v7" % sLP)
    a("s_mul_i32 s%d, s%d, 1280\ns_lshl_b32 s3, s%d, 7\ns_add_u32 s%d, s%d, s3" % (sLA, sLA, sT3, sLA, sLA))
    a("s_mul_i32 s%d, s%d, 2560\ns_mul_i32 s%d, s%d, 1280" % (sLP, sLP, sLH, sLH))
    a("s_lshl_b32 s3, s%d, 12\ns_add_u32 m0, s3, %d" % (sWV, RELAY))
    a("s_nop 0\nbuffer_load_dwordx4 v6, %s, s%d offen lds" % (S(S_P), sLA))
    a("s_add_u32 m0, m0, 0x400\ns_add_u32 s3, s%d, s%d\nbuffer_load_dwordx4 v6, %s, s3 offen lds" % (sLA, sLP, S(S_P)))
    a("s_add_u32 m0, m0, 0x400\ns_add_u32 s%d, s%d, s%d\nbuffer_load_dwordx4 v6, %s, s%d offen lds" % (sLA, sLA, sLH, S(S_P), sLA))
    a("s_add_u32 m0, m0, 0x400\ns_add_u32 s3, s%d, s%d\nbuffer_load_dwordx4 v6, %s, s3 offen lds" % (sLA, sLP, S(S_P)))
    a.label("L_norelay1")
    a("v_lshrrev_b32 v1, 4, v0\nv_lshlrev_b32 v1, 3, v1")
    a("s_lshl_b32 s3, s%d, 6\ns_lshl_b32 s3, s3, s%d\ns_lshl_b32 s%d, s%d, 7\ns_add_u32 s3, s3, s%d\ns_mul_i32 s%d, s%d, 384\ns_add_u32 s3, s3, s%d" % (sN, sTY, sLP, sTY, sLP, sLP, sJJ, sLP))
    for t in range(4):
        a("buffer_load_dwordx2 %s, v1, %s, s3 offen offset:%d" % (R2(vB1 + 2*t), S(S_B1), 32*t))
    a("v_and_b32 v2, 15, v0\nv_lshrrev_b32 v3, 4, v0\nv_lshrrev_b32 v4, 1, v2\nv_xor_b32 v4, v4, v3\nv_lshlrev_b32 v4, 4, v4\nv_lshl_add_u32 v4, v2, 7, v4")
    a("s_lshl_b32 s3, s%d, 13\nv_add_u32 v%d, s3, v4\nv_xor_b32 v%d, 64, v%d" % (sM, vA0, vA1, vA0))
    a("v_lshrrev_b32 v2, 2, v0\nv_and_b32 v3, 3, v0\nv_mul_u32_u24 v4, 160, v2\ns_mul_i32 s3, s%d, 80\nv_add_u32 v4, s3, v4\nv_lshl_add_u32 v%d, v3, 3, v4" % (sN, vS))
    a("v_and_b32 v5, 1, v3\nv_lshl_add_u32 v4, v5, 3, v4\nv_add_u32 v4, %d, v4" % (K_OFF + 64))
    a("s_cmp_eq_u32 s%d, 0\ns_cselect_b32 s3, %d, 0\nv_lshrrev_b32 v5, 1, v3\nv_mad_u32_u24 v%d, v5, s3, v4" % (sTY, V_OFF - K_OFF - 64, vS2))
    a("v_lshlrev_b32 v4, 7, v2\nv_lshl_add_u32 v4, v3, 3, v4\nv_bfe_u32 v5, v0, 3, 2\nv_lshl_add_u32 v4, v5, 5, v4")
    a("s_lshl_b32 s3, s%d, 6\ns_cmp_eq_u32 s%d, 0\ns_cselect_b32 s3, s3, 0\nv_xor_b32 v4, s3, v4" % (sN, sTY))
    a("s_lshl_b32 s3, s%d, 13\ns_add_u32 s3, s3, %d\ns_cmp_eq_u32 s%d, 0\ns_cselect_b32 s3, %d, s3" % (sN, HQ_OFF, sTY, HKV_OFF))
    for t in range(4):
        a("v_xor_b32 v5, %d, v4\nv_add_u32 v%d, s3, v5" % (32*t, vH + t))
    for i in range(4): a("v_mov_b32 v%d, 0x3f803f80" % (ONES + i))
    for r in range(ACC, CS + 16): a("v_mov_b32 v%d, 0" % r)
    finish_tag()
    a("v_mov_b32 v2, %d\nv_mov_b32 v3, s%d\nds_write_b32 v2, v3" % (TAGL, sTAG))
    stamp(1)
    a("s_cmp_ge_u32 s%d, %d\ns_cbranch_scc1 L_w4\ns_waitcnt vmcnt(8)\ns_branch L_w8" % (sK0, NRELAY))
    a.label("L_w4"); a("s_waitcnt vmcnt(4)"); a.label("L_w8")
    for i in range(10):
        a("v_lshlrev_b32 v%d, 16, v%d\nv_and_b32 v%d, 0xffff0000, v%d" % (150 + 2*i, 140 + i, 151 + 2*i, 140 + i))
    a("v_pk_add_f32 v[2:3], v[150:151], v[152:153]")
    for i in range(2, 10): a("v_pk_add_f32 v[2:3], v[2:3], v[%d:%d]" % (150 + 2*i, 151 + 2*i))
    a("v_add_f32 v2, v2, v3")
    allreduce32(2, 3)
    a("v_mul_f32 v2, 0x3acccccd, v2")
    for i in range(10): a("v_pk_add_f32 v[%d:%d], v[%d:%d], v[2:3] op_sel_hi:[1,0] neg_lo:[0,1] neg_hi:[0,1]" % (150+2*i, 151+2*i, 150+2*i, 151+2*i))
    a("v_pk_mul_f32 v[4:5], v[150:151], v[150:151]")
    for i in range(1, 10): a("v_pk_fma_f32 v[4:5], v[%d:%d], v[%d:%d], v[4:5]" % (150+2*i, 151+2*i, 150+2*i, 151+2*i))
    a("v_add_f32 v4, v4, v5")
    allreduce32(4, 5)
    a("v_mul_f32 v4, 0x3acccccd, v4")
    bf16_round(4); a("v_add_f32 v4, 0x3727c5ac, v4"); bf16_round(4)
    a("v_sqrt_f32 v4, v4\ns_nop 0"); bf16_round(4); bf16_round(2)
    a("v_rcp_f32 v140, v4\nv_mov_b32 v141, s%d\nv_mov_b32 v143, s%d\nv_mul_f32 v142, v140, v2" % (sTAG, sTAG))
    a("v_lshrrev_b32 v1, 1, v0\ns_lshl_b32 s3, s%d, 4\ns_add_u32 s3, s3, 0x%x" % (sT1, STAT_OFF))
    a("s_mov_b32 exec_lo, 1\ns_mov_b32 exec_hi, 1")
    a("buffer_store_dwordx4 v[140:143], v1, %s, s3 offen sc1" % S(S_WS))
    a("s_mov_b64 exec, -1")
    stamp(2)
    a("s_cmp_ge_u32 s%d, %d\ns_cbranch_scc1 L_norelay2" % (sK0, NRELAY))
    a("v_lshrrev_b32 v2, 2, v0\nv_and_b32 v3, 3, v0\nv_lshlrev_b32 v4, 7, v2\nv_lshl_add_u32 v4, v3, 3, v4\nv_bfe_u32 v5, v0, 3, 2\nv_lshl_add_u32 v4, v5, 5, v4")
    a("s_lshl_b32 s3, s%d, 12\ns_add_u32 s3, s3, %d" % (sWV, RELAY))
    for t in range(4): a("v_xor_b32 v5, %d, v4\nv_add_u32 v%d, s3, v5" % (32*t, 170 + t))
    a("s_waitcnt vmcnt(5)")
    for t in range(4):
        a("ds_read_b64_tr_b16 %s, v%d\nds_read_b64_tr_b16 %s, v%d offset:2048" % (R2(180 + 4*t), 170 + t, R2(182 + 4*t), 170 + t))
    a("v_lshlrev_b32 v1, 4, v0\ns_mul_i32 s3, s%d, 40\ns_lshl_b32 s%d, s%d, 2\ns_add_u32 s3, s3, s%d\ns_lshl_b32 s3, s3, 10\ns_add_u32 s3, s3, 0x%x" % (sK1, sT3, sT3, sT3, B2_OFF))
    a("s_waitcnt lgkmcnt(0)")
    for t in range(4):
        if not OPT["norst"]: a("buffer_store_dwordx4 %s, v1, %s, s3 offen offset:%d %s" % (R4(180 + 4*t), S(S_WS), 1024*t, "" if OPT["plainst"] else "sc1"))
    a.label("L_norelay2")
    a("s_waitcnt lgkmcnt(0)")

def frag_reads(ty, F, ks2):
    r = []
    for i in range(4):
        r.append("ds_read_b128 %s, v%d offset:%d" % (R4(F + 4*i), vA1 if ks2 else vA0, 2048*i))
    nseg = 5 if ty == 0 else 3
    for t in range(7):
        d = F + 16 + 4*t
        for rd in range(2):
            if t < nseg:
                if t == 2: reg, off = vS2, 0
                elif t < 2: reg, off = vS, K_OFF + 32*t
                else: reg, off = vS, V_OFF + 16 + 32*(t - 3)
                off += ks2 * 5120 + rd * 2560
            else:
                reg, off = vH + (t - nseg), ks2 * 4096 + rd * 2048
            r.append("ds_read_b64_tr_b16 %s, v%d offset:%d" % (R2(d + 2*rd), reg, off))
    return r

def transposed(ty, t): return ty == 1 or t >= 5

def mfmas(ty, m, F):
    r = []
    for t in range(7):
        B = R4(F + 16 + 4*t)
        for i in range(4):
            A = R4(F + 4*i); D = R4(acc(i, t))
            r.append("v_mfma_f32_16x16x32_bf16 %s, %s, %s, %s" % ((D, B, A, D) if transposed(ty, t) else (D, A, B, D)))
        if t % 2 == m:
            D = R4(CS + 4*(t // 2)); O = R4(ONES)
            r.append("v_mfma_f32_16x16x32_bf16 %s, %s, %s, %s" % ((D, B, O, D) if transposed(ty, t) else (D, O, B, D)))
    return r

def interleave(mm, rr):
    for k, x in enumerate(mm):
        if not OPT["nomfma"]: a(x)
        if k < len(rr) and not (OPT["noread"] and rr[k].startswith("ds_")): a(rr[k])

def addr_regs(ty): return [vA0, vA1, vS, vS2] + [vH + t for t in range(2 if ty == 0 else 4)]

def main_loop(ty, m):
    tag = "%d%d" % (ty, m)
    a("s_mov_b32 s%d, 0\ns_mov_b32 s%d, 0" % (sCnt, sSlot))
    stamp(3)
    a("s_barrier")
    stamp(4)
    for x in frag_reads(ty, F0, 0): a(x)
    a("s_waitcnt lgkmcnt(0)")
    a("s_branch L_mid%s" % tag)
    a.raw(".p2align 3")
    a.label("L_top%s" % tag)
    a("s_barrier")
    a("s_nop 0")
    interleave(mfmas(ty, m, F1), frag_reads(ty, F0, 0))
    a("s_waitcnt lgkmcnt(0)\ns_nop 0")
    a.label("L_mid%s" % tag)
    if FUSED:
        a("s_cmp_lg_u32 s%d, 3\ns_cbranch_scc1 L_nofl%s" % (sCnt, tag))
        a("s_lshl_b32 s3, s%d, 2\ns_add_u32 s3, s3, 0x%x\ns_waitcnt vmcnt(0)" % (sK0, FB2))
        flag_store(3, 2)
        a.label("L_nofl%s" % tag)
    upd = ["v_add_u32_e64 v%d, s%d, v%d" % (r, sT1, r) for r in addr_regs(ty)]
    a("s_add_u32 s%d, s%d, 1\ns_cmp_eq_u32 s%d, 3\ns_cselect_b32 s%d, 0, s%d\ns_mov_b32 s%d, %d\ns_cselect_b32 s%d, %d, s%d\ns_add_u32 s%d, s%d, 1" % (sSlot, sSlot, sSlot, sSlot, sSlot, sT1, SLOT, sT1, (-2*SLOT) & 0xffffffff, sT1, sCnt, sCnt))
    interleave(mfmas(ty, m, F0), frag_reads(ty, F1, 1) + upd)
    a("s_cmp_lt_u32 s%d, 10\ns_waitcnt lgkmcnt(0)\ns_cbranch_scc1 L_top%s" % (sCnt, tag))
    for x in mfmas(ty, m, F1): a(x)
    a("v_lshlrev_b32 v1, 4, v0\ns_lshl_b32 s3, s%d, 12\ns_add_u32 s3, s3, %d\nv_add_u32 v2, s3, v1\nv_xor_b32 v3, 0x2000, v2" % (sWV, 0))
    a("s_nop 4")
    for k in range(4 - m):
        a("ds_write_b128 v2, %s offset:%d" % (R4(CS + 4*k), CSX + 1024*k))
    stamp(5)
    a("s_waitcnt lgkmcnt(0)\ns_barrier")
    stamp(6)
    for t in range(7):
        if t % 2 == m:
            for j in range(0, 4, 2): a("v_mov_b64 %s, %s" % (R2(F0 + 4*t + j), R2(CS + 4*(t//2) + j)))
        else:
            a("ds_read_b128 %s, v3 offset:%d" % (R4(F0 + 4*t), CSX + 1024*(t//2)))

CT = F0
RS = 164
BF = 172
KC = 188
TMP = 192
R4S = 224

def load_T_stats():
    a("v_and_b32 v4, 15, v0\nv_lshlrev_b32 v4, 2, v4\ns_lshl_b32 s3, s%d, 8\ns_add_u32 s3, s3, %d\nv_add_u32 v4, s3, v4" % (sM, STATL))
    for i in range(4):
        a("ds_read2_b32 %s, v4 offset0:%d offset1:%d" % (R2(RS + 2*i), 16*i, 128 + 16*i))
def unpack_b1(nt):
    for k in range(2*nt):
        a("v_lshlrev_b32 v%d, 16, v%d\nv_and_b32 v%d, 0xffff0000, v%d" % (BF + 2*k, vB1 + k, BF + 2*k + 1, vB1 + k))
def consts():
    import struct
    f = lambda x: struct.unpack("<I", struct.pack("<f", x))[0]
    c0 = -2.0 * 0.7978845608028654 * 1.4426950408889634; c1 = c0 * 0.044715
    a("v_mov_b32 v%d, 0x%x\nv_mov_b32 v%d, 0x%x\nv_mov_b32 v%d, 0x%x\nv_mov_b32 v%d, 0x%x" % (KC, f(c1), KC+1, f(c0), KC+2, f(1.4426950408889634), KC+3, f(1e-6)))

def gelu_block(i, t0, bt0, voff, soff):
    P = [(acc(i, t0 + q//2) + 2*(q % 2), CT + 4*(t0 + q//2) + 2*(q % 2), BF + 4*(bt0 + q//2) + 2*(q % 2), TMP + 2*q, TMP + 8 + 2*q) for q in range(4)]
    rs = R2(RS + 2*i)
    for (h, c, b, u, w) in P: a("v_pk_fma_f32 %s, %s, %s, %s op_sel:[1,0,0] op_sel_hi:[1,1,1] neg_lo:[1,0,0] neg_hi:[1,0,0]" % (R2(u), rs, R2(c), R2(b)))
    for (h, c, b, u, w) in P: a("v_pk_fma_f32 %s, %s, %s, %s op_sel:[0,0,0] op_sel_hi:[0,1,1]" % (R2(h), rs, R2(h), R2(u)))
    for (h, c, b, u, w) in P: a("v_pk_mul_f32 %s, %s, %s" % (R2(u), R2(h), R2(h)))
    for (h, c, b, u, w) in P: a("v_pk_fma_f32 %s, %s, %s, %s op_sel:[0,0,1] op_sel_hi:[1,0,1]" % (R2(u), R2(u), R2(KC), R2(KC)))
    for (h, c, b, u, w) in P: a("v_pk_mul_f32 %s, %s, %s" % (R2(u), R2(u), R2(h)))
    for (h, c, b, u, w) in P: a("v_exp_f32 v%d, v%d\nv_exp_f32 v%d, v%d" % (u, u, u+1, u+1))
    for (h, c, b, u, w) in P: a("v_pk_add_f32 %s, %s, 1.0 op_sel_hi:[1,0]" % (R2(u), R2(u)))
    for (h, c, b, u, w) in P: a("v_rcp_f32 v%d, v%d\nv_rcp_f32 v%d, v%d" % (u, u, u+1, u+1))
    for (h, c, b, u, w) in P: a("v_pk_mul_f32 %s, %s, %s" % (R2(u), R2(u), R2(h)))
    o = acc(i, t0)
    for q, (h, c, b, u, w) in enumerate(P): a("v_cvt_pk_bf16_f32 v%d, v%d, v%d" % (o + q, u, u+1))
    a("buffer_store_dwordx4 %s, v%d, %s, s%d offen offset:%d sc1" % (R4(o), voff, S(S_WS), soff, 1024*i))

def phi_pairs(P):
    for (h, u) in P: a("v_pk_mul_f32 %s, %s, %s op_sel:[0,0] op_sel_hi:[1,0]" % (R2(u), R2(h), R2(KC + 2)))
    for (h, u) in P: a("v_exp_f32_e64 v%d, v%d clamp\nv_exp_f32_e64 v%d, v%d clamp" % (u, u, u+1, u+1))
    for (h, u) in P: a("v_max_f32 v%d, v%d, v%d\nv_max_f32 v%d, v%d, v%d" % (h, h, KC+3, h+1, h+1, KC+3))
    for (h, u) in P: a("v_pk_add_f32 %s, %s, %s" % (R2(h), R2(h), R2(u)))

def a2_soff(dst, ks_expr_emit):
    ks_expr_emit()
    a("s_lshl_b32 s%d, s%d, 1\ns_add_u32 s%d, s%d, s%d\ns_mul_i32 s%d, s%d, 68\ns_add_u32 s%d, s%d, s3\ns_lshl_b32 s%d, s%d, 12" % (dst, sRB, dst, dst, sM, dst, dst, dst, dst, dst, dst))

def h_flag():
    a("s_lshl_b32 s3, s%d, 1\ns_add_u32 s3, s3, s%d\ns_lshl_b32 s3, s3, 7\ns_lshl_b32 s%d, s%d, 6\ns_add_u32 s3, s3, s%d\ns_lshl_b32 s%d, s%d, 3\ns_add_u32 s3, s3, s%d\ns_lshl_b32 s%d, s%d, 2\ns_add_u32 s3, s3, s%d\ns_add_u32 s3, s3, 0x%x" % (sRB, sM, sT1, sTY, sT1, sT1, sJJ, sT1, sT1, sN, sT1, FH))
    a("s_waitcnt vmcnt(0)")
    flag_store(3, 2)

def epilogue_kv():
    unpack_b1(2); consts()
    load_T_stats()
    a("v_lshrrev_b32 v4, 4, v0\nv_lshlrev_b32 v4, 4, v4\ns_lshl_b32 s3, s%d, 8\ns_add_u32 s3, s3, %d\nv_add_u32 v4, s3, v4" % (sM, STATL))
    for i in range(4):
        a("ds_read_b128 %s, v4 offset:%d\nds_read_b128 %s, v4 offset:%d" % (R4(R4S + 4*i), 64*i, R4(R4S + 16 + 4*i), 512 + 64*i))
    a("v_and_b32 v5, 8, v0\nv_cmp_eq_u32 vcc, 0, v5")
    a("v_mov_b32 v6, 0\nv_mov_b32 v7, 0x3f803f80")
    a("v_cndmask_b32 v5, v6, v%d, vcc" % (KC + 3))
    a("v_mov_b32 v4, v5")
    a("s_waitcnt lgkmcnt(0)")
    for i in range(4):
        for t in range(5):
            for q in range(2):
                h = acc(i, t) + 2*q; u = TMP + 4*t + 2*q
                rm = R2(R4S + 16 + 4*i + 2*q); c = R2(CT + 4*t)
                if t < 2: a("v_pk_fma_f32 %s, %s, %s, %s op_sel:[0,0,1] op_sel_hi:[1,0,1] neg_lo:[1,0,0] neg_hi:[1,0,0]" % (R2(u), rm, c, R2(KC + 2)))
                elif t == 2: a("v_pk_fma_f32 %s, %s, %s, v[4:5] op_sel:[0,0,0] op_sel_hi:[1,0,1] neg_lo:[1,0,0] neg_hi:[1,0,0]" % (R2(u), rm, c))
                else: a("v_pk_mul_f32 %s, %s, %s op_sel:[0,0] op_sel_hi:[1,0] neg_lo:[1,0] neg_hi:[1,0]" % (R2(u), rm, c))
        for t in range(5):
            for q in range(2):
                h = acc(i, t) + 2*q; u = TMP + 4*t + 2*q
                a("v_pk_fma_f32 %s, %s, %s, %s" % (R2(h), R2(R4S + 4*i + 2*q), R2(h), R2(u)))
        a("v_cvt_pk_bf16_f32 v%d, v%d, v%d\nv_cvt_pk_bf16_f32 v%d, v%d, v%d" % (TMP+20, acc(i,2), acc(i,2)+1, TMP+21, acc(i,2)+2, acc(i,2)+3))
        phi_pairs([(acc(i, t) + 2*q, TMP + 4*t + 2*q) for t in range(3) for q in range(2)])
        e = 2 * (i >> 1); o = 2 * (i & 1)
        for t in range(5):
            a("v_cvt_pk_bf16_f32 v%d, v%d, v%d\nv_cvt_pk_bf16_f32 v%d, v%d, v%d" % (acc(e,t)+o, acc(i,t), acc(i,t)+1, acc(e,t)+o+1, acc(i,t)+2, acc(i,t)+3))
        a("v_cndmask_b32 v%d, v%d, v7, vcc\nv_cndmask_b32 v%d, v%d, v7, vcc" % (CS + 4*(i>>1) + o, TMP+20, CS + 4*(i>>1) + o + 1, TMP+21))
    prods = [(0,2),(0,3),(1,2),(1,3),(1,4),(2,2),(2,3),(2,4)]
    a("s_nop 1")
    for ksr in range(2):
        for k, (ti, tj) in enumerate(prods):
            B = R4(CS + 4*ksr) if tj == 2 else R4(acc(2*ksr, tj))
            D = R4(TMP + 4*k)
            a("v_mfma_f32_16x16x32_bf16 %s, %s, %s, %s" % (D, R4(acc(2*ksr, ti)), B, "0" if ksr == 0 else D))
    a("v_lshlrev_b32 v1, 4, v0\ns_mul_i32 s3, s%d, 9216\ns_add_u32 s3, s3, %d\nv_add_u32 v2, s3, v1" % (sWV, XK))
    a("s_nop 4")
    for k, (ti, tj) in enumerate(prods):
        a("ds_write_b128 v2, %s offset:%d" % (R4(TMP + 4*k), 1024 * (3*ti + tj - 2)))
    a2_soff(sT2, lambda: a("s_mul_i32 s3, s%d, 6\ns_add_u32 s3, s3, s%d" % (sJJ, sN)))
    a("s_waitcnt lgkmcnt(0)\ns_barrier")
    stamp(7)
    for i in range(4): gelu_block(i, 5, 0, 1, sT2)
    if FUSED: h_flag()

def epilogue_qh():
    unpack_b1(4); consts()
    load_T_stats()
    a("v_lshlrev_b32 v1, 4, v0")
    a2_soff(sT2, lambda: a("s_mul_i32 s3, s%d, 6\ns_lshl_b32 s%d, s%d, 1\ns_add_u32 s3, s3, s%d\ns_add_u32 s3, s3, 2" % (sJJ, sT1, sN, sT1)))
    a("s_add_u32 s%d, s%d, 4096" % (sT3, sT2))
    a("s_waitcnt lgkmcnt(0)")
    for i in range(4):
        gelu_block(i, 3, 0, 1, sT2)
        gelu_block(i, 5, 2, 1, sT3)
    for i in range(4):
        rs = R2(RS + 2*i)
        P = [(acc(i, t) + 2*q, TMP + 4*t + 2*q, CT + 4*t + 2*q) for t in range(3) for q in range(2)]
        for (h, u, c) in P: a("v_pk_fma_f32 %s, %s, %s, %s op_sel:[1,0,1] op_sel_hi:[1,1,1] neg_lo:[1,0,0] neg_hi:[1,0,0]" % (R2(u), rs, R2(c), R2(KC + 2)))
        for (h, u, c) in P: a("v_pk_fma_f32 %s, %s, %s, %s op_sel:[0,0,0] op_sel_hi:[0,1,1]" % (R2(h), rs, R2(h), R2(u)))
        phi_pairs([(h, u) for (h, u, c) in P])
        for k, (h, u, c) in enumerate(P): a("v_cvt_pk_bf16_f32 v%d, v%d, v%d" % (acc(i, 0) + k, h, h + 1))
    if FUSED: h_flag()
    a("v_and_b32 v2, 15, v0\nv_lshrrev_b32 v3, 4, v0\ns_mul_i32 s3, s%d, 4608\ns_add_u32 s3, s3, %d" % (sN, IMG))
    a("v_lshl_add_u32 v4, v2, 2, v3\nv_lshlrev_b32 v5, 3, v4\nv_lshlrev_b32 v4, 4, v4\nv_add_u32 v4, s3, v4\nv_add_u32 v5, s3, v5")
    a("v_and_b32 v6, 3, v2\nv_cmp_ne_u32 vcc, 0, v6\ns_nop 1\nv_cndmask_b32 v6, 0, 1, vcc\nv_cmp_eq_u32 vcc, 2, v2\ns_nop 1\nv_cndmask_b32 v6, v6, 0, vcc")
    a("v_add_u32 v6, 40, v6\nv_lshl_add_u32 v6, v6, 2, v3\nv_lshlrev_b32 v7, 3, v6\nv_lshlrev_b32 v6, 4, v6\nv_add_u32 v6, s3, v6\nv_add_u32 v7, s3, v7")
    a2_soff(sT2, lambda: a("s_lshl_b32 s3, s%d, 1\ns_add_u32 s3, s3, s%d\ns_add_u32 s3, s3, 48" % (sJJ, sN)))
    a2_soff(sT3, lambda: a("s_lshr_b32 s3, s%d, 1\ns_add_u32 s3, s3, 64" % sJJ))
    a("s_lshl_b32 s3, s%d, 1\ns_add_u32 s3, s3, s%d\ns_and_b32 s3, s3, 3\ns_lshl_b32 s3, s3, 8\ns_add_u32 s%d, s%d, s3" % (sJJ, sN, sT3, sT3))
    a("v_lshlrev_b32 v2, 4, v2\nv_lshl_add_u32 v2, v3, 3, v2")
    stamp(7)
    a("s_barrier")
    W32 = 136; W16 = 152
    for to in range(3): a("ds_read_b128 %s, v4 offset:%d" % (R4(W32 + 4*to), 1024*to))
    a("ds_read_b128 %s, v6" % R4(W32 + 12))
    for to in range(1, 3): a("ds_read_b64 %s, v5 offset:%d" % (R2(W16 + 2*to), 3072 + 512*to))
    a("ds_read_b64 %s, v7 offset:3072" % R2(W16 + 6))
    a("s_waitcnt lgkmcnt(0)")
    O = 192
    for i in range(4):
        for to in range(4): a("v_mfma_f32_16x16x32_bf16 %s, %s, %s, 0" % (R4(O + 16*i + 4*to), R4(W32 + 4*to), R4(acc(i, 0))))
    a("s_nop 7")
    for i in range(4):
        for to in range(1, 4): a("v_mfma_f32_16x16x16_bf16 %s, %s, %s, %s" % (R4(O + 16*i + 4*to), R2(W16 + 2*to), R2(acc(i, 1)), R4(O + 16*i + 4*to)))
    a("s_nop 7")
    for i in range(4):
        d = O + 16*i + 12
        for j in range(3): a("v_add_f32 v%d, v%d, v%d" % (d + j, d + j, KC + 3))
        for j in range(3): a("v_rcp_f32 v%d, v%d" % (d + j, d + j))
        a("s_nop 0")
        for to, sel in ((0, 0), (1, 2), (2, 1)):
            for q in range(2):
                x = O + 16*i + 4*to + 2*q
                a("v_pk_mul_f32 %s, %s, %s op_sel:[0,%d] op_sel_hi:[1,%d]" % (R2(x), R2(x), R2(d + (sel & 2)), sel & 1, sel & 1))
        for k in range(6): a("v_cvt_pk_bf16_f32 v%d, v%d, v%d" % (acc(i, 0) + k, O + 16*i + 2*k, O + 16*i + 2*k + 1))
        a("buffer_store_dwordx4 %s, v1, %s, s%d offen offset:%d sc1" % (R4(acc(i, 0)), S(S_WS), sT2, 1024*i))
    a("s_mov_b32 exec_hi, 0")
    for i in range(4):
        a("buffer_store_dwordx2 %s, v2, %s, s%d offen offset:%d sc1" % (R2(acc(i, 1)), S(S_WS), sT3, 1024*i))
    a("s_mov_b64 exec, -1")
    if FUSED:
        a("s_lshl_b32 s3, s%d, 1\ns_add_u32 s3, s3, s%d\ns_lshl_b32 s3, s3, 7\ns_lshl_b32 s%d, s%d, 3\ns_add_u32 s3, s3, s%d\ns_lshl_b32 s%d, s%d, 2\ns_add_u32 s3, s3, s%d\ns_add_u32 s3, s3, 0x%x" % (sRB, sM, sT1, sJJ, sT1, sT1, sN, sT1, FO))
        a("s_waitcnt vmcnt(0)")
        flag_store(3, 2)

def compute_k1():
    compute_prologue()
    a("s_lshl_b32 s3, s%d, 1\ns_add_u32 s3, s3, s%d" % (sTY, sM))
    a("s_cmp_eq_u32 s3, 1\ns_cbranch_scc1 L_c01\ns_cmp_eq_u32 s3, 2\ns_cbranch_scc1 L_c10\ns_cmp_eq_u32 s3, 3\ns_cbranch_scc1 L_c11")
    main_loop(0, 0); a("s_branch L_epi_kv")
    a.label("L_c01"); main_loop(0, 1)
    a.label("L_epi_kv"); epilogue_kv(); a("s_branch L_k1done")
    a.label("L_c10"); main_loop(1, 0); a("s_branch L_epi_qh")
    a.label("L_c11"); main_loop(1, 1)
    a.label("L_epi_qh"); epilogue_qh()

G_ACC = 4; G_B = 84; G_A = 224
def gemm2():
    a("v_lshlrev_b32 v1, 4, v0\nv_add_u32 v2, 4096, v1")
    a("s_lshl_b32 s%d, s%d, 3\ns_add_u32 s%d, s%d, 4" % (sK0, sWV, sK1, sK0))
    a("s_cmp_lt_u32 s%d, 4\ns_cbranch_scc1 L_g2e" % sWV)
    a("s_lshl_b32 s%d, s%d, 2\ns_add_u32 s%d, s%d, 16\ns_mul_i32 s%d, s%d, 5\ns_add_u32 s%d, s%d, 28" % (sK0, sWV, sK0, sK0, sK1, sWV, sK1, sK1))
    a.label("L_g2e")
    sAo0, sAo1, sBo0, sBo1 = sLA, sLP, sLP4, sLH
    a("s_mul_i32 s3, s%d, 68\ns_add_u32 s%d, s3, s%d\ns_lshl_b32 s%d, s%d, 12\ns_add_u32 s%d, s3, s%d\ns_lshl_b32 s%d, s%d, 12" % (sRT, sAo0, sK0, sAo0, sAo0, sAo1, sK1, sAo1, sAo1))
    a("s_mul_i32 s3, s%d, 5120\ns_add_u32 s3, s3, 0x%x\ns_mul_i32 s%d, s%d, 40960\ns_add_u32 s%d, s%d, s3\ns_mul_i32 s%d, s%d, 40960\ns_add_u32 s%d, s%d, s3" % (sCT, B2_OFF, sBo0, sK0, sBo0, sBo0, sBo1, sK1, sBo1, sBo1))
    def loadB(s):
        d = G_B + 20 * (s % 7)
        base, k = (sBo0, s) if s < 4 else (sBo1, s - 4)
        a("s_add_u32 s3, s%d, %d" % (base, 40960 * k))
        if s == 8: a("s_cmp_lt_u32 s%d, 4\ns_cselect_b32 s3, 0x7f000000, s3" % sWV)
        for t in range(4): a("buffer_load_dwordx4 %s, v1, %s, s3 offen offset:%d sc1" % (R4(d + 4*t), S(S_WS), 1024*t))
        a("buffer_load_dwordx4 %s, v2, %s, s3 offen sc1" % (R4(d + 16), S(S_WS)))
    def loadA(s):
        d = G_A + 16 * (s % 2)
        base, k = (sAo0, s) if s < 4 else (sAo1, s - 4)
        a("s_add_u32 s3, s%d, %d" % (base, 4096 * k))
        if s == 8: a("s_cmp_lt_u32 s%d, 4\ns_cselect_b32 s3, 0x7f000000, s3" % sWV)
        for i in range(4): a("buffer_load_dwordx4 %s, v1, %s, s3 offen offset:%d sc1" % (R4(d + 4*i), S(S_WS), 1024*i))
    if FUSED:
        lp = "L_b2poll"
        a("s_mov_b32 s%d, %d\ns_mov_b32 s3, 0x%x" % (sSpin, SPIN, FB2))
        a.label(lp)
        for q in range(4): a("buffer_load_dwordx4 %s, v1, %s, s3 offen offset:%d sc1" % (R4(G_A + 4*q), S(S_WS), 1024*q))
        a("s_waitcnt vmcnt(0)")
        for q in range(16): a("v_xor_b32 v%d, s%d, v%d" % (G_A + q, sTAG, G_A + q))
        for q in range(1, 15, 2): a("v_or3_b32 v%d, v%d, v%d, v%d" % (G_A, G_A, G_A + q, G_A + q + 1))
        a("v_or_b32 v%d, v%d, v%d\nv_cmp_ne_u32 vcc, 0, v%d\ns_cbranch_vccz L_b2ok" % (G_A, G_A, G_A + 15, G_A))
        a("s_sleep 1\ns_sub_u32 s%d, s%d, 1\ns_cbranch_scc0 %s" % (sSpin, sSpin, lp))
        a.label("L_b2ok")
    for s in range(7): loadB(s)
    if FUSED:
        a("v_lshlrev_b32 v3, 2, v0\ns_lshl_b32 s%d, s%d, 7\ns_add_u32 s%d, s%d, 0x%x" % (sT1, sRT, sT1, sT1, FH))
        poll(3, sT1, 32, G_A, "h")
    stamp(9)
    loadA(0); loadA(1)
    out = ["B%d" % s for s in range(7) for _ in range(5)] + ["A0"] * 4 + ["A1"] * 4
    for s in range(9):
        if s == 8:
            a("s_cmp_lt_u32 s%d, 4\ns_cbranch_scc1 L_g2done" % sWV)
        need = max(i for i, x in enumerate(out) if x in ("A%d" % s, "B%d" % s))
        a("s_waitcnt vmcnt(%d)" % (len(out) - 1 - need))
        out = out[need + 1:]
        for t in range(5):
            for i in range(4):
                D = R4(G_ACC + (i*5 + t) * 4)
                a("v_mfma_f32_16x16x32_bf16 %s, %s, %s, %s" % (D, R4(G_B + 20*(s % 7) + 4*t), R4(G_A + 16*(s % 2) + 4*i), "0" if s == 0 else D))
        if s + 2 < 9:
            if FUSED and s + 2 == 4:
                a("s_cmp_lt_u32 s%d, 4\ns_cbranch_scc1 L_noopoll" % sWV)
                a("s_lshl_b32 s%d, s%d, 7\ns_add_u32 s%d, s%d, 0x%x" % (sT1, sRT, sT1, sT1, FO))
                poll(3, sT1, 16, G_A + 16*(s % 2), "o")
                a.label("L_noopoll")
                stamp(10)
            loadA(s + 2); out += ["A%d" % (s + 2)] * 4
        if s + 7 < 9:
            loadB(s + 7); out += ["B%d" % (s + 7)] * 5
    a.label("L_g2done")
    a("s_waitcnt vmcnt(0)")
    stamp(11)
    REG = 21504
    a("s_and_b32 s3, s%d, 3\ns_mul_i32 s3, s3, %d\nv_add_u32 v3, s3, v1" % (sWV, REG))
    XR = 84
    for rnd in range(2):
        a("v_add_u32 v%d, %d, v0\nv_mul_u32_u24 v%d, 6554, v%d\nv_lshrrev_b32 v%d, 16, v%d\nv_mul_u32_u24 v%d, 10, v%d\nv_sub_u32 v%d, v%d, v%d" % (224, 64*rnd, 225, 224, 225, 225, 226, 225, 224, 224, 226))
        a("s_lshl_b32 s3, s%d, 3\nv_add_u32 v225, s3, v225" % sWV)
        a("v_mul_u32_u24 v226, 336, v225\nv_lshl_add_u32 v%d, v224, 5, v226" % (228 + rnd))
        a("v_mul_u32_u24 v226, 1280, v225\nv_lshl_add_u32 v%d, v224, 4, v226" % (230 + rnd))
        a("v_lshlrev_b32 v%d, 4, v224" % (232 + rnd))
    a("v_mov_b32 v226, 0x7f000000\nv_cmp_gt_u32 vcc, 16, v0\ns_nop 1\nv_cndmask_b32 v231, v226, v231, vcc\nv_cndmask_b32 v229, 0, v229, vcc")
    a("s_mul_i32 s%d, s%d, %d\ns_mul_i32 s%d, s%d, 160\ns_add_u32 s%d, s%d, s%d" % (sT1, sRT, 64*1280, sT2, sCT, sT1, sT1, sT2))
    for rnd in range(2):
        a("buffer_load_dwordx4 %s, v%d, %s, s%d offen" % (R4(XR + 8*rnd), 230 + rnd, S(S_X), sT1))
        a("buffer_load_dwordx4 %s, v%d, %s, s%d offen" % (R4(XR + 4 + 8*rnd), 232 + rnd, S(S_B2), sT2))
    if FUSED: a("s_barrier")
    a("s_cmp_ge_u32 s%d, 4\ns_cbranch_scc1 L_late" % sWV)
    for k in range(20): a("ds_write_b128 v3, %s offset:%d" % (R4(G_ACC + 4*k), 1024*k))
    a("s_waitcnt lgkmcnt(0)\ns_barrier\ns_branch L_fin")
    a.label("L_late")
    a("s_barrier")
    for k in range(20): a("ds_read_b128 %s, v3 offset:%d" % (R4(104 + 4*k), 1024*k))
    a("v_and_b32 v234, 15, v0\nv_lshrrev_b32 v235, 4, v0\nv_mul_u32_u24 v234, 336, v234\nv_lshl_add_u32 v234, v235, 4, v234")
    a("s_and_b32 s3, s%d, 3\ns_mul_i32 s3, s3, %d\nv_add_u32 v234, s3, v234" % (sWV, REG))
    a("s_waitcnt lgkmcnt(0)")
    for k in range(40): a("v_pk_add_f32 %s, %s, %s" % (R2(G_ACC + 2*k), R2(G_ACC + 2*k), R2(104 + 2*k)))
    for i in range(4):
        for t in range(5): a("ds_write_b128 v234, %s offset:%d" % (R4(G_ACC + (i*5 + t)*4), 16*336*i + 64*t))
    a("s_waitcnt lgkmcnt(0)")
    a.label("L_fin")
    a("s_barrier")
    stamp(12)
    for rnd in range(2):
        for p in range(4):
            if p == 3: a("v_add_u32 v%d, %d, v%d" % (228 + rnd, 3*REG, 228 + rnd))
            off = REG*p if p < 3 else 0
            a("ds_read_b128 %s, v%d offset:%d\nds_read_b128 %s, v%d offset:%d" % (R4(104 + 32*rnd + 8*p), 228 + rnd, off, R4(108 + 32*rnd + 8*p), 228 + rnd, off + 16))
    a("s_waitcnt vmcnt(0)")
    for rnd in range(2):
        for k in range(4):
            for (src, dst) in ((XR + 8*rnd + k, 4 + 16*rnd + 2*k), (XR + 4 + 8*rnd + k, 12 + 16*rnd + 2*k)):
                a("v_lshlrev_b32 v%d, 16, v%d\nv_and_b32 v%d, 0xffff0000, v%d" % (dst, src, dst + 1, src))
        for k in range(4): a("v_pk_add_f32 %s, %s, %s" % (R2(4 + 16*rnd + 2*k), R2(4 + 16*rnd + 2*k), R2(12 + 16*rnd + 2*k)))
    a("s_waitcnt lgkmcnt(0)")
    for rnd in range(2):
        b = 104 + 32*rnd
        for k in range(4):
            a("v_pk_add_f32 %s, %s, %s\nv_pk_add_f32 %s, %s, %s" % (R2(b + 2*k), R2(b + 2*k), R2(b + 8 + 2*k), R2(b + 16 + 2*k), R2(b + 16 + 2*k), R2(b + 24 + 2*k)))
        for k in range(4): a("v_pk_add_f32 %s, %s, %s" % (R2(b + 2*k), R2(b + 2*k), R2(b + 16 + 2*k)))
        for k in range(4): a("v_pk_add_f32 %s, %s, %s" % (R2(b + 2*k), R2(b + 2*k), R2(4 + 16*rnd + 2*k)))
        for k in range(4): a("v_cvt_pk_bf16_f32 v%d, v%d, v%d" % (b + k, b + 2*k, b + 2*k + 1))
        a("buffer_store_dwordx4 %s, v%d, %s, s%d offen" % (R4(b), 230 + rnd, S(S_OUT), sT1))

def bump_epoch():
    a("s_mov_b32 s3, 0x%x" % EPOCH)
    flag_store(3, 2)

K1 = BASE + "_kernel"; K2 = "gemm2_kernel"
hdr = open("cdna_kernels/%s.s.ref" % BASE).read().split("; Override")[0]
a.raw(hdr.rstrip())
if FUSED:
    a.raw("; @launch grid=(256,1,1) block=(512,1,1) lds=163840")
else:
    a.raw("; @launch kernel=%s grid=(256,1,1) block=(512,1,1) lds=163840" % K1)
    a.raw("; @launch kernel=%s grid=(256,1,1) block=(512,1,1) lds=163840" % K2)
a.raw('.amdgcn_target "amdgcn-amd-amdhsa--gfx950"\n.text')
kernel_header(a, K1)
prologue_common()
a("s_cmp_lt_u32 s%d, 4\ns_cbranch_scc1 L_compute" % sWV)
loader_k1()
a.label("L_compute")
compute_k1()
a.label("L_k1done")
stamp(8)
if FUSED:
    gemm2()
    stamp_store()
    a("s_cmp_lg_u32 s2, 0\ns_cbranch_scc1 L_end\ns_cmp_lg_u32 s%d, 4\ns_cbranch_scc1 L_end" % sWV)
    bump_epoch()
else:
    stamp_store()
    a("s_cmp_lg_u32 s2, 64\ns_cbranch_scc1 L_end\ns_cmp_lg_u32 s%d, 4\ns_cbranch_scc1 L_end" % sWV)
    bump_epoch()
a.label("L_end")
a("s_endpgm")
if not FUSED:
    kernel_header(a, K2)
    prologue_common(True)
    a("s_waitcnt lgkmcnt(0)")
    build_srds()
    gemm2()
    stamp_store(0x20000)
    a.label("L_end2")
    a("s_endpgm")
a.raw('.section .rodata,"a"')
kernel_desc(a, K1, 256, 102)
if not FUSED: kernel_desc(a, K2, 256, 102)
sys.stdout.write(a.text())
```

```python
import sys, struct
from asmlib import *
BASE = "parallel_sum__linear_attn_block__dense_activation_gelu__prompt"
KNAME = BASE + "_kernel"
OPT = dict(stamps=0, sm=0, probe=-1, pcls=0, slp=2, n1=1, cpf=1, win=2, xmap=1, fast=1, kvu=2, qord=0, cprio=0, thr=0)
for arg in sys.argv[1:]:
    k, v = arg.split("="); assert k in OPT, k; OPT[k] = int(v)
STAMPS = OPT["stamps"]
f32 = lambda x: struct.unpack("<I", struct.pack("<f", x))[0]

B2_OFF = 0x900000
KVP_OFF = 0xC00000; KVP_STRIDE = 6912
STAT_OFF = 0xD00000
FLAG_OFF = 0xD10000
EPOCH = FLAG_OFF; FWG = FLAG_OFF + 0x1000; FH = FLAG_OFF + 0x4000
CSP_OFF = 0xD20000; CSP_STRIDE = 13824
RED_OFF = 0xD50000
STAMP_OFF = 0xE00000
WS_SIZE = 0x1000000
OOB = 0x7f000000
SLOT = 45184
K_OFF = 16384; V_OFF = 26640; HKV_OFF = 36992; HQ_OFF = 26624
JOBL = 2 * SLOT
IMG = 147456
LFLAG = 160000; TAGL = 160064; FASTL = 160128
LF_IMG, LF_XK, LF_PRE, LF_PQ, LF_B = 0, 4, 8, 16, 32
STATL = 160768; CSL = 161792
EBS = 30720
XK = 122880; PQL = 122880
SPIN = 200000
NKVU = 128 * OPT["kvu"]; NQU = 680 - NKVU; QPER = -(-NQU // 242)
S_X, S_J, S_W1, S_WS, S_P, S_OUT, S_B1, S_B2 = 4, 8, 12, 16, 20, 24, 28, 32
sRB, sJJ, sTY, sWV, sTAG, sM, sN = 58, 59, 60, 61, 62, 63, 64
sT1, sT2, sT3 = 65, 66, 67
sLA, sLP, sLP4, sLH, sIncP, sA, sP, sH, sSlot, sCnt = 68, 69, 70, 71, 72, 73, 74, 75, 76, 77
sORD = 76
sEX = 78; sSpin = 80; sRT, sCT = 81, 82
sK0, sK1, sK2 = 83, 84, 85
sST = 86
sAo0, sAo1, sAo2, sBo0, sBo1, sBo2 = 36, 37, 38, 39, 42, 43
TB = [40, 41, 48, 49]
sFAST = 54; sPC = 46

a = Asm()
OUTLINE = []
def srd(d, p, n): a("s_mov_b32 s%d, s%d\ns_mov_b32 s%d, s%d\ns_mov_b32 s%d, 0x%x\ns_mov_b32 s%d, 0x20000" % (d, p, d+1, p+1, d+2, n, d+3))
def S(d): return "s[%d:%d]" % (d, d+3)
def R4(b): return "v[%d:%d]" % (b, b + 3)
def R2(b): return "v[%d:%d]" % (b, b + 1)
def align8(): a.raw(".p2align 3")

def stamp(idx, mode=0):
    if mode == 0 and OPT["probe"] == idx:
        a("s_memrealtime s[%d:%d]\ns_waitcnt lgkmcnt(0)\ns_mov_b32 s%d, s%d" % (sST, sST+1, sST + 2, sST))
    if not STAMPS or (mode != OPT["sm"] and idx not in (0, 13)): return
    a("s_memrealtime s[%d:%d]\ns_waitcnt lgkmcnt(0)\ns_mov_b32 s%d, s%d" % (sST, sST+1, sST + 2 + idx, sST))
def stamp_init():
    if STAMPS:
        for i in range(14): a("s_mov_b32 s%d, 0" % (sST + 2 + i))
def stamp_store():
    if OPT["probe"] >= 0:
        a("s_waitcnt vmcnt(0)")
        stamp(13)
        a("s_lshr_b32 s3, s%d, 2\ns_cmp_lg_u32 s3, %d\ns_cbranch_scc1 L_pspd" % (sWV, OPT["pcls"]))
        a.label("L_psp")
        a("s_memrealtime s[%d:%d]\ns_waitcnt lgkmcnt(0)\ns_sub_u32 s3, s%d, s%d\ns_cmp_lt_u32 s3, 10000\ns_cbranch_scc1 L_psp" % (sST, sST+1, sST, sST + 2))
        a.label("L_pspd")
    if not STAMPS: return
    a("s_waitcnt vmcnt(0)")
    stamp(13)
    for i in range(14): a("v_mov_b32 v%d, s%d" % (4 + i, sST + 2 + i))
    a("v_mov_b32 v18, 0\nv_mov_b32 v19, 0\nv_mov_b32 v2, 0\ns_lshl_b32 s3, s2, 3\ns_add_u32 s3, s3, s%d\ns_lshl_b32 s3, s3, 6\ns_add_u32 s3, s3, 0x%x\ns_mov_b64 exec, 1" % (sWV, STAMP_OFF))
    for i in range(4): a("buffer_store_dwordx4 v[%d:%d], v2, %s, s3 offen offset:%d" % (4 + 4*i, 7 + 4*i, S(S_WS), 16*i))
    a("s_mov_b64 exec, -1")

class VM:
    def __init__(self): self.q = []
    def add(self, lab, n=1): self.q += [lab] * n
    def wait(self, *labs):
        idx = [i for i, x in enumerate(self.q) if x in labs]
        if not idx: return
        n = len(self.q) - 1 - max(idx)
        assert n <= 63
        a("s_waitcnt vmcnt(%d)" % n); self.q = self.q[max(idx) + 1:]
def capture(fn):
    n = len(a.lines); fn(); out = a.lines[n:]; del a.lines[n:]; return [x.strip() for x in out]

def st_a2(ops):
    if isinstance(ops, str): ops = [ops]
    if not OPT["fast"]:
        for o in ops: a(o + " sc1")
        return
    l = a.newlabel("Lsl")
    a("s_cmp_lg_u32 s%d, 0\ns_cbranch_scc0 %s" % (sFAST, l))
    for o in ops: a(o)
    a.label(l + "_b")
    OUTLINE.append(l + ":")
    for o in ops: OUTLINE.append("  " + o + " sc1")
    OUTLINE.append("  s_branch %s_b" % l)

def poll(voff, soff, nlanes, vt, name):
    lp = a.newlabel("Lpoll_" + name)
    a("s_mov_b32 s%d, %d\ns_mov_b64 exec, 0x%x" % (sSpin, SPIN, (1 << nlanes) - 1))
    a.label(lp)
    a("buffer_load_dword v%d, v%d, %s, s%d offen sc1\ns_waitcnt vmcnt(0)" % (vt, voff, S(S_WS), soff))
    a("v_cmp_ne_u32 vcc, s%d, v%d\ns_cbranch_vccz %s_d" % (sTAG, vt, lp))
    a("s_sleep %d\ns_sub_u32 s%d, s%d, 1\ns_cbranch_scc0 %s" % (OPT["slp"], sSpin, sSpin, lp))
    a.label(lp + "_d")
    a("s_mov_b64 exec, -1")
def lds_addr(v, off, sw):
    if sw is None: a("v_mov_b32 v%d, %d" % (v, LFLAG + off))
    else: a("s_lshl_b32 s3, s%d, 2\ns_add_u32 s3, s3, %d\nv_mov_b32 v%d, s3" % (sw, LFLAG + off, v))
def lds_signal(off, sw, v):
    lds_addr(v, off, sw)
    a("v_mov_b32 v%d, 1\ns_mov_b64 exec, 1\nds_add_u32 v%d, v%d\ns_mov_b64 exec, -1" % (v + 1, v, v + 1))
def lds_wait(off, sw, cnt, v, slp=1):
    lp = a.newlabel("Llw"); lds_addr(v, off, sw)
    a("s_mov_b32 s%d, %d" % (sSpin, 20 * SPIN))
    a.label(lp)
    a("ds_read_b32 v%d, v%d\ns_waitcnt lgkmcnt(0)\nv_cmp_ne_u32 vcc, %d, v%d\ns_cbranch_vccz %s_d" % (v + 1, v, cnt, v + 1, lp))
    if slp: a("s_sleep %d" % slp)
    a("s_sub_u32 s%d, s%d, 1\ns_cbranch_scc0 %s" % (sSpin, sSpin, lp))
    a.label(lp + "_d")
def bf16_round(v): a("v_cvt_pk_bf16_f32 v%d, v%d, v%d\nv_lshlrev_b32 v%d, 16, v%d" % (v, v, v, v, v))
def unpack(dst, src): a("v_lshlrev_b32 v%d, 16, v%d\nv_and_b32 v%d, 0xffff0000, v%d" % (dst, src, dst + 1, src))
def tagchk(acc_, regs):
    a("v_xor_b32 v%d, s%d, v%d" % (acc_, TB[0], regs[0]))
    for k, r in enumerate(regs):
        if k: a("v_bitop3_b32 v%d, v%d, v%d, s%d bitop3:0xf6" % (acc_, acc_, r, TB[k % 4]))
    a("v_and_b32 v%d, 0xff, v%d\nv_cmp_ne_u32 vcc, 0, v%d" % (acc_, acc_, acc_))

G_ACC = 4
KS_C = [3, 5, 9, 11, 0, 1, 6, 7]; KS_L = [2, 4, 8, 10]
def g2_setup(late):
    w = sM if late else sWV
    a("v_lshlrev_b32 v1, 4, v0\nv_add_u32 v2, 4096, v1")
    a("s_mul_i32 s%d, s%d, 12" % (sK0, w))
    if late: a("s_lshl_b32 s%d, s%d, 2\ns_add_u32 s%d, s%d, 48\ns_add_u32 s%d, s%d, 64" % (sK1, w, sK1, sK1, sK2, w))
    a("s_mul_i32 s3, s%d, 68" % sRT)
    for (d, k) in ((sAo0, sK0),) + (((sAo1, sK1), (sAo2, sK2)) if late else ()):
        a("s_add_u32 s%d, s3, s%d\ns_lshl_b32 s%d, s%d, 12" % (d, k, d, d))
    a("s_mul_i32 s3, s%d, 5120\ns_add_u32 s3, s3, 0x%x" % (sCT, B2_OFF))
    for (d, k) in ((sBo0, sK0),) + (((sBo1, sK1), (sBo2, sK2)) if late else ()):
        a("s_mul_i32 s%d, s%d, 40960\ns_add_u32 s%d, s%d, s3" % (d, k, d, d))
def step_off(s, late, bases, stride, dst=3):
    if not late: b, k = bases[0], KS_C[s]
    elif s < 4: b, k = bases[0], KS_L[s]
    elif s < 8: b, k = bases[1], s - 4
    else: b, k = bases[2], 0
    a("s_add_u32 s%d, s%d, %d" % (dst, b, stride * k))
def Breg(s, late):
    if late: return 84 + 20 * (s if s < 5 else s - 5)
    return 124 + 20 * (s & 1) if s < 6 else 84 + 20 * (s - 6)
def Areg(s, late): return 184 + 16 * s if late else 164 + 16 * (s % 5)
def loadB(s, late):
    d = Breg(s, late)
    step_off(s, late, (sBo0, sBo1, sBo2), 40960)
    for t in range(4): a("buffer_load_dwordx4 %s, v1, %s, s3 offen offset:%d sc1" % (R4(d + 4*t), S(S_WS), 1024*t))
    a("buffer_load_dwordx4 %s, v2, %s, s3 offen sc1" % (R4(d + 16), S(S_WS)))
def loadA(s, late):
    d = Areg(s, late)
    step_off(s, late, (sAo0, sAo1, sAo2), 4096)
    for i in range(4): a("buffer_load_dwordx4 %s, v1, %s, s3 offen offset:%d sc1" % (R4(d + 4*i), S(S_WS), 1024*i))
def dmaB(s):
    step_off(s, False, (sBo0,), 40960)
    a("s_mul_i32 m0, s%d, %d\ns_add_u32 m0, m0, %d\ns_nop 0" % (sM, EBS, 5120*s))
    for t in range(4): a("buffer_load_dwordx4 v1, %s, s3 offen offset:%d sc1 lds" % (S(S_WS), 1024*t))
    a("s_add_u32 m0, m0, 4096\ns_nop 0\nbuffer_load_dwordx4 v2, %s, s3 offen sc1 lds" % S(S_WS))
    if OPT["thr"]: a("s_waitcnt vmcnt(%d)" % OPT["thr"])
def a2_soff(dst, m, ks_emit):
    ks_emit()
    a("s_lshl_b32 s%d, s%d, 1\ns_add_u32 s%d, s%d, s%d\ns_mul_i32 s%d, s%d, 68\ns_add_u32 s%d, s%d, s3\ns_lshl_b32 s%d, s%d, 12" % (dst, sRB, dst, dst, m, dst, dst, dst, dst, dst, dst))
def ks_flag(sOff, m, waitn, vt):
    a("s_lshl_b32 s3, s%d, 1\ns_add_u32 s3, s3, s%d\ns_mul_i32 s3, s3, %d\ns_lshr_b32 s%d, s%d, 10\ns_add_u32 s3, s3, s%d\ns_add_u32 s3, s3, 0x%x" % (sRB, m, 512 - 272, sSpin, sOff, sSpin, FH))
    a("v_mov_b32 v%d, s%d\nv_mov_b32 v%d, 0\ns_mov_b64 exec, 1\ns_waitcnt vmcnt(%d)" % (vt, sTAG, vt + 1, waitn))
    st_a2("buffer_store_dword v%d, v%d, %s, s3 offen" % (vt, vt + 1, S(S_WS)))
    a("s_mov_b64 exec, -1\ns_nop 0")
def g2_mfma(D, B, A, first): a("v_mfma_f32_16x16x32_bf16 %s, %s, %s, %s" % (R4(D), R4(B), R4(A), "0" if first else R4(D)))
def g2_flagoff(v, ks):
    packed = sum(k << (4*j) for j, k in enumerate(ks))
    a("v_lshlrev_b32 v%d, 2, v0\ns_mov_b32 s3, 0x%x\nv_bfe_u32 v%d, s3, v%d, 4\nv_lshlrev_b32 v%d, 2, v%d" % (v, packed, v, v, v, v))
def g2_step(s, late):
    stamp(2 + s, 2)
    for t in range(5):
        for i in range(4): g2_mfma(G_ACC + (i*5 + t) * 4, Breg(s, late) + 4*t, Areg(s, late) + 4*i, s == 0)
def paddr(v, t1, t2):
    a("v_and_b32 v%d, 15, v0\nv_lshrrev_b32 v%d, 4, v0\nv_bfe_u32 v%d, v0, 1, 2\nv_xor_b32 v%d, v%d, v%d\nv_mul_u32_u24 v%d, 320, v%d\nv_lshl_add_u32 v%d, v%d, 4, v%d" % (v, t1, t2, t1, t1, t2, v, v, v, t1, v))

def make_table():
    T = []
    for ty in range(2):
        for t in range(256):
            ga = []
            for rnd in range(2):
                gi = t + 256 * rnd
                if gi >= 420: ga.append(ga[0]); continue
                n, gi = divmod(gi, 210); hh, gi = divmod(gi, 105); e, dg = divmod(gi, 5)
                DG = 5 * hh + dg; ti, g = DG >> 2, DG & 3
                if ty == 0:
                    col = 0 if e == 20 else 20 * hh + e + 8
                    idx = 3 * ti + (col >> 4) - (1 if ti > 0 else 0)
                    ga.append(XK + n * 8192 + idx * 1024 + (g * 16 + (col & 15)) * 16)
                else:
                    c = 40 + hh if e == 20 else 20 * hh + e
                    ga.append(IMG + n * 4608 + ((c * 4 + g) * 16 + ti * 8 if ti < 2 else 3072 + (c * 4 + g) * 8))
            l = t & 63
            if l >= 56: l = 0
            n, u4 = divmod(l, 28)
            if ty == 0: c4, mul = ((160 + 10*n + u4, 20) if u4 < 10 else (320 + 10*n + u4 - 10, 20) if u4 < 20 else (480 + 8*n + u4 - 20, 48))
            else: c4, mul = ((10*n + u4, 20) if u4 < 10 else (10*n + u4 - 2, 20) if u4 < 12 else (480 + 16 + 16*n + u4 - 12, 48))
            T += [ga[0], ga[1], c4 * 16, mul * 16]
    return T

def order_table(ph):
    wins = {1: [1]*10, 2: [2]*5, 3: [3,3,4], 4: [4,3,3]}[OPT["win"]]
    o = []; b = 0
    for w in wins:
        o += [b + (i + ph) % w for i in range(w)]; b += w
    return sum(x << (4*i) for i, x in enumerate(o))

def loader():
    lw = sM
    def issue(base, part=(0, 11), filler=()):
        def m0(reg, i, first):
            if base is not None: return "s_add_u32 m0, s%d, %d" % (reg, base + 1024*i)
            return "s_add_u32 m0, s%d, s%d" % (reg, sK2) if first else "s_add_u32 m0, m0, 0x400"
        L = []
        for i in range(4): L.append((m0(sLA, i, i == 0), "buffer_load_dwordx4 v%d, %s, s%d offen lds" % (10+i, S(S_X), sA)))
        for i in range(2): L.append((m0(sLH, i, i == 0), "buffer_load_dwordx4 v%d, %s, s%d offen lds" % (19+i, S(S_W1), sH)))
        for i in range(5): L.append((m0(sLP, i, i == 0), "buffer_load_dwordx4 v%d, %s, s%d offen lds" % (14+i, S(S_P), sP)))
        filler = list(filler)
        for k in range(*part):
            m, d = L[k]
            if k == 10:
                l = a.newlabel("Lnop4")
                a("s_cmp_lg_u32 s%d, 0\ns_cbranch_scc1 %s" % (sLP4, l)); a(m); a("s_nop 0"); a(d); a.label(l)
            else: a(m); a("s_nop 0"); a(d)
            if filler: a(filler.pop(0))
    def nextstage(): a("s_lshr_b64 s[%d:%d], s[%d:%d], 4\ns_and_b32 s3, s%d, 15\ns_lshl_b32 s%d, s3, 7\ns_mul_i32 s%d, s3, s%d\ns_mul_i32 s%d, s3, %d" % (sORD, sORD+1, sORD, sORD+1, sORD, sA, sP, sIncP, sH, 64*3072))
    def bar(k): stamp(k + 1, 4); a("s_barrier"); stamp(k + 1, 3)
    a("s_sub_u32 s%d, s%d, 4" % (lw, sWV))
    a("v_lshrrev_b32 v2, 3, v0\nv_lshrrev_b32 v3, 4, v0\nv_and_b32 v4, 7, v0")
    a("v_xor_b32 v5, v4, v3\nv_lshlrev_b32 v5, 4, v5")
    a("s_lshl_b32 s3, s%d, 7\ns_lshl_b32 s%d, s%d, 5\ns_add_u32 s3, s3, s%d\ns_mul_i32 s3, s3, 1280" % (sRB, sT1, lw, sT1))
    a("v_mul_u32_u24 v6, 1280, v2\nv_add3_u32 v10, v6, v5, s3")
    a("v_xor_b32 v11, 64, v10\nv_add_u32 v11, 10240, v11\nv_add_u32 v12, 20480, v10\nv_add_u32 v13, 20480, v11")
    a("s_lshl_b32 s%d, s%d, 12" % (sLA, lw))
    nph = {1: 1, 2: 2}.get(OPT["win"], 4)
    a("s_lshr_b32 s3, s2, 6\ns_add_u32 s3, s3, s%d\ns_and_b32 s3, s3, %d\ns_mov_b32 s%d, 0x%x\ns_mov_b32 s%d, 0x%x" % (sRB, nph - 1, sORD, order_table(0) & 0xffffffff, sORD+1, order_table(0) >> 32))
    for ph in range(1, nph):
        a("s_cmp_eq_u32 s3, %d\ns_cselect_b32 s%d, 0x%x, s%d\ns_cselect_b32 s%d, 0x%x, s%d" % (ph, sORD, order_table(ph) & 0xffffffff, sORD, sORD+1, order_table(ph) >> 32, sORD+1))
    a("s_and_b32 s%d, s%d, 15\ns_lshl_b32 s%d, s%d, 7\ns_mul_i32 s%d, s%d, %d" % (sP, sORD, sA, sP, sH, sP, 64*3072))
    a("s_mov_b32 s%d, 0x%x\ns_mov_b32 s%d, 0x20000" % (S_X+2, 2048*1280, S_X+3))
    a("s_waitcnt lgkmcnt(0)")
    a("s_mov_b32 s%d, s36\ns_mov_b32 s%d, s37" % (S_X, S_X+1))
    stamp(1)
    issue(0, (0, 4))
    a("v_and_b32 v6, 3, v2\nv_lshrrev_b32 v7, 2, v2\nv_lshl_add_u32 v6, v7, 3, v6\nv_mul_u32_u24 v6, 3072, v6")
    a("v_and_b32 v7, 6, v2\nv_xor_b32 v7, v4, v7\nv_lshl_add_u32 v6, v7, 4, v6")
    a("s_mul_i32 s%d, s%d, 384\ns_lshl_b32 s3, s%d, 7\ns_add_u32 s%d, s%d, s3" % (sT1, sJJ, sTY, sT1, sT1))
    a("s_and_b32 s%d, s%d, 1" % (sT2, lw))
    a("s_lshr_b32 s3, s%d, 1\ns_lshl_b32 s3, s3, 3\ns_add_u32 s3, s3, s%d\ns_mul_i32 s3, s3, 12288\ns_add_u32 s3, s3, s%d" % (lw, sT2, sT1))
    a("v_add_u32 v19, s3, v6\nv_add_u32 v20, 49152, v19")
    a("s_movk_i32 s%d, %d\ns_cmp_eq_u32 s%d, 0\ns_cselect_b32 s%d, %d, s%d\ns_lshl_b32 s3, s%d, 11\ns_add_u32 s%d, s%d, s3" % (sLH, HQ_OFF, sTY, sLH, HKV_OFF, sLH, lw, sLH, sLH))
    srd(S_W1, 44, 640*3072)
    issue(0, (4, 6))
    a("s_lshr_b32 s3, s%d, 1\ns_and_b32 s%d, s3, s%d\ns_cbranch_scc1 L_phmode" % (lw, sLP4, sTY))
    a("s_mov_b32 s%d, %d" % (sIncP, 64*3840))
    a("s_lshr_b32 s3, s%d, 1\ns_add_u32 s3, s3, 1\ns_cmp_eq_u32 s%d, 0\ns_cselect_b32 s3, s3, 0" % (lw, sTY))
    a("s_mul_i32 s%d, s3, 1280\ns_mul_i32 s%d, s%d, 160\ns_add_u32 s%d, s%d, s%d\ns_mul_i32 s%d, s%d, %d\ns_add_u32 s%d, s%d, s%d" % (sT1, sT3, sJJ, sT1, sT1, sT3, sT3, sT2, 32*3840, sT1, sT1, sT3))
    a("s_movk_i32 s%d, %d\ns_cmp_eq_u32 s3, 2\ns_cselect_b32 s%d, %d, s%d\ns_mul_i32 s%d, s%d, 5120\ns_add_u32 s%d, s%d, s%d" % (sLP, K_OFF, sLP, V_OFF, sLP, sT3, sT2, sLP, sLP, sT3))
    a("v_mul_u32_u24 v7, 6554, v0\nv_lshl_add_u32 v5, v0, 4, s%d\ns_movk_i32 s3, 3680\ns_movk_i32 s%d, 3840" % (sT1, sT3))
    for i in range(5):
        a("v_add_u32 v8, %d, v7\nv_lshrrev_b32 v8, 16, v8\nv_and_b32 v9, 12, v8" % (64*i*6554))
        c = 1024*i - (46080 if i >= 3 else 0)
        a("v_add_u32 v%d, 0x%x, v5\nv_mad_u32_u24 v%d, v8, s3, v%d\nv_mad_u32_u24 v%d, v9, s%d, v%d" % (14+i, c & 0xffffffff, 14+i, 14+i, 14+i, sT3, 14+i))
        if i == 2: a("v_lshrrev_b32 v8, 4, v8\nv_mul_u32_u24 v8, 46080, v8\nv_sub_u32 v16, v16, v8")
    srd(S_P, 38, 640*3840)
    a("s_branch L_pdone")
    a.label("L_phmode")
    a("s_mov_b32 s%d, %d" % (sIncP, 64*3072))
    a("s_mul_i32 s3, s%d, %d\ns_add_u32 s3, s3, s%d\ns_add_u32 s3, s3, 128" % (sT2, 32*3072, sT1))
    a("v_add_u32 v14, s3, v6\nv_add_u32 v15, 49152, v14\nv_add_u32 v16, 12288, v14\nv_add_u32 v17, 61440, v14\nv_mov_b32 v18, 0x%x" % OOB)
    a("s_lshl_b32 s3, s%d, 12\ns_add_u32 s%d, s3, %d" % (sT2, sLP, HQ_OFF + 8192))
    srd(S_P, 44, 640*3072)
    a.label("L_pdone")
    a("s_mul_i32 s%d, s%d, s%d" % (sP, sP, sIncP))
    issue(0, (6, 11)); nextstage()
    srd(S_WS, 56, WS_SIZE)
    a("s_getpc_b64 s[%d:%d]\nL_pc1:\ns_add_u32 s%d, s%d, L_table-L_pc1\ns_addc_u32 s%d, s%d, 0" % (sPC, sPC+1, sPC, sPC, sPC+1, sPC+1))
    a("v_lshlrev_b32 v1, 4, v0\ns_lshl_b32 s3, s%d, 10\nv_add_u32 v254, s3, v1\ns_lshl_b32 s3, s%d, 12\nv_add_u32 v5, s3, v254\nglobal_load_dwordx4 v[248:251], v5, s[%d:%d]" % (lw, sTY, sPC, sPC+1))
    a("s_mov_b32 s%d, %d\ns_mov_b32 s%d, 1\ns_branch L_kvi" % (sK2, SLOT, sK1))
    a.label("L_kvl")
    a("s_waitcnt vmcnt(10)\ns_barrier")
    a.label("L_kvi")
    issue(None); nextstage()
    a("s_add_u32 s%d, s%d, %d\ns_cmp_eq_u32 s%d, %d\ns_cselect_b32 s%d, 0, s%d\ns_add_u32 s%d, s%d, 1\ns_cmp_lt_u32 s%d, 9\ns_cbranch_scc1 L_kvl" % (sK2, sK2, SLOT, sK2, 3*SLOT, sK2, sK2, sK1, sK1, sK1))
    a("v_mov_b32 v6, %d\nds_read_b32 v6, v6" % TAGL)
    g2_setup(True)
    a("v_mov_b64 v[252:253], v[248:249]\nv_mad_u32_u24 v31, v251, s%d, v250" % sJJ)
    a("v_add_u32 v255, 4096, v254\nv_cmp_gt_u32 vcc, %d, v254\nv_mov_b32 v3, 0x%x\ns_mov_b64 s[%d:%d], vcc\nv_cndmask_b32 v255, v3, v255, vcc" % ((420 - 256) * 16, OOB, sEX, sEX+1))
    a("s_lshl_b32 s%d, s%d, 10\ns_lshl_b32 s3, s%d, 11\ns_add_u32 s%d, s%d, s3\ns_add_u32 s%d, s%d, 0x%x" % (sT1, lw, sRB, sT1, sT1, sT1, sT1, STAT_OFF - 1024))
    a("s_cmp_eq_u32 s%d, 3\ns_cselect_b32 s%d, 0x%x, s%d\ns_cselect_b32 s%d, -16, 0\ns_cselect_b32 s%d, -16, -1" % (lw, sT1, FWG, sT1, sT2, sT3))
    a("s_waitcnt lgkmcnt(0)\nv_readfirstlane_b32 s%d, v6\ns_waitcnt vmcnt(10)" % sTAG)
    bar(7)
    def csloads():
        for p in range(5): a("s_mov_b32 s3, 0x%x\nbuffer_load_dwordx4 %s, v31, %s, s3 offen sc1" % (CSP_OFF + p * CSP_STRIDE, R4(36 + 4*p), S(S_WS)))
    a("s_cmp_eq_u32 s%d, 0\ns_cbranch_scc1 L_ck0\nbuffer_load_dwordx4 v[24:27], v1, %s, s%d offen sc1\ns_branch L_ck1" % (lw, S(S_WS), sT1))
    a.label("L_ck0"); csloads(); a.label("L_ck1")
    issue(0, filler=["\n".join("s_lshr_b32 s%d, s%d, %d" % (TB[k], sTAG, 8*k) for k in range(4)),
          "v_mov_b64 v[4:5], 0\nv_mov_b64 v[6:7], 0\nv_add_u32 v8, %d, v254\nv_add_u32 v9, %d, v1" % (IMG, IMG + 8192),
          "ds_write_b128 v8, v[4:7]\nds_write_b128 v8, v[4:7] offset:4096\nds_write_b128 v9, v[4:7]"])
    a("s_mov_b32 s%d, %d\ns_waitcnt vmcnt(10)\ns_cmp_eq_u32 s%d, 0\ns_cbranch_scc1 L_cchk" % (sSpin, SPIN, lw))
    a.label("L_chk")
    for k in range(4): a("v_xor_b32 v%d, s%d, v%d" % (32 + k, sTAG, 24 + k))
    a("v_or_b32 v3, v32, v34\nv_or_b32 v4, v33, v35\nv_and_b32 v3, s%d, v3\nv_and_b32 v4, s%d, v4\nv_or_b32 v3, v3, v4\nv_cmp_ne_u32 vcc, 0, v3\ns_cbranch_vccz L_chkw" % (sT2, sT3))
    a("s_sleep 32\nbuffer_load_dwordx4 v[24:27], v1, %s, s%d offen sc1\ns_waitcnt vmcnt(0)\ns_sub_u32 s%d, s%d, 1\ns_cbranch_scc0 L_chk" % (S(S_WS), sT1, sSpin, sSpin))
    a.label("L_chkw")
    a("s_cmp_eq_u32 s%d, 3\ns_cbranch_scc1 L_chk3" % lw)
    a("s_lshl_b32 s3, s%d, 8\ns_add_u32 s3, s3, %d\nv_lshl_add_u32 v3, v0, 2, s3\nds_write2st64_b32 v3, v24, v26 offset0:0 offset1:2\ns_branch L_chkok" % (lw, STATL - 256))
    a.label("L_chk3")
    a("s_getreg_b32 s3, hwreg(HW_REG_XCC_ID, 0, 4)\nv_xor_b32 v3, s3, v32")
    for k in range(1, 4): a("v_bitop3_b32 v3, v3, v%d, s3 bitop3:0xf6" % (32 + k))
    a("v_cmp_ne_u32 vcc, 0, v3\ns_and_b32 s3, s2, 7\ns_lshl_b32 s3, s3, 3\ns_lshr_b64 vcc, vcc, s3\ns_and_b32 s3, vcc_lo, 0xff\ns_cselect_b32 s3, 0, 1")
    a("v_mov_b32 v3, %d\nv_mov_b32 v4, s3\nds_write_b32 v3, v4\ns_branch L_chkok" % FASTL)
    a.label("L_cchk")
    tagchk(3, list(range(36, 56)))
    a("s_cbranch_vccz L_cchkok\ns_sleep 32")
    csloads()
    a("s_waitcnt vmcnt(0)\ns_sub_u32 s%d, s%d, 1\ns_cbranch_scc0 L_cchk" % (sSpin, sSpin))
    a.label("L_cchkok")
    for p in range(1, 5): a("v_pk_add_f32 v[36:37], v[36:37], %s\nv_pk_add_f32 v[38:39], v[38:39], %s" % (R2(36 + 4*p), R2(38 + 4*p)))
    a("v_add_u32 v3, %d, v1\nds_write_b128 v3, v[36:39]" % CSL)
    a.label("L_chkok")
    a("s_waitcnt lgkmcnt(0)")
    bar(8)
    n1 = OPT["n1"]
    a("v_mov_b32 v6, %d\nds_read_b32 v6, v6" % FASTL)
    for s in range(n1): loadB(s, True)
    a("s_waitcnt vmcnt(%d)" % (5 * n1))
    bar(9)
    stamp(4)
    nb = min(5, n1 + 2)
    for s in range(n1, nb): loadB(s, True)
    a("s_mul_i32 s%d, s%d, %d\ns_add_u32 s%d, s%d, 0x%x\ns_waitcnt lgkmcnt(0)\nv_readfirstlane_b32 s%d, v6" % (sH, sJJ, KVP_STRIDE, sH, sH, RED_OFF, sFAST))
    stamp(5)
    a("s_barrier")
    stamp(6)
    for s in range(nb, 5): loadB(s, True)
    for s in range(6): dmaB(s)
    a("s_lshl_b32 s%d, s%d, 9\ns_add_u32 s%d, s%d, 0x%x\ns_lshl_b32 s3, s%d, 2\ns_add_u32 s%d, s%d, s3\ns_lshl_b32 s3, s%d, 2\ns_add_u32 s%d, s%d, s3" % (sORD+1, sRT, sORD+1, sORD+1, FH, sK0, sORD, sORD+1, sK1, sORD+1, sORD+1))
    for k in range(4): step_off(4 + k, True, (sAo0, sAo1, sAo2), 4096, sLA + k)
    paddr(249, 250, 251)
    a("s_mul_i32 s3, s%d, 10240\ns_add_u32 s3, s3, %d\nv_add_u32 v250, s3, v249\ns_mul_i32 s3, s%d, %d\ns_add_u32 s3, s3, 20480\nv_add_u32 v249, s3, v249" % (sM, 4*EBS, sM, EBS))
    a("s_cmp_lg_u32 s%d, 0\ns_cbranch_scc1 L_lq1" % sTY)
    a("s_lshl_b32 s%d, s%d, 4\ns_mul_i32 s%d, s%d, %d\ns_add_u32 s%d, s%d, 0x%x\ns_mul_i32 s3, s%d, %d\ns_add_u32 s%d, s%d, s3\nv_mov_b32 v3, 0xff" % (sT2, sJJ, sT2, sT2, KVP_STRIDE, sT2, sT2, KVP_OFF, sRB, KVP_STRIDE, sT1, sT2))
    a("s_lshl_b32 s%d, s%d, 2\ns_add_u32 s%d, s%d, s%d\ns_lshl_b32 s3, s%d, 7\ns_add_u32 s%d, s%d, s3\ns_add_u32 s%d, s%d, s3\ns_add_u32 s%d, s%d, %d" % (sA, sRB, sA, sA, lw, sA, sT2, sT2, sH, sH, sT3, sT2, 8*KVP_STRIDE))
    a("s_cmp_eq_u32 s%d, 52\ns_cselect_b32 s3, 3, 7\nv_and_b32 v21, s3, v0\nv_lshlrev_b32 v21, 4, v21\nv_lshrrev_b32 v20, 3, v0\nv_mul_u32_u24 v20, %d, v20\nv_add_u32 v20, v20, v21" % (sA, KVP_STRIDE))
    stamp(1, 1)
    a("s_setprio 2")
    lds_wait(LF_XK, None, 4, 4)
    stamp(7); stamp(3, 1)
    a("ds_read_b128 v[4:7], v252\nds_read_b128 v[8:11], v252 offset:16384\nds_read_b128 v[12:15], v253\nds_read_b128 v[16:19], v253 offset:16384")
    a("s_waitcnt lgkmcnt(2)\nv_pk_add_f32 v[4:5], v[4:5], v[8:9]\nv_pk_add_f32 v[6:7], v[6:7], v[10:11]")
    for k in range(4): a("v_bfi_b32 v%d, v3, s%d, v%d" % (4 + k, TB[k], 4 + k))
    a("buffer_store_dwordx4 v[4:7], v254, %s, s%d offen sc1" % (S(S_WS), sT1))
    a("s_waitcnt lgkmcnt(0)\nv_pk_add_f32 v[12:13], v[12:13], v[16:17]\nv_pk_add_f32 v[14:15], v[14:15], v[18:19]")
    for k in range(4): a("v_bfi_b32 v%d, v3, s%d, v%d" % (12 + k, TB[k], 12 + k))
    a("buffer_store_dwordx4 v[12:15], v255, %s, s%d offen sc1\ns_waitcnt vmcnt(2)" % (S(S_WS), sT1))
    lds_signal(LF_B, lw, 22)
    stamp(4, 1)
    a("s_cmp_gt_u32 s%d, 52\ns_cbranch_scc1 L_nored\ns_mov_b32 s%d, %d\ns_waitcnt vmcnt(0)" % (sA, sSpin, SPIN))
    a.label("L_red")
    a("buffer_load_dwordx4 v[4:7], v20, %s, s%d offen sc1\nbuffer_load_dwordx4 v[8:11], v20, %s, s%d offen sc1\ns_waitcnt vmcnt(0)" % (S(S_WS), sT2, S(S_WS), sT3))
    tagchk(12, list(range(4, 12)))
    a("s_cbranch_vccz L_redok\ns_sleep 1\ns_sub_u32 s%d, s%d, 1\ns_cbranch_scc0 L_red" % (sSpin, sSpin))
    a.label("L_redok")
    stamp(5, 1)
    a("v_pk_add_f32 v[4:5], v[4:5], v[8:9]\nv_pk_add_f32 v[6:7], v[6:7], v[10:11]\ns_nop 1")
    for k in range(4): a("v_add_f32_dpp v%d, v%d, v%d row_ror:8 row_mask:0xf bank_mask:0xf" % (4 + k, 4 + k, 4 + k))
    for op in ("v_permlane16_swap_b32", "v_permlane32_swap_b32"):
        a("v_mov_b64 v[8:9], v[4:5]\nv_mov_b64 v[10:11], v[6:7]\ns_nop 1")
        for k in range(4): a("%s v%d, v%d" % (op, 4 + k, 8 + k))
        a("s_nop 0\nv_pk_add_f32 v[4:5], v[4:5], v[8:9]\nv_pk_add_f32 v[6:7], v[6:7], v[10:11]")
    for k in range(4): a("v_bfi_b32 v%d, v3, s%d, v%d" % (4 + k, TB[k], 4 + k))
    a("s_mov_b64 exec, 0xff\nbuffer_store_dwordx4 v[4:7], v21, %s, s%d offen sc1\ns_mov_b64 exec, -1" % (S(S_WS), sH))
    a.label("L_nored")
    a("s_setprio 0\ns_branch L_la")
    a.label("L_lq1")
    a("s_lshr_b32 s%d, s%d, 1\ns_and_b32 s%d, s%d, 1" % (sA, lw, sP, lw))
    a2_soff(sT2, sA, lambda: a("s_lshl_b32 s3, s%d, 1\ns_add_u32 s3, s3, s%d\ns_add_u32 s3, s3, 48" % (sJJ, sP)))
    a2_soff(sT3, sA, lambda: a("s_lshr_b32 s3, s%d, 1\ns_add_u32 s3, s3, 64" % sJJ))
    a("s_lshl_b32 s3, s%d, 1\ns_add_u32 s3, s3, s%d\ns_and_b32 s3, s3, 3\ns_lshl_b32 s3, s3, 8\ns_add_u32 s%d, s%d, s3" % (sJJ, sP, sT3, sT3))
    a("v_cndmask_b32 v255, v254, v255, s[%d:%d]" % (sEX, sEX+1))
    stamp(1, 1)
    a("s_waitcnt vmcnt(0)")
    lds_signal(LF_B, lw, 22)
    a.label("L_la")
    stamp(8); stamp(6, 1)
    g2_flagoff(3, KS_L)
    poll(3, sORD, 4, 248, "hl")
    stamp(9); stamp(7, 1); stamp(1, 2)
    for s in range(4): loadA(s, True)
    for s in range(4):
        a("s_waitcnt vmcnt(%d)" % (12 - 4*s))
        g2_step(s, True)
    stamp(8, 1)
    a("s_cmp_eq_u32 s%d, 0\ns_cbranch_scc1 L_lo" % sTY)
    PQ = 224; W32 = 84; W16 = 98; O = 108; AD = 156
    a("s_setprio 2")
    a("buffer_load_dwordx4 v[184:187], v254, %s, s%d offen sc1\nbuffer_load_dwordx4 v[188:191], v255, %s, s%d offen sc1" % (S(S_WS), sH, S(S_WS), sH))
    a("v_and_b32 v194, 15, v0\nv_lshrrev_b32 v193, 4, v0\ns_mul_i32 s3, s%d, 4608\ns_add_u32 s3, s3, %d" % (sP, IMG))
    a("v_lshl_add_u32 v195, v194, 2, v193\nv_lshl_add_u32 v%d, v195, 3, s3\nv_lshl_add_u32 v%d, v195, 4, s3" % (AD+1, AD))
    a("v_and_b32 v196, 3, v194\nv_min_u32 v196, 1, v196\nv_cmp_eq_u32 vcc, 2, v194\nv_lshlrev_b32 v194, 4, v194\nv_lshl_add_u32 v%d, v193, 3, v194\nv_cndmask_b32 v196, v196, 0, vcc" % (AD+4))
    a("v_add_u32 v196, 40, v196\nv_lshl_add_u32 v196, v196, 2, v193\nv_lshl_add_u32 v%d, v196, 3, s3\nv_lshl_add_u32 v%d, v196, 4, s3\nv_mov_b32 v%d, 0x358637bd" % (AD+3, AD+2, AD+5))
    lds_wait(LF_PQ, lw, 1, 198)
    a("s_mul_i32 s3, s%d, 6144\ns_add_u32 s3, s3, %d\nv_add_u32 v198, s3, v1\nv_lshl_add_u32 v199, v0, 3, s3" % (lw, PQL))
    for i in range(4): a("ds_read_b128 %s, v198 offset:%d\nds_read_b64 %s, v199 offset:%d" % (R4(PQ + 6*i), 1024*i, R2(PQ + 6*i + 4), 4096 + 512*i))
    a("s_mov_b32 s%d, %d" % (sSpin, SPIN))
    a.label("L_gather")
    a("s_waitcnt vmcnt(0)")
    tagchk(192, list(range(184, 192)))
    a("s_cbranch_vccz L_gatherok\ns_sleep %d" % OPT["slp"])
    a("buffer_load_dwordx4 v[184:187], v254, %s, s%d offen sc1\nbuffer_load_dwordx4 v[188:191], v255, %s, s%d offen sc1" % (S(S_WS), sH, S(S_WS), sH))
    a("s_sub_u32 s%d, s%d, 1\ns_cbranch_scc0 L_gather\ns_waitcnt vmcnt(0)" % (sSpin, sSpin))
    a.label("L_gatherok")
    stamp(7); stamp(2, 1)
    for k in range(4): a("v_cvt_pk_bf16_f32 v%d, v%d, v%d" % (184 + k, 184 + 2*k, 185 + 2*k))
    a("ds_write_b64 v252, v[184:185]\nds_write_b64 v253, v[186:187]\ns_waitcnt lgkmcnt(0)")
    lds_signal(LF_IMG, None, 200)
    lds_wait(LF_IMG, None, 4, 200, 0)
    stamp(3, 1)
    for to in range(3): a("ds_read_b128 %s, v%d offset:%d" % (R4(W32 + 4*to), AD, 1024*to))
    a("ds_read_b128 %s, v%d" % (R4(W32 + 12), AD+2))
    for to in range(1, 3): a("ds_read_b64 %s, v%d offset:%d" % (R2(W16 + 2*to), AD+1, 3072 + 512*to))
    a("ds_read_b64 %s, v%d offset:3072\ns_waitcnt lgkmcnt(0)" % (R2(W16 + 6), AD+3))
    def Oreg(i, to): return (O + 16*i if i < 3 else 184) + 4*to
    for i in range(4):
        for to in range(4): a("v_mfma_f32_16x16x32_bf16 %s, %s, %s, 0" % (R4(Oreg(i, to)), R4(W32 + 4*to), R4(PQ + 6*i)))
    for i in range(4):
        for to in (3, 1, 2): a("v_mfma_f32_16x16x16_bf16 %s, %s, %s, %s" % (R4(Oreg(i, to)), R2(W16 + 2*to), R2(PQ + 6*i + 4), R4(Oreg(i, to))))
    for i in range(4):
        d = Oreg(i, 3)
        for j in range(3): a("v_add_f32 v%d, v%d, v%d" % (d + j, d + j, AD+5))
        for j in range(3): a("v_rcp_f32 v%d, v%d" % (d + j, d + j))
    for i in range(4):
        d = Oreg(i, 3)
        for to, sel in ((0, 0), (1, 2), (2, 1)):
            for q in range(2):
                x = Oreg(i, to) + 2*q
                a("v_pk_mul_f32 %s, %s, %s op_sel:[0,%d] op_sel_hi:[1,%d]" % (R2(x), R2(x), R2(d + (sel & 2)), sel & 1, sel & 1))
        for k in range(6): a("v_cvt_pk_bf16_f32 v%d, v%d, v%d" % (PQ + 6*i + k, Oreg(i, 0) + 2*k, Oreg(i, 0) + 2*k + 1))
        st_a2("buffer_store_dwordx4 %s, v1, %s, s%d offen offset:%d" % (R4(PQ + 6*i), S(S_WS), sT2, 1024*i))
    a("s_mov_b32 exec_hi, 0")
    st_a2(["buffer_store_dwordx2 %s, v%d, %s, s%d offen offset:%d" % (R2(PQ + 6*i + 4), AD+4, S(S_WS), sT3, 1024*i) for i in range(4)])
    a("s_mov_b64 exec, -1")
    stamp(4, 1)
    ks_flag(sT2, sA, 0, 200)
    stamp(5, 1)
    a("s_setprio 0")
    a.label("L_lo")
    for s in range(5, 9): loadB(s, True)
    a("v_lshlrev_b32 v3, 2, v0")
    AO = [184, 204, 224, 184]
    stamp(9, 1)
    poll(3, sORD + 1, 4, 248, "o")
    stamp(10); stamp(10, 1); stamp(6, 2)
    so = [sLA, sLA + 1, sLA + 2, sLA + 3, sAo2]
    def ldo(i):
        for s in range(5): a("buffer_load_dwordx4 %s, v1, %s, s%d offen offset:%d sc1" % (R4(AO[i] + 4*s), S(S_WS), so[s], 1024*i))
    ldo(0); ldo(1); ldo(2)
    pend = []
    for i in range(4):
        k = 0
        stamp(7 + i, 2)
        for s in range(5):
            later = {0: 10, 1: 10, 2: 5, 3: 0}[i]
            a("s_waitcnt vmcnt(%d)" % (later + 4 - s))
            for t in range(5):
                g2_mfma(G_ACC + (i*5 + t) * 4, Breg(4 + s, True) + 4*t, AO[i] + 4*s, False)
                k += 1
                if pend and k >= 4: a(pend.pop(0))
            if i > 0 and s == 2: a("s_waitcnt lgkmcnt(0)\ns_barrier")
        if i == 0:
            ldo(3)
            a("s_barrier")
        pend = ["ds_write_b128 v%d, %s offset:%d" % (249 + (i >> 1), R4(G_ACC + (i*5 + t)*4), 5120*(i & 1) + 64*t) for t in range(5)]
    a("s_nop 3")
    for x in pend: a(x)
    stamp(11); stamp(11, 1); stamp(11, 2)
    a("s_waitcnt lgkmcnt(0)\ns_barrier")
    stamp(12)
    a("s_branch L_alldone")

ACC = 8; F0 = 120; F1 = 164
vA0, vA1, vS, vS2, vH = 208, 209, 210, 211, 212
vB1 = 216
def acc(i, t): return ACC + (i * 7 + t) * 4

def compute_prologue():
    sQ, sU, sUe, sJ0, sJ1, sJ2, sCd = sLA, sLP, sH, sLP4, sLH, sA, sP
    a("s_lshr_b32 s%d, s%d, 1\ns_and_b32 s%d, s%d, 1" % (sM, sWV, sN, sWV))
    a("s_lshl_b32 s3, s%d, 3\ns_add_u32 s3, s3, s%d\ns_lshl_b32 s3, s3, 2\ns_add_u32 s3, s3, s%d\ns_lshl_b32 s3, s3, 1\ns_lshl_b32 s%d, s%d, 7\ns_add_u32 s3, s3, s%d" % (sTY, sJJ, sWV, sT1, sRB, sT1))
    a("s_mul_i32 s%d, s3, 1280\ns_lshl_b32 s%d, s3, 4\ns_add_u32 s%d, s%d, 0x%x" % (sT1, sT2, sT2, sT2, STAT_OFF))
    a("v_lshrrev_b32 v5, 5, v0\nv_and_b32 v6, 31, v0\nv_mul_u32_u24 v7, 1280, v5\nv_lshl_add_u32 v224, v6, 4, v7\nv_lshl_add_u32 v225, v6, 3, v7")
    a("s_lshl_b32 s%d, s%d, 7\ns_lshl_b32 s3, s%d, 3\ns_add_u32 s%d, s%d, s3\ns_add_u32 s%d, s%d, s%d" % (sQ, sWV, sRB, sQ, sQ, sQ, sQ, sJJ))
    a("s_sub_u32 s%d, s%d, 270\ns_mul_i32 s%d, s%d, %d\ns_add_u32 s%d, s%d, %d\ns_min_u32 s%d, s%d, %d" % (sU, sQ, sU, sU, QPER, sUe, sU, QPER, sUe, sUe, NQU))
    a("s_add_u32 s3, s%d, %d\ns_add_u32 s%d, s3, 1\ns_min_u32 s%d, s%d, 680\ns_cmp_eq_u32 s%d, 0\ns_cselect_b32 s%d, s3, s%d\ns_cselect_b32 s%d, s%d, s%d\ns_cselect_b32 s%d, 0x7fff, s%d" % (sQ, NQU, sK0, sK0, sK0, sTY, sU, sU, sUe, sK0, sUe, sQ, sQ))
    a("v_lshrrev_b32 v2, 3, v0\nv_and_b32 v4, 7, v0\nv_and_b32 v7, 6, v2\nv_xor_b32 v7, v4, v7\nv_lshlrev_b32 v4, 4, v7\nv_and_b32 v6, 3, v2")
    a("s_lshl_b32 s3, s%d, 14\ns_add_u32 m0, s3, %d\ns_mov_b32 s%d, 0x20000\ns_mov_b32 s%d, s%d" % (sWV, JOBL, S_J+3, sK0, sU))
    a("s_mov_b32 s%d, 0x%x\ns_mov_b32 s%d, 0x20000\ns_waitcnt lgkmcnt(0)\ns_mov_b32 s%d, s36\ns_mov_b32 s%d, s37" % (S_X+2, 2048*1280, S_X+3, S_X, S_X+1))
    XL = 124; U = 136
    a("buffer_load_dwordx4 %s, v224, %s, s%d offen\nbuffer_load_dwordx4 %s, v224, %s, s%d offen offset:512\nbuffer_load_dwordx2 %s, v225, %s, s%d offen offset:1024" % (R4(XL), S(S_X), sT1, R4(XL+4), S(S_X), sT1, R2(XL+8), S(S_X), sT1))
    a("s_add_u32 s%d, s56, 0x%x\ns_addc_u32 s%d, s57, 0\ns_load_dword s%d, s[%d:%d], 0" % (sEX, EPOCH, sEX+1, sTAG, sEX, sEX+1))
    a("s_cmp_lt_u32 s%d, 270\ns_cbranch_scc1 L_jcs" % sQ)
    a.label("L_jrl")
    a("s_cmp_ge_u32 s%d, s%d\ns_cbranch_scc1 L_nojob1" % (sK0, sUe))
    a("s_mul_i32 s3, s%d, 6554\ns_lshr_b32 s%d, s3, 16\ns_mul_i32 s3, s%d, 10\ns_sub_u32 s%d, s%d, s3" % (sK0, sK1, sK1, sT3, sK0))
    a("s_cmp_lt_u32 s%d, 48\ns_cselect_b32 s%d, s48, s40\ns_cselect_b32 s%d, s49, s41\ns_mov_b32 s%d, %d\ns_cselect_b32 s%d, %d, s%d" % (sK1, S_J, S_J+1, S_J+2, 640*1280, S_J+2, 1536*1280, S_J+2))
    a("s_lshl_b32 s%d, s%d, 5\ns_mul_i32 s3, s%d, 40\ns_sub_u32 s3, s3, %d\ns_cmp_lt_u32 s%d, 48\ns_cselect_b32 s%d, s%d, s3" % (sJ0, sK1, sK1, 48*40, sK1, sJ0, sJ0))
    a("s_mul_i32 s3, s%d, 160\ns_sub_u32 s3, s3, %d\ns_cmp_lt_u32 s%d, 64\ns_cselect_b32 s%d, s%d, s3\ns_cselect_b32 s%d, 4, 40\ns_cselect_b32 s%d, 16, 4" % (sK1, 64*160 - 32, sK1, sJ0, sJ0, sJ1, sJ2))
    a("v_mad_u32_u24 v7, s%d, v5, v6\nv_mul_u32_u24 v7, 1280, v7\nv_add_u32 v3, v4, v7" % sJ1)
    a("s_mul_i32 s%d, s%d, 1280\ns_lshl_b32 s3, s%d, 7\ns_add_u32 s%d, s%d, s3\ns_mul_i32 s%d, s%d, 2560\ns_mul_i32 s%d, s%d, 1280" % (sJ0, sJ0, sT3, sJ0, sJ0, sJ1, sJ1, sJ2, sJ2))
    a("s_add_u32 s3, s%d, s%d\nbuffer_load_dwordx4 v3, %s, s%d offen lds" % (sJ0, sJ1, S(S_J), sJ0))
    a("s_add_u32 m0, m0, 0x400\ns_add_u32 s%d, s%d, s%d\nbuffer_load_dwordx4 v3, %s, s3 offen lds" % (sJ0, sJ0, sJ2, S(S_J)))
    a("s_add_u32 m0, m0, 0x400\ns_add_u32 s3, s%d, s%d\nbuffer_load_dwordx4 v3, %s, s%d offen lds" % (sJ0, sJ1, S(S_J), sJ0))
    a("s_add_u32 m0, m0, 0x400\ns_add_u32 s%d, s%d, 1\nbuffer_load_dwordx4 v3, %s, s3 offen lds" % (sK0, sK0, S(S_J)))
    a("s_add_u32 m0, m0, 0x400\ns_branch L_jrl")
    mark = len(a.lines)
    a.label("L_jcs")
    a("s_mul_i32 s3, s%d, 1214\ns_lshr_b32 s%d, s3, 16\ns_mul_i32 s3, s%d, 54\ns_sub_u32 s%d, s%d, s3" % (sQ, sK1, sK1, sT3, sQ))
    a("s_mul_i32 s%d, s%d, %d\ns_lshl_b32 s3, s%d, 8\ns_add_u32 s%d, s%d, s3\ns_add_u32 s%d, s%d, 0x%x" % (sCd, sK1, CSP_STRIDE, sT3, sCd, sCd, sCd, sCd, CSP_OFF))
    a("s_cmp_lt_u32 s%d, 30\ns_cselect_b32 s%d, s38, s44\ns_cselect_b32 s%d, s39, s45\ns_mov_b32 s%d, %d\ns_cselect_b32 s%d, %d, s%d" % (sT3, S_J, S_J+1, S_J+2, 640*3072, S_J+2, 640*3840, S_J+2))
    a("s_movk_i32 s%d, 3072\ns_cselect_b32 s%d, 3840, s%d\ns_cselect_b32 s3, 0, 30\ns_sub_u32 s%d, s%d, s3" % (sJ1, sJ1, sJ1, sT3, sT3))
    a("v_mad_u32_u24 v3, s%d, v2, v4" % sJ1)
    a("s_lshl_b32 s%d, s%d, 7\ns_mul_i32 s%d, s%d, s%d\ns_lshl_b32 s3, s%d, 7\ns_add_u32 s%d, s%d, s3\ns_lshl_b32 s%d, s%d, 3" % (sJ0, sK1, sJ0, sJ0, sJ1, sT3, sJ0, sJ0, sJ1, sJ1))
    for p in range(16): a("buffer_load_dwordx4 v3, %s, s%d offen lds\ns_add_u32 m0, m0, 0x400\ns_add_u32 s%d, s%d, s%d" % (S(S_J), sJ0, sJ0, sJ0, sJ1))
    a("s_branch L_nojob1")
    JCS1 = a.lines[mark:]; del a.lines[mark:]
    a.label("L_nojob1")
    srd(S_B1, 46, 3072); srd(S_WS, 56, WS_SIZE); srd(S_OUT, 52, 2048*1280); srd(S_B2, 50, 1280)
    a("v_and_b32 v2, 15, v0\nv_lshrrev_b32 v3, 4, v0\nv_lshrrev_b32 v4, 1, v2\nv_xor_b32 v4, v4, v3\nv_lshlrev_b32 v4, 4, v4\nv_lshl_add_u32 v4, v2, 7, v4\nv_lshlrev_b32 v1, 3, v3")
    a("s_lshl_b32 s3, s%d, 13\nv_add_u32 v%d, s3, v4\nv_xor_b32 v%d, 64, v%d" % (sM, vA0, vA1, vA0))
    a("v_lshlrev_b32 v226, 2, v2\nv_add_u32 v226, %d, v226" % LFLAG)
    a("v_lshrrev_b32 v2, 2, v0\nv_and_b32 v3, 3, v0\nv_mul_u32_u24 v4, 160, v2\ns_mul_i32 s3, s%d, 80\nv_add_u32 v4, s3, v4\nv_lshl_add_u32 v%d, v3, 3, v4" % (sN, vS))
    a("v_and_b32 v5, 1, v3\nv_lshl_add_u32 v4, v5, 3, v4\nv_add_u32 v4, %d, v4" % (K_OFF + 64))
    a("s_cmp_eq_u32 s%d, 0\ns_cselect_b32 s3, %d, 0\nv_lshrrev_b32 v5, 1, v3\nv_mad_u32_u24 v%d, v5, s3, v4" % (sTY, V_OFF - K_OFF - 64, vS2))
    a("v_lshlrev_b32 v4, 7, v2\nv_lshl_add_u32 v4, v3, 3, v4\nv_bfe_u32 v5, v0, 3, 2\nv_lshl_add_u32 v4, v5, 5, v4")
    a("s_lshl_b32 s3, s%d, 14\ns_add_u32 s3, s3, %d\nv_add_u32 v228, s3, v4\nv_xor_b32 v229, 32, v228\nv_xor_b32 v230, 64, v228\nv_xor_b32 v231, 0x60, v228" % (sWV, JOBL))
    a("s_lshl_b32 s3, s%d, 6\ns_cmp_eq_u32 s%d, 0\ns_cselect_b32 s3, s3, 0\nv_xor_b32 v4, s3, v4" % (sN, sTY))
    a("s_lshl_b32 s3, s%d, 13\ns_add_u32 s3, s3, %d\ns_cmp_eq_u32 s%d, 0\ns_cselect_b32 s3, %d, s3" % (sN, HQ_OFF, sTY, HKV_OFF))
    for t in range(4): a("v_xor_b32 v5, %d, v4\nv_add_u32 v%d, s3, v5" % (32*t, vH + t))
    a("s_lshl_b32 s3, s%d, 6\ns_lshl_b32 s3, s3, s%d\ns_lshl_b32 s%d, s%d, 7\ns_add_u32 s3, s3, s%d\ns_mul_i32 s%d, s%d, 384\ns_add_u32 s%d, s3, s%d" % (sN, sTY, sIncP, sTY, sIncP, sIncP, sJJ, sIncP, sIncP))
    for r in range(ACC, ACC + 112, 2): a("v_mov_b64 %s, 0" % R2(r))
    a("s_waitcnt lgkmcnt(0)\ns_and_b32 s3, s%d, 0x7f7f7f7f\ns_add_u32 s3, s3, 0x35251513\ns_and_b32 s%d, s%d, 0x80808080\ns_xor_b32 s%d, s%d, s3" % (sTAG, sTAG, sTAG, sTAG, sTAG))
    a("v_mov_b32 v6, 0\nv_mov_b32 v7, s%d\nds_write2_b32 v226, v6, v7 offset0:0 offset1:16" % sTAG)
    a("s_getreg_b32 s3, hwreg(HW_REG_XCC_ID, 0, 4)\ns_xor_b32 s%d, s3, s%d\ns_and_b32 s3, s2, 7\ns_lshl_b32 s3, s3, 5\ns_lshr_b32 s%d, s2, 3\ns_add_u32 s%d, s%d, s3\ns_lshl_b32 s%d, s%d, 2\ns_add_u32 s%d, s%d, 0x%x" % (sK1, sTAG, sK2, sK2, sK2, sK2, sK2, sK2, sK2, FWG))
    stamp(1)
    def allreduce32(v, t):
        for ctl in ("quad_perm:[1,0,3,2]", "quad_perm:[2,3,0,1]", "row_half_mirror", "row_mirror"):
            a("s_nop 1\nv_add_f32_dpp v%d, v%d, v%d %s row_mask:0xf bank_mask:0xf" % (v, v, v, ctl))
        a("v_mov_b32 v%d, v%d\ns_nop 1\nv_permlane16_swap_b32 v%d, v%d\ns_nop 1\nv_add_f32 v%d, v%d, v%d" % (t, v, v, t, v, v, t))
    a("s_cmp_lt_u32 s%d, 270\ns_cbranch_scc1 L_w4\ns_cmp_lt_u32 s%d, s%d\ns_cbranch_scc1 L_w4\ns_waitcnt vmcnt(0)" % (sQ, sU, sUe))
    a.label("L_w4"); a("s_waitcnt vmcnt(4)")
    for i in range(10): unpack(U + 2*i, XL + i)
    a("v_pk_add_f32 v[2:3], %s, %s\nv_pk_add_f32 v[4:5], %s, %s" % (R2(U), R2(U + 2), R2(U + 4), R2(U + 6)))
    for i in range(4, 10): a("v_pk_add_f32 %s, %s, %s" % (R2(2 + 2*(i & 1)), R2(2 + 2*(i & 1)), R2(U + 2*i)))
    a("v_pk_add_f32 v[2:3], v[2:3], v[4:5]\nv_add_f32 v2, v2, v3")
    allreduce32(2, 3)
    a("v_mul_f32 v2, 0x3acccccd, v2")
    for i in range(10): a("v_pk_add_f32 %s, %s, v[2:3] op_sel_hi:[1,0] neg_lo:[0,1] neg_hi:[0,1]" % (R2(U + 2*i), R2(U + 2*i)))
    a("v_pk_mul_f32 v[4:5], %s, %s\nv_pk_mul_f32 v[6:7], %s, %s" % (R2(U), R2(U), R2(U + 2), R2(U + 2)))
    for i in range(2, 10): a("v_pk_fma_f32 %s, %s, %s, %s" % (R2(4 + 2*(i & 1)), R2(U + 2*i), R2(U + 2*i), R2(4 + 2*(i & 1))))
    a("v_pk_add_f32 v[4:5], v[4:5], v[6:7]\nv_add_f32 v4, v4, v5")
    allreduce32(4, 5)
    a("v_mul_f32 v4, 0x3acccccd, v4")
    bf16_round(4); a("v_add_f32 v4, 0x3727c5ac, v4"); bf16_round(4)
    a("v_sqrt_f32 v4, v4\ns_nop 0"); bf16_round(4); bf16_round(2)
    a("v_rcp_f32 v232, v4\nv_mov_b32 v233, s%d\nv_mov_b32 v235, s%d\nv_mul_f32 v234, v232, v2\nv_lshrrev_b32 v5, 1, v0" % (sTAG, sTAG))
    a("s_mov_b32 exec_lo, 1\ns_mov_b32 exec_hi, 1\nbuffer_store_dwordx4 v[232:235], v5, %s, s%d offen sc1\ns_mov_b64 exec, -1" % (S(S_WS), sT2))
    stamp(2)
    FR = 120; SEL = 184; CA = 200
    def trr(r):
        for t in range(4): a("ds_read_b64_tr_b16 %s, v%d offset:%d\nds_read_b64_tr_b16 %s, v%d offset:%d" % (R2(FR + 16*r + 4*t), 228 + t, 4096*r, R2(FR + 16*r + 2 + 4*t), 228 + t, 4096*r + 2048))
    a("s_cmp_lt_u32 s%d, 270\ns_cbranch_scc1 L_jcs2" % sQ)
    a("v_lshlrev_b32 v6, 4, v0\ns_waitcnt vmcnt(1)")
    for r in range(QPER):
        a("s_cmp_ge_u32 s%d, s%d\ns_cbranch_scc1 L_nojob2" % (sU, sUe))
        trr(r)
        a("s_lshl_b32 s3, s%d, 12\ns_add_u32 s3, s3, 0x%x\ns_add_u32 s%d, s%d, 1\ns_waitcnt lgkmcnt(0)" % (sU, B2_OFF, sU, sU))
        for t in range(4): a("buffer_store_dwordx4 %s, v6, %s, s3 offen offset:%d sc1" % (R4(FR + 16*r + 4*t), S(S_WS), 1024*t))
    mark = len(a.lines)
    a.label("L_jcs2")
    a("v_and_b32 v6, 15, v0\nv_mov_b32 v7, 0x3f803f80\nv_and_b32 v236, 48, v0\nv_lshl_add_u32 v236, v6, 6, v236\nv_mov_b32 v237, 0xff")
    for t in range(4):
        a("v_cmp_eq_u32 vcc, %d, v6\ns_lshr_b32 s%d, s%d, %d\ns_nop 0\nv_cndmask_b32 v%d, 0, v7, vcc\nv_cndmask_b32 v%d, 0, v7, vcc\nv_mov_b64 %s, %s" % (t, TB[t], sTAG, 8*t, SEL + 4*t, SEL + 4*t + 1, R2(SEL + 4*t + 2), R2(SEL + 4*t)))
    a("s_waitcnt vmcnt(1)")
    for r in range(4): trr(r)
    for r in range(4):
        a("s_waitcnt lgkmcnt(%d)" % min(15, 24 - 8*r))
        for t in range(4): a("v_mfma_f32_16x16x32_bf16 %s, %s, %s, %s" % (R4(CA), R4(FR + 16*r + 4*t), R4(SEL + 4*t), "0" if r + t == 0 else R4(CA)))
    a("s_nop 7")
    for k in range(4): a("v_bfi_b32 v%d, v237, s%d, v%d" % (240 + k, TB[k], CA + k))
    a("s_mov_b32 exec_lo, 0x000f000f\ns_mov_b32 exec_hi, 0x000f000f\nbuffer_store_dwordx4 v[240:243], v236, %s, s%d offen sc1\ns_mov_b64 exec, -1" % (S(S_WS), sCd))
    JCS2 = a.lines[mark:]; del a.lines[mark:]
    a.label("L_nojob2")
    return JCS1, JCS2

def frag_reads(ty, F, ks2):
    r = []
    for i in range(4): r.append("ds_read_b128 %s, v%d offset:%d" % (R4(F + 4*i), vA1 if ks2 else vA0, 2048*i))
    nseg = 5 if ty == 0 else 3
    for t in range(7):
        d = F + 16 + 4*t
        for rd in range(2):
            if t < nseg:
                if t == 2: reg, off = vS2, 0
                elif t < 2: reg, off = vS, K_OFF + 32*t
                else: reg, off = vS, V_OFF + 16 + 32*(t - 3)
                off += ks2 * 5120 + rd * 2560
            else: reg, off = vH + (t - nseg), ks2 * 4096 + rd * 2048
            r.append("ds_read_b64_tr_b16 %s, v%d offset:%d" % (R2(d + 2*rd), reg, off))
    return r
def transposed(ty, t): return ty == 1 or t >= 5
def mfmas(ty, F, order=None):
    r = []
    for (t, i) in (order or [(t, i) for t in range(7) for i in range(4)]):
        B = R4(F + 16 + 4*t); A = R4(F + 4*i); D = R4(acc(i, t))
        r.append("v_mfma_f32_16x16x32_bf16 %s, %s, %s, %s" % ((D, B, A, D) if transposed(ty, t) else (D, A, B, D)))
    return r
def interleave(mm, rr):
    for k, x in enumerate(mm):
        a(x)
        if k < len(rr): a(rr[k])
def addr_regs(ty): return [vA0, vA1, vS, vS2] + [vH + t for t in range(2 if ty == 0 else 4)]

CT = 120; RS = 148; BF = 156; KC = 172; TMP = 176; T2P = 208; R4S = 224

def epi_reads(ty):
    a("v_and_b32 v4, 15, v0\nv_lshlrev_b32 v4, 2, v4\ns_lshl_b32 s3, s%d, 8\ns_add_u32 s3, s3, %d\nv_add_u32 v5, s3, v4" % (sM, STATL))
    a("v_and_b32 v6, 48, v0\nv_add_u32 v3, s3, v6\ns_mul_i32 s3, s%d, 448\ns_add_u32 s3, s3, %d\nv_add_u32 v6, s3, v6\nv_add_u32 v4, s3, v4\nv_mov_b32 v7, %d" % (sN, CSL, FASTL))
    if ty == 0:
        for i in range(4): a("ds_read_b128 %s, v3 offset:%d\nds_read_b128 %s, v3 offset:%d" % (R4(R4S + 4*i), 64*i, R4(R4S + 16 + 4*i), 512 + 64*i))
    for t in range(7):
        if transposed(ty, t): a("ds_read_b128 %s, v6 offset:%d" % (R4(CT + 4*t), 64*t))
        else: a("ds_read_b32 v%d, v4 offset:%d" % (CT + 4*t, 64*t))
    for i in range(4): a("ds_read2_b32 %s, v5 offset0:%d offset1:%d" % (R2(RS + 2*i), 16*i, 128 + 16*i))
    a("ds_read_b32 v7, v7\nv_lshlrev_b32 v1, 4, v0")
    if ty == 0: a2_soff(sT2, sM, lambda: a("s_mul_i32 s3, s%d, 6\ns_add_u32 s3, s3, s%d" % (sJJ, sN)))
    else:
        a2_soff(sT2, sM, lambda: a("s_mul_i32 s3, s%d, 6\ns_lshl_b32 s%d, s%d, 1\ns_add_u32 s3, s3, s%d\ns_add_u32 s3, s3, 2" % (sJJ, sT1, sN, sT1)))
        a("s_add_u32 s%d, s%d, 4096" % (sT3, sT2))

def main_loop(ty):
    a("s_mov_b32 s%d, 0\ns_mov_b32 s%d, 0\ns_waitcnt lgkmcnt(0)" % (sCnt, sSlot))
    stamp(3)
    a("s_barrier")
    stamp(4)
    for x in frag_reads(ty, F0, 0): a(x)
    a("s_waitcnt lgkmcnt(0)\ns_branch L_mid%d" % ty)
    a.label("L_x%d" % ty)
    a("s_cmp_eq_u32 s%d, 2\ns_cbranch_scc1 L_x2%d\ns_waitcnt vmcnt(0)" % (sCnt, ty))
    for t in range(2 if ty == 0 else 4): a("buffer_load_dwordx2 %s, v1, %s, s%d offen offset:%d" % (R2(vB1 + 2*t), S(S_B1), sIncP, 32*t))
    a("s_branch L_back%d" % ty)
    a.label("L_x2%d" % ty)
    a("s_cmp_lg_u32 s%d, 0\ns_cbranch_scc1 L_back%d" % (sWV, ty))
    a("v_mov_b32 v2, s%d\nv_mov_b32 v3, 0\ns_mov_b64 exec, 1\nbuffer_store_dword v2, v3, %s, s%d offen sc1\ns_mov_b64 exec, -1\ns_branch L_back%d" % (sK1, S(S_WS), sK2, ty))
    align8()
    a.label("L_top%d" % ty)
    a("s_barrier\ns_sub_u32 s3, s%d, 1" % sCnt)
    interleave(mfmas(ty, F1), frag_reads(ty, F0, 0))
    a("s_waitcnt lgkmcnt(0)\ns_cmp_lt_u32 s3, 2\ns_cbranch_scc1 L_x%d\ns_nop 0" % ty)
    a.label("L_back%d" % ty)
    a.label("L_mid%d" % ty)
    upd = ["v_add_u32_e64 v%d, s%d, v%d" % (r, sT1, r) for r in addr_regs(ty)]
    sal = "s_add_u32 s%d, s%d, 1\ns_cmp_eq_u32 s%d, 3\ns_cselect_b32 s%d, 0, s%d\ns_mov_b32 s%d, %d\ns_cselect_b32 s%d, %d, s%d\ns_add_u32 s%d, s%d, 1" % (sSlot, sSlot, sSlot, sSlot, sSlot, sT1, SLOT, sT1, (-2*SLOT) & 0xffffffff, sT1, sCnt, sCnt)
    rr = frag_reads(ty, F1, 1)
    interleave(mfmas(ty, F0), rr + [sal] + upd)
    a("s_cmp_lt_u32 s%d, 10\ns_waitcnt lgkmcnt(0)\ns_cbranch_scc1 L_top%d" % (sCnt, ty))
    a("s_barrier")
    pre = capture(lambda: epi_reads(ty))
    c0 = -2.0 * 0.7978845608028654 * 1.4426950408889634; c1 = c0 * 0.044715
    k = 0
    order = [(t, i) for i in range(4) for t in range(5)] + [(t, i) for i in range(4) for t in (5, 6)] if ty == 0 else \
            [(t, i) for g in ((3, 4), (5, 6), (0, 1, 2)) for i in range(4) for t in g]
    for x in mfmas(ty, F1, order):
        a(x)
        for y in pre[k:k+2]: a(y)
        k += 2
    for y in pre[k:]: a(y)
    stamp(5); stamp(1, 1)
    if OPT["cprio"]: a("s_setprio %d" % OPT["cprio"])
    a("s_waitcnt vmcnt(0)")
    for k in range(4 if ty == 0 else 8): unpack(BF + 2*k, vB1 + k)
    a("v_mov_b32 v%d, 0x%x\nv_mov_b32 v%d, 0x%x\nv_mov_b32 v%d, 0x%x\nv_mov_b32 v%d, 0x%x" % (KC, f32(c1), KC+1, f32(c0), KC+2, f32(1.4426950408889634), KC+3, f32(1e-6)))
    a("s_waitcnt lgkmcnt(0)\nv_readfirstlane_b32 s%d, v7" % sFAST)

def gelu_block(i, t0, bt0, soff):
    align8()
    P = [(acc(i, t0 + q//2) + 2*(q % 2), CT + 4*(t0 + q//2) + 2*(q % 2), BF + 4*(bt0 + q//2) + 2*(q % 2), TMP + 2*q) for q in range(4)]
    rs = R2(RS + 2*i)
    for (h, c, b, u) in P: a("v_pk_fma_f32 %s, %s, %s, %s op_sel:[1,0,0] op_sel_hi:[1,1,1] neg_lo:[1,0,0] neg_hi:[1,0,0]" % (R2(u), rs, R2(c), R2(b)))
    for (h, c, b, u) in P: a("v_pk_fma_f32 %s, %s, %s, %s op_sel:[0,0,0] op_sel_hi:[0,1,1]" % (R2(h), rs, R2(h), R2(u)))
    for (h, c, b, u) in P: a("v_pk_mul_f32 %s, %s, %s" % (R2(u), R2(h), R2(h)))
    for (h, c, b, u) in P: a("v_pk_fma_f32 %s, %s, %s, %s op_sel:[0,0,1] op_sel_hi:[1,0,1]" % (R2(u), R2(u), R2(KC), R2(KC)))
    for (h, c, b, u) in P: a("v_pk_mul_f32 %s, %s, %s" % (R2(u), R2(u), R2(h)))
    for (h, c, b, u) in P: a("v_exp_f32 v%d, v%d\nv_exp_f32 v%d, v%d" % (u, u, u+1, u+1))
    for (h, c, b, u) in P: a("v_pk_add_f32 %s, %s, 1.0 op_sel_hi:[1,0]" % (R2(u), R2(u)))
    for (h, c, b, u) in P: a("v_rcp_f32 v%d, v%d\nv_rcp_f32 v%d, v%d" % (u, u, u+1, u+1))
    for (h, c, b, u) in P: a("v_pk_mul_f32 %s, %s, %s" % (R2(u), R2(u), R2(h)))
    o = acc(i, t0)
    for q, (h, c, b, u) in enumerate(P): a("v_cvt_pk_bf16_f32 v%d, v%d, v%d" % (o + q, u, u+1))
    st_a2("buffer_store_dwordx4 %s, v1, %s, s%d offen offset:%d" % (R4(o), S(S_WS), soff, 1024*i))

def phi_pairs(P):
    for (h, u) in P: a("v_pk_mul_f32 %s, %s, %s op_sel:[0,0] op_sel_hi:[1,0]" % (R2(u), R2(h), R2(KC + 2)))
    for (h, u) in P: a("v_exp_f32_e64 v%d, v%d clamp\nv_exp_f32_e64 v%d, v%d clamp" % (u, u, u+1, u+1))
    for (h, u) in P: a("v_max_f32 v%d, v%d, v%d\nv_max_f32 v%d, v%d, v%d" % (h, h, KC+3, h+1, h+1, KC+3))
    for (h, u) in P: a("v_pk_add_f32 %s, %s, %s" % (R2(h), R2(h), R2(u)))

def epilogue_kv():
    a("v_and_b32 v5, 8, v0\nv_cmp_eq_u32 vcc, 0, v5\nv_mov_b32 v6, 0\nv_mov_b32 v7, 0x3f803f80\nv_cndmask_b32 v5, v6, v%d, vcc\nv_mov_b32 v4, v5" % (KC + 3))
    a("s_lshl_b32 s3, s%d, 13\ns_add_u32 s3, s3, %d\nv_add_u32 v2, s3, v1" % (sWV, XK))
    prods = [(0,2),(0,3),(1,2),(1,3),(1,4),(2,2),(2,3),(2,4)]
    KD = [acc(1, t) for t in range(5)] + [216, 220, R4S]
    def kvm(ksr):
        return ["v_mfma_f32_16x16x32_bf16 %s, %s, %s, %s" % (R4(KD[k]), R4(acc(2*ksr, ti)), R4(T2P + 4*ksr) if tj == 2 else R4(acc(2*ksr, tj)), "0" if ksr == 0 else R4(KD[k])) for k, (ti, tj) in enumerate(prods)]
    for i in range(4):
        align8()
        def body():
            for t in range(5):
                for q in range(2):
                    u = TMP + 4*t + 2*q; rm = R2(R4S + 16 + 4*i + 2*q); c = R2(CT + 4*t)
                    if t < 2: a("v_pk_fma_f32 %s, %s, %s, %s op_sel:[0,0,1] op_sel_hi:[1,0,1] neg_lo:[1,0,0] neg_hi:[1,0,0]" % (R2(u), rm, c, R2(KC + 2)))
                    elif t == 2: a("v_pk_fma_f32 %s, %s, %s, v[4:5] op_sel:[0,0,0] op_sel_hi:[1,0,1] neg_lo:[1,0,0] neg_hi:[1,0,0]" % (R2(u), rm, c))
                    else: a("v_pk_mul_f32 %s, %s, %s op_sel:[0,0] op_sel_hi:[1,0] neg_lo:[1,0] neg_hi:[1,0]" % (R2(u), rm, c))
            for t in range(5):
                for q in range(2):
                    h = acc(i, t) + 2*q; u = TMP + 4*t + 2*q
                    a("v_pk_fma_f32 %s, %s, %s, %s" % (R2(h), R2(R4S + 4*i + 2*q), R2(h), R2(u)))
            a("v_cvt_pk_bf16_f32 v%d, v%d, v%d\nv_cvt_pk_bf16_f32 v%d, v%d, v%d" % (TMP+20, acc(i,2), acc(i,2)+1, TMP+21, acc(i,2)+2, acc(i,2)+3))
            phi_pairs([(acc(i, t) + 2*q, TMP + 4*t + 2*q) for t in range(3) for q in range(2)])
            e = 2 * (i >> 1); o = 2 * (i & 1)
            a("v_cndmask_b32 v%d, v%d, v7, vcc\nv_cndmask_b32 v%d, v%d, v7, vcc" % (T2P + 4*(i>>1) + o, TMP+20, T2P + 4*(i>>1) + o + 1, TMP+21))
            for t in (3, 4, 0, 1, 2):
                a("v_cvt_pk_bf16_f32 v%d, v%d, v%d\nv_cvt_pk_bf16_f32 v%d, v%d, v%d" % (acc(e,t)+o, acc(i,t), acc(i,t)+1, acc(e,t)+o+1, acc(i,t)+2, acc(i,t)+3))
        if i == 2:
            lines = capture(body); mm = kvm(0)
            for k, ln in enumerate(lines):
                a(ln)
                if k >= 28 and k % 2 == 1 and mm: a(mm.pop(0))
            assert not mm
        else: body()
    a("s_nop 1")
    for x in kvm(1): a(x)
    a("s_nop 0")
    for k in range(8): a("ds_write_b128 v2, %s offset:%d" % (R4(KD[k]), 1024 * k))
    stamp(2, 1)
    lds_addr(2, LF_XK, None)
    a("v_mov_b32 v3, 1\ns_mov_b64 exec, 1\ns_waitcnt lgkmcnt(0)\nds_add_u32 v2, v3\ns_mov_b64 exec, -1")
    stamp(7); stamp(3, 1)
    for i in range(4): gelu_block(i, 5, 0, sT2)
    g2_setup(False)
    stamp(4, 1)
    ks_flag(sT2, sM, 0, 6)

def epilogue_qh():
    PQ = 224
    def qpart(hook=None):
        for i in range(4):
            align8()
            rs = R2(RS + 2*i)
            P = [(acc(i, t) + 2*q, TMP + 4*t + 2*q, CT + 4*t + 2*q) for t in range(3) for q in range(2)]
            for (h, u, c) in P: a("v_pk_fma_f32 %s, %s, %s, %s op_sel:[1,0,1] op_sel_hi:[1,1,1] neg_lo:[1,0,0] neg_hi:[1,0,0]" % (R2(u), rs, R2(c), R2(KC + 2)))
            for (h, u, c) in P: a("v_pk_fma_f32 %s, %s, %s, %s op_sel:[0,0,0] op_sel_hi:[0,1,1]" % (R2(h), rs, R2(h), R2(u)))
            phi_pairs([(h, u) for (h, u, c) in P])
            for k, (h, u, c) in enumerate(P): a("v_cvt_pk_bf16_f32 v%d, v%d, v%d" % (PQ + 6*i + k, h, h + 1))
            if hook and i == 1: hook()
        a("s_mul_i32 s3, s%d, 6144\ns_add_u32 s3, s3, %d\nv_add_u32 v4, s3, v1\nv_lshl_add_u32 v5, v0, 3, s3" % (sWV, PQL))
        for i in range(4): a("ds_write_b128 v4, %s offset:%d\nds_write_b64 v5, %s offset:%d" % (R4(PQ + 6*i), 1024*i, R2(PQ + 6*i + 4), 4096 + 512*i))
    for i in range(4): gelu_block(i, 3, 0, sT2)
    stamp(2, 1)
    for i in range(4):
        gelu_block(i, 5, 2, sT3)
        if i == 1: ks_flag(sT2, sM, 2, 4)
    stamp(6); stamp(3, 1)
    qpart(lambda: ks_flag(sT3, sM, 0, 4))
    g2_setup(False)
    a("s_waitcnt lgkmcnt(0)"); lds_signal(LF_PQ, sWV, 4)
    stamp(7); stamp(4, 1)

def readB(s): return ["ds_read_b128 %s, v244 offset:%d" % (R4(Breg(s, False) + 4*t), 5120*s + 1024*t) for t in range(5)]

def gemm2_early():
    stamp(8); stamp(5, 1)
    if OPT["cprio"]: a("s_setprio 0")
    vm = VM()
    X0 = 124; vG, vR, vP = 246, 248, 254; XS = 212; B2F = 144
    a("s_lshl_b32 s%d, s%d, 9\ns_add_u32 s%d, s%d, 0x%x\ns_lshl_b32 s3, s%d, 2\ns_add_u32 s%d, s%d, s3" % (sT3, sRT, sT3, sT3, FH, sK0, sT3, sT3))
    g2_flagoff(3, KS_C)
    a("s_mov_b64 exec, 0xff\nbuffer_load_dword v245, v3, %s, s%d offen sc1\ns_mov_b64 exec, -1" % (S(S_WS), sT3))
    lds_wait(LF_B, sWV, 1, 246)
    a("s_mul_i32 s3, s%d, %d\nv_add_u32 v244, s3, v1" % (sWV, EBS))
    for x in readB(0) + readB(1): a(x)
    a("s_mul_i32 s3, s%d, 40\nv_add_u32 v228, s3, v0\nv_mul_u32_u24 v229, 6554, v228\nv_lshrrev_b32 v229, 16, v229\nv_mul_u32_u24 v230, 10, v229\nv_sub_u32 v228, v228, v230" % sWV)
    a("v_mul_u32_u24 v230, 1280, v229\nv_lshl_add_u32 v%d, v228, 4, v230\nv_lshlrev_b32 v%d, 4, v228" % (vG, vG + 1))
    a("v_mov_b32 v230, 0x%x\nv_cmp_gt_u32 vcc, 40, v0\ns_mul_i32 s%d, s%d, %d\ns_mul_i32 s%d, s%d, 160\nv_cndmask_b32 v%d, v230, v%d, vcc\ns_add_u32 s%d, s%d, s%d" % (OOB, sT1, sRT, 64*1280, sT2, sCT, vG, vG, sT1, sT1, sT2))
    a("v_and_b32 v229, 15, v229\nv_bfe_u32 v230, v229, 1, 2\nv_lshlrev_b32 v228, 1, v228\nv_xor_b32 v228, v228, v230\nv_mul_u32_u24 v229, 320, v229\nv_lshl_add_u32 v%d, v228, 4, v229\nv_xor_b32 v%d, 16, v%d" % (vR, vR + 1, vR))
    for k in range(1, 3): a("v_add_u32 v%d, %d, v%d\nv_add_u32 v%d, %d, v%d" % (vR + 2*k, 2*k*EBS, vR, vR + 1 + 2*k, 2*k*EBS, vR + 1))
    paddr(vP, 228, 229)
    a("s_mul_i32 s3, s%d, %d\nv_add_u32 v%d, s3, v%d" % (sWV, EBS, vP, vP))
    a("s_mov_b32 s%d, %d\ns_mov_b64 exec, 0xff" % (sSpin, SPIN))
    a.label("L_pc")
    a("s_waitcnt vmcnt(0)\nv_cmp_ne_u32 vcc, s%d, v245\ns_and_b32 s3, vcc_lo, 15\ns_cbranch_scc0 L_pcd" % sTAG)
    a("s_sleep %d\nbuffer_load_dword v245, v3, %s, s%d offen sc1\ns_sub_u32 s%d, s%d, 1\ns_cbranch_scc0 L_pc" % (OPT["slp"], S(S_WS), sT3, sSpin, sSpin))
    a.label("L_pcd")
    a("s_mov_b64 exec, -1\ns_mov_b32 s%d, vcc_lo" % sK1)
    stamp(9); stamp(6, 1); stamp(1, 2)
    for s in range(4): loadA(s, False); vm.add("A%d" % s, 4)
    for s in range(6):
        vm.wait("A%d" % s)
        a("s_waitcnt lgkmcnt(%d)" % (5 if s < 5 else 0))
        g2_step(s, False)
        if s + 2 < 6:
            for x in readB(s + 2): a(x)
        if s == 0:
            a("s_cmp_eq_u32 s%d, 0\ns_cbranch_scc1 L_nop2" % sK1)
            poll(3, sT3, 8, 245, "he2")
            a.label("L_nop2")
            loadA(4, False); vm.add("A4", 4)
        if s <= 2: loadA(5 + s, False); vm.add("A%d" % (5 + s), 4)
        if s in (1, 2): loadB(5 + s, False); vm.add("B%d" % (5 + s), 5)
        if s == 4:
            for i in range(4): a("s_add_u32 s3, s%d, %d\nbuffer_load_dwordx4 %s, v%d, %s, s3 offen" % (sT1, 16*1280*i, R4(X0 + 4*i), vG, S(S_X)))
            a("buffer_load_dwordx4 %s, v%d, %s, s%d offen" % (R4(X0 + 16), vG + 1, S(S_B2), sT2)); vm.add("X", 5)
    vm.wait("A7", "B7")
    stamp(8, 2)
    pend = []
    for i in range(4):
        k = 0
        for s in (6, 7):
            for t in range(5):
                g2_mfma(G_ACC + (i*5 + t) * 4, Breg(s, False) + 4*t, Areg(s, False) + 4*i, False)
                k += 1
                if pend and k >= 4: a(pend.pop(0))
        pend = ["ds_write_b128 v%d, %s offset:%d" % (vP, R4(G_ACC + (i*5 + t)*4), 5120*i + 64*t) for t in range(5)]
    stamp(10); stamp(7, 1); stamp(9, 2)
    vm.wait("X")
    for k in range(2): unpack(B2F + 2*k, X0 + 16 + k)
    for x in pend: a(x)
    for k in range(2, 4): unpack(B2F + 2*k, X0 + 16 + k)
    lds_addr(244, LF_PRE, None)
    a("v_mov_b32 v245, 1")
    for i in range(4):
        for k in range(4): unpack(XS + 8*i + 2*k, X0 + 4*i + k)
        if i == 0: a("s_mov_b64 exec, 1\ns_waitcnt lgkmcnt(0)\nds_add_u32 v244, v245\ns_mov_b64 exec, -1")
        for k in range(4): a("v_pk_add_f32 %s, %s, %s" % (R2(XS + 8*i + 2*k), R2(XS + 8*i + 2*k), R2(B2F + 2*k)))
    lds_wait(LF_PRE, None, 4, 244)
    stamp(8, 1)
    RD = 4
    def loc(i, p):
        if p < 4: return p >> 1, (p & 1) * EBS + 5120*i
        p -= 4
        if i < 2: return p >> 1, (p & 1) * EBS + 20480 + 5120*i
        return 2, p * 10240 + 5120*(i - 2)
    def rdsum(i, ps):
        for j, p in enumerate(ps):
            b, off = loc(i, p)
            a("ds_read_b128 %s, v%d offset:%d\nds_read_b128 %s, v%d offset:%d" % (R4(RD + 32*(i & 1) + 8*j), vR + 2*b, off, R4(RD + 32*(i & 1) + 8*j + 4), vR + 1 + 2*b, off))
    def addsum(i, base):
        for j in range(4):
            a("s_waitcnt lgkmcnt(%d)" % (base + 6 - 2*j))
            for k in range(4): a("v_pk_add_f32 %s, %s, %s" % (R2(XS + 8*i + 2*k), R2(XS + 8*i + 2*k), R2(RD + 32*(i & 1) + 8*j + 2*k)))
    a("s_mov_b32 exec_hi, 0xff")
    rdsum(0, range(4))
    for i in range(4):
        if i < 3: rdsum(i + 1, range(4))
        addsum(i, 8 if i < 3 else 0)
    stamp(11); stamp(9, 1); stamp(10, 2)
    a("s_setprio 1\ns_barrier")
    for i in range(4):
        a("s_barrier")
        rdsum(i, range(4, 8))
        a("s_add_u32 s3, s%d, %d" % (sT1, 16*1280*i))
        addsum(i, 0)
        for k in range(4): a("v_cvt_pk_bf16_f32 v%d, v%d, v%d" % (XS + 8*i + k, XS + 8*i + 2*k, XS + 8*i + 2*k + 1))
        a("buffer_store_dwordx4 %s, v%d, %s, s3 offen" % (R4(XS + 8*i), vG, S(S_OUT)))
    a("s_mov_b64 exec, -1")
    stamp(12)

hdr = open("cdna_kernels/%s.s.ref" % BASE).read().split("; Override")[0]
a.raw(hdr.rstrip())
a.raw("; @launch grid=(256,1,1) block=(512,1,1) lds=163840")
a.raw('.amdgcn_target "amdgcn-amd-amdhsa--gfx950"\n.text')
kernel_header(a, KNAME)
a("s_cmp_ge_u32 s2, 256\ns_cbranch_scc1 L_end")
a("s_load_dwordx16 s[36:51], s[0:1], 0\ns_load_dwordx4 s[52:55], s[0:1], 64\ns_load_dwordx2 s[56:57], s[0:1], 80")
a("v_lshrrev_b32 v1, 6, v0\nv_and_b32 v0, 63, v0\nv_readfirstlane_b32 s%d, v1" % sWV)
if OPT["cpf"]:
    a("s_getpc_b64 s[%d:%d]\nL_pc0:\ns_and_b32 s3, s2, 0xf8\ns_add_u32 s3, s3, s%d\ns_lshl_b32 s3, s3, 7\ns_min_u32 s3, s3, L_end-L_pc0-64" % (sEX, sEX+1, sWV))
    a("s_load_dword s%d, s[%d:%d], s3" % (sSpin, sEX, sEX+1))
    if OPT["cpf"] > 1: a("s_add_u32 s3, s3, 64\ns_load_dword s%d, s[%d:%d], s3" % (sSpin, sEX, sEX+1))
stamp_init(); stamp(0)
a("s_bfe_u32 s%d, s2, 0x10006" % sTY)
if OPT["xmap"]:
    a("s_and_b32 s3, s2, 7\ns_lshl_b32 s3, s3, 1\ns_bfe_u32 s%d, s2, 0x10003\ns_add_u32 s%d, s%d, s3" % (sRB, sRB, sRB))
    a("s_bfe_u32 s3, s2, 0x20004\ns_lshr_b32 s%d, s2, 7\ns_lshl_b32 s%d, s%d, 2\ns_add_u32 s%d, s%d, s3" % (sJJ, sJJ, sJJ, sJJ, sJJ))
else:
    assert not OPT["fast"]
    a("s_and_b32 s3, s2, 1\ns_lshl_b32 s3, s3, 3\ns_bfe_u32 s%d, s2, 0x30003\ns_add_u32 s%d, s%d, s3" % (sRB, sRB, sRB))
    a("s_and_b32 s3, s2, 6\ns_lshr_b32 s%d, s2, 7\ns_add_u32 s%d, s%d, s3" % (sJJ, sJJ, sJJ))
a("s_and_b32 s3, s2, 7\ns_lshl_b32 s3, s3, 2\ns_bfe_u32 s%d, s2, 0x20003\ns_add_u32 s%d, s%d, s3\ns_lshr_b32 s%d, s2, 5" % (sRT, sRT, sRT, sCT))
a("s_cmp_lt_u32 s%d, 4\ns_cbranch_scc1 L_compute" % sWV)
loader()
a.label("L_compute")
J1, J2 = compute_prologue()
a("s_cmp_lg_u32 s%d, 0\ns_cbranch_scc1 L_cqh" % sTY)
main_loop(0); epilogue_kv(); a("s_branch L_g2early")
a.lines.extend(J1); a.lines.extend(J2)
a.label("L_cqh")
main_loop(1); epilogue_qh()
a.label("L_g2early")
gemm2_early()
a.label("L_alldone")
stamp_store()
a("s_cmp_lg_u32 s2, 0\ns_cbranch_scc1 L_end\ns_cmp_lg_u32 s%d, 4\ns_cbranch_scc1 L_end" % sWV)
a("s_mov_b32 s3, 0x%x\nv_mov_b32 v2, s%d\nv_mov_b32 v3, 0\ns_mov_b64 exec, 1\nbuffer_store_dword v2, v3, %s, s3 offen sc1" % (EPOCH, sTAG, S(S_WS)))
a.label("L_end")
a("s_endpgm")
a.lines.extend(OUTLINE)
a.raw(".p2align 7\n.type L_table,@object\nL_table:")
T = make_table()
for i in range(0, len(T), 8): a.raw("  .long " + ", ".join(str(x) for x in T[i:i+8]))
a.raw(".size L_table, %d" % (4 * len(T)))
a.raw('.section .rodata,"a"')
kernel_desc(a, KNAME, 256, 102)
sys.stdout.write(a.text())
```

```python
import sys, struct
from asmlib import *
BASE = "parallel_sum__linear_attn_block__dense_activation_gelu__prompt"
KNAME = BASE + "_kernel"
OPT = dict(stamps=0, sm=0, probe=-1, pcls=0, slp=2, n1=2, cpf=2, win=2, xmap=1, fast=1, kvu=0, qord=0, cprio=0, thr=0, touch=0, shift=2, nojob=0, norot=0, lst=0, kvd=6, lp=0, n2=2, ald=0, bld=0, pld=0, wb=0, wbw=0, ost=1)
for arg in sys.argv[1:]:
    k, v = arg.split("="); assert k in OPT, k; OPT[k] = int(v)
STAMPS = OPT["stamps"]
f32 = lambda x: struct.unpack("<I", struct.pack("<f", x))[0]

B2_OFF = 0x900000
KVP_OFF = 0xC00000; KVP_STRIDE = 6912
STAT_OFF = 0xD00000
FLAG_OFF = 0xD10000
EPOCH = FLAG_OFF; FWG = FLAG_OFF + 0x1000; FH = FLAG_OFF + 0x4000
CSP_OFF = 0xD20000
RED_OFF = 0xD50000
STAMP_OFF = 0xE00000
WS_SIZE = 0x1000000
OOB = 0x7f000000
SLOT = 45184
K_OFF = 16384; V_OFF = 26640; HKV_OFF = 36992; HQ_OFF = 26624
JOBL = 2 * SLOT
IMG = 147456
LFLAG = 160000; TAGL = 160064; FASTL = 160128
LF_IMG, LF_XK, LF_PRE, LF_PQ, LF_B = 0, 4, 8, 16, 32
STATL = 160768; CSL = 161792
EBS = 30720
XK = 122880; PQL = 122880
SPIN = 200000
NKVU = 128 * OPT["kvu"]; NQU = 680 - NKVU; QPER = -(-NQU // 512)
S_X, S_J, S_W1, S_WS, S_P, S_OUT, S_B1, S_B2 = 4, 8, 12, 16, 20, 24, 28, 32
sRB, sJJ, sTY, sWV, sTAG, sM, sN = 58, 59, 60, 61, 62, 63, 64
sT1, sT2, sT3 = 65, 66, 67
sLA, sLP, sLP4, sLH, sIncP, sA, sP, sH, sSlot, sCnt = 68, 69, 70, 71, 72, 73, 74, 75, 76, 77
sORD = 76
sEX = 78; sSpin = 80; sRT, sCT = 81, 82
sK0, sK1, sK2 = 83, 84, 85
sST = 86
sAo0, sAo1, sAo2, sBo0, sBo1, sBo2 = 36, 37, 38, 39, 42, 43
TB = [40, 41, 48, 49]
sFAST = 54; sPC = 46

a = Asm()
LDF = {0: ' sc1', 1: '', 2: ' nt'}
ALD = LDF[OPT['ald']]; BLD = LDF[OPT['bld']]; PLD = LDF[OPT['pld']]
OUTLINE = []
def srd(d, p, n): a("s_mov_b32 s%d, s%d\ns_mov_b32 s%d, s%d\ns_mov_b32 s%d, 0x%x\ns_mov_b32 s%d, 0x20000" % (d, p, d+1, p+1, d+2, n, d+3))
def S(d): return "s[%d:%d]" % (d, d+3)
def R4(b): return "v[%d:%d]" % (b, b + 3)
def R2(b): return "v[%d:%d]" % (b, b + 1)
def align8(): a.raw(".p2align 3")

def stamp(idx, mode=0):
    if mode == 0 and OPT["probe"] == idx:
        a("s_memrealtime s[%d:%d]\ns_waitcnt lgkmcnt(0)\ns_mov_b32 s%d, s%d" % (sST, sST+1, sST + 2, sST))
    if not STAMPS or (mode != OPT["sm"] and idx not in (0, 13)): return
    a("s_memrealtime s[%d:%d]\ns_waitcnt lgkmcnt(0)\ns_mov_b32 s%d, s%d" % (sST, sST+1, sST + 2 + idx, sST))
def stamp_init():
    if STAMPS:
        for i in range(14): a("s_mov_b32 s%d, 0" % (sST + 2 + i))
def stamp_store():
    if OPT["probe"] >= 0:
        a("s_waitcnt vmcnt(0)")
        stamp(13)
        a("s_lshr_b32 s3, s%d, 2\ns_cmp_lg_u32 s3, %d\ns_cbranch_scc1 L_pspd" % (sWV, OPT["pcls"]))
        a.label("L_psp")
        a("s_memrealtime s[%d:%d]\ns_waitcnt lgkmcnt(0)\ns_sub_u32 s3, s%d, s%d\ns_cmp_lt_u32 s3, 10000\ns_cbranch_scc1 L_psp" % (sST, sST+1, sST, sST + 2))
        a.label("L_pspd")
    if not STAMPS: return
    a("s_waitcnt vmcnt(0)")
    stamp(13)
    for i in range(14): a("v_mov_b32 v%d, s%d" % (4 + i, sST + 2 + i))
    a("v_mov_b32 v18, 0\nv_mov_b32 v19, 0\nv_mov_b32 v2, 0\ns_lshl_b32 s3, s2, 3\ns_add_u32 s3, s3, s%d\ns_lshl_b32 s3, s3, 6\ns_add_u32 s3, s3, 0x%x\ns_mov_b64 exec, 1" % (sWV, STAMP_OFF))
    for i in range(4): a("buffer_store_dwordx4 v[%d:%d], v2, %s, s3 offen offset:%d" % (4 + 4*i, 7 + 4*i, S(S_WS), 16*i))
    a("s_mov_b64 exec, -1")

class VM:
    def __init__(self): self.q = []
    def add(self, lab, n=1): self.q += [lab] * n
    def wait(self, *labs):
        idx = [i for i, x in enumerate(self.q) if x in labs]
        if not idx: return
        n = len(self.q) - 1 - max(idx)
        assert n <= 63
        a("s_waitcnt vmcnt(%d)" % n); self.q = self.q[max(idx) + 1:]
def capture(fn):
    n = len(a.lines); fn(); out = a.lines[n:]; del a.lines[n:]; return [x.strip() for x in out]

def st_a2(ops):
    if isinstance(ops, str): ops = [ops]
    if not OPT["fast"]:
        for o in ops: a(o + " sc1")
        return
    l = a.newlabel("Lsl")
    a("s_cmp_lg_u32 s%d, 0\ns_cbranch_scc0 %s" % (sFAST, l))
    for o in ops: a(o)
    a.label(l + "_b")
    OUTLINE.append(l + ":")
    for o in ops: OUTLINE.append("  " + o + " sc1")
    OUTLINE.append("  s_branch %s_b" % l)

def poll(voff, soff, nlanes, vt, name):
    lp = a.newlabel("Lpoll_" + name)
    a("s_mov_b32 s%d, %d\ns_mov_b64 exec, 0x%x" % (sSpin, SPIN, (1 << nlanes) - 1))
    a.label(lp)
    a("buffer_load_dword v%d, v%d, %s, s%d offen%s\ns_waitcnt vmcnt(0)" % (vt, voff, S(S_WS), soff, PLD))
    a("v_cmp_ne_u32 vcc, s%d, v%d\ns_cbranch_vccz %s_d" % (sTAG, vt, lp))
    a("s_sleep %d\ns_sub_u32 s%d, s%d, 1\ns_cbranch_scc0 %s" % (OPT["slp"], sSpin, sSpin, lp))
    a.label(lp + "_d")
    a("s_mov_b64 exec, -1")
def lds_addr(v, off, sw):
    if sw is None: a("v_mov_b32 v%d, %d" % (v, LFLAG + off))
    else: a("s_lshl_b32 s3, s%d, 2\ns_add_u32 s3, s3, %d\nv_mov_b32 v%d, s3" % (sw, LFLAG + off, v))
def lds_signal(off, sw, v):
    lds_addr(v, off, sw)
    a("v_mov_b32 v%d, 1\ns_mov_b64 exec, 1\nds_add_u32 v%d, v%d\ns_mov_b64 exec, -1" % (v + 1, v, v + 1))
def lds_wait(off, sw, cnt, v, slp=1):
    lp = a.newlabel("Llw"); lds_addr(v, off, sw)
    a("s_mov_b32 s%d, %d" % (sSpin, 20 * SPIN))
    a.label(lp)
    a("ds_read_b32 v%d, v%d\ns_waitcnt lgkmcnt(0)\nv_cmp_ne_u32 vcc, %d, v%d\ns_cbranch_vccz %s_d" % (v + 1, v, cnt, v + 1, lp))
    if slp: a("s_sleep %d" % slp)
    a("s_sub_u32 s%d, s%d, 1\ns_cbranch_scc0 %s" % (sSpin, sSpin, lp))
    a.label(lp + "_d")
def bf16_round(v): a("v_cvt_pk_bf16_f32 v%d, v%d, v%d\nv_lshlrev_b32 v%d, 16, v%d" % (v, v, v, v, v))
def unpack(dst, src): a("v_lshlrev_b32 v%d, 16, v%d\nv_and_b32 v%d, 0xffff0000, v%d" % (dst, src, dst + 1, src))
def tagchk(acc_, regs):
    a("v_xor_b32 v%d, s%d, v%d" % (acc_, TB[0], regs[0]))
    for k, r in enumerate(regs):
        if k: a("v_bitop3_b32 v%d, v%d, v%d, s%d bitop3:0xf6" % (acc_, acc_, r, TB[k % 4]))
    a("v_and_b32 v%d, 0xff, v%d\nv_cmp_ne_u32 vcc, 0, v%d" % (acc_, acc_, acc_))

G_ACC = 4
KS_C = [3, 5, 9, 11, 0, 1, 6, 7]; KS_L = [2, 4, 8, 10]
def g2_setup(late):
    w = sM if late else sWV
    a("v_lshlrev_b32 v1, 4, v0\nv_add_u32 v2, 4096, v1")
    a("s_mul_i32 s%d, s%d, 12" % (sK0, w))
    if late: a("s_lshl_b32 s%d, s%d, 2\ns_add_u32 s%d, s%d, 48\ns_add_u32 s%d, s%d, 64" % (sK1, w, sK1, sK1, sK2, w))
    a("s_mul_i32 s3, s%d, 68" % sRT)
    for (d, k) in ((sAo0, sK0),) + (((sAo1, sK1), (sAo2, sK2)) if late else ()):
        a("s_add_u32 s%d, s3, s%d\ns_lshl_b32 s%d, s%d, 12" % (d, k, d, d))
    a("s_mul_i32 s3, s%d, 5120\ns_add_u32 s3, s3, 0x%x" % (sCT, B2_OFF))
    for (d, k) in ((sBo0, sK0),) + (((sBo1, sK1), (sBo2, sK2)) if late else ()):
        a("s_mul_i32 s%d, s%d, 40960\ns_add_u32 s%d, s%d, s3" % (d, k, d, d))
def step_off(s, late, bases, stride, dst=3):
    if not late: b, k = bases[0], KS_C[s]
    elif s < 4: b, k = bases[0], KS_L[s]
    elif s < 8: b, k = bases[1], s - 4
    else: b, k = bases[2], 0
    a("s_add_u32 s%d, s%d, %d" % (dst, b, stride * k))
def Breg(s, late):
    if late: return 84 + 20 * (s if s < 5 else s - 5)
    return 124 + 20 * (s & 1) if s < 6 else 84 + 20 * (s - 6)
def Areg(s, late): return 184 + 16 * s if late else 164 + 16 * (s % 5)
def loadB(s, late):
    d = Breg(s, late)
    step_off(s, late, (sBo0, sBo1, sBo2), 40960)
    for t in range(4): a("buffer_load_dwordx4 %s, v1, %s, s3 offen offset:%d%s" % (R4(d + 4*t), S(S_WS), 1024*t, BLD))
    a("buffer_load_dwordx4 %s, v2, %s, s3 offen%s" % (R4(d + 16), S(S_WS), BLD))
def loadA(s, late):
    d = Areg(s, late)
    step_off(s, late, (sAo0, sAo1, sAo2), 4096)
    for i in range(4): a("buffer_load_dwordx4 %s, v1, %s, s3 offen offset:%d%s" % (R4(d + 4*i), S(S_WS), 1024*i, ALD))
def dmaB(s):
    step_off(s, False, (sBo0,), 40960)
    a("s_mul_i32 m0, s%d, %d\ns_add_u32 m0, m0, %d\ns_nop 0" % (sM, EBS, 5120*s))
    for t in range(4): a("buffer_load_dwordx4 v1, %s, s3 offen offset:%d%s lds" % (S(S_WS), 1024*t, BLD))
    a("s_add_u32 m0, m0, 4096\ns_nop 0\nbuffer_load_dwordx4 v2, %s, s3 offen%s lds" % (S(S_WS), BLD))
    if OPT["thr"]: a("s_waitcnt vmcnt(%d)" % OPT["thr"])
def a2_soff(dst, m, ks_emit):
    ks_emit()
    a("s_lshl_b32 s%d, s%d, 1\ns_add_u32 s%d, s%d, s%d\ns_mul_i32 s%d, s%d, 68\ns_add_u32 s%d, s%d, s3\ns_lshl_b32 s%d, s%d, 12" % (dst, sRB, dst, dst, m, dst, dst, dst, dst, dst, dst))
def ks_flag(sOff, m, waitn, vt):
    a("s_lshl_b32 s3, s%d, 1\ns_add_u32 s3, s3, s%d\ns_mul_i32 s3, s3, %d\ns_lshr_b32 s%d, s%d, 10\ns_add_u32 s3, s3, s%d\ns_add_u32 s3, s3, 0x%x" % (sRB, m, 512 - 272, sSpin, sOff, sSpin, FH))
    a("v_mov_b32 v%d, s%d\nv_mov_b32 v%d, 0\ns_mov_b64 exec, 1\ns_waitcnt vmcnt(%d)" % (vt, sTAG, vt + 1, waitn))
    st_a2("buffer_store_dword v%d, v%d, %s, s3 offen" % (vt, vt + 1, S(S_WS)))
    a("s_mov_b64 exec, -1\ns_nop 0")
def g2_mfma(D, B, A, first): a("v_mfma_f32_16x16x32_bf16 %s, %s, %s, %s" % (R4(D), R4(B), R4(A), "0" if first else R4(D)))
def g2_flagoff(v, ks):
    packed = sum(k << (4*j) for j, k in enumerate(ks))
    a("v_lshlrev_b32 v%d, 2, v0\ns_mov_b32 s3, 0x%x\nv_bfe_u32 v%d, s3, v%d, 4\nv_lshlrev_b32 v%d, 2, v%d" % (v, packed, v, v, v, v))
def g2_step(s, late):
    stamp(2 + s, 2)
    for t in range(5):
        for i in range(4): g2_mfma(G_ACC + (i*5 + t) * 4, Breg(s, late) + 4*t, Areg(s, late) + 4*i, s == 0)
def paddr(v, t1, t2):
    a("v_and_b32 v%d, 15, v0\nv_lshrrev_b32 v%d, 4, v0\nv_bfe_u32 v%d, v0, 1, 2\nv_xor_b32 v%d, v%d, v%d\nv_mul_u32_u24 v%d, 320, v%d\nv_lshl_add_u32 v%d, v%d, 4, v%d" % (v, t1, t2, t1, t1, t2, v, v, v, t1, v))

def make_table():
    T = []
    for ty in range(2):
        for t in range(256):
            ga = []
            for rnd in range(2):
                gi = t + 256 * rnd
                if gi >= 420: ga.append(ga[0]); continue
                n, gi = divmod(gi, 210); hh, gi = divmod(gi, 105); e, dg = divmod(gi, 5)
                DG = 5 * hh + dg; ti, g = DG >> 2, DG & 3
                if ty == 0:
                    col = 0 if e == 20 else 20 * hh + e + 8
                    idx = 3 * ti + (col >> 4) - (1 if ti > 0 else 0)
                    ga.append(XK + n * 8192 + idx * 1024 + (g * 16 + (col & 15)) * 16)
                else:
                    c = 40 + hh if e == 20 else 20 * hh + e
                    ga.append(IMG + n * 4608 + ((c * 4 + g) * 16 + ti * 8 if ti < 2 else 3072 + (c * 4 + g) * 8))
            l = t & 63
            if l >= 56: l = 0
            n, u4 = divmod(l, 28)
            if ty == 0: c4, mul = ((160 + 10*n + u4, 20) if u4 < 10 else (320 + 10*n + u4 - 10, 20) if u4 < 20 else (480 + 8*n + u4 - 20, 48))
            else: c4, mul = ((10*n + u4, 20) if u4 < 10 else (10*n + u4 - 2, 20) if u4 < 12 else (480 + 16 + 16*n + u4 - 12, 48))
            T += [ga[0], ga[1]]
    return T

def order_table(ph):
    wins = {1: [1]*10, 2: [2]*5, 3: [3,3,4], 4: [4,3,3]}[OPT["win"]]
    o = []; b = 0
    for w in wins:
        o += [b + (i + ph) % w for i in range(w)]; b += w
    return sum(x << (4*i) for i, x in enumerate(o))

FLC = 6 if OPT["shift"] >= 2 else 7
def loader():
    lw = sM
    def issue(base, part=(0, 11), filler=()):
        def m0(reg, i, first):
            if base is not None: return "s_add_u32 m0, s%d, %d" % (reg, base + 1024*i)
            return "s_add_u32 m0, s%d, s%d" % (reg, sK2) if first else "s_add_u32 m0, m0, 0x400"
        L = []
        for i in range(4): L.append((m0(sLA, i, i == 0), "buffer_load_dwordx4 v%d, %s, s%d offen lds" % (10+i, S(S_X), sA)))
        for i in range(2): L.append((m0(sLH, i, i == 0), "buffer_load_dwordx4 v%d, %s, s%d offen lds" % (19+i, S(S_W1), sH)))
        for i in range(5): L.append((m0(sLP, i, i == 0), "buffer_load_dwordx4 v%d, %s, s%d offen lds" % (14+i, S(S_P), sP)))
        filler = list(filler)
        for k in range(*part):
            m, d = L[k]
            if k == 10:
                l = a.newlabel("Lnop4")
                a("s_cmp_lg_u32 s%d, 0\ns_cbranch_scc1 %s" % (sLP4, l)); a(m); a("s_nop 0"); a(d); a.label(l)
            else: a(m); a("s_nop 0"); a(d)
            if filler: a(filler.pop(0))
    def nextstage(): a("s_lshr_b64 s[%d:%d], s[%d:%d], 4\ns_and_b32 s3, s%d, 15\ns_add_u32 s3, s3, s64\ns_sub_u32 s73, s3, 10\ns_min_u32 s3, s3, s73\ns_lshl_b32 s%d, s3, 7\ns_mul_i32 s%d, s3, s%d\ns_mul_i32 s%d, s3, %d" % (sORD, sORD+1, sORD, sORD+1, sORD, sA, sP, sIncP, sH, 64*3072))
    def bar(k): stamp(k + 1, 4); a("s_barrier"); stamp(k + 1, 3)
    a("s_sub_u32 s%d, s%d, 4" % (lw, sWV))
    a("v_lshrrev_b32 v2, 3, v0\nv_lshrrev_b32 v3, 4, v0\nv_and_b32 v4, 7, v0")
    a("v_xor_b32 v5, v4, v3\nv_lshlrev_b32 v5, 4, v5")
    a("s_lshl_b32 s3, s%d, 7\ns_lshl_b32 s%d, s%d, 5\ns_add_u32 s3, s3, s%d\ns_mul_i32 s3, s3, 1280" % (sRB, sT1, lw, sT1))
    a("v_mul_u32_u24 v6, 1280, v2\nv_add3_u32 v10, v6, v5, s3")
    a("v_xor_b32 v11, 64, v10\nv_add_u32 v11, 10240, v11\nv_add_u32 v12, 20480, v10\nv_add_u32 v13, 20480, v11")
    a("s_lshl_b32 s%d, s%d, 12" % (sLA, lw))
    def rel(ty, par):
        if OPT["shift"] == 3: o = [(i ^ par) if i < 2 else i for i in range(10)]
        elif ty == OPT["shift"]: o = [par, 1 - par, 2] + [3 + (i ^ par) for i in range(6)] + [9]
        else: o = [i ^ par for i in range(10)]
        return sum(x << (4*i) for i, x in enumerate(o))
    a("s_xor_b32 s3, s%d, s59\ns_and_b32 s3, s3, 1\ns_lshl_b32 s%d, s%d, 1\ns_add_u32 s3, s3, s%d\ns_mov_b32 s%d, 0x%x\ns_mov_b32 s%d, 0x%x" % (sRB, sT1, sTY, sT1, sORD, rel(0,0) & 0xffffffff, sORD+1, rel(0,0) >> 32))
    for k in range(1, 4):
        r = rel(k >> 1, k & 1)
        a("s_cmp_eq_u32 s3, %d\ns_cselect_b32 s%d, 0x%x, s%d\ns_cselect_b32 s%d, 0x%x, s%d" % (k, sORD, r & 0xffffffff, sORD, sORD+1, r >> 32, sORD+1))
    a("s_and_b32 s3, s2, 7\ns_sub_u32 s%d, s3, 5\ns_min_u32 s3, s3, s%d\ns_lshl_b32 s%d, s3, 1" % (sT1, sT1, sN))
    if OPT["norot"]: a("s_mov_b32 s%d, 0" % sN)
    a("s_and_b32 s%d, s%d, 15\ns_add_u32 s%d, s%d, s%d\ns_sub_u32 s3, s%d, 10\ns_min_u32 s%d, s%d, s3\ns_lshl_b32 s%d, s%d, 7\ns_mul_i32 s%d, s%d, %d" % (sP, sORD, sP, sP, sN, sP, sP, sP, sA, sP, sH, sP, 64*3072))
    a("s_mov_b32 s%d, 0x%x\ns_mov_b32 s%d, 0x20000" % (S_X+2, 2048*1280, S_X+3))
    a("s_waitcnt lgkmcnt(0)")
    a("s_mov_b32 s%d, s36\ns_mov_b32 s%d, s37" % (S_X, S_X+1))
    stamp(1)
    issue(0, (0, 4))
    a("v_and_b32 v6, 3, v2\nv_lshrrev_b32 v7, 2, v2\nv_lshl_add_u32 v6, v7, 3, v6\nv_mul_u32_u24 v6, 3072, v6")
    a("v_and_b32 v7, 6, v2\nv_xor_b32 v7, v4, v7\nv_lshl_add_u32 v6, v7, 4, v6")
    a("s_mul_i32 s%d, s%d, 384\ns_lshl_b32 s3, s%d, 7\ns_add_u32 s%d, s%d, s3" % (sT1, sJJ, sTY, sT1, sT1))
    a("s_and_b32 s%d, s%d, 1" % (sT2, lw))
    a("s_lshr_b32 s3, s%d, 1\ns_lshl_b32 s3, s3, 3\ns_add_u32 s3, s3, s%d\ns_mul_i32 s3, s3, 12288\ns_add_u32 s3, s3, s%d" % (lw, sT2, sT1))
    a("v_add_u32 v19, s3, v6\nv_add_u32 v20, 49152, v19")
    a("s_movk_i32 s%d, %d\ns_cmp_eq_u32 s%d, 0\ns_cselect_b32 s%d, %d, s%d\ns_lshl_b32 s3, s%d, 11\ns_add_u32 s%d, s%d, s3" % (sLH, HQ_OFF, sTY, sLH, HKV_OFF, sLH, lw, sLH, sLH))
    srd(S_W1, 44, 640*3072)
    issue(0, (4, 6))
    a("s_lshr_b32 s3, s%d, 1\ns_and_b32 s%d, s3, s%d\ns_cbranch_scc1 L_phmode" % (lw, sLP4, sTY))
    a("s_mov_b32 s%d, %d" % (sIncP, 64*3840))
    a("s_lshr_b32 s3, s%d, 1\ns_add_u32 s3, s3, 1\ns_cmp_eq_u32 s%d, 0\ns_cselect_b32 s3, s3, 0" % (lw, sTY))
    a("s_mul_i32 s%d, s3, 1280\ns_mul_i32 s%d, s%d, 160\ns_add_u32 s%d, s%d, s%d\ns_mul_i32 s%d, s%d, %d\ns_add_u32 s%d, s%d, s%d" % (sT1, sT3, sJJ, sT1, sT1, sT3, sT3, sT2, 32*3840, sT1, sT1, sT3))
    a("s_movk_i32 s%d, %d\ns_cmp_eq_u32 s3, 2\ns_cselect_b32 s%d, %d, s%d\ns_mul_i32 s%d, s%d, 5120\ns_add_u32 s%d, s%d, s%d" % (sLP, K_OFF, sLP, V_OFF, sLP, sT3, sT2, sLP, sLP, sT3))
    a("v_mul_u32_u24 v7, 6554, v0\nv_lshl_add_u32 v5, v0, 4, s%d\ns_movk_i32 s3, 3680\ns_movk_i32 s%d, 3840" % (sT1, sT3))
    for i in range(5):
        a("v_add_u32 v8, %d, v7\nv_lshrrev_b32 v8, 16, v8\nv_and_b32 v9, 12, v8" % (64*i*6554))
        c = 1024*i - (46080 if i >= 3 else 0)
        a("v_add_u32 v%d, 0x%x, v5\nv_mad_u32_u24 v%d, v8, s3, v%d\nv_mad_u32_u24 v%d, v9, s%d, v%d" % (14+i, c & 0xffffffff, 14+i, 14+i, 14+i, sT3, 14+i))
        if i == 2: a("v_lshrrev_b32 v8, 4, v8\nv_mul_u32_u24 v8, 46080, v8\nv_sub_u32 v16, v16, v8")
    srd(S_P, 38, 640*3840)
    a("s_branch L_pdone")
    a.label("L_phmode")
    a("s_mov_b32 s%d, %d" % (sIncP, 64*3072))
    a("s_mul_i32 s3, s%d, %d\ns_add_u32 s3, s3, s%d\ns_add_u32 s3, s3, 128" % (sT2, 32*3072, sT1))
    a("v_add_u32 v14, s3, v6\nv_add_u32 v15, 49152, v14\nv_add_u32 v16, 12288, v14\nv_add_u32 v17, 61440, v14\nv_mov_b32 v18, 0x%x" % OOB)
    a("s_lshl_b32 s3, s%d, 12\ns_add_u32 s%d, s3, %d" % (sT2, sLP, HQ_OFF + 8192))
    srd(S_P, 44, 640*3072)
    a.label("L_pdone")
    a("s_mul_i32 s%d, s%d, s%d" % (sP, sP, sIncP))
    issue(0, (6, 11)); nextstage()
    srd(S_WS, 56, WS_SIZE)
    a("s_getpc_b64 s[%d:%d]\nL_pc1:\ns_add_u32 s%d, s%d, L_table-L_pc1\ns_addc_u32 s%d, s%d, 0" % (sPC, sPC+1, sPC, sPC, sPC+1, sPC+1))
    a("v_lshlrev_b32 v1, 4, v0\ns_lshl_b32 s3, s%d, 10\nv_add_u32 v254, s3, v1\ns_lshl_b32 s3, s%d, 12\nv_add_u32 v5, s3, v254\nv_lshrrev_b32 v21, 1, v5" % (lw, sTY))
    a("v_mov_b32 v22, %d\ns_getreg_b32 s%d, hwreg(HW_REG_XCC_ID, 0, 4)\ns_and_b32 s3, s2, 7\ns_lshl_b32 s3, s3, 5\ns_lshr_b32 s%d, s2, 3\ns_add_u32 s3, s3, s%d\ns_lshl_b32 s3, s3, 2\ns_add_u32 s3, s3, 0x%x\nv_mov_b32 v23, s3" % (TAGL, sFAST, sT1, sT1, FWG))
    a("s_mov_b32 s%d, %d\ns_mov_b32 s%d, 1\ns_branch L_kvi" % (sK2, SLOT, sK1))
    a.label("L_kvl")
    a("s_waitcnt vmcnt(10)\ns_barrier")
    if STAMPS and OPT["sm"] == 3:
        a("s_memrealtime s[%d:%d]\ns_waitcnt lgkmcnt(0)" % (sST, sST+1))
        for k in range(7): a("s_cmp_eq_u32 s%d, %d\ns_cselect_b32 s%d, s%d, s%d" % (sK1, k + 2, sST + 3 + k, sST, sST + 3 + k))
    a("s_lshl_b32 s3, s%d, 2\ns_add_u32 s3, s3, s%d\ns_cmp_lg_u32 s3, %d\ns_cbranch_scc1 L_kvi" % (sK1, lw, 4 * 4 + 3))
    a("ds_read_b32 v6, v22\ns_mov_b64 exec, 1\ns_waitcnt lgkmcnt(0)\nv_xor_b32 v6, s%d, v6\nbuffer_store_dword v6, v23, %s, 0 offen sc1\ns_mov_b64 exec, -1" % (sFAST, S(S_WS)))
    a.label("L_kvi")
    issue(None); nextstage()
    a("s_add_u32 s%d, s%d, %d\ns_cmp_eq_u32 s%d, %d\ns_cselect_b32 s%d, 0, s%d\ns_add_u32 s%d, s%d, 1\ns_cmp_lt_u32 s%d, 9\ns_cbranch_scc1 L_kvl" % (sK2, sK2, SLOT, sK2, 3*SLOT, sK2, sK2, sK1, sK1, sK1))
    if OPT["lp"]: a("s_setprio %d" % OPT["lp"])
    a("global_load_dwordx2 v[252:253], v21, s[%d:%d]" % (sPC, sPC+1))
    a("v_mov_b32 v6, %d\nds_read_b32 v6, v6" % TAGL)
    g2_setup(True)
    a("v_and_b32 v29, 15, v0\nv_min_u32 v29, 13, v29\nv_lshlrev_b32 v29, 4, v29\ns_mul_i32 s3, s%d, 224\nv_add_u32 v29, s3, v29\nv_lshrrev_b32 v30, 4, v0\nv_lshl_add_u32 v31, v30, 10, v29\nv_and_b32 v30, 0x7ff, v31\nv_add_u32 v29, %d, v29\ns_lshl_b32 s3, s%d, 3\ns_add_u32 s3, s3, s%d\ns_mul_i32 s%d, s3, 10240\ns_add_u32 s%d, s%d, 0x%x" % (lw, CSL, sTY, sJJ, sPC, sPC, sPC, CSP_OFF))
    a("v_add_u32 v255, 4096, v254\nv_cmp_gt_u32 vcc, %d, v254\nv_mov_b32 v3, 0x%x\ns_mov_b64 s[%d:%d], vcc\nv_cndmask_b32 v255, v3, v255, vcc" % ((420 - 256) * 16, OOB, sEX, sEX+1))
    a("s_lshl_b32 s%d, s%d, 10\ns_lshl_b32 s3, s%d, 11\ns_add_u32 s%d, s%d, s3\ns_add_u32 s%d, s%d, 0x%x" % (sT1, lw, sRB, sT1, sT1, sT1, sT1, STAT_OFF - 1024))
    a("s_cmp_eq_u32 s%d, 3\ns_cselect_b32 s%d, 0x%x, s%d\ns_cselect_b32 s%d, -16, 0\ns_cselect_b32 s%d, -16, -1" % (lw, sT1, FWG, sT1, sT2, sT3))
    a("s_waitcnt lgkmcnt(0)\nv_readfirstlane_b32 s%d, v6\ns_waitcnt vmcnt(11)" % sTAG)
    bar(7)
    def csloads():
        for p in range(3): a("s_add_u32 s3, s%d, %d\nbuffer_load_dwordx4 %s, v%d, %s, s3 offen sc1" % (sPC, 4096 * p, R4(36 + 4*p), 31 if p < 2 else 30, S(S_WS)))
    a("s_cmp_eq_u32 s%d, 0\ns_cbranch_scc1 L_ck1\nbuffer_load_dwordx4 v[24:27], v1, %s, s%d offen sc1" % (lw, S(S_WS), sT1))
    a.label("L_ck1")
    issue(0, filler=["\n".join("s_lshr_b32 s%d, s%d, %d" % (TB[k], sTAG, 8*k) for k in range(4)),
          "v_mov_b64 v[4:5], 0\nv_mov_b64 v[6:7], 0\nv_add_u32 v8, %d, v254\nv_add_u32 v9, %d, v1" % (IMG, IMG + 8192),
          "ds_write_b128 v8, v[4:7]\nds_write_b128 v8, v[4:7] offset:4096\nds_write_b128 v9, v[4:7]"])
    a("s_mov_b32 s%d, %d\ns_waitcnt vmcnt(10)\ns_cmp_eq_u32 s%d, 3\ns_cbranch_scc1 L_chk" % (sSpin, SPIN, lw))
    bar(8)
    a("s_cmp_eq_u32 s%d, 0\ns_cbranch_scc1 L_chkok" % lw)
    a.label("L_chk")
    for k in range(4): a("v_xor_b32 v%d, s%d, v%d" % (32 + k, sTAG, 24 + k))
    a("v_or_b32 v3, v32, v34\nv_or_b32 v4, v33, v35\nv_and_b32 v3, s%d, v3\nv_and_b32 v4, s%d, v4\nv_or_b32 v3, v3, v4\nv_cmp_ne_u32 vcc, 0, v3\ns_cbranch_vccz L_chkw" % (sT2, sT3))
    a("s_sleep 8\nbuffer_load_dwordx4 v[24:27], v1, %s, s%d offen sc1\ns_waitcnt vmcnt(0)\ns_sub_u32 s%d, s%d, 1\ns_cbranch_scc0 L_chk" % (S(S_WS), sT1, sSpin, sSpin))
    a.label("L_chkw")
    a("s_cmp_eq_u32 s%d, 3\ns_cbranch_scc1 L_chk3" % lw)
    a("s_lshl_b32 s3, s%d, 8\ns_add_u32 s3, s3, %d\nv_lshl_add_u32 v3, v0, 2, s3\nds_write2st64_b32 v3, v24, v26 offset0:0 offset1:2\ns_branch L_chkok" % (lw, STATL - 256))
    a.label("L_chk3")
    a("s_getreg_b32 s3, hwreg(HW_REG_XCC_ID, 0, 4)\nv_xor_b32 v3, s3, v32")
    for k in range(1, 4): a("v_bitop3_b32 v3, v3, v%d, s3 bitop3:0xf6" % (32 + k))
    a("v_cmp_ne_u32 vcc, 0, v3\ns_and_b32 s3, s2, 7\ns_lshl_b32 s3, s3, 3\ns_lshr_b64 vcc, vcc, s3\ns_and_b32 s3, vcc_lo, 0xff\ns_cselect_b32 s3, 0, 1")
    a("v_mov_b32 v3, %d\nv_mov_b32 v4, s3\nds_write_b32 v3, v4\ns_barrier\ns_branch L_chkok" % FASTL)
    a.label("L_chkok")
    csloads()
    n1 = OPT["n1"]
    for s in range(n1): loadB(s, True)
    a("s_waitcnt vmcnt(%d) lgkmcnt(0)" % (5 * n1 + 3))
    bar(9)
    a("v_mov_b32 v6, %d\nds_read_b32 v6, v6\ns_mov_b32 s%d, %d\ns_waitcnt vmcnt(%d)" % (FASTL, sSpin, SPIN, 5 * n1))
    a.label("L_cchk")
    tagchk(3, list(range(36, 48)))
    a("s_cbranch_vccz L_cchkok\ns_sleep 8")
    csloads()
    a("s_waitcnt vmcnt(0)\ns_sub_u32 s%d, s%d, 1\ns_cbranch_scc0 L_cchk" % (sSpin, sSpin))
    a.label("L_cchkok")
    a("v_pk_add_f32 v[36:37], v[36:37], v[40:41]\nv_pk_add_f32 v[38:39], v[38:39], v[42:43]\ns_mov_b32 exec_hi, 0\nv_pk_add_f32 v[36:37], v[36:37], v[44:45]\nv_pk_add_f32 v[38:39], v[38:39], v[46:47]\ns_mov_b64 exec, -1")
    for op in ("v_permlane16_swap_b32", "v_permlane32_swap_b32"):
        a("v_mov_b64 v[40:41], v[36:37]\nv_mov_b64 v[42:43], v[38:39]\ns_nop 1")
        for k in range(4): a("%s v%d, v%d" % (op, 36 + k, 40 + k))
        a("s_nop 0\nv_pk_add_f32 v[36:37], v[36:37], v[40:41]\nv_pk_add_f32 v[38:39], v[38:39], v[42:43]")
    a("ds_write_b128 v29, v[36:39]")
    stamp(4)
    nb = min(5, n1 + OPT["n2"])
    for s in range(n1, nb): loadB(s, True)
    a("s_mul_i32 s%d, s%d, %d\ns_add_u32 s%d, s%d, 0x%x\ns_waitcnt lgkmcnt(0)\nv_readfirstlane_b32 s%d, v6" % (sH, sJJ, KVP_STRIDE, sH, sH, RED_OFF, sFAST))
    stamp(5)
    a("s_barrier")
    if OPT["lp"]: a("s_setprio 0")
    stamp(6)
    for s in range(nb, 5): loadB(s, True)
    for s in range(OPT["kvd"]): dmaB(s)
    if OPT["touch"]:
        a("s_and_b32 s3, s%d, 3\ns_mul_i32 s3, s3, 60\nv_min_u32 v4, 59, v0\nv_add_u32 v4, s3, v4\nv_mul_u32_u24 v5, 1639, v4\nv_lshrrev_b32 v5, 16, v5\nv_mul_u32_u24 v6, 40, v5\nv_sub_u32 v4, v4, v6" % sRT)
        a("v_mul_u32_u24 v6, 40960, v5\nv_lshl_add_u32 v4, v4, 7, v6")
        a("s_add_u32 s3, s%d, %d\nv_mov_b32 v6, s3\ns_sub_u32 s3, s%d, 40960\nv_mov_b32 v7, s3\nv_cmp_le_u32 vcc, 2, v5\ns_sub_u32 s3, s%d, %d\nv_mov_b32 v8, s3\nv_cndmask_b32 v6, v6, v7, vcc" % (sBo0, 6*40960, sBo1, sBo2, 5*40960))
        a("v_cmp_eq_u32 vcc, 5, v5\ns_nop 1\nv_cndmask_b32 v6, v6, v8, vcc\nv_add_u32 v4, v4, v6\nbuffer_load_dword v24, v4, %s, 0 offen sc1" % S(S_WS))
    a("s_lshl_b32 s%d, s%d, 9\ns_add_u32 s%d, s%d, 0x%x\ns_lshl_b32 s3, s%d, 2\ns_add_u32 s%d, s%d, s3\ns_lshl_b32 s3, s%d, 2\ns_add_u32 s%d, s%d, s3" % (sORD+1, sRT, sORD+1, sORD+1, FH, sK0, sORD, sORD+1, sK1, sORD+1, sORD+1))
    for k in range(4): step_off(4 + k, True, (sAo0, sAo1, sAo2), 4096, sLA + k)
    paddr(249, 250, 251)
    a("s_mul_i32 s3, s%d, 10240\ns_add_u32 s3, s3, %d\nv_add_u32 v250, s3, v249\ns_mul_i32 s3, s%d, %d\ns_add_u32 s3, s3, 20480\nv_add_u32 v249, s3, v249" % (sM, 4*EBS, sM, EBS))
    a("s_cmp_lg_u32 s%d, 0\ns_cbranch_scc1 L_lq1" % sTY)
    a("s_lshl_b32 s%d, s%d, 4\ns_mul_i32 s%d, s%d, %d\ns_add_u32 s%d, s%d, 0x%x\ns_mul_i32 s3, s%d, %d\ns_add_u32 s%d, s%d, s3\nv_mov_b32 v3, 0xff" % (sT2, sJJ, sT2, sT2, KVP_STRIDE, sT2, sT2, KVP_OFF, sRB, KVP_STRIDE, sT1, sT2))
    a("s_lshl_b32 s%d, s%d, 2\ns_add_u32 s%d, s%d, s%d\ns_lshl_b32 s3, s%d, 7\ns_add_u32 s%d, s%d, s3\ns_add_u32 s%d, s%d, s3\ns_add_u32 s%d, s%d, %d" % (sA, sRB, sA, sA, lw, sA, sT2, sT2, sH, sH, sT3, sT2, 8*KVP_STRIDE))
    a("s_cmp_eq_u32 s%d, 52\ns_cselect_b32 s3, 3, 7\nv_and_b32 v21, s3, v0\nv_lshlrev_b32 v21, 4, v21\nv_lshrrev_b32 v20, 3, v0\nv_mul_u32_u24 v20, %d, v20\nv_add_u32 v20, v20, v21" % (sA, KVP_STRIDE))
    stamp(1, 1)
    a("s_setprio 2")
    lds_wait(LF_XK, None, 4, 4)
    stamp(7); stamp(3, 1)
    a("ds_read_b128 v[4:7], v252\nds_read_b128 v[8:11], v252 offset:16384\nds_read_b128 v[12:15], v253\nds_read_b128 v[16:19], v253 offset:16384")
    a("s_waitcnt lgkmcnt(2)\nv_pk_add_f32 v[4:5], v[4:5], v[8:9]\nv_pk_add_f32 v[6:7], v[6:7], v[10:11]")
    for k in range(4): a("v_bfi_b32 v%d, v3, s%d, v%d" % (4 + k, TB[k], 4 + k))
    a("buffer_store_dwordx4 v[4:7], v254, %s, s%d offen sc1" % (S(S_WS), sT1))
    a("s_waitcnt lgkmcnt(0)\nv_pk_add_f32 v[12:13], v[12:13], v[16:17]\nv_pk_add_f32 v[14:15], v[14:15], v[18:19]")
    for k in range(4): a("v_bfi_b32 v%d, v3, s%d, v%d" % (12 + k, TB[k], 12 + k))
    a("buffer_store_dwordx4 v[12:15], v255, %s, s%d offen sc1" % (S(S_WS), sT1))
    for s in range(OPT["kvd"], 6): dmaB(s)
    a("s_waitcnt vmcnt(%d)" % (2 if OPT["kvd"] == 6 else 0))
    lds_signal(LF_B, lw, 22)
    stamp(4, 1)
    a("s_cmp_gt_u32 s%d, 52\ns_cbranch_scc1 L_nored\ns_mov_b32 s%d, %d\ns_waitcnt vmcnt(0)" % (sA, sSpin, SPIN))
    a.label("L_red")
    a("buffer_load_dwordx4 v[4:7], v20, %s, s%d offen sc1\nbuffer_load_dwordx4 v[8:11], v20, %s, s%d offen sc1\ns_waitcnt vmcnt(0)" % (S(S_WS), sT2, S(S_WS), sT3))
    tagchk(12, list(range(4, 12)))
    a("s_cbranch_vccz L_redok\ns_sleep 1\ns_sub_u32 s%d, s%d, 1\ns_cbranch_scc0 L_red" % (sSpin, sSpin))
    a.label("L_redok")
    stamp(5, 1)
    a("v_pk_add_f32 v[4:5], v[4:5], v[8:9]\nv_pk_add_f32 v[6:7], v[6:7], v[10:11]\ns_nop 1")
    for k in range(4): a("v_add_f32_dpp v%d, v%d, v%d row_ror:8 row_mask:0xf bank_mask:0xf" % (4 + k, 4 + k, 4 + k))
    for op in ("v_permlane16_swap_b32", "v_permlane32_swap_b32"):
        a("v_mov_b64 v[8:9], v[4:5]\nv_mov_b64 v[10:11], v[6:7]\ns_nop 1")
        for k in range(4): a("%s v%d, v%d" % (op, 4 + k, 8 + k))
        a("s_nop 0\nv_pk_add_f32 v[4:5], v[4:5], v[8:9]\nv_pk_add_f32 v[6:7], v[6:7], v[10:11]")
    for k in range(4): a("v_bfi_b32 v%d, v3, s%d, v%d" % (4 + k, TB[k], 4 + k))
    a("s_mov_b64 exec, 0xff\nbuffer_store_dwordx4 v[4:7], v21, %s, s%d offen sc1\ns_mov_b64 exec, -1" % (S(S_WS), sH))
    a.label("L_nored")
    a("s_setprio 0\ns_branch L_la")
    a.label("L_lq1")
    for s in range(OPT["kvd"], 6): dmaB(s)
    a("s_lshr_b32 s%d, s%d, 1\ns_and_b32 s%d, s%d, 1" % (sA, lw, sP, lw))
    a2_soff(sT2, sA, lambda: a("s_lshl_b32 s3, s%d, 1\ns_add_u32 s3, s3, s%d\ns_add_u32 s3, s3, 48" % (sJJ, sP)))
    a2_soff(sT3, sA, lambda: a("s_lshr_b32 s3, s%d, 1\ns_add_u32 s3, s3, 64" % sJJ))
    a("s_lshl_b32 s3, s%d, 1\ns_add_u32 s3, s3, s%d\ns_and_b32 s3, s3, 3\ns_lshl_b32 s3, s3, 8\ns_add_u32 s%d, s%d, s3" % (sJJ, sP, sT3, sT3))
    a("v_cndmask_b32 v255, v254, v255, s[%d:%d]" % (sEX, sEX+1))
    stamp(1, 1)
    a("s_waitcnt vmcnt(0)")
    lds_signal(LF_B, lw, 22)
    a.label("L_la")
    stamp(8); stamp(6, 1)
    g2_flagoff(3, KS_L)
    poll(3, sORD, 4, 248, "hl")
    stamp(9); stamp(7, 1); stamp(1, 2)
    for s in range(4): loadA(s, True)
    for s in range(4):
        a("s_waitcnt vmcnt(%d)" % (12 - 4*s))
        g2_step(s, True)
    stamp(8, 1)
    a("s_cmp_eq_u32 s%d, 0\ns_cbranch_scc1 L_lo" % sTY)
    PQ = 224; W32 = 84; W16 = 98; O = 108; AD = 156
    a("s_setprio 2")
    a("buffer_load_dwordx4 v[184:187], v254, %s, s%d offen sc1\nbuffer_load_dwordx4 v[188:191], v255, %s, s%d offen sc1" % (S(S_WS), sH, S(S_WS), sH))
    a("v_and_b32 v194, 15, v0\nv_lshrrev_b32 v193, 4, v0\ns_mul_i32 s3, s%d, 4608\ns_add_u32 s3, s3, %d" % (sP, IMG))
    a("v_lshl_add_u32 v195, v194, 2, v193\nv_lshl_add_u32 v%d, v195, 3, s3\nv_lshl_add_u32 v%d, v195, 4, s3" % (AD+1, AD))
    a("v_and_b32 v196, 3, v194\nv_min_u32 v196, 1, v196\nv_cmp_eq_u32 vcc, 2, v194\nv_lshlrev_b32 v194, 4, v194\nv_lshl_add_u32 v%d, v193, 3, v194\nv_cndmask_b32 v196, v196, 0, vcc" % (AD+4))
    a("v_add_u32 v196, 40, v196\nv_lshl_add_u32 v196, v196, 2, v193\nv_lshl_add_u32 v%d, v196, 3, s3\nv_lshl_add_u32 v%d, v196, 4, s3\nv_mov_b32 v%d, 0x358637bd" % (AD+3, AD+2, AD+5))
    lds_wait(LF_PQ, lw, 1, 198)
    a("s_mul_i32 s3, s%d, 6144\ns_add_u32 s3, s3, %d\nv_add_u32 v198, s3, v1\nv_lshl_add_u32 v199, v0, 3, s3" % (lw, PQL))
    for i in range(4): a("ds_read_b128 %s, v198 offset:%d\nds_read_b64 %s, v199 offset:%d" % (R4(PQ + 6*i), 1024*i, R2(PQ + 6*i + 4), 4096 + 512*i))
    a("s_mov_b32 s%d, %d" % (sSpin, SPIN))
    a.label("L_gather")
    a("s_waitcnt vmcnt(0)")
    tagchk(192, list(range(184, 192)))
    a("s_cbranch_vccz L_gatherok\ns_sleep %d" % OPT["slp"])
    a("buffer_load_dwordx4 v[184:187], v254, %s, s%d offen sc1\nbuffer_load_dwordx4 v[188:191], v255, %s, s%d offen sc1" % (S(S_WS), sH, S(S_WS), sH))
    a("s_sub_u32 s%d, s%d, 1\ns_cbranch_scc0 L_gather\ns_waitcnt vmcnt(0)" % (sSpin, sSpin))
    a.label("L_gatherok")
    stamp(7); stamp(2, 1)
    for k in range(4): a("v_cvt_pk_bf16_f32 v%d, v%d, v%d" % (184 + k, 184 + 2*k, 185 + 2*k))
    a("ds_write_b64 v252, v[184:185]\nds_write_b64 v253, v[186:187]\ns_waitcnt lgkmcnt(0)")
    lds_signal(LF_IMG, None, 200)
    lds_wait(LF_IMG, None, 4, 200, 0)
    stamp(3, 1)
    for to in range(3): a("ds_read_b128 %s, v%d offset:%d" % (R4(W32 + 4*to), AD, 1024*to))
    a("ds_read_b128 %s, v%d" % (R4(W32 + 12), AD+2))
    for to in range(1, 3): a("ds_read_b64 %s, v%d offset:%d" % (R2(W16 + 2*to), AD+1, 3072 + 512*to))
    a("ds_read_b64 %s, v%d offset:3072\ns_waitcnt lgkmcnt(0)" % (R2(W16 + 6), AD+3))
    def Oreg(i, to): return (O + 16*i if i < 3 else 184) + 4*to
    for i in range(4):
        for to in range(4): a("v_mfma_f32_16x16x32_bf16 %s, %s, %s, 0" % (R4(Oreg(i, to)), R4(W32 + 4*to), R4(PQ + 6*i)))
    for i in range(4):
        for to in (3, 1, 2): a("v_mfma_f32_16x16x16_bf16 %s, %s, %s, %s" % (R4(Oreg(i, to)), R2(W16 + 2*to), R2(PQ + 6*i + 4), R4(Oreg(i, to))))
    for i in range(4):
        d = Oreg(i, 3)
        for j in range(3): a("v_add_f32 v%d, v%d, v%d" % (d + j, d + j, AD+5))
        for j in range(3): a("v_rcp_f32 v%d, v%d" % (d + j, d + j))
    for i in range(4):
        d = Oreg(i, 3)
        for to, sel in ((0, 0), (1, 2), (2, 1)):
            for q in range(2):
                x = Oreg(i, to) + 2*q
                a("v_pk_mul_f32 %s, %s, %s op_sel:[0,%d] op_sel_hi:[1,%d]" % (R2(x), R2(x), R2(d + (sel & 2)), sel & 1, sel & 1))
        for k in range(6): a("v_cvt_pk_bf16_f32 v%d, v%d, v%d" % (PQ + 6*i + k, Oreg(i, 0) + 2*k, Oreg(i, 0) + 2*k + 1))
        st_a2("buffer_store_dwordx4 %s, v1, %s, s%d offen offset:%d" % (R4(PQ + 6*i), S(S_WS), sT2, 1024*i))
    a("s_mov_b32 exec_hi, 0")
    st_a2(["buffer_store_dwordx2 %s, v%d, %s, s%d offen offset:%d" % (R2(PQ + 6*i + 4), AD+4, S(S_WS), sT3, 1024*i) for i in range(4)])
    a("s_mov_b64 exec, -1")
    stamp(4, 1)
    ks_flag(sT2, sA, 0, 200)
    stamp(5, 1)
    a("s_setprio 0")
    a.label("L_lo")
    for s in range(5, 9): loadB(s, True)
    a("v_lshlrev_b32 v3, 2, v0")
    AO = [184, 204, 224, 184]
    stamp(9, 1)
    poll(3, sORD + 1, 4, 248, "o")
    stamp(10); stamp(10, 1); stamp(6, 2)
    so = [sLA, sLA + 1, sLA + 2, sLA + 3, sAo2]
    def ldo(i):
        for s in range(5): a("buffer_load_dwordx4 %s, v1, %s, s%d offen offset:%d%s" % (R4(AO[i] + 4*s), S(S_WS), so[s], 1024*i, ALD))
    ldo(0); ldo(1); ldo(2)
    pend = []
    for i in range(4):
        k = 0
        stamp(7 + i, 2)
        for s in range(5):
            later = {0: 10, 1: 10, 2: 5, 3: 0}[i]
            a("s_waitcnt vmcnt(%d)" % (later + 4 - s))
            for t in range(5):
                g2_mfma(G_ACC + (i*5 + t) * 4, Breg(4 + s, True) + 4*t, AO[i] + 4*s, False)
                k += 1
                if pend and k >= 4: a(pend.pop(0))
            if i > 0 and s == 2: a("s_waitcnt lgkmcnt(0)\ns_barrier")
        if i == 0:
            ldo(3)
            a("s_barrier")
        pend = ["ds_write_b128 v%d, %s offset:%d" % (249 + (i >> 1), R4(G_ACC + (i*5 + t)*4), 5120*(i & 1) + 64*t) for t in range(5)]
    a("s_nop 3")
    for x in pend: a(x)
    stamp(11); stamp(11, 1); stamp(11, 2)
    a("s_waitcnt lgkmcnt(0)\ns_barrier")
    stamp(12)
    a("s_branch L_alldone")

ACC = 8; F0 = 120; F1 = 164
vA0, vA1, vS, vS2, vH = 208, 209, 210, 211, 212
vB1 = 216
def acc(i, t): return ACC + (i * 7 + t) * 4

def compute_prologue():
    sQ, sU, sUe, sJ0, sJ1, sJ2, sCd = sLA, sLP, sH, sLP4, sLH, sA, sP
    a("s_lshr_b32 s%d, s%d, 1\ns_and_b32 s%d, s%d, 1" % (sM, sWV, sN, sWV))
    a("s_lshl_b32 s3, s%d, 3\ns_add_u32 s3, s3, s%d\ns_lshl_b32 s3, s3, 2\ns_add_u32 s3, s3, s%d\ns_lshl_b32 s3, s3, 1\ns_lshl_b32 s%d, s%d, 7\ns_add_u32 s3, s3, s%d" % (sTY, sJJ, sWV, sT1, sRB, sT1))
    a("s_mul_i32 s%d, s3, 1280\ns_lshl_b32 s%d, s3, 4\ns_add_u32 s%d, s%d, 0x%x" % (sT1, sT2, sT2, sT2, STAT_OFF))
    a("v_lshrrev_b32 v5, 5, v0\nv_and_b32 v6, 31, v0\nv_mul_u32_u24 v7, 1280, v5\nv_lshl_add_u32 v224, v6, 4, v7\nv_lshl_add_u32 v225, v6, 3, v7")
    a("s_lshl_b32 s%d, s%d, 7\ns_lshl_b32 s3, s%d, 3\ns_add_u32 s%d, s%d, s3\ns_add_u32 s%d, s%d, s%d" % (sQ, sWV, sRB, sQ, sQ, sQ, sQ, sJJ))
    a("s_mov_b32 s%d, s%d\ns_movk_i32 s%d, %d" % (sU, sQ, sUe, NQU))
    a("s_add_u32 s3, s%d, %d\ns_add_u32 s%d, s3, 1\ns_min_u32 s%d, s%d, 680\ns_cmp_eq_u32 s%d, 0\ns_cselect_b32 s%d, s3, s%d\ns_cselect_b32 s%d, s%d, s%d" % (sQ, NQU, sK0, sK0, sK0, sTY, sU, sU, sUe, sK0, sUe))
    if OPT["nojob"]: a("s_mov_b32 s%d, 0" % sUe)
    a("v_lshrrev_b32 v2, 3, v0\nv_and_b32 v4, 7, v0\nv_and_b32 v7, 6, v2\nv_xor_b32 v7, v4, v7\nv_lshlrev_b32 v4, 4, v7\nv_and_b32 v6, 3, v2")
    a("s_lshl_b32 s3, s%d, 13\ns_add_u32 m0, s3, %d\ns_mov_b32 s%d, 0x20000\ns_mov_b32 s%d, s%d" % (sWV, JOBL, S_J+3, sK0, sU))
    a("s_mov_b32 s%d, 0x%x\ns_mov_b32 s%d, 0x20000\ns_waitcnt lgkmcnt(0)\ns_mov_b32 s%d, s36\ns_mov_b32 s%d, s37" % (S_X+2, 2048*1280, S_X+3, S_X, S_X+1))
    XL = 124; U = 136
    a("buffer_load_dwordx4 %s, v224, %s, s%d offen\nbuffer_load_dwordx4 %s, v224, %s, s%d offen offset:512\nbuffer_load_dwordx2 %s, v225, %s, s%d offen offset:1024" % (R4(XL), S(S_X), sT1, R4(XL+4), S(S_X), sT1, R2(XL+8), S(S_X), sT1))
    a("s_add_u32 s%d, s56, 0x%x\ns_addc_u32 s%d, s57, 0\ns_load_dword s%d, s[%d:%d], 0" % (sEX, EPOCH, sEX+1, sTAG, sEX, sEX+1))
    a.label("L_jrl")
    a("s_cmp_ge_u32 s%d, s%d\ns_cbranch_scc1 L_nojob1" % (sK0, sUe))
    a("s_mul_i32 s3, s%d, 6554\ns_lshr_b32 s%d, s3, 16\ns_mul_i32 s3, s%d, 10\ns_sub_u32 s%d, s%d, s3" % (sK0, sK1, sK1, sT3, sK0))
    a("s_cmp_lt_u32 s%d, 48\ns_cselect_b32 s%d, s48, s40\ns_cselect_b32 s%d, s49, s41\ns_mov_b32 s%d, %d\ns_cselect_b32 s%d, %d, s%d" % (sK1, S_J, S_J+1, S_J+2, 640*1280, S_J+2, 1536*1280, S_J+2))
    a("s_lshl_b32 s%d, s%d, 5\ns_mul_i32 s3, s%d, 40\ns_sub_u32 s3, s3, %d\ns_cmp_lt_u32 s%d, 48\ns_cselect_b32 s%d, s%d, s3" % (sJ0, sK1, sK1, 48*40, sK1, sJ0, sJ0))
    a("s_mul_i32 s3, s%d, 160\ns_sub_u32 s3, s3, %d\ns_cmp_lt_u32 s%d, 64\ns_cselect_b32 s%d, s%d, s3\ns_cselect_b32 s%d, 4, 40\ns_cselect_b32 s%d, 16, 4" % (sK1, 64*160 - 32, sK1, sJ0, sJ0, sJ1, sJ2))
    a("v_mad_u32_u24 v7, s%d, v5, v6\nv_mul_u32_u24 v7, 1280, v7\nv_add_u32 v3, v4, v7" % sJ1)
    a("s_mul_i32 s%d, s%d, 1280\ns_lshl_b32 s3, s%d, 7\ns_add_u32 s%d, s%d, s3\ns_mul_i32 s%d, s%d, 2560\ns_mul_i32 s%d, s%d, 1280" % (sJ0, sJ0, sT3, sJ0, sJ0, sJ1, sJ1, sJ2, sJ2))
    a("s_add_u32 s3, s%d, s%d\nbuffer_load_dwordx4 v3, %s, s%d offen lds" % (sJ0, sJ1, S(S_J), sJ0))
    a("s_add_u32 m0, m0, 0x400\ns_add_u32 s%d, s%d, s%d\nbuffer_load_dwordx4 v3, %s, s3 offen lds" % (sJ0, sJ0, sJ2, S(S_J)))
    a("s_add_u32 m0, m0, 0x400\ns_add_u32 s3, s%d, s%d\nbuffer_load_dwordx4 v3, %s, s%d offen lds" % (sJ0, sJ1, S(S_J), sJ0))
    a("s_add_u32 m0, m0, 0x400\ns_add_u32 s%d, s%d, 512\nbuffer_load_dwordx4 v3, %s, s3 offen lds" % (sK0, sK0, S(S_J)))
    a("s_add_u32 m0, m0, 0x400\ns_branch L_jrl")
    a.label("L_nojob1")
    srd(S_B1, 46, 3072); srd(S_WS, 56, WS_SIZE); srd(S_OUT, 52, 2048*1280); srd(S_B2, 50, 1280)
    a("v_and_b32 v2, 15, v0\nv_lshrrev_b32 v3, 4, v0\nv_lshrrev_b32 v4, 1, v2\nv_xor_b32 v4, v4, v3\nv_lshlrev_b32 v4, 4, v4\nv_lshl_add_u32 v4, v2, 7, v4\nv_lshlrev_b32 v1, 3, v3")
    a("s_lshl_b32 s3, s%d, 13\nv_add_u32 v%d, s3, v4\nv_xor_b32 v%d, 64, v%d" % (sM, vA0, vA1, vA0))
    a("v_lshlrev_b32 v226, 2, v2\nv_add_u32 v226, %d, v226" % LFLAG)
    a("v_lshrrev_b32 v2, 2, v0\nv_and_b32 v3, 3, v0\nv_mul_u32_u24 v4, 160, v2\ns_mul_i32 s3, s%d, 80\nv_add_u32 v4, s3, v4\nv_lshl_add_u32 v%d, v3, 3, v4" % (sN, vS))
    a("v_and_b32 v5, 1, v3\nv_lshl_add_u32 v4, v5, 3, v4\nv_add_u32 v4, %d, v4" % (K_OFF + 64))
    a("s_cmp_eq_u32 s%d, 0\ns_cselect_b32 s3, %d, 0\nv_lshrrev_b32 v5, 1, v3\nv_mad_u32_u24 v%d, v5, s3, v4" % (sTY, V_OFF - K_OFF - 64, vS2))
    a("v_lshlrev_b32 v4, 7, v2\nv_lshl_add_u32 v4, v3, 3, v4\nv_bfe_u32 v5, v0, 3, 2\nv_lshl_add_u32 v4, v5, 5, v4")
    a("s_lshl_b32 s3, s%d, 13\ns_add_u32 s3, s3, %d\nv_add_u32 v200, s3, v4\nv_xor_b32 v201, 32, v200\nv_xor_b32 v202, 64, v200\nv_xor_b32 v203, 0x60, v200" % (sWV, JOBL))
    a("s_lshl_b32 s3, s%d, 6\ns_cmp_eq_u32 s%d, 0\ns_cselect_b32 s3, s3, 0\nv_xor_b32 v4, s3, v4" % (sN, sTY))
    a("s_lshl_b32 s3, s%d, 13\ns_add_u32 s3, s3, %d\ns_cmp_eq_u32 s%d, 0\ns_cselect_b32 s3, %d, s3" % (sN, HQ_OFF, sTY, HKV_OFF))
    for t in range(4): a("v_xor_b32 v5, %d, v4\nv_add_u32 v%d, s3, v5" % (32*t, vH + t))
    a("s_lshl_b32 s3, s%d, 6\ns_lshl_b32 s3, s3, s%d\ns_lshl_b32 s%d, s%d, 7\ns_add_u32 s3, s3, s%d\ns_mul_i32 s%d, s%d, 384\ns_add_u32 s%d, s3, s%d" % (sN, sTY, sIncP, sTY, sIncP, sIncP, sJJ, sIncP, sIncP))
    for t in range(4): a("buffer_load_dwordx2 %s, v1, %s, s%d offen offset:%d" % (R2(vB1 + 2*t), S(S_B1), sIncP, 32*t))
    for r in range(ACC, ACC + 112, 2): a("v_mov_b64 %s, 0" % R2(r))
    a("s_waitcnt lgkmcnt(0)\ns_and_b32 s3, s%d, 0x7f7f7f7f\ns_add_u32 s3, s3, 0x35251513\ns_and_b32 s%d, s%d, 0x80808080\ns_xor_b32 s%d, s%d, s3" % (sTAG, sTAG, sTAG, sTAG, sTAG))
    a("v_mov_b32 v6, 0\nv_mov_b32 v7, s%d\nds_write2_b32 v226, v6, v7 offset0:0 offset1:16" % sTAG)
    stamp(1)
    def allreduce32(v, t):
        for ctl in ("quad_perm:[1,0,3,2]", "quad_perm:[2,3,0,1]", "row_half_mirror", "row_mirror"):
            a("s_nop 1\nv_add_f32_dpp v%d, v%d, v%d %s row_mask:0xf bank_mask:0xf" % (v, v, v, ctl))
        a("v_mov_b32 v%d, v%d\ns_nop 1\nv_permlane16_swap_b32 v%d, v%d\ns_nop 1\nv_add_f32 v%d, v%d, v%d" % (t, v, v, t, v, v, t))
    a("s_cmp_lt_u32 s%d, s%d\ns_cbranch_scc1 L_w4\ns_waitcnt vmcnt(4)" % (sU, sUe))
    a.label("L_w4"); a("s_waitcnt vmcnt(8)")
    for i in range(10): unpack(U + 2*i, XL + i)
    a("v_pk_add_f32 v[2:3], %s, %s\nv_pk_add_f32 v[4:5], %s, %s" % (R2(U), R2(U + 2), R2(U + 4), R2(U + 6)))
    for i in range(4, 10): a("v_pk_add_f32 %s, %s, %s" % (R2(2 + 2*(i & 1)), R2(2 + 2*(i & 1)), R2(U + 2*i)))
    a("v_pk_add_f32 v[2:3], v[2:3], v[4:5]\nv_add_f32 v2, v2, v3")
    allreduce32(2, 3)
    a("v_mul_f32 v2, 0x3acccccd, v2")
    for i in range(10): a("v_pk_add_f32 %s, %s, v[2:3] op_sel_hi:[1,0] neg_lo:[0,1] neg_hi:[0,1]" % (R2(U + 2*i), R2(U + 2*i)))
    a("v_pk_mul_f32 v[4:5], %s, %s\nv_pk_mul_f32 v[6:7], %s, %s" % (R2(U), R2(U), R2(U + 2), R2(U + 2)))
    for i in range(2, 10): a("v_pk_fma_f32 %s, %s, %s, %s" % (R2(4 + 2*(i & 1)), R2(U + 2*i), R2(U + 2*i), R2(4 + 2*(i & 1))))
    a("v_pk_add_f32 v[4:5], v[4:5], v[6:7]\nv_add_f32 v4, v4, v5")
    allreduce32(4, 5)
    a("v_mul_f32 v4, 0x3acccccd, v4")
    bf16_round(4); a("v_add_f32 v4, 0x3727c5ac, v4"); bf16_round(4)
    a("v_sqrt_f32 v4, v4\ns_nop 0"); bf16_round(4); bf16_round(2)
    a("v_rcp_f32 v232, v4\nv_mov_b32 v233, s%d\nv_mov_b32 v235, s%d\nv_mul_f32 v234, v232, v2\nv_lshrrev_b32 v5, 1, v0" % (sTAG, sTAG))
    a("s_mov_b32 exec_lo, 1\ns_mov_b32 exec_hi, 1\nbuffer_store_dwordx4 v[232:235], v5, %s, s%d offen sc1\ns_mov_b64 exec, -1" % (S(S_WS), sT2))
    stamp(2)
    a("s_and_b32 s3, s2, 7\ns_cmp_lt_u32 s3, 5\ns_cselect_b32 s%d, 1, 0\ns_cbranch_scc0 L_nosel" % sA)
    a("s_lshl_b32 s3, s3, 1\ns_and_b32 s%d, s%d, 1\ns_add_u32 s3, s3, s%d\ns_lshl_b32 s%d, s%d, 3\ns_add_u32 s%d, s%d, s%d\ns_mul_i32 s%d, s%d, 10\ns_add_u32 s3, s3, s%d\ns_lshl_b32 s3, s3, 10\ns_mul_i32 s%d, s%d, 448\ns_add_u32 s3, s3, s%d\ns_lshl_b32 s%d, s%d, 8\ns_add_u32 s3, s3, s%d\ns_add_u32 s%d, s3, 0x%x" % (sA, sRB, sA, sA, sTY, sA, sA, sJJ, sA, sA, sA, sA, sN, sA, sA, sM, sA, sA, CSP_OFF))
    a("v_and_b32 v6, 15, v0\nv_mov_b32 v7, 0x3f803f80\nv_and_b32 v4, 48, v0\nv_lshl_add_u32 v4, v6, 6, v4\nv_mov_b32 v5, 0xff")
    for t in range(4):
        a("v_cmp_eq_u32 vcc, %d, v6\ns_lshr_b32 s%d, s%d, %d\ns_nop 0\nv_cndmask_b32 v%d, 0, v7, vcc\nv_cndmask_b32 v%d, 0, v7, vcc\nv_mov_b64 %s, %s" % (t, TB[t], sTAG, 8*t, 236 + 4*t, 237 + 4*t, R2(238 + 4*t), R2(236 + 4*t)))
    a.label("L_nosel")
    FR = 120
    a("v_lshlrev_b32 v1, 4, v0")
    for r in range(QPER):
        a("s_cmp_ge_u32 s%d, s%d\ns_cbranch_scc1 L_nojob2" % (sU, sUe))
        if r == 0: a("s_waitcnt vmcnt(5)")
        for t in range(4): a("ds_read_b64_tr_b16 %s, v%d offset:%d\nds_read_b64_tr_b16 %s, v%d offset:%d" % (R2(FR + 16*r + 4*t), 200 + t, 4096*r, R2(FR + 16*r + 2 + 4*t), 200 + t, 4096*r + 2048))
        a("s_lshl_b32 s3, s%d, 12\ns_add_u32 s3, s3, 0x%x\ns_add_u32 s%d, s%d, 512\ns_waitcnt lgkmcnt(0)" % (sU, B2_OFF, sU, sU))
        for t in range(4): a("buffer_store_dwordx4 %s, v1, %s, s3 offen offset:%d sc1" % (R4(FR + 16*r + 4*t), S(S_WS), 1024*t))
    a.label("L_nojob2")

def frag_reads(ty, F, ks2):
    r = []
    for i in range(4): r.append("ds_read_b128 %s, v%d offset:%d" % (R4(F + 4*i), vA1 if ks2 else vA0, 2048*i))
    nseg = 5 if ty == 0 else 3
    for t in range(7):
        d = F + 16 + 4*t
        for rd in range(2):
            if t < nseg:
                if t == 2: reg, off = vS2, 0
                elif t < 2: reg, off = vS, K_OFF + 32*t
                else: reg, off = vS, V_OFF + 16 + 32*(t - 3)
                off += ks2 * 5120 + rd * 2560
            else: reg, off = vH + (t - nseg), ks2 * 4096 + rd * 2048
            r.append("ds_read_b64_tr_b16 %s, v%d offset:%d" % (R2(d + 2*rd), reg, off))
    return r
def transposed(ty, t): return ty == 1 or t >= 5
def mfmas(ty, F, order=None):
    r = []
    for (t, i) in (order or [(t, i) for t in range(7) for i in range(4)]):
        B = R4(F + 16 + 4*t); A = R4(F + 4*i); D = R4(acc(i, t))
        r.append("v_mfma_f32_16x16x32_bf16 %s, %s, %s, %s" % ((D, B, A, D) if transposed(ty, t) else (D, A, B, D)))
    return r
def interleave(mm, rr):
    for k, x in enumerate(mm):
        a(x)
        if k < len(rr): a(rr[k])
def addr_regs(ty): return [vA0, vA1, vS, vS2] + [vH + t for t in range(2 if ty == 0 else 4)]

CT = 120; RS = 148; BF = 156; KC = 172; TMP = 176; T2P = 208; R4S = 224

def epi_reads(ty):
    a("v_and_b32 v4, 15, v0\nv_lshlrev_b32 v4, 2, v4\ns_lshl_b32 s3, s%d, 8\ns_add_u32 s3, s3, %d\nv_add_u32 v5, s3, v4" % (sM, STATL))
    a("v_and_b32 v6, 48, v0\nv_add_u32 v3, s3, v6\ns_mul_i32 s3, s%d, 448\ns_add_u32 s3, s3, %d\nv_add_u32 v6, s3, v6\nv_add_u32 v4, s3, v4\nv_mov_b32 v7, %d" % (sN, CSL, FASTL))
    if ty == 0:
        for i in range(4): a("ds_read_b128 %s, v3 offset:%d\nds_read_b128 %s, v3 offset:%d" % (R4(R4S + 4*i), 64*i, R4(R4S + 16 + 4*i), 512 + 64*i))
    for t in range(7):
        if transposed(ty, t): a("ds_read_b128 %s, v6 offset:%d" % (R4(CT + 4*t), 64*t))
        else: a("ds_read_b32 v%d, v4 offset:%d" % (CT + 4*t, 64*t))
    for i in range(4): a("ds_read2_b32 %s, v5 offset0:%d offset1:%d" % (R2(RS + 2*i), 16*i, 128 + 16*i))
    a("ds_read_b32 v7, v7\nv_lshlrev_b32 v1, 4, v0")
    if ty == 0: a2_soff(sT2, sM, lambda: a("s_mul_i32 s3, s%d, 6\ns_add_u32 s3, s3, s%d" % (sJJ, sN)))
    else:
        a2_soff(sT2, sM, lambda: a("s_mul_i32 s3, s%d, 6\ns_lshl_b32 s%d, s%d, 1\ns_add_u32 s3, s3, s%d\ns_add_u32 s3, s3, 2" % (sJJ, sT1, sN, sT1)))
        a("s_add_u32 s%d, s%d, 4096" % (sT3, sT2))

def main_loop(ty):
    a("s_mov_b32 s%d, 0\ns_mov_b32 s%d, 0\ns_waitcnt lgkmcnt(0)" % (sCnt, sSlot))
    stamp(3)
    a("s_barrier")
    stamp(4)
    for x in frag_reads(ty, F0, 0): a(x)
    a("s_cmp_eq_u32 s%d, 0\ns_cbranch_scc1 L_ent%d\ns_cmp_lg_u32 s%d, 0\ns_cbranch_scc1 L_cs1%d" % (sA, ty, sM, ty))
    rr = frag_reads(ty, F1, 1)[4:]
    for m in range(2):
        tl = list(range(4*m, min(7, 4*m + 4)))
        for t in tl: a(rr[2*t]); a(rr[2*t + 1])
        a("s_waitcnt lgkmcnt(%d)" % (2 * len(tl)))
        for k, t in enumerate(tl): a("v_mfma_f32_16x16x32_bf16 v[252:255], %s, %s, %s" % (R4(F0 + 16 + 4*t), R4(236 + 4*k), "0" if k == 0 else "v[252:255]"))
        a("s_waitcnt lgkmcnt(0)")
        for k, t in enumerate(tl): a("v_mfma_f32_16x16x32_bf16 v[252:255], %s, %s, v[252:255]" % (R4(F1 + 16 + 4*t), R4(236 + 4*k)))
        a("s_mov_b32 s3, 0x%x" % (0x000f000f if m == 0 else 0x00070007))
        if m == 0: a("s_branch L_cs2%d" % ty); a.label("L_cs1%d" % ty)
    a.label("L_cs2%d" % ty)
    a("s_nop 6")
    for k in range(4): a("v_bfi_b32 v%d, v5, s%d, v%d" % (252 + k, TB[k], 252 + k))
    a("s_mov_b32 exec_lo, s3\ns_mov_b32 exec_hi, s3\nbuffer_store_dwordx4 v[252:255], v4, %s, s%d offen sc1\ns_mov_b64 exec, -1" % (S(S_WS), sA))
    a.label("L_ent%d" % ty)
    a("s_waitcnt lgkmcnt(0)\ns_branch L_mid%d" % ty)
    align8()
    a.label("L_top%d" % ty)
    a("s_barrier\ns_nop 0")
    interleave(mfmas(ty, F1), frag_reads(ty, F0, 0))
    a("s_waitcnt vmcnt(0) lgkmcnt(0)\ns_nop 0")
    a.label("L_mid%d" % ty)
    upd = ["v_add_u32_e64 v%d, s%d, v%d" % (r, sT1, r) for r in addr_regs(ty)]
    sal = "s_add_u32 s%d, s%d, 1\ns_cmp_eq_u32 s%d, 3\ns_cselect_b32 s%d, 0, s%d\ns_mov_b32 s%d, %d\ns_cselect_b32 s%d, %d, s%d\ns_add_u32 s%d, s%d, 1" % (sSlot, sSlot, sSlot, sSlot, sSlot, sT1, SLOT, sT1, (-2*SLOT) & 0xffffffff, sT1, sCnt, sCnt)
    rr = frag_reads(ty, F1, 1)
    interleave(mfmas(ty, F0), rr + [sal] + upd)
    a("s_cmp_lt_u32 s%d, 10\ns_waitcnt lgkmcnt(0)\ns_cbranch_scc1 L_top%d" % (sCnt, ty))
    a("s_barrier")
    pre = capture(lambda: epi_reads(ty))
    c0 = -2.0 * 0.7978845608028654 * 1.4426950408889634; c1 = c0 * 0.044715
    k = 0
    order = [(t, i) for i in range(4) for t in range(5)] + [(t, i) for i in range(4) for t in (5, 6)] if ty == 0 else \
            [(t, i) for g in ((3, 4), (5, 6), (0, 1, 2)) for i in range(4) for t in g]
    for x in mfmas(ty, F1, order):
        a(x)
        for y in pre[k:k+2]: a(y)
        k += 2
    for y in pre[k:]: a(y)
    stamp(5); stamp(1, 1)
    if OPT["cprio"]: a("s_setprio %d" % OPT["cprio"])
    a("s_waitcnt vmcnt(0)")
    for k in range(4 if ty == 0 else 8): unpack(BF + 2*k, vB1 + k)
    a("v_mov_b32 v%d, 0x%x\nv_mov_b32 v%d, 0x%x\nv_mov_b32 v%d, 0x%x\nv_mov_b32 v%d, 0x%x" % (KC, f32(c1), KC+1, f32(c0), KC+2, f32(1.4426950408889634), KC+3, f32(1e-6)))
    a("s_waitcnt lgkmcnt(0)\nv_readfirstlane_b32 s%d, v7" % sFAST)

def gelu_block(i, t0, bt0, soff):
    align8()
    P = [(acc(i, t0 + q//2) + 2*(q % 2), CT + 4*(t0 + q//2) + 2*(q % 2), BF + 4*(bt0 + q//2) + 2*(q % 2), TMP + 2*q) for q in range(4)]
    rs = R2(RS + 2*i)
    for (h, c, b, u) in P: a("v_pk_fma_f32 %s, %s, %s, %s op_sel:[1,0,0] op_sel_hi:[1,1,1] neg_lo:[1,0,0] neg_hi:[1,0,0]" % (R2(u), rs, R2(c), R2(b)))
    for (h, c, b, u) in P: a("v_pk_fma_f32 %s, %s, %s, %s op_sel:[0,0,0] op_sel_hi:[0,1,1]" % (R2(h), rs, R2(h), R2(u)))
    for (h, c, b, u) in P: a("v_pk_mul_f32 %s, %s, %s" % (R2(u), R2(h), R2(h)))
    for (h, c, b, u) in P: a("v_pk_fma_f32 %s, %s, %s, %s op_sel:[0,0,1] op_sel_hi:[1,0,1]" % (R2(u), R2(u), R2(KC), R2(KC)))
    for (h, c, b, u) in P: a("v_pk_mul_f32 %s, %s, %s" % (R2(u), R2(u), R2(h)))
    for (h, c, b, u) in P: a("v_exp_f32 v%d, v%d\nv_exp_f32 v%d, v%d" % (u, u, u+1, u+1))
    for (h, c, b, u) in P: a("v_pk_add_f32 %s, %s, 1.0 op_sel_hi:[1,0]" % (R2(u), R2(u)))
    for (h, c, b, u) in P: a("v_rcp_f32 v%d, v%d\nv_rcp_f32 v%d, v%d" % (u, u, u+1, u+1))
    for (h, c, b, u) in P: a("v_pk_mul_f32 %s, %s, %s" % (R2(u), R2(u), R2(h)))
    o = acc(i, t0)
    for q, (h, c, b, u) in enumerate(P): a("v_cvt_pk_bf16_f32 v%d, v%d, v%d" % (o + q, u, u+1))
    st_a2("buffer_store_dwordx4 %s, v1, %s, s%d offen offset:%d" % (R4(o), S(S_WS), soff, 1024*i))

def phi_pairs(P):
    for (h, u) in P: a("v_pk_mul_f32 %s, %s, %s op_sel:[0,0] op_sel_hi:[1,0]" % (R2(u), R2(h), R2(KC + 2)))
    for (h, u) in P: a("v_exp_f32_e64 v%d, v%d clamp\nv_exp_f32_e64 v%d, v%d clamp" % (u, u, u+1, u+1))
    for (h, u) in P: a("v_max_f32 v%d, v%d, v%d\nv_max_f32 v%d, v%d, v%d" % (h, h, KC+3, h+1, h+1, KC+3))
    for (h, u) in P: a("v_pk_add_f32 %s, %s, %s" % (R2(h), R2(h), R2(u)))

def epilogue_kv():
    a("v_and_b32 v5, 8, v0\nv_cmp_eq_u32 vcc, 0, v5\nv_mov_b32 v6, 0\nv_mov_b32 v7, 0x3f803f80\nv_cndmask_b32 v5, v6, v%d, vcc\nv_mov_b32 v4, v5" % (KC + 3))
    a("s_lshl_b32 s3, s%d, 13\ns_add_u32 s3, s3, %d\nv_add_u32 v2, s3, v1" % (sWV, XK))
    prods = [(0,2),(0,3),(1,2),(1,3),(1,4),(2,2),(2,3),(2,4)]
    KD = [acc(1, t) for t in range(5)] + [216, 220, R4S]
    def kvm(ksr):
        return ["v_mfma_f32_16x16x32_bf16 %s, %s, %s, %s" % (R4(KD[k]), R4(acc(2*ksr, ti)), R4(T2P + 4*ksr) if tj == 2 else R4(acc(2*ksr, tj)), "0" if ksr == 0 else R4(KD[k])) for k, (ti, tj) in enumerate(prods)]
    for i in range(4):
        align8()
        def body():
            for t in range(5):
                for q in range(2):
                    u = TMP + 4*t + 2*q; rm = R2(R4S + 16 + 4*i + 2*q); c = R2(CT + 4*t)
                    if t < 2: a("v_pk_fma_f32 %s, %s, %s, %s op_sel:[0,0,1] op_sel_hi:[1,0,1] neg_lo:[1,0,0] neg_hi:[1,0,0]" % (R2(u), rm, c, R2(KC + 2)))
                    elif t == 2: a("v_pk_fma_f32 %s, %s, %s, v[4:5] op_sel:[0,0,0] op_sel_hi:[1,0,1] neg_lo:[1,0,0] neg_hi:[1,0,0]" % (R2(u), rm, c))
                    else: a("v_pk_mul_f32 %s, %s, %s op_sel:[0,0] op_sel_hi:[1,0] neg_lo:[1,0] neg_hi:[1,0]" % (R2(u), rm, c))
            for t in range(5):
                for q in range(2):
                    h = acc(i, t) + 2*q; u = TMP + 4*t + 2*q
                    a("v_pk_fma_f32 %s, %s, %s, %s" % (R2(h), R2(R4S + 4*i + 2*q), R2(h), R2(u)))
            a("v_cvt_pk_bf16_f32 v%d, v%d, v%d\nv_cvt_pk_bf16_f32 v%d, v%d, v%d" % (TMP+20, acc(i,2), acc(i,2)+1, TMP+21, acc(i,2)+2, acc(i,2)+3))
            phi_pairs([(acc(i, t) + 2*q, TMP + 4*t + 2*q) for t in range(3) for q in range(2)])
            e = 2 * (i >> 1); o = 2 * (i & 1)
            a("v_cndmask_b32 v%d, v%d, v7, vcc\nv_cndmask_b32 v%d, v%d, v7, vcc" % (T2P + 4*(i>>1) + o, TMP+20, T2P + 4*(i>>1) + o + 1, TMP+21))
            for t in (3, 4, 0, 1, 2):
                a("v_cvt_pk_bf16_f32 v%d, v%d, v%d\nv_cvt_pk_bf16_f32 v%d, v%d, v%d" % (acc(e,t)+o, acc(i,t), acc(i,t)+1, acc(e,t)+o+1, acc(i,t)+2, acc(i,t)+3))
        if i == 2:
            lines = capture(body); mm = kvm(0)
            for k, ln in enumerate(lines):
                a(ln)
                if k >= 28 and k % 2 == 1 and mm: a(mm.pop(0))
            assert not mm
        else: body()
    a("s_nop 1")
    for x in kvm(1): a(x)
    a("s_nop 0")
    for k in range(8): a("ds_write_b128 v2, %s offset:%d" % (R4(KD[k]), 1024 * k))
    stamp(2, 1)
    lds_addr(2, LF_XK, None)
    a("v_mov_b32 v3, 1\ns_mov_b64 exec, 1\ns_waitcnt lgkmcnt(0)\nds_add_u32 v2, v3\ns_mov_b64 exec, -1")
    stamp(7); stamp(3, 1)
    for i in range(4): gelu_block(i, 5, 0, sT2)
    g2_setup(False)
    stamp(4, 1)
    ks_flag(sT2, sM, 0, 6)

def epilogue_qh():
    PQ = 224
    def qpart(hook=None):
        for i in range(4):
            align8()
            rs = R2(RS + 2*i)
            P = [(acc(i, t) + 2*q, TMP + 4*t + 2*q, CT + 4*t + 2*q) for t in range(3) for q in range(2)]
            for (h, u, c) in P: a("v_pk_fma_f32 %s, %s, %s, %s op_sel:[1,0,1] op_sel_hi:[1,1,1] neg_lo:[1,0,0] neg_hi:[1,0,0]" % (R2(u), rs, R2(c), R2(KC + 2)))
            for (h, u, c) in P: a("v_pk_fma_f32 %s, %s, %s, %s op_sel:[0,0,0] op_sel_hi:[0,1,1]" % (R2(h), rs, R2(h), R2(u)))
            phi_pairs([(h, u) for (h, u, c) in P])
            for k, (h, u, c) in enumerate(P): a("v_cvt_pk_bf16_f32 v%d, v%d, v%d" % (PQ + 6*i + k, h, h + 1))
            if hook and i == 1: hook()
        a("s_mul_i32 s3, s%d, 6144\ns_add_u32 s3, s3, %d\nv_add_u32 v4, s3, v1\nv_lshl_add_u32 v5, v0, 3, s3" % (sWV, PQL))
        for i in range(4): a("ds_write_b128 v4, %s offset:%d\nds_write_b64 v5, %s offset:%d" % (R4(PQ + 6*i), 1024*i, R2(PQ + 6*i + 4), 4096 + 512*i))
    for i in range(4): gelu_block(i, 3, 0, sT2)
    stamp(2, 1)
    for i in range(4):
        gelu_block(i, 5, 2, sT3)
        if i == 1: ks_flag(sT2, sM, 2, 4)
    stamp(6); stamp(3, 1)
    qpart(lambda: ks_flag(sT3, sM, 0, 4))
    g2_setup(False)
    a("s_waitcnt lgkmcnt(0)"); lds_signal(LF_PQ, sWV, 4)
    stamp(7); stamp(4, 1)

def readB(s): return ["ds_read_b128 %s, v244 offset:%d" % (R4(Breg(s, False) + 4*t), 5120*s + 1024*t) for t in range(5)]

def gemm2_early():
    stamp(8); stamp(5, 1)
    if OPT["cprio"]: a("s_setprio 0")
    vm = VM()
    X0 = 124; vG, vR, vP = 246, 248, 254; XS = 212; B2F = 144
    a("s_lshl_b32 s%d, s%d, 9\ns_add_u32 s%d, s%d, 0x%x\ns_lshl_b32 s3, s%d, 2\ns_add_u32 s%d, s%d, s3" % (sT3, sRT, sT3, sT3, FH, sK0, sT3, sT3))
    g2_flagoff(3, KS_C)
    a("s_mov_b64 exec, 0xff\nbuffer_load_dword v245, v3, %s, s%d offen%s\ns_mov_b64 exec, -1" % (S(S_WS), sT3, PLD))
    lds_wait(LF_B, sWV, 1, 246)
    a("s_mul_i32 s3, s%d, %d\nv_add_u32 v244, s3, v1" % (sWV, EBS))
    for x in readB(0) + readB(1): a(x)
    a("s_mul_i32 s3, s%d, 40\nv_add_u32 v228, s3, v0\nv_mul_u32_u24 v229, 6554, v228\nv_lshrrev_b32 v229, 16, v229\nv_mul_u32_u24 v230, 10, v229\nv_sub_u32 v228, v228, v230" % sWV)
    a("v_mul_u32_u24 v230, 1280, v229\nv_lshl_add_u32 v%d, v228, 4, v230\nv_lshlrev_b32 v%d, 4, v228" % (vG, vG + 1))
    a("v_mov_b32 v230, 0x%x\nv_cmp_gt_u32 vcc, 40, v0\ns_mul_i32 s%d, s%d, %d\ns_mul_i32 s%d, s%d, 160\nv_cndmask_b32 v%d, v230, v%d, vcc\ns_add_u32 s%d, s%d, s%d" % (OOB, sT1, sRT, 64*1280, sT2, sCT, vG, vG, sT1, sT1, sT2))
    a("v_and_b32 v229, 15, v229\nv_bfe_u32 v230, v229, 1, 2\nv_lshlrev_b32 v228, 1, v228\nv_xor_b32 v228, v228, v230\nv_mul_u32_u24 v229, 320, v229\nv_lshl_add_u32 v%d, v228, 4, v229\nv_xor_b32 v%d, 16, v%d" % (vR, vR + 1, vR))
    for k in range(1, 3): a("v_add_u32 v%d, %d, v%d\nv_add_u32 v%d, %d, v%d" % (vR + 2*k, 2*k*EBS, vR, vR + 1 + 2*k, 2*k*EBS, vR + 1))
    paddr(vP, 228, 229)
    a("s_mul_i32 s3, s%d, %d\nv_add_u32 v%d, s3, v%d" % (sWV, EBS, vP, vP))
    a("s_mov_b32 s%d, %d\ns_mov_b64 exec, 0xff" % (sSpin, SPIN))
    a.label("L_pc")
    a("s_waitcnt vmcnt(0)\nv_cmp_ne_u32 vcc, s%d, v245\ns_and_b32 s3, vcc_lo, 15\ns_cbranch_scc0 L_pcd" % sTAG)
    a("s_sleep %d\nbuffer_load_dword v245, v3, %s, s%d offen%s\ns_sub_u32 s%d, s%d, 1\ns_cbranch_scc0 L_pc" % (OPT["slp"], S(S_WS), sT3, PLD, sSpin, sSpin))
    a.label("L_pcd")
    a("s_mov_b64 exec, -1\ns_mov_b32 s%d, vcc_lo" % sK1)
    stamp(9); stamp(6, 1); stamp(1, 2)
    for s in range(4): loadA(s, False); vm.add("A%d" % s, 4)
    for s in range(6):
        vm.wait("A%d" % s)
        a("s_waitcnt lgkmcnt(%d)" % (5 if s < 5 else 0))
        g2_step(s, False)
        if s + 2 < 6:
            for x in readB(s + 2): a(x)
        if s == 0:
            a("s_cmp_eq_u32 s%d, 0\ns_cbranch_scc1 L_nop2" % sK1)
            poll(3, sT3, 8, 245, "he2")
            a.label("L_nop2")
            loadA(4, False); vm.add("A4", 4)
        if s <= 2: loadA(5 + s, False); vm.add("A%d" % (5 + s), 4)
        if s in (1, 2): loadB(5 + s, False); vm.add("B%d" % (5 + s), 5)
        if s == 4:
            for i in range(4): a("s_add_u32 s3, s%d, %d\nbuffer_load_dwordx4 %s, v%d, %s, s3 offen" % (sT1, 16*1280*i, R4(X0 + 4*i), vG, S(S_X)))
            a("buffer_load_dwordx4 %s, v%d, %s, s%d offen" % (R4(X0 + 16), vG + 1, S(S_B2), sT2)); vm.add("X", 5)
    vm.wait("A7", "B7", "X")
    if OPT["wb"] == 2:
        l = a.newlabel("Lwb")
        a("s_lshr_b32 s3, s2, 3\ns_and_b32 s3, s3, %d\ns_add_u32 s3, s3, s%d\ns_cmp_lg_u32 s3, 0\ns_cbranch_scc1 %s\nbuffer_wbl2 sc1" % (OPT["wbw"], sWV, l))
        a.label(l)
    stamp(8, 2)
    pend = []
    for i in range(4):
        k = 0
        for s in (6, 7):
            for t in range(5):
                g2_mfma(G_ACC + (i*5 + t) * 4, Breg(s, False) + 4*t, Areg(s, False) + 4*i, False)
                k += 1
                if pend and k >= 4: a(pend.pop(0))
        pend = ["ds_write_b128 v%d, %s offset:%d" % (vP, R4(G_ACC + (i*5 + t)*4), 5120*i + 64*t) for t in range(5)]
    stamp(10); stamp(7, 1); stamp(9, 2)
    vm.wait("X")
    for k in range(2): unpack(B2F + 2*k, X0 + 16 + k)
    for x in pend: a(x)
    for k in range(2, 4): unpack(B2F + 2*k, X0 + 16 + k)
    lds_addr(244, LF_PRE, None)
    a("v_mov_b32 v245, 1")
    for i in range(4):
        for k in range(4): unpack(XS + 8*i + 2*k, X0 + 4*i + k)
        if i == 0: a("s_mov_b64 exec, 1\ns_waitcnt lgkmcnt(0)\nds_add_u32 v244, v245\ns_mov_b64 exec, -1")
        for k in range(4): a("v_pk_add_f32 %s, %s, %s" % (R2(XS + 8*i + 2*k), R2(XS + 8*i + 2*k), R2(B2F + 2*k)))
    lds_wait(LF_PRE, None, 4, 244)
    stamp(8, 1)
    RD = 4
    def loc(i, p):
        if p < 4: return p >> 1, (p & 1) * EBS + 5120*i
        p -= 4
        if i < 2: return p >> 1, (p & 1) * EBS + 20480 + 5120*i
        return 2, p * 10240 + 5120*(i - 2)
    def rdsum(i, ps):
        for j, p in enumerate(ps):
            b, off = loc(i, p)
            a("ds_read_b128 %s, v%d offset:%d\nds_read_b128 %s, v%d offset:%d" % (R4(RD + 32*(i & 1) + 8*j), vR + 2*b, off, R4(RD + 32*(i & 1) + 8*j + 4), vR + 1 + 2*b, off))
    def addsum(i, base):
        for j in range(4):
            a("s_waitcnt lgkmcnt(%d)" % (base + 6 - 2*j))
            for k in range(4): a("v_pk_add_f32 %s, %s, %s" % (R2(XS + 8*i + 2*k), R2(XS + 8*i + 2*k), R2(RD + 32*(i & 1) + 8*j + 2*k)))
    a("s_mov_b32 exec_hi, 0xff")
    rdsum(0, range(4))
    for i in range(4):
        if i < 3: rdsum(i + 1, range(4))
        addsum(i, 8 if i < 3 else 0)
    stamp(11); stamp(9, 1); stamp(10, 2)
    if OPT["wb"] == 1:
        l = a.newlabel("Lwb")
        a("s_lshr_b32 s3, s2, 3\ns_and_b32 s3, s3, %d\ns_add_u32 s3, s3, s%d\ns_cmp_lg_u32 s3, 0\ns_cbranch_scc1 %s\nbuffer_wbl2 sc1" % (OPT["wbw"], sWV, l))
        a.label(l)
    a("s_setprio 1\ns_barrier")
    for i in range(4):
        a("s_barrier")
        rdsum(i, range(4, 8))
        a("s_add_u32 s3, s%d, %d" % (sT1, 16*1280*i))
        addsum(i, 0)
        for k in range(4): a("v_cvt_pk_bf16_f32 v%d, v%d, v%d" % (XS + 8*i + k, XS + 8*i + 2*k, XS + 8*i + 2*k + 1))
        a("buffer_store_dwordx4 %s, v%d, %s, s3 offen%s" % (R4(XS + 8*i), vG, S(S_OUT), LDF[OPT["ost"]]))
    a("s_mov_b64 exec, -1")
    stamp(12)

hdr = open("cdna_kernels/%s.s.ref" % BASE).read().split("; Override")[0]
a.raw(hdr.rstrip())
a.raw("; @launch grid=(256,1,1) block=(512,1,1) lds=163840")
a.raw('.amdgcn_target "amdgcn-amd-amdhsa--gfx950"\n.text')
kernel_header(a, KNAME)
a("s_cmp_ge_u32 s2, 256\ns_cbranch_scc1 L_end")
a("s_load_dwordx16 s[36:51], s[0:1], 0\ns_load_dwordx4 s[52:55], s[0:1], 64\ns_load_dwordx2 s[56:57], s[0:1], 80")
a("v_lshrrev_b32 v1, 6, v0\nv_and_b32 v0, 63, v0\nv_readfirstlane_b32 s%d, v1" % sWV)
if OPT["cpf"]:
    a("s_getpc_b64 s[%d:%d]\nL_pc0:\ns_and_b32 s3, s2, 0xf8\ns_add_u32 s3, s3, s%d\ns_lshl_b32 s3, s3, 7\ns_min_u32 s3, s3, L_end-L_pc0-64" % (sEX, sEX+1, sWV))
    a("s_load_dword s%d, s[%d:%d], s3" % (sSpin, sEX, sEX+1))
    if OPT["cpf"] > 1: a("s_add_u32 s3, s3, 64\ns_load_dword s%d, s[%d:%d], s3" % (sSpin, sEX, sEX+1))
stamp_init(); stamp(0)
a("s_bfe_u32 s%d, s2, 0x10006" % sTY)
if OPT["xmap"]:
    a("s_and_b32 s3, s2, 7\ns_lshl_b32 s3, s3, 1\ns_bfe_u32 s%d, s2, 0x10003\ns_add_u32 s%d, s%d, s3" % (sRB, sRB, sRB))
    a("s_bfe_u32 s3, s2, 0x20004\ns_lshr_b32 s%d, s2, 7\ns_lshl_b32 s%d, s%d, 2\ns_add_u32 s%d, s%d, s3" % (sJJ, sJJ, sJJ, sJJ, sJJ))
else:
    a("s_and_b32 s3, s2, 1\ns_lshl_b32 s3, s3, 3\ns_bfe_u32 s%d, s2, 0x30003\ns_add_u32 s%d, s%d, s3" % (sRB, sRB, sRB))
    a("s_and_b32 s3, s2, 6\ns_lshr_b32 s%d, s2, 7\ns_add_u32 s%d, s%d, s3" % (sJJ, sJJ, sJJ))
a("s_and_b32 s3, s2, 7\ns_lshl_b32 s3, s3, 2\ns_bfe_u32 s%d, s2, 0x20003\ns_add_u32 s%d, s%d, s3\ns_lshr_b32 s%d, s2, 5" % (sRT, sRT, sRT, sCT))
a("s_cmp_lt_u32 s%d, 4\ns_cbranch_scc1 L_compute" % sWV)
loader()
a.label("L_compute")
compute_prologue()
a("s_cmp_lg_u32 s%d, 0\ns_cbranch_scc1 L_cqh" % sTY)
main_loop(0); epilogue_kv(); a("s_branch L_g2early")
a.label("L_cqh")
main_loop(1); epilogue_qh()
a.label("L_g2early")
gemm2_early()
a.label("L_alldone")
stamp_store()
a("s_cmp_lg_u32 s2, 0\ns_cbranch_scc1 L_end\ns_cmp_lg_u32 s%d, 4\ns_cbranch_scc1 L_end" % sWV)
a("s_mov_b32 s3, 0x%x\nv_mov_b32 v2, s%d\nv_mov_b32 v3, 0\ns_mov_b64 exec, 1\nbuffer_store_dword v2, v3, %s, s3 offen sc1" % (EPOCH, sTAG, S(S_WS)))
a.label("L_end")
a("s_endpgm")
a.lines.extend(OUTLINE)
a.raw(".p2align 7\n.type L_table,@object\nL_table:")
T = make_table()
for i in range(0, len(T), 8): a.raw("  .long " + ", ".join(str(x) for x in T[i:i+8]))
a.raw(".size L_table, %d" % (4 * len(T)))
a.raw('.section .rodata,"a"')
kernel_desc(a, KNAME, 256, 102)
sys.stdout.write(a.text())
```

```python
import sys, struct
from asmlib import *
BASE = "parallel_sum__linear_attn_block__dense_activation_gelu__prompt"
KNAME = BASE + "_kernel"
OPT = dict(stamps=0, sm=0, probe=-1, pcls=0, pty=-1, slp=2, n1=3, cpf=2, win=2, xmap=1, fast=1, kvu=0, qord=0, cprio=0, thr=0, touch=0, shift=2, nojob=0, norot=0, lst=0, kvd=6, lp=3, n2=2, ald=0, bld=0, pld=0, wb=0, wbw=0, ost=1, qk=0, qq=0, mrg=1, s1e=0, kvb=0, ap=1, afirst=1, il=1, qb=0, yld=0, sco=1, scp=1, swp=1, gh=2, bl=0, jst=1, lvm=1, pit=2, jpos=1, lj=1, jc=2, spf=0)
for arg in sys.argv[1:]:
    k, v = arg.split("="); assert k in OPT, k; OPT[k] = int(v)
STAMPS = OPT["stamps"]
f32 = lambda x: struct.unpack("<I", struct.pack("<f", x))[0]

B2_OFF = 0x900000
KVP_OFF = 0xC00000; KVP_STRIDE = 6912
STAT_OFF = 0xD00000
FLAG_OFF = 0xD10000
EPOCH = FLAG_OFF; FWG = FLAG_OFF + 0x1000; FH = FLAG_OFF + 0x4000
CSP_OFF = 0xD20000
RED_OFF = 0xD50000
STAMP_OFF = 0xE00000
WS_SIZE = 0x1000000
OOB = 0x7f000000
SLOT = 45184
K_OFF = 16384; V_OFF = 26640; HKV_OFF = 36992; HQ_OFF = 26624
JOBL = 3 * SLOT
IMG = 147456
LFLAG = 160256; TAGL = 160320; FASTL = 160384
LF_IMG, LF_XK, LF_PRE, LF_Q, LF_PQ, LF_B, LF_T = 0, 4, 8, 12, 16, 32, 48
GAL = 156672; STATL = 160768; CSL = 161792
EBS = 30720
XK = 122880; PQL = 122880
SPIN = 200000
NKVU = 128 * OPT["kvu"]; NQU = 680 - NKVU; QPER = -(-NQU // 512)
S_X, S_J, S_W1, S_WS, S_P, S_OUT, S_B1, S_B2 = 4, 8, 12, 16, 20, 24, 28, 32
sRB, sJJ, sTY, sWV, sTAG, sM, sN = 58, 59, 60, 61, 62, 63, 64
sT1, sT2, sT3 = 65, 66, 67
sLA, sLP, sLP4, sLH, sIncP, sA, sP, sH, sSlot, sCnt = 68, 69, 70, 71, 72, 73, 74, 75, 76, 77
sORD = 76
sEX = 78; sSpin = 80; sRT, sCT = 81, 82
sK0, sK1, sK2 = 83, 84, 85
sST = 86
sAo0, sAo1, sAo2, sBo0, sBo1, sBo2 = 36, 37, 38, 39, 42, 43
TB = [40, 41, 48, 49]
sDL = 56
sAoF, sBoF, sBoE = 44, 45, 55
sFAST = 54; sPC = 46

a = Asm()
LDF = {0: ' sc1', 1: '', 2: ' nt'}
ALD = LDF[OPT['ald']]; BLD = LDF[OPT['bld']]; PLD = LDF[OPT['pld']]
OUTLINE = []
def srd(d, p, n): a("s_mov_b32 s%d, s%d\ns_mov_b32 s%d, s%d\ns_mov_b32 s%d, 0x%x\ns_mov_b32 s%d, 0x20000" % (d, p, d+1, p+1, d+2, n, d+3))
def S(d): return "s[%d:%d]" % (d, d+3)
def R4(b): return "v[%d:%d]" % (b, b + 3)
def R2(b): return "v[%d:%d]" % (b, b + 1)
def align8(): a.raw(".p2align 3")

def stamp(idx, mode=0):
    if mode == 0 and OPT["probe"] == idx:
        a("s_memrealtime s[%d:%d]\ns_waitcnt lgkmcnt(0)\ns_mov_b32 s%d, s%d" % (sST, sST+1, sST + 2, sST))
    if not STAMPS or (mode != OPT["sm"] and idx not in (0, 13)): return
    a("s_memrealtime s[%d:%d]\ns_waitcnt lgkmcnt(0)\ns_mov_b32 s%d, s%d" % (sST, sST+1, sST + 2 + idx, sST))
def stamp_init():
    if STAMPS:
        for i in range(14): a("s_mov_b32 s%d, 0" % (sST + 2 + i))
def stamp_store():
    if OPT["probe"] >= 0:
        a("s_waitcnt vmcnt(0)")
        stamp(13)
        a("s_lshr_b32 s3, s%d, 2\ns_cmp_lg_u32 s3, %d\ns_cbranch_scc1 L_pspd" % (sWV, OPT["pcls"]))
        if OPT["pty"] >= 0: a("s_cmp_lg_u32 s%d, %d\ns_cbranch_scc1 L_pspd" % (sTY, OPT["pty"]))
        a.label("L_psp")
        a("s_memrealtime s[%d:%d]\ns_waitcnt lgkmcnt(0)\ns_sub_u32 s3, s%d, s%d\ns_cmp_lt_u32 s3, 10000\ns_cbranch_scc1 L_psp" % (sST, sST+1, sST, sST + 2))
        a.label("L_pspd")
    if not STAMPS: return
    a("s_waitcnt vmcnt(0)")
    stamp(13)
    for i in range(14): a("v_mov_b32 v%d, s%d" % (4 + i, sST + 2 + i))
    a("v_mov_b32 v18, 0\nv_mov_b32 v19, 0\nv_mov_b32 v2, 0\ns_lshl_b32 s3, s2, 3\ns_add_u32 s3, s3, s%d\ns_lshl_b32 s3, s3, 6\ns_add_u32 s3, s3, 0x%x\ns_mov_b64 exec, 1" % (sWV, STAMP_OFF))
    for i in range(4): a("buffer_store_dwordx4 v[%d:%d], v2, %s, s3 offen offset:%d" % (4 + 4*i, 7 + 4*i, S(S_WS), 16*i))
    a("s_mov_b64 exec, -1")

class VM:
    def __init__(self): self.q = []
    def add(self, lab, n=1): self.q += [lab] * n
    def wait(self, *labs):
        idx = [i for i, x in enumerate(self.q) if x in labs]
        if not idx: return
        n = len(self.q) - 1 - max(idx)
        assert n <= 63
        a("s_waitcnt vmcnt(%d)" % n); self.q = self.q[max(idx) + 1:]
def capture(fn):
    n = len(a.lines); fn(); out = a.lines[n:]; del a.lines[n:]; return [x.strip() for x in out]

def st_a2(ops):
    if isinstance(ops, str): ops = [ops]
    if not OPT["fast"]:
        for o in ops: a(o + " sc1")
        return
    l = a.newlabel("Lsl")
    a("s_cmp_lg_u32 s%d, 0\ns_cbranch_scc0 %s" % (sFAST, l))
    for o in ops: a(o)
    a.label(l + "_b")
    OUTLINE.append(l + ":")
    for o in ops: OUTLINE.append("  " + o + " sc1")
    OUTLINE.append("  s_branch %s_b" % l)

def poll(voff, soff, nlanes, vt, name):
    lp = a.newlabel("Lpoll_" + name)
    a("s_mov_b32 s%d, %d\ns_mov_b64 exec, 0x%x" % (sSpin, SPIN, (1 << nlanes) - 1))
    a.label(lp)
    a("buffer_load_dword v%d, v%d, %s, s%d offen%s\ns_waitcnt vmcnt(0)" % (vt, voff, S(S_WS), soff, PLD))
    a("v_cmp_ne_u32 vcc, s%d, v%d\ns_cbranch_vccz %s_d" % (sTAG, vt, lp))
    a("s_sleep %d\ns_sub_u32 s%d, s%d, 1\ns_cbranch_scc0 %s" % (OPT["slp"], sSpin, sSpin, lp))
    a.label(lp + "_d")
    a("s_mov_b64 exec, -1")
def lds_addr(v, off, sw):
    if sw is None: a("v_mov_b32 v%d, %d" % (v, LFLAG + off))
    else: a("s_lshl_b32 s3, s%d, 2\ns_add_u32 s3, s3, %d\nv_mov_b32 v%d, s3" % (sw, LFLAG + off, v))
def lds_signal(off, sw, v):
    lds_addr(v, off, sw)
    a("v_mov_b32 v%d, 1\ns_mov_b64 exec, 1\nds_add_u32 v%d, v%d\ns_mov_b64 exec, -1" % (v + 1, v, v + 1))
def lds_wait(off, sw, cnt, v, slp=1):
    lp = a.newlabel("Llw"); lds_addr(v, off, sw)
    a("s_mov_b32 s%d, %d" % (sSpin, 20 * SPIN))
    a.label(lp)
    a("ds_read_b32 v%d, v%d\ns_waitcnt lgkmcnt(0)\nv_cmp_ne_u32 vcc, %d, v%d\ns_cbranch_vccz %s_d" % (v + 1, v, cnt, v + 1, lp))
    if slp: a("s_sleep %d" % slp)
    a("s_sub_u32 s%d, s%d, 1\ns_cbranch_scc0 %s" % (sSpin, sSpin, lp))
    a.label(lp + "_d")
def lds_wait_ge(off, cnt, v, slp=1):
    lp = a.newlabel("Llg"); lds_addr(v, off, None)
    a("s_mov_b32 s%d, %d" % (sSpin, 20 * SPIN))
    a.label(lp)
    a("ds_read_b32 v%d, v%d\ns_waitcnt lgkmcnt(0)\nv_cmp_gt_u32 vcc, %d, v%d\ns_cbranch_vccz %s_d" % (v + 1, v, cnt, v + 1, lp))
    if slp: a("s_sleep %d" % slp)
    a("s_sub_u32 s%d, s%d, 1\ns_cbranch_scc0 %s" % (sSpin, sSpin, lp))
    a.label(lp + "_d")
def bf16_round(v): a("v_cvt_pk_bf16_f32 v%d, v%d, v%d\nv_lshlrev_b32 v%d, 16, v%d" % (v, v, v, v, v))
def unpack(dst, src): a("v_lshlrev_b32 v%d, 16, v%d\nv_and_b32 v%d, 0xffff0000, v%d" % (dst, src, dst + 1, src))
def padd(d, x, y, scalar):
    if scalar: a("v_add_f32 v%d, v%d, v%d\nv_add_f32 v%d, v%d, v%d" % (d, x, y, d + 1, x + 1, y + 1))
    else: a("v_pk_add_f32 %s, %s, %s" % (R2(d), R2(x), R2(y)))
def tagchk(acc_, regs):
    a("v_xor_b32 v%d, s%d, v%d" % (acc_, TB[0], regs[0]))
    for k, r in enumerate(regs):
        if k: a("v_bitop3_b32 v%d, v%d, v%d, s%d bitop3:0xf6" % (acc_, acc_, r, TB[k % 4]))
    a("v_and_b32 v%d, 0xff, v%d\nv_cmp_ne_u32 vcc, 0, v%d" % (acc_, acc_, acc_))

G_ACC = 4
KS_C = [2, 4, 8, 10, 0, 1, 6, 7]; KS_L = [2, 4, 8, 10]
def g2_setup(late):
    w = sM if late else sWV
    a("v_lshlrev_b32 v1, 4, v0\nv_add_u32 v2, 4096, v1")
    a("s_mul_i32 s%d, s%d, 12" % (sK0, w))
    if late: a("s_lshl_b32 s%d, s%d, 2\ns_add_u32 s%d, s%d, 48\ns_add_u32 s%d, s%d, 64" % (sK1, w, sK1, sK1, sK2, w))
    a("s_mul_i32 s3, s%d, 68" % sRT)
    for (d, k) in ((sAo0, sK0),) + (((sAo1, sK1), (sAo2, sK2)) if late else ()):
        a("s_add_u32 s%d, s3, s%d\ns_lshl_b32 s%d, s%d, 12" % (d, k, d, d))
    a("s_mul_i32 s3, s%d, 5120\ns_add_u32 s3, s3, 0x%x" % (sCT, B2_OFF))
    for (d, k) in ((sBo0, sK0),) + (((sBo1, sK1), (sBo2, sK2)) if late else ()):
        a("s_mul_i32 s%d, s%d, 40960\ns_add_u32 s%d, s%d, s3" % (d, k, d, d))
    if OPT["swp"]: a("s_xor_b32 s%d, s%d, %d" % (sDL, sTY, 1 if late else 0))
    else: a("s_mov_b32 s%d, %d" % (sDL, 0 if late else 1))
    a("s_lshl_b32 s3, s%d, 12\ns_add_u32 s%d, s%d, s3\ns_mul_i32 s3, s%d, 40960\ns_add_u32 s%d, s%d, s3" % (sDL, sAoF, sAo0, sDL, sBoF, sBo0))
    if late: a("s_sub_u32 s%d, s%d, s3\ns_add_u32 s%d, s%d, 40960" % (sBoE, sBo0, sBoE, sBoE))
def step_off(s, late, bases, stride, dst=3):
    if s < 4: b, k = bases[3], KS_L[s]
    elif not late: b, k = bases[0], KS_C[s]
    elif s < 8: b, k = bases[1], s - 4
    else: b, k = bases[2], 0
    a("s_add_u32 s%d, s%d, %d" % (dst, b, stride * k))
CB67 = [20, 24, 48, 52, 76, 80, 104, 108, 216, 220]
_free = [g for g in range(4, 244, 4) if g not in CB67]
CACC = _free[:20]; CDB = _free[20:30]; CA_ = _free[30:50]
def Dreg(i, t, late): return G_ACC + (i*5 + t) * 4 if late else CACC[i*5 + t]
def Breg(s, t, late):
    if late: return 84 + 20 * (s % 7) + 4*t
    return CDB[5*(s & 1) + t] if s < 6 else CB67[5*(s - 6) + t]
def Areg(s, i, late): return 224 + 16 * (s & 1) + 4*i if late else CA_[4*(s % 5) + i]
def loadB(s, late):
    step_off(s, late, (sBo0, sBo1, sBo2, sBoF), 40960)
    for t in range(4): a("buffer_load_dwordx4 %s, v1, %s, s3 offen offset:%d%s" % (R4(Breg(s, t, late)), S(S_WS), 1024*t, BLD))
    a("buffer_load_dwordx4 %s, v2, %s, s3 offen%s" % (R4(Breg(s, 4, late)), S(S_WS), BLD))
def loadA(s, late):
    step_off(s, late, (sAo0, sAo1, sAo2, sAoF), 4096)
    for i in range(4): a("buffer_load_dwordx4 %s, v1, %s, s3 offen offset:%d%s" % (R4(Areg(s, i, late)), S(S_WS), 1024*i, ALD))
def dmaB(s):
    step_off(s, False, (sBo0, 0, 0, sBoE), 40960)
    a("s_mul_i32 m0, s%d, %d\ns_add_u32 m0, m0, %d\ns_nop 0" % (sM, EBS, 5120*s))
    for t in range(4): a("buffer_load_dwordx4 v1, %s, s3 offen offset:%d%s lds" % (S(S_WS), 1024*t, BLD))
    a("s_add_u32 m0, m0, 4096\ns_nop 0\nbuffer_load_dwordx4 v2, %s, s3 offen%s lds" % (S(S_WS), BLD))
    if OPT["thr"]: a("s_waitcnt vmcnt(%d)" % OPT["thr"])
def a2_soff(dst, m, ks_emit):
    ks_emit()
    a("s_lshl_b32 s%d, s%d, 1\ns_add_u32 s%d, s%d, s%d\ns_mul_i32 s%d, s%d, 68\ns_add_u32 s%d, s%d, s3\ns_lshl_b32 s%d, s%d, 12" % (dst, sRB, dst, dst, m, dst, dst, dst, dst, dst, dst))
def ks_flag(sOff, m, waitn, vt):
    a("s_lshl_b32 s3, s%d, 1\ns_add_u32 s3, s3, s%d\ns_mul_i32 s3, s3, %d\ns_lshr_b32 s%d, s%d, 10\ns_add_u32 s3, s3, s%d\ns_add_u32 s3, s3, 0x%x" % (sRB, m, 512 - 272, sSpin, sOff, sSpin, FH))
    a("v_mov_b32 v%d, s%d\nv_mov_b32 v%d, 0\ns_mov_b64 exec, 1\ns_waitcnt vmcnt(%d)" % (vt, sTAG, vt + 1, waitn))
    st_a2("buffer_store_dword v%d, v%d, %s, s3 offen" % (vt, vt + 1, S(S_WS)))
    a("s_mov_b64 exec, -1\ns_nop 0")
def g2_mfma(D, B, A, first): a("v_mfma_f32_16x16x32_bf16 %s, %s, %s, %s" % (R4(D), R4(B), R4(A), "0" if first else R4(D)))
def g2_flagoff(v, ks):
    packed = sum(k << (4*j) for j, k in enumerate(ks))
    a("v_lshlrev_b32 v%d, 2, v0\ns_mul_i32 s3, s56, 0x1111\ns_add_u32 s3, s3, 0x%x\nv_bfe_u32 v%d, s3, v%d, 4\nv_lshlrev_b32 v%d, 2, v%d" % (v, packed, v, v, v, v))
def g2_step(s, late):
    stamp(2 + s, 2)
    for t in range(5):
        for i in range(4): g2_mfma(Dreg(i, t, late), Breg(s, t, late), Areg(s, i, late), s == 0)
def paddr(v, t1, t2):
    a("v_and_b32 v%d, 15, v0\nv_lshrrev_b32 v%d, 4, v0\nv_bfe_u32 v%d, v0, 1, 2\nv_xor_b32 v%d, v%d, v%d\nv_mul_u32_u24 v%d, 320, v%d\nv_lshl_add_u32 v%d, v%d, 4, v%d" % (v, t1, t2, t1, t1, t2, v, v, v, t1, v))

def make_table():
    T = []
    for ty in range(2):
        for t in range(256):
            ga = []
            for rnd in range(2):
                gi = t + 256 * rnd
                if gi >= 420: ga.append(ga[0]); continue
                n, gi = divmod(gi, 210); hh, gi = divmod(gi, 105); e, dg = divmod(gi, 5)
                DG = 5 * hh + dg; ti, g = DG >> 2, DG & 3
                if ty == 0:
                    col = 0 if e == 20 else 20 * hh + e + 8
                    idx = 3 * ti + (col >> 4) - (1 if ti > 0 else 0)
                    ga.append(XK + n * 8192 + idx * 1024 + (g * 16 + (col & 15)) * 16)
                else:
                    c = 40 + hh if e == 20 else 20 * hh + e
                    ga.append(IMG + n * 4608 + ((c * 4 + g) * 16 + ti * 8 if ti < 2 else 3072 + (c * 4 + g) * 8))
            l = t & 63
            if l >= 56: l = 0
            n, u4 = divmod(l, 28)
            if ty == 0: c4, mul = ((160 + 10*n + u4, 20) if u4 < 10 else (320 + 10*n + u4 - 10, 20) if u4 < 20 else (480 + 8*n + u4 - 20, 48))
            else: c4, mul = ((10*n + u4, 20) if u4 < 10 else (10*n + u4 - 2, 20) if u4 < 12 else (480 + 16 + 16*n + u4 - 12, 48))
            T += [ga[0], ga[1]]
    return T

def order_table(ph):
    wins = {1: [1]*10, 2: [2]*5, 3: [3,3,4], 4: [4,3,3]}[OPT["win"]]
    o = []; b = 0
    for w in wins:
        o += [b + (i + ph) % w for i in range(w)]; b += w
    return sum(x << (4*i) for i, x in enumerate(o))

FLC = 6 if OPT["shift"] >= 2 else 7
def loader():
    lw = sM
    def issue(base, part=(0, 11), filler=()):
        def m0(reg, i, first):
            if base is not None: return "s_add_u32 m0, s%d, %d" % (reg, base + 1024*i)
            return "s_add_u32 m0, s%d, s%d" % (reg, sK2) if first else "s_add_u32 m0, m0, 0x400"
        L = []
        for i in range(4): L.append((m0(sLA, i, i == 0), "buffer_load_dwordx4 v%d, %s, s%d offen lds" % (10+i, S(S_X), sA)))
        for i in range(2): L.append((m0(sLH, i, i == 0), "buffer_load_dwordx4 v%d, %s, s%d offen lds" % (19+i, S(S_W1), sH)))
        for i in range(5): L.append((m0(sLP, i, i == 0), "buffer_load_dwordx4 v%d, %s, s%d offen lds" % (14+i, S(S_P), sP)))
        filler = list(filler)
        for k in range(*part):
            m, d = L[k]
            if k == 10:
                l = a.newlabel("Lnop4")
                a("s_cmp_lg_u32 s%d, 0\ns_cbranch_scc1 %s" % (sLP4, l)); a(m); a("s_nop 0"); a(d); a.label(l)
            else: a(m); a("s_nop 0"); a(d)
            if filler: a(filler.pop(0))
    def nextstage(): a("s_lshr_b64 s[%d:%d], s[%d:%d], 4\ns_and_b32 s3, s%d, 15\ns_add_u32 s3, s3, s64\ns_sub_u32 s73, s3, 10\ns_min_u32 s3, s3, s73\ns_lshl_b32 s%d, s3, 7\ns_mul_i32 s%d, s3, s%d\ns_mul_i32 s%d, s3, %d" % (sORD, sORD+1, sORD, sORD+1, sORD, sA, sP, sIncP, sH, 64*3072))
    def bar(k): stamp(k + 1, 4); a("s_barrier"); stamp(k + 1, 3)
    a("s_sub_u32 s%d, s%d, 4" % (lw, sWV))
    a("v_lshrrev_b32 v2, 3, v0\nv_lshrrev_b32 v3, 4, v0\nv_and_b32 v4, 7, v0")
    a("v_xor_b32 v5, v4, v3\nv_lshlrev_b32 v5, 4, v5")
    a("s_lshl_b32 s3, s%d, 7\ns_lshl_b32 s%d, s%d, 5\ns_add_u32 s3, s3, s%d\ns_mul_i32 s3, s3, 1280" % (sRB, sT1, lw, sT1))
    a("v_mul_u32_u24 v6, 1280, v2\nv_add3_u32 v10, v6, v5, s3")
    a("v_xor_b32 v11, 64, v10\nv_add_u32 v11, 10240, v11\nv_add_u32 v12, 20480, v10\nv_add_u32 v13, 20480, v11")
    a("s_lshl_b32 s%d, s%d, 12" % (sLA, lw))
    def rel(ty, par):
        if OPT["shift"] == 3: o = [(i ^ par) if i < 2 else i for i in range(10)]
        elif ty == OPT["shift"]: o = [par, 1 - par, 2] + [3 + (i ^ par) for i in range(6)] + [9]
        else: o = [i ^ par for i in range(10)]
        return sum(x << (4*i) for i, x in enumerate(o))
    a("s_xor_b32 s3, s%d, s59\ns_and_b32 s3, s3, 1\ns_lshl_b32 s%d, s%d, 1\ns_add_u32 s3, s3, s%d\ns_mov_b32 s%d, 0x%x\ns_mov_b32 s%d, 0x%x" % (sRB, sT1, sTY, sT1, sORD, rel(0,0) & 0xffffffff, sORD+1, rel(0,0) >> 32))
    for k in range(1, 4):
        r = rel(k >> 1, k & 1)
        a("s_cmp_eq_u32 s3, %d\ns_cselect_b32 s%d, 0x%x, s%d\ns_cselect_b32 s%d, 0x%x, s%d" % (k, sORD, r & 0xffffffff, sORD, sORD+1, r >> 32, sORD+1))
    a("s_and_b32 s3, s2, 7\ns_sub_u32 s%d, s3, 5\ns_min_u32 s3, s3, s%d\ns_lshl_b32 s%d, s3, 1" % (sT1, sT1, sN))
    if OPT["norot"]: a("s_mov_b32 s%d, 0" % sN)
    a("s_and_b32 s%d, s%d, 15\ns_add_u32 s%d, s%d, s%d\ns_sub_u32 s3, s%d, 10\ns_min_u32 s%d, s%d, s3\ns_lshl_b32 s%d, s%d, 7\ns_mul_i32 s%d, s%d, %d" % (sP, sORD, sP, sP, sN, sP, sP, sP, sA, sP, sH, sP, 64*3072))
    a("s_mov_b32 s%d, 0x%x\ns_mov_b32 s%d, 0x20000" % (S_X+2, 2048*1280, S_X+3))
    a("s_waitcnt lgkmcnt(0)")
    a("s_mov_b32 s%d, s36\ns_mov_b32 s%d, s37" % (S_X, S_X+1))
    stamp(1)
    issue(0, (0, 4))
    a("v_and_b32 v6, 3, v2\nv_lshrrev_b32 v7, 2, v2\nv_lshl_add_u32 v6, v7, 3, v6\nv_mul_u32_u24 v6, 3072, v6")
    a("v_and_b32 v7, 6, v2\nv_xor_b32 v7, v4, v7\nv_lshl_add_u32 v6, v7, 4, v6")
    a("s_mul_i32 s%d, s%d, 384\ns_lshl_b32 s3, s%d, 7\ns_add_u32 s%d, s%d, s3" % (sT1, sJJ, sTY, sT1, sT1))
    a("s_and_b32 s%d, s%d, 1" % (sT2, lw))
    a("s_lshr_b32 s3, s%d, 1\ns_lshl_b32 s3, s3, 3\ns_add_u32 s3, s3, s%d\ns_mul_i32 s3, s3, 12288\ns_add_u32 s3, s3, s%d" % (lw, sT2, sT1))
    a("v_add_u32 v19, s3, v6\nv_add_u32 v20, 49152, v19")
    a("s_movk_i32 s%d, %d\ns_cmp_eq_u32 s%d, 0\ns_cselect_b32 s%d, %d, s%d\ns_lshl_b32 s3, s%d, 11\ns_add_u32 s%d, s%d, s3" % (sLH, HQ_OFF, sTY, sLH, HKV_OFF, sLH, lw, sLH, sLH))
    srd(S_W1, 44, 640*3072)
    issue(0, (4, 6))
    a("s_lshr_b32 s3, s%d, 1\ns_and_b32 s%d, s3, s%d\ns_cbranch_scc1 L_phmode" % (lw, sLP4, sTY))
    a("s_mov_b32 s%d, %d" % (sIncP, 64*3840))
    a("s_lshr_b32 s3, s%d, 1\ns_add_u32 s3, s3, 1\ns_cmp_eq_u32 s%d, 0\ns_cselect_b32 s3, s3, 0" % (lw, sTY))
    a("s_mul_i32 s%d, s3, 1280\ns_mul_i32 s%d, s%d, 160\ns_add_u32 s%d, s%d, s%d\ns_mul_i32 s%d, s%d, %d\ns_add_u32 s%d, s%d, s%d" % (sT1, sT3, sJJ, sT1, sT1, sT3, sT3, sT2, 32*3840, sT1, sT1, sT3))
    a("s_movk_i32 s%d, %d\ns_cmp_eq_u32 s3, 2\ns_cselect_b32 s%d, %d, s%d\ns_mul_i32 s%d, s%d, 5120\ns_add_u32 s%d, s%d, s%d" % (sLP, K_OFF, sLP, V_OFF, sLP, sT3, sT2, sLP, sLP, sT3))
    a("v_mul_u32_u24 v7, 6554, v0\nv_lshl_add_u32 v5, v0, 4, s%d\ns_movk_i32 s3, 3680\ns_movk_i32 s%d, 3840" % (sT1, sT3))
    for i in range(5):
        a("v_add_u32 v8, %d, v7\nv_lshrrev_b32 v8, 16, v8\nv_and_b32 v9, 12, v8" % (64*i*6554))
        c = 1024*i - (46080 if i >= 3 else 0)
        a("v_add_u32 v%d, 0x%x, v5\nv_mad_u32_u24 v%d, v8, s3, v%d\nv_mad_u32_u24 v%d, v9, s%d, v%d" % (14+i, c & 0xffffffff, 14+i, 14+i, 14+i, sT3, 14+i))
        if i == 2: a("v_lshrrev_b32 v8, 4, v8\nv_mul_u32_u24 v8, 46080, v8\nv_sub_u32 v16, v16, v8")
    srd(S_P, 38, 640*3840)
    a("s_branch L_pdone")
    a.label("L_phmode")
    a("s_mov_b32 s%d, %d" % (sIncP, 64*3072))
    a("s_mul_i32 s3, s%d, %d\ns_add_u32 s3, s3, s%d\ns_add_u32 s3, s3, 128" % (sT2, 32*3072, sT1))
    a("v_add_u32 v14, s3, v6\nv_add_u32 v15, 49152, v14\nv_add_u32 v16, 12288, v14\nv_add_u32 v17, 61440, v14\nv_mov_b32 v18, 0x%x" % OOB)
    a("s_lshl_b32 s3, s%d, 12\ns_add_u32 s%d, s3, %d" % (sT2, sLP, HQ_OFF + 8192))
    srd(S_P, 44, 640*3072)
    a.label("L_pdone")
    a("s_mul_i32 s%d, s%d, s%d" % (sP, sP, sIncP))
    issue(0, (6, 11)); nextstage()
    srd(S_WS, 56, WS_SIZE)
    a("s_getpc_b64 s[%d:%d]\nL_pc1:\ns_add_u32 s%d, s%d, L_table-L_pc1\ns_addc_u32 s%d, s%d, 0" % (sPC, sPC+1, sPC, sPC, sPC+1, sPC+1))
    a("v_lshlrev_b32 v1, 4, v0\ns_lshl_b32 s3, s%d, 10\nv_add_u32 v254, s3, v1\ns_lshl_b32 s3, s%d, 12\nv_add_u32 v5, s3, v254\nv_lshrrev_b32 v21, 1, v5" % (lw, sTY))
    a("v_mov_b32 v22, %d\ns_getreg_b32 s%d, hwreg(HW_REG_XCC_ID, 0, 4)\ns_and_b32 s3, s2, 7\ns_lshl_b32 s3, s3, 5\ns_lshr_b32 s%d, s2, 3\ns_add_u32 s3, s3, s%d\ns_lshl_b32 s3, s3, 2\ns_add_u32 s3, s3, 0x%x\nv_mov_b32 v23, s3" % (TAGL, sFAST, sT1, sT1, FWG))
    if OPT["lj"]:
        srd(S_J, 40, 0); srd(S_B1, 40, 0)
        a("v_mov_b32 v24, 0\nv_mov_b32 v25, 0")
    a("s_mov_b32 s%d, %d\ns_mov_b32 s%d, 1\ns_branch L_kvi" % (sK2, SLOT, sK1))
    a.label("L_kvl")
    if OPT["lj"]:
        JC = OPT["jc"]
        sB = [24 + 0, 0]; SR = [S_J, S_B1]; J0 = [32, 35]; J1 = [33, 50]; J2 = [34, 51]; JD = [52, 53]; sQ = 24; sKs = 25; sLn = 26
        a("s_lshl_b32 s3, s%d, 4\ns_add_u32 s%d, s3, s%d\ns_cmp_lg_u32 s%d, 18\ns_cbranch_scc1 L_nojs" % (sTY, 27, sK1, 27))
        a("s_sub_u32 s3, 3, s%d\ns_lshl_b32 s%d, s3, 7\ns_lshl_b32 s3, s%d, 3\ns_add_u32 s%d, s%d, s3\ns_add_u32 s%d, s%d, s%d" % (lw, sQ, sRB, sQ, sQ, sQ, sQ, sJJ))
        a("v_and_b32 v7, 6, v2\nv_xor_b32 v7, v4, v7\nv_lshlrev_b32 v7, 4, v7\nv_lshrrev_b32 v8, 5, v0\nv_and_b32 v9, 3, v2")
        for u in range(2):
            a("s_mul_i32 s3, s%d, 6554\ns_lshr_b32 s%d, s3, 16\ns_mul_i32 s3, s%d, 10\ns_sub_u32 s%d, s%d, s3" % (sQ, sKs, sKs, sLn, sQ))
            a("s_cmp_lt_u32 s%d, 48\ns_cselect_b32 s%d, s48, s40\ns_cselect_b32 s%d, s49, s41\ns_mov_b32 s%d, %d\ns_cselect_b32 s%d, %d, s%d" % (sKs, SR[u], SR[u]+1, SR[u]+2, 640*1280, SR[u]+2, 1536*1280, SR[u]+2))
            a("s_lshl_b32 s%d, s%d, 5\ns_mul_i32 s3, s%d, 40\ns_sub_u32 s3, s3, %d\ns_cmp_lt_u32 s%d, 48\ns_cselect_b32 s%d, s%d, s3" % (J0[u], sKs, sKs, 48*40, sKs, J0[u], J0[u]))
            a("s_mul_i32 s3, s%d, 160\ns_sub_u32 s3, s3, %d\ns_cmp_lt_u32 s%d, 64\ns_cselect_b32 s%d, s%d, s3\ns_cselect_b32 s%d, 4, 40\ns_cselect_b32 s%d, 16, 4" % (sKs, 64*160 - 32, sKs, J0[u], J0[u], J1[u], J2[u]))
            a("v_mad_u32_u24 v%d, s%d, v8, v9\nv_mul_u32_u24 v%d, 1280, v%d\nv_add_u32 v%d, v%d, v7" % (24 + u, J1[u], 24 + u, 24 + u, 24 + u, 24 + u))
            a("s_mul_i32 s%d, s%d, 1280\ns_lshl_b32 s3, s%d, 7\ns_add_u32 s%d, s%d, s3\ns_mul_i32 s%d, s%d, 2560\ns_mul_i32 s%d, s%d, 1280" % (J0[u], J0[u], sLn, J0[u], J0[u], J1[u], J1[u], J2[u], J2[u]))
            a("s_lshl_b32 s%d, s%d, 12\ns_add_u32 s%d, s%d, 0x%x" % (JD[u], sQ, JD[u], JD[u], B2_OFF))
            if u == 0: a("s_add_u32 s%d, s%d, 512" % (sQ, sQ))
        a("v_lshrrev_b32 v5, 2, v0\nv_and_b32 v6, 3, v0\nv_lshlrev_b32 v7, 7, v5\nv_lshl_add_u32 v7, v6, 3, v7\nv_bfe_u32 v5, v0, 3, 2\nv_lshl_add_u32 v7, v5, 5, v7")
        a("s_add_u32 s3, s%d, %d\nv_add_u32 v26, s3, v7\nv_xor_b32 v27, 32, v26\nv_xor_b32 v28, 64, v26\nv_xor_b32 v29, 0x60, v26" % (sLA, JOBL))
        a.label("L_nojs")
    a("s_waitcnt vmcnt(10)\ns_barrier")
    if STAMPS and OPT["sm"] == 3:
        a("s_memrealtime s[%d:%d]\ns_waitcnt lgkmcnt(0)" % (sST, sST+1))
        for k in range(7): a("s_cmp_eq_u32 s%d, %d\ns_cselect_b32 s%d, s%d, s%d" % (sK1, k + 2, sST + 3 + k, sST, sST + 3 + k))
    if OPT["lj"]:
        a("s_sub_u32 s3, s27, %d\ns_cmp_gt_u32 s3, 2\ns_cbranch_scc1 L_nojob" % (16 + JC))
        a("s_cmp_lg_u32 s3, 0\ns_cbranch_scc1 L_j1")
        for u in range(2):
            if u: a("s_cmp_ge_u32 s%d, 680\ns_cbranch_scc1 L_kvi" % sQ)
            a("s_add_u32 m0, s%d, %d\ns_add_u32 s3, s%d, s%d\nbuffer_load_dwordx4 v%d, %s, s%d offen lds" % (sLA, JOBL + 8192*u, J0[u], J1[u], 24 + u, S(SR[u]), J0[u]))
            a("s_add_u32 m0, m0, 0x400\ns_add_u32 s%d, s%d, s%d\nbuffer_load_dwordx4 v%d, %s, s3 offen lds" % (J0[u], J0[u], J2[u], 24 + u, S(SR[u])))
            a("s_add_u32 m0, m0, 0x400\ns_add_u32 s3, s%d, s%d\nbuffer_load_dwordx4 v%d, %s, s%d offen lds" % (J0[u], J1[u], 24 + u, S(SR[u]), J0[u]))
            a("s_add_u32 m0, m0, 0x400\ns_nop 0\nbuffer_load_dwordx4 v%d, %s, s3 offen lds" % (24 + u, S(SR[u])))
        a("s_branch L_kvi")
        a.label("L_j1")
        a("s_cmp_lg_u32 s3, 1\ns_cbranch_scc1 L_j2")
        for u in range(2):
            for t in range(4): a("ds_read_b64_tr_b16 %s, v%d offset:%d\nds_read_b64_tr_b16 %s, v%d offset:%d" % (R2(32 + 16*u + 4*t), 26 + t, 8192*u, R2(34 + 16*u + 4*t), 26 + t, 8192*u + 2048))
        if OPT["lj"] == 2:
            a("s_waitcnt lgkmcnt(8)")
            for t in range(4): a("buffer_store_dwordx4 %s, v1, %s, s%d offen offset:%d sc1" % (R4(32 + 4*t), S(S_WS), JD[0], 1024*t))
        a("s_branch L_kvi")
        a.label("L_j2")
        a("s_waitcnt lgkmcnt(0)")
        for u in range(1 if OPT["lj"] == 2 else 0, 2):
            if u: a("s_cmp_ge_u32 s%d, 680\ns_cbranch_scc1 L_kvi" % sQ)
            for t in range(4): a("buffer_store_dwordx4 %s, v1, %s, s%d offen offset:%d sc1" % (R4(32 + 16*u + 4*t), S(S_WS), JD[u], 1024*t))
        a("s_branch L_kvi")
        a.label("L_nojob")
    a("s_lshl_b32 s3, s%d, 2\ns_add_u32 s3, s3, s%d\ns_cmp_lg_u32 s3, %d\ns_cbranch_scc1 L_kvi" % (sK1, lw, 4 * ((OPT["jc"] + 3) if OPT["lj"] else (OPT["pit"] + 4)) + 3))
    a("ds_read_b32 v6, v22\ns_mov_b64 exec, 1\ns_waitcnt lgkmcnt(0)\nv_xor_b32 v6, s%d, v6\nbuffer_store_dword v6, v23, %s, 0 offen sc1\ns_mov_b64 exec, -1" % (sFAST, S(S_WS)))
    a.label("L_kvi")
    issue(None); nextstage()
    a("s_add_u32 s%d, s%d, %d\ns_cmp_eq_u32 s%d, %d\ns_cselect_b32 s%d, 0, s%d\ns_add_u32 s%d, s%d, 1\ns_cmp_lt_u32 s%d, 9\ns_cbranch_scc1 L_kvl" % (sK2, sK2, SLOT, sK2, 3*SLOT, sK2, sK2, sK1, sK1, sK1))
    if OPT["lp"]: a("s_setprio %d" % OPT["lp"])
    a("global_load_dwordx2 v[252:253], v21, s[%d:%d]" % (sPC, sPC+1))
    a("v_mov_b32 v6, %d\nds_read_b32 v6, v6" % TAGL)
    g2_setup(True)
    a("v_and_b32 v29, 15, v0\nv_min_u32 v29, 13, v29\nv_lshlrev_b32 v29, 4, v29\ns_mul_i32 s3, s%d, 224\nv_add_u32 v29, s3, v29\nv_lshrrev_b32 v30, 4, v0\nv_lshl_add_u32 v31, v30, 10, v29\nv_and_b32 v30, 0x7ff, v31\nv_add_u32 v29, %d, v29\ns_lshl_b32 s3, s%d, 3\ns_add_u32 s3, s3, s%d\ns_mul_i32 s%d, s3, 10240\ns_add_u32 s%d, s%d, 0x%x" % (lw, CSL, sTY, sJJ, sPC, sPC, sPC, CSP_OFF))
    a("v_add_u32 v255, 4096, v254\nv_cmp_gt_u32 vcc, %d, v254\nv_mov_b32 v3, 0x%x\ns_mov_b64 s[%d:%d], vcc\nv_cndmask_b32 v255, v3, v255, vcc" % ((420 - 256) * 16, OOB, sEX, sEX+1))
    a("s_lshl_b32 s%d, s%d, 10\ns_lshl_b32 s3, s%d, 11\ns_add_u32 s%d, s%d, s3\ns_add_u32 s%d, s%d, 0x%x" % (sT1, lw, sRB, sT1, sT1, sT1, sT1, STAT_OFF - 1024))
    a("s_cmp_eq_u32 s%d, 3\ns_cselect_b32 s%d, 0x%x, s%d\ns_cselect_b32 s%d, -16, 0\ns_cselect_b32 s%d, -16, -1" % (lw, sT1, FWG, sT1, sT2, sT3))
    a("s_waitcnt lgkmcnt(0)\nv_readfirstlane_b32 s%d, v6\ns_waitcnt vmcnt(11)" % sTAG)
    bar(7)
    def csloads():
        for p in range(3): a("s_add_u32 s3, s%d, %d\nbuffer_load_dwordx4 %s, v%d, %s, s3 offen sc1" % (sPC, 4096 * p, R4(36 + 4*p), 31 if p < 2 else 30, S(S_WS)))
    a("s_cmp_eq_u32 s%d, 0\ns_cbranch_scc1 L_ck1\nbuffer_load_dwordx4 v[24:27], v1, %s, s%d offen sc1" % (lw, S(S_WS), sT1))
    a.label("L_ck1")
    issue(0, filler=["\n".join("s_lshr_b32 s%d, s%d, %d" % (TB[k], sTAG, 8*k) for k in range(4)),
          "v_mov_b64 v[4:5], 0\nv_mov_b64 v[6:7], 0\nv_add_u32 v8, %d, v254\nv_add_u32 v9, %d, v1" % (IMG, IMG + 8192),
          "ds_write_b128 v8, v[4:7]\nds_write_b128 v8, v[4:7] offset:4096\nds_write_b128 v9, v[4:7]"])
    a("s_mov_b32 s%d, %d\ns_waitcnt vmcnt(10)\ns_cmp_eq_u32 s%d, 3\ns_cbranch_scc1 L_chk" % (sSpin, SPIN, lw))
    bar(8)
    a("s_cmp_eq_u32 s%d, 0\ns_cbranch_scc1 L_chkok" % lw)
    a.label("L_chk")
    for k in range(4): a("v_xor_b32 v%d, s%d, v%d" % (32 + k, sTAG, 24 + k))
    a("v_or_b32 v3, v32, v34\nv_or_b32 v4, v33, v35\nv_and_b32 v3, s%d, v3\nv_and_b32 v4, s%d, v4\nv_or_b32 v3, v3, v4\nv_cmp_ne_u32 vcc, 0, v3\ns_cbranch_vccz L_chkw" % (sT2, sT3))
    a("s_sleep 8\nbuffer_load_dwordx4 v[24:27], v1, %s, s%d offen sc1\ns_waitcnt vmcnt(0)\ns_sub_u32 s%d, s%d, 1\ns_cbranch_scc0 L_chk" % (S(S_WS), sT1, sSpin, sSpin))
    a.label("L_chkw")
    a("s_cmp_eq_u32 s%d, 3\ns_cbranch_scc1 L_chk3" % lw)
    a("s_lshl_b32 s3, s%d, 8\ns_add_u32 s3, s3, %d\nv_lshl_add_u32 v3, v0, 2, s3\nds_write2st64_b32 v3, v24, v26 offset0:0 offset1:2\ns_branch L_chkok" % (lw, STATL - 256))
    a.label("L_chk3")
    a("s_getreg_b32 s3, hwreg(HW_REG_XCC_ID, 0, 4)\nv_xor_b32 v3, s3, v32")
    for k in range(1, 4): a("v_bitop3_b32 v3, v3, v%d, s3 bitop3:0xf6" % (32 + k))
    a("v_cmp_ne_u32 vcc, 0, v3\ns_and_b32 s3, s2, 7\ns_lshl_b32 s3, s3, 3\ns_lshr_b64 vcc, vcc, s3\ns_and_b32 s3, vcc_lo, 0xff\ns_cselect_b32 s3, 0, 1")
    a("v_mov_b32 v3, %d\nv_mov_b32 v4, s3\nds_write_b32 v3, v4\ns_barrier\ns_branch L_chkok" % FASTL)
    a.label("L_chkok")
    csloads()
    n1 = OPT["n1"]
    for s in range(n1): loadB(s, True)
    a("s_waitcnt vmcnt(%d) lgkmcnt(0)" % (5 * n1 + 3))
    bar(9)
    a("v_mov_b32 v6, %d\nds_read_b32 v6, v6\ns_mov_b32 s%d, %d\ns_waitcnt vmcnt(%d)" % (FASTL, sSpin, SPIN, 5 * n1))
    a.label("L_cchk")
    tagchk(3, list(range(36, 48)))
    a("s_cbranch_vccz L_cchkok\ns_sleep 8")
    csloads()
    a("s_waitcnt vmcnt(0)\ns_sub_u32 s%d, s%d, 1\ns_cbranch_scc0 L_cchk" % (sSpin, sSpin))
    a.label("L_cchkok")
    a("v_pk_add_f32 v[36:37], v[36:37], v[40:41]\nv_pk_add_f32 v[38:39], v[38:39], v[42:43]\ns_mov_b32 exec_hi, 0\nv_pk_add_f32 v[36:37], v[36:37], v[44:45]\nv_pk_add_f32 v[38:39], v[38:39], v[46:47]\ns_mov_b64 exec, -1")
    for op in ("v_permlane16_swap_b32", "v_permlane32_swap_b32"):
        a("v_mov_b64 v[40:41], v[36:37]\nv_mov_b64 v[42:43], v[38:39]\ns_nop 1")
        for k in range(4): a("%s v%d, v%d" % (op, 36 + k, 40 + k))
        a("s_nop 0\nv_pk_add_f32 v[36:37], v[36:37], v[40:41]\nv_pk_add_f32 v[38:39], v[38:39], v[42:43]")
    a("ds_write_b128 v29, v[36:39]")
    stamp(4)
    nb = min(7, n1 + OPT["n2"])
    for s in range(n1, nb): loadB(s, True)
    a("s_mul_i32 s%d, s%d, %d\ns_add_u32 s%d, s%d, 0x%x\ns_waitcnt lgkmcnt(0)\nv_readfirstlane_b32 s%d, v6" % (sH, sJJ, KVP_STRIDE, sH, sH, RED_OFF, sFAST))
    stamp(5)
    a("s_barrier")
    if OPT["lp"]: a("s_setprio 0")
    stamp(6)
    for s in range(nb, 4): loadB(s, True)
    for s in range(OPT["kvd"]): dmaB(s)
    a("s_lshl_b32 s%d, s%d, 9\ns_add_u32 s%d, s%d, 0x%x\ns_lshl_b32 s3, s%d, 2\ns_add_u32 s%d, s%d, s3\ns_lshl_b32 s3, s%d, 2\ns_add_u32 s%d, s%d, s3" % (sORD+1, sRT, sORD+1, sORD+1, FH, sK0, sORD, sORD+1, sK1, sORD+1, sORD+1))
    for k in range(4): step_off(4 + k, True, (sAo0, sAo1, sAo2, sAoF), 4096, sLA + k)
    nb2 = max(nb, 4)
    nbq = nb2
    if not (OPT["bl"] and OPT["afirst"]):
        for s in range(nb2, 7): loadB(s, True)
        nbq = 7
    a("s_cmp_lg_u32 s%d, 0\ns_cbranch_scc1 L_lq1" % sTY)
    for s in range(nbq, 7): loadB(s, True)
    nb2 = 7
    a("s_lshl_b32 s%d, s%d, 4\ns_mul_i32 s%d, s%d, %d\ns_add_u32 s%d, s%d, 0x%x\ns_mul_i32 s3, s%d, %d\ns_add_u32 s%d, s%d, s3\nv_mov_b32 v3, 0xff" % (sT2, sJJ, sT2, sT2, KVP_STRIDE, sT2, sT2, KVP_OFF, sRB, KVP_STRIDE, sT1, sT2))
    a("s_lshl_b32 s%d, s%d, 2\ns_add_u32 s%d, s%d, s%d\ns_lshl_b32 s3, s%d, 7\ns_add_u32 s%d, s%d, s3\ns_add_u32 s%d, s%d, s3\ns_add_u32 s%d, s%d, %d" % (sA, sRB, sA, sA, lw, sA, sT2, sT2, sH, sH, sT3, sT2, 8*KVP_STRIDE))
    a("s_cmp_eq_u32 s%d, 52\ns_cselect_b32 s3, 3, 7\nv_and_b32 v21, s3, v0\nv_lshlrev_b32 v21, 4, v21\nv_lshrrev_b32 v20, 3, v0\nv_mul_u32_u24 v20, %d, v20\nv_add_u32 v20, v20, v21" % (sA, KVP_STRIDE))
    stamp(1, 1)
    a("s_setprio 2")
    lds_wait(LF_XK, None, 4, 4)
    stamp(7); stamp(3, 1)
    a("ds_read_b128 v[4:7], v252\nds_read_b128 v[8:11], v252 offset:16384\nds_read_b128 v[12:15], v253\nds_read_b128 v[16:19], v253 offset:16384")
    a("s_waitcnt lgkmcnt(2)\nv_pk_add_f32 v[4:5], v[4:5], v[8:9]\nv_pk_add_f32 v[6:7], v[6:7], v[10:11]")
    for k in range(4): a("v_bfi_b32 v%d, v3, s%d, v%d" % (4 + k, TB[k], 4 + k))
    a("buffer_store_dwordx4 v[4:7], v254, %s, s%d offen sc1" % (S(S_WS), sT1))
    a("s_waitcnt lgkmcnt(0)\nv_pk_add_f32 v[12:13], v[12:13], v[16:17]\nv_pk_add_f32 v[14:15], v[14:15], v[18:19]")
    for k in range(4): a("v_bfi_b32 v%d, v3, s%d, v%d" % (12 + k, TB[k], 12 + k))
    a("buffer_store_dwordx4 v[12:15], v255, %s, s%d offen sc1" % (S(S_WS), sT1))
    for s in range(OPT["kvd"], 6): dmaB(s)
    a("s_waitcnt vmcnt(%d)" % (2 if OPT["kvd"] == 6 else 0))
    lds_signal(LF_B, lw, 22)
    nkb = min(7, nb2 + OPT["kvb"])
    for s in range(nb2, nkb): loadB(s, True)
    stamp(4, 1)
    a("s_cmp_gt_u32 s%d, 52\ns_cbranch_scc1 L_nored\ns_mov_b32 s%d, %d\ns_waitcnt vmcnt(0)" % (sA, sSpin, SPIN))
    a.label("L_red")
    a("buffer_load_dwordx4 v[4:7], v20, %s, s%d offen sc1\nbuffer_load_dwordx4 v[8:11], v20, %s, s%d offen sc1\ns_waitcnt vmcnt(0)" % (S(S_WS), sT2, S(S_WS), sT3))
    tagchk(12, list(range(4, 12)))
    a("s_cbranch_vccz L_redok\ns_sleep 1\ns_sub_u32 s%d, s%d, 1\ns_cbranch_scc0 L_red" % (sSpin, sSpin))
    a.label("L_redok")
    stamp(5, 1)
    a("v_pk_add_f32 v[4:5], v[4:5], v[8:9]\nv_pk_add_f32 v[6:7], v[6:7], v[10:11]\ns_nop 1")
    for k in range(4): a("v_add_f32_dpp v%d, v%d, v%d row_ror:8 row_mask:0xf bank_mask:0xf" % (4 + k, 4 + k, 4 + k))
    for op in ("v_permlane16_swap_b32", "v_permlane32_swap_b32"):
        a("v_mov_b64 v[8:9], v[4:5]\nv_mov_b64 v[10:11], v[6:7]\ns_nop 1")
        for k in range(4): a("%s v%d, v%d" % (op, 4 + k, 8 + k))
        a("s_nop 0\nv_pk_add_f32 v[4:5], v[4:5], v[8:9]\nv_pk_add_f32 v[6:7], v[6:7], v[10:11]")
    for k in range(4): a("v_bfi_b32 v%d, v3, s%d, v%d" % (4 + k, TB[k], 4 + k))
    a("s_mov_b64 exec, 0xff\nbuffer_store_dwordx4 v[4:7], v21, %s, s%d offen sc1\ns_mov_b64 exec, -1" % (S(S_WS), sH))
    a.label("L_nored")
    lds_signal(LF_Q, None, 22)
    if OPT["qk"]: lds_wait(LF_Q, None, 4, 22)
    a("s_setprio 0")
    for s in range(nkb, 7): loadB(s, True)
    a("s_branch L_la")
    a.label("L_lq1")
    for s in range(OPT["kvd"], 6): dmaB(s)
    for s in range(nb2, 7): loadB(s, True)
    a("s_lshr_b32 s%d, s%d, 1\ns_and_b32 s%d, s%d, 1" % (sA, lw, sP, lw))
    a2_soff(sT2, sA, lambda: a("s_lshl_b32 s3, s%d, 1\ns_add_u32 s3, s3, s%d\ns_add_u32 s3, s3, 48" % (sJJ, sP)))
    a2_soff(sT3, sA, lambda: a("s_lshr_b32 s3, s%d, 1\ns_add_u32 s3, s3, 64" % sJJ))
    a("s_lshl_b32 s3, s%d, 1\ns_add_u32 s3, s3, s%d\ns_and_b32 s3, s3, 3\ns_lshl_b32 s3, s3, 8\ns_add_u32 s%d, s%d, s3" % (sJJ, sP, sT3, sT3))
    a("s_lshl_b32 s3, s%d, 10\ns_add_u32 s%d, s%d, s3" % (lw, sH, sH))
    stamp(1, 1)
    a("s_waitcnt vmcnt(%d)" % (5 * (7 - nb2)))
    lds_signal(LF_B, lw, 22)
    AF = OPT["afirst"]
    if AF:
        a("v_lshrrev_b32 v4, 1, v254\nv_add_u32 v4, %d, v4\nds_write_b64 v4, v[252:253]" % GAL)
        stamp(8); stamp(6, 1)
        g2_flagoff(3, KS_L)
        poll(3, sORD, 4, 4, "hq")
        stamp(9); stamp(7, 1); stamp(1, 2)
        if OPT["ap"]: a("s_setprio %d" % OPT["ap"])
        vq = VM(); G = 108
        loadA(0, True); loadA(1, True); vq.add("A0", 4); vq.add("A1", 4)
        lateB = list(range(nbq, 7))
        if lateB: loadB(lateB.pop(0), True); vq.add("B", 5)
        for s in range(4):
            vq.wait("A%d" % s)
            g2_step(s, True)
            if s < 2: loadA(s + 2, True); vq.add("A%d" % (s + 2), 4)
            if lateB and s < 2: loadB(lateB.pop(0), True); vq.add("B", 5)
            if s == OPT["gh"]:
                a("v_cndmask_b32 v%d, v1, v2, s[%d:%d]" % (G + 10, sEX, sEX+1))
                a("buffer_load_dwordx4 %s, v1, %s, s%d offen sc1\nbuffer_load_dwordx4 %s, v%d, %s, s%d offen sc1" % (R4(G), S(S_WS), sH, R4(G + 4), G + 10, S(S_WS), sH)); vq.add("G", 2)
        assert not lateB
        stamp(8, 1)
    PQ = 224; AD = 248
    W32, W16, O, RM, G = (84, 98, 108, 156, 108) if AF else (4, 18, 28, 76, 28)
    if not AF: a("v_cndmask_b32 v%d, v1, v2, s[%d:%d]" % (G + 10, sEX, sEX+1))
    def gl(): a("buffer_load_dwordx4 %s, v1, %s, s%d offen sc1\nbuffer_load_dwordx4 %s, v%d, %s, s%d offen sc1" % (R4(G), S(S_WS), sH, R4(G + 4), G + 10, S(S_WS), sH))
    if AF:
        a("s_lshl_b32 s3, s%d, 9\ns_add_u32 s3, s3, %d\nv_lshl_add_u32 v%d, v0, 3, s3\nds_read_b64 %s, v%d" % (lw, GAL, G + 12, R2(G + 12), G + 12))
    else: a("v_mov_b64 %s, v[252:253]" % R2(G + 12))
    import re
    def ag(x): a(re.sub(r"@(\d+)@", lambda m: str(G + int(m.group(1))), x))
    ag("v_and_b32 v@16@, 15, v0\nv_lshrrev_b32 v@15@, 4, v0\ns_mul_i32 s3, s%d, 4608\ns_add_u32 s3, s3, %d" % (sP, IMG))
    ag("v_lshl_add_u32 v@17@, v@16@, 2, v@15@\nv_lshl_add_u32 v%d, v@17@, 3, s3\nv_lshl_add_u32 v%d, v@17@, 4, s3" % (AD+1, AD))
    ag("v_and_b32 v@18@, 3, v@16@\nv_min_u32 v@18@, 1, v@18@\nv_cmp_eq_u32 vcc, 2, v@16@\nv_lshlrev_b32 v@16@, 4, v@16@\nv_lshl_add_u32 v%d, v@15@, 10, v@16@\nv_cndmask_b32 v@18@, v@18@, 0, vcc" % (AD+4))
    ag("v_add_u32 v@18@, 40, v@18@\nv_lshl_add_u32 v@18@, v@18@, 2, v@15@\nv_lshl_add_u32 v%d, v@18@, 3, s3\nv_lshl_add_u32 v%d, v@18@, 4, s3\nv_mov_b32 v%d, 0x358637bd" % (AD+3, AD+2, AD+5))
    lds_wait(LF_PQ, lw, 1, 254, 2)
    ag("s_setprio 2")
    ag("s_mul_i32 s3, s%d, 6144\ns_add_u32 s3, s3, %d\nv_add_u32 v@20@, s3, v1\nv_lshl_add_u32 v@21@, v0, 3, s3" % (lw, PQL))
    for i in range(4): ag("ds_read_b128 %s, v@20@ offset:%d\nds_read_b64 %s, v@21@ offset:%d" % (R4(PQ + 6*i), 1024*i, R2(PQ + 6*i + 4), 4096 + 512*i))
    if not AF: gl()
    ag("s_mov_b32 s%d, %d" % (sSpin, SPIN))
    a.label("L_gather")
    a("s_waitcnt vmcnt(0)")
    tagchk(G + 8, list(range(G, G + 8)))
    a("s_cbranch_vccz L_gatherok\ns_sleep %d" % OPT["slp"])
    gl()
    a("s_sub_u32 s%d, s%d, 1\ns_cbranch_scc0 L_gather\ns_waitcnt vmcnt(0)" % (sSpin, sSpin))
    a.label("L_gatherok")
    stamp(7); stamp(2, 1)
    if OPT["yld"]: lds_signal(LF_PQ, lw, 254)
    for k in range(4): a("v_cvt_pk_bf16_f32 v%d, v%d, v%d" % (G + k, G + 2*k, G + 1 + 2*k))
    a("ds_write_b64 v%d, %s\nds_write_b64 v%d, %s\ns_waitcnt lgkmcnt(0)" % (G + 12, R2(G), G + 13, R2(G + 2)))
    lds_signal(LF_IMG, None, 254)
    lds_wait(LF_IMG, None, 4, 254, 0)
    stamp(3, 1)
    for to in range(3): a("ds_read_b128 %s, v%d offset:%d" % (R4(W32 + 4*to), AD, 1024*to))
    a("ds_read_b128 %s, v%d" % (R4(W32 + 12), AD+2))
    for to in range(1, 3): a("ds_read_b64 %s, v%d offset:%d" % (R2(W16 + 2*to), AD+1, 3072 + 512*to))
    a("ds_read_b64 %s, v%d offset:3072\ns_waitcnt lgkmcnt(0)" % (R2(W16 + 6), AD+3))
    def Oreg(i, to): return O + 16*(i % 3) + 4*to
    def omfma(i):
        for to in range(4): a("v_mfma_f32_16x16x32_bf16 %s, %s, %s, 0" % (R4(Oreg(i, to)), R4(W32 + 4*to), R4(PQ + 6*i)))
    def omfma2(i):
        for to in (3, 1, 2): a("v_mfma_f32_16x16x16_bf16 %s, %s, %s, %s" % (R4(Oreg(i, to)), R2(W16 + 2*to), R2(PQ + 6*i + 4), R4(Oreg(i, to))))
    def oden(i):
        d = Oreg(i, 3)
        for j in range(3): a("v_add_f32 v%d, v%d, v%d" % (d + j, d + j, AD+5))
        for j in range(3): a("v_rcp_f32 v%d, v%d" % (d + j, d + j))
    def ofin(i):
        d = Oreg(i, 3)
        for to, sel in ((0, 0), (2, 1), (1, 2)):
            for q in range(2):
                x = Oreg(i, to) + 2*q
                if OPT["sco"]: a("v_mul_f32 v%d, v%d, v%d\nv_mul_f32 v%d, v%d, v%d" % (x, x, d + sel, x + 1, x + 1, d + sel))
                else: a("v_pk_mul_f32 %s, %s, %s op_sel:[0,%d] op_sel_hi:[1,%d]" % (R2(x), R2(x), R2(d + (sel & 2)), sel & 1, sel & 1))
        for k in (4, 5, 0, 1, 2, 3): a("v_cvt_pk_bf16_f32 v%d, v%d, v%d" % (PQ + 6*i + k if k < 4 else RM + 2*i + k - 4, Oreg(i, 0) + 2*k, Oreg(i, 0) + 2*k + 1))
    def ost(i): st_a2("buffer_store_dwordx4 %s, v1, %s, s%d offen offset:%d" % (R4(PQ + 6*i), S(S_WS), sT2, 1024*i))
    for i in range(3): omfma(i)
    for i in range(3): omfma2(i)
    oden(0); ofin(0); omfma(3); ost(0); oden(1); oden(2); omfma2(3); ofin(1); ost(1); oden(3); ofin(2); ost(2); ofin(3); ost(3)
    for k in range(2): a("v_permlane16_swap_b32 v%d, v%d" % (RM + k, RM + 2 + k))
    for k in range(2): a("v_permlane16_swap_b32 v%d, v%d" % (RM + 4 + k, RM + 6 + k))
    a("s_nop 1")
    for k in range(4): a("v_permlane32_swap_b32 v%d, v%d" % (RM + k, RM + 4 + k))
    st_a2("buffer_store_dwordx4 %s, v%d, %s, s%d offen" % (R4(RM), AD+4, S(S_WS), sT3))
    stamp(4, 1)
    if OPT["yld"]: lds_signal(LF_PQ, lw, 254)
    ks_flag(sT2, sA, 0, 254)
    lds_signal(LF_Q, None, 252)
    stamp(5, 1)
    a("s_setprio 0")
    if AF:
        loadB(7, True); loadB(8, True)
        a("s_branch L_oslow2")
    a.label("L_la")
    stamp(8); stamp(6, 1)
    g2_flagoff(3, KS_L)
    poll(3, sORD, 4, 4, "hl")
    stamp(9); stamp(7, 1); stamp(1, 2)
    if OPT["ap"]: a("s_setprio %d" % OPT["ap"])
    vm = VM()
    AO = [124, 144, 224, 124]
    so = [sLA, sLA + 1, sLA + 2, sLA + 3, sAo2]
    def ldo(i):
        for s in range(5): a("buffer_load_dwordx4 %s, v1, %s, s%d offen offset:%d%s" % (R4(AO[i] + 4*s), S(S_WS), so[s], 1024*i, ALD))
        for s in range(5): vm.add("O%d%d" % (i, s))
    loadA(0, True); loadA(1, True); vm.add("A0", 4); vm.add("A1", 4)
    for s in range(4):
        vm.wait("A%d" % s)
        g2_step(s, True)
        if s < 2: loadA(s + 2, True); vm.add("A%d" % (s + 2), 4)
        if s == 1:
            a("v_lshlrev_b32 v3, 2, v0\ns_mov_b64 exec, 15\nbuffer_load_dword v3, v3, %s, s%d offen%s\ns_mov_b64 exec, -1" % (S(S_WS), sORD + 1, PLD)); vm.add("F")
            loadB(7, True); loadB(8, True); vm.add("B", 10)
        if s == 2:
            vm.wait("F")
            a("v_cmp_ne_u32 vcc, s%d, v3\ns_and_b32 s%d, vcc_lo, 15\ns_cbranch_scc1 L_oslow" % (sTAG, sK0))
            ldo(0)
    ldo(1); ldo(2)
    a.label("L_oback")
    mark = len(a.lines)
    a.label("L_oslow")
    g2_step(3, True)
    a.label("L_oslow2")
    a("s_setprio 0\nv_lshlrev_b32 v3, 2, v0")
    stamp(9, 1)
    poll(3, sORD + 1, 4, 248, "o")
    q = list(vm.q); ldo(0); ldo(1); ldo(2); vm.q = q
    a("s_branch L_oback")
    SLOW = a.lines[mark:]; del a.lines[mark:]
    a("s_setprio 0")
    stamp(10); stamp(10, 1); stamp(6, 2)
    paddr(251, 249, 250)
    a("s_mul_i32 s3, s%d, 5120\ns_add_u32 s3, s3, %d\nv_add_u32 v250, s3, v251\ns_mul_i32 s3, s%d, %d\nv_add_u32 v251, s3, v251\nv_add_u32 v249, 20480, v251" % (sM, 4*EBS, sM, EBS))
    a("v_mov_b32 v252, %d\nv_mov_b32 v253, 1" % (LFLAG + LF_T))
    def sig(i): return "s_mov_b64 exec, 1\ns_waitcnt lgkmcnt(0)\nds_add_u32 v252, v253 offset:%d\ns_mov_b64 exec, -1" % (4*i)
    pend = []
    for i in range(4):
        k = 0
        stamp(7 + i, 2)
        for s in range(5):
            vm.wait("O%d%d" % (i, s))
            for t in range(5):
                g2_mfma(Dreg(i, t, True), Breg(4 + s, t, True), AO[i] + 4*s, False)
                k += 1
                if pend and k >= 4: a(pend.pop(0))
            if i > 0 and s == 2: a(sig(i - 1))
        if i == 0:
            ldo(3)
            lds_wait(LF_B, lw, 2, 254)
        if i == 2: lds_wait(LF_Q, None, 4, 254)
        if i == 3: lds_wait(LF_PRE, None, 8, 254)
        pend = ["ds_write_b128 v%d, %s offset:%d" % ((249, 249, 250, 251)[i], R4(Dreg(i, t, True)), (5120 if i == 1 else 0) + 64*t) for t in range(5)]
    for x in pend: a(x)
    stamp(11); stamp(11, 1); stamp(11, 2)
    a(sig(3))
    stamp(12)
    a("s_branch L_alldone")
    a.lines.extend(SLOW)

ACC = 8; F0 = 120; F1 = 164
vA0, vA1, vS, vS2, vH = 208, 209, 210, 211, 212
vB1 = 216
def acc(i, t): return ACC + (i * 7 + t) * 4

def compute_prologue():
    sQ, sU, sUe, sJ0, sJ1, sJ2, sCd = sLA, sLP, sH, sLP4, sLH, sA, sP
    a("s_lshr_b32 s%d, s%d, 1\ns_and_b32 s%d, s%d, 1" % (sM, sWV, sN, sWV))
    a("s_lshl_b32 s3, s%d, 3\ns_add_u32 s3, s3, s%d\ns_lshl_b32 s3, s3, 2\ns_add_u32 s3, s3, s%d\ns_lshl_b32 s3, s3, 1\ns_lshl_b32 s%d, s%d, 7\ns_add_u32 s3, s3, s%d" % (sTY, sJJ, sWV, sT1, sRB, sT1))
    a("s_mul_i32 s%d, s3, 1280\ns_lshl_b32 s%d, s3, 4\ns_add_u32 s%d, s%d, 0x%x" % (sT1, sT2, sT2, sT2, STAT_OFF))
    a("v_lshrrev_b32 v5, 5, v0\nv_and_b32 v6, 31, v0\nv_mul_u32_u24 v7, 1280, v5\nv_lshl_add_u32 v224, v6, 4, v7\nv_lshl_add_u32 v225, v6, 3, v7")
    a("s_lshl_b32 s%d, s%d, 7\ns_lshl_b32 s3, s%d, 3\ns_add_u32 s%d, s%d, s3\ns_add_u32 s%d, s%d, s%d" % (sQ, sWV, sRB, sQ, sQ, sQ, sQ, sJJ))
    a("s_mov_b32 s%d, s%d\ns_movk_i32 s%d, %d" % (sU, sQ, sUe, NQU))
    a("s_add_u32 s3, s%d, %d\ns_add_u32 s%d, s3, 1\ns_min_u32 s%d, s%d, 680\ns_cmp_eq_u32 s%d, 0\ns_cselect_b32 s%d, s3, s%d\ns_cselect_b32 s%d, s%d, s%d" % (sQ, NQU, sK0, sK0, sK0, sTY, sU, sU, sUe, sK0, sUe))
    if OPT["nojob"]: a("s_mov_b32 s%d, 0" % sUe)
    a("v_lshrrev_b32 v2, 3, v0\nv_and_b32 v4, 7, v0\nv_and_b32 v7, 6, v2\nv_xor_b32 v7, v4, v7\nv_lshlrev_b32 v4, 4, v7\nv_and_b32 v6, 3, v2")
    a("s_lshl_b32 s3, s%d, 12\ns_add_u32 m0, s3, %d\ns_mov_b32 s%d, 0x20000\ns_mov_b32 s%d, s%d" % (sWV, JOBL, S_J+3, sK0, sU))
    a("s_mov_b32 s%d, 0x%x\ns_mov_b32 s%d, 0x20000\ns_waitcnt lgkmcnt(0)\ns_mov_b32 s%d, s36\ns_mov_b32 s%d, s37" % (S_X+2, 2048*1280, S_X+3, S_X, S_X+1))
    XL = 124; U = 136
    a("buffer_load_dwordx4 %s, v224, %s, s%d offen\nbuffer_load_dwordx4 %s, v224, %s, s%d offen offset:512\nbuffer_load_dwordx2 %s, v225, %s, s%d offen offset:1024" % (R4(XL), S(S_X), sT1, R4(XL+4), S(S_X), sT1, R2(XL+8), S(S_X), sT1))
    a("s_add_u32 s%d, s56, 0x%x\ns_addc_u32 s%d, s57, 0\ns_load_dword s%d, s[%d:%d], 0" % (sEX, EPOCH, sEX+1, sTAG, sEX, sEX+1))
    if OPT["spf"]:
        a("s_lshl_b32 s3, s2, 2\ns_add_u32 s3, s3, s%d\ns_mul_i32 s%d, s3, 1920\ns_add_u32 s%d, s48, s%d\ns_addc_u32 s%d, s49, 0" % (sWV, sK1, S_P, sK1, S_P+1))
        a("s_mul_i32 s%d, s3, 800\ns_and_b32 s%d, s%d, 0xffffff80\ns_min_u32 s%d, s%d, %d\ns_add_u32 s%d, s40, s%d\ns_addc_u32 s%d, s41, 0" % (sK1, sK1, sK1, sK1, sK1, 640*1280 - 7*128, S_P+2, sK1, S_P+3))
        for h in range(OPT["spf"]):
            for i in range(15): a("s_load_dword s%d, s[%d:%d], %d" % (sSpin, S_P, S_P+1, 128*i + 64*h))
            for i in range(7): a("s_load_dword s%d, s[%d:%d], %d" % (sSpin, S_P+2, S_P+3, 128*i + 64*h))
    a("v_mov_b32 v193, v5\nv_mov_b32 v194, v6\nv_mov_b32 v197, v4")
    def job_issue():
        a.label("L_jrl")
        a("s_cmp_ge_u32 s%d, s%d\ns_cbranch_scc1 L_nojob1" % (sK0, sUe))
        a("s_mul_i32 s3, s%d, 6554\ns_lshr_b32 s%d, s3, 16\ns_mul_i32 s3, s%d, 10\ns_sub_u32 s%d, s%d, s3" % (sK0, sK1, sK1, sT3, sK0))
        a("s_cmp_lt_u32 s%d, 48\ns_cselect_b32 s%d, s48, s40\ns_cselect_b32 s%d, s49, s41\ns_mov_b32 s%d, %d\ns_cselect_b32 s%d, %d, s%d" % (sK1, S_J, S_J+1, S_J+2, 640*1280, S_J+2, 1536*1280, S_J+2))
        a("s_lshl_b32 s%d, s%d, 5\ns_mul_i32 s3, s%d, 40\ns_sub_u32 s3, s3, %d\ns_cmp_lt_u32 s%d, 48\ns_cselect_b32 s%d, s%d, s3" % (sJ0, sK1, sK1, 48*40, sK1, sJ0, sJ0))
        a("s_mul_i32 s3, s%d, 160\ns_sub_u32 s3, s3, %d\ns_cmp_lt_u32 s%d, 64\ns_cselect_b32 s%d, s%d, s3\ns_cselect_b32 s%d, 4, 40\ns_cselect_b32 s%d, 16, 4" % (sK1, 64*160 - 32, sK1, sJ0, sJ0, sJ1, sJ2))
        a("v_mad_u32_u24 v195, s%d, v193, v194\nv_mul_u32_u24 v195, 1280, v195\nv_add_u32 v196, v197, v195" % sJ1)
        a("s_mul_i32 s%d, s%d, 1280\ns_lshl_b32 s3, s%d, 7\ns_add_u32 s%d, s%d, s3\ns_mul_i32 s%d, s%d, 2560\ns_mul_i32 s%d, s%d, 1280" % (sJ0, sJ0, sT3, sJ0, sJ0, sJ1, sJ1, sJ2, sJ2))
        a("s_add_u32 s3, s%d, s%d\nbuffer_load_dwordx4 v196, %s, s%d offen lds" % (sJ0, sJ1, S(S_J), sJ0))
        a("s_add_u32 m0, m0, 0x400\ns_add_u32 s%d, s%d, s%d\nbuffer_load_dwordx4 v196, %s, s3 offen lds" % (sJ0, sJ0, sJ2, S(S_J)))
        a("s_add_u32 m0, m0, 0x400\ns_add_u32 s3, s%d, s%d\nbuffer_load_dwordx4 v196, %s, s%d offen lds" % (sJ0, sJ1, S(S_J), sJ0))
        a("s_add_u32 m0, m0, 0x400\ns_add_u32 s%d, s%d, 512\nbuffer_load_dwordx4 v196, %s, s3 offen lds" % (sK0, sK0, S(S_J)))
        a("s_add_u32 m0, m0, 0x3400\ns_branch L_jrl")
        a.label("L_nojob1")
    if OPT["jpos"] == 0 and not OPT["lj"]: job_issue()
    srd(S_B1, 46, 3072); srd(S_WS, 56, WS_SIZE); srd(S_OUT, 52, 2048*1280); srd(S_B2, 50, 1280)
    a("v_and_b32 v2, 15, v0\nv_lshrrev_b32 v3, 4, v0\nv_lshrrev_b32 v4, 1, v2\nv_xor_b32 v4, v4, v3\nv_lshlrev_b32 v4, 4, v4\nv_lshl_add_u32 v4, v2, 7, v4\nv_lshlrev_b32 v1, 3, v3")
    a("s_lshl_b32 s3, s%d, 13\nv_add_u32 v%d, s3, v4\nv_xor_b32 v%d, 64, v%d" % (sM, vA0, vA1, vA0))
    a("v_lshlrev_b32 v226, 2, v2\nv_add_u32 v226, %d, v226" % LFLAG)
    a("v_lshrrev_b32 v2, 2, v0\nv_and_b32 v3, 3, v0\nv_mul_u32_u24 v4, 160, v2\ns_mul_i32 s3, s%d, 80\nv_add_u32 v4, s3, v4\nv_lshl_add_u32 v%d, v3, 3, v4" % (sN, vS))
    a("v_and_b32 v5, 1, v3\nv_lshl_add_u32 v4, v5, 3, v4\nv_add_u32 v4, %d, v4" % (K_OFF + 64))
    a("s_cmp_eq_u32 s%d, 0\ns_cselect_b32 s3, %d, 0\nv_lshrrev_b32 v5, 1, v3\nv_mad_u32_u24 v%d, v5, s3, v4" % (sTY, V_OFF - K_OFF - 64, vS2))
    a("v_lshlrev_b32 v4, 7, v2\nv_lshl_add_u32 v4, v3, 3, v4\nv_bfe_u32 v5, v0, 3, 2\nv_lshl_add_u32 v4, v5, 5, v4")
    a("s_lshl_b32 s3, s%d, 12\ns_add_u32 s3, s3, %d\nv_add_u32 v200, s3, v4" % (sWV, JOBL))
    a("s_lshl_b32 s3, s%d, 6\ns_cmp_eq_u32 s%d, 0\ns_cselect_b32 s3, s3, 0\nv_xor_b32 v4, s3, v4" % (sN, sTY))
    a("s_lshl_b32 s3, s%d, 13\ns_add_u32 s3, s3, %d\ns_cmp_eq_u32 s%d, 0\ns_cselect_b32 s3, %d, s3" % (sN, HQ_OFF, sTY, HKV_OFF))
    for t in range(4): a("v_xor_b32 v5, %d, v4\nv_add_u32 v%d, s3, v5" % (32*t, vH + t))
    a("s_lshl_b32 s3, s%d, 6\ns_lshl_b32 s3, s3, s%d\ns_lshl_b32 s%d, s%d, 7\ns_add_u32 s3, s3, s%d\ns_mul_i32 s%d, s%d, 384\ns_add_u32 s%d, s3, s%d" % (sN, sTY, sIncP, sTY, sIncP, sIncP, sJJ, sIncP, sIncP))
    for t in range(4): a("buffer_load_dwordx2 %s, v1, %s, s%d offen offset:%d" % (R2(vB1 + 2*t), S(S_B1), sIncP, 32*t))
    for r in range(ACC, ACC + 112, 2): a("v_mov_b64 %s, 0" % R2(r))
    a("s_waitcnt lgkmcnt(0)\ns_and_b32 s3, s%d, 0x7f7f7f7f\ns_add_u32 s3, s3, 0x35251513\ns_and_b32 s%d, s%d, 0x80808080\ns_xor_b32 s%d, s%d, s3" % (sTAG, sTAG, sTAG, sTAG, sTAG))
    a("v_mov_b32 v6, 0\nv_mov_b32 v7, s%d\nds_write2_b32 v226, v6, v7 offset0:0 offset1:16" % sTAG)
    stamp(1)
    def allreduce32(v, t):
        for ctl in ("quad_perm:[1,0,3,2]", "quad_perm:[2,3,0,1]", "row_half_mirror", "row_mirror"):
            a("s_nop 1\nv_add_f32_dpp v%d, v%d, v%d %s row_mask:0xf bank_mask:0xf" % (v, v, v, ctl))
        a("v_mov_b32 v%d, v%d\ns_nop 1\nv_permlane16_swap_b32 v%d, v%d\ns_nop 1\nv_add_f32 v%d, v%d, v%d" % (t, v, v, t, v, v, t))
    if OPT["jpos"] == 0:
        a("s_cmp_lt_u32 s%d, s%d\ns_cbranch_scc1 L_w4\ns_waitcnt vmcnt(4)" % (sU, sUe))
        a.label("L_w4"); a("s_waitcnt vmcnt(8)")
    else: a("s_waitcnt vmcnt(4)")
    for i in range(10): unpack(U + 2*i, XL + i)
    a("v_pk_add_f32 v[2:3], %s, %s\nv_pk_add_f32 v[4:5], %s, %s" % (R2(U), R2(U + 2), R2(U + 4), R2(U + 6)))
    for i in range(4, 10): a("v_pk_add_f32 %s, %s, %s" % (R2(2 + 2*(i & 1)), R2(2 + 2*(i & 1)), R2(U + 2*i)))
    a("v_pk_add_f32 v[2:3], v[2:3], v[4:5]\nv_add_f32 v2, v2, v3")
    allreduce32(2, 3)
    a("v_mul_f32 v2, 0x3acccccd, v2")
    for i in range(10): a("v_pk_add_f32 %s, %s, v[2:3] op_sel_hi:[1,0] neg_lo:[0,1] neg_hi:[0,1]" % (R2(U + 2*i), R2(U + 2*i)))
    a("v_pk_mul_f32 v[4:5], %s, %s\nv_pk_mul_f32 v[6:7], %s, %s" % (R2(U), R2(U), R2(U + 2), R2(U + 2)))
    for i in range(2, 10): a("v_pk_fma_f32 %s, %s, %s, %s" % (R2(4 + 2*(i & 1)), R2(U + 2*i), R2(U + 2*i), R2(4 + 2*(i & 1))))
    a("v_pk_add_f32 v[4:5], v[4:5], v[6:7]\nv_add_f32 v4, v4, v5")
    allreduce32(4, 5)
    a("v_mul_f32 v4, 0x3acccccd, v4")
    bf16_round(4); a("v_add_f32 v4, 0x3727c5ac, v4"); bf16_round(4)
    a("v_sqrt_f32 v4, v4\ns_nop 0"); bf16_round(4); bf16_round(2)
    a("v_rcp_f32 v232, v4\nv_mov_b32 v233, s%d\nv_mov_b32 v235, s%d\nv_mul_f32 v234, v232, v2\nv_lshrrev_b32 v5, 1, v0" % (sTAG, sTAG))
    a("s_mov_b32 exec_lo, 1\ns_mov_b32 exec_hi, 1\nbuffer_store_dwordx4 v[232:235], v5, %s, s%d offen sc1\ns_mov_b64 exec, -1" % (S(S_WS), sT2))
    stamp(2)
    if OPT["jpos"] == 1 and not OPT["lj"]: job_issue()
    a("s_and_b32 s3, s2, 7\ns_cmp_lt_u32 s3, 5\ns_cselect_b32 s%d, 1, 0\ns_cbranch_scc0 L_nosel" % sA)
    a("s_lshl_b32 s3, s3, 1\ns_and_b32 s%d, s%d, 1\ns_add_u32 s3, s3, s%d\ns_lshl_b32 s%d, s%d, 3\ns_add_u32 s%d, s%d, s%d\ns_mul_i32 s%d, s%d, 10\ns_add_u32 s3, s3, s%d\ns_lshl_b32 s3, s3, 10\ns_mul_i32 s%d, s%d, 448\ns_add_u32 s3, s3, s%d\ns_lshl_b32 s%d, s%d, 8\ns_add_u32 s3, s3, s%d\ns_add_u32 s%d, s3, 0x%x" % (sA, sRB, sA, sA, sTY, sA, sA, sJJ, sA, sA, sA, sA, sN, sA, sA, sM, sA, sA, CSP_OFF))
    a("v_and_b32 v6, 15, v0\nv_mov_b32 v7, 0x3f803f80\nv_and_b32 v4, 48, v0\nv_lshl_add_u32 v4, v6, 6, v4\nv_mov_b32 v5, 0xff")
    for t in range(4):
        a("v_cmp_eq_u32 vcc, %d, v6\ns_lshr_b32 s%d, s%d, %d\ns_nop 0\nv_cndmask_b32 v%d, 0, v7, vcc\nv_cndmask_b32 v%d, 0, v7, vcc\nv_mov_b64 %s, %s" % (t, TB[t], sTAG, 8*t, 236 + 4*t, 237 + 4*t, R2(238 + 4*t), R2(236 + 4*t)))
    a.label("L_nosel")
    a("v_lshlrev_b32 v1, 4, v0\nv_mov_b32 v2, v200\nv_xor_b32 v3, 32, v200\nv_xor_b32 v6, 64, v200\nv_xor_b32 v7, 0x60, v200")
    for (d, add) in ((sK0, 0), (sK1, 512)):
        a("s_add_u32 s3, s%d, %d\ns_lshl_b32 s%d, s3, 12\ns_add_u32 s%d, s%d, 0x%x\ns_cmp_lt_u32 s3, s%d\ns_cselect_b32 s%d, s%d, 0x%x" % (sU, add, d, d, d, B2_OFF, sUe, d, d, OOB))

def frag_reads(ty, F, ks2):
    r = []
    for i in range(4): r.append("ds_read_b128 %s, v%d offset:%d" % (R4(F + 4*i), vA1 if ks2 else vA0, 2048*i))
    nseg = 5 if ty == 0 else 3
    for t in range(7):
        d = F + 16 + 4*t
        for rd in range(2):
            if t < nseg:
                if t == 2: reg, off = vS2, 0
                elif t < 2: reg, off = vS, K_OFF + 32*t
                else: reg, off = vS, V_OFF + 16 + 32*(t - 3)
                off += ks2 * 5120 + rd * 2560
            else: reg, off = vH + (t - nseg), ks2 * 4096 + rd * 2048
            r.append("ds_read_b64_tr_b16 %s, v%d offset:%d" % (R2(d + 2*rd), reg, off))
    return r
def transposed(ty, t): return ty == 1 or t >= 5
def mfmas(ty, F, order=None):
    r = []
    for (t, i) in (order or [(t, i) for t in range(7) for i in range(4)]):
        B = R4(F + 16 + 4*t); A = R4(F + 4*i); D = R4(acc(i, t))
        r.append("v_mfma_f32_16x16x32_bf16 %s, %s, %s, %s" % ((D, B, A, D) if transposed(ty, t) else (D, A, B, D)))
    return r
def interleave(mm, rr):
    for k, x in enumerate(mm):
        a(x)
        if k < len(rr): a(rr[k])
def addr_regs(ty): return [vA0, vA1, vS, vS2] + [vH + t for t in range(2 if ty == 0 else 4)]

CT = 120; RS = 148; BF = 156; KC = 172; TMP = 176; T2P = 208; R4S = 224

def epi_reads(ty):
    a("v_and_b32 v4, 15, v0\nv_lshlrev_b32 v4, 2, v4\ns_lshl_b32 s3, s%d, 8\ns_add_u32 s3, s3, %d\nv_add_u32 v5, s3, v4" % (sM, STATL))
    a("v_and_b32 v6, 48, v0\nv_add_u32 v3, s3, v6\ns_mul_i32 s3, s%d, 448\ns_add_u32 s3, s3, %d\nv_add_u32 v6, s3, v6\nv_add_u32 v4, s3, v4\nv_mov_b32 v7, %d" % (sN, CSL, FASTL))
    if ty == 0:
        for i in range(4): a("ds_read_b128 %s, v3 offset:%d\nds_read_b128 %s, v3 offset:%d" % (R4(R4S + 4*i), 64*i, R4(R4S + 16 + 4*i), 512 + 64*i))
    for t in range(7):
        if transposed(ty, t): a("ds_read_b128 %s, v6 offset:%d" % (R4(CT + 4*t), 64*t))
        else: a("ds_read_b32 v%d, v4 offset:%d" % (CT + 4*t, 64*t))
    for i in range(4): a("ds_read2_b32 %s, v5 offset0:%d offset1:%d" % (R2(RS + 2*i), 16*i, 128 + 16*i))
    a("ds_read_b32 v7, v7\nv_lshlrev_b32 v1, 4, v0")
    if ty == 0: a2_soff(sT2, sM, lambda: a("s_mul_i32 s3, s%d, 6\ns_add_u32 s3, s3, s%d" % (sJJ, sN)))
    else:
        a2_soff(sT2, sM, lambda: a("s_mul_i32 s3, s%d, 6\ns_lshl_b32 s%d, s%d, 1\ns_add_u32 s3, s3, s%d\ns_add_u32 s3, s3, 2" % (sJJ, sT1, sN, sT1)))
        a("s_add_u32 s%d, s%d, 4096" % (sT3, sT2))

def main_loop(ty):
    a("s_mov_b32 s%d, 0\ns_mov_b32 s%d, 0\ns_waitcnt lgkmcnt(0)" % (sCnt, sSlot))
    stamp(3)
    a("s_barrier")
    stamp(4)
    for x in frag_reads(ty, F0, 0): a(x)
    a("s_cmp_eq_u32 s%d, 0\ns_cbranch_scc1 L_ent%d\ns_cmp_lg_u32 s%d, 0\ns_cbranch_scc1 L_cs1%d" % (sA, ty, sM, ty))
    rr = frag_reads(ty, F1, 1)[4:]
    for m in range(2):
        tl = list(range(4*m, min(7, 4*m + 4)))
        for t in tl: a(rr[2*t]); a(rr[2*t + 1])
        a("s_waitcnt lgkmcnt(%d)" % (2 * len(tl)))
        for k, t in enumerate(tl): a("v_mfma_f32_16x16x32_bf16 v[252:255], %s, %s, %s" % (R4(F0 + 16 + 4*t), R4(236 + 4*k), "0" if k == 0 else "v[252:255]"))
        a("s_waitcnt lgkmcnt(0)")
        for k, t in enumerate(tl): a("v_mfma_f32_16x16x32_bf16 v[252:255], %s, %s, v[252:255]" % (R4(F1 + 16 + 4*t), R4(236 + 4*k)))
        a("s_mov_b32 s3, 0x%x" % (0x000f000f if m == 0 else 0x00070007))
        if m == 0: a("s_branch L_cs2%d" % ty); a.label("L_cs1%d" % ty)
    a.label("L_cs2%d" % ty)
    a("s_nop 6")
    for k in range(4): a("v_bfi_b32 v%d, v5, s%d, v%d" % (252 + k, TB[k], 252 + k))
    a("s_mov_b32 exec_lo, s3\ns_mov_b32 exec_hi, s3\nbuffer_store_dwordx4 v[252:255], v4, %s, s%d offen sc1\ns_mov_b64 exec, -1" % (S(S_WS), sA))
    a.label("L_ent%d" % ty)
    a("s_waitcnt lgkmcnt(0)\ns_branch L_mid%d" % ty)
    upd = ["v_add_u32_e64 v%d, s%d, v%d" % (r, sT1, r) for r in addr_regs(ty)]
    sal = "s_add_u32 s%d, s%d, 1\ns_cmp_eq_u32 s%d, 3\ns_cselect_b32 s%d, 0, s%d\ns_mov_b32 s%d, %d\ns_cselect_b32 s%d, %d, s%d\ns_add_u32 s%d, s%d, 1" % (sSlot, sSlot, sSlot, sSlot, sSlot, sT1, SLOT, sT1, (-2*SLOT) & 0xffffffff, sT1, sCnt, sCnt)
    peel = (ty == 1 or OPT["kvu"] > 0) and not OPT["lj"]
    if peel:
        align8()
        a.label("L_early%d" % ty)
        a("s_cmp_eq_u32 s%d, %d\ns_waitcnt lgkmcnt(0)\ns_cbranch_scc0 L_top%d\ns_nop 0" % (sCnt, OPT["pit"], ty))
        a.label("L_peel%d" % ty)
        a("s_barrier\ns_waitcnt vmcnt(0)")
        ad = [2, 3, 6, 7]
        def tr(u): return ["ds_read_b64_tr_b16 %s, v%d offset:%d\nds_read_b64_tr_b16 %s, v%d offset:%d" % (R2(224 + 16*u + 4*t), ad[t], 16384*u, R2(226 + 16*u + 4*t), ad[t], 16384*u + 2048) for t in range(4)]
        def stj(u): return ["buffer_store_dwordx4 %s, v1, %s, s%d offen offset:%d sc1" % (R4(224 + 16*u + 4*t), S(S_WS), (sK0, sK1)[u], 1024*t) for t in range(4)]
        fr = frag_reads(ty, F0, 0)
        fr2 = ["\n".join(fr[k:k+2]) for k in range(0, 18, 2)]
        st0 = stj(0)
        fill = tr(0) + fr2 + (tr(1) if QPER > 1 else ["s_nop 0\ns_nop 0"] * 4) + ["s_waitcnt lgkmcnt(8)\ns_nop 0\n" + st0[0], None, None, st0[1], None, None, st0[2], None, None, st0[3]]
        for k, x in enumerate(mfmas(ty, F1)):
            a(x)
            if k < len(fill) and fill[k]: a(fill[k])
        a("s_waitcnt lgkmcnt(0)\ns_nop 0")
        fill = frag_reads(ty, F1, 1) + [sal] + upd
        st1 = stj(1) if QPER > 1 else []
        for k, x in enumerate(mfmas(ty, F0)):
            a(x)
            if k < len(fill): a(fill[k])
            if st1 and k % 3 == 1: a(st1.pop(0))
        a("s_waitcnt lgkmcnt(0)\ns_nop 0")
    align8()
    a.label("L_top%d" % ty)
    a("s_barrier\ns_nop 0")
    interleave(mfmas(ty, F1), frag_reads(ty, F0, 0))
    a("s_waitcnt lgkmcnt(0)\ns_nop 0")
    a.label("L_mid%d" % ty)
    interleave(mfmas(ty, F0), frag_reads(ty, F1, 1) + [sal] + upd)
    if peel:
        a("s_cmp_le_u32 s%d, %d\ns_cbranch_scc1 L_early%d" % (sCnt, OPT["pit"], ty))
    a("s_cmp_lt_u32 s%d, 10\ns_waitcnt %slgkmcnt(0)\ns_cbranch_scc1 L_top%d" % (sCnt, "vmcnt(0) " if peel else "", ty))
    a("s_barrier")
    pre = capture(lambda: epi_reads(ty))
    c0 = -2.0 * 0.7978845608028654 * 1.4426950408889634; c1 = c0 * 0.044715
    k = 0
    order = [(t, i) for i in range(4) for t in range(5)] + [(t, i) for i in range(4) for t in (5, 6)] if ty == 0 else \
            [(t, i) for g in ((3, 4), (5, 6), (0, 1, 2)) for i in range(4) for t in g]
    for x in mfmas(ty, F1, order):
        a(x)
        for y in pre[k:k+2]: a(y)
        k += 2
    for y in pre[k:]: a(y)
    stamp(5); stamp(1, 1)
    if OPT["cprio"]: a("s_setprio %d" % OPT["cprio"])
    a("s_waitcnt vmcnt(0)")
    for k in range(4 if ty == 0 else 8): unpack(BF + 2*k, vB1 + k)
    a("v_mov_b32 v%d, 0x%x\nv_mov_b32 v%d, 0x%x\nv_mov_b32 v%d, 0x%x\nv_mov_b32 v%d, 0x%x" % (KC, f32(c1), KC+2, f32(c0), KC+1, f32(1.4426950408889634), KC+3, f32(1e-6)))
    a("s_waitcnt lgkmcnt(0)\nv_readfirstlane_b32 s%d, v7" % sFAST)

def gelu_block(i, t0, bt0, soff):
    align8()
    P = [(acc(i, t0 + q//2) + 2*(q % 2), CT + 4*(t0 + q//2) + 2*(q % 2), BF + 4*(bt0 + q//2) + 2*(q % 2), TMP + 2*q) for q in range(4)]
    rs = R2(RS + 2*i)
    for (h, c, b, u) in P: a("v_pk_fma_f32 %s, %s, %s, %s op_sel:[1,0,0] op_sel_hi:[1,1,1] neg_lo:[1,0,0] neg_hi:[1,0,0]" % (R2(u), rs, R2(c), R2(b)))
    for (h, c, b, u) in P: a("v_pk_fma_f32 %s, %s, %s, %s op_sel:[0,0,0] op_sel_hi:[0,1,1]" % (R2(h), rs, R2(h), R2(u)))
    for (h, c, b, u) in P: a("v_pk_mul_f32 %s, %s, %s" % (R2(u), R2(h), R2(h)))
    for (h, c, b, u) in P: a("v_pk_fma_f32 %s, %s, %s, %s op_sel:[0,0,0] op_sel_hi:[1,0,0]" % (R2(u), R2(u), R2(KC), R2(KC + 2)))
    for (h, c, b, u) in P: a("v_pk_mul_f32 %s, %s, %s" % (R2(u), R2(u), R2(h)))
    for (h, c, b, u) in P: a("v_exp_f32 v%d, v%d\nv_exp_f32 v%d, v%d" % (u, u, u+1, u+1))
    for (h, c, b, u) in P: a("v_pk_add_f32 %s, %s, 1.0 op_sel_hi:[1,0]" % (R2(u), R2(u)))
    for (h, c, b, u) in P: a("v_rcp_f32 v%d, v%d\nv_rcp_f32 v%d, v%d" % (u, u, u+1, u+1))
    for (h, c, b, u) in P: a("v_pk_mul_f32 %s, %s, %s" % (R2(u), R2(u), R2(h)))
    o = acc(i, t0)
    for q, (h, c, b, u) in enumerate(P): a("v_cvt_pk_bf16_f32 v%d, v%d, v%d" % (o + q, u, u+1))
    st_a2("buffer_store_dwordx4 %s, v1, %s, s%d offen offset:%d" % (R4(o), S(S_WS), soff, 1024*i))

def phi_pairs(P):
    for (h, u) in P: a("v_pk_mul_f32 %s, %s, %s op_sel:[1,0] op_sel_hi:[1,1]" % (R2(u), R2(KC), R2(h)))
    for (h, u) in P: a("v_exp_f32_e64 v%d, v%d clamp\nv_exp_f32_e64 v%d, v%d clamp" % (u, u, u+1, u+1))
    for (h, u) in P: a("v_max_f32 v%d, v%d, v%d\nv_max_f32 v%d, v%d, v%d" % (h, h, KC+3, h+1, h+1, KC+3))
    for (h, u) in P: a("v_pk_add_f32 %s, %s, %s" % (R2(h), R2(h), R2(u)))

def epilogue_kv():
    a("v_and_b32 v5, 8, v0\nv_cmp_eq_u32 vcc, 0, v5\nv_mov_b32 v6, 0\nv_mov_b32 v7, 0x3f803f80\nv_cndmask_b32 v5, v6, v%d, vcc\nv_mov_b32 v4, v5" % (KC + 3))
    a("s_lshl_b32 s3, s%d, 13\ns_add_u32 s3, s3, %d\nv_add_u32 v2, s3, v1" % (sWV, XK))
    prods = [(0,2),(0,3),(1,2),(1,3),(1,4),(2,2),(2,3),(2,4)]
    KD = [acc(1, t) for t in range(5)] + [216, 220, R4S]
    def kvm(ksr):
        return ["v_mfma_f32_16x16x32_bf16 %s, %s, %s, %s" % (R4(KD[k]), R4(acc(2*ksr, ti)), R4(T2P + 4*ksr) if tj == 2 else R4(acc(2*ksr, tj)), "0" if ksr == 0 else R4(KD[k])) for k, (ti, tj) in enumerate(prods)]
    for i in range(4):
        align8()
        def body():
            for t in range(5):
                for q in range(2):
                    u = TMP + 4*t + 2*q; rm = R2(R4S + 16 + 4*i + 2*q); c = R2(CT + 4*t)
                    if t < 2: a("v_pk_fma_f32 %s, %s, %s, %s op_sel:[0,0,1] op_sel_hi:[1,0,1] neg_lo:[1,0,0] neg_hi:[1,0,0]" % (R2(u), rm, c, R2(KC + 2)))
                    elif t == 2: a("v_pk_fma_f32 %s, %s, %s, v[4:5] op_sel:[0,0,0] op_sel_hi:[1,0,1] neg_lo:[1,0,0] neg_hi:[1,0,0]" % (R2(u), rm, c))
                    else: a("v_pk_mul_f32 %s, %s, %s op_sel:[0,0] op_sel_hi:[1,0] neg_lo:[1,0] neg_hi:[1,0]" % (R2(u), rm, c))
            for t in range(5):
                for q in range(2):
                    h = acc(i, t) + 2*q; u = TMP + 4*t + 2*q
                    a("v_pk_fma_f32 %s, %s, %s, %s" % (R2(h), R2(R4S + 4*i + 2*q), R2(h), R2(u)))
            a("v_cvt_pk_bf16_f32 v%d, v%d, v%d\nv_cvt_pk_bf16_f32 v%d, v%d, v%d" % (TMP+20, acc(i,2), acc(i,2)+1, TMP+21, acc(i,2)+2, acc(i,2)+3))
            phi_pairs([(acc(i, t) + 2*q, TMP + 4*t + 2*q) for t in range(3) for q in range(2)])
            e = 2 * (i >> 1); o = 2 * (i & 1)
            a("v_cndmask_b32 v%d, v%d, v7, vcc\nv_cndmask_b32 v%d, v%d, v7, vcc" % (T2P + 4*(i>>1) + o, TMP+20, T2P + 4*(i>>1) + o + 1, TMP+21))
            for t in (3, 4, 0, 1, 2):
                a("v_cvt_pk_bf16_f32 v%d, v%d, v%d\nv_cvt_pk_bf16_f32 v%d, v%d, v%d" % (acc(e,t)+o, acc(i,t), acc(i,t)+1, acc(e,t)+o+1, acc(i,t)+2, acc(i,t)+3))
        if i == 2:
            lines = capture(body); mm = kvm(0)
            for k, ln in enumerate(lines):
                a(ln)
                if k >= 28 and k % 2 == 1 and mm: a(mm.pop(0))
            assert not mm
        else: body()
    a("s_nop 1")
    for x in kvm(1): a(x)
    a("s_nop 0")
    for k in range(8): a("ds_write_b128 v2, %s offset:%d" % (R4(KD[k]), 1024 * k))
    stamp(2, 1)
    lds_addr(2, LF_XK, None)
    a("v_mov_b32 v3, 1\ns_mov_b64 exec, 1\ns_waitcnt lgkmcnt(0)\nds_add_u32 v2, v3\ns_mov_b64 exec, -1")
    stamp(7); stamp(3, 1)
    g2_setup(False)
    for i in range(4):
        gelu_block(i, 5, 0, sT2)
        if i in (0, 1): loadB(6 + i, False)
    stamp(4, 1)
    ks_flag(sT2, sM, 0, 6)

def epilogue_qh():
    PQ = 224
    def qpart(hook=None):
        for i in range(4):
            align8()
            rs = R2(RS + 2*i)
            P = [(acc(i, t) + 2*q, TMP + 4*t + 2*q, CT + 4*t + 2*q) for t in range(3) for q in range(2)]
            for (h, u, c) in P: a("v_pk_fma_f32 %s, %s, %s, %s op_sel:[1,0,1] op_sel_hi:[1,1,1] neg_lo:[1,0,0] neg_hi:[1,0,0]" % (R2(u), rs, R2(c), R2(KC + 2)))
            for (h, u, c) in P: a("v_pk_fma_f32 %s, %s, %s, %s op_sel:[0,0,0] op_sel_hi:[0,1,1]" % (R2(h), rs, R2(h), R2(u)))
            phi_pairs([(h, u) for (h, u, c) in P])
            for k, (h, u, c) in enumerate(P): a("v_cvt_pk_bf16_f32 v%d, v%d, v%d" % (PQ + 6*i + k, h, h + 1))
            if hook: hook(i)
        a("s_mul_i32 s3, s%d, 6144\ns_add_u32 s3, s3, %d\nv_add_u32 v4, s3, v1\nv_lshl_add_u32 v5, v0, 3, s3" % (sWV, PQL))
        for i in range(4): a("ds_write_b128 v4, %s offset:%d\nds_write_b64 v5, %s offset:%d" % (R4(PQ + 6*i), 1024*i, R2(PQ + 6*i + 4), 4096 + 512*i))
    g2_setup(False)
    for i in range(4): gelu_block(i, 3, 0, sT2)
    stamp(2, 1)
    for i in range(4):
        gelu_block(i, 5, 2, sT3)
        if i == 0: ks_flag(sT2, sM, 1, 4)
        if OPT["qb"] and i in (0, 1): loadB(6 + i, False)
    stamp(6); stamp(3, 1)
    def hk(i):
        if i == 0: ks_flag(sT3, sM, 0, 4)
        if not OPT["qb"] and i in (0, 1): loadB(6 + i, False)
    qpart(hk)
    a("s_waitcnt lgkmcnt(0)"); lds_signal(LF_PQ, sWV, 4)
    stamp(7); stamp(4, 1)

def readB(s): return ["ds_read_b128 %s, v244 offset:%d" % (R4(Breg(s, t, False)), 5120*s + 1024*t) for t in range(5)]

def gemm2_early():
    stamp(8); stamp(5, 1)
    if OPT["cprio"]: a("s_setprio 0")
    vm = VM()
    vG, vR, vP = 246, 248, 254
    X0 = CDB[0:5]; B2F = CDB[5:7]; XG = CA_[12:20]
    def XS(i, k): return XG[2*i + (k >> 1)] + 2*(k & 1)
    def BF2(k): return B2F[k >> 1] + 2*(k & 1)
    a("s_lshl_b32 s%d, s%d, 9\ns_add_u32 s%d, s%d, 0x%x\ns_lshl_b32 s3, s%d, 2\ns_add_u32 s%d, s%d, s3" % (sT3, sRT, sT3, sT3, FH, sK0, sT3, sT3))
    g2_flagoff(3, KS_C)
    a("s_mov_b64 exec, 0xff\nbuffer_load_dword v245, v3, %s, s%d offen%s\ns_mov_b64 exec, -1" % (S(S_WS), sT3, PLD))
    lds_wait(LF_B, sWV, 1, 246)
    a("s_mul_i32 s3, s%d, %d\nv_add_u32 v244, s3, v1" % (sWV, EBS))
    for x in readB(0) + readB(1): a(x)
    a("s_mul_i32 s3, s%d, 40\nv_add_u32 v228, s3, v0\nv_mul_u32_u24 v229, 6554, v228\nv_lshrrev_b32 v229, 16, v229\nv_mul_u32_u24 v230, 10, v229\nv_sub_u32 v228, v228, v230" % sWV)
    a("v_mul_u32_u24 v230, 1280, v229\nv_lshl_add_u32 v%d, v228, 4, v230\nv_lshlrev_b32 v%d, 4, v228" % (vG, vG + 1))
    a("v_mov_b32 v230, 0x%x\nv_cmp_gt_u32 vcc, 40, v0\ns_mul_i32 s%d, s%d, %d\ns_mul_i32 s%d, s%d, 160\nv_cndmask_b32 v%d, v230, v%d, vcc\ns_add_u32 s%d, s%d, s%d" % (OOB, sT1, sRT, 64*1280, sT2, sCT, vG, vG, sT1, sT1, sT2))
    a("v_and_b32 v229, 15, v229\nv_bfe_u32 v230, v229, 1, 2\nv_lshlrev_b32 v228, 1, v228\nv_xor_b32 v228, v228, v230\nv_mul_u32_u24 v229, 320, v229\nv_lshl_add_u32 v%d, v228, 4, v229\nv_xor_b32 v%d, 16, v%d" % (vR, vR + 1, vR))
    for k in range(1, 3): a("v_add_u32 v%d, %d, v%d\nv_add_u32 v%d, %d, v%d" % (vR + 2*k, 2*k*EBS, vR, vR + 1 + 2*k, 2*k*EBS, vR + 1))
    paddr(vP, 228, 229)
    a("s_mul_i32 s3, s%d, %d\nv_add_u32 v%d, s3, v%d" % (sWV, EBS, vP, vP))
    a("s_mov_b32 s%d, %d\ns_mov_b64 exec, 0xff" % (sSpin, SPIN))
    a.label("L_pc")
    a("s_waitcnt vmcnt(0)\nv_cmp_ne_u32 vcc, s%d, v245\ns_and_b32 s3, vcc_lo, 15\ns_cbranch_scc0 L_pcd" % sTAG)
    a("s_sleep %d\nbuffer_load_dword v245, v3, %s, s%d offen%s\ns_sub_u32 s%d, s%d, 1\ns_cbranch_scc0 L_pc" % (OPT["slp"], S(S_WS), sT3, PLD, sSpin, sSpin))
    a.label("L_pcd")
    a("s_mov_b64 exec, -1\ns_mov_b32 s%d, vcc_lo" % sK1)
    stamp(9); stamp(6, 1); stamp(1, 2)
    if OPT["qk"]:
        if OPT["qk"] == 1: a("s_cmp_lg_u32 s%d, 0\ns_cbranch_scc1 L_nqk" % sTY)
        lds_wait(LF_Q, None, 4, 230)
        a.label("L_nqk")
    for s in range(4): loadA(s, False); vm.add("A%d" % s, 4)
    P2 = OPT["qq"] if OPT["qq"] < 4 else 3
    if OPT["yld"]: lds_addr(255, LF_PQ, sWV)
    def yield_check():
        l = a.newlabel("Ly")
        a("s_waitcnt lgkmcnt(0)\nv_cmp_eq_u32 vcc, 2, v2\ns_cbranch_vccnz %s" % l)
        a.label(l + "_b")
        OUTLINE.extend([l + ":", "  s_mov_b32 s%d, %d" % (sSpin, SPIN), l + "_l:", "  s_sleep 1", "  ds_read_b32 v2, v255", "  s_waitcnt lgkmcnt(0)", "  v_cmp_eq_u32 vcc, 2, v2",
                        "  s_cbranch_vccz %s_b" % l, "  s_sub_u32 s%d, s%d, 1" % (sSpin, sSpin), "  s_cbranch_scc0 %s_l" % l, "  s_branch %s_b" % l])
    carry = []
    def defer(fn, lab, n):
        if OPT["il"]: carry.append((capture(fn), lab, n))
        else: fn(); vm.add(lab, n)
    for s in range(6):
        vm.wait("A%d" % s)
        a("s_waitcnt lgkmcnt(%d)" % (5 if s < 5 else 0))
        mm = capture(lambda: g2_step(s, False))
        fill = []
        for (lines, lab, n) in carry:
            cur = []
            for ln in lines:
                cur.append(ln)
                if ln.startswith("buffer_"): fill.append("\n".join(cur)); cur = []
            vm.add(lab, n)
        carry = []
        gap = max(1, 19 // max(1, len(fill)))
        k = 0
        for x in mm:
            a(x)
            if x.startswith("v_mfma"):
                k += 1
                if fill and k % gap == 0: a(fill.pop(0))
                if OPT["yld"] and k == 13: a("ds_read_b32 v2, v255")
        for x in fill: a(x)
        if OPT["yld"]: yield_check()
        if s + 2 < 6:
            for x in readB(s + 2): a(x)
        if s == P2:
            if OPT["qq"]: lds_wait(LF_Q, None, 4, 230)
            a("s_cmp_eq_u32 s%d, 0\ns_cbranch_scc1 L_nop2" % sK1)
            poll(3, sT3, 8, 245, "he2")
            a.label("L_nop2")
            for q in range(4, min(8, 6 + s)):
                if q == s + 1: loadA(q, False); vm.add("A%d" % q, 4)
                else: defer(lambda: loadA(q, False), "A%d" % q, 4)
        elif s > P2 and 5 + s < 8:
            defer(lambda: loadA(5 + s, False), "A%d" % (5 + s), 4)
        if s == 4:
            def xl():
                for i in range(4): a("s_add_u32 s3, s%d, %d\nbuffer_load_dwordx4 %s, v%d, %s, s3 offen" % (sT1, 16*1280*i, R4(X0[i]), vG, S(S_X)))
                a("buffer_load_dwordx4 %s, v%d, %s, s%d offen" % (R4(X0[4]), vG + 1, S(S_B2), sT2))
            defer(xl, "X", 5)
    assert not carry
    lds_signal(LF_B, sWV, 244)
    vm.wait("A7", "B7")
    if OPT["wb"] == 2:
        l = a.newlabel("Lwb")
        a("s_lshr_b32 s3, s2, 3\ns_and_b32 s3, s3, %d\ns_add_u32 s3, s3, s%d\ns_cmp_lg_u32 s3, 0\ns_cbranch_scc1 %s\nbuffer_wbl2 sc1" % (OPT["wbw"], sWV, l))
        a.label(l)
    stamp(8, 2)
    pend = []
    for i in range(4):
        k = 0
        for s in (6, 7):
            for t in range(5):
                g2_mfma(Dreg(i, t, False), Breg(s, t, False), Areg(s, i, False), False)
                k += 1
                if pend and k >= 4: a(pend.pop(0))
                if OPT["yld"] and i == 1 and k == 3: a("ds_read_b32 v2, v255")
        if OPT["yld"] and i == 1: yield_check()
        pend = ["ds_write_b128 v%d, %s offset:%d" % (vP, R4(Dreg(i, t, False)), 5120*i + 64*t) for t in range(5)]
    stamp(10); stamp(7, 1); stamp(9, 2)
    vm.wait("X")
    for k in range(2): unpack(BF2(k), X0[4] + k)
    for x in pend: a(x)
    for k in range(2, 4): unpack(BF2(k), X0[4] + k)
    lds_addr(244, LF_PRE, None)
    a("v_mov_b32 v245, 1")
    for i in range(4):
        for k in range(4): unpack(XS(i, k), X0[i] + k)
        if i == 0: a("s_mov_b64 exec, 1\ns_waitcnt lgkmcnt(0)\nds_add_u32 v244, v245\ns_mov_b64 exec, -1")
        for k in range(4): padd(XS(i, k), XS(i, k), BF2(k), OPT["scp"])
    lds_wait_ge(LF_PRE, 4, 244)
    stamp(8, 1)
    RD = 4
    def loc(i, p):
        if p < 4: return p >> 1, (p & 1) * EBS + 5120*i
        p -= 4
        if i < 2: return p >> 1, (p & 1) * EBS + 20480 + 5120*i
        if i == 2: return 2, p * 5120
        return p >> 1, (p & 1) * EBS
    def rdsum(i, ps):
        for j, p in enumerate(ps):
            b, off = loc(i, p)
            a("ds_read_b128 %s, v%d offset:%d\nds_read_b128 %s, v%d offset:%d" % (R4(RD + 32*(i & 1) + 8*j), vR + 2*b, off, R4(RD + 32*(i & 1) + 8*j + 4), vR + 1 + 2*b, off))
    def addsum(i, base, last=False):
        for j in range(4):
            a("s_waitcnt lgkmcnt(%d)" % (base + 6 - 2*j))
            for k in range(4): padd(XS(i, k), XS(i, k), RD + 32*(i & 1) + 8*j + 2*k, OPT["scp"] and not last)
    a("s_mov_b32 exec_hi, 0xff")
    rdsum(0, range(4))
    for i in range(4):
        if i < 3: rdsum(i + 1, range(4))
        addsum(i, 8 if i < 3 else 0)
    stamp(11); stamp(9, 1); stamp(10, 2)
    if OPT["wb"] == 1:
        l = a.newlabel("Lwb")
        a("s_lshr_b32 s3, s2, 3\ns_and_b32 s3, s3, %d\ns_add_u32 s3, s3, s%d\ns_cmp_lg_u32 s3, 0\ns_cbranch_scc1 %s\nbuffer_wbl2 sc1" % (OPT["wbw"], sWV, l))
        a.label(l)
    a("v_mov_b32 v245, 1\ns_mov_b64 exec, 1\nds_add_u32 v244, v245\ns_mov_b32 exec_lo, -1\ns_mov_b32 exec_hi, 0xff\ns_setprio 1")
    for i in range(4):
        lds_wait(LF_T + 4*i, None, 4, 244, 1 if i < 3 else 0)
        rdsum(i, range(4, 8))
        a("s_add_u32 s3, s%d, %d" % (sT1, 16*1280*i))
        addsum(i, 0, i == 3)
        for k in range(4): a("v_cvt_pk_bf16_f32 v%d, v%d, v%d" % (XG[2*i] + k, XS(i, k), XS(i, k) + 1))
        a("buffer_store_dwordx4 %s, v%d, %s, s3 offen%s" % (R4(XG[2*i]), vG, S(S_OUT), LDF[OPT["ost"]]))
    a("s_mov_b64 exec, -1")
    stamp(12)

hdr = open("cdna_kernels/%s.s.ref" % BASE).read().split("; Override")[0]
a.raw(hdr.rstrip())
a.raw("; @launch grid=(256,1,1) block=(512,1,1) lds=163840")
a.raw('.amdgcn_target "amdgcn-amd-amdhsa--gfx950"\n.text')
kernel_header(a, KNAME)
a("s_cmp_ge_u32 s2, 256\ns_cbranch_scc1 L_end")
a("s_load_dwordx16 s[36:51], s[0:1], 0\ns_load_dwordx4 s[52:55], s[0:1], 64\ns_load_dwordx2 s[56:57], s[0:1], 80")
a("v_lshrrev_b32 v1, 6, v0\nv_and_b32 v0, 63, v0\nv_readfirstlane_b32 s%d, v1" % sWV)
if OPT["cpf"]:
    a("s_getpc_b64 s[%d:%d]\nL_pc0:\ns_and_b32 s3, s2, 0xf8\ns_add_u32 s3, s3, s%d\ns_lshl_b32 s3, s3, 7\ns_min_u32 s3, s3, L_table-L_pc0-64" % (sEX, sEX+1, sWV))
    a("s_load_dword s%d, s[%d:%d], s3" % (sSpin, sEX, sEX+1))
    if OPT["cpf"] > 1: a("s_add_u32 s3, s3, 64\ns_load_dword s%d, s[%d:%d], s3" % (sSpin, sEX, sEX+1))
stamp_init(); stamp(0)
a("s_bfe_u32 s%d, s2, 0x10006" % sTY)
if OPT["xmap"]:
    a("s_and_b32 s3, s2, 7\ns_lshl_b32 s3, s3, 1\ns_bfe_u32 s%d, s2, 0x10003\ns_add_u32 s%d, s%d, s3" % (sRB, sRB, sRB))
    a("s_bfe_u32 s3, s2, 0x20004\ns_lshr_b32 s%d, s2, 7\ns_lshl_b32 s%d, s%d, 2\ns_add_u32 s%d, s%d, s3" % (sJJ, sJJ, sJJ, sJJ, sJJ))
else:
    a("s_and_b32 s3, s2, 1\ns_lshl_b32 s3, s3, 3\ns_bfe_u32 s%d, s2, 0x30003\ns_add_u32 s%d, s%d, s3" % (sRB, sRB, sRB))
    a("s_and_b32 s3, s2, 6\ns_lshr_b32 s%d, s2, 7\ns_add_u32 s%d, s%d, s3" % (sJJ, sJJ, sJJ))
a("s_and_b32 s3, s2, 7\ns_lshl_b32 s3, s3, 2\ns_bfe_u32 s%d, s2, 0x20003\ns_add_u32 s%d, s%d, s3\ns_lshr_b32 s%d, s2, 5" % (sRT, sRT, sRT, sCT))
a("s_cmp_lt_u32 s%d, 4\ns_cbranch_scc1 L_compute" % sWV)
_m = len(a.lines)
loader()
if OPT["sco"]:
    import re
    new = []
    for ln in a.lines[_m:]:
        m = re.match(r"\s*v_pk_add_f32 v\[(\d+):\d+\], v\[(\d+):\d+\], v\[(\d+):\d+\]$", ln)
        m2 = re.match(r"\s*v_mov_b64 v\[(\d+):\d+\], v\[(\d+):\d+\]$", ln)
        m3 = re.match(r"\s*v_mov_b64 v\[(\d+):\d+\], 0$", ln)
        if m: d, x, y = map(int, m.groups()); new += ["  v_add_f32 v%d, v%d, v%d" % (d, x, y), "  v_add_f32 v%d, v%d, v%d" % (d+1, x+1, y+1)]
        elif m2: d, x = map(int, m2.groups()); new += ["  v_mov_b32 v%d, v%d" % (d, x), "  v_mov_b32 v%d, v%d" % (d+1, x+1)]
        elif m3: d = int(m3.group(1)); new += ["  v_mov_b32 v%d, 0" % d, "  v_mov_b32 v%d, 0" % (d+1)]
        else: new.append(ln)
    a.lines[_m:] = new
a.label("L_compute")
compute_prologue()
a("s_cmp_lg_u32 s%d, 0\ns_cbranch_scc1 L_cqh" % sTY)
main_loop(0); epilogue_kv(); a("s_branch L_g2early")
a.label("L_cqh")
main_loop(1); epilogue_qh()
a.label("L_g2early")
gemm2_early()
a.label("L_alldone")
stamp_store()
a("s_cmp_lg_u32 s2, 0\ns_cbranch_scc1 L_end\ns_cmp_lg_u32 s%d, 4\ns_cbranch_scc1 L_end" % sWV)
a("s_mov_b32 s3, 0x%x\nv_mov_b32 v2, s%d\nv_mov_b32 v3, 0\ns_mov_b64 exec, 1\nbuffer_store_dword v2, v3, %s, s3 offen sc1" % (EPOCH, sTAG, S(S_WS)))
a.label("L_end")
a("s_endpgm")
a.lines.extend(OUTLINE)
a.raw(".p2align 7\n.type L_table,@object\nL_table:")
T = make_table()
for i in range(0, len(T), 8): a.raw("  .long " + ", ".join(str(x) for x in T[i:i+8]))
a.raw(".size L_table, %d" % (4 * len(T)))
a.raw('.section .rodata,"a"')
kernel_desc(a, KNAME, 256, 102)
sys.stdout.write(a.text())
```

```python
import sys, struct
from asmlib import *
BASE = "parallel_sum__linear_attn_block__dense_activation_gelu__prompt"
KNAME = BASE + "_kernel"
OPT = dict(stamps=0, sm=0, probe=-1, pcls=0, slp=2, n1=3, cpf=2, win=2, xmap=1, fast=1, kvu=0, qord=0, cprio=0, thr=0, touch=0, shift=2, nojob=0, norot=0, lst=0, kvd=6, lp=3, n2=2, ald=0, bld=0, pld=0, wb=0, wbw=0, ost=1, qk=0, qq=0, mrg=1, s1e=0, kvb=0, ap=1, afirst=1, il=1, qb=0, yld=0, sco=1, scp=1, swp=1, gh=2, bl=0, jst=1, lvm=1)
for arg in sys.argv[1:]:
    k, v = arg.split("="); assert k in OPT, k; OPT[k] = int(v)
STAMPS = OPT["stamps"]
f32 = lambda x: struct.unpack("<I", struct.pack("<f", x))[0]

B2_OFF = 0x900000
KVP_OFF = 0xC00000; KVP_STRIDE = 6912
STAT_OFF = 0xD00000
FLAG_OFF = 0xD10000
EPOCH = FLAG_OFF; FWG = FLAG_OFF + 0x1000; FH = FLAG_OFF + 0x4000
CSP_OFF = 0xD20000
RED_OFF = 0xD50000
STAMP_OFF = 0xE00000
WS_SIZE = 0x1000000
OOB = 0x7f000000
SLOT = 45184
K_OFF = 16384; V_OFF = 26640; HKV_OFF = 36992; HQ_OFF = 26624
JOBL = 2 * SLOT
IMG = 147456
LFLAG = 160000; TAGL = 160064; FASTL = 160128
LF_IMG, LF_XK, LF_PRE, LF_Q, LF_PQ, LF_B, LF_T = 0, 4, 8, 12, 16, 32, 48
GAL = 156672; STATL = 160768; CSL = 161792
EBS = 30720
XK = 122880; PQL = 122880
SPIN = 200000
NKVU = 128 * OPT["kvu"]; NQU = 680 - NKVU; QPER = -(-NQU // 512)
S_X, S_J, S_W1, S_WS, S_P, S_OUT, S_B1, S_B2 = 4, 8, 12, 16, 20, 24, 28, 32
sRB, sJJ, sTY, sWV, sTAG, sM, sN = 58, 59, 60, 61, 62, 63, 64
sT1, sT2, sT3 = 65, 66, 67
sLA, sLP, sLP4, sLH, sIncP, sA, sP, sH, sSlot, sCnt = 68, 69, 70, 71, 72, 73, 74, 75, 76, 77
sORD = 76
sEX = 78; sSpin = 80; sRT, sCT = 81, 82
sK0, sK1, sK2 = 83, 84, 85
sST = 86
sAo0, sAo1, sAo2, sBo0, sBo1, sBo2 = 36, 37, 38, 39, 42, 43
TB = [40, 41, 48, 49]
sDL = 56
sAoF, sBoF, sBoE = 44, 45, 55
sFAST = 54; sPC = 46

a = Asm()
LDF = {0: ' sc1', 1: '', 2: ' nt'}
ALD = LDF[OPT['ald']]; BLD = LDF[OPT['bld']]; PLD = LDF[OPT['pld']]
OUTLINE = []
def srd(d, p, n): a("s_mov_b32 s%d, s%d\ns_mov_b32 s%d, s%d\ns_mov_b32 s%d, 0x%x\ns_mov_b32 s%d, 0x20000" % (d, p, d+1, p+1, d+2, n, d+3))
def S(d): return "s[%d:%d]" % (d, d+3)
def R4(b): return "v[%d:%d]" % (b, b + 3)
def R2(b): return "v[%d:%d]" % (b, b + 1)
def align8(): a.raw(".p2align 3")

def stamp(idx, mode=0):
    if mode == 0 and OPT["probe"] == idx:
        a("s_memrealtime s[%d:%d]\ns_waitcnt lgkmcnt(0)\ns_mov_b32 s%d, s%d" % (sST, sST+1, sST + 2, sST))
    if not STAMPS or (mode != OPT["sm"] and idx not in (0, 13)): return
    a("s_memrealtime s[%d:%d]\ns_waitcnt lgkmcnt(0)\ns_mov_b32 s%d, s%d" % (sST, sST+1, sST + 2 + idx, sST))
def stamp_init():
    if STAMPS:
        for i in range(14): a("s_mov_b32 s%d, 0" % (sST + 2 + i))
def stamp_store():
    if OPT["probe"] >= 0:
        a("s_waitcnt vmcnt(0)")
        stamp(13)
        a("s_lshr_b32 s3, s%d, 2\ns_cmp_lg_u32 s3, %d\ns_cbranch_scc1 L_pspd" % (sWV, OPT["pcls"]))
        a.label("L_psp")
        a("s_memrealtime s[%d:%d]\ns_waitcnt lgkmcnt(0)\ns_sub_u32 s3, s%d, s%d\ns_cmp_lt_u32 s3, 10000\ns_cbranch_scc1 L_psp" % (sST, sST+1, sST, sST + 2))
        a.label("L_pspd")
    if not STAMPS: return
    a("s_waitcnt vmcnt(0)")
    stamp(13)
    for i in range(14): a("v_mov_b32 v%d, s%d" % (4 + i, sST + 2 + i))
    a("v_mov_b32 v18, 0\nv_mov_b32 v19, 0\nv_mov_b32 v2, 0\ns_lshl_b32 s3, s2, 3\ns_add_u32 s3, s3, s%d\ns_lshl_b32 s3, s3, 6\ns_add_u32 s3, s3, 0x%x\ns_mov_b64 exec, 1" % (sWV, STAMP_OFF))
    for i in range(4): a("buffer_store_dwordx4 v[%d:%d], v2, %s, s3 offen offset:%d" % (4 + 4*i, 7 + 4*i, S(S_WS), 16*i))
    a("s_mov_b64 exec, -1")

class VM:
    def __init__(self): self.q = []
    def add(self, lab, n=1): self.q += [lab] * n
    def wait(self, *labs):
        idx = [i for i, x in enumerate(self.q) if x in labs]
        if not idx: return
        n = len(self.q) - 1 - max(idx)
        assert n <= 63
        a("s_waitcnt vmcnt(%d)" % n); self.q = self.q[max(idx) + 1:]
def capture(fn):
    n = len(a.lines); fn(); out = a.lines[n:]; del a.lines[n:]; return [x.strip() for x in out]

def st_a2(ops):
    if isinstance(ops, str): ops = [ops]
    if not OPT["fast"]:
        for o in ops: a(o + " sc1")
        return
    l = a.newlabel("Lsl")
    a("s_cmp_lg_u32 s%d, 0\ns_cbranch_scc0 %s" % (sFAST, l))
    for o in ops: a(o)
    a.label(l + "_b")
    OUTLINE.append(l + ":")
    for o in ops: OUTLINE.append("  " + o + " sc1")
    OUTLINE.append("  s_branch %s_b" % l)

def poll(voff, soff, nlanes, vt, name):
    lp = a.newlabel("Lpoll_" + name)
    a("s_mov_b32 s%d, %d\ns_mov_b64 exec, 0x%x" % (sSpin, SPIN, (1 << nlanes) - 1))
    a.label(lp)
    a("buffer_load_dword v%d, v%d, %s, s%d offen%s\ns_waitcnt vmcnt(0)" % (vt, voff, S(S_WS), soff, PLD))
    a("v_cmp_ne_u32 vcc, s%d, v%d\ns_cbranch_vccz %s_d" % (sTAG, vt, lp))
    a("s_sleep %d\ns_sub_u32 s%d, s%d, 1\ns_cbranch_scc0 %s" % (OPT["slp"], sSpin, sSpin, lp))
    a.label(lp + "_d")
    a("s_mov_b64 exec, -1")
def lds_addr(v, off, sw):
    if sw is None: a("v_mov_b32 v%d, %d" % (v, LFLAG + off))
    else: a("s_lshl_b32 s3, s%d, 2\ns_add_u32 s3, s3, %d\nv_mov_b32 v%d, s3" % (sw, LFLAG + off, v))
def lds_signal(off, sw, v):
    lds_addr(v, off, sw)
    a("v_mov_b32 v%d, 1\ns_mov_b64 exec, 1\nds_add_u32 v%d, v%d\ns_mov_b64 exec, -1" % (v + 1, v, v + 1))
def lds_wait(off, sw, cnt, v, slp=1):
    lp = a.newlabel("Llw"); lds_addr(v, off, sw)
    a("s_mov_b32 s%d, %d" % (sSpin, 20 * SPIN))
    a.label(lp)
    a("ds_read_b32 v%d, v%d\ns_waitcnt lgkmcnt(0)\nv_cmp_ne_u32 vcc, %d, v%d\ns_cbranch_vccz %s_d" % (v + 1, v, cnt, v + 1, lp))
    if slp: a("s_sleep %d" % slp)
    a("s_sub_u32 s%d, s%d, 1\ns_cbranch_scc0 %s" % (sSpin, sSpin, lp))
    a.label(lp + "_d")
def lds_wait_ge(off, cnt, v, slp=1):
    lp = a.newlabel("Llg"); lds_addr(v, off, None)
    a("s_mov_b32 s%d, %d" % (sSpin, 20 * SPIN))
    a.label(lp)
    a("ds_read_b32 v%d, v%d\ns_waitcnt lgkmcnt(0)\nv_cmp_gt_u32 vcc, %d, v%d\ns_cbranch_vccz %s_d" % (v + 1, v, cnt, v + 1, lp))
    if slp: a("s_sleep %d" % slp)
    a("s_sub_u32 s%d, s%d, 1\ns_cbranch_scc0 %s" % (sSpin, sSpin, lp))
    a.label(lp + "_d")
def bf16_round(v): a("v_cvt_pk_bf16_f32 v%d, v%d, v%d\nv_lshlrev_b32 v%d, 16, v%d" % (v, v, v, v, v))
def unpack(dst, src): a("v_lshlrev_b32 v%d, 16, v%d\nv_and_b32 v%d, 0xffff0000, v%d" % (dst, src, dst + 1, src))
def padd(d, x, y, scalar):
    if scalar: a("v_add_f32 v%d, v%d, v%d\nv_add_f32 v%d, v%d, v%d" % (d, x, y, d + 1, x + 1, y + 1))
    else: a("v_pk_add_f32 %s, %s, %s" % (R2(d), R2(x), R2(y)))
def tagchk(acc_, regs):
    a("v_xor_b32 v%d, s%d, v%d" % (acc_, TB[0], regs[0]))
    for k, r in enumerate(regs):
        if k: a("v_bitop3_b32 v%d, v%d, v%d, s%d bitop3:0xf6" % (acc_, acc_, r, TB[k % 4]))
    a("v_and_b32 v%d, 0xff, v%d\nv_cmp_ne_u32 vcc, 0, v%d" % (acc_, acc_, acc_))

G_ACC = 4
KS_C = [2, 4, 8, 10, 0, 1, 6, 7]; KS_L = [2, 4, 8, 10]
def g2_setup(late):
    w = sM if late else sWV
    a("v_lshlrev_b32 v1, 4, v0\nv_add_u32 v2, 4096, v1")
    a("s_mul_i32 s%d, s%d, 12" % (sK0, w))
    if late: a("s_lshl_b32 s%d, s%d, 2\ns_add_u32 s%d, s%d, 48\ns_add_u32 s%d, s%d, 64" % (sK1, w, sK1, sK1, sK2, w))
    a("s_mul_i32 s3, s%d, 68" % sRT)
    for (d, k) in ((sAo0, sK0),) + (((sAo1, sK1), (sAo2, sK2)) if late else ()):
        a("s_add_u32 s%d, s3, s%d\ns_lshl_b32 s%d, s%d, 12" % (d, k, d, d))
    a("s_mul_i32 s3, s%d, 5120\ns_add_u32 s3, s3, 0x%x" % (sCT, B2_OFF))
    for (d, k) in ((sBo0, sK0),) + (((sBo1, sK1), (sBo2, sK2)) if late else ()):
        a("s_mul_i32 s%d, s%d, 40960\ns_add_u32 s%d, s%d, s3" % (d, k, d, d))
    if OPT["swp"]: a("s_xor_b32 s%d, s%d, %d" % (sDL, sTY, 1 if late else 0))
    else: a("s_mov_b32 s%d, %d" % (sDL, 0 if late else 1))
    a("s_lshl_b32 s3, s%d, 12\ns_add_u32 s%d, s%d, s3\ns_mul_i32 s3, s%d, 40960\ns_add_u32 s%d, s%d, s3" % (sDL, sAoF, sAo0, sDL, sBoF, sBo0))
    if late: a("s_sub_u32 s%d, s%d, s3\ns_add_u32 s%d, s%d, 40960" % (sBoE, sBo0, sBoE, sBoE))
def step_off(s, late, bases, stride, dst=3):
    if s < 4: b, k = bases[3], KS_L[s]
    elif not late: b, k = bases[0], KS_C[s]
    elif s < 8: b, k = bases[1], s - 4
    else: b, k = bases[2], 0
    a("s_add_u32 s%d, s%d, %d" % (dst, b, stride * k))
CB67 = [20, 24, 48, 52, 76, 80, 104, 108, 216, 220]
_free = [g for g in range(4, 244, 4) if g not in CB67]
CACC = _free[:20]; CDB = _free[20:30]; CA_ = _free[30:50]
def Dreg(i, t, late): return G_ACC + (i*5 + t) * 4 if late else CACC[i*5 + t]
def Breg(s, t, late):
    if late: return 84 + 20 * (s % 7) + 4*t
    return CDB[5*(s & 1) + t] if s < 6 else CB67[5*(s - 6) + t]
def Areg(s, i, late): return 224 + 16 * (s & 1) + 4*i if late else CA_[4*(s % 5) + i]
def loadB(s, late):
    step_off(s, late, (sBo0, sBo1, sBo2, sBoF), 40960)
    for t in range(4): a("buffer_load_dwordx4 %s, v1, %s, s3 offen offset:%d%s" % (R4(Breg(s, t, late)), S(S_WS), 1024*t, BLD))
    a("buffer_load_dwordx4 %s, v2, %s, s3 offen%s" % (R4(Breg(s, 4, late)), S(S_WS), BLD))
def loadA(s, late):
    step_off(s, late, (sAo0, sAo1, sAo2, sAoF), 4096)
    for i in range(4): a("buffer_load_dwordx4 %s, v1, %s, s3 offen offset:%d%s" % (R4(Areg(s, i, late)), S(S_WS), 1024*i, ALD))
def dmaB(s):
    step_off(s, False, (sBo0, 0, 0, sBoE), 40960)
    a("s_mul_i32 m0, s%d, %d\ns_add_u32 m0, m0, %d\ns_nop 0" % (sM, EBS, 5120*s))
    for t in range(4): a("buffer_load_dwordx4 v1, %s, s3 offen offset:%d%s lds" % (S(S_WS), 1024*t, BLD))
    a("s_add_u32 m0, m0, 4096\ns_nop 0\nbuffer_load_dwordx4 v2, %s, s3 offen%s lds" % (S(S_WS), BLD))
    if OPT["thr"]: a("s_waitcnt vmcnt(%d)" % OPT["thr"])
def a2_soff(dst, m, ks_emit):
    ks_emit()
    a("s_lshl_b32 s%d, s%d, 1\ns_add_u32 s%d, s%d, s%d\ns_mul_i32 s%d, s%d, 68\ns_add_u32 s%d, s%d, s3\ns_lshl_b32 s%d, s%d, 12" % (dst, sRB, dst, dst, m, dst, dst, dst, dst, dst, dst))
def ks_flag(sOff, m, waitn, vt):
    a("s_lshl_b32 s3, s%d, 1\ns_add_u32 s3, s3, s%d\ns_mul_i32 s3, s3, %d\ns_lshr_b32 s%d, s%d, 10\ns_add_u32 s3, s3, s%d\ns_add_u32 s3, s3, 0x%x" % (sRB, m, 512 - 272, sSpin, sOff, sSpin, FH))
    a("v_mov_b32 v%d, s%d\nv_mov_b32 v%d, 0\ns_mov_b64 exec, 1\ns_waitcnt vmcnt(%d)" % (vt, sTAG, vt + 1, waitn))
    st_a2("buffer_store_dword v%d, v%d, %s, s3 offen" % (vt, vt + 1, S(S_WS)))
    a("s_mov_b64 exec, -1\ns_nop 0")
def g2_mfma(D, B, A, first): a("v_mfma_f32_16x16x32_bf16 %s, %s, %s, %s" % (R4(D), R4(B), R4(A), "0" if first else R4(D)))
def g2_flagoff(v, ks):
    packed = sum(k << (4*j) for j, k in enumerate(ks))
    a("v_lshlrev_b32 v%d, 2, v0\ns_mul_i32 s3, s56, 0x1111\ns_add_u32 s3, s3, 0x%x\nv_bfe_u32 v%d, s3, v%d, 4\nv_lshlrev_b32 v%d, 2, v%d" % (v, packed, v, v, v, v))
def g2_step(s, late):
    stamp(2 + s, 2)
    for t in range(5):
        for i in range(4): g2_mfma(Dreg(i, t, late), Breg(s, t, late), Areg(s, i, late), s == 0)
def paddr(v, t1, t2):
    a("v_and_b32 v%d, 15, v0\nv_lshrrev_b32 v%d, 4, v0\nv_bfe_u32 v%d, v0, 1, 2\nv_xor_b32 v%d, v%d, v%d\nv_mul_u32_u24 v%d, 320, v%d\nv_lshl_add_u32 v%d, v%d, 4, v%d" % (v, t1, t2, t1, t1, t2, v, v, v, t1, v))

def make_table():
    T = []
    for ty in range(2):
        for t in range(256):
            ga = []
            for rnd in range(2):
                gi = t + 256 * rnd
                if gi >= 420: ga.append(ga[0]); continue
                n, gi = divmod(gi, 210); hh, gi = divmod(gi, 105); e, dg = divmod(gi, 5)
                DG = 5 * hh + dg; ti, g = DG >> 2, DG & 3
                if ty == 0:
                    col = 0 if e == 20 else 20 * hh + e + 8
                    idx = 3 * ti + (col >> 4) - (1 if ti > 0 else 0)
                    ga.append(XK + n * 8192 + idx * 1024 + (g * 16 + (col & 15)) * 16)
                else:
                    c = 40 + hh if e == 20 else 20 * hh + e
                    ga.append(IMG + n * 4608 + ((c * 4 + g) * 16 + ti * 8 if ti < 2 else 3072 + (c * 4 + g) * 8))
            l = t & 63
            if l >= 56: l = 0
            n, u4 = divmod(l, 28)
            if ty == 0: c4, mul = ((160 + 10*n + u4, 20) if u4 < 10 else (320 + 10*n + u4 - 10, 20) if u4 < 20 else (480 + 8*n + u4 - 20, 48))
            else: c4, mul = ((10*n + u4, 20) if u4 < 10 else (10*n + u4 - 2, 20) if u4 < 12 else (480 + 16 + 16*n + u4 - 12, 48))
            T += [ga[0], ga[1]]
    return T

def order_table(ph):
    wins = {1: [1]*10, 2: [2]*5, 3: [3,3,4], 4: [4,3,3]}[OPT["win"]]
    o = []; b = 0
    for w in wins:
        o += [b + (i + ph) % w for i in range(w)]; b += w
    return sum(x << (4*i) for i, x in enumerate(o))

FLC = 6 if OPT["shift"] >= 2 else 7
def loader():
    lw = sM
    def issue(base, part=(0, 11), filler=()):
        def m0(reg, i, first):
            if base is not None: return "s_add_u32 m0, s%d, %d" % (reg, base + 1024*i)
            return "s_add_u32 m0, s%d, s%d" % (reg, sK2) if first else "s_add_u32 m0, m0, 0x400"
        L = []
        for i in range(4): L.append((m0(sLA, i, i == 0), "buffer_load_dwordx4 v%d, %s, s%d offen lds" % (10+i, S(S_X), sA)))
        for i in range(2): L.append((m0(sLH, i, i == 0), "buffer_load_dwordx4 v%d, %s, s%d offen lds" % (19+i, S(S_W1), sH)))
        for i in range(5): L.append((m0(sLP, i, i == 0), "buffer_load_dwordx4 v%d, %s, s%d offen lds" % (14+i, S(S_P), sP)))
        filler = list(filler)
        for k in range(*part):
            m, d = L[k]
            if k == 10:
                l = a.newlabel("Lnop4")
                a("s_cmp_lg_u32 s%d, 0\ns_cbranch_scc1 %s" % (sLP4, l)); a(m); a("s_nop 0"); a(d); a.label(l)
            else: a(m); a("s_nop 0"); a(d)
            if filler: a(filler.pop(0))
    def nextstage(): a("s_lshr_b64 s[%d:%d], s[%d:%d], 4\ns_and_b32 s3, s%d, 15\ns_add_u32 s3, s3, s64\ns_sub_u32 s73, s3, 10\ns_min_u32 s3, s3, s73\ns_lshl_b32 s%d, s3, 7\ns_mul_i32 s%d, s3, s%d\ns_mul_i32 s%d, s3, %d" % (sORD, sORD+1, sORD, sORD+1, sORD, sA, sP, sIncP, sH, 64*3072))
    def bar(k): stamp(k + 1, 4); a("s_barrier"); stamp(k + 1, 3)
    a("s_sub_u32 s%d, s%d, 4" % (lw, sWV))
    a("v_lshrrev_b32 v2, 3, v0\nv_lshrrev_b32 v3, 4, v0\nv_and_b32 v4, 7, v0")
    a("v_xor_b32 v5, v4, v3\nv_lshlrev_b32 v5, 4, v5")
    a("s_lshl_b32 s3, s%d, 7\ns_lshl_b32 s%d, s%d, 5\ns_add_u32 s3, s3, s%d\ns_mul_i32 s3, s3, 1280" % (sRB, sT1, lw, sT1))
    a("v_mul_u32_u24 v6, 1280, v2\nv_add3_u32 v10, v6, v5, s3")
    a("v_xor_b32 v11, 64, v10\nv_add_u32 v11, 10240, v11\nv_add_u32 v12, 20480, v10\nv_add_u32 v13, 20480, v11")
    a("s_lshl_b32 s%d, s%d, 12" % (sLA, lw))
    def rel(ty, par):
        if OPT["shift"] == 3: o = [(i ^ par) if i < 2 else i for i in range(10)]
        elif ty == OPT["shift"]: o = [par, 1 - par, 2] + [3 + (i ^ par) for i in range(6)] + [9]
        else: o = [i ^ par for i in range(10)]
        return sum(x << (4*i) for i, x in enumerate(o))
    a("s_xor_b32 s3, s%d, s59\ns_and_b32 s3, s3, 1\ns_lshl_b32 s%d, s%d, 1\ns_add_u32 s3, s3, s%d\ns_mov_b32 s%d, 0x%x\ns_mov_b32 s%d, 0x%x" % (sRB, sT1, sTY, sT1, sORD, rel(0,0) & 0xffffffff, sORD+1, rel(0,0) >> 32))
    for k in range(1, 4):
        r = rel(k >> 1, k & 1)
        a("s_cmp_eq_u32 s3, %d\ns_cselect_b32 s%d, 0x%x, s%d\ns_cselect_b32 s%d, 0x%x, s%d" % (k, sORD, r & 0xffffffff, sORD, sORD+1, r >> 32, sORD+1))
    a("s_and_b32 s3, s2, 7\ns_sub_u32 s%d, s3, 5\ns_min_u32 s3, s3, s%d\ns_lshl_b32 s%d, s3, 1" % (sT1, sT1, sN))
    if OPT["norot"]: a("s_mov_b32 s%d, 0" % sN)
    a("s_and_b32 s%d, s%d, 15\ns_add_u32 s%d, s%d, s%d\ns_sub_u32 s3, s%d, 10\ns_min_u32 s%d, s%d, s3\ns_lshl_b32 s%d, s%d, 7\ns_mul_i32 s%d, s%d, %d" % (sP, sORD, sP, sP, sN, sP, sP, sP, sA, sP, sH, sP, 64*3072))
    a("s_mov_b32 s%d, 0x%x\ns_mov_b32 s%d, 0x20000" % (S_X+2, 2048*1280, S_X+3))
    a("s_waitcnt lgkmcnt(0)")
    a("s_mov_b32 s%d, s36\ns_mov_b32 s%d, s37" % (S_X, S_X+1))
    stamp(1)
    issue(0, (0, 4))
    a("v_and_b32 v6, 3, v2\nv_lshrrev_b32 v7, 2, v2\nv_lshl_add_u32 v6, v7, 3, v6\nv_mul_u32_u24 v6, 3072, v6")
    a("v_and_b32 v7, 6, v2\nv_xor_b32 v7, v4, v7\nv_lshl_add_u32 v6, v7, 4, v6")
    a("s_mul_i32 s%d, s%d, 384\ns_lshl_b32 s3, s%d, 7\ns_add_u32 s%d, s%d, s3" % (sT1, sJJ, sTY, sT1, sT1))
    a("s_and_b32 s%d, s%d, 1" % (sT2, lw))
    a("s_lshr_b32 s3, s%d, 1\ns_lshl_b32 s3, s3, 3\ns_add_u32 s3, s3, s%d\ns_mul_i32 s3, s3, 12288\ns_add_u32 s3, s3, s%d" % (lw, sT2, sT1))
    a("v_add_u32 v19, s3, v6\nv_add_u32 v20, 49152, v19")
    a("s_movk_i32 s%d, %d\ns_cmp_eq_u32 s%d, 0\ns_cselect_b32 s%d, %d, s%d\ns_lshl_b32 s3, s%d, 11\ns_add_u32 s%d, s%d, s3" % (sLH, HQ_OFF, sTY, sLH, HKV_OFF, sLH, lw, sLH, sLH))
    srd(S_W1, 44, 640*3072)
    issue(0, (4, 6))
    a("s_lshr_b32 s3, s%d, 1\ns_and_b32 s%d, s3, s%d\ns_cbranch_scc1 L_phmode" % (lw, sLP4, sTY))
    a("s_mov_b32 s%d, %d" % (sIncP, 64*3840))
    a("s_lshr_b32 s3, s%d, 1\ns_add_u32 s3, s3, 1\ns_cmp_eq_u32 s%d, 0\ns_cselect_b32 s3, s3, 0" % (lw, sTY))
    a("s_mul_i32 s%d, s3, 1280\ns_mul_i32 s%d, s%d, 160\ns_add_u32 s%d, s%d, s%d\ns_mul_i32 s%d, s%d, %d\ns_add_u32 s%d, s%d, s%d" % (sT1, sT3, sJJ, sT1, sT1, sT3, sT3, sT2, 32*3840, sT1, sT1, sT3))
    a("s_movk_i32 s%d, %d\ns_cmp_eq_u32 s3, 2\ns_cselect_b32 s%d, %d, s%d\ns_mul_i32 s%d, s%d, 5120\ns_add_u32 s%d, s%d, s%d" % (sLP, K_OFF, sLP, V_OFF, sLP, sT3, sT2, sLP, sLP, sT3))
    a("v_mul_u32_u24 v7, 6554, v0\nv_lshl_add_u32 v5, v0, 4, s%d\ns_movk_i32 s3, 3680\ns_movk_i32 s%d, 3840" % (sT1, sT3))
    for i in range(5):
        a("v_add_u32 v8, %d, v7\nv_lshrrev_b32 v8, 16, v8\nv_and_b32 v9, 12, v8" % (64*i*6554))
        c = 1024*i - (46080 if i >= 3 else 0)
        a("v_add_u32 v%d, 0x%x, v5\nv_mad_u32_u24 v%d, v8, s3, v%d\nv_mad_u32_u24 v%d, v9, s%d, v%d" % (14+i, c & 0xffffffff, 14+i, 14+i, 14+i, sT3, 14+i))
        if i == 2: a("v_lshrrev_b32 v8, 4, v8\nv_mul_u32_u24 v8, 46080, v8\nv_sub_u32 v16, v16, v8")
    srd(S_P, 38, 640*3840)
    a("s_branch L_pdone")
    a.label("L_phmode")
    a("s_mov_b32 s%d, %d" % (sIncP, 64*3072))
    a("s_mul_i32 s3, s%d, %d\ns_add_u32 s3, s3, s%d\ns_add_u32 s3, s3, 128" % (sT2, 32*3072, sT1))
    a("v_add_u32 v14, s3, v6\nv_add_u32 v15, 49152, v14\nv_add_u32 v16, 12288, v14\nv_add_u32 v17, 61440, v14\nv_mov_b32 v18, 0x%x" % OOB)
    a("s_lshl_b32 s3, s%d, 12\ns_add_u32 s%d, s3, %d" % (sT2, sLP, HQ_OFF + 8192))
    srd(S_P, 44, 640*3072)
    a.label("L_pdone")
    a("s_mul_i32 s%d, s%d, s%d" % (sP, sP, sIncP))
    issue(0, (6, 11)); nextstage()
    srd(S_WS, 56, WS_SIZE)
    a("s_getpc_b64 s[%d:%d]\nL_pc1:\ns_add_u32 s%d, s%d, L_table-L_pc1\ns_addc_u32 s%d, s%d, 0" % (sPC, sPC+1, sPC, sPC, sPC+1, sPC+1))
    a("v_lshlrev_b32 v1, 4, v0\ns_lshl_b32 s3, s%d, 10\nv_add_u32 v254, s3, v1\ns_lshl_b32 s3, s%d, 12\nv_add_u32 v5, s3, v254\nv_lshrrev_b32 v21, 1, v5" % (lw, sTY))
    a("v_mov_b32 v22, %d\ns_getreg_b32 s%d, hwreg(HW_REG_XCC_ID, 0, 4)\ns_and_b32 s3, s2, 7\ns_lshl_b32 s3, s3, 5\ns_lshr_b32 s%d, s2, 3\ns_add_u32 s3, s3, s%d\ns_lshl_b32 s3, s3, 2\ns_add_u32 s3, s3, 0x%x\nv_mov_b32 v23, s3" % (TAGL, sFAST, sT1, sT1, FWG))
    a("s_mov_b32 s%d, %d\ns_mov_b32 s%d, 1\ns_branch L_kvi" % (sK2, SLOT, sK1))
    a.label("L_kvl")
    a("s_waitcnt vmcnt(10)\ns_barrier")
    if STAMPS and OPT["sm"] == 3:
        a("s_memrealtime s[%d:%d]\ns_waitcnt lgkmcnt(0)" % (sST, sST+1))
        for k in range(7): a("s_cmp_eq_u32 s%d, %d\ns_cselect_b32 s%d, s%d, s%d" % (sK1, k + 2, sST + 3 + k, sST, sST + 3 + k))
    a("s_lshl_b32 s3, s%d, 2\ns_add_u32 s3, s3, s%d\ns_cmp_lg_u32 s3, %d\ns_cbranch_scc1 L_kvi" % (sK1, lw, 4 * 4 + 3))
    a("ds_read_b32 v6, v22\ns_mov_b64 exec, 1\ns_waitcnt lgkmcnt(0)\nv_xor_b32 v6, s%d, v6\nbuffer_store_dword v6, v23, %s, 0 offen sc1\ns_mov_b64 exec, -1" % (sFAST, S(S_WS)))
    a.label("L_kvi")
    issue(None); nextstage()
    a("s_add_u32 s%d, s%d, %d\ns_cmp_eq_u32 s%d, %d\ns_cselect_b32 s%d, 0, s%d\ns_add_u32 s%d, s%d, 1\ns_cmp_lt_u32 s%d, 9\ns_cbranch_scc1 L_kvl" % (sK2, sK2, SLOT, sK2, 3*SLOT, sK2, sK2, sK1, sK1, sK1))
    if OPT["lp"]: a("s_setprio %d" % OPT["lp"])
    a("global_load_dwordx2 v[252:253], v21, s[%d:%d]" % (sPC, sPC+1))
    a("v_mov_b32 v6, %d\nds_read_b32 v6, v6" % TAGL)
    g2_setup(True)
    a("v_and_b32 v29, 15, v0\nv_min_u32 v29, 13, v29\nv_lshlrev_b32 v29, 4, v29\ns_mul_i32 s3, s%d, 224\nv_add_u32 v29, s3, v29\nv_lshrrev_b32 v30, 4, v0\nv_lshl_add_u32 v31, v30, 10, v29\nv_and_b32 v30, 0x7ff, v31\nv_add_u32 v29, %d, v29\ns_lshl_b32 s3, s%d, 3\ns_add_u32 s3, s3, s%d\ns_mul_i32 s%d, s3, 10240\ns_add_u32 s%d, s%d, 0x%x" % (lw, CSL, sTY, sJJ, sPC, sPC, sPC, CSP_OFF))
    a("v_add_u32 v255, 4096, v254\nv_cmp_gt_u32 vcc, %d, v254\nv_mov_b32 v3, 0x%x\ns_mov_b64 s[%d:%d], vcc\nv_cndmask_b32 v255, v3, v255, vcc" % ((420 - 256) * 16, OOB, sEX, sEX+1))
    a("s_lshl_b32 s%d, s%d, 10\ns_lshl_b32 s3, s%d, 11\ns_add_u32 s%d, s%d, s3\ns_add_u32 s%d, s%d, 0x%x" % (sT1, lw, sRB, sT1, sT1, sT1, sT1, STAT_OFF - 1024))
    a("s_cmp_eq_u32 s%d, 3\ns_cselect_b32 s%d, 0x%x, s%d\ns_cselect_b32 s%d, -16, 0\ns_cselect_b32 s%d, -16, -1" % (lw, sT1, FWG, sT1, sT2, sT3))
    a("s_waitcnt lgkmcnt(0)\nv_readfirstlane_b32 s%d, v6\ns_waitcnt vmcnt(11)" % sTAG)
    bar(7)
    def csloads():
        for p in range(3): a("s_add_u32 s3, s%d, %d\nbuffer_load_dwordx4 %s, v%d, %s, s3 offen sc1" % (sPC, 4096 * p, R4(36 + 4*p), 31 if p < 2 else 30, S(S_WS)))
    a("s_cmp_eq_u32 s%d, 0\ns_cbranch_scc1 L_ck1\nbuffer_load_dwordx4 v[24:27], v1, %s, s%d offen sc1" % (lw, S(S_WS), sT1))
    a.label("L_ck1")
    issue(0, filler=["\n".join("s_lshr_b32 s%d, s%d, %d" % (TB[k], sTAG, 8*k) for k in range(4)),
          "v_mov_b64 v[4:5], 0\nv_mov_b64 v[6:7], 0\nv_add_u32 v8, %d, v254\nv_add_u32 v9, %d, v1" % (IMG, IMG + 8192),
          "ds_write_b128 v8, v[4:7]\nds_write_b128 v8, v[4:7] offset:4096\nds_write_b128 v9, v[4:7]"])
    a("s_mov_b32 s%d, %d\ns_waitcnt vmcnt(10)\ns_cmp_eq_u32 s%d, 3\ns_cbranch_scc1 L_chk" % (sSpin, SPIN, lw))
    bar(8)
    a("s_cmp_eq_u32 s%d, 0\ns_cbranch_scc1 L_chkok" % lw)
    a.label("L_chk")
    for k in range(4): a("v_xor_b32 v%d, s%d, v%d" % (32 + k, sTAG, 24 + k))
    a("v_or_b32 v3, v32, v34\nv_or_b32 v4, v33, v35\nv_and_b32 v3, s%d, v3\nv_and_b32 v4, s%d, v4\nv_or_b32 v3, v3, v4\nv_cmp_ne_u32 vcc, 0, v3\ns_cbranch_vccz L_chkw" % (sT2, sT3))
    a("s_sleep 8\nbuffer_load_dwordx4 v[24:27], v1, %s, s%d offen sc1\ns_waitcnt vmcnt(0)\ns_sub_u32 s%d, s%d, 1\ns_cbranch_scc0 L_chk" % (S(S_WS), sT1, sSpin, sSpin))
    a.label("L_chkw")
    a("s_cmp_eq_u32 s%d, 3\ns_cbranch_scc1 L_chk3" % lw)
    a("s_lshl_b32 s3, s%d, 8\ns_add_u32 s3, s3, %d\nv_lshl_add_u32 v3, v0, 2, s3\nds_write2st64_b32 v3, v24, v26 offset0:0 offset1:2\ns_branch L_chkok" % (lw, STATL - 256))
    a.label("L_chk3")
    a("s_getreg_b32 s3, hwreg(HW_REG_XCC_ID, 0, 4)\nv_xor_b32 v3, s3, v32")
    for k in range(1, 4): a("v_bitop3_b32 v3, v3, v%d, s3 bitop3:0xf6" % (32 + k))
    a("v_cmp_ne_u32 vcc, 0, v3\ns_and_b32 s3, s2, 7\ns_lshl_b32 s3, s3, 3\ns_lshr_b64 vcc, vcc, s3\ns_and_b32 s3, vcc_lo, 0xff\ns_cselect_b32 s3, 0, 1")
    a("v_mov_b32 v3, %d\nv_mov_b32 v4, s3\nds_write_b32 v3, v4\ns_barrier\ns_branch L_chkok" % FASTL)
    a.label("L_chkok")
    csloads()
    n1 = OPT["n1"]
    for s in range(n1): loadB(s, True)
    a("s_waitcnt vmcnt(%d) lgkmcnt(0)" % (5 * n1 + 3))
    bar(9)
    a("v_mov_b32 v6, %d\nds_read_b32 v6, v6\ns_mov_b32 s%d, %d\ns_waitcnt vmcnt(%d)" % (FASTL, sSpin, SPIN, 5 * n1))
    a.label("L_cchk")
    tagchk(3, list(range(36, 48)))
    a("s_cbranch_vccz L_cchkok\ns_sleep 8")
    csloads()
    a("s_waitcnt vmcnt(0)\ns_sub_u32 s%d, s%d, 1\ns_cbranch_scc0 L_cchk" % (sSpin, sSpin))
    a.label("L_cchkok")
    a("v_pk_add_f32 v[36:37], v[36:37], v[40:41]\nv_pk_add_f32 v[38:39], v[38:39], v[42:43]\ns_mov_b32 exec_hi, 0\nv_pk_add_f32 v[36:37], v[36:37], v[44:45]\nv_pk_add_f32 v[38:39], v[38:39], v[46:47]\ns_mov_b64 exec, -1")
    for op in ("v_permlane16_swap_b32", "v_permlane32_swap_b32"):
        a("v_mov_b64 v[40:41], v[36:37]\nv_mov_b64 v[42:43], v[38:39]\ns_nop 1")
        for k in range(4): a("%s v%d, v%d" % (op, 36 + k, 40 + k))
        a("s_nop 0\nv_pk_add_f32 v[36:37], v[36:37], v[40:41]\nv_pk_add_f32 v[38:39], v[38:39], v[42:43]")
    a("ds_write_b128 v29, v[36:39]")
    stamp(4)
    nb = min(7, n1 + OPT["n2"])
    for s in range(n1, nb): loadB(s, True)
    a("s_mul_i32 s%d, s%d, %d\ns_add_u32 s%d, s%d, 0x%x\ns_waitcnt lgkmcnt(0)\nv_readfirstlane_b32 s%d, v6" % (sH, sJJ, KVP_STRIDE, sH, sH, RED_OFF, sFAST))
    stamp(5)
    a("s_barrier")
    if OPT["lp"]: a("s_setprio 0")
    stamp(6)
    for s in range(nb, 4): loadB(s, True)
    for s in range(OPT["kvd"]): dmaB(s)
    a("s_lshl_b32 s%d, s%d, 9\ns_add_u32 s%d, s%d, 0x%x\ns_lshl_b32 s3, s%d, 2\ns_add_u32 s%d, s%d, s3\ns_lshl_b32 s3, s%d, 2\ns_add_u32 s%d, s%d, s3" % (sORD+1, sRT, sORD+1, sORD+1, FH, sK0, sORD, sORD+1, sK1, sORD+1, sORD+1))
    for k in range(4): step_off(4 + k, True, (sAo0, sAo1, sAo2, sAoF), 4096, sLA + k)
    nb2 = max(nb, 4)
    nbq = nb2
    if not (OPT["bl"] and OPT["afirst"]):
        for s in range(nb2, 7): loadB(s, True)
        nbq = 7
    a("s_cmp_lg_u32 s%d, 0\ns_cbranch_scc1 L_lq1" % sTY)
    for s in range(nbq, 7): loadB(s, True)
    nb2 = 7
    a("s_lshl_b32 s%d, s%d, 4\ns_mul_i32 s%d, s%d, %d\ns_add_u32 s%d, s%d, 0x%x\ns_mul_i32 s3, s%d, %d\ns_add_u32 s%d, s%d, s3\nv_mov_b32 v3, 0xff" % (sT2, sJJ, sT2, sT2, KVP_STRIDE, sT2, sT2, KVP_OFF, sRB, KVP_STRIDE, sT1, sT2))
    a("s_lshl_b32 s%d, s%d, 2\ns_add_u32 s%d, s%d, s%d\ns_lshl_b32 s3, s%d, 7\ns_add_u32 s%d, s%d, s3\ns_add_u32 s%d, s%d, s3\ns_add_u32 s%d, s%d, %d" % (sA, sRB, sA, sA, lw, sA, sT2, sT2, sH, sH, sT3, sT2, 8*KVP_STRIDE))
    a("s_cmp_eq_u32 s%d, 52\ns_cselect_b32 s3, 3, 7\nv_and_b32 v21, s3, v0\nv_lshlrev_b32 v21, 4, v21\nv_lshrrev_b32 v20, 3, v0\nv_mul_u32_u24 v20, %d, v20\nv_add_u32 v20, v20, v21" % (sA, KVP_STRIDE))
    stamp(1, 1)
    a("s_setprio 2")
    lds_wait(LF_XK, None, 4, 4)
    stamp(7); stamp(3, 1)
    a("ds_read_b128 v[4:7], v252\nds_read_b128 v[8:11], v252 offset:16384\nds_read_b128 v[12:15], v253\nds_read_b128 v[16:19], v253 offset:16384")
    a("s_waitcnt lgkmcnt(2)\nv_pk_add_f32 v[4:5], v[4:5], v[8:9]\nv_pk_add_f32 v[6:7], v[6:7], v[10:11]")
    for k in range(4): a("v_bfi_b32 v%d, v3, s%d, v%d" % (4 + k, TB[k], 4 + k))
    a("buffer_store_dwordx4 v[4:7], v254, %s, s%d offen sc1" % (S(S_WS), sT1))
    a("s_waitcnt lgkmcnt(0)\nv_pk_add_f32 v[12:13], v[12:13], v[16:17]\nv_pk_add_f32 v[14:15], v[14:15], v[18:19]")
    for k in range(4): a("v_bfi_b32 v%d, v3, s%d, v%d" % (12 + k, TB[k], 12 + k))
    a("buffer_store_dwordx4 v[12:15], v255, %s, s%d offen sc1" % (S(S_WS), sT1))
    for s in range(OPT["kvd"], 6): dmaB(s)
    a("s_waitcnt vmcnt(%d)" % (2 if OPT["kvd"] == 6 else 0))
    lds_signal(LF_B, lw, 22)
    nkb = min(7, nb2 + OPT["kvb"])
    for s in range(nb2, nkb): loadB(s, True)
    stamp(4, 1)
    a("s_cmp_gt_u32 s%d, 52\ns_cbranch_scc1 L_nored\ns_mov_b32 s%d, %d\ns_waitcnt vmcnt(0)" % (sA, sSpin, SPIN))
    a.label("L_red")
    a("buffer_load_dwordx4 v[4:7], v20, %s, s%d offen sc1\nbuffer_load_dwordx4 v[8:11], v20, %s, s%d offen sc1\ns_waitcnt vmcnt(0)" % (S(S_WS), sT2, S(S_WS), sT3))
    tagchk(12, list(range(4, 12)))
    a("s_cbranch_vccz L_redok\ns_sleep 1\ns_sub_u32 s%d, s%d, 1\ns_cbranch_scc0 L_red" % (sSpin, sSpin))
    a.label("L_redok")
    stamp(5, 1)
    a("v_pk_add_f32 v[4:5], v[4:5], v[8:9]\nv_pk_add_f32 v[6:7], v[6:7], v[10:11]\ns_nop 1")
    for k in range(4): a("v_add_f32_dpp v%d, v%d, v%d row_ror:8 row_mask:0xf bank_mask:0xf" % (4 + k, 4 + k, 4 + k))
    for op in ("v_permlane16_swap_b32", "v_permlane32_swap_b32"):
        a("v_mov_b64 v[8:9], v[4:5]\nv_mov_b64 v[10:11], v[6:7]\ns_nop 1")
        for k in range(4): a("%s v%d, v%d" % (op, 4 + k, 8 + k))
        a("s_nop 0\nv_pk_add_f32 v[4:5], v[4:5], v[8:9]\nv_pk_add_f32 v[6:7], v[6:7], v[10:11]")
    for k in range(4): a("v_bfi_b32 v%d, v3, s%d, v%d" % (4 + k, TB[k], 4 + k))
    a("s_mov_b64 exec, 0xff\nbuffer_store_dwordx4 v[4:7], v21, %s, s%d offen sc1\ns_mov_b64 exec, -1" % (S(S_WS), sH))
    a.label("L_nored")
    lds_signal(LF_Q, None, 22)
    if OPT["qk"]: lds_wait(LF_Q, None, 4, 22)
    a("s_setprio 0")
    for s in range(nkb, 7): loadB(s, True)
    a("s_branch L_la")
    a.label("L_lq1")
    for s in range(OPT["kvd"], 6): dmaB(s)
    for s in range(nb2, 7): loadB(s, True)
    a("s_lshr_b32 s%d, s%d, 1\ns_and_b32 s%d, s%d, 1" % (sA, lw, sP, lw))
    a2_soff(sT2, sA, lambda: a("s_lshl_b32 s3, s%d, 1\ns_add_u32 s3, s3, s%d\ns_add_u32 s3, s3, 48" % (sJJ, sP)))
    a2_soff(sT3, sA, lambda: a("s_lshr_b32 s3, s%d, 1\ns_add_u32 s3, s3, 64" % sJJ))
    a("s_lshl_b32 s3, s%d, 1\ns_add_u32 s3, s3, s%d\ns_and_b32 s3, s3, 3\ns_lshl_b32 s3, s3, 8\ns_add_u32 s%d, s%d, s3" % (sJJ, sP, sT3, sT3))
    a("s_lshl_b32 s3, s%d, 10\ns_add_u32 s%d, s%d, s3" % (lw, sH, sH))
    stamp(1, 1)
    a("s_waitcnt vmcnt(%d)" % (5 * (7 - nb2)))
    lds_signal(LF_B, lw, 22)
    AF = OPT["afirst"]
    if AF:
        a("v_lshrrev_b32 v4, 1, v254\nv_add_u32 v4, %d, v4\nds_write_b64 v4, v[252:253]" % GAL)
        stamp(8); stamp(6, 1)
        g2_flagoff(3, KS_L)
        poll(3, sORD, 4, 4, "hq")
        stamp(9); stamp(7, 1); stamp(1, 2)
        if OPT["ap"]: a("s_setprio %d" % OPT["ap"])
        vq = VM(); G = 108
        loadA(0, True); loadA(1, True); vq.add("A0", 4); vq.add("A1", 4)
        lateB = list(range(nbq, 7))
        if lateB: loadB(lateB.pop(0), True); vq.add("B", 5)
        for s in range(4):
            vq.wait("A%d" % s)
            g2_step(s, True)
            if s < 2: loadA(s + 2, True); vq.add("A%d" % (s + 2), 4)
            if lateB and s < 2: loadB(lateB.pop(0), True); vq.add("B", 5)
            if s == OPT["gh"]:
                a("v_cndmask_b32 v%d, v1, v2, s[%d:%d]" % (G + 10, sEX, sEX+1))
                a("buffer_load_dwordx4 %s, v1, %s, s%d offen sc1\nbuffer_load_dwordx4 %s, v%d, %s, s%d offen sc1" % (R4(G), S(S_WS), sH, R4(G + 4), G + 10, S(S_WS), sH)); vq.add("G", 2)
        assert not lateB
        stamp(8, 1)
    PQ = 224; AD = 248
    W32, W16, O, RM, G = (84, 98, 108, 156, 108) if AF else (4, 18, 28, 76, 28)
    if not AF: a("v_cndmask_b32 v%d, v1, v2, s[%d:%d]" % (G + 10, sEX, sEX+1))
    def gl(): a("buffer_load_dwordx4 %s, v1, %s, s%d offen sc1\nbuffer_load_dwordx4 %s, v%d, %s, s%d offen sc1" % (R4(G), S(S_WS), sH, R4(G + 4), G + 10, S(S_WS), sH))
    if AF:
        a("s_lshl_b32 s3, s%d, 9\ns_add_u32 s3, s3, %d\nv_lshl_add_u32 v%d, v0, 3, s3\nds_read_b64 %s, v%d" % (lw, GAL, G + 12, R2(G + 12), G + 12))
    else: a("v_mov_b64 %s, v[252:253]" % R2(G + 12))
    import re
    def ag(x): a(re.sub(r"@(\d+)@", lambda m: str(G + int(m.group(1))), x))
    ag("v_and_b32 v@16@, 15, v0\nv_lshrrev_b32 v@15@, 4, v0\ns_mul_i32 s3, s%d, 4608\ns_add_u32 s3, s3, %d" % (sP, IMG))
    ag("v_lshl_add_u32 v@17@, v@16@, 2, v@15@\nv_lshl_add_u32 v%d, v@17@, 3, s3\nv_lshl_add_u32 v%d, v@17@, 4, s3" % (AD+1, AD))
    ag("v_and_b32 v@18@, 3, v@16@\nv_min_u32 v@18@, 1, v@18@\nv_cmp_eq_u32 vcc, 2, v@16@\nv_lshlrev_b32 v@16@, 4, v@16@\nv_lshl_add_u32 v%d, v@15@, 10, v@16@\nv_cndmask_b32 v@18@, v@18@, 0, vcc" % (AD+4))
    ag("v_add_u32 v@18@, 40, v@18@\nv_lshl_add_u32 v@18@, v@18@, 2, v@15@\nv_lshl_add_u32 v%d, v@18@, 3, s3\nv_lshl_add_u32 v%d, v@18@, 4, s3\nv_mov_b32 v%d, 0x358637bd" % (AD+3, AD+2, AD+5))
    lds_wait(LF_PQ, lw, 1, 254, 2)
    ag("s_setprio 2")
    ag("s_mul_i32 s3, s%d, 6144\ns_add_u32 s3, s3, %d\nv_add_u32 v@20@, s3, v1\nv_lshl_add_u32 v@21@, v0, 3, s3" % (lw, PQL))
    for i in range(4): ag("ds_read_b128 %s, v@20@ offset:%d\nds_read_b64 %s, v@21@ offset:%d" % (R4(PQ + 6*i), 1024*i, R2(PQ + 6*i + 4), 4096 + 512*i))
    if not AF: gl()
    ag("s_mov_b32 s%d, %d" % (sSpin, SPIN))
    a.label("L_gather")
    a("s_waitcnt vmcnt(0)")
    tagchk(G + 8, list(range(G, G + 8)))
    a("s_cbranch_vccz L_gatherok\ns_sleep %d" % OPT["slp"])
    gl()
    a("s_sub_u32 s%d, s%d, 1\ns_cbranch_scc0 L_gather\ns_waitcnt vmcnt(0)" % (sSpin, sSpin))
    a.label("L_gatherok")
    stamp(7); stamp(2, 1)
    if OPT["yld"]: lds_signal(LF_PQ, lw, 254)
    for k in range(4): a("v_cvt_pk_bf16_f32 v%d, v%d, v%d" % (G + k, G + 2*k, G + 1 + 2*k))
    a("ds_write_b64 v%d, %s\nds_write_b64 v%d, %s\ns_waitcnt lgkmcnt(0)" % (G + 12, R2(G), G + 13, R2(G + 2)))
    lds_signal(LF_IMG, None, 254)
    lds_wait(LF_IMG, None, 4, 254, 0)
    stamp(3, 1)
    for to in range(3): a("ds_read_b128 %s, v%d offset:%d" % (R4(W32 + 4*to), AD, 1024*to))
    a("ds_read_b128 %s, v%d" % (R4(W32 + 12), AD+2))
    for to in range(1, 3): a("ds_read_b64 %s, v%d offset:%d" % (R2(W16 + 2*to), AD+1, 3072 + 512*to))
    a("ds_read_b64 %s, v%d offset:3072\ns_waitcnt lgkmcnt(0)" % (R2(W16 + 6), AD+3))
    def Oreg(i, to): return O + 16*(i % 3) + 4*to
    def omfma(i):
        for to in range(4): a("v_mfma_f32_16x16x32_bf16 %s, %s, %s, 0" % (R4(Oreg(i, to)), R4(W32 + 4*to), R4(PQ + 6*i)))
    def omfma2(i):
        for to in (3, 1, 2): a("v_mfma_f32_16x16x16_bf16 %s, %s, %s, %s" % (R4(Oreg(i, to)), R2(W16 + 2*to), R2(PQ + 6*i + 4), R4(Oreg(i, to))))
    def oden(i):
        d = Oreg(i, 3)
        for j in range(3): a("v_add_f32 v%d, v%d, v%d" % (d + j, d + j, AD+5))
        for j in range(3): a("v_rcp_f32 v%d, v%d" % (d + j, d + j))
    def ofin(i):
        d = Oreg(i, 3)
        for to, sel in ((0, 0), (2, 1), (1, 2)):
            for q in range(2):
                x = Oreg(i, to) + 2*q
                if OPT["sco"]: a("v_mul_f32 v%d, v%d, v%d\nv_mul_f32 v%d, v%d, v%d" % (x, x, d + sel, x + 1, x + 1, d + sel))
                else: a("v_pk_mul_f32 %s, %s, %s op_sel:[0,%d] op_sel_hi:[1,%d]" % (R2(x), R2(x), R2(d + (sel & 2)), sel & 1, sel & 1))
        for k in (4, 5, 0, 1, 2, 3): a("v_cvt_pk_bf16_f32 v%d, v%d, v%d" % (PQ + 6*i + k if k < 4 else RM + 2*i + k - 4, Oreg(i, 0) + 2*k, Oreg(i, 0) + 2*k + 1))
    def ost(i): st_a2("buffer_store_dwordx4 %s, v1, %s, s%d offen offset:%d" % (R4(PQ + 6*i), S(S_WS), sT2, 1024*i))
    for i in range(3): omfma(i)
    for i in range(3): omfma2(i)
    oden(0); ofin(0); omfma(3); ost(0); oden(1); oden(2); omfma2(3); ofin(1); ost(1); oden(3); ofin(2); ost(2); ofin(3); ost(3)
    for k in range(2): a("v_permlane16_swap_b32 v%d, v%d" % (RM + k, RM + 2 + k))
    for k in range(2): a("v_permlane16_swap_b32 v%d, v%d" % (RM + 4 + k, RM + 6 + k))
    a("s_nop 1")
    for k in range(4): a("v_permlane32_swap_b32 v%d, v%d" % (RM + k, RM + 4 + k))
    st_a2("buffer_store_dwordx4 %s, v%d, %s, s%d offen" % (R4(RM), AD+4, S(S_WS), sT3))
    stamp(4, 1)
    if OPT["yld"]: lds_signal(LF_PQ, lw, 254)
    ks_flag(sT2, sA, 0, 254)
    lds_signal(LF_Q, None, 252)
    stamp(5, 1)
    a("s_setprio 0")
    if AF:
        loadB(7, True); loadB(8, True)
        a("s_branch L_oslow2")
    a.label("L_la")
    stamp(8); stamp(6, 1)
    g2_flagoff(3, KS_L)
    poll(3, sORD, 4, 4, "hl")
    stamp(9); stamp(7, 1); stamp(1, 2)
    if OPT["ap"]: a("s_setprio %d" % OPT["ap"])
    vm = VM()
    AO = [124, 144, 224, 124]
    so = [sLA, sLA + 1, sLA + 2, sLA + 3, sAo2]
    def ldo(i):
        for s in range(5): a("buffer_load_dwordx4 %s, v1, %s, s%d offen offset:%d%s" % (R4(AO[i] + 4*s), S(S_WS), so[s], 1024*i, ALD))
        for s in range(5): vm.add("O%d%d" % (i, s))
    loadA(0, True); loadA(1, True); vm.add("A0", 4); vm.add("A1", 4)
    for s in range(4):
        vm.wait("A%d" % s)
        g2_step(s, True)
        if s < 2: loadA(s + 2, True); vm.add("A%d" % (s + 2), 4)
        if s == 1:
            a("v_lshlrev_b32 v3, 2, v0\ns_mov_b64 exec, 15\nbuffer_load_dword v3, v3, %s, s%d offen%s\ns_mov_b64 exec, -1" % (S(S_WS), sORD + 1, PLD)); vm.add("F")
            loadB(7, True); loadB(8, True); vm.add("B", 10)
        if s == 2:
            vm.wait("F")
            a("v_cmp_ne_u32 vcc, s%d, v3\ns_and_b32 s%d, vcc_lo, 15\ns_cbranch_scc1 L_oslow" % (sTAG, sK0))
            ldo(0)
    ldo(1); ldo(2)
    a.label("L_oback")
    mark = len(a.lines)
    a.label("L_oslow")
    g2_step(3, True)
    a.label("L_oslow2")
    a("s_setprio 0\nv_lshlrev_b32 v3, 2, v0")
    stamp(9, 1)
    poll(3, sORD + 1, 4, 248, "o")
    q = list(vm.q); ldo(0); ldo(1); ldo(2); vm.q = q
    a("s_branch L_oback")
    SLOW = a.lines[mark:]; del a.lines[mark:]
    a("s_setprio 0")
    stamp(10); stamp(10, 1); stamp(6, 2)
    paddr(251, 249, 250)
    a("s_mul_i32 s3, s%d, 5120\ns_add_u32 s3, s3, %d\nv_add_u32 v250, s3, v251\ns_mul_i32 s3, s%d, %d\nv_add_u32 v251, s3, v251\nv_add_u32 v249, 20480, v251" % (sM, 4*EBS, sM, EBS))
    a("v_mov_b32 v252, %d\nv_mov_b32 v253, 1" % (LFLAG + LF_T))
    def sig(i): return "s_mov_b64 exec, 1\ns_waitcnt lgkmcnt(0)\nds_add_u32 v252, v253 offset:%d\ns_mov_b64 exec, -1" % (4*i)
    pend = []
    for i in range(4):
        k = 0
        stamp(7 + i, 2)
        for s in range(5):
            vm.wait("O%d%d" % (i, s))
            for t in range(5):
                g2_mfma(Dreg(i, t, True), Breg(4 + s, t, True), AO[i] + 4*s, False)
                k += 1
                if pend and k >= 4: a(pend.pop(0))
            if i > 0 and s == 2: a(sig(i - 1))
        if i == 0:
            ldo(3)
            lds_wait(LF_B, lw, 2, 254)
        if i == 2: lds_wait(LF_Q, None, 4, 254)
        if i == 3: lds_wait(LF_PRE, None, 8, 254)
        pend = ["ds_write_b128 v%d, %s offset:%d" % ((249, 249, 250, 251)[i], R4(Dreg(i, t, True)), (5120 if i == 1 else 0) + 64*t) for t in range(5)]
    for x in pend: a(x)
    stamp(11); stamp(11, 1); stamp(11, 2)
    a(sig(3))
    stamp(12)
    a("s_branch L_alldone")
    a.lines.extend(SLOW)

ACC = 8; F0 = 120; F1 = 164
vA0, vA1, vS, vS2, vH = 208, 209, 210, 211, 212
vB1 = 216
def acc(i, t): return ACC + (i * 7 + t) * 4

def compute_prologue():
    sQ, sU, sUe, sJ0, sJ1, sJ2, sCd = sLA, sLP, sH, sLP4, sLH, sA, sP
    a("s_lshr_b32 s%d, s%d, 1\ns_and_b32 s%d, s%d, 1" % (sM, sWV, sN, sWV))
    a("s_lshl_b32 s3, s%d, 3\ns_add_u32 s3, s3, s%d\ns_lshl_b32 s3, s3, 2\ns_add_u32 s3, s3, s%d\ns_lshl_b32 s3, s3, 1\ns_lshl_b32 s%d, s%d, 7\ns_add_u32 s3, s3, s%d" % (sTY, sJJ, sWV, sT1, sRB, sT1))
    a("s_mul_i32 s%d, s3, 1280\ns_lshl_b32 s%d, s3, 4\ns_add_u32 s%d, s%d, 0x%x" % (sT1, sT2, sT2, sT2, STAT_OFF))
    a("v_lshrrev_b32 v5, 5, v0\nv_and_b32 v6, 31, v0\nv_mul_u32_u24 v7, 1280, v5\nv_lshl_add_u32 v224, v6, 4, v7\nv_lshl_add_u32 v225, v6, 3, v7")
    a("s_lshl_b32 s%d, s%d, 7\ns_lshl_b32 s3, s%d, 3\ns_add_u32 s%d, s%d, s3\ns_add_u32 s%d, s%d, s%d" % (sQ, sWV, sRB, sQ, sQ, sQ, sQ, sJJ))
    a("s_mov_b32 s%d, s%d\ns_movk_i32 s%d, %d" % (sU, sQ, sUe, NQU))
    a("s_add_u32 s3, s%d, %d\ns_add_u32 s%d, s3, 1\ns_min_u32 s%d, s%d, 680\ns_cmp_eq_u32 s%d, 0\ns_cselect_b32 s%d, s3, s%d\ns_cselect_b32 s%d, s%d, s%d" % (sQ, NQU, sK0, sK0, sK0, sTY, sU, sU, sUe, sK0, sUe))
    if OPT["nojob"]: a("s_mov_b32 s%d, 0" % sUe)
    a("v_lshrrev_b32 v2, 3, v0\nv_and_b32 v4, 7, v0\nv_and_b32 v7, 6, v2\nv_xor_b32 v7, v4, v7\nv_lshlrev_b32 v4, 4, v7\nv_and_b32 v6, 3, v2")
    a("s_lshl_b32 s3, s%d, 13\ns_add_u32 m0, s3, %d\ns_mov_b32 s%d, 0x20000\ns_mov_b32 s%d, s%d" % (sWV, JOBL, S_J+3, sK0, sU))
    a("s_mov_b32 s%d, 0x%x\ns_mov_b32 s%d, 0x20000\ns_waitcnt lgkmcnt(0)\ns_mov_b32 s%d, s36\ns_mov_b32 s%d, s37" % (S_X+2, 2048*1280, S_X+3, S_X, S_X+1))
    XL = 124; U = 136
    a("buffer_load_dwordx4 %s, v224, %s, s%d offen\nbuffer_load_dwordx4 %s, v224, %s, s%d offen offset:512\nbuffer_load_dwordx2 %s, v225, %s, s%d offen offset:1024" % (R4(XL), S(S_X), sT1, R4(XL+4), S(S_X), sT1, R2(XL+8), S(S_X), sT1))
    a("s_add_u32 s%d, s56, 0x%x\ns_addc_u32 s%d, s57, 0\ns_load_dword s%d, s[%d:%d], 0" % (sEX, EPOCH, sEX+1, sTAG, sEX, sEX+1))
    a.label("L_jrl")
    a("s_cmp_ge_u32 s%d, s%d\ns_cbranch_scc1 L_nojob1" % (sK0, sUe))
    a("s_mul_i32 s3, s%d, 6554\ns_lshr_b32 s%d, s3, 16\ns_mul_i32 s3, s%d, 10\ns_sub_u32 s%d, s%d, s3" % (sK0, sK1, sK1, sT3, sK0))
    a("s_cmp_lt_u32 s%d, 48\ns_cselect_b32 s%d, s48, s40\ns_cselect_b32 s%d, s49, s41\ns_mov_b32 s%d, %d\ns_cselect_b32 s%d, %d, s%d" % (sK1, S_J, S_J+1, S_J+2, 640*1280, S_J+2, 1536*1280, S_J+2))
    a("s_lshl_b32 s%d, s%d, 5\ns_mul_i32 s3, s%d, 40\ns_sub_u32 s3, s3, %d\ns_cmp_lt_u32 s%d, 48\ns_cselect_b32 s%d, s%d, s3" % (sJ0, sK1, sK1, 48*40, sK1, sJ0, sJ0))
    a("s_mul_i32 s3, s%d, 160\ns_sub_u32 s3, s3, %d\ns_cmp_lt_u32 s%d, 64\ns_cselect_b32 s%d, s%d, s3\ns_cselect_b32 s%d, 4, 40\ns_cselect_b32 s%d, 16, 4" % (sK1, 64*160 - 32, sK1, sJ0, sJ0, sJ1, sJ2))
    a("v_mad_u32_u24 v7, s%d, v5, v6\nv_mul_u32_u24 v7, 1280, v7\nv_add_u32 v3, v4, v7" % sJ1)
    a("s_mul_i32 s%d, s%d, 1280\ns_lshl_b32 s3, s%d, 7\ns_add_u32 s%d, s%d, s3\ns_mul_i32 s%d, s%d, 2560\ns_mul_i32 s%d, s%d, 1280" % (sJ0, sJ0, sT3, sJ0, sJ0, sJ1, sJ1, sJ2, sJ2))
    a("s_add_u32 s3, s%d, s%d\nbuffer_load_dwordx4 v3, %s, s%d offen lds" % (sJ0, sJ1, S(S_J), sJ0))
    a("s_add_u32 m0, m0, 0x400\ns_add_u32 s%d, s%d, s%d\nbuffer_load_dwordx4 v3, %s, s3 offen lds" % (sJ0, sJ0, sJ2, S(S_J)))
    a("s_add_u32 m0, m0, 0x400\ns_add_u32 s3, s%d, s%d\nbuffer_load_dwordx4 v3, %s, s%d offen lds" % (sJ0, sJ1, S(S_J), sJ0))
    a("s_add_u32 m0, m0, 0x400\ns_add_u32 s%d, s%d, 512\nbuffer_load_dwordx4 v3, %s, s3 offen lds" % (sK0, sK0, S(S_J)))
    a("s_add_u32 m0, m0, 0x400\ns_branch L_jrl")
    a.label("L_nojob1")
    srd(S_B1, 46, 3072); srd(S_WS, 56, WS_SIZE); srd(S_OUT, 52, 2048*1280); srd(S_B2, 50, 1280)
    a("v_and_b32 v2, 15, v0\nv_lshrrev_b32 v3, 4, v0\nv_lshrrev_b32 v4, 1, v2\nv_xor_b32 v4, v4, v3\nv_lshlrev_b32 v4, 4, v4\nv_lshl_add_u32 v4, v2, 7, v4\nv_lshlrev_b32 v1, 3, v3")
    a("s_lshl_b32 s3, s%d, 13\nv_add_u32 v%d, s3, v4\nv_xor_b32 v%d, 64, v%d" % (sM, vA0, vA1, vA0))
    a("v_lshlrev_b32 v226, 2, v2\nv_add_u32 v226, %d, v226" % LFLAG)
    a("v_lshrrev_b32 v2, 2, v0\nv_and_b32 v3, 3, v0\nv_mul_u32_u24 v4, 160, v2\ns_mul_i32 s3, s%d, 80\nv_add_u32 v4, s3, v4\nv_lshl_add_u32 v%d, v3, 3, v4" % (sN, vS))
    a("v_and_b32 v5, 1, v3\nv_lshl_add_u32 v4, v5, 3, v4\nv_add_u32 v4, %d, v4" % (K_OFF + 64))
    a("s_cmp_eq_u32 s%d, 0\ns_cselect_b32 s3, %d, 0\nv_lshrrev_b32 v5, 1, v3\nv_mad_u32_u24 v%d, v5, s3, v4" % (sTY, V_OFF - K_OFF - 64, vS2))
    a("v_lshlrev_b32 v4, 7, v2\nv_lshl_add_u32 v4, v3, 3, v4\nv_bfe_u32 v5, v0, 3, 2\nv_lshl_add_u32 v4, v5, 5, v4")
    a("s_lshl_b32 s3, s%d, 13\ns_add_u32 s3, s3, %d\nv_add_u32 v200, s3, v4\nv_xor_b32 v201, 32, v200\nv_xor_b32 v202, 64, v200\nv_xor_b32 v203, 0x60, v200" % (sWV, JOBL))
    a("s_lshl_b32 s3, s%d, 6\ns_cmp_eq_u32 s%d, 0\ns_cselect_b32 s3, s3, 0\nv_xor_b32 v4, s3, v4" % (sN, sTY))
    a("s_lshl_b32 s3, s%d, 13\ns_add_u32 s3, s3, %d\ns_cmp_eq_u32 s%d, 0\ns_cselect_b32 s3, %d, s3" % (sN, HQ_OFF, sTY, HKV_OFF))
    for t in range(4): a("v_xor_b32 v5, %d, v4\nv_add_u32 v%d, s3, v5" % (32*t, vH + t))
    a("s_lshl_b32 s3, s%d, 6\ns_lshl_b32 s3, s3, s%d\ns_lshl_b32 s%d, s%d, 7\ns_add_u32 s3, s3, s%d\ns_mul_i32 s%d, s%d, 384\ns_add_u32 s%d, s3, s%d" % (sN, sTY, sIncP, sTY, sIncP, sIncP, sJJ, sIncP, sIncP))
    for t in range(4): a("buffer_load_dwordx2 %s, v1, %s, s%d offen offset:%d" % (R2(vB1 + 2*t), S(S_B1), sIncP, 32*t))
    for r in range(ACC, ACC + 112, 2): a("v_mov_b64 %s, 0" % R2(r))
    a("s_waitcnt lgkmcnt(0)\ns_and_b32 s3, s%d, 0x7f7f7f7f\ns_add_u32 s3, s3, 0x35251513\ns_and_b32 s%d, s%d, 0x80808080\ns_xor_b32 s%d, s%d, s3" % (sTAG, sTAG, sTAG, sTAG, sTAG))
    a("v_mov_b32 v6, 0\nv_mov_b32 v7, s%d\nds_write2_b32 v226, v6, v7 offset0:0 offset1:16" % sTAG)
    stamp(1)
    def allreduce32(v, t):
        for ctl in ("quad_perm:[1,0,3,2]", "quad_perm:[2,3,0,1]", "row_half_mirror", "row_mirror"):
            a("s_nop 1\nv_add_f32_dpp v%d, v%d, v%d %s row_mask:0xf bank_mask:0xf" % (v, v, v, ctl))
        a("v_mov_b32 v%d, v%d\ns_nop 1\nv_permlane16_swap_b32 v%d, v%d\ns_nop 1\nv_add_f32 v%d, v%d, v%d" % (t, v, v, t, v, v, t))
    a("s_cmp_lt_u32 s%d, s%d\ns_cbranch_scc1 L_w4\ns_waitcnt vmcnt(4)" % (sU, sUe))
    a.label("L_w4"); a("s_waitcnt vmcnt(8)")
    for i in range(10): unpack(U + 2*i, XL + i)
    a("v_pk_add_f32 v[2:3], %s, %s\nv_pk_add_f32 v[4:5], %s, %s" % (R2(U), R2(U + 2), R2(U + 4), R2(U + 6)))
    for i in range(4, 10): a("v_pk_add_f32 %s, %s, %s" % (R2(2 + 2*(i & 1)), R2(2 + 2*(i & 1)), R2(U + 2*i)))
    a("v_pk_add_f32 v[2:3], v[2:3], v[4:5]\nv_add_f32 v2, v2, v3")
    allreduce32(2, 3)
    a("v_mul_f32 v2, 0x3acccccd, v2")
    for i in range(10): a("v_pk_add_f32 %s, %s, v[2:3] op_sel_hi:[1,0] neg_lo:[0,1] neg_hi:[0,1]" % (R2(U + 2*i), R2(U + 2*i)))
    a("v_pk_mul_f32 v[4:5], %s, %s\nv_pk_mul_f32 v[6:7], %s, %s" % (R2(U), R2(U), R2(U + 2), R2(U + 2)))
    for i in range(2, 10): a("v_pk_fma_f32 %s, %s, %s, %s" % (R2(4 + 2*(i & 1)), R2(U + 2*i), R2(U + 2*i), R2(4 + 2*(i & 1))))
    a("v_pk_add_f32 v[4:5], v[4:5], v[6:7]\nv_add_f32 v4, v4, v5")
    allreduce32(4, 5)
    a("v_mul_f32 v4, 0x3acccccd, v4")
    bf16_round(4); a("v_add_f32 v4, 0x3727c5ac, v4"); bf16_round(4)
    a("v_sqrt_f32 v4, v4\ns_nop 0"); bf16_round(4); bf16_round(2)
    a("v_rcp_f32 v232, v4\nv_mov_b32 v233, s%d\nv_mov_b32 v235, s%d\nv_mul_f32 v234, v232, v2\nv_lshrrev_b32 v5, 1, v0" % (sTAG, sTAG))
    a("s_mov_b32 exec_lo, 1\ns_mov_b32 exec_hi, 1\nbuffer_store_dwordx4 v[232:235], v5, %s, s%d offen sc1\ns_mov_b64 exec, -1" % (S(S_WS), sT2))
    stamp(2)
    a("s_and_b32 s3, s2, 7\ns_cmp_lt_u32 s3, 5\ns_cselect_b32 s%d, 1, 0\ns_cbranch_scc0 L_nosel" % sA)
    a("s_lshl_b32 s3, s3, 1\ns_and_b32 s%d, s%d, 1\ns_add_u32 s3, s3, s%d\ns_lshl_b32 s%d, s%d, 3\ns_add_u32 s%d, s%d, s%d\ns_mul_i32 s%d, s%d, 10\ns_add_u32 s3, s3, s%d\ns_lshl_b32 s3, s3, 10\ns_mul_i32 s%d, s%d, 448\ns_add_u32 s3, s3, s%d\ns_lshl_b32 s%d, s%d, 8\ns_add_u32 s3, s3, s%d\ns_add_u32 s%d, s3, 0x%x" % (sA, sRB, sA, sA, sTY, sA, sA, sJJ, sA, sA, sA, sA, sN, sA, sA, sM, sA, sA, CSP_OFF))
    a("v_and_b32 v6, 15, v0\nv_mov_b32 v7, 0x3f803f80\nv_and_b32 v4, 48, v0\nv_lshl_add_u32 v4, v6, 6, v4\nv_mov_b32 v5, 0xff")
    for t in range(4):
        a("v_cmp_eq_u32 vcc, %d, v6\ns_lshr_b32 s%d, s%d, %d\ns_nop 0\nv_cndmask_b32 v%d, 0, v7, vcc\nv_cndmask_b32 v%d, 0, v7, vcc\nv_mov_b64 %s, %s" % (t, TB[t], sTAG, 8*t, 236 + 4*t, 237 + 4*t, R2(238 + 4*t), R2(236 + 4*t)))
    a.label("L_nosel")
    FR = 120
    a("v_lshlrev_b32 v1, 4, v0")
    for r in range(QPER):
        a("s_cmp_ge_u32 s%d, s%d\ns_cbranch_scc1 L_nojob2" % (sU, sUe))
        if r == 0: a("s_waitcnt vmcnt(5)")
        for t in range(4): a("ds_read_b64_tr_b16 %s, v%d offset:%d\nds_read_b64_tr_b16 %s, v%d offset:%d" % (R2(FR + 16*r + 4*t), 200 + t, 4096*r, R2(FR + 16*r + 2 + 4*t), 200 + t, 4096*r + 2048))
        a("s_lshl_b32 s3, s%d, 12\ns_add_u32 s3, s3, 0x%x\ns_add_u32 s%d, s%d, 512\ns_waitcnt lgkmcnt(0)" % (sU, B2_OFF, sU, sU))
        for t in range(4):
            if OPT["jst"]: a("buffer_store_dwordx4 %s, v1, %s, s3 offen offset:%d%s" % (R4(FR + 16*r + 4*t), S(S_WS), 1024*t, {1: " sc1", 2: "", 3: " nt"}[OPT["jst"]]))
    a.label("L_nojob2")

def frag_reads(ty, F, ks2):
    r = []
    for i in range(4): r.append("ds_read_b128 %s, v%d offset:%d" % (R4(F + 4*i), vA1 if ks2 else vA0, 2048*i))
    nseg = 5 if ty == 0 else 3
    for t in range(7):
        d = F + 16 + 4*t
        for rd in range(2):
            if t < nseg:
                if t == 2: reg, off = vS2, 0
                elif t < 2: reg, off = vS, K_OFF + 32*t
                else: reg, off = vS, V_OFF + 16 + 32*(t - 3)
                off += ks2 * 5120 + rd * 2560
            else: reg, off = vH + (t - nseg), ks2 * 4096 + rd * 2048
            r.append("ds_read_b64_tr_b16 %s, v%d offset:%d" % (R2(d + 2*rd), reg, off))
    return r
def transposed(ty, t): return ty == 1 or t >= 5
def mfmas(ty, F, order=None):
    r = []
    for (t, i) in (order or [(t, i) for t in range(7) for i in range(4)]):
        B = R4(F + 16 + 4*t); A = R4(F + 4*i); D = R4(acc(i, t))
        r.append("v_mfma_f32_16x16x32_bf16 %s, %s, %s, %s" % ((D, B, A, D) if transposed(ty, t) else (D, A, B, D)))
    return r
def interleave(mm, rr):
    for k, x in enumerate(mm):
        a(x)
        if k < len(rr): a(rr[k])
def addr_regs(ty): return [vA0, vA1, vS, vS2] + [vH + t for t in range(2 if ty == 0 else 4)]

CT = 120; RS = 148; BF = 156; KC = 172; TMP = 176; T2P = 208; R4S = 224

def epi_reads(ty):
    a("v_and_b32 v4, 15, v0\nv_lshlrev_b32 v4, 2, v4\ns_lshl_b32 s3, s%d, 8\ns_add_u32 s3, s3, %d\nv_add_u32 v5, s3, v4" % (sM, STATL))
    a("v_and_b32 v6, 48, v0\nv_add_u32 v3, s3, v6\ns_mul_i32 s3, s%d, 448\ns_add_u32 s3, s3, %d\nv_add_u32 v6, s3, v6\nv_add_u32 v4, s3, v4\nv_mov_b32 v7, %d" % (sN, CSL, FASTL))
    if ty == 0:
        for i in range(4): a("ds_read_b128 %s, v3 offset:%d\nds_read_b128 %s, v3 offset:%d" % (R4(R4S + 4*i), 64*i, R4(R4S + 16 + 4*i), 512 + 64*i))
    for t in range(7):
        if transposed(ty, t): a("ds_read_b128 %s, v6 offset:%d" % (R4(CT + 4*t), 64*t))
        else: a("ds_read_b32 v%d, v4 offset:%d" % (CT + 4*t, 64*t))
    for i in range(4): a("ds_read2_b32 %s, v5 offset0:%d offset1:%d" % (R2(RS + 2*i), 16*i, 128 + 16*i))
    a("ds_read_b32 v7, v7\nv_lshlrev_b32 v1, 4, v0")
    if ty == 0: a2_soff(sT2, sM, lambda: a("s_mul_i32 s3, s%d, 6\ns_add_u32 s3, s3, s%d" % (sJJ, sN)))
    else:
        a2_soff(sT2, sM, lambda: a("s_mul_i32 s3, s%d, 6\ns_lshl_b32 s%d, s%d, 1\ns_add_u32 s3, s3, s%d\ns_add_u32 s3, s3, 2" % (sJJ, sT1, sN, sT1)))
        a("s_add_u32 s%d, s%d, 4096" % (sT3, sT2))

def main_loop(ty):
    a("s_mov_b32 s%d, 0\ns_mov_b32 s%d, 0\ns_waitcnt lgkmcnt(0)" % (sCnt, sSlot))
    stamp(3)
    a("s_barrier")
    stamp(4)
    for x in frag_reads(ty, F0, 0): a(x)
    a("s_cmp_eq_u32 s%d, 0\ns_cbranch_scc1 L_ent%d\ns_cmp_lg_u32 s%d, 0\ns_cbranch_scc1 L_cs1%d" % (sA, ty, sM, ty))
    rr = frag_reads(ty, F1, 1)[4:]
    for m in range(2):
        tl = list(range(4*m, min(7, 4*m + 4)))
        for t in tl: a(rr[2*t]); a(rr[2*t + 1])
        a("s_waitcnt lgkmcnt(%d)" % (2 * len(tl)))
        for k, t in enumerate(tl): a("v_mfma_f32_16x16x32_bf16 v[252:255], %s, %s, %s" % (R4(F0 + 16 + 4*t), R4(236 + 4*k), "0" if k == 0 else "v[252:255]"))
        a("s_waitcnt lgkmcnt(0)")
        for k, t in enumerate(tl): a("v_mfma_f32_16x16x32_bf16 v[252:255], %s, %s, v[252:255]" % (R4(F1 + 16 + 4*t), R4(236 + 4*k)))
        a("s_mov_b32 s3, 0x%x" % (0x000f000f if m == 0 else 0x00070007))
        if m == 0: a("s_branch L_cs2%d" % ty); a.label("L_cs1%d" % ty)
    a.label("L_cs2%d" % ty)
    a("s_nop 6")
    for k in range(4): a("v_bfi_b32 v%d, v5, s%d, v%d" % (252 + k, TB[k], 252 + k))
    a("s_mov_b32 exec_lo, s3\ns_mov_b32 exec_hi, s3\nbuffer_store_dwordx4 v[252:255], v4, %s, s%d offen sc1\ns_mov_b64 exec, -1" % (S(S_WS), sA))
    a.label("L_ent%d" % ty)
    a("s_waitcnt lgkmcnt(0)\ns_branch L_mid%d" % ty)
    align8()
    a.label("L_top%d" % ty)
    a("s_barrier\ns_nop 0")
    interleave(mfmas(ty, F1), frag_reads(ty, F0, 0))
    a("s_waitcnt vmcnt(0) lgkmcnt(0)\ns_nop 0" if OPT["lvm"] else "s_waitcnt lgkmcnt(0)\ns_nop 0")
    a.label("L_mid%d" % ty)
    upd = ["v_add_u32_e64 v%d, s%d, v%d" % (r, sT1, r) for r in addr_regs(ty)]
    sal = "s_add_u32 s%d, s%d, 1\ns_cmp_eq_u32 s%d, 3\ns_cselect_b32 s%d, 0, s%d\ns_mov_b32 s%d, %d\ns_cselect_b32 s%d, %d, s%d\ns_add_u32 s%d, s%d, 1" % (sSlot, sSlot, sSlot, sSlot, sSlot, sT1, SLOT, sT1, (-2*SLOT) & 0xffffffff, sT1, sCnt, sCnt)
    rr = frag_reads(ty, F1, 1)
    interleave(mfmas(ty, F0), rr + [sal] + upd)
    a("s_cmp_lt_u32 s%d, 10\ns_waitcnt lgkmcnt(0)\ns_cbranch_scc1 L_top%d" % (sCnt, ty))
    a("s_barrier")
    pre = capture(lambda: epi_reads(ty))
    c0 = -2.0 * 0.7978845608028654 * 1.4426950408889634; c1 = c0 * 0.044715
    k = 0
    order = [(t, i) for i in range(4) for t in range(5)] + [(t, i) for i in range(4) for t in (5, 6)] if ty == 0 else \
            [(t, i) for g in ((3, 4), (5, 6), (0, 1, 2)) for i in range(4) for t in g]
    for x in mfmas(ty, F1, order):
        a(x)
        for y in pre[k:k+2]: a(y)
        k += 2
    for y in pre[k:]: a(y)
    stamp(5); stamp(1, 1)
    if OPT["cprio"]: a("s_setprio %d" % OPT["cprio"])
    a("s_waitcnt vmcnt(0)")
    for k in range(4 if ty == 0 else 8): unpack(BF + 2*k, vB1 + k)
    a("v_mov_b32 v%d, 0x%x\nv_mov_b32 v%d, 0x%x\nv_mov_b32 v%d, 0x%x\nv_mov_b32 v%d, 0x%x" % (KC, f32(c1), KC+2, f32(c0), KC+1, f32(1.4426950408889634), KC+3, f32(1e-6)))
    a("s_waitcnt lgkmcnt(0)\nv_readfirstlane_b32 s%d, v7" % sFAST)

def gelu_block(i, t0, bt0, soff):
    align8()
    P = [(acc(i, t0 + q//2) + 2*(q % 2), CT + 4*(t0 + q//2) + 2*(q % 2), BF + 4*(bt0 + q//2) + 2*(q % 2), TMP + 2*q) for q in range(4)]
    rs = R2(RS + 2*i)
    for (h, c, b, u) in P: a("v_pk_fma_f32 %s, %s, %s, %s op_sel:[1,0,0] op_sel_hi:[1,1,1] neg_lo:[1,0,0] neg_hi:[1,0,0]" % (R2(u), rs, R2(c), R2(b)))
    for (h, c, b, u) in P: a("v_pk_fma_f32 %s, %s, %s, %s op_sel:[0,0,0] op_sel_hi:[0,1,1]" % (R2(h), rs, R2(h), R2(u)))
    for (h, c, b, u) in P: a("v_pk_mul_f32 %s, %s, %s" % (R2(u), R2(h), R2(h)))
    for (h, c, b, u) in P: a("v_pk_fma_f32 %s, %s, %s, %s op_sel:[0,0,0] op_sel_hi:[1,0,0]" % (R2(u), R2(u), R2(KC), R2(KC + 2)))
    for (h, c, b, u) in P: a("v_pk_mul_f32 %s, %s, %s" % (R2(u), R2(u), R2(h)))
    for (h, c, b, u) in P: a("v_exp_f32 v%d, v%d\nv_exp_f32 v%d, v%d" % (u, u, u+1, u+1))
    for (h, c, b, u) in P: a("v_pk_add_f32 %s, %s, 1.0 op_sel_hi:[1,0]" % (R2(u), R2(u)))
    for (h, c, b, u) in P: a("v_rcp_f32 v%d, v%d\nv_rcp_f32 v%d, v%d" % (u, u, u+1, u+1))
    for (h, c, b, u) in P: a("v_pk_mul_f32 %s, %s, %s" % (R2(u), R2(u), R2(h)))
    o = acc(i, t0)
    for q, (h, c, b, u) in enumerate(P): a("v_cvt_pk_bf16_f32 v%d, v%d, v%d" % (o + q, u, u+1))
    st_a2("buffer_store_dwordx4 %s, v1, %s, s%d offen offset:%d" % (R4(o), S(S_WS), soff, 1024*i))

def phi_pairs(P):
    for (h, u) in P: a("v_pk_mul_f32 %s, %s, %s op_sel:[1,0] op_sel_hi:[1,1]" % (R2(u), R2(KC), R2(h)))
    for (h, u) in P: a("v_exp_f32_e64 v%d, v%d clamp\nv_exp_f32_e64 v%d, v%d clamp" % (u, u, u+1, u+1))
    for (h, u) in P: a("v_max_f32 v%d, v%d, v%d\nv_max_f32 v%d, v%d, v%d" % (h, h, KC+3, h+1, h+1, KC+3))
    for (h, u) in P: a("v_pk_add_f32 %s, %s, %s" % (R2(h), R2(h), R2(u)))

def epilogue_kv():
    a("v_and_b32 v5, 8, v0\nv_cmp_eq_u32 vcc, 0, v5\nv_mov_b32 v6, 0\nv_mov_b32 v7, 0x3f803f80\nv_cndmask_b32 v5, v6, v%d, vcc\nv_mov_b32 v4, v5" % (KC + 3))
    a("s_lshl_b32 s3, s%d, 13\ns_add_u32 s3, s3, %d\nv_add_u32 v2, s3, v1" % (sWV, XK))
    prods = [(0,2),(0,3),(1,2),(1,3),(1,4),(2,2),(2,3),(2,4)]
    KD = [acc(1, t) for t in range(5)] + [216, 220, R4S]
    def kvm(ksr):
        return ["v_mfma_f32_16x16x32_bf16 %s, %s, %s, %s" % (R4(KD[k]), R4(acc(2*ksr, ti)), R4(T2P + 4*ksr) if tj == 2 else R4(acc(2*ksr, tj)), "0" if ksr == 0 else R4(KD[k])) for k, (ti, tj) in enumerate(prods)]
    for i in range(4):
        align8()
        def body():
            for t in range(5):
                for q in range(2):
                    u = TMP + 4*t + 2*q; rm = R2(R4S + 16 + 4*i + 2*q); c = R2(CT + 4*t)
                    if t < 2: a("v_pk_fma_f32 %s, %s, %s, %s op_sel:[0,0,1] op_sel_hi:[1,0,1] neg_lo:[1,0,0] neg_hi:[1,0,0]" % (R2(u), rm, c, R2(KC + 2)))
                    elif t == 2: a("v_pk_fma_f32 %s, %s, %s, v[4:5] op_sel:[0,0,0] op_sel_hi:[1,0,1] neg_lo:[1,0,0] neg_hi:[1,0,0]" % (R2(u), rm, c))
                    else: a("v_pk_mul_f32 %s, %s, %s op_sel:[0,0] op_sel_hi:[1,0] neg_lo:[1,0] neg_hi:[1,0]" % (R2(u), rm, c))
            for t in range(5):
                for q in range(2):
                    h = acc(i, t) + 2*q; u = TMP + 4*t + 2*q
                    a("v_pk_fma_f32 %s, %s, %s, %s" % (R2(h), R2(R4S + 4*i + 2*q), R2(h), R2(u)))
            a("v_cvt_pk_bf16_f32 v%d, v%d, v%d\nv_cvt_pk_bf16_f32 v%d, v%d, v%d" % (TMP+20, acc(i,2), acc(i,2)+1, TMP+21, acc(i,2)+2, acc(i,2)+3))
            phi_pairs([(acc(i, t) + 2*q, TMP + 4*t + 2*q) for t in range(3) for q in range(2)])
            e = 2 * (i >> 1); o = 2 * (i & 1)
            a("v_cndmask_b32 v%d, v%d, v7, vcc\nv_cndmask_b32 v%d, v%d, v7, vcc" % (T2P + 4*(i>>1) + o, TMP+20, T2P + 4*(i>>1) + o + 1, TMP+21))
            for t in (3, 4, 0, 1, 2):
                a("v_cvt_pk_bf16_f32 v%d, v%d, v%d\nv_cvt_pk_bf16_f32 v%d, v%d, v%d" % (acc(e,t)+o, acc(i,t), acc(i,t)+1, acc(e,t)+o+1, acc(i,t)+2, acc(i,t)+3))
        if i == 2:
            lines = capture(body); mm = kvm(0)
            for k, ln in enumerate(lines):
                a(ln)
                if k >= 28 and k % 2 == 1 and mm: a(mm.pop(0))
            assert not mm
        else: body()
    a("s_nop 1")
    for x in kvm(1): a(x)
    a("s_nop 0")
    for k in range(8): a("ds_write_b128 v2, %s offset:%d" % (R4(KD[k]), 1024 * k))
    stamp(2, 1)
    lds_addr(2, LF_XK, None)
    a("v_mov_b32 v3, 1\ns_mov_b64 exec, 1\ns_waitcnt lgkmcnt(0)\nds_add_u32 v2, v3\ns_mov_b64 exec, -1")
    stamp(7); stamp(3, 1)
    g2_setup(False)
    for i in range(4):
        gelu_block(i, 5, 0, sT2)
        if i in (0, 1): loadB(6 + i, False)
    stamp(4, 1)
    ks_flag(sT2, sM, 0, 6)

def epilogue_qh():
    PQ = 224
    def qpart(hook=None):
        for i in range(4):
            align8()
            rs = R2(RS + 2*i)
            P = [(acc(i, t) + 2*q, TMP + 4*t + 2*q, CT + 4*t + 2*q) for t in range(3) for q in range(2)]
            for (h, u, c) in P: a("v_pk_fma_f32 %s, %s, %s, %s op_sel:[1,0,1] op_sel_hi:[1,1,1] neg_lo:[1,0,0] neg_hi:[1,0,0]" % (R2(u), rs, R2(c), R2(KC + 2)))
            for (h, u, c) in P: a("v_pk_fma_f32 %s, %s, %s, %s op_sel:[0,0,0] op_sel_hi:[0,1,1]" % (R2(h), rs, R2(h), R2(u)))
            phi_pairs([(h, u) for (h, u, c) in P])
            for k, (h, u, c) in enumerate(P): a("v_cvt_pk_bf16_f32 v%d, v%d, v%d" % (PQ + 6*i + k, h, h + 1))
            if hook: hook(i)
        a("s_mul_i32 s3, s%d, 6144\ns_add_u32 s3, s3, %d\nv_add_u32 v4, s3, v1\nv_lshl_add_u32 v5, v0, 3, s3" % (sWV, PQL))
        for i in range(4): a("ds_write_b128 v4, %s offset:%d\nds_write_b64 v5, %s offset:%d" % (R4(PQ + 6*i), 1024*i, R2(PQ + 6*i + 4), 4096 + 512*i))
    g2_setup(False)
    for i in range(4): gelu_block(i, 3, 0, sT2)
    stamp(2, 1)
    for i in range(4):
        gelu_block(i, 5, 2, sT3)
        if i == 0: ks_flag(sT2, sM, 1, 4)
        if OPT["qb"] and i in (0, 1): loadB(6 + i, False)
    stamp(6); stamp(3, 1)
    def hk(i):
        if i == 0: ks_flag(sT3, sM, 0, 4)
        if not OPT["qb"] and i in (0, 1): loadB(6 + i, False)
    qpart(hk)
    a("s_waitcnt lgkmcnt(0)"); lds_signal(LF_PQ, sWV, 4)
    stamp(7); stamp(4, 1)

def readB(s): return ["ds_read_b128 %s, v244 offset:%d" % (R4(Breg(s, t, False)), 5120*s + 1024*t) for t in range(5)]

def gemm2_early():
    stamp(8); stamp(5, 1)
    if OPT["cprio"]: a("s_setprio 0")
    vm = VM()
    vG, vR, vP = 246, 248, 254
    X0 = CDB[0:5]; B2F = CDB[5:7]; XG = CA_[12:20]
    def XS(i, k): return XG[2*i + (k >> 1)] + 2*(k & 1)
    def BF2(k): return B2F[k >> 1] + 2*(k & 1)
    a("s_lshl_b32 s%d, s%d, 9\ns_add_u32 s%d, s%d, 0x%x\ns_lshl_b32 s3, s%d, 2\ns_add_u32 s%d, s%d, s3" % (sT3, sRT, sT3, sT3, FH, sK0, sT3, sT3))
    g2_flagoff(3, KS_C)
    a("s_mov_b64 exec, 0xff\nbuffer_load_dword v245, v3, %s, s%d offen%s\ns_mov_b64 exec, -1" % (S(S_WS), sT3, PLD))
    lds_wait(LF_B, sWV, 1, 246)
    a("s_mul_i32 s3, s%d, %d\nv_add_u32 v244, s3, v1" % (sWV, EBS))
    for x in readB(0) + readB(1): a(x)
    a("s_mul_i32 s3, s%d, 40\nv_add_u32 v228, s3, v0\nv_mul_u32_u24 v229, 6554, v228\nv_lshrrev_b32 v229, 16, v229\nv_mul_u32_u24 v230, 10, v229\nv_sub_u32 v228, v228, v230" % sWV)
    a("v_mul_u32_u24 v230, 1280, v229\nv_lshl_add_u32 v%d, v228, 4, v230\nv_lshlrev_b32 v%d, 4, v228" % (vG, vG + 1))
    a("v_mov_b32 v230, 0x%x\nv_cmp_gt_u32 vcc, 40, v0\ns_mul_i32 s%d, s%d, %d\ns_mul_i32 s%d, s%d, 160\nv_cndmask_b32 v%d, v230, v%d, vcc\ns_add_u32 s%d, s%d, s%d" % (OOB, sT1, sRT, 64*1280, sT2, sCT, vG, vG, sT1, sT1, sT2))
    a("v_and_b32 v229, 15, v229\nv_bfe_u32 v230, v229, 1, 2\nv_lshlrev_b32 v228, 1, v228\nv_xor_b32 v228, v228, v230\nv_mul_u32_u24 v229, 320, v229\nv_lshl_add_u32 v%d, v228, 4, v229\nv_xor_b32 v%d, 16, v%d" % (vR, vR + 1, vR))
    for k in range(1, 3): a("v_add_u32 v%d, %d, v%d\nv_add_u32 v%d, %d, v%d" % (vR + 2*k, 2*k*EBS, vR, vR + 1 + 2*k, 2*k*EBS, vR + 1))
    paddr(vP, 228, 229)
    a("s_mul_i32 s3, s%d, %d\nv_add_u32 v%d, s3, v%d" % (sWV, EBS, vP, vP))
    a("s_mov_b32 s%d, %d\ns_mov_b64 exec, 0xff" % (sSpin, SPIN))
    a.label("L_pc")
    a("s_waitcnt vmcnt(0)\nv_cmp_ne_u32 vcc, s%d, v245\ns_and_b32 s3, vcc_lo, 15\ns_cbranch_scc0 L_pcd" % sTAG)
    a("s_sleep %d\nbuffer_load_dword v245, v3, %s, s%d offen%s\ns_sub_u32 s%d, s%d, 1\ns_cbranch_scc0 L_pc" % (OPT["slp"], S(S_WS), sT3, PLD, sSpin, sSpin))
    a.label("L_pcd")
    a("s_mov_b64 exec, -1\ns_mov_b32 s%d, vcc_lo" % sK1)
    stamp(9); stamp(6, 1); stamp(1, 2)
    if OPT["qk"]:
        if OPT["qk"] == 1: a("s_cmp_lg_u32 s%d, 0\ns_cbranch_scc1 L_nqk" % sTY)
        lds_wait(LF_Q, None, 4, 230)
        a.label("L_nqk")
    for s in range(4): loadA(s, False); vm.add("A%d" % s, 4)
    P2 = OPT["qq"] if OPT["qq"] < 4 else 3
    if OPT["yld"]: lds_addr(255, LF_PQ, sWV)
    def yield_check():
        l = a.newlabel("Ly")
        a("s_waitcnt lgkmcnt(0)\nv_cmp_eq_u32 vcc, 2, v2\ns_cbranch_vccnz %s" % l)
        a.label(l + "_b")
        OUTLINE.extend([l + ":", "  s_mov_b32 s%d, %d" % (sSpin, SPIN), l + "_l:", "  s_sleep 1", "  ds_read_b32 v2, v255", "  s_waitcnt lgkmcnt(0)", "  v_cmp_eq_u32 vcc, 2, v2",
                        "  s_cbranch_vccz %s_b" % l, "  s_sub_u32 s%d, s%d, 1" % (sSpin, sSpin), "  s_cbranch_scc0 %s_l" % l, "  s_branch %s_b" % l])
    carry = []
    def defer(fn, lab, n):
        if OPT["il"]: carry.append((capture(fn), lab, n))
        else: fn(); vm.add(lab, n)
    for s in range(6):
        vm.wait("A%d" % s)
        a("s_waitcnt lgkmcnt(%d)" % (5 if s < 5 else 0))
        mm = capture(lambda: g2_step(s, False))
        fill = []
        for (lines, lab, n) in carry:
            cur = []
            for ln in lines:
                cur.append(ln)
                if ln.startswith("buffer_"): fill.append("\n".join(cur)); cur = []
            vm.add(lab, n)
        carry = []
        gap = max(1, 19 // max(1, len(fill)))
        k = 0
        for x in mm:
            a(x)
            if x.startswith("v_mfma"):
                k += 1
                if fill and k % gap == 0: a(fill.pop(0))
                if OPT["yld"] and k == 13: a("ds_read_b32 v2, v255")
        for x in fill: a(x)
        if OPT["yld"]: yield_check()
        if s + 2 < 6:
            for x in readB(s + 2): a(x)
        if s == P2:
            if OPT["qq"]: lds_wait(LF_Q, None, 4, 230)
            a("s_cmp_eq_u32 s%d, 0\ns_cbranch_scc1 L_nop2" % sK1)
            poll(3, sT3, 8, 245, "he2")
            a.label("L_nop2")
            for q in range(4, min(8, 6 + s)):
                if q == s + 1: loadA(q, False); vm.add("A%d" % q, 4)
                else: defer(lambda: loadA(q, False), "A%d" % q, 4)
        elif s > P2 and 5 + s < 8:
            defer(lambda: loadA(5 + s, False), "A%d" % (5 + s), 4)
        if s == 4:
            def xl():
                for i in range(4): a("s_add_u32 s3, s%d, %d\nbuffer_load_dwordx4 %s, v%d, %s, s3 offen" % (sT1, 16*1280*i, R4(X0[i]), vG, S(S_X)))
                a("buffer_load_dwordx4 %s, v%d, %s, s%d offen" % (R4(X0[4]), vG + 1, S(S_B2), sT2))
            defer(xl, "X", 5)
    assert not carry
    lds_signal(LF_B, sWV, 244)
    vm.wait("A7", "B7")
    if OPT["wb"] == 2:
        l = a.newlabel("Lwb")
        a("s_lshr_b32 s3, s2, 3\ns_and_b32 s3, s3, %d\ns_add_u32 s3, s3, s%d\ns_cmp_lg_u32 s3, 0\ns_cbranch_scc1 %s\nbuffer_wbl2 sc1" % (OPT["wbw"], sWV, l))
        a.label(l)
    stamp(8, 2)
    pend = []
    for i in range(4):
        k = 0
        for s in (6, 7):
            for t in range(5):
                g2_mfma(Dreg(i, t, False), Breg(s, t, False), Areg(s, i, False), False)
                k += 1
                if pend and k >= 4: a(pend.pop(0))
                if OPT["yld"] and i == 1 and k == 3: a("ds_read_b32 v2, v255")
        if OPT["yld"] and i == 1: yield_check()
        pend = ["ds_write_b128 v%d, %s offset:%d" % (vP, R4(Dreg(i, t, False)), 5120*i + 64*t) for t in range(5)]
    stamp(10); stamp(7, 1); stamp(9, 2)
    vm.wait("X")
    for k in range(2): unpack(BF2(k), X0[4] + k)
    for x in pend: a(x)
    for k in range(2, 4): unpack(BF2(k), X0[4] + k)
    lds_addr(244, LF_PRE, None)
    a("v_mov_b32 v245, 1")
    for i in range(4):
        for k in range(4): unpack(XS(i, k), X0[i] + k)
        if i == 0: a("s_mov_b64 exec, 1\ns_waitcnt lgkmcnt(0)\nds_add_u32 v244, v245\ns_mov_b64 exec, -1")
        for k in range(4): padd(XS(i, k), XS(i, k), BF2(k), OPT["scp"])
    lds_wait_ge(LF_PRE, 4, 244)
    stamp(8, 1)
    RD = 4
    def loc(i, p):
        if p < 4: return p >> 1, (p & 1) * EBS + 5120*i
        p -= 4
        if i < 2: return p >> 1, (p & 1) * EBS + 20480 + 5120*i
        if i == 2: return 2, p * 5120
        return p >> 1, (p & 1) * EBS
    def rdsum(i, ps):
        for j, p in enumerate(ps):
            b, off = loc(i, p)
            a("ds_read_b128 %s, v%d offset:%d\nds_read_b128 %s, v%d offset:%d" % (R4(RD + 32*(i & 1) + 8*j), vR + 2*b, off, R4(RD + 32*(i & 1) + 8*j + 4), vR + 1 + 2*b, off))
    def addsum(i, base, last=False):
        for j in range(4):
            a("s_waitcnt lgkmcnt(%d)" % (base + 6 - 2*j))
            for k in range(4): padd(XS(i, k), XS(i, k), RD + 32*(i & 1) + 8*j + 2*k, OPT["scp"] and not last)
    a("s_mov_b32 exec_hi, 0xff")
    rdsum(0, range(4))
    for i in range(4):
        if i < 3: rdsum(i + 1, range(4))
        addsum(i, 8 if i < 3 else 0)
    stamp(11); stamp(9, 1); stamp(10, 2)
    if OPT["wb"] == 1:
        l = a.newlabel("Lwb")
        a("s_lshr_b32 s3, s2, 3\ns_and_b32 s3, s3, %d\ns_add_u32 s3, s3, s%d\ns_cmp_lg_u32 s3, 0\ns_cbranch_scc1 %s\nbuffer_wbl2 sc1" % (OPT["wbw"], sWV, l))
        a.label(l)
    a("v_mov_b32 v245, 1\ns_mov_b64 exec, 1\nds_add_u32 v244, v245\ns_mov_b32 exec_lo, -1\ns_mov_b32 exec_hi, 0xff\ns_setprio 1")
    for i in range(4):
        lds_wait(LF_T + 4*i, None, 4, 244, 1 if i < 3 else 0)
        rdsum(i, range(4, 8))
        a("s_add_u32 s3, s%d, %d" % (sT1, 16*1280*i))
        addsum(i, 0, i == 3)
        for k in range(4): a("v_cvt_pk_bf16_f32 v%d, v%d, v%d" % (XG[2*i] + k, XS(i, k), XS(i, k) + 1))
        a("buffer_store_dwordx4 %s, v%d, %s, s3 offen%s" % (R4(XG[2*i]), vG, S(S_OUT), LDF[OPT["ost"]]))
    a("s_mov_b64 exec, -1")
    stamp(12)

hdr = open("cdna_kernels/%s.s.ref" % BASE).read().split("; Override")[0]
a.raw(hdr.rstrip())
a.raw("; @launch grid=(256,1,1) block=(512,1,1) lds=163840")
a.raw('.amdgcn_target "amdgcn-amd-amdhsa--gfx950"\n.text')
kernel_header(a, KNAME)
a("s_cmp_ge_u32 s2, 256\ns_cbranch_scc1 L_end")
a("s_load_dwordx16 s[36:51], s[0:1], 0\ns_load_dwordx4 s[52:55], s[0:1], 64\ns_load_dwordx2 s[56:57], s[0:1], 80")
a("v_lshrrev_b32 v1, 6, v0\nv_and_b32 v0, 63, v0\nv_readfirstlane_b32 s%d, v1" % sWV)
if OPT["cpf"]:
    a("s_getpc_b64 s[%d:%d]\nL_pc0:\ns_and_b32 s3, s2, 0xf8\ns_add_u32 s3, s3, s%d\ns_lshl_b32 s3, s3, 7\ns_min_u32 s3, s3, L_table-L_pc0-64" % (sEX, sEX+1, sWV))
    a("s_load_dword s%d, s[%d:%d], s3" % (sSpin, sEX, sEX+1))
    if OPT["cpf"] > 1: a("s_add_u32 s3, s3, 64\ns_load_dword s%d, s[%d:%d], s3" % (sSpin, sEX, sEX+1))
stamp_init(); stamp(0)
a("s_bfe_u32 s%d, s2, 0x10006" % sTY)
if OPT["xmap"]:
    a("s_and_b32 s3, s2, 7\ns_lshl_b32 s3, s3, 1\ns_bfe_u32 s%d, s2, 0x10003\ns_add_u32 s%d, s%d, s3" % (sRB, sRB, sRB))
    a("s_bfe_u32 s3, s2, 0x20004\ns_lshr_b32 s%d, s2, 7\ns_lshl_b32 s%d, s%d, 2\ns_add_u32 s%d, s%d, s3" % (sJJ, sJJ, sJJ, sJJ, sJJ))
else:
    a("s_and_b32 s3, s2, 1\ns_lshl_b32 s3, s3, 3\ns_bfe_u32 s%d, s2, 0x30003\ns_add_u32 s%d, s%d, s3" % (sRB, sRB, sRB))
    a("s_and_b32 s3, s2, 6\ns_lshr_b32 s%d, s2, 7\ns_add_u32 s%d, s%d, s3" % (sJJ, sJJ, sJJ))
a("s_and_b32 s3, s2, 7\ns_lshl_b32 s3, s3, 2\ns_bfe_u32 s%d, s2, 0x20003\ns_add_u32 s%d, s%d, s3\ns_lshr_b32 s%d, s2, 5" % (sRT, sRT, sRT, sCT))
a("s_cmp_lt_u32 s%d, 4\ns_cbranch_scc1 L_compute" % sWV)
_m = len(a.lines)
loader()
if OPT["sco"]:
    import re
    new = []
    for ln in a.lines[_m:]:
        m = re.match(r"\s*v_pk_add_f32 v\[(\d+):\d+\], v\[(\d+):\d+\], v\[(\d+):\d+\]$", ln)
        m2 = re.match(r"\s*v_mov_b64 v\[(\d+):\d+\], v\[(\d+):\d+\]$", ln)
        m3 = re.match(r"\s*v_mov_b64 v\[(\d+):\d+\], 0$", ln)
        if m: d, x, y = map(int, m.groups()); new += ["  v_add_f32 v%d, v%d, v%d" % (d, x, y), "  v_add_f32 v%d, v%d, v%d" % (d+1, x+1, y+1)]
        elif m2: d, x = map(int, m2.groups()); new += ["  v_mov_b32 v%d, v%d" % (d, x), "  v_mov_b32 v%d, v%d" % (d+1, x+1)]
        elif m3: d = int(m3.group(1)); new += ["  v_mov_b32 v%d, 0" % d, "  v_mov_b32 v%d, 0" % (d+1)]
        else: new.append(ln)
    a.lines[_m:] = new
a.label("L_compute")
compute_prologue()
a("s_cmp_lg_u32 s%d, 0\ns_cbranch_scc1 L_cqh" % sTY)
main_loop(0); epilogue_kv(); a("s_branch L_g2early")
a.label("L_cqh")
main_loop(1); epilogue_qh()
a.label("L_g2early")
gemm2_early()
a.label("L_alldone")
stamp_store()
a("s_cmp_lg_u32 s2, 0\ns_cbranch_scc1 L_end\ns_cmp_lg_u32 s%d, 4\ns_cbranch_scc1 L_end" % sWV)
a("s_mov_b32 s3, 0x%x\nv_mov_b32 v2, s%d\nv_mov_b32 v3, 0\ns_mov_b64 exec, 1\nbuffer_store_dword v2, v3, %s, s3 offen sc1" % (EPOCH, sTAG, S(S_WS)))
a.label("L_end")
a("s_endpgm")
a.lines.extend(OUTLINE)
a.raw(".p2align 7\n.type L_table,@object\nL_table:")
T = make_table()
for i in range(0, len(T), 8): a.raw("  .long " + ", ".join(str(x) for x in T[i:i+8]))
a.raw(".size L_table, %d" % (4 * len(T)))
a.raw('.section .rodata,"a"')
kernel_desc(a, KNAME, 256, 102)
sys.stdout.write(a.text())
```

```python
import sys, struct, re
from asmlib import *
BASE = "parallel_sum__linear_attn_block__dense_activation_gelu__prompt"
KNAME = BASE + "_kernel"
OPT = dict(stamps=0, sm=0, probe=-1, pcls=0, pty=-1, slp=2, cpf=2, fast=1, kvu=0, shift=2, nojob=0, ald=0, bld=0, pld=0, ost=1,
           go=2, p2p=1, lp=3, nbe=4, lbp=1, sc2=3, jty=1, hz=0, yld=0, gk=6)
for arg in sys.argv[1:]:
    k, v = arg.split("="); assert k in OPT, k; OPT[k] = int(v)
STAMPS = OPT["stamps"]
f32 = lambda x: struct.unpack("<I", struct.pack("<f", x))[0]

B2_OFF = 0x900000
KVP_OFF = 0xC00000; KVP_STRIDE = 6912
STAT_OFF = 0xD00000
FLAG_OFF = 0xD10000
EPOCH = FLAG_OFF; FWG = FLAG_OFF + 0x1000; FH = FLAG_OFF + 0x4000
CSP_OFF = 0xD20000
RED_OFF = 0xD50000
STAMP_OFF = 0xE00000
WS_SIZE = 0x1000000
OOB = 0x7f000000
SLOT = 36992
K_OFF = 16384; V_OFF = 26640; H_OFF = 16384
P2A = 3 * SLOT
def p2loc(j): return P2A + 10240*j if j < 4 else (SLOT + 10240*(j - 4) if j < 7 else 2*SLOT + 10240*(j - 7))
JOBL = P2A + 20480
XK = 0; IMG = 0; IMG23 = 6144; IMG4 = 12288
LFLAG = 160256; TAGL = LFLAG + 128; FASTL = LFLAG + 256
LF_IMG, LF_XK, LF_PRE, LF_Q, LF_GO, LF_Z, LF_ST, LF_RING, LF_T, LF_P2, LF_Y = 0, 4, 8, 12, 16, 20, 24, 28, 32, 48, 80
STATL = 160768; CSL = 161792
PREG = 20480; LPART = 81920
SPIN = 100000
S_X, S_J, S_P2, S_WS, S_P, S_OUT, S_B1, S_B2 = 4, 8, 12, 16, 20, 24, 28, 32
sRB, sJJ, sTY, sWV, sTAG, sM, sN = 58, 59, 60, 61, 62, 63, 64
sT1, sT2, sT3 = 65, 66, 67
sLA, sLP, sLP4, sLH, sIncP, sA, sP, sH, sSlot, sCnt = 68, 69, 70, 71, 72, 73, 74, 75, 76, 77
sORD = 76; sOR2 = 8
sInc2, sL2 = 10, 11
sEX = 78; sSpin = 80; sRT, sCT = 81, 82
sK0, sK1, sK2 = 83, 84, 85
sST = 86
sAo0, sAo1, sAo2, sBo0, sBo1, sBo2 = 36, 37, 38, 39, 42, 43
TB = [40, 41, 48, 49]
sFAST = 54; sPC = 44; sCD = 55

a = Asm()
LDF = {0: ' sc1', 1: '', 2: ' nt'}
ALD = LDF[OPT['ald']]; BLD = LDF[OPT['bld']]; PLD = LDF[OPT['pld']]
OUTLINE = []
def srd(d, p, n): a("s_mov_b32 s%d, s%d\ns_mov_b32 s%d, s%d\ns_mov_b32 s%d, 0x%x\ns_mov_b32 s%d, 0x20000" % (d, p, d+1, p+1, d+2, n, d+3))
def S(d): return "s[%d:%d]" % (d, d+3)
def R4(b): return "v[%d:%d]" % (b, b + 3)
def R2(b): return "v[%d:%d]" % (b, b + 1)
def align8(): a.raw(".p2align 3")

def stamp(idx, mode=0):
    if mode == 0 and OPT["probe"] == idx:
        a("s_memrealtime s[%d:%d]\ns_waitcnt lgkmcnt(0)\ns_mov_b32 s%d, s%d" % (sST, sST+1, sST + 2, sST))
    if not STAMPS or (mode != OPT["sm"] and idx not in (0, 13)): return
    a("s_memrealtime s[%d:%d]\ns_waitcnt lgkmcnt(0)\ns_mov_b32 s%d, s%d" % (sST, sST+1, sST + 2 + idx, sST))
def stamp_init():
    if STAMPS:
        for i in range(14): a("s_mov_b32 s%d, 0" % (sST + 2 + i))
def stamp_store():
    if OPT["probe"] >= 0:
        a("s_waitcnt vmcnt(0)")
        stamp(13)
        a("s_lshr_b32 s3, s%d, 2\ns_cmp_lg_u32 s3, %d\ns_cbranch_scc1 L_pspd" % (sWV, OPT["pcls"]))
        if OPT["pty"] >= 0: a("s_cmp_lg_u32 s%d, %d\ns_cbranch_scc1 L_pspd" % (sTY, OPT["pty"]))
        a.label("L_psp")
        a("s_memrealtime s[%d:%d]\ns_waitcnt lgkmcnt(0)\ns_sub_u32 s3, s%d, s%d\ns_cmp_lt_u32 s3, 10000\ns_cbranch_scc1 L_psp" % (sST, sST+1, sST, sST + 2))
        a.label("L_pspd")
    if not STAMPS: return
    a("s_waitcnt vmcnt(0)")
    stamp(13)
    for i in range(14): a("v_mov_b32 v%d, s%d" % (4 + i, sST + 2 + i))
    a("v_mov_b32 v18, 0\nv_mov_b32 v19, 0\nv_mov_b32 v2, 0\ns_lshl_b32 s3, s2, 3\ns_add_u32 s3, s3, s%d\ns_lshl_b32 s3, s3, 6\ns_add_u32 s3, s3, 0x%x\ns_mov_b64 exec, 1" % (sWV, STAMP_OFF))
    for i in range(4): a("buffer_store_dwordx4 v[%d:%d], v2, %s, s3 offen offset:%d" % (4 + 4*i, 7 + 4*i, S(S_WS), 16*i))
    a("s_mov_b64 exec, -1")

class VM:
    def __init__(self): self.q = []
    def add(self, lab, n=1): self.q += [(lab, 1)] * n
    def add_opt(self, lab, n=1): self.q += [(lab, 0)] * n
    def wait(self, *labs):
        idx = [i for i, x in enumerate(self.q) if x[0] in labs]
        if not idx: return
        n = sum(x[1] for x in self.q[max(idx) + 1:])
        assert n <= 63
        a("s_waitcnt vmcnt(%d)" % n); self.q = self.q[max(idx) + 1:]
def capture(fn):
    n = len(a.lines); fn(); out = a.lines[n:]; del a.lines[n:]; return [x.strip() for x in out]

def st_a2(ops):
    if isinstance(ops, str): ops = [ops]
    if not OPT["fast"]:
        for o in ops: a(o + " sc1")
        return
    l = a.newlabel("Lsl")
    a("s_cmp_lg_u32 s%d, 0\ns_cbranch_scc0 %s" % (sFAST, l))
    for o in ops: a(o)
    a.label(l + "_b")
    OUTLINE.append(l + ":")
    for o in ops: OUTLINE.append("  " + o + " sc1")
    OUTLINE.append("  s_branch %s_b" % l)

def poll(voff, soff, nlanes, vt, name):
    lp = a.newlabel("Lpoll_" + name)
    a("s_mov_b32 s%d, %d\ns_mov_b64 exec, 0x%x" % (sSpin, SPIN, (1 << nlanes) - 1))
    a.label(lp)
    a("buffer_load_dword v%d, v%d, %s, s%d offen%s\ns_waitcnt vmcnt(0)" % (vt, voff, S(S_WS), soff, PLD))
    a("v_cmp_ne_u32 vcc, s%d, v%d\ns_cbranch_vccz %s_d" % (sTAG, vt, lp))
    a("s_sleep %d\ns_sub_u32 s%d, s%d, 1\ns_cbranch_scc0 %s" % (OPT["slp"], sSpin, sSpin, lp))
    a.label(lp + "_d")
    a("s_mov_b64 exec, -1")
def lds_addr(v, off, sw):
    if sw is None: a("v_mov_b32 v%d, %d" % (v, LFLAG + off))
    else: a("s_lshl_b32 s3, s%d, 2\ns_add_u32 s3, s3, %d\nv_mov_b32 v%d, s3" % (sw, LFLAG + off, v))
def lds_signal(off, sw, v):
    lds_addr(v, off, sw)
    a("v_mov_b32 v%d, 1\ns_mov_b64 exec, 1\nds_add_u32 v%d, v%d\ns_mov_b64 exec, -1" % (v + 1, v, v + 1))
def lds_wait(off, sw, cnt, v, slp=1):
    lp = a.newlabel("Llw"); lds_addr(v, off, sw)
    a("s_mov_b32 s%d, %d" % (sSpin, 20 * SPIN))
    a.label(lp)
    a("ds_read_b32 v%d, v%d\ns_waitcnt lgkmcnt(0)\nv_cmp_ne_u32 vcc, %d, v%d\ns_cbranch_vccz %s_d" % (v + 1, v, cnt, v + 1, lp))
    if slp: a("s_sleep %d" % slp)
    a("s_sub_u32 s%d, s%d, 1\ns_cbranch_scc0 %s" % (sSpin, sSpin, lp))
    a.label(lp + "_d")
def lds_wait_ge(off, cnt, v, slp=1):
    lp = a.newlabel("Llg"); lds_addr(v, off, None)
    a("s_mov_b32 s%d, %d" % (sSpin, 20 * SPIN))
    a.label(lp)
    a("ds_read_b32 v%d, v%d\ns_waitcnt lgkmcnt(0)\nv_cmp_gt_u32 vcc, %d, v%d\ns_cbranch_vccz %s_d" % (v + 1, v, cnt, v + 1, lp))
    if slp: a("s_sleep %d" % slp)
    a("s_sub_u32 s%d, s%d, 1\ns_cbranch_scc0 %s" % (sSpin, sSpin, lp))
    a.label(lp + "_d")
def bf16_round(v): a("v_cvt_pk_bf16_f32 v%d, v%d, v%d\nv_lshlrev_b32 v%d, 16, v%d" % (v, v, v, v, v))
def unpack(dst, src): a("v_lshlrev_b32 v%d, 16, v%d\nv_and_b32 v%d, 0xffff0000, v%d" % (dst, src, dst + 1, src))
def padd(d, x, y, scalar):
    if scalar: a("v_add_f32 v%d, v%d, v%d\nv_add_f32 v%d, v%d, v%d" % (d, x, y, d + 1, x + 1, y + 1))
    else: a("v_pk_add_f32 %s, %s, %s" % (R2(d), R2(x), R2(y)))
def tagchk(acc_, regs):
    a("v_xor_b32 v%d, s%d, v%d" % (acc_, TB[0], regs[0]))
    for k, r in enumerate(regs):
        if k: a("v_bitop3_b32 v%d, v%d, v%d, s%d bitop3:0xf6" % (acc_, acc_, r, TB[k % 4]))
    a("v_and_b32 v%d, 0xff, v%d\nv_cmp_ne_u32 vcc, 0, v%d" % (acc_, acc_, acc_))

KS_C = [2, 4, 8, 10, 3, 5, 9, 11, 0, 1]; KS_L = [6, 7]
def g2_setup(late):
    w = sM if late else sWV
    a("s_mul_i32 s%d, s%d, 12" % (sK0, w))
    if late: a("s_lshl_b32 s%d, s%d, 2\ns_add_u32 s%d, s%d, 48\ns_add_u32 s%d, s%d, 64" % (sK1, w, sK1, sK1, sK2, w))
    a("s_mul_i32 s3, s%d, 68" % sRT)
    for (d, k) in ((sAo0, sK0),) + (((sAo1, sK1), (sAo2, sK2)) if late else ()):
        a("s_add_u32 s%d, s3, s%d\ns_lshl_b32 s%d, s%d, 12" % (d, k, d, d))
    a("s_mul_i32 s3, s%d, 5120\ns_add_u32 s3, s3, 0x%x" % (sCT, B2_OFF))
    for (d, k) in ((sBo0, sK0),) + (((sBo1, sK1), (sBo2, sK2)) if late else ()):
        a("s_mul_i32 s%d, s%d, 40960\ns_add_u32 s%d, s%d, s3" % (d, k, d, d))
def step_off(s, late, bases, stride, dst=3):
    if not late: b, k = bases[0], KS_C[s]
    elif s < 2: b, k = bases[0], KS_L[s]
    elif s < 6: b, k = bases[1], s - 2
    else: b, k = bases[2], 0
    a("s_add_u32 s%d, s%d, %d" % (dst, b, stride * k))
def Dreg(i, t): return 4 + (i*5 + t) * 4
def Breg(s, t, late): return (84 + 20*s if late else 176 + 20*(s % 4)) + 4*t
def Areg(s, i, late): return (224 + 16*s if late else 84 + 16*(s % 4)) + 4*i
def loadB(s, late):
    step_off(s, late, (sBo0, sBo1, sBo2), 40960)
    for t in range(4): a("buffer_load_dwordx4 %s, v1, %s, s3 offen offset:%d%s" % (R4(Breg(s, t, late)), S(S_WS), 1024*t, BLD))
    a("buffer_load_dwordx4 %s, v2, %s, s3 offen%s" % (R4(Breg(s, 4, late)), S(S_WS), BLD))
def loadA(s, late):
    step_off(s, late, (sAo0, sAo1, sAo2), 4096)
    for i in range(4): a("buffer_load_dwordx4 %s, v1, %s, s3 offen offset:%d%s" % (R4(Areg(s, i, late)), S(S_WS), 1024*i, ALD))
def a2_soff(dst, m, ks_emit):
    ks_emit()
    a("s_lshl_b32 s%d, s%d, 1\ns_add_u32 s%d, s%d, s%d\ns_mul_i32 s%d, s%d, 68\ns_add_u32 s%d, s%d, s3\ns_lshl_b32 s%d, s%d, 12" % (dst, sRB, dst, dst, m, dst, dst, dst, dst, dst, dst))
def flag_off(dst, sOff, m):
    a("s_lshl_b32 s3, s%d, 1\ns_add_u32 s3, s3, s%d\ns_mul_i32 s3, s3, %d\ns_lshr_b32 s%d, s%d, 10\ns_add_u32 s%d, s%d, s3\ns_add_u32 s%d, s%d, 0x%x" % (sRB, m, 512 - 272, dst, sOff, dst, dst, dst, dst, FH))
def put_flag(sF, waitn, vt):
    a("v_mov_b32 v%d, s%d\nv_mov_b32 v%d, 0\ns_mov_b64 exec, 1\ns_waitcnt vmcnt(%d)" % (vt, sTAG, vt + 1, waitn))
    st_a2("buffer_store_dword v%d, v%d, %s, s%d offen" % (vt, vt + 1, S(S_WS), sF))
    a("s_mov_b64 exec, -1\ns_nop 0")
def mf(D, A, B, first=False): a("v_mfma_f32_16x16x32_bf16 %s, %s, %s, %s" % (R4(D), R4(A), R4(B), "0" if first else R4(D)))
def g2_step(s, late):
    for t in range(5):
        for i in range(4): mf(Dreg(i, t), Breg(s, t, late), Areg(s, i, late), s == 0)
def paddr(v, t1, t2):
    a("v_and_b32 v%d, 15, v0\nv_lshrrev_b32 v%d, 4, v0\nv_bfe_u32 v%d, v0, 1, 2\nv_xor_b32 v%d, v%d, v%d\nv_mul_u32_u24 v%d, 320, v%d\nv_lshl_add_u32 v%d, v%d, 4, v%d" % (v, t1, t2, t1, t1, t2, v, v, v, t1, v))
def memchunks(lines):
    out = []; cur = []
    for ln in lines:
        cur.append(ln)
        if ln.startswith("buffer_"): out.append("\n".join(cur)); cur = []
    assert not cur
    return out
GC0 = -2.0 * 0.7978845608028654 * 1.4426950408889634; GC1 = GC0 * 0.044715
def consts(KC): a("v_mov_b32 v%d, 0x%x\nv_mov_b32 v%d, 0x%x\nv_mov_b32 v%d, 0x%x\nv_mov_b32 v%d, 0x%x" % (KC, f32(GC1), KC+2, f32(GC0), KC+1, f32(1.4426950408889634), KC+3, f32(1e-6)))

def gelu(P, rs, KC, out, scalar):
    align8()
    if not scalar:
        r_ = R2(rs)
        for (h, c, b, u) in P: a("v_pk_fma_f32 %s, %s, %s, %s op_sel:[1,0,0] op_sel_hi:[1,1,1] neg_lo:[1,0,0] neg_hi:[1,0,0]" % (R2(u), r_, R2(c), R2(b)))
        def gap():
            if OPT["hz"] & 256: a("s_nop 7\ns_nop 7")
        gap()
        for (h, c, b, u) in P: a("v_pk_fma_f32 %s, %s, %s, %s op_sel:[0,0,0] op_sel_hi:[0,1,1]" % (R2(h), r_, R2(h), R2(u)))
        gap()
        for (h, c, b, u) in P:
            if OPT["hz"] & 128: a("v_mul_f32 v%d, v%d, v%d\nv_mul_f32 v%d, v%d, v%d" % (u, h, h, u+1, h+1, h+1))
            else: a("v_pk_mul_f32 %s, %s, %s" % (R2(u), R2(h), R2(h)))
        gap()
        for (h, c, b, u) in P:
            if OPT["hz"] & 64: a("v_fma_f32 v%d, v%d, v%d, v%d\nv_fma_f32 v%d, v%d, v%d, v%d" % (u, u, KC, KC+2, u+1, u+1, KC, KC+2))
            elif OPT["hz"] & 512: a("v_pk_fma_f32 %s, %s, %s, v[254:255] op_sel:[0,0,1] op_sel_hi:[1,0,1]" % (R2(u), R2(u), R2(KC)))
            else: a("v_pk_fma_f32 %s, %s, %s, %s op_sel:[0,0,0] op_sel_hi:[1,0,0]" % (R2(u), R2(u), R2(KC), R2(KC + 2)))
        gap()
        for (h, c, b, u) in P: a("v_pk_mul_f32 %s, %s, %s" % (R2(u), R2(u), R2(h)))
        hz = OPT["hz"]
        if hz & 1: a("s_nop 7\ns_nop 7")
        for (h, c, b, u) in P: a("v_exp_f32 v%d, v%d\nv_exp_f32 v%d, v%d" % (u, u, u+1, u+1))
        if hz & 2: a("s_nop 7\ns_nop 7")
        for (h, c, b, u) in P:
            if hz & 8: a("v_add_f32 v%d, 1.0, v%d\nv_add_f32 v%d, 1.0, v%d" % (u, u, u+1, u+1))
            else: a("v_pk_add_f32 %s, %s, 1.0 op_sel_hi:[1,0]" % (R2(u), R2(u)))
        if hz & 1: a("s_nop 7\ns_nop 7")
        for (h, c, b, u) in P: a("v_rcp_f32 v%d, v%d\nv_rcp_f32 v%d, v%d" % (u, u, u+1, u+1))
        if hz & 2: a("s_nop 7\ns_nop 7")
        for (h, c, b, u) in P:
            if hz & 16: a("v_mul_f32 v%d, v%d, v%d\nv_mul_f32 v%d, v%d, v%d" % (u, u, h, u+1, u+1, h+1))
            else: a("v_pk_mul_f32 %s, %s, %s" % (R2(u), R2(u), R2(h)))
        if hz & 4: a("s_nop 7\ns_nop 7")
    else:
        E = [(h + k, c + k, b + k, u + k) for (h, c, b, u) in P for k in range(2)]
        for (h, c, b, u) in E: a("v_fma_f32 v%d, -v%d, v%d, v%d" % (u, rs + 1, c, b))
        for (h, c, b, u) in E: a("v_fma_f32 v%d, v%d, v%d, v%d" % (h, rs, h, u))
        for (h, c, b, u) in E: a("v_mul_f32 v%d, v%d, v%d" % (u, h, h))
        for (h, c, b, u) in E: a("v_fma_f32 v%d, v%d, v%d, v%d" % (u, u, KC, KC + 2))
        for (h, c, b, u) in E: a("v_mul_f32 v%d, v%d, v%d" % (u, u, h))
        for (h, c, b, u) in E: a("v_exp_f32 v%d, v%d" % (u, u))
        for (h, c, b, u) in E: a("v_add_f32 v%d, 1.0, v%d" % (u, u))
        for (h, c, b, u) in E: a("v_rcp_f32 v%d, v%d" % (u, u))
        for (h, c, b, u) in E: a("v_mul_f32 v%d, v%d, v%d" % (u, u, h))
    for q, (h, c, b, u) in enumerate(P): a("v_cvt_pk_bf16_f32 v%d, v%d, v%d" % (out + q, u, u+1))
    if OPT["hz"] & 32: a("s_nop 7\ns_nop 7")
def phi_pairs(P, KC, scalar=False):
    if scalar:
        for (h, u) in P: a("v_mul_f32 v%d, v%d, v%d\nv_mul_f32 v%d, v%d, v%d" % (u, h, KC + 1, u + 1, h + 1, KC + 1))
    else:
        for (h, u) in P: a("v_pk_mul_f32 %s, %s, %s op_sel:[1,0] op_sel_hi:[1,1]" % (R2(u), R2(KC), R2(h)))
    for (h, u) in P: a("v_exp_f32_e64 v%d, v%d clamp\nv_exp_f32_e64 v%d, v%d clamp" % (u, u, u+1, u+1))
    for (h, u) in P: a("v_max_f32 v%d, v%d, v%d\nv_max_f32 v%d, v%d, v%d" % (h, h, KC+3, h+1, h+1, KC+3))
    for (h, u) in P: padd(h, h, u, scalar)

def make_table():
    T = []
    for ty in range(2):
        for t in range(256):
            ga = []
            for rnd in range(2):
                gi = t + 256 * rnd
                if gi >= 420: ga.append(ga[0]); continue
                n, gi = divmod(gi, 210); hh, gi = divmod(gi, 105); e, dg = divmod(gi, 5)
                if ty == 0:
                    DG = 5 * hh + dg; ti, g = DG >> 2, DG & 3
                    col = 0 if e == 20 else 20 * hh + e + 8
                    idx = 3 * ti + (col >> 4) - (1 if ti > 0 else 0)
                    ga.append(XK + n * 8192 + idx * 1024 + (g * 16 + (col & 15)) * 16)
                else:
                    hd = 2 * n + hh; DG = 5 * hd + dg; ti, g = DG >> 2, DG & 3
                    c = 80 + hd if e == 20 else 20 * hd + e
                    ga.append(IMG4 + (c * 4 + g) * 8 if ti == 4 else (IMG, IMG23)[ti >> 1] + (c * 4 + g) * 16 + (ti & 1) * 8)
            T += ga
    return T
def table_load(dst, vt, w):
    l = a.newlabel("Lpc")
    a("s_getpc_b64 s[%d:%d]\n%s:\ns_add_u32 s%d, s%d, L_table-%s\ns_addc_u32 s%d, s%d, 0" % (sPC, sPC+1, l, sPC, sPC, l, sPC+1, sPC+1))
    a("s_lshl_b32 s3, s%d, 2\ns_add_u32 s3, s3, s%d\ns_lshl_b32 s3, s3, 9\nv_lshl_add_u32 v%d, v0, 3, s3\nglobal_load_dwordx2 %s, v%d, s[%d:%d]" % (sTY, w, vt, R2(dst), vt, sPC, sPC+1))

XR = 84
def xreg(k, i): return XR + 8*k + 4*i
NT2 = (4, 5)
def loader():
    lw = sM
    vm = VM()
    def issue(c, part=(0, 9)):
        base = (c % 3) * SLOT
        L = [("s_add_u32 m0, s%d, %d" % (sLA, base + 1024*i), "buffer_load_dwordx4 v%d, %s, s%d offen lds" % (10+i, S(S_X), sA)) for i in range(4)]
        L += [("s_add_u32 m0, s%d, %d" % (sLP, base + 1024*i), "buffer_load_dwordx4 v%d, %s, s%d offen lds" % (14+i, S(S_P), sP)) for i in range(5)]
        for k in range(*part):
            m, d = L[k]
            if k == 8:
                l = a.newlabel("Lnop")
                a("s_cmp_lg_u32 s%d, 0\ns_cbranch_scc1 %s" % (sTY, l)); a(m); a("s_nop 0"); a(d); a.label(l); vm.add_opt("S%d" % c)
            else: a(m); a("s_nop 0"); a(d); vm.add("S%d" % c)
    def stage_id(reg, dst): a("s_and_b32 s%d, s%d, 15\ns_add_u32 s%d, s%d, s%d\ns_sub_u32 s3, s%d, 10\ns_min_u32 s%d, s%d, s3" % (dst, reg, dst, dst, sN, dst, dst, dst))
    def nextstage():
        a("s_lshr_b64 s[%d:%d], s[%d:%d], 4" % (sORD, sORD+1, sORD, sORD+1)); stage_id(sORD, sP)
        a("s_lshl_b32 s%d, s%d, 7\ns_mul_i32 s%d, s%d, s%d" % (sA, sP, sP, sP, sIncP))
    def p2round(r):
        stage_id(sOR2, sH)
        a("s_lshr_b64 s[%d:%d], s[%d:%d], 8\ns_mul_i32 s%d, s%d, s%d" % (sOR2, sOR2+1, sOR2, sOR2+1, sH, sH, sInc2))
        a("s_mov_b32 s3, %d\ns_cmp_ge_u32 s%d, 2\ns_cselect_b32 s3, %d, s3\ns_add_u32 m0, s3, s%d" % (p2loc(2*r), lw, p2loc(2*r + 1), sL2))
        for i in range(5):
            if i == 4:
                l = a.newlabel("Lnop"); a("s_cmp_eq_u32 s%d, 0\ns_cbranch_scc1 %s" % (sTY, l))
            if i: a("s_add_u32 m0, m0, 0x400")
            a("s_nop 0\nbuffer_load_dwordx4 v%d, %s, s%d offen lds" % (24 + i, S(S_P2), sH))
            if i == 4: a.label(l); vm.add_opt("R%d" % r)
            else: vm.add("R%d" % r)
    def capture_x(s):
        sl = s % 3
        for ks2 in range(2):
            for i in range(2): a("ds_read_b128 %s, v%d offset:%d" % (R4(xreg(2*s + ks2, i)), 20 + ks2 + (2 if sl == 2 else 0), (SLOT if sl == 1 else 0) + 2048*i))
    def bar(k, *labs):
        vm.wait(*labs); a("s_waitcnt lgkmcnt(0)"); stamp(k + 1, 4); a("s_barrier"); stamp(k + 1, 3)
    def seg_calc(dst, sbase):
        a("v_mul_u32_u24 v7, 6554, v0\nv_lshl_add_u32 v5, v0, 4, s%d\ns_movk_i32 s3, 3680\ns_movk_i32 s%d, 3840" % (sbase, sT3))
        for i in range(5):
            a("v_add_u32 v8, %d, v7\nv_lshrrev_b32 v8, 16, v8\nv_and_b32 v9, 12, v8" % (64*i*6554))
            c = 1024*i - (46080 if i >= 3 else 0)
            a("v_add_u32 v%d, 0x%x, v5\nv_mad_u32_u24 v%d, v8, s3, v%d\nv_mad_u32_u24 v%d, v9, s%d, v%d" % (dst+i, c & 0xffffffff, dst+i, dst+i, dst+i, sT3, dst+i))
            if i == 2: a("v_lshrrev_b32 v8, 4, v8\nv_mul_u32_u24 v8, 46080, v8\nv_sub_u32 v%d, v%d, v8" % (dst+2, dst+2))
    def line_calc(dst, sbase):
        a("v_and_b32 v6, 3, v2\nv_lshrrev_b32 v7, 2, v2\nv_lshl_add_u32 v6, v7, 3, v6\nv_mul_u32_u24 v6, 3072, v6\nv_and_b32 v7, 6, v2\nv_xor_b32 v7, v4, v7\nv_lshl_add_u32 v6, v7, 4, v6")
        a("v_add_u32 v%d, s%d, v6\nv_add_u32 v%d, 49152, v%d\nv_add_u32 v%d, 12288, v%d\nv_add_u32 v%d, 61440, v%d\nv_mov_b32 v%d, 0x%x" % (dst, sbase, dst+1, dst, dst+2, dst, dst+3, dst, dst+4, OOB))
    a("s_sub_u32 s%d, s%d, 4" % (lw, sWV))
    a("v_lshrrev_b32 v2, 3, v0\nv_lshrrev_b32 v3, 4, v0\nv_and_b32 v4, 7, v0")
    a("v_xor_b32 v5, v4, v3\nv_lshlrev_b32 v5, 4, v5")
    a("s_lshl_b32 s3, s%d, 7\ns_lshl_b32 s%d, s%d, 5\ns_add_u32 s3, s3, s%d\ns_mul_i32 s3, s3, 1280" % (sRB, sT1, lw, sT1))
    a("v_mul_u32_u24 v6, 1280, v2\nv_add3_u32 v10, v6, v5, s3")
    a("v_xor_b32 v11, 64, v10\nv_add_u32 v11, 10240, v11\nv_add_u32 v12, 20480, v10\nv_add_u32 v13, 20480, v11")
    a("s_lshl_b32 s%d, s%d, 12" % (sLA, lw))
    a("s_xor_b32 s3, s%d, s%d\ns_and_b32 s3, s3, 1\ns_mul_i32 s3, s3, 0x11111111\ns_xor_b32 s%d, s3, 0x76543210\ns_xor_b32 s%d, s3, 0x98" % (sRB, sJJ, sORD, sORD+1))
    a("s_and_b32 s3, s2, 7\ns_sub_u32 s%d, s3, 5\ns_min_u32 s3, s3, s%d\ns_lshl_b32 s%d, s3, 1" % (sT1, sT1, sN))
    stage_id(sORD, sP)
    a("s_lshl_b32 s%d, s%d, 7\ns_mov_b32 s%d, 0x%x\ns_mov_b32 s%d, 0x20000\ns_waitcnt lgkmcnt(0)\ns_mov_b32 s%d, s36\ns_mov_b32 s%d, s37" % (sA, sP, S_X+2, 2048*1280, S_X+3, S_X, S_X+1))
    stamp(1)
    issue(0, (0, 4))
    a("s_and_b32 s%d, s%d, 1\ns_lshr_b32 s%d, s%d, 1" % (sT2, lw, sLH, lw))
    a("s_mul_i32 s%d, s%d, 160\ns_mul_i32 s3, s%d, %d\ns_add_u32 s%d, s%d, s3\ns_mul_i32 s%d, s%d, 384\ns_mul_i32 s3, s%d, %d\ns_add_u32 s%d, s%d, s3" % (sK0, sJJ, sT2, 32*3840, sK0, sK0, sK1, sJJ, sT2, 32*3072, sK1, sK1))
    a("s_cmp_lg_u32 s%d, 0\ns_cbranch_scc1 L_p1q" % sTY)
    a("s_add_u32 s3, s%d, 1\ns_mul_i32 s3, s3, 1280\ns_add_u32 s%d, s%d, s3\ns_mov_b32 s%d, %d" % (sLH, sT1, sK0, sIncP, 64*3840))
    a("s_mul_i32 s%d, s%d, %d\ns_mul_i32 s3, s%d, 5120\ns_add_u32 s%d, s%d, s3\ns_add_u32 s%d, s%d, %d" % (sLP, sLH, V_OFF - K_OFF, sT2, sLP, sLP, sLP, sLP, K_OFF))
    seg_calc(14, sT1)
    srd(S_P, 38, 640*3840)
    a("s_branch L_p1d")
    a.label("L_p1q")
    a("s_add_u32 s3, s%d, 1\ns_lshl_b32 s3, s3, 7\ns_add_u32 s%d, s%d, s3\ns_mov_b32 s%d, %d\ns_add_u32 s%d, s%d, %d" % (sLH, sT1, sK1, sIncP, 64*3072, sLP, sLA, H_OFF))
    line_calc(14, sT1)
    srd(S_P, 44, 640*3072)
    a.label("L_p1d")
    a("s_mul_i32 s%d, s%d, s%d\ns_lshl_b32 s3, s%d, 2\ns_lshr_b64 s[%d:%d], s[%d:%d], s3" % (sP, sP, sIncP, sLH, sOR2, sOR2+1, sORD, sORD+1))
    issue(0, (4, 9)); nextstage()
    issue(1); nextstage()
    srd(S_WS, 56, WS_SIZE); srd(S_B1, 46, 3072)
    a("v_lshrrev_b32 v5, 2, v0\nv_and_b32 v6, 3, v0")
    a("s_cmp_lg_u32 s%d, 0\ns_cbranch_scc1 L_p2q" % sTY)
    a("v_lshlrev_b32 v7, 7, v5\nv_lshl_add_u32 v7, v6, 3, v7\nv_bfe_u32 v5, v0, 3, 2\nv_lshl_add_u32 v244, v5, 5, v7\nv_add_u32 v244, %d, v244\nv_xor_b32 v245, 32, v244\nv_xor_b32 v246, 64, v244\nv_xor_b32 v247, 0x60, v244" % P2A)
    a("s_lshl_b32 s3, s%d, 5\nv_xor_b32 v29, s3, v244\ns_mov_b32 s%d, %d\ns_lshl_b32 s%d, s%d, 12" % (lw, sInc2, 64*3072, sL2, sT2))
    line_calc(24, sK1)
    srd(S_P2, 44, 640*3072)
    a("s_branch L_p2d")
    a.label("L_p2q")
    a("v_mul_u32_u24 v7, 160, v5\nv_lshl_add_u32 v244, v6, 3, v7\nv_add_u32 v244, %d, v244\ns_lshl_b32 s3, s%d, 5\nv_add_u32 v29, s3, v244\ns_mov_b32 s%d, %d\ns_mul_i32 s%d, s%d, 5120" % (P2A, lw, sInc2, 64*3840, sL2, sT2))
    seg_calc(24, sK0)
    srd(S_P2, 38, 640*3840)
    a.label("L_p2d")
    a("v_and_b32 v5, 15, v0\nv_lshrrev_b32 v6, 1, v5\nv_xor_b32 v6, v6, v3\nv_lshlrev_b32 v6, 4, v6\nv_lshl_add_u32 v6, v5, 7, v6\nv_add_u32 v20, s%d, v6\nv_xor_b32 v21, 64, v20\nv_add_u32 v22, %d, v20\nv_add_u32 v23, %d, v21" % (sLA, 2*SLOT, 2*SLOT))
    a("v_lshlrev_b32 v1, 4, v0\nv_add_u32 v2, 4096, v1")
    g2_setup(True)
    a("v_min_u32 v32, 13, v5\nv_lshlrev_b32 v32, 4, v32\ns_mul_i32 s3, s%d, 224\nv_add_u32 v32, s3, v32\ns_mul_i32 s3, s%d, 64\ns_sub_u32 s3, 880, s3\nv_min_u32 v31, s3, v32\nv_lshl_add_u32 v31, v3, 10, v31\nv_and_b32 v30, 0x7ff, v31\nv_add_u32 v32, %d, v32" % (lw, sTY, CSL))
    a("s_lshl_b32 s%d, s%d, 10\ns_lshl_b32 s3, s%d, 11\ns_add_u32 s%d, s%d, s3\ns_add_u32 s%d, s%d, 0x%x" % (sT1, sT2, sRB, sT1, sT1, sT1, sT1, STAT_OFF))
    a("s_lshl_b32 s3, s%d, 3\ns_add_u32 s3, s3, s%d\ns_mul_i32 s%d, s3, 10240\ns_add_u32 s%d, s%d, 0x%x\ns_mov_b32 s%d, 0x%x" % (sTY, sJJ, sT2, sT2, sT2, CSP_OFF, sT3, FWG))
    a("s_and_b32 s3, s2, 7\ns_lshl_b32 s%d, s3, 1\ns_and_b32 s%d, s%d, 1\ns_add_u32 s%d, s%d, s%d\ns_lshl_b32 s%d, s%d, 10\ns_add_u32 s%d, s%d, s%d" % (sCD, sLP4, sRB, sCD, sCD, sLP4, sCD, sCD, sCD, sCD, sT2))
    a("s_lshl_b32 s%d, s%d, 1\ns_sub_u32 s%d, s%d, s%d\ns_add_u32 s%d, s%d, 10\ns_lshl_b32 s%d, s%d, 6\ns_add_u32 s%d, s%d, s%d\ns_cmp_lt_u32 s3, 5\ns_cselect_b32 s%d, s%d, 0" % (sLP4, sTY, sLP4, lw, sLP4, sLP4, sLP4, sLP4, sLP4, sCD, sCD, sLP4, sCD, sCD))
    a("v_mov_b32 v33, %d\nv_mov_b32 v34, 1\ns_getreg_b32 s%d, hwreg(HW_REG_XCC_ID, 0, 4)\ns_and_b32 s3, s2, 7\ns_lshl_b32 s3, s3, 5\ns_lshr_b32 s%d, s2, 3\ns_add_u32 s3, s3, s%d\ns_lshl_b32 s3, s3, 2\ns_add_u32 s3, s3, 0x%x\nv_mov_b32 v35, s3" % (LFLAG, sFAST, sLP4, sLP4, FWG))
    for k in range(4): a("v_mov_b32 v%d, 0x3f803f80" % (36 + k))
    a("v_and_b32 v19, 48, v0\nv_mov_b32 v9, 0xff")
    def sig(off): a("s_mov_b64 exec, 1\nds_add_u32 v33, v34 offset:%d\ns_mov_b64 exec, -1" % off)
    bar(0, "S0")
    for c in range(2, 10):
        capture_x(c - 2)
        if c == 2: a("ds_read_b32 v6, v33 offset:%d" % (TAGL - LFLAG))
        if c == 3: p2round(0)
        if c == 4:
            a("s_cmp_lg_u32 s%d, 3\ns_cbranch_scc1 L_nowf\nv_mov_b32 v6, s%d\nv_xor_b32 v6, s%d, v6\ns_mov_b64 exec, 1\nbuffer_store_dword v6, v35, %s, 0 offen sc1\ns_mov_b64 exec, -1" % (lw, sTAG, sFAST, S(S_WS)))
            a.label("L_nowf"); vm.add_opt("W")
            a("s_cmp_eq_u32 s%d, 0\ns_cbranch_scc1 L_nocd\ns_cmp_lg_u32 s%d, 0\ns_cbranch_scc1 L_cdq" % (sCD, sTY))
            for (ko, ro) in ((4096, 2048), (5120, 2560)):
                for ks2 in range(2):
                    for rd in range(2): a("ds_read_b64_tr_b16 %s, v29 offset:%d" % (R2(44 + 4*ks2 + 2*rd), ks2*ko + rd*ro))
                if ko == 4096: a("s_branch L_nocd"); a.label("L_cdq")
            for ks2 in range(2):
                for rd in range(2): a("ds_read_b64_tr_b16 %s, v29 offset:%d" % (R2(52 + 4*ks2 + 2*rd), ks2*5120 + rd*2560 + 32))
            a.label("L_nocd")
        if c == 5:
            a("s_cmp_eq_u32 s%d, 0\ns_cbranch_scc1 L_nocd2" % sCD)
            mf(60, 44, 36, True); mf(64, 52, 36, True); mf(60, 48, 36); mf(64, 56, 36)
            a.label("L_nocd2")
        if c == 9:
            a("buffer_load_dwordx4 v[68:71], v1, %s, s%d offen sc1" % (S(S_WS), sT3)); vm.add("FW")
        issue(c)
        if c < 9: nextstage()
        if c == 2:
            a("s_waitcnt lgkmcnt(0)\nv_readfirstlane_b32 s%d, v6\ns_nop 3" % sTAG)
            for k in range(4): a("s_lshr_b32 s%d, s%d, %d" % (TB[k], sTAG, 8*k))
        if c == 5:
            a("s_cmp_eq_u32 s%d, 0\ns_cbranch_scc1 L_nocd3" % sCD)
            for k in range(8): a("v_bfi_b32 v%d, v9, s%d, v%d" % (60 + k, TB[k % 4], 60 + k))
            a("s_mov_b32 exec_lo, 0x00010001\ns_mov_b32 exec_hi, 0x00010001\nbuffer_store_dwordx4 v[60:63], v19, %s, s%d offen sc1" % (S(S_WS), sCD))
            a("s_lshl_b32 s3, s%d, 2\ns_add_u32 s3, s3, s%d\ns_cmp_lg_u32 s3, 7\ns_cbranch_scc1 L_nocd4\nbuffer_store_dwordx4 v[64:67], v19, %s, s%d offen offset:64 sc1" % (sTY, lw, S(S_WS), sCD))
            a.label("L_nocd4"); a("s_mov_b64 exec, -1")
            a.label("L_nocd3"); vm.add_opt("CD", 2)
        if c == 9: break
        bar(c - 1, "S%d" % (c - 1), "R0" if c == 3 else "-")
    if OPT["lp"]: a("s_setprio %d" % OPT["lp"])
    def csloads():
        a("buffer_load_dwordx4 v[40:43], v1, %s, s%d offen sc1" % (S(S_WS), sT1))
        for p in range(3): a("s_add_u32 s3, s%d, %d\nbuffer_load_dwordx4 %s, v%d, %s, s3 offen sc1" % (sT2, 4096 * p, R4(44 + 4*p), 31 if p < 2 else 30, S(S_WS)))
    csloads(); vm.add("CK", 4)
    bar(8, "S8", "FW")
    capture_x(8)
    p2round(1); p2round(2)
    bar(9, "S9", "CK")
    capture_x(9)
    a("s_mov_b32 s%d, %d" % (sSpin, SPIN))
    a.label("L_chk")
    for k in range(4): a("v_xor_b32 v%d, s%d, v%d" % (72 + k, sTAG, 68 + k))
    tagchk(3, list(range(44, 56)))
    a("v_or3_b32 v4, v72, v73, v74\nv_or_b32 v4, v4, v75\nv_and_b32 v4, -16, v4\nv_bitop3_b32 v3, v3, v41, s%d bitop3:0xf6\nv_bitop3_b32 v3, v3, v43, s%d bitop3:0xf6\nv_or_b32 v3, v3, v4\nv_cmp_ne_u32 vcc, 0, v3\ns_cbranch_vccnz L_chkslow" % (sTAG, sTAG))
    a.label("L_chkok")
    mark = len(a.lines)
    a.label("L_chkslow"); a("s_sleep 4\nbuffer_load_dwordx4 v[68:71], v1, %s, s%d offen sc1" % (S(S_WS), sT3)); csloads()
    a("s_waitcnt vmcnt(0)\ns_sub_u32 s%d, s%d, 1\ns_cbranch_scc0 L_chk\ns_branch L_chkok" % (sSpin, sSpin))
    OUTLINE.extend(a.lines[mark:]); del a.lines[mark:]
    a("s_and_b32 s3, s%d, 1\ns_lshl_b32 s3, s3, 8\ns_add_u32 s3, s3, %d\nv_lshl_add_u32 v3, v0, 2, s3\nds_write2st64_b32 v3, v40, v42 offset0:0 offset1:2" % (lw, STATL))
    a("v_xor_b32 v3, s%d, v72" % sFAST)
    for k in range(1, 4): a("v_bitop3_b32 v3, v3, v%d, s%d bitop3:0xf6" % (72 + k, sFAST))
    a("v_cmp_ne_u32 vcc, 0, v3\ns_and_b32 s3, s2, 7\ns_lshl_b32 s3, s3, 3\ns_lshr_b64 vcc, vcc, s3\ns_and_b32 s3, vcc_lo, 0xff\ns_cselect_b32 s%d, 0, 1" % sFAST)
    for k in range(2): padd(44 + 2*k, 44 + 2*k, 48 + 2*k, True)
    a("s_mov_b32 exec_hi, 0")
    for k in range(2): padd(44 + 2*k, 44 + 2*k, 52 + 2*k, True)
    a("s_mov_b64 exec, -1\nv_mov_b32 v4, s%d\nds_write_b32 v33, v4 offset:%d" % (sFAST, FASTL - LFLAG))
    for op in ("v_permlane16_swap_b32", "v_permlane32_swap_b32"):
        for k in range(4): a("v_mov_b32 v%d, v%d" % (48 + k, 44 + k))
        a("s_nop 1")
        for k in range(4): a("%s v%d, v%d" % (op, 44 + k, 48 + k))
        a("s_nop 0")
        for k in range(2): padd(44 + 2*k, 44 + 2*k, 48 + 2*k, True)
    a("ds_write_b128 v32, v[44:47]\ns_waitcnt lgkmcnt(0)")
    sig(LF_ST); sig(LF_RING)
    if OPT["lp"]: a("s_setprio 0")
    stamp(4)
    p2round(3); p2round(4)
    a("v_mov_b32 v248, v33\nv_mov_b32 v249, 1")
    a("s_mul_i32 s3, s%d, 384\nv_lshrrev_b32 v3, 1, v19" % sJJ)
    a("s_cmp_lg_u32 s%d, 0\ns_cbranch_scc1 L_tq" % sTY)
    def sig2(off): a("s_mov_b64 exec, 1\nds_add_u32 v248, v249 offset:%d\ns_mov_b64 exec, -1" % off)
    def pass2(ty):
        nt = NT2[ty]; q0 = list(vm.q)
        vm.wait("R4"); sig2(LF_P2 + 16)
        stamp(5); stamp(1, 1)
        lds_wait(LF_P2 + 16, None, 4, 250, 1)
        FB = [44, 64]
        cur = [P2A]
        def reads(k):
            j, ks2 = k >> 1, k & 1
            reg0 = P2A if j < 4 else (SLOT if j < 7 else 2*SLOT)
            out = []
            if reg0 != cur[0]:
                out.append("\n".join("v_add_u32 v%d, 0x%x, v%d" % (244 + q, (reg0 - cur[0]) & 0xffffffff, 244 + q) for q in range(4 if ty == 0 else 1))); cur[0] = reg0
            o = p2loc(j) - reg0
            for t in range(nt):
                for rd in range(2):
                    x = "ds_read_b64_tr_b16 %s, v%d offset:%d" % (R2(FB[k & 1] + 4*t + 2*rd), 244 + t if ty == 0 else 244, o + (ks2*4096 + rd*2048 if ty == 0 else ks2*5120 + rd*2560 + 32*t))
                    if out and out[-1].startswith("v_add") and "ds_" not in out[-1]: out[-1] += "\n" + x
                    else: out.append(x)
            return out
        for x in reads(0): a(x)
        if ty == 0: lds_wait(LF_XK, None, 4, 250, 1)
        elif OPT["go"]: lds_wait(LF_GO, None, 4, 250, 1)
        else: lds_wait(LF_ST, None, 4, 250, 1)
        stamp(6); stamp(2, 1)
        if OPT["p2p"]: a("s_setprio %d" % OPT["p2p"])
        bq = []; nextb = [0]
        for k in range(20):
            a("s_waitcnt lgkmcnt(0)\ns_nop 0")
            if k == 18 and (OPT["yld"] >> ty) & 1: lds_signal(LF_Y, lw, 250)
            rr = reads(k + 1) if k < 19 else []
            if OPT["lbp"]:
                while nextb[0] < 6 and Breg(nextb[0], 4, True) + 4 <= xreg(k, 0) and not bq:
                    bq = memchunks(capture(lambda: loadB(nextb[0], True))); nextb[0] += 1
            n = 0
            for t in range(nt):
                for i in range(2):
                    mf(4 + (i*nt + t)*4, FB[k & 1] + 4*t, xreg(k, i), k == 0)
                    for _ in range(2):
                        if rr: a(rr.pop(0))
                    n += 1
                    if bq and n in (6, 8): a(bq.pop(0))
        for x in bq: a(x)
        a("s_setprio 0")
        sig2(LF_Z)
        stamp(7); stamp(3, 1)
        vm.q = q0
        return nextb[0]
    def epi2_reads(ty, CT, RS):
        a("v_and_b32 v3, 15, v0\nv_lshlrev_b32 v3, 2, v3\ns_lshl_b32 s3, s%d, 7\ns_add_u32 s3, s3, %d\nv_add_u32 v3, s3, v3\nv_and_b32 v250, 48, v0\nv_add_u32 v250, %d, v250" % (lw, STATL, CSL + 64*(10 - 2*ty)))
        for t in range(NT2[ty]): a("ds_read_b128 %s, v250 offset:%d" % (R4(CT + 4*t), 64*t))
        for i in range(2): a("ds_read2_b32 %s, v3 offset0:%d offset1:%d" % (R2(RS + 2*i), 16*i, 128 + 16*i))
    SC = OPT["sc2"]
    B1 = 36
    for t in range(4): a("buffer_load_dwordx2 %s, v3, %s, s3 offen offset:%d" % (R2(B1 + 2*t), S(S_B1), 32*t))
    vm.add("b1", 4)
    nb = pass2(0)
    CT, RS, BF, KC, TMP = 44, 60, 224, 64, 68
    epi2_reads(0, CT, RS)
    a("s_lshr_b32 s%d, s%d, 1\ns_and_b32 s%d, s%d, 1" % (sA, lw, sP, lw))
    a2_soff(sT2, sA, lambda: a("s_mul_i32 s3, s%d, 6" % sJJ))
    flag_off(sT1, sT2, sA)
    a("s_lshl_b32 s3, s%d, 2\ns_add_u32 s%d, s%d, s3\ns_lshl_b32 s3, s%d, 11\ns_add_u32 s%d, s%d, s3\ns_add_u32 s%d, s%d, 4096" % (sP, sT1, sT1, sP, sT2, sT2, sT3, sT2))
    a("s_waitcnt vmcnt(%d)" % (5 * nb))
    for k in range(8): unpack(BF + 2*k, B1 + k)
    consts(KC)
    if OPT["hz"] & 512: a("v_mov_b32 v255, v%d\nv_mov_b32 v254, 0x40400000" % (KC + 2))
    a("s_waitcnt lgkmcnt(0)")
    for u in range(2):
        for i in range(2):
            P = [(4 + (i*4 + 2*u + q//2)*4 + 2*(q % 2), CT + 4*(2*u + q//2) + 2*(q % 2), BF + 4*(2*u + q//2) + 2*(q % 2), TMP + 2*q) for q in range(4)]
            gelu(P, RS + 2*i, KC, P[0][0], SC & 1)
            st_a2("buffer_store_dwordx4 %s, v1, %s, s%d offen offset:%d" % (R4(P[0][0]), S(S_WS), (sT2, sT3)[u], 1024*i))
    stamp(4, 1)
    if OPT["yld"] & 1: lds_signal(LF_Y, lw, 250)
    put_flag(sT1, 0, 250)
    for s in range(nb, 7): loadB(s, True)
    a("s_branch L_lg2")
    a.label("L_tq")
    vm.q = [x for x in vm.q if x[0] != "b1"]
    table_load(252, 3, lw); vm.add("tb")
    nb = pass2(1)
    CT, RS, KC, TMP, PQ = 44, 64, 68, 224, 4
    epi2_reads(1, CT, RS)
    a("s_mul_i32 s%d, s%d, %d\ns_lshl_b32 s3, s%d, 10\ns_add_u32 s%d, s%d, s3\ns_add_u32 s%d, s%d, 0x%x" % (sH, sJJ, KVP_STRIDE, lw, sH, sH, sH, sH, RED_OFF))
    a("v_add_u32 v251, s3, v1\nv_cmp_gt_u32 vcc, %d, v251\ns_lshr_b32 s%d, s%d, 1\ns_and_b32 s%d, s%d, 1\nv_cndmask_b32 v251, v1, v2, vcc" % ((420 - 256)*16, sA, lw, sP, lw))
    G = 72
    def gl(): a("buffer_load_dwordx4 %s, v1, %s, s%d offen sc1\nbuffer_load_dwordx4 %s, v251, %s, s%d offen sc1" % (R4(G), S(S_WS), sH, R4(G + 4), S(S_WS), sH))
    a2_soff(sT2, sA, lambda: a("s_lshl_b32 s3, s%d, 1\ns_add_u32 s3, s3, 48" % sJJ))
    flag_off(sT1, sT2, sA)
    a2_soff(sT3, sA, lambda: a("s_lshr_b32 s3, s%d, 1\ns_add_u32 s3, s3, 64" % sJJ))
    a("s_lshl_b32 s3, s%d, 2\ns_add_u32 s%d, s%d, s3\ns_lshl_b32 s3, s%d, 11\ns_add_u32 s%d, s%d, s3\ns_add_u32 s%d, s%d, s3\ns_add_u32 s%d, s%d, 4096\ns_and_b32 s3, s%d, 1\ns_lshl_b32 s3, s3, 9\ns_add_u32 s%d, s%d, s3" % (sP, sT1, sT1, sP, sT2, sT2, sT3, sT3, sLP4, sT2, sJJ, sT3, sT3))
    consts(KC)
    a("s_waitcnt lgkmcnt(0)")
    for i in range(2):
        P = [(4 + (i*5 + t)*4 + 2*q, TMP + 4*t + 2*q, CT + 4*t + 2*q) for t in range(5) for q in range(2)]
        rs = RS + 2*i
        align8()
        if SC & 2:
            for (h, u, c) in P: a("v_fma_f32 v%d, -v%d, v%d, v%d\nv_fma_f32 v%d, -v%d, v%d, v%d" % (u, rs+1, c, KC+3, u+1, rs+1, c+1, KC+3))
            for (h, u, c) in P: a("v_fma_f32 v%d, v%d, v%d, v%d\nv_fma_f32 v%d, v%d, v%d, v%d" % (h, rs, h, u, h+1, rs, h+1, u+1))
        else:
            for (h, u, c) in P: a("v_pk_fma_f32 %s, %s, %s, %s op_sel:[1,0,1] op_sel_hi:[1,1,1] neg_lo:[1,0,0] neg_hi:[1,0,0]" % (R2(u), R2(rs), R2(c), R2(KC + 2)))
            for (h, u, c) in P: a("v_pk_fma_f32 %s, %s, %s, %s op_sel:[0,0,0] op_sel_hi:[0,1,1]" % (R2(h), R2(rs), R2(h), R2(u)))
        phi_pairs([(h, u) for (h, u, c) in P], KC, SC & 2)
        for k, (h, u, c) in enumerate(P): a("v_cvt_pk_bf16_f32 v%d, v%d, v%d" % (PQ + 10*i + k, h, h + 1))
        if i == 0: gl()
    if OPT["yld"] & 2: lds_signal(LF_Y, lw, 24)
    stamp(4, 1)
    a("v_and_b32 v24, 15, v0\nv_lshrrev_b32 v25, 4, v0\nv_lshl_add_u32 v26, v24, 2, v25\nv_lshlrev_b32 v244, 4, v26\nv_lshlrev_b32 v245, 3, v26")
    a("v_and_b32 v26, 3, v24\nv_add_u32 v26, 80, v26\nv_lshl_add_u32 v26, v26, 2, v25\nv_lshlrev_b32 v246, 4, v26\nv_lshlrev_b32 v247, 3, v26")
    a("v_and_b32 v26, 1, v25\nv_lshlrev_b32 v254, 4, v24\nv_lshl_add_u32 v254, v26, 10, v254\nv_lshrrev_b32 v26, 1, v25\nv_lshl_add_u32 v254, v26, 8, v254")
    for k in range(3): a("v_cmp_gt_u32 s[%d:%d], %d, v25" % (24 + 2*k, 25 + 2*k, k + 1))
    lds_wait_ge(LF_IMG, 4, 26, 1)
    a("s_setprio 2\ns_mov_b32 s%d, %d" % (sSpin, SPIN))
    a.label("L_gather")
    a("s_waitcnt vmcnt(0)")
    tagchk(80, list(range(G, G + 8)))
    a("s_cbranch_vccz L_gatherok\ns_sleep %d" % OPT["slp"])
    gl()
    a("s_sub_u32 s%d, s%d, 1\ns_cbranch_scc0 L_gather\ns_waitcnt vmcnt(0)" % (sSpin, sSpin))
    a.label("L_gatherok")
    stamp(5, 1)
    for k in range(4): a("v_cvt_pk_bf16_f32 v%d, v%d, v%d" % (G + k, G + 2*k, G + 1 + 2*k))
    a("ds_write_b64 v252, %s\nds_write_b64 v253, %s\ns_waitcnt lgkmcnt(0)" % (R2(G), R2(G + 2)))
    sig2(LF_IMG)
    lds_wait(LF_IMG, None, 8, 26, 0)
    stamp(6, 1)
    WA = {0: 24, 1: 28, 2: 32, 5: 36}; WB = {1: 40, 2: 44, 3: 48, 4: 52, 5: 56}; WC = {3: 60, 4: 62, 5: 64}
    for to, r in WA.items(): a("ds_read_b128 %s, v%d offset:%d" % (R4(r), 246 if to == 5 else 244, IMG + (0 if to == 5 else 1024*to)))
    for to, r in WB.items(): a("ds_read_b128 %s, v%d offset:%d" % (R4(r), 246 if to == 5 else 244, IMG23 + (0 if to == 5 else 1024*to)))
    for to, r in WC.items(): a("ds_read_b64 %s, v%d offset:%d" % (R2(r), 247 if to == 5 else 245, IMG4 + (0 if to == 5 else 512*to)))
    a("s_waitcnt lgkmcnt(0)")
    OR = [{0: 224, 1: 228, 2: 232, 3: 236, 4: 240, 5: 72}, {0: 204, 1: 208, 2: 212, 3: 76, 4: 80, 5: 216}]
    RM = 244
    def omf(i):
        O = OR[i]; pq = PQ + 10*i
        for to in (3, 4): mf(O[to], WB[to], pq + 4, True)
        for to in (5, 0, 1, 2): mf(O[to], WA[to], pq, True)
        for to in (5, 1, 2): mf(O[to], WB[to], pq + 4)
    def omf2(i):
        O = OR[i]; pq = PQ + 10*i
        for to in (3, 4, 5): a("v_mfma_f32_16x16x16_bf16 %s, %s, %s, %s" % (R4(O[to]), R2(WC[to]), R2(pq + 8), R4(O[to])))
    def ofin(i):
        O = OR[i]; d = O[5]
        for j in range(4): a("v_add_f32 v%d, v%d, v%d" % (d + j, d + j, KC + 3))
        for j in range(4): a("v_rcp_f32 v%d, v%d" % (d + j, d + j))
        for x in range(4): a("v_mul_f32 v%d, v%d, v%d" % (O[0] + x, O[0] + x, d))
        for x in range(4): a("v_mul_f32 v%d, v%d, v%d" % (O[4] + x, O[4] + x, d + 3))
        for k in range(3): a("v_cndmask_b32 v%d, v%d, v%d, s[%d:%d]" % (d + k, d + k + 1, d + k, 24 + 2*k, 25 + 2*k))
        for k in range(3):
            for x in range(4): a("v_mul_f32 v%d, v%d, v%d" % (O[k + 1] + x, O[k + 1] + x, d + k))
        for k in range(2): a("v_cvt_pk_bf16_f32 v%d, v%d, v%d" % (RM + 2*i + k, O[4] + 2*k, O[4] + 2*k + 1))
        for u in range(2):
            for k in range(4): a("v_cvt_pk_bf16_f32 v%d, v%d, v%d" % (O[2*u] + k, O[2*u + (k >> 1)] + 2*(k & 1), O[2*u + (k >> 1)] + 2*(k & 1) + 1))
            st_a2("buffer_store_dwordx4 %s, v1, %s, s%d offen offset:%d" % (R4(O[2*u]), S(S_WS), (sT2, sLP4)[u], 1024*i))
    omf(0); omf(1); omf2(0); omf2(1)
    a("s_nop 4")
    ofin(0); ofin(1)
    for k in range(2): a("v_permlane16_swap_b32 v%d, v%d" % (RM + k, RM + 2 + k))
    st_a2("buffer_store_dwordx4 %s, v254, %s, s%d offen" % (R4(RM), S(S_WS), sT3))
    stamp(7, 1)
    put_flag(sT1, 0, 250)
    sig2(LF_Q)
    a("s_setprio 0")
    for s in range(nb, 7): loadB(s, True)
    a.label("L_lg2")
    stamp(8); stamp(8, 1)
    a("s_lshl_b32 s%d, s%d, 9\ns_add_u32 s%d, s%d, 0x%x\ns_lshl_b32 s3, s%d, 2\ns_add_u32 s%d, s%d, s3\ns_add_u32 s%d, s%d, 24\ns_lshl_b32 s3, s%d, 2\ns_add_u32 s%d, s%d, s3" % (sORD+1, sRT, sORD+1, sORD+1, FH, sK0, sORD, sORD+1, sORD, sORD, sK1, sORD+1, sORD+1))
    for k in range(4): step_off(2 + k, True, (sAo0, sAo1, sAo2), 4096, sLA + k)
    a("v_lshlrev_b32 v3, 2, v0")
    poll(3, sORD, 2, 4, "hl")
    stamp(9); stamp(9, 1)
    vm = VM()
    AO = [84, 104, 224, 84]
    so = [sLA, sLA + 1, sLA + 2, sLA + 3, sAo2]
    def ldo(i):
        for s in range(5): a("buffer_load_dwordx4 %s, v1, %s, s%d offen offset:%d%s" % (R4(AO[i] + 4*s), S(S_WS), so[s], 1024*i, ALD))
        for s in range(5): vm.add("O%d%d" % (i, s))
    loadA(0, True); loadA(1, True); vm.add("A0", 4); vm.add("A1", 4)
    a("s_mov_b64 exec, 15\nbuffer_load_dword v3, v3, %s, s%d offen%s\ns_mov_b64 exec, -1" % (S(S_WS), sORD + 1, PLD)); vm.add("F")
    vm.wait("A0"); g2_step(0, True)
    vm.wait("F")
    a("v_cmp_ne_u32 vcc, s%d, v3\ns_and_b32 s3, vcc_lo, 15\ns_cbranch_scc1 L_oslow" % sTAG)
    ldo(0); g2_step(1, True); ldo(1); ldo(2)
    a.label("L_oback")
    mark = len(a.lines)
    a.label("L_oslow")
    g2_step(1, True)
    a("v_lshlrev_b32 v3, 2, v0")
    poll(3, sORD + 1, 4, 248, "o")
    q = list(vm.q); ldo(0); ldo(1); ldo(2); vm.q = q
    a("s_branch L_oback")
    SLOW = a.lines[mark:]; del a.lines[mark:]
    stamp(10); stamp(10, 1)
    paddr(251, 249, 250)
    a("s_mul_i32 s3, s%d, 15360\ns_add_u32 s3, s3, %d\nv_add_u32 v250, s3, v251\ns_mul_i32 s3, s%d, %d\nv_add_u32 v251, s3, v251" % (lw, LPART, lw, PREG))
    a("v_mov_b32 v252, %d\nv_mov_b32 v253, 1" % (LFLAG + LF_T))
    def sg(i): return "s_mov_b64 exec, 1\ns_waitcnt lgkmcnt(0)\nds_add_u32 v252, v253 offset:%d\ns_mov_b64 exec, -1" % (4*i)
    pend = []
    for i in range(4):
        k = 0
        for s in range(5):
            vm.wait("O%d%d" % (i, s))
            for t in range(5):
                mf(Dreg(i, t), Breg(2 + s, t, True), AO[i] + 4*s)
                k += 1
                if pend and k >= 4: a(pend.pop(0))
            if i > 0 and s == 2: a(sg(i - 1))
        if i == 0:
            ldo(3)
            lds_wait(LF_Z, None, 4, 254)
        if i == 3: lds_wait(LF_PRE, None, 8, 254)
        pend = ["ds_write_b128 v%d, %s offset:%d" % (250 if i < 3 else 251, R4(Dreg(i, t)), (5120*i if i < 3 else 0) + 64*t) for t in range(5)]
    for x in pend: a(x)
    stamp(11); stamp(11, 1)
    a(sg(3))
    stamp(12)
    a("s_branch L_alldone")
    a.lines.extend(SLOW)

NT1 = (5, 4)
ACC = 8; F0 = 88; F1 = 124
vA0, vA1, vW = 160, 161, 162
vB1 = 168
def acc(i, t): return ACC + (i * 5 + t) * 4
NQU = 680
def compute_prologue():
    sU, sUe, sJ0, sJ1, sJ2, sJ3 = sLP, sH, sLP4, sLH, sA, sP
    a("s_lshr_b32 s%d, s%d, 1\ns_and_b32 s%d, s%d, 1" % (sM, sWV, sN, sWV))
    a("s_lshl_b32 s3, s%d, 3\ns_add_u32 s3, s3, s%d\ns_lshl_b32 s3, s3, 2\ns_add_u32 s3, s3, s%d\ns_lshl_b32 s3, s3, 1\ns_lshl_b32 s%d, s%d, 7\ns_add_u32 s3, s3, s%d" % (sTY, sJJ, sWV, sT1, sRB, sT1))
    a("s_mul_i32 s%d, s3, 1280\ns_lshl_b32 s%d, s3, 4\ns_add_u32 s%d, s%d, 0x%x" % (sT1, sT2, sT2, sT2, STAT_OFF))
    a("v_lshrrev_b32 v5, 5, v0\nv_and_b32 v6, 31, v0\nv_mul_u32_u24 v7, 1280, v5\nv_lshl_add_u32 v224, v6, 4, v7\nv_lshl_add_u32 v225, v6, 3, v7")
    a("s_lshl_b32 s%d, s%d, 7\ns_lshl_b32 s3, s%d, 3\ns_add_u32 s%d, s%d, s3\ns_add_u32 s%d, s%d, s%d" % (sU, sWV, sRB, sU, sU, sU, sU, sJJ))
    a("s_cmp_eq_u32 s%d, %d\ns_cselect_b32 s%d, %d, 0" % (sTY, OPT["jty"], sUe, 0 if OPT["nojob"] else 680))
    a("v_lshrrev_b32 v2, 3, v0\nv_and_b32 v4, 7, v0\nv_and_b32 v7, 6, v2\nv_xor_b32 v7, v4, v7\nv_lshlrev_b32 v4, 4, v7\nv_and_b32 v6, 3, v2")
    a("s_lshl_b32 s3, s%d, 12\ns_add_u32 m0, s3, %d\ns_mov_b32 s%d, 0x20000\ns_mov_b32 s%d, s%d" % (sWV, JOBL, S_J+3, sK0, sU))
    a("s_mov_b32 s%d, 0x%x\ns_mov_b32 s%d, 0x20000\ns_waitcnt lgkmcnt(0)\ns_mov_b32 s%d, s36\ns_mov_b32 s%d, s37" % (S_X+2, 2048*1280, S_X+3, S_X, S_X+1))
    XL = 92; U = 104
    a("buffer_load_dwordx4 %s, v224, %s, s%d offen\nbuffer_load_dwordx4 %s, v224, %s, s%d offen offset:512\nbuffer_load_dwordx2 %s, v225, %s, s%d offen offset:1024" % (R4(XL), S(S_X), sT1, R4(XL+4), S(S_X), sT1, R2(XL+8), S(S_X), sT1))
    a("s_add_u32 s%d, s56, 0x%x\ns_addc_u32 s%d, s57, 0\ns_load_dword s%d, s[%d:%d], 0" % (sEX, EPOCH, sEX+1, sTAG, sEX, sEX+1))
    a.label("L_jrl")
    a("s_cmp_ge_u32 s%d, s%d\ns_cbranch_scc1 L_nojob1" % (sK0, sUe))
    a("s_mul_i32 s3, s%d, 6554\ns_lshr_b32 s%d, s3, 16\ns_mul_i32 s3, s%d, 10\ns_sub_u32 s%d, s%d, s3" % (sK0, sK1, sK1, sT3, sK0))
    a("s_cmp_lt_u32 s%d, 48\ns_cselect_b32 s%d, s48, s40\ns_cselect_b32 s%d, s49, s41\ns_mov_b32 s%d, %d\ns_cselect_b32 s%d, %d, s%d" % (sK1, S_J, S_J+1, S_J+2, 640*1280, S_J+2, 1536*1280, S_J+2))
    a("s_lshl_b32 s%d, s%d, 5\ns_mul_i32 s3, s%d, 40\ns_and_b32 s%d, s%d, 1\ns_lshl_b32 s%d, s%d, 3\ns_sub_u32 s3, s3, s%d\ns_sub_u32 s3, s3, %d\ns_cmp_lt_u32 s%d, 48\ns_cselect_b32 s%d, s%d, s3" % (sJ0, sK1, sK1, sJ1, sK1, sJ1, sJ1, sJ1, 48*40, sK1, sJ0, sJ0))
    a("s_mul_i32 s3, s%d, 160\ns_sub_u32 s3, s3, %d\ns_cmp_lt_u32 s%d, 64\ns_cselect_b32 s%d, s%d, s3\ns_cselect_b32 s%d, 4, 8\ns_cselect_b32 s%d, 16, 4\ns_cselect_b32 s%d, 8, 80" % (sK1, 64*160 - 64, sK1, sJ0, sJ0, sJ3, sJ2, sJ1))
    a("v_mad_u32_u24 v7, s%d, v5, v6\nv_mul_u32_u24 v7, 1280, v7\nv_add_u32 v3, v4, v7" % sJ3)
    a("s_mul_i32 s%d, s%d, 1280\ns_lshl_b32 s3, s%d, 7\ns_add_u32 s%d, s%d, s3\ns_mul_i32 s%d, s%d, 1280\ns_mul_i32 s%d, s%d, 1280" % (sJ0, sJ0, sT3, sJ0, sJ0, sJ1, sJ1, sJ2, sJ2))
    a("s_add_u32 s3, s%d, s%d\nbuffer_load_dwordx4 v3, %s, s%d offen lds" % (sJ0, sJ1, S(S_J), sJ0))
    a("s_add_u32 m0, m0, 0x400\ns_add_u32 s%d, s%d, s%d\nbuffer_load_dwordx4 v3, %s, s3 offen lds" % (sJ0, sJ0, sJ2, S(S_J)))
    a("s_add_u32 m0, m0, 0x400\ns_add_u32 s3, s%d, s%d\nbuffer_load_dwordx4 v3, %s, s%d offen lds" % (sJ0, sJ1, S(S_J), sJ0))
    a("s_add_u32 m0, m0, 0x400\ns_add_u32 s%d, s%d, 512\nbuffer_load_dwordx4 v3, %s, s3 offen lds" % (sK0, sK0, S(S_J)))
    a("s_add_u32 m0, m0, 0x3400\ns_branch L_jrl")
    a.label("L_nojob1")
    srd(S_B1, 46, 3072); srd(S_WS, 56, WS_SIZE); srd(S_OUT, 52, 2048*1280); srd(S_B2, 50, 1280)
    a("v_and_b32 v2, 15, v0\nv_lshrrev_b32 v3, 4, v0\nv_lshrrev_b32 v4, 1, v2\nv_xor_b32 v4, v4, v3\nv_lshlrev_b32 v4, 4, v4\nv_lshl_add_u32 v4, v2, 7, v4\nv_lshlrev_b32 v1, 3, v3")
    a("s_lshl_b32 s3, s%d, 13\nv_add_u32 v%d, s3, v4\nv_xor_b32 v%d, 64, v%d" % (sM, vA0, vA1, vA0))
    a("v_and_b32 v226, 31, v0\nv_lshlrev_b32 v226, 2, v226\nv_add_u32 v226, %d, v226" % LFLAG)
    a("v_lshrrev_b32 v2, 2, v0\nv_and_b32 v3, 3, v0\nv_lshlrev_b32 v4, 7, v2\nv_lshl_add_u32 v4, v3, 3, v4\nv_bfe_u32 v5, v0, 3, 2\nv_lshl_add_u32 v4, v5, 5, v4")
    a("s_lshl_b32 s3, s%d, 12\ns_add_u32 s3, s3, %d\nv_add_u32 v228, s3, v4\nv_xor_b32 v229, 32, v228\nv_xor_b32 v230, 64, v228\nv_xor_b32 v231, 0x60, v228" % (sWV, JOBL))
    a("s_cmp_lg_u32 s%d, 0\ns_cbranch_scc1 L_adq" % sTY)
    a("v_mul_u32_u24 v4, 160, v2\ns_mul_i32 s3, s%d, 80\nv_add_u32 v4, s3, v4\nv_lshl_add_u32 v%d, v3, 3, v4" % (sN, vW))
    a("v_and_b32 v5, 1, v3\nv_lshl_add_u32 v4, v5, 3, v4\nv_add_u32 v4, %d, v4\nv_lshrrev_b32 v5, 1, v3\nv_mul_u32_u24 v5, %d, v5\nv_add_u32 v%d, v4, v5" % (K_OFF + 64, V_OFF - K_OFF - 64, vW + 1))
    table_load(174, 5, sWV)
    a("s_branch L_add")
    a.label("L_adq")
    a("s_lshl_b32 s3, s%d, 13\ns_add_u32 s3, s3, %d\nv_add_u32 v%d, s3, v4" % (sN, H_OFF, vW))
    for t in range(1, 4): a("v_xor_b32 v%d, %d, v%d" % (vW + t, 32*t, vW))
    a("s_lshl_b32 s3, s%d, 7\ns_mul_i32 s%d, s%d, 384\ns_add_u32 s3, s3, s%d\ns_add_u32 s3, s3, 128" % (sN, sIncP, sJJ, sIncP))
    for t in range(4): a("buffer_load_dwordx2 %s, v1, %s, s3 offen offset:%d" % (R2(vB1 + 2*t), S(S_B1), 32*t))
    a.label("L_add")
    for r in range(ACC, ACC + 80, 2): a("v_mov_b64 %s, 0" % R2(r))
    a("s_waitcnt lgkmcnt(0)\ns_and_b32 s3, s%d, 0x7f7f7f7f\ns_add_u32 s3, s3, 0x35251513\ns_and_b32 s%d, s%d, 0x80808080\ns_xor_b32 s%d, s%d, s3" % (sTAG, sTAG, sTAG, sTAG, sTAG))
    a("v_mov_b32 v6, 0\nv_mov_b32 v7, s%d\nds_write2_b32 v226, v6, v7 offset0:0 offset1:32" % sTAG)
    for k in range(4): a("s_lshr_b32 s%d, s%d, %d" % (TB[k], sTAG, 8*k))
    g2_setup(False)
    stamp(1)
    def allreduce32(v, t):
        for ctl in ("quad_perm:[1,0,3,2]", "quad_perm:[2,3,0,1]", "row_half_mirror", "row_mirror"):
            a("s_nop 1\nv_add_f32_dpp v%d, v%d, v%d %s row_mask:0xf bank_mask:0xf" % (v, v, v, ctl))
        a("v_mov_b32 v%d, v%d\ns_nop 1\nv_permlane16_swap_b32 v%d, v%d\ns_nop 1\nv_add_f32 v%d, v%d, v%d" % (t, v, v, t, v, v, t))
    a("s_cmp_lt_u32 s%d, s%d\ns_cbranch_scc1 L_w4\ns_waitcnt vmcnt(1)" % (sU, sUe))
    a.label("L_w4"); a("s_waitcnt vmcnt(5)")
    for i in range(10): unpack(U + 2*i, XL + i)
    a("v_pk_add_f32 v[2:3], %s, %s\nv_pk_add_f32 v[4:5], %s, %s" % (R2(U), R2(U + 2), R2(U + 4), R2(U + 6)))
    for i in range(4, 10): a("v_pk_add_f32 %s, %s, %s" % (R2(2 + 2*(i & 1)), R2(2 + 2*(i & 1)), R2(U + 2*i)))
    a("v_pk_add_f32 v[2:3], v[2:3], v[4:5]\nv_add_f32 v2, v2, v3")
    allreduce32(2, 3)
    a("v_mul_f32 v2, 0x3acccccd, v2")
    for i in range(10): a("v_pk_add_f32 %s, %s, v[2:3] op_sel_hi:[1,0] neg_lo:[0,1] neg_hi:[0,1]" % (R2(U + 2*i), R2(U + 2*i)))
    a("v_pk_mul_f32 v[4:5], %s, %s\nv_pk_mul_f32 v[6:7], %s, %s" % (R2(U), R2(U), R2(U + 2), R2(U + 2)))
    for i in range(2, 10): a("v_pk_fma_f32 %s, %s, %s, %s" % (R2(4 + 2*(i & 1)), R2(U + 2*i), R2(U + 2*i), R2(4 + 2*(i & 1))))
    a("v_pk_add_f32 v[4:5], v[4:5], v[6:7]\nv_add_f32 v4, v4, v5")
    allreduce32(4, 5)
    a("v_mul_f32 v4, 0x3acccccd, v4")
    bf16_round(4); a("v_add_f32 v4, 0x3727c5ac, v4"); bf16_round(4)
    a("v_sqrt_f32 v4, v4\ns_nop 0"); bf16_round(4); bf16_round(2)
    a("v_rcp_f32 v232, v4\nv_mov_b32 v233, s%d\nv_mov_b32 v235, s%d\nv_mul_f32 v234, v232, v2\nv_lshrrev_b32 v5, 1, v0" % (sTAG, sTAG))
    a("s_mov_b32 exec_lo, 1\ns_mov_b32 exec_hi, 1\nbuffer_store_dwordx4 v[232:235], v5, %s, s%d offen sc1\ns_mov_b64 exec, -1" % (S(S_WS), sT2))
    stamp(2)
    a("s_and_b32 s3, s2, 7\ns_cmp_lt_u32 s3, 5\ns_cselect_b32 s%d, 1, 0\ns_cbranch_scc0 L_nosel" % sA)
    a("s_lshl_b32 s3, s3, 1\ns_and_b32 s%d, s%d, 1\ns_add_u32 s3, s3, s%d\ns_lshl_b32 s%d, s%d, 3\ns_add_u32 s%d, s%d, s%d\ns_mul_i32 s%d, s%d, 10\ns_add_u32 s3, s3, s%d\ns_lshl_b32 s3, s3, 4" % (sA, sRB, sA, sA, sTY, sA, sA, sJJ, sA, sA, sA))
    a("s_sub_u32 s%d, 5, s%d\ns_mul_i32 s%d, s%d, s%d\ns_add_u32 s3, s3, s%d\ns_sub_u32 s%d, 3, s%d\ns_mul_i32 s%d, s%d, s%d\ns_add_u32 s3, s3, s%d\ns_lshl_b32 s3, s3, 6\ns_add_u32 s%d, s3, 0x%x" % (sA, sTY, sA, sA, sN, sA, sA, sTY, sA, sA, sM, sA, sA, CSP_OFF))
    a("v_and_b32 v6, 15, v0\nv_mov_b32 v7, 0x3f803f80\nv_and_b32 v4, 48, v0\nv_lshl_add_u32 v4, v6, 6, v4\nv_mov_b32 v5, 0xff")
    for t in range(3):
        a("v_cmp_eq_u32 vcc, %d, v6\ns_nop 1\nv_cndmask_b32 v%d, 0, v7, vcc\nv_cndmask_b32 v%d, 0, v7, vcc\nv_mov_b64 %s, %s" % (t, 176 + 4*t, 177 + 4*t, R2(178 + 4*t), R2(176 + 4*t)))
    a.label("L_nosel")
    a("v_lshlrev_b32 v1, 4, v0\nv_add_u32 v2, 4096, v1")
    for r in range(2):
        a("s_cmp_ge_u32 s%d, s%d\ns_cbranch_scc1 L_nojob2" % (sU, sUe))
        if r == 0: a("s_waitcnt vmcnt(2)")
        for t in range(4): a("ds_read_b64_tr_b16 %s, v%d offset:%d\nds_read_b64_tr_b16 %s, v%d offset:%d" % (R2(F0 + 16*r + 4*t), 228 + t, 16384*r, R2(F0 + 16*r + 2 + 4*t), 228 + t, 16384*r + 2048))
        a("s_lshl_b32 s3, s%d, 12\ns_add_u32 s3, s3, 0x%x\ns_add_u32 s%d, s%d, 512\ns_waitcnt lgkmcnt(0)" % (sU, B2_OFF, sU, sU))
        for t in range(4): a("buffer_store_dwordx4 %s, v1, %s, s3 offen offset:%d sc1" % (R4(F0 + 16*r + 4*t), S(S_WS), 1024*t))
    a.label("L_nojob2")

def frag_reads(ty, F, ks2):
    r = ["ds_read_b128 %s, v%d offset:%d" % (R4(F + 4*i), vA1 if ks2 else vA0, 2048*i) for i in range(4)]
    for t in range(NT1[ty]):
        d = F + 16 + 4*t
        for rd in range(2):
            if ty == 0:
                if t == 2: reg, off = vW + 1, 0
                elif t < 2: reg, off = vW, K_OFF + 32*t
                else: reg, off = vW, V_OFF + 16 + 32*(t - 3)
                off += ks2 * 5120 + rd * 2560
            else: reg, off = vW + t, ks2 * 4096 + rd * 2048
            r.append("ds_read_b64_tr_b16 %s, v%d offset:%d" % (R2(d + 2*rd), reg, off))
    return r
def mfmas(ty, F, order=None):
    r = []
    for (t, i) in (order or [(t, i) for t in range(NT1[ty]) for i in range(4)]):
        B = R4(F + 16 + 4*t); A = R4(F + 4*i); D = R4(acc(i, t))
        r.append("v_mfma_f32_16x16x32_bf16 %s, %s, %s, %s" % ((D, B, A, D) if ty == 1 else (D, A, B, D)))
    return r
def interleave(mm, rr, per=2):
    rr = list(rr)
    for x in mm:
        a(x)
        for _ in range(per):
            if rr: a(rr.pop(0))
    assert not rr

def main_loop(ty):
    nt = NT1[ty]
    a("s_mov_b32 s%d, 0\ns_mov_b32 s%d, 0\ns_waitcnt lgkmcnt(0)" % (sCnt, sSlot))
    stamp(3)
    a("s_barrier")
    stamp(4)
    for x in frag_reads(ty, F0, 0): a(x)
    a("s_cmp_eq_u32 s%d, 0\ns_cbranch_scc1 L_ent%d\ns_cmp_lg_u32 s%d, 0\ns_cbranch_scc1 L_cs1%d" % (sA, ty, sM, ty))
    rr = frag_reads(ty, F1, 1)[4:]
    for m in range(2):
        tl = list(range(0, 3 - ty)) if m == 0 else list(range(3 - ty, nt))
        for t in tl: a(rr[2*t]); a(rr[2*t + 1])
        a("s_waitcnt lgkmcnt(%d)" % (2 * len(tl)))
        for k, t in enumerate(tl): mf(252, F0 + 16 + 4*t, 176 + 4*k, k == 0)
        a("s_waitcnt lgkmcnt(0)")
        for k, t in enumerate(tl): mf(252, F1 + 16 + 4*t, 176 + 4*k)
        a("s_mov_b32 s3, 0x%x" % (((1 << len(tl)) - 1) * 0x10001))
        if m == 0: a("s_branch L_cs2%d" % ty); a.label("L_cs1%d" % ty)
    a.label("L_cs2%d" % ty)
    a("s_nop 6")
    for k in range(4): a("v_bfi_b32 v%d, v5, s%d, v%d" % (252 + k, TB[k], 252 + k))
    a("s_mov_b32 exec_lo, s3\ns_mov_b32 exec_hi, s3\nbuffer_store_dwordx4 v[252:255], v4, %s, s%d offen sc1\ns_mov_b64 exec, -1" % (S(S_WS), sA))
    a.label("L_ent%d" % ty)
    a("s_waitcnt lgkmcnt(0)\ns_branch L_mid%d" % ty)
    upd = ["v_add_u32_e64 v%d, s%d, v%d" % (r, sT1, r) for r in [vA0, vA1] + [vW + t for t in range(2 if ty == 0 else 4)]]
    sal = "s_add_u32 s%d, s%d, 1\ns_cmp_eq_u32 s%d, 3\ns_cselect_b32 s%d, 0, s%d\ns_mov_b32 s%d, %d\ns_cselect_b32 s%d, %d, s%d\ns_add_u32 s%d, s%d, 1" % (sSlot, sSlot, sSlot, sSlot, sSlot, sT1, SLOT, sT1, (-2*SLOT) & 0xffffffff, sT1, sCnt, sCnt)
    align8()
    a.label("L_top%d" % ty)
    a("s_barrier\ns_nop 0")
    interleave(mfmas(ty, F1), frag_reads(ty, F0, 0))
    a("s_waitcnt %slgkmcnt(0)\ns_nop 0" % ("vmcnt(0) " if ty == OPT["jty"] else ""))
    a.label("L_mid%d" % ty)
    interleave(mfmas(ty, F0), frag_reads(ty, F1, 1) + [sal] + upd)
    a("s_cmp_lt_u32 s%d, 10\ns_waitcnt lgkmcnt(0)\ns_cbranch_scc1 L_top%d" % (sCnt, ty))
    a("v_mov_b32 v6, %d\nv_mov_b32 v7, 1\ns_mov_b64 exec, 1\nds_add_u32 v6, v7 offset:%d\ns_mov_b64 exec, -1" % (LFLAG, LF_RING))
    order = [(t, i) for i in range(4) for t in range(5)] if ty == 0 else [(t, i) for g in ((0, 1), (2, 3)) for i in range(4) for t in g]
    for x in mfmas(ty, F1, order): a(x)
    stamp(5); stamp(1, 1)
    lds_wait(LF_ST, None, 4, 4, 0)
    stamp(2, 1)
def csig(off): a("s_mov_b64 exec, 1\nds_add_u32 v6, v7 offset:%d\ns_mov_b64 exec, -1" % off)

def epilogue_kv():
    R4S = 88; CTs = [120, 122, 166, 168, 170]; KC = 124; TMP = 128; T2P = 152
    a("v_and_b32 v4, 15, v0\nv_lshlrev_b32 v4, 2, v4\ns_lshl_b32 s3, s%d, 8\ns_add_u32 s3, s3, %d\nv_and_b32 v3, 48, v0\nv_add_u32 v3, s3, v3\ns_mul_i32 s3, s%d, 320\ns_add_u32 s3, s3, %d\nv_add_u32 v4, s3, v4" % (sM, STATL, sN, CSL))
    for t in range(5): a("ds_read_b32 v%d, v4 offset:%d" % (CTs[t], 64*t))
    for i in range(4): a("ds_read_b128 %s, v3 offset:%d\nds_read_b128 %s, v3 offset:%d" % (R4(R4S + 16 + 4*i), 512 + 64*i, R4(R4S + 4*i), 64*i))
    a("ds_read_b32 v172, v6 offset:%d\ns_waitcnt vmcnt(0)" % LF_RING)
    consts(KC)
    a("v_and_b32 v5, 8, v0\nv_cmp_eq_u32 vcc, 0, v5\nv_mov_b32 v160, 0x3f803f80\ns_lshl_b32 s3, s%d, 13\nv_cndmask_b32 v5, 0, v%d, vcc\nv_add_u32 v161, s3, v1\nv_mov_b32 v4, v5" % (sWV, KC + 3))
    prods = [(0,2),(0,3),(1,2),(1,3),(1,4),(2,2),(2,3),(2,4)]
    KD = [acc(1, t) for t in range(5)] + [R4S, R4S + 4, R4S + 16]
    def kvm(ksr):
        return ["v_mfma_f32_16x16x32_bf16 %s, %s, %s, %s" % (R4(KD[k]), R4(acc(2*ksr, ti)), R4(T2P + 4*ksr) if tj == 2 else R4(acc(2*ksr, tj)), "0" if ksr == 0 else R4(KD[k])) for k, (ti, tj) in enumerate(prods)]
    for i in range(4):
        a("s_waitcnt lgkmcnt(%d)" % (7 - 2*i))
        align8()
        def body():
            for t in range(5):
                for q in range(2):
                    u = TMP + 4*t + 2*q; rm = R2(R4S + 16 + 4*i + 2*q); c = R2(CTs[t])
                    if t < 2: a("v_pk_fma_f32 %s, %s, %s, %s op_sel:[0,0,1] op_sel_hi:[1,0,1] neg_lo:[1,0,0] neg_hi:[1,0,0]" % (R2(u), rm, c, R2(KC + 2)))
                    elif t == 2: a("v_pk_fma_f32 %s, %s, %s, v[4:5] op_sel:[0,0,0] op_sel_hi:[1,0,1] neg_lo:[1,0,0] neg_hi:[1,0,0]" % (R2(u), rm, c))
                    else: a("v_pk_mul_f32 %s, %s, %s op_sel:[0,0] op_sel_hi:[1,0] neg_lo:[1,0] neg_hi:[1,0]" % (R2(u), rm, c))
            for t in range(5):
                for q in range(2):
                    h = acc(i, t) + 2*q; u = TMP + 4*t + 2*q
                    a("v_pk_fma_f32 %s, %s, %s, %s" % (R2(h), R2(R4S + 4*i + 2*q), R2(h), R2(u)))
            a("v_cvt_pk_bf16_f32 v%d, v%d, v%d\nv_cvt_pk_bf16_f32 v%d, v%d, v%d" % (TMP+20, acc(i,2), acc(i,2)+1, TMP+21, acc(i,2)+2, acc(i,2)+3))
            phi_pairs([(acc(i, t) + 2*q, TMP + 4*t + 2*q) for t in range(3) for q in range(2)], KC)
            e = 2 * (i >> 1); o = 2 * (i & 1)
            a("v_cndmask_b32 v%d, v%d, v160, vcc\nv_cndmask_b32 v%d, v%d, v160, vcc" % (T2P + 4*(i>>1) + o, TMP+20, T2P + 4*(i>>1) + o + 1, TMP+21))
            for t in (3, 4, 0, 1, 2):
                a("v_cvt_pk_bf16_f32 v%d, v%d, v%d\nv_cvt_pk_bf16_f32 v%d, v%d, v%d" % (acc(e,t)+o, acc(i,t), acc(i,t)+1, acc(e,t)+o+1, acc(i,t)+2, acc(i,t)+3))
        lines = capture(body); mm = kvm(0) if i == 2 else []
        bq = memchunks(capture(lambda: loadB(i, False))) if i < OPT["nbe"] else []
        for k, ln in enumerate(lines):
            a(ln)
            if k >= 28 and k % 2 == 1 and mm: a(mm.pop(0))
            if bq and k % 12 == 11: a(bq.pop(0))
        assert not mm and not bq
    a("s_nop 1")
    for x in kvm(1): a(x)
    lds_wait(LF_RING, None, 8, 162, 0)
    for k in range(8): a("ds_write_b128 v161, %s offset:%d" % (R4(KD[k]), XK + 1024 * k))
    a("s_lshl_b32 s%d, s%d, 4\ns_mul_i32 s%d, s%d, %d\ns_add_u32 s%d, s%d, 0x%x\ns_mul_i32 s3, s%d, %d\ns_add_u32 s%d, s%d, s3\ns_lshl_b32 s3, s%d, 10\ns_add_u32 s%d, s%d, s3" % (sT2, sJJ, sT2, sT2, KVP_STRIDE, sT2, sT2, KVP_OFF, sRB, KVP_STRIDE, sT1, sT2, sWV, sT1, sT1))
    a("v_add_u32 v3, s3, v1\nv_cmp_gt_u32 vcc, %d, v3\nv_mov_b32 v4, 0x%x\nv_mov_b32 v3, 0xff\nv_cndmask_b32 v4, v4, v2, vcc\ns_waitcnt lgkmcnt(0)" % ((420 - 256)*16, OOB))
    csig(LF_XK)
    stamp(7); stamp(3, 1)
    a("s_mul_i32 s%d, s%d, %d\ns_add_u32 s%d, s%d, 0x%x" % (sH, sJJ, KVP_STRIDE, sH, sH, RED_OFF))
    a("s_lshl_b32 s%d, s%d, 2\ns_add_u32 s%d, s%d, s%d\ns_lshl_b32 s3, s%d, 7\ns_add_u32 s%d, s%d, s3\ns_add_u32 s%d, s%d, s3\ns_add_u32 s%d, s%d, %d" % (sA, sRB, sA, sA, sWV, sA, sT2, sT2, sH, sH, sT3, sT2, 8*KVP_STRIDE))
    a("s_cmp_eq_u32 s%d, 52\ns_cselect_b32 s3, 3, 7\nv_and_b32 v165, s3, v0\nv_lshlrev_b32 v165, 4, v165\nv_lshrrev_b32 v164, 3, v0\nv_mul_u32_u24 v164, %d, v164\nv_add_u32 v164, v164, v165" % (sA, KVP_STRIDE))
    lds_wait(LF_XK, None, 4, 162, 0)
    a("ds_read_b128 v[8:11], v174\nds_read_b128 v[12:15], v174 offset:16384\nds_read_b128 v[16:19], v175\nds_read_b128 v[20:23], v175 offset:16384\ns_waitcnt lgkmcnt(2)")
    for k in range(2): padd(8 + 2*k, 8 + 2*k, 12 + 2*k, True)
    for k in range(4): a("v_bfi_b32 v%d, v3, s%d, v%d" % (8 + k, TB[k], 8 + k))
    a("buffer_store_dwordx4 v[8:11], v1, %s, s%d offen sc1\ns_waitcnt lgkmcnt(0)" % (S(S_WS), sT1))
    for k in range(2): padd(16 + 2*k, 16 + 2*k, 20 + 2*k, True)
    for k in range(4): a("v_bfi_b32 v%d, v3, s%d, v%d" % (16 + k, TB[k], 16 + k))
    a("buffer_store_dwordx4 v[16:19], v4, %s, s%d offen sc1" % (S(S_WS), sT1))
    csig(LF_Q)
    stamp(4, 1)
    a("s_cmp_gt_u32 s%d, 52\ns_cbranch_scc1 L_nored\ns_mov_b32 s%d, %d\ns_waitcnt vmcnt(0)" % (sA, sSpin, SPIN))
    a.label("L_red")
    a("buffer_load_dwordx4 v[8:11], v164, %s, s%d offen sc1\nbuffer_load_dwordx4 v[12:15], v164, %s, s%d offen sc1\ns_waitcnt vmcnt(0)" % (S(S_WS), sT2, S(S_WS), sT3))
    tagchk(16, list(range(8, 16)))
    a("s_cbranch_vccz L_redok\ns_sleep 1\ns_sub_u32 s%d, s%d, 1\ns_cbranch_scc0 L_red" % (sSpin, sSpin))
    a.label("L_redok")
    for k in range(2): padd(8 + 2*k, 8 + 2*k, 12 + 2*k, True)
    a("s_nop 1")
    for k in range(4): a("v_add_f32_dpp v%d, v%d, v%d row_ror:8 row_mask:0xf bank_mask:0xf" % (8 + k, 8 + k, 8 + k))
    for op in ("v_permlane16_swap_b32", "v_permlane32_swap_b32"):
        for k in range(4): a("v_mov_b32 v%d, v%d" % (12 + k, 8 + k))
        a("s_nop 1")
        for k in range(4): a("%s v%d, v%d" % (op, 8 + k, 12 + k))
        a("s_nop 0")
        for k in range(2): padd(8 + 2*k, 8 + 2*k, 12 + 2*k, True)
    for k in range(4): a("v_bfi_b32 v%d, v3, s%d, v%d" % (8 + k, TB[k], 8 + k))
    a("s_mov_b64 exec, 0xff\nbuffer_store_dwordx4 v[8:11], v165, %s, s%d offen sc1\ns_mov_b64 exec, -1" % (S(S_WS), sH))
    a.label("L_nored")
    for s in range(OPT["nbe"], 4): loadB(s, False)

def epilogue_qh():
    CT = 88; RS = 104; BF = 124; KC = 140; TMP = 144
    a("v_and_b32 v4, 15, v0\nv_lshlrev_b32 v4, 2, v4\ns_lshl_b32 s3, s%d, 8\ns_add_u32 s3, s3, %d\nv_add_u32 v4, s3, v4\ns_lshl_b32 s3, s%d, 8\ns_add_u32 s3, s3, %d\nv_and_b32 v3, 48, v0\nv_add_u32 v3, s3, v3" % (sM, STATL, sN, CSL))
    for t in range(4): a("ds_read_b128 %s, v3 offset:%d" % (R4(CT + 4*t), 64*t))
    for i in range(4): a("ds_read2_b32 %s, v4 offset0:%d offset1:%d" % (R2(RS + 2*i), 16*i, 128 + 16*i))
    a("ds_read_b32 v5, v6 offset:%d" % (FASTL - LFLAG))
    a2_soff(sT2, sM, lambda: a("s_mul_i32 s3, s%d, 6\ns_lshl_b32 s%d, s%d, 1\ns_add_u32 s3, s3, s%d\ns_add_u32 s3, s3, 2" % (sJJ, sT1, sN, sT1)))
    flag_off(sT1, sT2, sM)
    a("s_add_u32 s%d, s%d, 4096\ns_add_u32 s%d, s%d, 4\ns_waitcnt vmcnt(0)" % (sT3, sT2, sA, sT1))
    for k in range(8): unpack(BF + 2*k, vB1 + k)
    consts(KC)
    a("s_waitcnt lgkmcnt(0)\nv_readfirstlane_b32 s%d, v5" % sFAST)
    vm = VM(); nb = 0
    for u in range(2):
        for i in range(4):
            P = [(acc(i, 2*u + q//2) + 2*(q % 2), CT + 4*(2*u + q//2) + 2*(q % 2), BF + 4*(2*u + q//2) + 2*(q % 2), TMP + 2*q) for q in range(4)]
            sv = OPT["hz"]; OPT["hz"] = sv & ~512
            lines = capture(lambda: gelu(P, RS + 2*i, KC, P[0][0], False)); OPT["hz"] = sv
            bq = []
            if i in (1, 2) and nb < OPT["nbe"]: bq = memchunks(capture(lambda: loadB(nb, False))); nb += 1; vm.add("B", 5)
            for k, ln in enumerate(lines):
                if ln.startswith(".p2"): a.raw(ln)
                else: a(ln)
                if bq and k % 8 == 0 and k: a(bq.pop(0))
            assert not bq
            st_a2("buffer_store_dwordx4 %s, v1, %s, s%d offen offset:%d" % (R4(P[0][0]), S(S_WS), (sT2, sT3)[u], 1024*i)); vm.add("H%d" % u)
            if u == 1 and i == 0: put_flag(sT1, 1, 152)
        if u == 0:
            stamp(3, 1)
            if OPT["go"] == 1: csig(LF_GO)
    if OPT["go"] == 2: csig(LF_GO)
    stamp(6); stamp(4, 1)
    lds_wait(LF_RING, None, 8, 152, 0)
    a("v_mov_b32 v152, 0\nv_mov_b32 v153, 0\nv_mov_b32 v154, 0\nv_mov_b32 v155, 0\ns_lshl_b32 s3, s%d, 12\nv_add_u32 v3, s3, v1" % sWV)
    for k in range(4): a("ds_write_b128 v3, v[152:155] offset:%d" % (IMG + 1024*k))
    put_flag(sA, 0, 156)
    a("s_waitcnt lgkmcnt(0)"); csig(LF_IMG)
    for s in range(nb, 4): loadB(s, False)
    stamp(7)

def gemm2_early():
    stamp(8); stamp(5, 1)
    vm = VM()
    vF, vG, vR, vP, vL = 148, 150, 152, 158, 159
    X0 = 160; XB = Breg(6, 0, False); B2F = XB + 4; XS0 = Areg(6, 0, False)
    def XS(i, k): return XS0 + 8*i + 2*k
    a("s_lshl_b32 s%d, s%d, 9\ns_add_u32 s%d, s%d, 0x%x\ns_lshl_b32 s3, s%d, 2\ns_add_u32 s%d, s%d, s3" % (sT3, sRT, sT3, sT3, FH, sK0, sT3, sT3))
    a("v_lshlrev_b32 v3, 2, v0\ns_mov_b64 exec, 0xfff\nbuffer_load_dword v%d, v3, %s, s%d offen%s\ns_mov_b64 exec, -1" % (vF, S(S_WS), sT3, PLD))
    a("s_mul_i32 s3, s%d, 40\nv_add_u32 v84, s3, v0\nv_mul_u32_u24 v85, 6554, v84\nv_lshrrev_b32 v85, 16, v85\nv_mul_u32_u24 v86, 10, v85\nv_sub_u32 v84, v84, v86" % sWV)
    a("v_mul_u32_u24 v86, 1280, v85\nv_lshl_add_u32 v%d, v84, 4, v86\nv_lshlrev_b32 v%d, 4, v84" % (vG, vG + 1))
    a("v_mov_b32 v86, 0x%x\nv_cmp_gt_u32 vcc, 40, v0\ns_mul_i32 s%d, s%d, %d\ns_mul_i32 s%d, s%d, 160\nv_cndmask_b32 v%d, v86, v%d, vcc\ns_add_u32 s%d, s%d, s%d" % (OOB, sT1, sRT, 64*1280, sT2, sCT, vG, vG, sT1, sT1, sT2))
    a("v_and_b32 v85, 15, v85\nv_bfe_u32 v86, v85, 1, 2\nv_lshlrev_b32 v84, 1, v84\nv_xor_b32 v84, v84, v86\nv_mul_u32_u24 v85, 320, v85\nv_lshl_add_u32 v%d, v84, 4, v85\nv_xor_b32 v%d, 16, v%d" % (vR, vR + 1, vR))
    for k in range(1, 3): a("v_add_u32 v%d, %d, v%d\nv_add_u32 v%d, %d, v%d" % (vR + 2*k, 2*k*PREG, vR, vR + 1 + 2*k, 2*k*PREG, vR + 1))
    paddr(vP, 84, 85)
    a("s_mul_i32 s3, s%d, %d\nv_add_u32 v%d, s3, v%d\ns_waitcnt vmcnt(0)\nv_cmp_ne_u32 vcc, s%d, v%d\ns_mov_b32 s%d, vcc_lo" % (sWV, PREG, vP, vP, sTAG, vF, sK1))
    def gate(ks, name):
        mask = sum(1 << k for k in ks)
        a("s_and_b32 s3, s%d, 0x%x\ns_cbranch_scc1 L_g%s" % (sK1, mask, name))
        a.label("L_g%s_b" % name)
        OUTLINE.extend(["L_g%s:" % name, "  s_mov_b32 s%d, %d" % (sSpin, SPIN), "  s_mov_b64 exec, 0xfff", "L_g%s_l:" % name,
            "  buffer_load_dword v%d, v3, %s, s%d offen%s" % (vF, S(S_WS), sT3, PLD), "  s_waitcnt vmcnt(0)", "  v_cmp_ne_u32 vcc, s%d, v%d" % (sTAG, vF), "  s_mov_b32 s%d, vcc_lo" % sK1,
            "  s_and_b32 s3, s%d, 0x%x" % (sK1, mask), "  s_cbranch_scc0 L_g%s_d" % name, "  s_sleep %d" % OPT["slp"], "  s_sub_u32 s%d, s%d, 1" % (sSpin, sSpin), "  s_cbranch_scc0 L_g%s_l" % name,
            "L_g%s_d:" % name, "  s_mov_b64 exec, -1", "  s_branch L_g%s_b" % name])
    gate(KS_C[:4], "a")
    stamp(9); stamp(6, 1); stamp(1, 2)
    for s in range(4): loadA(s, False); vm.add("A%d" % s, 4)
    carry = []
    if OPT["yld"]: lds_addr(vL, LF_Y, sWV); a("ds_read_b32 v%d, v%d" % (vF + 1, vL))
    def yield_check():
        l = a.newlabel("Ly")
        a("s_waitcnt lgkmcnt(0)\nv_cmp_eq_u32 vcc, 1, v%d\ns_cbranch_vccnz %s" % (vF + 1, l))
        a.label(l + "_b")
        OUTLINE.extend([l + ":", "  s_mov_b32 s%d, %d" % (sSpin, SPIN), l + "_l:", "  s_sleep 1", "  ds_read_b32 v%d, v%d" % (vF + 1, vL), "  s_waitcnt lgkmcnt(0)", "  v_cmp_eq_u32 vcc, 1, v%d" % (vF + 1),
                        "  s_cbranch_vccz %s_b" % l, "  s_sub_u32 s%d, s%d, 1" % (sSpin, sSpin), "  s_cbranch_scc0 %s_l" % l, "  s_branch %s_b" % l])
    GK = OPT["gk"]
    for s in range(8):
        vm.wait("A%d" % s, "B%d" % s)
        if OPT["yld"]:
            a("ds_read_b32 v%d, v%d" % (vF + 1, vL)); yield_check()
        stamp(2 + s, 2)
        mm = capture(lambda: g2_step(s, False))
        fill = []
        for (lines, lab, n) in carry: fill += memchunks(lines); vm.add(lab, n)
        carry = []
        gap = max(1, 19 // max(1, len(fill)))
        for k, x in enumerate(mm):
            a(x)
            if fill and (k + 1) % gap == 0: a(fill.pop(0))
        for x in fill: a(x)
        if s == GK - 1:
            vm.wait("F2")
            a("v_cmp_ne_u32 vcc, s%d, v%d\ns_mov_b32 s%d, vcc_lo" % (sTAG, vF, sK1))
        if s + 4 < 10:
            if s == 0: gate(KS_C[4:8], "b")
            carry.append((capture(lambda: loadB(s + 4, False)), "B%d" % (s + 4), 5))
            if s + 4 < 8 or s > GK: carry.append((capture(lambda: loadA(s + 4, False)), "A%d" % (s + 4), 4))
        if s == GK:
            gate(KS_C[8:10], "k")
            for q in range(8, min(10, s + 5)):
                if s < 7: carry.append((capture(lambda: loadA(q, False)), "A%d" % q, 4))
                else: loadA(q, False); vm.add("A%d" % q, 4)
        if s == GK - 3:
            a("s_mov_b64 exec, 0xfff\nbuffer_load_dword v%d, v3, %s, s%d offen%s\ns_mov_b64 exec, -1" % (vF, S(S_WS), sT3, PLD)); vm.add("F2")
        if s == 6:
            def xl():
                for i in range(4): a("s_add_u32 s3, s%d, %d\nbuffer_load_dwordx4 %s, v%d, %s, s3 offen" % (sT1, 16*1280*i, R4(X0 + 4*i), vG, S(S_X)))
                a("buffer_load_dwordx4 %s, v%d, %s, s%d offen" % (R4(XB), vG + 1, S(S_B2), sT2))
            carry.append((capture(xl), "X", 5))
    assert not carry
    lds_wait(LF_Z, None, 4, vF, 1)
    lds_wait(LF_Q, None, 4, vF, 1)
    vm.wait("A9", "B9")
    stamp(10, 2)
    pend = []
    for i in range(4):
        k = 0
        for s in (8, 9):
            for t in range(5):
                mf(Dreg(i, t), Breg(s, t, False), Areg(s, i, False))
                k += 1
                if pend and k >= 4: a(pend.pop(0))
        pend = ["ds_write_b128 v%d, %s offset:%d" % (vP, R4(Dreg(i, t)), 5120*i + 64*t) for t in range(5)]
    stamp(10); stamp(7, 1); stamp(11, 2)
    vm.wait("X")
    for k in range(2): unpack(B2F + 2*k, XB + k)
    for x in pend: a(x)
    for k in range(2, 4): unpack(B2F + 2*k, XB + k)
    lds_addr(vF, LF_PRE, None)
    a("v_mov_b32 v%d, 1" % vL)
    for i in range(4):
        for k in range(4): unpack(XS(i, k), X0 + 4*i + k)
        if i == 0: a("s_mov_b64 exec, 1\ns_waitcnt lgkmcnt(0)\nds_add_u32 v%d, v%d\ns_mov_b64 exec, -1" % (vF, vL))
        for k in range(4): padd(XS(i, k), XS(i, k), B2F + 2*k, True)
    lds_wait_ge(LF_PRE, 4, vF)
    stamp(8, 1)
    RD = 4
    def loc(i, p):
        if p < 4: return p >> 1, (p & 1) * PREG + 5120*i
        p -= 4
        if i < 3: return 2, p * 15360 + 5120*i
        return p >> 1, (p & 1) * PREG
    def rdsum(i, ps):
        for j, p in enumerate(ps):
            b, off = loc(i, p)
            a("ds_read_b128 %s, v%d offset:%d\nds_read_b128 %s, v%d offset:%d" % (R4(RD + 32*(i & 1) + 8*j), vR + 2*b, off, R4(RD + 32*(i & 1) + 8*j + 4), vR + 1 + 2*b, off))
    def addsum(i, base, last=False):
        for j in range(4):
            a("s_waitcnt lgkmcnt(%d)" % (base + 6 - 2*j))
            for k in range(4): padd(XS(i, k), XS(i, k), RD + 32*(i & 1) + 8*j + 2*k, not last)
    a("s_mov_b32 exec_hi, 0xff")
    rdsum(0, range(4))
    for i in range(4):
        if i < 3: rdsum(i + 1, range(4))
        addsum(i, 8 if i < 3 else 0)
        if i == 0: a("s_mov_b64 exec, 1\nds_add_u32 v%d, v%d\ns_mov_b32 exec_lo, -1\ns_mov_b32 exec_hi, 0xff\ns_waitcnt lgkmcnt(0)" % (vF, vL))
    stamp(11); stamp(9, 1); stamp(12, 2)
    a("s_setprio 1")
    for i in range(4):
        lds_wait(LF_T + 4*i, None, 4, vF, 1 if i < 3 else 0)
        rdsum(i, range(4, 8))
        a("s_add_u32 s3, s%d, %d" % (sT1, 16*1280*i))
        addsum(i, 0, i == 3)
        for k in range(4): a("v_cvt_pk_bf16_f32 v%d, v%d, v%d" % (XS(i, 0) + k, XS(i, k), XS(i, k) + 1))
        a("buffer_store_dwordx4 %s, v%d, %s, s3 offen%s" % (R4(XS(i, 0)), vG, S(S_OUT), LDF[OPT["ost"]]))
    a("s_mov_b64 exec, -1")
    stamp(12)

hdr = open("cdna_kernels/%s.s.ref" % BASE).read().split("; Override")[0]
a.raw(hdr.rstrip())
a.raw("; @launch grid=(256,1,1) block=(512,1,1) lds=163840")
a.raw('.amdgcn_target "amdgcn-amd-amdhsa--gfx950"\n.text')
kernel_header(a, KNAME)
a("s_cmp_ge_u32 s2, 256\ns_cbranch_scc1 L_end")
a("s_load_dwordx16 s[36:51], s[0:1], 0\ns_load_dwordx4 s[52:55], s[0:1], 64\ns_load_dwordx2 s[56:57], s[0:1], 80")
a("v_lshrrev_b32 v1, 6, v0\nv_and_b32 v0, 63, v0\nv_readfirstlane_b32 s%d, v1" % sWV)
if OPT["cpf"]:
    a("s_getpc_b64 s[%d:%d]\nL_pc0:\ns_and_b32 s3, s2, 0xf8\ns_add_u32 s3, s3, s%d\ns_mul_i32 s3, s3, 192\ns_min_u32 s3, s3, L_tend-L_pc0-192" % (sEX, sEX+1, sWV))
    for k in range(3): a("s_load_dword s%d, s[%d:%d], s3\ns_add_u32 s3, s3, 64" % (sSpin, sEX, sEX+1))
stamp_init(); stamp(0)
a("s_bfe_u32 s%d, s2, 0x10006" % sTY)
a("s_and_b32 s3, s2, 7\ns_lshl_b32 s3, s3, 1\ns_bfe_u32 s%d, s2, 0x10003\ns_add_u32 s%d, s%d, s3" % (sRB, sRB, sRB))
a("s_bfe_u32 s3, s2, 0x20004\ns_lshr_b32 s%d, s2, 7\ns_lshl_b32 s%d, s%d, 2\ns_add_u32 s%d, s%d, s3" % (sJJ, sJJ, sJJ, sJJ, sJJ))
a("s_and_b32 s3, s2, 7\ns_lshl_b32 s3, s3, 2\ns_bfe_u32 s%d, s2, 0x20003\ns_add_u32 s%d, s%d, s3\ns_lshr_b32 s%d, s2, 5" % (sRT, sRT, sRT, sCT))
a("s_cmp_lt_u32 s%d, 4\ns_cbranch_scc1 L_compute" % sWV)
loader()
a.label("L_compute")
compute_prologue()
a("s_cmp_lg_u32 s%d, 0\ns_cbranch_scc1 L_cqh" % sTY)
main_loop(0); epilogue_kv(); a("s_branch L_g2early")
a.label("L_cqh")
main_loop(1); epilogue_qh()
a.label("L_g2early")
gemm2_early()
a.label("L_alldone")
stamp_store()
a("s_cmp_lg_u32 s2, 0\ns_cbranch_scc1 L_end\ns_cmp_lg_u32 s%d, 4\ns_cbranch_scc1 L_end" % sWV)
a("s_mov_b32 s3, 0x%x\nv_mov_b32 v2, s%d\nv_mov_b32 v3, 0\ns_mov_b64 exec, 1\nbuffer_store_dword v2, v3, %s, s3 offen sc1" % (EPOCH, sTAG, S(S_WS)))
a.label("L_end")
a("s_endpgm")
a.lines.extend(OUTLINE)
a.raw(".p2align 7\n.type L_table,@object\nL_table:")
T = make_table()
for i in range(0, len(T), 8): a.raw("  .long " + ", ".join(str(x) for x in T[i:i+8]))
a.raw(".size L_table, %d\n.set L_tend, L_table + %d" % (4 * len(T), 4 * len(T)))
a.raw('.section .rodata,"a"')
kernel_desc(a, KNAME, 256, 102)
sys.stdout.write(a.text())
```

```python
import sys, struct
from asmlib import *
BASE = "parallel_sum__linear_attn_block__dense_activation_gelu__prompt"
KNAME = BASE + "_kernel"
OPT = dict(stamps=0, sm=0, probe=-1, pcls=0, cp2=0, slp=2, n1=3, cpf=2, win=2, xmap=1, fast=1, kvu=0, qord=0, cprio=0, thr=0, touch=0, shift=2, nojob=0, norot=0, lst=0, kvd=6, lp=3, n2=2, ald=0, bld=0, pld=0, wb=0, wbw=0, ost=1, qk=0, qq=0, mrg=1, s1e=0, kvb=0, ap=1, afirst=1, il=1, qb=0, yld=0, sco=1, scp=1, swp=1, gh=2, bl=0, jst=1, lvm=1)
for arg in sys.argv[1:]:
    k, v = arg.split("="); assert k in OPT, k; OPT[k] = int(v)
STAMPS = OPT["stamps"]
f32 = lambda x: struct.unpack("<I", struct.pack("<f", x))[0]

B2_OFF = 0x900000
KVP_OFF = 0xC00000; KVP_STRIDE = 6912
STAT_OFF = 0xD00000
FLAG_OFF = 0xD10000
EPOCH = FLAG_OFF; FWG = FLAG_OFF + 0x1000; FH = FLAG_OFF + 0x4000
CSP_OFF = 0xD20000
RED_OFF = 0xD50000
STAMP_OFF = 0xE00000
WS_SIZE = 0x1000000
OOB = 0x7f000000
SLOT = 45184
K_OFF = 16384; V_OFF = 26640; HKV_OFF = 36992; HQ_OFF = 26624
JOBL = 2 * SLOT
IMG = 147456
LFLAG = 160000; TAGL = 160064; FASTL = 160128
LF_IMG, LF_XK, LF_PRE, LF_Q, LF_PQ, LF_B, LF_T = 0, 4, 8, 12, 16, 32, 48
GAL = 156672; STATL = 160768; CSL = 161792
EBS = 30720
XK = 122880; PQL = 122880
SPIN = 200000
NKVU = 128 * OPT["kvu"]; NQU = 680 - NKVU; QPER = -(-NQU // 512)
S_X, S_J, S_W1, S_WS, S_P, S_OUT, S_B1, S_B2 = 4, 8, 12, 16, 20, 24, 28, 32
sRB, sJJ, sTY, sWV, sTAG, sM, sN = 58, 59, 60, 61, 62, 63, 64
sT1, sT2, sT3 = 65, 66, 67
sLA, sLP, sLP4, sLH, sIncP, sA, sP, sH, sSlot, sCnt = 68, 69, 70, 71, 72, 73, 74, 75, 76, 77
sORD = 76
sEX = 78; sSpin = 80; sRT, sCT = 81, 82
sK0, sK1, sK2 = 83, 84, 85
sST = 86
sAo0, sAo1, sAo2, sBo0, sBo1, sBo2 = 36, 37, 38, 39, 42, 43
TB = [40, 41, 48, 49]
sDL = 56
sAoF, sBoF, sBoE = 44, 45, 55
sFAST = 54; sPC = 46

a = Asm()
LDF = {0: ' sc1', 1: '', 2: ' nt'}
ALD = LDF[OPT['ald']]; BLD = LDF[OPT['bld']]; PLD = LDF[OPT['pld']]
OUTLINE = []
def srd(d, p, n): a("s_mov_b32 s%d, s%d\ns_mov_b32 s%d, s%d\ns_mov_b32 s%d, 0x%x\ns_mov_b32 s%d, 0x20000" % (d, p, d+1, p+1, d+2, n, d+3))
def S(d): return "s[%d:%d]" % (d, d+3)
def R4(b): return "v[%d:%d]" % (b, b + 3)
def R2(b): return "v[%d:%d]" % (b, b + 1)
def align8(): a.raw(".p2align 3")

def stamp(idx, mode=0):
    if mode == 0 and OPT["probe"] == idx:
        a("s_memrealtime s[%d:%d]\ns_waitcnt lgkmcnt(0)\ns_mov_b32 s%d, s%d" % (sST, sST+1, sST + 2, sST))
    if not STAMPS or (mode != OPT["sm"] and idx not in (0, 13)): return
    a("s_memrealtime s[%d:%d]\ns_waitcnt lgkmcnt(0)\ns_mov_b32 s%d, s%d" % (sST, sST+1, sST + 2 + idx, sST))
def stamp_init():
    if STAMPS:
        for i in range(14): a("s_mov_b32 s%d, 0" % (sST + 2 + i))
def stamp_store():
    if OPT["probe"] >= 0:
        a("s_waitcnt vmcnt(0)")
        stamp(13)
        a("s_lshr_b32 s3, s%d, 2\ns_cmp_lg_u32 s3, %d\ns_cbranch_scc1 L_pspd" % (sWV, OPT["pcls"]))
        a.label("L_psp")
        a("s_memrealtime s[%d:%d]\ns_waitcnt lgkmcnt(0)\ns_sub_u32 s3, s%d, s%d\ns_cmp_lt_u32 s3, 10000\ns_cbranch_scc1 L_psp" % (sST, sST+1, sST, sST + 2))
        a.label("L_pspd")
    if not STAMPS: return
    a("s_waitcnt vmcnt(0)")
    stamp(13)
    for i in range(14): a("v_mov_b32 v%d, s%d" % (4 + i, sST + 2 + i))
    a("v_mov_b32 v18, 0\nv_mov_b32 v19, 0\nv_mov_b32 v2, 0\ns_lshl_b32 s3, s2, 3\ns_add_u32 s3, s3, s%d\ns_lshl_b32 s3, s3, 6\ns_add_u32 s3, s3, 0x%x\ns_mov_b64 exec, 1" % (sWV, STAMP_OFF))
    for i in range(4): a("buffer_store_dwordx4 v[%d:%d], v2, %s, s3 offen offset:%d" % (4 + 4*i, 7 + 4*i, S(S_WS), 16*i))
    a("s_mov_b64 exec, -1")

class VM:
    def __init__(self): self.q = []
    def add(self, lab, n=1): self.q += [lab] * n
    def wait(self, *labs):
        idx = [i for i, x in enumerate(self.q) if x in labs]
        if not idx: return
        n = len(self.q) - 1 - max(idx)
        assert n <= 63
        a("s_waitcnt vmcnt(%d)" % n); self.q = self.q[max(idx) + 1:]
def capture(fn):
    n = len(a.lines); fn(); out = a.lines[n:]; del a.lines[n:]; return [x.strip() for x in out]

def st_a2(ops):
    if isinstance(ops, str): ops = [ops]
    if not OPT["fast"]:
        for o in ops: a(o + " sc1")
        return
    l = a.newlabel("Lsl")
    a("s_cmp_lg_u32 s%d, 0\ns_cbranch_scc0 %s" % (sFAST, l))
    for o in ops: a(o)
    a.label(l + "_b")
    OUTLINE.append(l + ":")
    for o in ops: OUTLINE.append("  " + o + " sc1")
    OUTLINE.append("  s_branch %s_b" % l)

def poll(voff, soff, nlanes, vt, name):
    lp = a.newlabel("Lpoll_" + name)
    a("s_mov_b32 s%d, %d\ns_mov_b64 exec, 0x%x" % (sSpin, SPIN, (1 << nlanes) - 1))
    a.label(lp)
    a("buffer_load_dword v%d, v%d, %s, s%d offen%s\ns_waitcnt vmcnt(0)" % (vt, voff, S(S_WS), soff, PLD))
    a("v_cmp_ne_u32 vcc, s%d, v%d\ns_cbranch_vccz %s_d" % (sTAG, vt, lp))
    a("s_sleep %d\ns_sub_u32 s%d, s%d, 1\ns_cbranch_scc0 %s" % (OPT["slp"], sSpin, sSpin, lp))
    a.label(lp + "_d")
    a("s_mov_b64 exec, -1")
def lds_addr(v, off, sw):
    if sw is None: a("v_mov_b32 v%d, %d" % (v, LFLAG + off))
    else: a("s_lshl_b32 s3, s%d, 2\ns_add_u32 s3, s3, %d\nv_mov_b32 v%d, s3" % (sw, LFLAG + off, v))
def lds_signal(off, sw, v):
    lds_addr(v, off, sw)
    a("v_mov_b32 v%d, 1\ns_mov_b64 exec, 1\nds_add_u32 v%d, v%d\ns_mov_b64 exec, -1" % (v + 1, v, v + 1))
def lds_wait(off, sw, cnt, v, slp=1):
    lp = a.newlabel("Llw"); lds_addr(v, off, sw)
    a("s_mov_b32 s%d, %d" % (sSpin, 20 * SPIN))
    a.label(lp)
    a("ds_read_b32 v%d, v%d\ns_waitcnt lgkmcnt(0)\nv_cmp_ne_u32 vcc, %d, v%d\ns_cbranch_vccz %s_d" % (v + 1, v, cnt, v + 1, lp))
    if slp: a("s_sleep %d" % slp)
    a("s_sub_u32 s%d, s%d, 1\ns_cbranch_scc0 %s" % (sSpin, sSpin, lp))
    a.label(lp + "_d")
def lds_wait_ge(off, cnt, v, slp=1):
    lp = a.newlabel("Llg"); lds_addr(v, off, None)
    a("s_mov_b32 s%d, %d" % (sSpin, 20 * SPIN))
    a.label(lp)
    a("ds_read_b32 v%d, v%d\ns_waitcnt lgkmcnt(0)\nv_cmp_gt_u32 vcc, %d, v%d\ns_cbranch_vccz %s_d" % (v + 1, v, cnt, v + 1, lp))
    if slp: a("s_sleep %d" % slp)
    a("s_sub_u32 s%d, s%d, 1\ns_cbranch_scc0 %s" % (sSpin, sSpin, lp))
    a.label(lp + "_d")
def bf16_round(v): a("v_cvt_pk_bf16_f32 v%d, v%d, v%d\nv_lshlrev_b32 v%d, 16, v%d" % (v, v, v, v, v))
def unpack(dst, src): a("v_lshlrev_b32 v%d, 16, v%d\nv_and_b32 v%d, 0xffff0000, v%d" % (dst, src, dst + 1, src))
def padd(d, x, y, scalar):
    if scalar: a("v_add_f32 v%d, v%d, v%d\nv_add_f32 v%d, v%d, v%d" % (d, x, y, d + 1, x + 1, y + 1))
    else: a("v_pk_add_f32 %s, %s, %s" % (R2(d), R2(x), R2(y)))
def tagchk(acc_, regs):
    a("v_xor_b32 v%d, s%d, v%d" % (acc_, TB[0], regs[0]))
    for k, r in enumerate(regs):
        if k: a("v_bitop3_b32 v%d, v%d, v%d, s%d bitop3:0xf6" % (acc_, acc_, r, TB[k % 4]))
    a("v_and_b32 v%d, 0xff, v%d\nv_cmp_ne_u32 vcc, 0, v%d" % (acc_, acc_, acc_))

G_ACC = 4
KS_C = [2, 4, 8, 10, 0, 1, 6, 7]; KS_L = [2, 4, 8, 10]
def g2_setup(late):
    w = sM if late else sWV
    a("v_lshlrev_b32 v1, 4, v0\nv_add_u32 v2, 4096, v1")
    a("s_mul_i32 s%d, s%d, 12" % (sK0, w))
    if late: a("s_lshl_b32 s%d, s%d, 2\ns_add_u32 s%d, s%d, 48\ns_add_u32 s%d, s%d, 64" % (sK1, w, sK1, sK1, sK2, w))
    a("s_mul_i32 s3, s%d, 68" % sRT)
    for (d, k) in ((sAo0, sK0),) + (((sAo1, sK1), (sAo2, sK2)) if late else ()):
        a("s_add_u32 s%d, s3, s%d\ns_lshl_b32 s%d, s%d, 12" % (d, k, d, d))
    a("s_mul_i32 s3, s%d, 5120\ns_add_u32 s3, s3, 0x%x" % (sCT, B2_OFF))
    for (d, k) in ((sBo0, sK0),) + (((sBo1, sK1), (sBo2, sK2)) if late else ()):
        a("s_mul_i32 s%d, s%d, 40960\ns_add_u32 s%d, s%d, s3" % (d, k, d, d))
    if OPT["swp"]: a("s_xor_b32 s%d, s%d, %d" % (sDL, sTY, 1 if late else 0))
    else: a("s_mov_b32 s%d, %d" % (sDL, 0 if late else 1))
    a("s_lshl_b32 s3, s%d, 12\ns_add_u32 s%d, s%d, s3\ns_mul_i32 s3, s%d, 40960\ns_add_u32 s%d, s%d, s3" % (sDL, sAoF, sAo0, sDL, sBoF, sBo0))
    if late: a("s_sub_u32 s%d, s%d, s3\ns_add_u32 s%d, s%d, 40960" % (sBoE, sBo0, sBoE, sBoE))
def step_off(s, late, bases, stride, dst=3):
    if s < 4: b, k = bases[3], KS_L[s]
    elif not late: b, k = bases[0], KS_C[s]
    elif s < 8: b, k = bases[1], s - 4
    else: b, k = bases[2], 0
    a("s_add_u32 s%d, s%d, %d" % (dst, b, stride * k))
CB67 = [20, 24, 48, 52, 76, 80, 104, 108, 216, 220]
_free = [g for g in range(4, 244, 4) if g not in CB67]
CACC = _free[:20]; CDB = _free[20:30]; CA_ = _free[30:50]
def Dreg(i, t, late): return G_ACC + (i*5 + t) * 4 if late else CACC[i*5 + t]
def Breg(s, t, late):
    if late: return 84 + 20 * (s % 7) + 4*t
    return CDB[5*(s & 1) + t] if s < 6 else CB67[5*(s - 6) + t]
def Areg(s, i, late): return 224 + 16 * (s & 1) + 4*i if late else CA_[4*(s % 5) + i]
def loadB(s, late):
    step_off(s, late, (sBo0, sBo1, sBo2, sBoF), 40960)
    for t in range(4): a("buffer_load_dwordx4 %s, v1, %s, s3 offen offset:%d%s" % (R4(Breg(s, t, late)), S(S_WS), 1024*t, BLD))
    a("buffer_load_dwordx4 %s, v2, %s, s3 offen%s" % (R4(Breg(s, 4, late)), S(S_WS), BLD))
def loadA(s, late):
    step_off(s, late, (sAo0, sAo1, sAo2, sAoF), 4096)
    for i in range(4): a("buffer_load_dwordx4 %s, v1, %s, s3 offen offset:%d%s" % (R4(Areg(s, i, late)), S(S_WS), 1024*i, ALD))
def dmaB(s):
    step_off(s, False, (sBo0, 0, 0, sBoE), 40960)
    a("s_mul_i32 m0, s%d, %d\ns_add_u32 m0, m0, %d\ns_nop 0" % (sM, EBS, 5120*s))
    for t in range(4): a("buffer_load_dwordx4 v1, %s, s3 offen offset:%d%s lds" % (S(S_WS), 1024*t, BLD))
    a("s_add_u32 m0, m0, 4096\ns_nop 0\nbuffer_load_dwordx4 v2, %s, s3 offen%s lds" % (S(S_WS), BLD))
    if OPT["thr"]: a("s_waitcnt vmcnt(%d)" % OPT["thr"])
def a2_soff(dst, m, ks_emit):
    ks_emit()
    a("s_lshl_b32 s%d, s%d, 1\ns_add_u32 s%d, s%d, s%d\ns_mul_i32 s%d, s%d, 68\ns_add_u32 s%d, s%d, s3\ns_lshl_b32 s%d, s%d, 12" % (dst, sRB, dst, dst, m, dst, dst, dst, dst, dst, dst))
def ks_flag(sOff, m, waitn, vt):
    a("s_lshl_b32 s3, s%d, 1\ns_add_u32 s3, s3, s%d\ns_mul_i32 s3, s3, %d\ns_lshr_b32 s%d, s%d, 10\ns_add_u32 s3, s3, s%d\ns_add_u32 s3, s3, 0x%x" % (sRB, m, 512 - 272, sSpin, sOff, sSpin, FH))
    a("v_mov_b32 v%d, s%d\nv_mov_b32 v%d, 0\ns_mov_b64 exec, 1\ns_waitcnt vmcnt(%d)" % (vt, sTAG, vt + 1, waitn))
    st_a2("buffer_store_dword v%d, v%d, %s, s3 offen" % (vt, vt + 1, S(S_WS)))
    a("s_mov_b64 exec, -1\ns_nop 0")
def g2_mfma(D, B, A, first): a("v_mfma_f32_16x16x32_bf16 %s, %s, %s, %s" % (R4(D), R4(B), R4(A), "0" if first else R4(D)))
def g2_flagoff(v, ks):
    packed = sum(k << (4*j) for j, k in enumerate(ks))
    a("v_lshlrev_b32 v%d, 2, v0\ns_mul_i32 s3, s56, 0x1111\ns_add_u32 s3, s3, 0x%x\nv_bfe_u32 v%d, s3, v%d, 4\nv_lshlrev_b32 v%d, 2, v%d" % (v, packed, v, v, v, v))
def g2_step(s, late):
    stamp(2 + s, 2)
    for t in range(5):
        for i in range(4): g2_mfma(Dreg(i, t, late), Breg(s, t, late), Areg(s, i, late), s == 0)
def paddr(v, t1, t2):
    a("v_and_b32 v%d, 15, v0\nv_lshrrev_b32 v%d, 4, v0\nv_bfe_u32 v%d, v0, 1, 2\nv_xor_b32 v%d, v%d, v%d\nv_mul_u32_u24 v%d, 320, v%d\nv_lshl_add_u32 v%d, v%d, 4, v%d" % (v, t1, t2, t1, t1, t2, v, v, v, t1, v))

def make_table():
    T = []
    for ty in range(2):
        for t in range(256):
            ga = []
            for rnd in range(2):
                gi = t + 256 * rnd
                if gi >= 420: ga.append(ga[0]); continue
                n, gi = divmod(gi, 210); hh, gi = divmod(gi, 105); e, dg = divmod(gi, 5)
                DG = 5 * hh + dg; ti, g = DG >> 2, DG & 3
                if ty == 0:
                    col = 0 if e == 20 else 20 * hh + e + 8
                    idx = 3 * ti + (col >> 4) - (1 if ti > 0 else 0)
                    ga.append(XK + n * 8192 + idx * 1024 + (g * 16 + (col & 15)) * 16)
                else:
                    c = 40 + hh if e == 20 else 20 * hh + e
                    ga.append(IMG + n * 4608 + ((c * 4 + g) * 16 + ti * 8 if ti < 2 else 3072 + (c * 4 + g) * 8))
            l = t & 63
            if l >= 56: l = 0
            n, u4 = divmod(l, 28)
            if ty == 0: c4, mul = ((160 + 10*n + u4, 20) if u4 < 10 else (320 + 10*n + u4 - 10, 20) if u4 < 20 else (480 + 8*n + u4 - 20, 48))
            else: c4, mul = ((10*n + u4, 20) if u4 < 10 else (10*n + u4 - 2, 20) if u4 < 12 else (480 + 16 + 16*n + u4 - 12, 48))
            T += [ga[0], ga[1]]
    return T

def order_table(ph):
    wins = {1: [1]*10, 2: [2]*5, 3: [3,3,4], 4: [4,3,3]}[OPT["win"]]
    o = []; b = 0
    for w in wins:
        o += [b + (i + ph) % w for i in range(w)]; b += w
    return sum(x << (4*i) for i, x in enumerate(o))

FLC = 6 if OPT["shift"] >= 2 else 7
def loader():
    lw = sM
    def issue(base, part=(0, 11), filler=()):
        def m0(reg, i, first):
            if base is not None: return "s_add_u32 m0, s%d, %d" % (reg, base + 1024*i)
            return "s_add_u32 m0, s%d, s%d" % (reg, sK2) if first else "s_add_u32 m0, m0, 0x400"
        L = []
        for i in range(4): L.append((m0(sLA, i, i == 0), "buffer_load_dwordx4 v%d, %s, s%d offen lds" % (10+i, S(S_X), sA)))
        for i in range(2): L.append((m0(sLH, i, i == 0), "buffer_load_dwordx4 v%d, %s, s%d offen lds" % (19+i, S(S_W1), sH)))
        for i in range(5): L.append((m0(sLP, i, i == 0), "buffer_load_dwordx4 v%d, %s, s%d offen lds" % (14+i, S(S_P), sP)))
        filler = list(filler)
        for k in range(*part):
            m, d = L[k]
            if k == 10:
                l = a.newlabel("Lnop4")
                a("s_cmp_lg_u32 s%d, 0\ns_cbranch_scc1 %s" % (sLP4, l)); a(m); a("s_nop 0"); a(d); a.label(l)
            else: a(m); a("s_nop 0"); a(d)
            if filler: a(filler.pop(0))
    def nextstage(): a("s_lshr_b64 s[%d:%d], s[%d:%d], 4\ns_and_b32 s3, s%d, 15\ns_add_u32 s3, s3, s64\ns_sub_u32 s73, s3, 10\ns_min_u32 s3, s3, s73\ns_lshl_b32 s%d, s3, 7\ns_mul_i32 s%d, s3, s%d\ns_mul_i32 s%d, s3, %d" % (sORD, sORD+1, sORD, sORD+1, sORD, sA, sP, sIncP, sH, 64*3072))
    def bar(k): stamp(k + 1, 4); a("s_barrier"); stamp(k + 1, 3)
    a("s_sub_u32 s%d, s%d, 4" % (lw, sWV))
    a("v_lshrrev_b32 v2, 3, v0\nv_lshrrev_b32 v3, 4, v0\nv_and_b32 v4, 7, v0")
    a("v_xor_b32 v5, v4, v3\nv_lshlrev_b32 v5, 4, v5")
    a("s_lshl_b32 s3, s%d, 7\ns_lshl_b32 s%d, s%d, 5\ns_add_u32 s3, s3, s%d\ns_mul_i32 s3, s3, 1280" % (sRB, sT1, lw, sT1))
    a("v_mul_u32_u24 v6, 1280, v2\nv_add3_u32 v10, v6, v5, s3")
    a("v_xor_b32 v11, 64, v10\nv_add_u32 v11, 10240, v11\nv_add_u32 v12, 20480, v10\nv_add_u32 v13, 20480, v11")
    a("s_lshl_b32 s%d, s%d, 12" % (sLA, lw))
    def rel(ty, par):
        if OPT["shift"] == 3: o = [(i ^ par) if i < 2 else i for i in range(10)]
        elif ty == OPT["shift"]: o = [par, 1 - par, 2] + [3 + (i ^ par) for i in range(6)] + [9]
        else: o = [i ^ par for i in range(10)]
        return sum(x << (4*i) for i, x in enumerate(o))
    a("s_xor_b32 s3, s%d, s59\ns_and_b32 s3, s3, 1\ns_lshl_b32 s%d, s%d, 1\ns_add_u32 s3, s3, s%d\ns_mov_b32 s%d, 0x%x\ns_mov_b32 s%d, 0x%x" % (sRB, sT1, sTY, sT1, sORD, rel(0,0) & 0xffffffff, sORD+1, rel(0,0) >> 32))
    for k in range(1, 4):
        r = rel(k >> 1, k & 1)
        a("s_cmp_eq_u32 s3, %d\ns_cselect_b32 s%d, 0x%x, s%d\ns_cselect_b32 s%d, 0x%x, s%d" % (k, sORD, r & 0xffffffff, sORD, sORD+1, r >> 32, sORD+1))
    a("s_and_b32 s3, s2, 7\ns_sub_u32 s%d, s3, 5\ns_min_u32 s3, s3, s%d\ns_lshl_b32 s%d, s3, 1" % (sT1, sT1, sN))
    if OPT["norot"]: a("s_mov_b32 s%d, 0" % sN)
    a("s_and_b32 s%d, s%d, 15\ns_add_u32 s%d, s%d, s%d\ns_sub_u32 s3, s%d, 10\ns_min_u32 s%d, s%d, s3\ns_lshl_b32 s%d, s%d, 7\ns_mul_i32 s%d, s%d, %d" % (sP, sORD, sP, sP, sN, sP, sP, sP, sA, sP, sH, sP, 64*3072))
    a("s_mov_b32 s%d, 0x%x\ns_mov_b32 s%d, 0x20000" % (S_X+2, 2048*1280, S_X+3))
    a("s_waitcnt lgkmcnt(0)")
    a("s_mov_b32 s%d, s36\ns_mov_b32 s%d, s37" % (S_X, S_X+1))
    stamp(1)
    issue(0, (0, 4))
    a("v_and_b32 v6, 3, v2\nv_lshrrev_b32 v7, 2, v2\nv_lshl_add_u32 v6, v7, 3, v6\nv_mul_u32_u24 v6, 3072, v6")
    a("v_and_b32 v7, 6, v2\nv_xor_b32 v7, v4, v7\nv_lshl_add_u32 v6, v7, 4, v6")
    a("s_mul_i32 s%d, s%d, 384\ns_lshl_b32 s3, s%d, 7\ns_add_u32 s%d, s%d, s3" % (sT1, sJJ, sTY, sT1, sT1))
    a("s_and_b32 s%d, s%d, 1" % (sT2, lw))
    a("s_lshr_b32 s3, s%d, 1\ns_lshl_b32 s3, s3, 3\ns_add_u32 s3, s3, s%d\ns_mul_i32 s3, s3, 12288\ns_add_u32 s3, s3, s%d" % (lw, sT2, sT1))
    a("v_add_u32 v19, s3, v6\nv_add_u32 v20, 49152, v19")
    a("s_movk_i32 s%d, %d\ns_cmp_eq_u32 s%d, 0\ns_cselect_b32 s%d, %d, s%d\ns_lshl_b32 s3, s%d, 11\ns_add_u32 s%d, s%d, s3" % (sLH, HQ_OFF, sTY, sLH, HKV_OFF, sLH, lw, sLH, sLH))
    srd(S_W1, 44, 640*3072)
    issue(0, (4, 6))
    a("s_lshr_b32 s3, s%d, 1\ns_and_b32 s%d, s3, s%d\ns_cbranch_scc1 L_phmode" % (lw, sLP4, sTY))
    a("s_mov_b32 s%d, %d" % (sIncP, 64*3840))
    a("s_lshr_b32 s3, s%d, 1\ns_add_u32 s3, s3, 1\ns_cmp_eq_u32 s%d, 0\ns_cselect_b32 s3, s3, 0" % (lw, sTY))
    a("s_mul_i32 s%d, s3, 1280\ns_mul_i32 s%d, s%d, 160\ns_add_u32 s%d, s%d, s%d\ns_mul_i32 s%d, s%d, %d\ns_add_u32 s%d, s%d, s%d" % (sT1, sT3, sJJ, sT1, sT1, sT3, sT3, sT2, 32*3840, sT1, sT1, sT3))
    a("s_movk_i32 s%d, %d\ns_cmp_eq_u32 s3, 2\ns_cselect_b32 s%d, %d, s%d\ns_mul_i32 s%d, s%d, 5120\ns_add_u32 s%d, s%d, s%d" % (sLP, K_OFF, sLP, V_OFF, sLP, sT3, sT2, sLP, sLP, sT3))
    a("v_mul_u32_u24 v7, 6554, v0\nv_lshl_add_u32 v5, v0, 4, s%d\ns_movk_i32 s3, 3680\ns_movk_i32 s%d, 3840" % (sT1, sT3))
    for i in range(5):
        a("v_add_u32 v8, %d, v7\nv_lshrrev_b32 v8, 16, v8\nv_and_b32 v9, 12, v8" % (64*i*6554))
        c = 1024*i - (46080 if i >= 3 else 0)
        a("v_add_u32 v%d, 0x%x, v5\nv_mad_u32_u24 v%d, v8, s3, v%d\nv_mad_u32_u24 v%d, v9, s%d, v%d" % (14+i, c & 0xffffffff, 14+i, 14+i, 14+i, sT3, 14+i))
        if i == 2: a("v_lshrrev_b32 v8, 4, v8\nv_mul_u32_u24 v8, 46080, v8\nv_sub_u32 v16, v16, v8")
    srd(S_P, 38, 640*3840)
    a("s_branch L_pdone")
    a.label("L_phmode")
    a("s_mov_b32 s%d, %d" % (sIncP, 64*3072))
    a("s_mul_i32 s3, s%d, %d\ns_add_u32 s3, s3, s%d\ns_add_u32 s3, s3, 128" % (sT2, 32*3072, sT1))
    a("v_add_u32 v14, s3, v6\nv_add_u32 v15, 49152, v14\nv_add_u32 v16, 12288, v14\nv_add_u32 v17, 61440, v14\nv_mov_b32 v18, 0x%x" % OOB)
    a("s_lshl_b32 s3, s%d, 12\ns_add_u32 s%d, s3, %d" % (sT2, sLP, HQ_OFF + 8192))
    srd(S_P, 44, 640*3072)
    a.label("L_pdone")
    a("s_mul_i32 s%d, s%d, s%d" % (sP, sP, sIncP))
    issue(0, (6, 11)); nextstage()
    srd(S_WS, 56, WS_SIZE)
    a("s_getpc_b64 s[%d:%d]\nL_pc1:\ns_add_u32 s%d, s%d, L_table-L_pc1\ns_addc_u32 s%d, s%d, 0" % (sPC, sPC+1, sPC, sPC, sPC+1, sPC+1))
    a("v_lshlrev_b32 v1, 4, v0\ns_lshl_b32 s3, s%d, 10\nv_add_u32 v254, s3, v1\ns_lshl_b32 s3, s%d, 12\nv_add_u32 v5, s3, v254\nv_lshrrev_b32 v21, 1, v5" % (lw, sTY))
    a("v_mov_b32 v22, %d\ns_getreg_b32 s%d, hwreg(HW_REG_XCC_ID, 0, 4)\ns_and_b32 s3, s2, 7\ns_lshl_b32 s3, s3, 5\ns_lshr_b32 s%d, s2, 3\ns_add_u32 s3, s3, s%d\ns_lshl_b32 s3, s3, 2\ns_add_u32 s3, s3, 0x%x\nv_mov_b32 v23, s3" % (TAGL, sFAST, sT1, sT1, FWG))
    a("s_mov_b32 s%d, %d\ns_mov_b32 s%d, 1\ns_branch L_kvi" % (sK2, SLOT, sK1))
    a.label("L_kvl")
    a("s_waitcnt vmcnt(10)\ns_barrier")
    if STAMPS and OPT["sm"] == 3:
        a("s_memrealtime s[%d:%d]\ns_waitcnt lgkmcnt(0)" % (sST, sST+1))
        for k in range(7): a("s_cmp_eq_u32 s%d, %d\ns_cselect_b32 s%d, s%d, s%d" % (sK1, k + 2, sST + 3 + k, sST, sST + 3 + k))
    a("s_lshl_b32 s3, s%d, 2\ns_add_u32 s3, s3, s%d\ns_cmp_lg_u32 s3, %d\ns_cbranch_scc1 L_kvi" % (sK1, lw, 4 * 4 + 3))
    a("ds_read_b32 v6, v22\ns_mov_b64 exec, 1\ns_waitcnt lgkmcnt(0)\nv_xor_b32 v6, s%d, v6\nbuffer_store_dword v6, v23, %s, 0 offen sc1\ns_mov_b64 exec, -1" % (sFAST, S(S_WS)))
    a.label("L_kvi")
    if OPT["cp2"]:
        a("s_cmp_lg_u32 s%d, %d\ns_cbranch_scc1 L_nocp2" % (sK1, OPT["cp2"]))
        a("s_lshr_b32 s3, s2, 3\ns_lshl_b32 s3, s3, 2\ns_add_u32 s3, s3, s%d\ns_lshl_b32 s3, s3, 8\ns_min_u32 s3, s3, L_table-L_pc0-256" % lw)
        for k in range(4): a("s_load_dword s%d, s[%d:%d], s3\ns_add_u32 s3, s3, 64" % (sSpin, sEX, sEX+1))
        a.label("L_nocp2")
    issue(None); nextstage()
    a("s_add_u32 s%d, s%d, %d\ns_cmp_eq_u32 s%d, %d\ns_cselect_b32 s%d, 0, s%d\ns_add_u32 s%d, s%d, 1\ns_cmp_lt_u32 s%d, 9\ns_cbranch_scc1 L_kvl" % (sK2, sK2, SLOT, sK2, 3*SLOT, sK2, sK2, sK1, sK1, sK1))
    if OPT["lp"]: a("s_setprio %d" % OPT["lp"])
    a("global_load_dwordx2 v[252:253], v21, s[%d:%d]" % (sPC, sPC+1))
    a("v_mov_b32 v6, %d\nds_read_b32 v6, v6" % TAGL)
    g2_setup(True)
    a("v_and_b32 v29, 15, v0\nv_min_u32 v29, 13, v29\nv_lshlrev_b32 v29, 4, v29\ns_mul_i32 s3, s%d, 224\nv_add_u32 v29, s3, v29\nv_lshrrev_b32 v30, 4, v0\nv_lshl_add_u32 v31, v30, 10, v29\nv_and_b32 v30, 0x7ff, v31\nv_add_u32 v29, %d, v29\ns_lshl_b32 s3, s%d, 3\ns_add_u32 s3, s3, s%d\ns_mul_i32 s%d, s3, 10240\ns_add_u32 s%d, s%d, 0x%x" % (lw, CSL, sTY, sJJ, sPC, sPC, sPC, CSP_OFF))
    a("v_add_u32 v255, 4096, v254\nv_cmp_gt_u32 vcc, %d, v254\nv_mov_b32 v3, 0x%x\ns_mov_b64 s[%d:%d], vcc\nv_cndmask_b32 v255, v3, v255, vcc" % ((420 - 256) * 16, OOB, sEX, sEX+1))
    a("s_lshl_b32 s%d, s%d, 10\ns_lshl_b32 s3, s%d, 11\ns_add_u32 s%d, s%d, s3\ns_add_u32 s%d, s%d, 0x%x" % (sT1, lw, sRB, sT1, sT1, sT1, sT1, STAT_OFF - 1024))
    a("s_cmp_eq_u32 s%d, 3\ns_cselect_b32 s%d, 0x%x, s%d\ns_cselect_b32 s%d, -16, 0\ns_cselect_b32 s%d, -16, -1" % (lw, sT1, FWG, sT1, sT2, sT3))
    a("s_waitcnt lgkmcnt(0)\nv_readfirstlane_b32 s%d, v6\ns_waitcnt vmcnt(11)" % sTAG)
    bar(7)
    def csloads():
        for p in range(3): a("s_add_u32 s3, s%d, %d\nbuffer_load_dwordx4 %s, v%d, %s, s3 offen sc1" % (sPC, 4096 * p, R4(36 + 4*p), 31 if p < 2 else 30, S(S_WS)))
    a("s_cmp_eq_u32 s%d, 0\ns_cbranch_scc1 L_ck1\nbuffer_load_dwordx4 v[24:27], v1, %s, s%d offen sc1" % (lw, S(S_WS), sT1))
    a.label("L_ck1")
    issue(0, filler=["\n".join("s_lshr_b32 s%d, s%d, %d" % (TB[k], sTAG, 8*k) for k in range(4)),
          "v_mov_b64 v[4:5], 0\nv_mov_b64 v[6:7], 0\nv_add_u32 v8, %d, v254\nv_add_u32 v9, %d, v1" % (IMG, IMG + 8192),
          "ds_write_b128 v8, v[4:7]\nds_write_b128 v8, v[4:7] offset:4096\nds_write_b128 v9, v[4:7]"])
    a("s_mov_b32 s%d, %d\ns_waitcnt vmcnt(10)\ns_cmp_eq_u32 s%d, 3\ns_cbranch_scc1 L_chk" % (sSpin, SPIN, lw))
    bar(8)
    a("s_cmp_eq_u32 s%d, 0\ns_cbranch_scc1 L_chkok" % lw)
    a.label("L_chk")
    for k in range(4): a("v_xor_b32 v%d, s%d, v%d" % (32 + k, sTAG, 24 + k))
    a("v_or_b32 v3, v32, v34\nv_or_b32 v4, v33, v35\nv_and_b32 v3, s%d, v3\nv_and_b32 v4, s%d, v4\nv_or_b32 v3, v3, v4\nv_cmp_ne_u32 vcc, 0, v3\ns_cbranch_vccz L_chkw" % (sT2, sT3))
    a("s_sleep 8\nbuffer_load_dwordx4 v[24:27], v1, %s, s%d offen sc1\ns_waitcnt vmcnt(0)\ns_sub_u32 s%d, s%d, 1\ns_cbranch_scc0 L_chk" % (S(S_WS), sT1, sSpin, sSpin))
    a.label("L_chkw")
    a("s_cmp_eq_u32 s%d, 3\ns_cbranch_scc1 L_chk3" % lw)
    a("s_lshl_b32 s3, s%d, 8\ns_add_u32 s3, s3, %d\nv_lshl_add_u32 v3, v0, 2, s3\nds_write2st64_b32 v3, v24, v26 offset0:0 offset1:2\ns_branch L_chkok" % (lw, STATL - 256))
    a.label("L_chk3")
    a("s_getreg_b32 s3, hwreg(HW_REG_XCC_ID, 0, 4)\nv_xor_b32 v3, s3, v32")
    for k in range(1, 4): a("v_bitop3_b32 v3, v3, v%d, s3 bitop3:0xf6" % (32 + k))
    a("v_cmp_ne_u32 vcc, 0, v3\ns_and_b32 s3, s2, 7\ns_lshl_b32 s3, s3, 3\ns_lshr_b64 vcc, vcc, s3\ns_and_b32 s3, vcc_lo, 0xff\ns_cselect_b32 s3, 0, 1")
    a("v_mov_b32 v3, %d\nv_mov_b32 v4, s3\nds_write_b32 v3, v4\ns_barrier\ns_branch L_chkok" % FASTL)
    a.label("L_chkok")
    csloads()
    n1 = OPT["n1"]
    for s in range(n1): loadB(s, True)
    a("s_waitcnt vmcnt(%d) lgkmcnt(0)" % (5 * n1 + 3))
    bar(9)
    a("v_mov_b32 v6, %d\nds_read_b32 v6, v6\ns_mov_b32 s%d, %d\ns_waitcnt vmcnt(%d)" % (FASTL, sSpin, SPIN, 5 * n1))
    a.label("L_cchk")
    tagchk(3, list(range(36, 48)))
    a("s_cbranch_vccz L_cchkok\ns_sleep 8")
    csloads()
    a("s_waitcnt vmcnt(0)\ns_sub_u32 s%d, s%d, 1\ns_cbranch_scc0 L_cchk" % (sSpin, sSpin))
    a.label("L_cchkok")
    a("v_pk_add_f32 v[36:37], v[36:37], v[40:41]\nv_pk_add_f32 v[38:39], v[38:39], v[42:43]\ns_mov_b32 exec_hi, 0\nv_pk_add_f32 v[36:37], v[36:37], v[44:45]\nv_pk_add_f32 v[38:39], v[38:39], v[46:47]\ns_mov_b64 exec, -1")
    for op in ("v_permlane16_swap_b32", "v_permlane32_swap_b32"):
        a("v_mov_b64 v[40:41], v[36:37]\nv_mov_b64 v[42:43], v[38:39]\ns_nop 1")
        for k in range(4): a("%s v%d, v%d" % (op, 36 + k, 40 + k))
        a("s_nop 0\nv_pk_add_f32 v[36:37], v[36:37], v[40:41]\nv_pk_add_f32 v[38:39], v[38:39], v[42:43]")
    a("ds_write_b128 v29, v[36:39]")
    stamp(4)
    nb = min(7, n1 + OPT["n2"])
    for s in range(n1, nb): loadB(s, True)
    a("s_mul_i32 s%d, s%d, %d\ns_add_u32 s%d, s%d, 0x%x\ns_waitcnt lgkmcnt(0)\nv_readfirstlane_b32 s%d, v6" % (sH, sJJ, KVP_STRIDE, sH, sH, RED_OFF, sFAST))
    stamp(5)
    a("s_barrier")
    if OPT["lp"]: a("s_setprio 0")
    stamp(6)
    for s in range(nb, 4): loadB(s, True)
    for s in range(OPT["kvd"]): dmaB(s)
    a("s_lshl_b32 s%d, s%d, 9\ns_add_u32 s%d, s%d, 0x%x\ns_lshl_b32 s3, s%d, 2\ns_add_u32 s%d, s%d, s3\ns_lshl_b32 s3, s%d, 2\ns_add_u32 s%d, s%d, s3" % (sORD+1, sRT, sORD+1, sORD+1, FH, sK0, sORD, sORD+1, sK1, sORD+1, sORD+1))
    for k in range(4): step_off(4 + k, True, (sAo0, sAo1, sAo2, sAoF), 4096, sLA + k)
    nb2 = max(nb, 4)
    nbq = nb2
    if not (OPT["bl"] and OPT["afirst"]):
        for s in range(nb2, 7): loadB(s, True)
        nbq = 7
    a("s_cmp_lg_u32 s%d, 0\ns_cbranch_scc1 L_lq1" % sTY)
    for s in range(nbq, 7): loadB(s, True)
    nb2 = 7
    a("s_lshl_b32 s%d, s%d, 4\ns_mul_i32 s%d, s%d, %d\ns_add_u32 s%d, s%d, 0x%x\ns_mul_i32 s3, s%d, %d\ns_add_u32 s%d, s%d, s3\nv_mov_b32 v3, 0xff" % (sT2, sJJ, sT2, sT2, KVP_STRIDE, sT2, sT2, KVP_OFF, sRB, KVP_STRIDE, sT1, sT2))
    a("s_lshl_b32 s%d, s%d, 2\ns_add_u32 s%d, s%d, s%d\ns_lshl_b32 s3, s%d, 7\ns_add_u32 s%d, s%d, s3\ns_add_u32 s%d, s%d, s3\ns_add_u32 s%d, s%d, %d" % (sA, sRB, sA, sA, lw, sA, sT2, sT2, sH, sH, sT3, sT2, 8*KVP_STRIDE))
    a("s_cmp_eq_u32 s%d, 52\ns_cselect_b32 s3, 3, 7\nv_and_b32 v21, s3, v0\nv_lshlrev_b32 v21, 4, v21\nv_lshrrev_b32 v20, 3, v0\nv_mul_u32_u24 v20, %d, v20\nv_add_u32 v20, v20, v21" % (sA, KVP_STRIDE))
    stamp(1, 1)
    a("s_setprio 2")
    lds_wait(LF_XK, None, 4, 4)
    stamp(7); stamp(3, 1)
    a("ds_read_b128 v[4:7], v252\nds_read_b128 v[8:11], v252 offset:16384\nds_read_b128 v[12:15], v253\nds_read_b128 v[16:19], v253 offset:16384")
    a("s_waitcnt lgkmcnt(2)\nv_pk_add_f32 v[4:5], v[4:5], v[8:9]\nv_pk_add_f32 v[6:7], v[6:7], v[10:11]")
    for k in range(4): a("v_bfi_b32 v%d, v3, s%d, v%d" % (4 + k, TB[k], 4 + k))
    a("buffer_store_dwordx4 v[4:7], v254, %s, s%d offen sc1" % (S(S_WS), sT1))
    a("s_waitcnt lgkmcnt(0)\nv_pk_add_f32 v[12:13], v[12:13], v[16:17]\nv_pk_add_f32 v[14:15], v[14:15], v[18:19]")
    for k in range(4): a("v_bfi_b32 v%d, v3, s%d, v%d" % (12 + k, TB[k], 12 + k))
    a("buffer_store_dwordx4 v[12:15], v255, %s, s%d offen sc1" % (S(S_WS), sT1))
    for s in range(OPT["kvd"], 6): dmaB(s)
    a("s_waitcnt vmcnt(%d)" % (2 if OPT["kvd"] == 6 else 0))
    lds_signal(LF_B, lw, 22)
    nkb = min(7, nb2 + OPT["kvb"])
    for s in range(nb2, nkb): loadB(s, True)
    stamp(4, 1)
    a("s_cmp_gt_u32 s%d, 52\ns_cbranch_scc1 L_nored\ns_mov_b32 s%d, %d\ns_waitcnt vmcnt(0)" % (sA, sSpin, SPIN))
    a.label("L_red")
    a("buffer_load_dwordx4 v[4:7], v20, %s, s%d offen sc1\nbuffer_load_dwordx4 v[8:11], v20, %s, s%d offen sc1\ns_waitcnt vmcnt(0)" % (S(S_WS), sT2, S(S_WS), sT3))
    tagchk(12, list(range(4, 12)))
    a("s_cbranch_vccz L_redok\ns_sleep 1\ns_sub_u32 s%d, s%d, 1\ns_cbranch_scc0 L_red" % (sSpin, sSpin))
    a.label("L_redok")
    stamp(5, 1)
    a("v_pk_add_f32 v[4:5], v[4:5], v[8:9]\nv_pk_add_f32 v[6:7], v[6:7], v[10:11]\ns_nop 1")
    for k in range(4): a("v_add_f32_dpp v%d, v%d, v%d row_ror:8 row_mask:0xf bank_mask:0xf" % (4 + k, 4 + k, 4 + k))
    for op in ("v_permlane16_swap_b32", "v_permlane32_swap_b32"):
        a("v_mov_b64 v[8:9], v[4:5]\nv_mov_b64 v[10:11], v[6:7]\ns_nop 1")
        for k in range(4): a("%s v%d, v%d" % (op, 4 + k, 8 + k))
        a("s_nop 0\nv_pk_add_f32 v[4:5], v[4:5], v[8:9]\nv_pk_add_f32 v[6:7], v[6:7], v[10:11]")
    for k in range(4): a("v_bfi_b32 v%d, v3, s%d, v%d" % (4 + k, TB[k], 4 + k))
    a("s_mov_b64 exec, 0xff\nbuffer_store_dwordx4 v[4:7], v21, %s, s%d offen sc1\ns_mov_b64 exec, -1" % (S(S_WS), sH))
    a.label("L_nored")
    lds_signal(LF_Q, None, 22)
    if OPT["qk"]: lds_wait(LF_Q, None, 4, 22)
    a("s_setprio 0")
    for s in range(nkb, 7): loadB(s, True)
    a("s_branch L_la")
    a.label("L_lq1")
    for s in range(OPT["kvd"], 6): dmaB(s)
    for s in range(nb2, 7): loadB(s, True)
    a("s_lshr_b32 s%d, s%d, 1\ns_and_b32 s%d, s%d, 1" % (sA, lw, sP, lw))
    a2_soff(sT2, sA, lambda: a("s_lshl_b32 s3, s%d, 1\ns_add_u32 s3, s3, s%d\ns_add_u32 s3, s3, 48" % (sJJ, sP)))
    a2_soff(sT3, sA, lambda: a("s_lshr_b32 s3, s%d, 1\ns_add_u32 s3, s3, 64" % sJJ))
    a("s_lshl_b32 s3, s%d, 1\ns_add_u32 s3, s3, s%d\ns_and_b32 s3, s3, 3\ns_lshl_b32 s3, s3, 8\ns_add_u32 s%d, s%d, s3" % (sJJ, sP, sT3, sT3))
    a("s_lshl_b32 s3, s%d, 10\ns_add_u32 s%d, s%d, s3" % (lw, sH, sH))
    stamp(1, 1)
    a("s_waitcnt vmcnt(%d)" % (5 * (7 - nb2)))
    lds_signal(LF_B, lw, 22)
    AF = OPT["afirst"]
    if AF:
        a("v_lshrrev_b32 v4, 1, v254\nv_add_u32 v4, %d, v4\nds_write_b64 v4, v[252:253]" % GAL)
        stamp(8); stamp(6, 1)
        g2_flagoff(3, KS_L)
        poll(3, sORD, 4, 4, "hq")
        stamp(9); stamp(7, 1); stamp(1, 2)
        if OPT["ap"]: a("s_setprio %d" % OPT["ap"])
        vq = VM(); G = 108
        loadA(0, True); loadA(1, True); vq.add("A0", 4); vq.add("A1", 4)
        lateB = list(range(nbq, 7))
        if lateB: loadB(lateB.pop(0), True); vq.add("B", 5)
        for s in range(4):
            vq.wait("A%d" % s)
            g2_step(s, True)
            if s < 2: loadA(s + 2, True); vq.add("A%d" % (s + 2), 4)
            if lateB and s < 2: loadB(lateB.pop(0), True); vq.add("B", 5)
            if s == OPT["gh"]:
                a("v_cndmask_b32 v%d, v1, v2, s[%d:%d]" % (G + 10, sEX, sEX+1))
                a("buffer_load_dwordx4 %s, v1, %s, s%d offen sc1\nbuffer_load_dwordx4 %s, v%d, %s, s%d offen sc1" % (R4(G), S(S_WS), sH, R4(G + 4), G + 10, S(S_WS), sH)); vq.add("G", 2)
        assert not lateB
        stamp(8, 1)
    PQ = 224; AD = 248
    W32, W16, O, RM, G = (84, 98, 108, 156, 108) if AF else (4, 18, 28, 76, 28)
    if not AF: a("v_cndmask_b32 v%d, v1, v2, s[%d:%d]" % (G + 10, sEX, sEX+1))
    def gl(): a("buffer_load_dwordx4 %s, v1, %s, s%d offen sc1\nbuffer_load_dwordx4 %s, v%d, %s, s%d offen sc1" % (R4(G), S(S_WS), sH, R4(G + 4), G + 10, S(S_WS), sH))
    if AF:
        a("s_lshl_b32 s3, s%d, 9\ns_add_u32 s3, s3, %d\nv_lshl_add_u32 v%d, v0, 3, s3\nds_read_b64 %s, v%d" % (lw, GAL, G + 12, R2(G + 12), G + 12))
    else: a("v_mov_b64 %s, v[252:253]" % R2(G + 12))
    import re
    def ag(x): a(re.sub(r"@(\d+)@", lambda m: str(G + int(m.group(1))), x))
    ag("v_and_b32 v@16@, 15, v0\nv_lshrrev_b32 v@15@, 4, v0\ns_mul_i32 s3, s%d, 4608\ns_add_u32 s3, s3, %d" % (sP, IMG))
    ag("v_lshl_add_u32 v@17@, v@16@, 2, v@15@\nv_lshl_add_u32 v%d, v@17@, 3, s3\nv_lshl_add_u32 v%d, v@17@, 4, s3" % (AD+1, AD))
    ag("v_and_b32 v@18@, 3, v@16@\nv_min_u32 v@18@, 1, v@18@\nv_cmp_eq_u32 vcc, 2, v@16@\nv_lshlrev_b32 v@16@, 4, v@16@\nv_lshl_add_u32 v%d, v@15@, 10, v@16@\nv_cndmask_b32 v@18@, v@18@, 0, vcc" % (AD+4))
    ag("v_add_u32 v@18@, 40, v@18@\nv_lshl_add_u32 v@18@, v@18@, 2, v@15@\nv_lshl_add_u32 v%d, v@18@, 3, s3\nv_lshl_add_u32 v%d, v@18@, 4, s3\nv_mov_b32 v%d, 0x358637bd" % (AD+3, AD+2, AD+5))
    lds_wait(LF_PQ, lw, 1, 254, 2)
    ag("s_setprio 2")
    ag("s_mul_i32 s3, s%d, 6144\ns_add_u32 s3, s3, %d\nv_add_u32 v@20@, s3, v1\nv_lshl_add_u32 v@21@, v0, 3, s3" % (lw, PQL))
    for i in range(4): ag("ds_read_b128 %s, v@20@ offset:%d\nds_read_b64 %s, v@21@ offset:%d" % (R4(PQ + 6*i), 1024*i, R2(PQ + 6*i + 4), 4096 + 512*i))
    if not AF: gl()
    ag("s_mov_b32 s%d, %d" % (sSpin, SPIN))
    a.label("L_gather")
    a("s_waitcnt vmcnt(0)")
    tagchk(G + 8, list(range(G, G + 8)))
    a("s_cbranch_vccz L_gatherok\ns_sleep %d" % OPT["slp"])
    gl()
    a("s_sub_u32 s%d, s%d, 1\ns_cbranch_scc0 L_gather\ns_waitcnt vmcnt(0)" % (sSpin, sSpin))
    a.label("L_gatherok")
    stamp(7); stamp(2, 1)
    if OPT["yld"]: lds_signal(LF_PQ, lw, 254)
    for k in range(4): a("v_cvt_pk_bf16_f32 v%d, v%d, v%d" % (G + k, G + 2*k, G + 1 + 2*k))
    a("ds_write_b64 v%d, %s\nds_write_b64 v%d, %s\ns_waitcnt lgkmcnt(0)" % (G + 12, R2(G), G + 13, R2(G + 2)))
    lds_signal(LF_IMG, None, 254)
    lds_wait(LF_IMG, None, 4, 254, 0)
    stamp(3, 1)
    for to in range(3): a("ds_read_b128 %s, v%d offset:%d" % (R4(W32 + 4*to), AD, 1024*to))
    a("ds_read_b128 %s, v%d" % (R4(W32 + 12), AD+2))
    for to in range(1, 3): a("ds_read_b64 %s, v%d offset:%d" % (R2(W16 + 2*to), AD+1, 3072 + 512*to))
    a("ds_read_b64 %s, v%d offset:3072\ns_waitcnt lgkmcnt(0)" % (R2(W16 + 6), AD+3))
    def Oreg(i, to): return O + 16*(i % 3) + 4*to
    def omfma(i):
        for to in range(4): a("v_mfma_f32_16x16x32_bf16 %s, %s, %s, 0" % (R4(Oreg(i, to)), R4(W32 + 4*to), R4(PQ + 6*i)))
    def omfma2(i):
        for to in (3, 1, 2): a("v_mfma_f32_16x16x16_bf16 %s, %s, %s, %s" % (R4(Oreg(i, to)), R2(W16 + 2*to), R2(PQ + 6*i + 4), R4(Oreg(i, to))))
    def oden(i):
        d = Oreg(i, 3)
        for j in range(3): a("v_add_f32 v%d, v%d, v%d" % (d + j, d + j, AD+5))
        for j in range(3): a("v_rcp_f32 v%d, v%d" % (d + j, d + j))
    def ofin(i):
        d = Oreg(i, 3)
        for to, sel in ((0, 0), (2, 1), (1, 2)):
            for q in range(2):
                x = Oreg(i, to) + 2*q
                if OPT["sco"]: a("v_mul_f32 v%d, v%d, v%d\nv_mul_f32 v%d, v%d, v%d" % (x, x, d + sel, x + 1, x + 1, d + sel))
                else: a("v_pk_mul_f32 %s, %s, %s op_sel:[0,%d] op_sel_hi:[1,%d]" % (R2(x), R2(x), R2(d + (sel & 2)), sel & 1, sel & 1))
        for k in (4, 5, 0, 1, 2, 3): a("v_cvt_pk_bf16_f32 v%d, v%d, v%d" % (PQ + 6*i + k if k < 4 else RM + 2*i + k - 4, Oreg(i, 0) + 2*k, Oreg(i, 0) + 2*k + 1))
    def ost(i): st_a2("buffer_store_dwordx4 %s, v1, %s, s%d offen offset:%d" % (R4(PQ + 6*i), S(S_WS), sT2, 1024*i))
    for i in range(3): omfma(i)
    for i in range(3): omfma2(i)
    oden(0); ofin(0); omfma(3); ost(0); oden(1); oden(2); omfma2(3); ofin(1); ost(1); oden(3); ofin(2); ost(2); ofin(3); ost(3)
    for k in range(2): a("v_permlane16_swap_b32 v%d, v%d" % (RM + k, RM + 2 + k))
    for k in range(2): a("v_permlane16_swap_b32 v%d, v%d" % (RM + 4 + k, RM + 6 + k))
    a("s_nop 1")
    for k in range(4): a("v_permlane32_swap_b32 v%d, v%d" % (RM + k, RM + 4 + k))
    st_a2("buffer_store_dwordx4 %s, v%d, %s, s%d offen" % (R4(RM), AD+4, S(S_WS), sT3))
    stamp(4, 1)
    if OPT["yld"]: lds_signal(LF_PQ, lw, 254)
    ks_flag(sT2, sA, 0, 254)
    lds_signal(LF_Q, None, 252)
    stamp(5, 1)
    a("s_setprio 0")
    if AF:
        loadB(7, True); loadB(8, True)
        a("s_branch L_oslow2")
    a.label("L_la")
    stamp(8); stamp(6, 1)
    g2_flagoff(3, KS_L)
    poll(3, sORD, 4, 4, "hl")
    stamp(9); stamp(7, 1); stamp(1, 2)
    if OPT["ap"]: a("s_setprio %d" % OPT["ap"])
    vm = VM()
    AO = [124, 144, 224, 124]
    so = [sLA, sLA + 1, sLA + 2, sLA + 3, sAo2]
    def ldo(i):
        for s in range(5): a("buffer_load_dwordx4 %s, v1, %s, s%d offen offset:%d%s" % (R4(AO[i] + 4*s), S(S_WS), so[s], 1024*i, ALD))
        for s in range(5): vm.add("O%d%d" % (i, s))
    loadA(0, True); loadA(1, True); vm.add("A0", 4); vm.add("A1", 4)
    for s in range(4):
        vm.wait("A%d" % s)
        g2_step(s, True)
        if s < 2: loadA(s + 2, True); vm.add("A%d" % (s + 2), 4)
        if s == 1:
            a("v_lshlrev_b32 v3, 2, v0\ns_mov_b64 exec, 15\nbuffer_load_dword v3, v3, %s, s%d offen%s\ns_mov_b64 exec, -1" % (S(S_WS), sORD + 1, PLD)); vm.add("F")
            loadB(7, True); loadB(8, True); vm.add("B", 10)
        if s == 2:
            vm.wait("F")
            a("v_cmp_ne_u32 vcc, s%d, v3\ns_and_b32 s%d, vcc_lo, 15\ns_cbranch_scc1 L_oslow" % (sTAG, sK0))
            ldo(0)
    ldo(1); ldo(2)
    a.label("L_oback")
    mark = len(a.lines)
    a.label("L_oslow")
    g2_step(3, True)
    a.label("L_oslow2")
    a("s_setprio 0\nv_lshlrev_b32 v3, 2, v0")
    stamp(9, 1)
    poll(3, sORD + 1, 4, 248, "o")
    q = list(vm.q); ldo(0); ldo(1); ldo(2); vm.q = q
    a("s_branch L_oback")
    SLOW = a.lines[mark:]; del a.lines[mark:]
    a("s_setprio 0")
    stamp(10); stamp(10, 1); stamp(6, 2)
    paddr(251, 249, 250)
    a("s_mul_i32 s3, s%d, 5120\ns_add_u32 s3, s3, %d\nv_add_u32 v250, s3, v251\ns_mul_i32 s3, s%d, %d\nv_add_u32 v251, s3, v251\nv_add_u32 v249, 20480, v251" % (sM, 4*EBS, sM, EBS))
    a("v_mov_b32 v252, %d\nv_mov_b32 v253, 1" % (LFLAG + LF_T))
    def sig(i): return "s_mov_b64 exec, 1\ns_waitcnt lgkmcnt(0)\nds_add_u32 v252, v253 offset:%d\ns_mov_b64 exec, -1" % (4*i)
    pend = []
    for i in range(4):
        k = 0
        stamp(7 + i, 2)
        for s in range(5):
            vm.wait("O%d%d" % (i, s))
            for t in range(5):
                g2_mfma(Dreg(i, t, True), Breg(4 + s, t, True), AO[i] + 4*s, False)
                k += 1
                if pend and k >= 4: a(pend.pop(0))
            if i > 0 and s == 2: a(sig(i - 1))
        if i == 0:
            ldo(3)
            lds_wait(LF_B, lw, 2, 254)
        if i == 2: lds_wait(LF_Q, None, 4, 254)
        if i == 3: lds_wait(LF_PRE, None, 8, 254)
        pend = ["ds_write_b128 v%d, %s offset:%d" % ((249, 249, 250, 251)[i], R4(Dreg(i, t, True)), (5120 if i == 1 else 0) + 64*t) for t in range(5)]
    for x in pend: a(x)
    stamp(11); stamp(11, 1); stamp(11, 2)
    a(sig(3))
    stamp(12)
    a("s_branch L_alldone")
    a.lines.extend(SLOW)

ACC = 8; F0 = 120; F1 = 164
vA0, vA1, vS, vS2, vH = 208, 209, 210, 211, 212
vB1 = 216
def acc(i, t): return ACC + (i * 7 + t) * 4

def compute_prologue():
    sQ, sU, sUe, sJ0, sJ1, sJ2, sCd = sLA, sLP, sH, sLP4, sLH, sA, sP
    a("s_lshr_b32 s%d, s%d, 1\ns_and_b32 s%d, s%d, 1" % (sM, sWV, sN, sWV))
    a("s_lshl_b32 s3, s%d, 3\ns_add_u32 s3, s3, s%d\ns_lshl_b32 s3, s3, 2\ns_add_u32 s3, s3, s%d\ns_lshl_b32 s3, s3, 1\ns_lshl_b32 s%d, s%d, 7\ns_add_u32 s3, s3, s%d" % (sTY, sJJ, sWV, sT1, sRB, sT1))
    a("s_mul_i32 s%d, s3, 1280\ns_lshl_b32 s%d, s3, 4\ns_add_u32 s%d, s%d, 0x%x" % (sT1, sT2, sT2, sT2, STAT_OFF))
    a("v_lshrrev_b32 v5, 5, v0\nv_and_b32 v6, 31, v0\nv_mul_u32_u24 v7, 1280, v5\nv_lshl_add_u32 v224, v6, 4, v7\nv_lshl_add_u32 v225, v6, 3, v7")
    a("s_lshl_b32 s%d, s%d, 7\ns_lshl_b32 s3, s%d, 3\ns_add_u32 s%d, s%d, s3\ns_add_u32 s%d, s%d, s%d" % (sQ, sWV, sRB, sQ, sQ, sQ, sQ, sJJ))
    a("s_mov_b32 s%d, s%d\ns_movk_i32 s%d, %d" % (sU, sQ, sUe, NQU))
    a("s_add_u32 s3, s%d, %d\ns_add_u32 s%d, s3, 1\ns_min_u32 s%d, s%d, 680\ns_cmp_eq_u32 s%d, 0\ns_cselect_b32 s%d, s3, s%d\ns_cselect_b32 s%d, s%d, s%d" % (sQ, NQU, sK0, sK0, sK0, sTY, sU, sU, sUe, sK0, sUe))
    if OPT["nojob"]: a("s_mov_b32 s%d, 0" % sUe)
    a("v_lshrrev_b32 v2, 3, v0\nv_and_b32 v4, 7, v0\nv_and_b32 v7, 6, v2\nv_xor_b32 v7, v4, v7\nv_lshlrev_b32 v4, 4, v7\nv_and_b32 v6, 3, v2")
    a("s_lshl_b32 s3, s%d, 13\ns_add_u32 m0, s3, %d\ns_mov_b32 s%d, 0x20000\ns_mov_b32 s%d, s%d" % (sWV, JOBL, S_J+3, sK0, sU))
    a("s_mov_b32 s%d, 0x%x\ns_mov_b32 s%d, 0x20000\ns_waitcnt lgkmcnt(0)\ns_mov_b32 s%d, s36\ns_mov_b32 s%d, s37" % (S_X+2, 2048*1280, S_X+3, S_X, S_X+1))
    XL = 124; U = 136
    a("buffer_load_dwordx4 %s, v224, %s, s%d offen\nbuffer_load_dwordx4 %s, v224, %s, s%d offen offset:512\nbuffer_load_dwordx2 %s, v225, %s, s%d offen offset:1024" % (R4(XL), S(S_X), sT1, R4(XL+4), S(S_X), sT1, R2(XL+8), S(S_X), sT1))
    a("s_add_u32 s%d, s56, 0x%x\ns_addc_u32 s%d, s57, 0\ns_load_dword s%d, s[%d:%d], 0" % (sEX, EPOCH, sEX+1, sTAG, sEX, sEX+1))
    a.label("L_jrl")
    a("s_cmp_ge_u32 s%d, s%d\ns_cbranch_scc1 L_nojob1" % (sK0, sUe))
    a("s_mul_i32 s3, s%d, 6554\ns_lshr_b32 s%d, s3, 16\ns_mul_i32 s3, s%d, 10\ns_sub_u32 s%d, s%d, s3" % (sK0, sK1, sK1, sT3, sK0))
    a("s_cmp_lt_u32 s%d, 48\ns_cselect_b32 s%d, s48, s40\ns_cselect_b32 s%d, s49, s41\ns_mov_b32 s%d, %d\ns_cselect_b32 s%d, %d, s%d" % (sK1, S_J, S_J+1, S_J+2, 640*1280, S_J+2, 1536*1280, S_J+2))
    a("s_lshl_b32 s%d, s%d, 5\ns_mul_i32 s3, s%d, 40\ns_sub_u32 s3, s3, %d\ns_cmp_lt_u32 s%d, 48\ns_cselect_b32 s%d, s%d, s3" % (sJ0, sK1, sK1, 48*40, sK1, sJ0, sJ0))
    a("s_mul_i32 s3, s%d, 160\ns_sub_u32 s3, s3, %d\ns_cmp_lt_u32 s%d, 64\ns_cselect_b32 s%d, s%d, s3\ns_cselect_b32 s%d, 4, 40\ns_cselect_b32 s%d, 16, 4" % (sK1, 64*160 - 32, sK1, sJ0, sJ0, sJ1, sJ2))
    a("v_mad_u32_u24 v7, s%d, v5, v6\nv_mul_u32_u24 v7, 1280, v7\nv_add_u32 v3, v4, v7" % sJ1)
    a("s_mul_i32 s%d, s%d, 1280\ns_lshl_b32 s3, s%d, 7\ns_add_u32 s%d, s%d, s3\ns_mul_i32 s%d, s%d, 2560\ns_mul_i32 s%d, s%d, 1280" % (sJ0, sJ0, sT3, sJ0, sJ0, sJ1, sJ1, sJ2, sJ2))
    a("s_add_u32 s3, s%d, s%d\nbuffer_load_dwordx4 v3, %s, s%d offen lds" % (sJ0, sJ1, S(S_J), sJ0))
    a("s_add_u32 m0, m0, 0x400\ns_add_u32 s%d, s%d, s%d\nbuffer_load_dwordx4 v3, %s, s3 offen lds" % (sJ0, sJ0, sJ2, S(S_J)))
    a("s_add_u32 m0, m0, 0x400\ns_add_u32 s3, s%d, s%d\nbuffer_load_dwordx4 v3, %s, s%d offen lds" % (sJ0, sJ1, S(S_J), sJ0))
    a("s_add_u32 m0, m0, 0x400\ns_add_u32 s%d, s%d, 512\nbuffer_load_dwordx4 v3, %s, s3 offen lds" % (sK0, sK0, S(S_J)))
    a("s_add_u32 m0, m0, 0x400\ns_branch L_jrl")
    a.label("L_nojob1")
    srd(S_B1, 46, 3072); srd(S_WS, 56, WS_SIZE); srd(S_OUT, 52, 2048*1280); srd(S_B2, 50, 1280)
    a("v_and_b32 v2, 15, v0\nv_lshrrev_b32 v3, 4, v0\nv_lshrrev_b32 v4, 1, v2\nv_xor_b32 v4, v4, v3\nv_lshlrev_b32 v4, 4, v4\nv_lshl_add_u32 v4, v2, 7, v4\nv_lshlrev_b32 v1, 3, v3")
    a("s_lshl_b32 s3, s%d, 13\nv_add_u32 v%d, s3, v4\nv_xor_b32 v%d, 64, v%d" % (sM, vA0, vA1, vA0))
    a("v_lshlrev_b32 v226, 2, v2\nv_add_u32 v226, %d, v226" % LFLAG)
    a("v_lshrrev_b32 v2, 2, v0\nv_and_b32 v3, 3, v0\nv_mul_u32_u24 v4, 160, v2\ns_mul_i32 s3, s%d, 80\nv_add_u32 v4, s3, v4\nv_lshl_add_u32 v%d, v3, 3, v4" % (sN, vS))
    a("v_and_b32 v5, 1, v3\nv_lshl_add_u32 v4, v5, 3, v4\nv_add_u32 v4, %d, v4" % (K_OFF + 64))
    a("s_cmp_eq_u32 s%d, 0\ns_cselect_b32 s3, %d, 0\nv_lshrrev_b32 v5, 1, v3\nv_mad_u32_u24 v%d, v5, s3, v4" % (sTY, V_OFF - K_OFF - 64, vS2))
    a("v_lshlrev_b32 v4, 7, v2\nv_lshl_add_u32 v4, v3, 3, v4\nv_bfe_u32 v5, v0, 3, 2\nv_lshl_add_u32 v4, v5, 5, v4")
    a("s_lshl_b32 s3, s%d, 13\ns_add_u32 s3, s3, %d\nv_add_u32 v200, s3, v4\nv_xor_b32 v201, 32, v200\nv_xor_b32 v202, 64, v200\nv_xor_b32 v203, 0x60, v200" % (sWV, JOBL))
    a("s_lshl_b32 s3, s%d, 6\ns_cmp_eq_u32 s%d, 0\ns_cselect_b32 s3, s3, 0\nv_xor_b32 v4, s3, v4" % (sN, sTY))
    a("s_lshl_b32 s3, s%d, 13\ns_add_u32 s3, s3, %d\ns_cmp_eq_u32 s%d, 0\ns_cselect_b32 s3, %d, s3" % (sN, HQ_OFF, sTY, HKV_OFF))
    for t in range(4): a("v_xor_b32 v5, %d, v4\nv_add_u32 v%d, s3, v5" % (32*t, vH + t))
    a("s_lshl_b32 s3, s%d, 6\ns_lshl_b32 s3, s3, s%d\ns_lshl_b32 s%d, s%d, 7\ns_add_u32 s3, s3, s%d\ns_mul_i32 s%d, s%d, 384\ns_add_u32 s%d, s3, s%d" % (sN, sTY, sIncP, sTY, sIncP, sIncP, sJJ, sIncP, sIncP))
    for t in range(4): a("buffer_load_dwordx2 %s, v1, %s, s%d offen offset:%d" % (R2(vB1 + 2*t), S(S_B1), sIncP, 32*t))
    for r in range(ACC, ACC + 112, 2): a("v_mov_b64 %s, 0" % R2(r))
    a("s_waitcnt lgkmcnt(0)\ns_and_b32 s3, s%d, 0x7f7f7f7f\ns_add_u32 s3, s3, 0x35251513\ns_and_b32 s%d, s%d, 0x80808080\ns_xor_b32 s%d, s%d, s3" % (sTAG, sTAG, sTAG, sTAG, sTAG))
    a("v_mov_b32 v6, 0\nv_mov_b32 v7, s%d\nds_write2_b32 v226, v6, v7 offset0:0 offset1:16" % sTAG)
    stamp(1)
    def allreduce32(v, t):
        for ctl in ("quad_perm:[1,0,3,2]", "quad_perm:[2,3,0,1]", "row_half_mirror", "row_mirror"):
            a("s_nop 1\nv_add_f32_dpp v%d, v%d, v%d %s row_mask:0xf bank_mask:0xf" % (v, v, v, ctl))
        a("v_mov_b32 v%d, v%d\ns_nop 1\nv_permlane16_swap_b32 v%d, v%d\ns_nop 1\nv_add_f32 v%d, v%d, v%d" % (t, v, v, t, v, v, t))
    a("s_cmp_lt_u32 s%d, s%d\ns_cbranch_scc1 L_w4\ns_waitcnt vmcnt(4)" % (sU, sUe))
    a.label("L_w4"); a("s_waitcnt vmcnt(8)")
    for i in range(10): unpack(U + 2*i, XL + i)
    a("v_pk_add_f32 v[2:3], %s, %s\nv_pk_add_f32 v[4:5], %s, %s" % (R2(U), R2(U + 2), R2(U + 4), R2(U + 6)))
    for i in range(4, 10): a("v_pk_add_f32 %s, %s, %s" % (R2(2 + 2*(i & 1)), R2(2 + 2*(i & 1)), R2(U + 2*i)))
    a("v_pk_add_f32 v[2:3], v[2:3], v[4:5]\nv_add_f32 v2, v2, v3")
    allreduce32(2, 3)
    a("v_mul_f32 v2, 0x3acccccd, v2")
    for i in range(10): a("v_pk_add_f32 %s, %s, v[2:3] op_sel_hi:[1,0] neg_lo:[0,1] neg_hi:[0,1]" % (R2(U + 2*i), R2(U + 2*i)))
    a("v_pk_mul_f32 v[4:5], %s, %s\nv_pk_mul_f32 v[6:7], %s, %s" % (R2(U), R2(U), R2(U + 2), R2(U + 2)))
    for i in range(2, 10): a("v_pk_fma_f32 %s, %s, %s, %s" % (R2(4 + 2*(i & 1)), R2(U + 2*i), R2(U + 2*i), R2(4 + 2*(i & 1))))
    a("v_pk_add_f32 v[4:5], v[4:5], v[6:7]\nv_add_f32 v4, v4, v5")
    allreduce32(4, 5)
    a("v_mul_f32 v4, 0x3acccccd, v4")
    bf16_round(4); a("v_add_f32 v4, 0x3727c5ac, v4"); bf16_round(4)
    a("v_sqrt_f32 v4, v4\ns_nop 0"); bf16_round(4); bf16_round(2)
    a("v_rcp_f32 v232, v4\nv_mov_b32 v233, s%d\nv_mov_b32 v235, s%d\nv_mul_f32 v234, v232, v2\nv_lshrrev_b32 v5, 1, v0" % (sTAG, sTAG))
    a("s_mov_b32 exec_lo, 1\ns_mov_b32 exec_hi, 1\nbuffer_store_dwordx4 v[232:235], v5, %s, s%d offen sc1\ns_mov_b64 exec, -1" % (S(S_WS), sT2))
    stamp(2)
    a("s_and_b32 s3, s2, 7\ns_cmp_lt_u32 s3, 5\ns_cselect_b32 s%d, 1, 0\ns_cbranch_scc0 L_nosel" % sA)
    a("s_lshl_b32 s3, s3, 1\ns_and_b32 s%d, s%d, 1\ns_add_u32 s3, s3, s%d\ns_lshl_b32 s%d, s%d, 3\ns_add_u32 s%d, s%d, s%d\ns_mul_i32 s%d, s%d, 10\ns_add_u32 s3, s3, s%d\ns_lshl_b32 s3, s3, 10\ns_mul_i32 s%d, s%d, 448\ns_add_u32 s3, s3, s%d\ns_lshl_b32 s%d, s%d, 8\ns_add_u32 s3, s3, s%d\ns_add_u32 s%d, s3, 0x%x" % (sA, sRB, sA, sA, sTY, sA, sA, sJJ, sA, sA, sA, sA, sN, sA, sA, sM, sA, sA, CSP_OFF))
    a("v_and_b32 v6, 15, v0\nv_mov_b32 v7, 0x3f803f80\nv_and_b32 v4, 48, v0\nv_lshl_add_u32 v4, v6, 6, v4\nv_mov_b32 v5, 0xff")
    for t in range(4):
        a("v_cmp_eq_u32 vcc, %d, v6\ns_lshr_b32 s%d, s%d, %d\ns_nop 0\nv_cndmask_b32 v%d, 0, v7, vcc\nv_cndmask_b32 v%d, 0, v7, vcc\nv_mov_b64 %s, %s" % (t, TB[t], sTAG, 8*t, 236 + 4*t, 237 + 4*t, R2(238 + 4*t), R2(236 + 4*t)))
    a.label("L_nosel")
    FR = 120
    a("v_lshlrev_b32 v1, 4, v0")
    for r in range(QPER):
        a("s_cmp_ge_u32 s%d, s%d\ns_cbranch_scc1 L_nojob2" % (sU, sUe))
        if r == 0: a("s_waitcnt vmcnt(5)")
        for t in range(4): a("ds_read_b64_tr_b16 %s, v%d offset:%d\nds_read_b64_tr_b16 %s, v%d offset:%d" % (R2(FR + 16*r + 4*t), 200 + t, 4096*r, R2(FR + 16*r + 2 + 4*t), 200 + t, 4096*r + 2048))
        a("s_lshl_b32 s3, s%d, 12\ns_add_u32 s3, s3, 0x%x\ns_add_u32 s%d, s%d, 512\ns_waitcnt lgkmcnt(0)" % (sU, B2_OFF, sU, sU))
        for t in range(4):
            if OPT["jst"]: a("buffer_store_dwordx4 %s, v1, %s, s3 offen offset:%d%s" % (R4(FR + 16*r + 4*t), S(S_WS), 1024*t, {1: " sc1", 2: "", 3: " nt"}[OPT["jst"]]))
    a.label("L_nojob2")

def frag_reads(ty, F, ks2):
    r = []
    for i in range(4): r.append("ds_read_b128 %s, v%d offset:%d" % (R4(F + 4*i), vA1 if ks2 else vA0, 2048*i))
    nseg = 5 if ty == 0 else 3
    for t in range(7):
        d = F + 16 + 4*t
        for rd in range(2):
            if t < nseg:
                if t == 2: reg, off = vS2, 0
                elif t < 2: reg, off = vS, K_OFF + 32*t
                else: reg, off = vS, V_OFF + 16 + 32*(t - 3)
                off += ks2 * 5120 + rd * 2560
            else: reg, off = vH + (t - nseg), ks2 * 4096 + rd * 2048
            r.append("ds_read_b64_tr_b16 %s, v%d offset:%d" % (R2(d + 2*rd), reg, off))
    return r
def transposed(ty, t): return ty == 1 or t >= 5
def mfmas(ty, F, order=None):
    r = []
    for (t, i) in (order or [(t, i) for t in range(7) for i in range(4)]):
        B = R4(F + 16 + 4*t); A = R4(F + 4*i); D = R4(acc(i, t))
        r.append("v_mfma_f32_16x16x32_bf16 %s, %s, %s, %s" % ((D, B, A, D) if transposed(ty, t) else (D, A, B, D)))
    return r
def interleave(mm, rr):
    for k, x in enumerate(mm):
        a(x)
        if k < len(rr): a(rr[k])
def addr_regs(ty): return [vA0, vA1, vS, vS2] + [vH + t for t in range(2 if ty == 0 else 4)]

CT = 120; RS = 148; BF = 156; KC = 172; TMP = 176; T2P = 208; R4S = 224

def epi_reads(ty):
    a("v_and_b32 v4, 15, v0\nv_lshlrev_b32 v4, 2, v4\ns_lshl_b32 s3, s%d, 8\ns_add_u32 s3, s3, %d\nv_add_u32 v5, s3, v4" % (sM, STATL))
    a("v_and_b32 v6, 48, v0\nv_add_u32 v3, s3, v6\ns_mul_i32 s3, s%d, 448\ns_add_u32 s3, s3, %d\nv_add_u32 v6, s3, v6\nv_add_u32 v4, s3, v4\nv_mov_b32 v7, %d" % (sN, CSL, FASTL))
    if ty == 0:
        for i in range(4): a("ds_read_b128 %s, v3 offset:%d\nds_read_b128 %s, v3 offset:%d" % (R4(R4S + 4*i), 64*i, R4(R4S + 16 + 4*i), 512 + 64*i))
    for t in range(7):
        if transposed(ty, t): a("ds_read_b128 %s, v6 offset:%d" % (R4(CT + 4*t), 64*t))
        else: a("ds_read_b32 v%d, v4 offset:%d" % (CT + 4*t, 64*t))
    for i in range(4): a("ds_read2_b32 %s, v5 offset0:%d offset1:%d" % (R2(RS + 2*i), 16*i, 128 + 16*i))
    a("ds_read_b32 v7, v7\nv_lshlrev_b32 v1, 4, v0")
    if ty == 0: a2_soff(sT2, sM, lambda: a("s_mul_i32 s3, s%d, 6\ns_add_u32 s3, s3, s%d" % (sJJ, sN)))
    else:
        a2_soff(sT2, sM, lambda: a("s_mul_i32 s3, s%d, 6\ns_lshl_b32 s%d, s%d, 1\ns_add_u32 s3, s3, s%d\ns_add_u32 s3, s3, 2" % (sJJ, sT1, sN, sT1)))
        a("s_add_u32 s%d, s%d, 4096" % (sT3, sT2))

def main_loop(ty):
    a("s_mov_b32 s%d, 0\ns_mov_b32 s%d, 0\ns_waitcnt lgkmcnt(0)" % (sCnt, sSlot))
    stamp(3)
    a("s_barrier")
    stamp(4)
    for x in frag_reads(ty, F0, 0): a(x)
    a("s_cmp_eq_u32 s%d, 0\ns_cbranch_scc1 L_ent%d\ns_cmp_lg_u32 s%d, 0\ns_cbranch_scc1 L_cs1%d" % (sA, ty, sM, ty))
    rr = frag_reads(ty, F1, 1)[4:]
    for m in range(2):
        tl = list(range(4*m, min(7, 4*m + 4)))
        for t in tl: a(rr[2*t]); a(rr[2*t + 1])
        a("s_waitcnt lgkmcnt(%d)" % (2 * len(tl)))
        for k, t in enumerate(tl): a("v_mfma_f32_16x16x32_bf16 v[252:255], %s, %s, %s" % (R4(F0 + 16 + 4*t), R4(236 + 4*k), "0" if k == 0 else "v[252:255]"))
        a("s_waitcnt lgkmcnt(0)")
        for k, t in enumerate(tl): a("v_mfma_f32_16x16x32_bf16 v[252:255], %s, %s, v[252:255]" % (R4(F1 + 16 + 4*t), R4(236 + 4*k)))
        a("s_mov_b32 s3, 0x%x" % (0x000f000f if m == 0 else 0x00070007))
        if m == 0: a("s_branch L_cs2%d" % ty); a.label("L_cs1%d" % ty)
    a.label("L_cs2%d" % ty)
    a("s_nop 6")
    for k in range(4): a("v_bfi_b32 v%d, v5, s%d, v%d" % (252 + k, TB[k], 252 + k))
    a("s_mov_b32 exec_lo, s3\ns_mov_b32 exec_hi, s3\nbuffer_store_dwordx4 v[252:255], v4, %s, s%d offen sc1\ns_mov_b64 exec, -1" % (S(S_WS), sA))
    a.label("L_ent%d" % ty)
    a("s_waitcnt lgkmcnt(0)\ns_branch L_mid%d" % ty)
    align8()
    a.label("L_top%d" % ty)
    a("s_barrier\ns_nop 0")
    interleave(mfmas(ty, F1), frag_reads(ty, F0, 0))
    a("s_waitcnt vmcnt(0) lgkmcnt(0)\ns_nop 0" if OPT["lvm"] else "s_waitcnt lgkmcnt(0)\ns_nop 0")
    a.label("L_mid%d" % ty)
    upd = ["v_add_u32_e64 v%d, s%d, v%d" % (r, sT1, r) for r in addr_regs(ty)]
    sal = "s_add_u32 s%d, s%d, 1\ns_cmp_eq_u32 s%d, 3\ns_cselect_b32 s%d, 0, s%d\ns_mov_b32 s%d, %d\ns_cselect_b32 s%d, %d, s%d\ns_add_u32 s%d, s%d, 1" % (sSlot, sSlot, sSlot, sSlot, sSlot, sT1, SLOT, sT1, (-2*SLOT) & 0xffffffff, sT1, sCnt, sCnt)
    rr = frag_reads(ty, F1, 1)
    interleave(mfmas(ty, F0), rr + [sal] + upd)
    a("s_cmp_lt_u32 s%d, 10\ns_waitcnt lgkmcnt(0)\ns_cbranch_scc1 L_top%d" % (sCnt, ty))
    a("s_barrier")
    pre = capture(lambda: epi_reads(ty))
    c0 = -2.0 * 0.7978845608028654 * 1.4426950408889634; c1 = c0 * 0.044715
    k = 0
    order = [(t, i) for i in range(4) for t in range(5)] + [(t, i) for i in range(4) for t in (5, 6)] if ty == 0 else \
            [(t, i) for g in ((3, 4), (5, 6), (0, 1, 2)) for i in range(4) for t in g]
    for x in mfmas(ty, F1, order):
        a(x)
        for y in pre[k:k+2]: a(y)
        k += 2
    for y in pre[k:]: a(y)
    stamp(5); stamp(1, 1)
    if OPT["cprio"]: a("s_setprio %d" % OPT["cprio"])
    a("s_waitcnt vmcnt(0)")
    for k in range(4 if ty == 0 else 8): unpack(BF + 2*k, vB1 + k)
    a("v_mov_b32 v%d, 0x%x\nv_mov_b32 v%d, 0x%x\nv_mov_b32 v%d, 0x%x\nv_mov_b32 v%d, 0x%x" % (KC, f32(c1), KC+2, f32(c0), KC+1, f32(1.4426950408889634), KC+3, f32(1e-6)))
    a("s_waitcnt lgkmcnt(0)\nv_readfirstlane_b32 s%d, v7" % sFAST)

def gelu_block(i, t0, bt0, soff):
    align8()
    P = [(acc(i, t0 + q//2) + 2*(q % 2), CT + 4*(t0 + q//2) + 2*(q % 2), BF + 4*(bt0 + q//2) + 2*(q % 2), TMP + 2*q) for q in range(4)]
    rs = R2(RS + 2*i)
    for (h, c, b, u) in P: a("v_pk_fma_f32 %s, %s, %s, %s op_sel:[1,0,0] op_sel_hi:[1,1,1] neg_lo:[1,0,0] neg_hi:[1,0,0]" % (R2(u), rs, R2(c), R2(b)))
    for (h, c, b, u) in P: a("v_pk_fma_f32 %s, %s, %s, %s op_sel:[0,0,0] op_sel_hi:[0,1,1]" % (R2(h), rs, R2(h), R2(u)))
    for (h, c, b, u) in P: a("v_pk_mul_f32 %s, %s, %s" % (R2(u), R2(h), R2(h)))
    for (h, c, b, u) in P: a("v_pk_fma_f32 %s, %s, %s, %s op_sel:[0,0,0] op_sel_hi:[1,0,0]" % (R2(u), R2(u), R2(KC), R2(KC + 2)))
    for (h, c, b, u) in P: a("v_pk_mul_f32 %s, %s, %s" % (R2(u), R2(u), R2(h)))
    for (h, c, b, u) in P: a("v_exp_f32 v%d, v%d\nv_exp_f32 v%d, v%d" % (u, u, u+1, u+1))
    for (h, c, b, u) in P: a("v_pk_add_f32 %s, %s, 1.0 op_sel_hi:[1,0]" % (R2(u), R2(u)))
    for (h, c, b, u) in P: a("v_rcp_f32 v%d, v%d\nv_rcp_f32 v%d, v%d" % (u, u, u+1, u+1))
    for (h, c, b, u) in P: a("v_pk_mul_f32 %s, %s, %s" % (R2(u), R2(u), R2(h)))
    o = acc(i, t0)
    for q, (h, c, b, u) in enumerate(P): a("v_cvt_pk_bf16_f32 v%d, v%d, v%d" % (o + q, u, u+1))
    st_a2("buffer_store_dwordx4 %s, v1, %s, s%d offen offset:%d" % (R4(o), S(S_WS), soff, 1024*i))

def phi_pairs(P):
    for (h, u) in P: a("v_pk_mul_f32 %s, %s, %s op_sel:[1,0] op_sel_hi:[1,1]" % (R2(u), R2(KC), R2(h)))
    for (h, u) in P: a("v_exp_f32_e64 v%d, v%d clamp\nv_exp_f32_e64 v%d, v%d clamp" % (u, u, u+1, u+1))
    for (h, u) in P: a("v_max_f32 v%d, v%d, v%d\nv_max_f32 v%d, v%d, v%d" % (h, h, KC+3, h+1, h+1, KC+3))
    for (h, u) in P: a("v_pk_add_f32 %s, %s, %s" % (R2(h), R2(h), R2(u)))

def epilogue_kv():
    a("v_and_b32 v5, 8, v0\nv_cmp_eq_u32 vcc, 0, v5\nv_mov_b32 v6, 0\nv_mov_b32 v7, 0x3f803f80\nv_cndmask_b32 v5, v6, v%d, vcc\nv_mov_b32 v4, v5" % (KC + 3))
    a("s_lshl_b32 s3, s%d, 13\ns_add_u32 s3, s3, %d\nv_add_u32 v2, s3, v1" % (sWV, XK))
    prods = [(0,2),(0,3),(1,2),(1,3),(1,4),(2,2),(2,3),(2,4)]
    KD = [acc(1, t) for t in range(5)] + [216, 220, R4S]
    def kvm(ksr):
        return ["v_mfma_f32_16x16x32_bf16 %s, %s, %s, %s" % (R4(KD[k]), R4(acc(2*ksr, ti)), R4(T2P + 4*ksr) if tj == 2 else R4(acc(2*ksr, tj)), "0" if ksr == 0 else R4(KD[k])) for k, (ti, tj) in enumerate(prods)]
    for i in range(4):
        align8()
        def body():
            for t in range(5):
                for q in range(2):
                    u = TMP + 4*t + 2*q; rm = R2(R4S + 16 + 4*i + 2*q); c = R2(CT + 4*t)
                    if t < 2: a("v_pk_fma_f32 %s, %s, %s, %s op_sel:[0,0,1] op_sel_hi:[1,0,1] neg_lo:[1,0,0] neg_hi:[1,0,0]" % (R2(u), rm, c, R2(KC + 2)))
                    elif t == 2: a("v_pk_fma_f32 %s, %s, %s, v[4:5] op_sel:[0,0,0] op_sel_hi:[1,0,1] neg_lo:[1,0,0] neg_hi:[1,0,0]" % (R2(u), rm, c))
                    else: a("v_pk_mul_f32 %s, %s, %s op_sel:[0,0] op_sel_hi:[1,0] neg_lo:[1,0] neg_hi:[1,0]" % (R2(u), rm, c))
            for t in range(5):
                for q in range(2):
                    h = acc(i, t) + 2*q; u = TMP + 4*t + 2*q
                    a("v_pk_fma_f32 %s, %s, %s, %s" % (R2(h), R2(R4S + 4*i + 2*q), R2(h), R2(u)))
            a("v_cvt_pk_bf16_f32 v%d, v%d, v%d\nv_cvt_pk_bf16_f32 v%d, v%d, v%d" % (TMP+20, acc(i,2), acc(i,2)+1, TMP+21, acc(i,2)+2, acc(i,2)+3))
            phi_pairs([(acc(i, t) + 2*q, TMP + 4*t + 2*q) for t in range(3) for q in range(2)])
            e = 2 * (i >> 1); o = 2 * (i & 1)
            a("v_cndmask_b32 v%d, v%d, v7, vcc\nv_cndmask_b32 v%d, v%d, v7, vcc" % (T2P + 4*(i>>1) + o, TMP+20, T2P + 4*(i>>1) + o + 1, TMP+21))
            for t in (3, 4, 0, 1, 2):
                a("v_cvt_pk_bf16_f32 v%d, v%d, v%d\nv_cvt_pk_bf16_f32 v%d, v%d, v%d" % (acc(e,t)+o, acc(i,t), acc(i,t)+1, acc(e,t)+o+1, acc(i,t)+2, acc(i,t)+3))
        if i == 2:
            lines = capture(body); mm = kvm(0)
            for k, ln in enumerate(lines):
                a(ln)
                if k >= 28 and k % 2 == 1 and mm: a(mm.pop(0))
            assert not mm
        else: body()
    a("s_nop 1")
    for x in kvm(1): a(x)
    a("s_nop 0")
    for k in range(8): a("ds_write_b128 v2, %s offset:%d" % (R4(KD[k]), 1024 * k))
    stamp(2, 1)
    lds_addr(2, LF_XK, None)
    a("v_mov_b32 v3, 1\ns_mov_b64 exec, 1\ns_waitcnt lgkmcnt(0)\nds_add_u32 v2, v3\ns_mov_b64 exec, -1")
    stamp(7); stamp(3, 1)
    g2_setup(False)
    for i in range(4):
        gelu_block(i, 5, 0, sT2)
        if i in (0, 1): loadB(6 + i, False)
    stamp(4, 1)
    ks_flag(sT2, sM, 0, 6)

def epilogue_qh():
    PQ = 224
    def qpart(hook=None):
        for i in range(4):
            align8()
            rs = R2(RS + 2*i)
            P = [(acc(i, t) + 2*q, TMP + 4*t + 2*q, CT + 4*t + 2*q) for t in range(3) for q in range(2)]
            for (h, u, c) in P: a("v_pk_fma_f32 %s, %s, %s, %s op_sel:[1,0,1] op_sel_hi:[1,1,1] neg_lo:[1,0,0] neg_hi:[1,0,0]" % (R2(u), rs, R2(c), R2(KC + 2)))
            for (h, u, c) in P: a("v_pk_fma_f32 %s, %s, %s, %s op_sel:[0,0,0] op_sel_hi:[0,1,1]" % (R2(h), rs, R2(h), R2(u)))
            phi_pairs([(h, u) for (h, u, c) in P])
            for k, (h, u, c) in enumerate(P): a("v_cvt_pk_bf16_f32 v%d, v%d, v%d" % (PQ + 6*i + k, h, h + 1))
            if hook: hook(i)
        a("s_mul_i32 s3, s%d, 6144\ns_add_u32 s3, s3, %d\nv_add_u32 v4, s3, v1\nv_lshl_add_u32 v5, v0, 3, s3" % (sWV, PQL))
        for i in range(4): a("ds_write_b128 v4, %s offset:%d\nds_write_b64 v5, %s offset:%d" % (R4(PQ + 6*i), 1024*i, R2(PQ + 6*i + 4), 4096 + 512*i))
    g2_setup(False)
    for i in range(4): gelu_block(i, 3, 0, sT2)
    stamp(2, 1)
    for i in range(4):
        gelu_block(i, 5, 2, sT3)
        if i == 0: ks_flag(sT2, sM, 1, 4)
        if OPT["qb"] and i in (0, 1): loadB(6 + i, False)
    stamp(6); stamp(3, 1)
    def hk(i):
        if i == 0: ks_flag(sT3, sM, 0, 4)
        if not OPT["qb"] and i in (0, 1): loadB(6 + i, False)
    qpart(hk)
    a("s_waitcnt lgkmcnt(0)"); lds_signal(LF_PQ, sWV, 4)
    stamp(7); stamp(4, 1)

def readB(s): return ["ds_read_b128 %s, v244 offset:%d" % (R4(Breg(s, t, False)), 5120*s + 1024*t) for t in range(5)]

def gemm2_early():
    stamp(8); stamp(5, 1)
    if OPT["cprio"]: a("s_setprio 0")
    vm = VM()
    vG, vR, vP = 246, 248, 254
    X0 = CDB[0:5]; B2F = CDB[5:7]; XG = CA_[12:20]
    def XS(i, k): return XG[2*i + (k >> 1)] + 2*(k & 1)
    def BF2(k): return B2F[k >> 1] + 2*(k & 1)
    a("s_lshl_b32 s%d, s%d, 9\ns_add_u32 s%d, s%d, 0x%x\ns_lshl_b32 s3, s%d, 2\ns_add_u32 s%d, s%d, s3" % (sT3, sRT, sT3, sT3, FH, sK0, sT3, sT3))
    g2_flagoff(3, KS_C)
    a("s_mov_b64 exec, 0xff\nbuffer_load_dword v245, v3, %s, s%d offen%s\ns_mov_b64 exec, -1" % (S(S_WS), sT3, PLD))
    lds_wait(LF_B, sWV, 1, 246)
    a("s_mul_i32 s3, s%d, %d\nv_add_u32 v244, s3, v1" % (sWV, EBS))
    for x in readB(0) + readB(1): a(x)
    a("s_mul_i32 s3, s%d, 40\nv_add_u32 v228, s3, v0\nv_mul_u32_u24 v229, 6554, v228\nv_lshrrev_b32 v229, 16, v229\nv_mul_u32_u24 v230, 10, v229\nv_sub_u32 v228, v228, v230" % sWV)
    a("v_mul_u32_u24 v230, 1280, v229\nv_lshl_add_u32 v%d, v228, 4, v230\nv_lshlrev_b32 v%d, 4, v228" % (vG, vG + 1))
    a("v_mov_b32 v230, 0x%x\nv_cmp_gt_u32 vcc, 40, v0\ns_mul_i32 s%d, s%d, %d\ns_mul_i32 s%d, s%d, 160\nv_cndmask_b32 v%d, v230, v%d, vcc\ns_add_u32 s%d, s%d, s%d" % (OOB, sT1, sRT, 64*1280, sT2, sCT, vG, vG, sT1, sT1, sT2))
    a("v_and_b32 v229, 15, v229\nv_bfe_u32 v230, v229, 1, 2\nv_lshlrev_b32 v228, 1, v228\nv_xor_b32 v228, v228, v230\nv_mul_u32_u24 v229, 320, v229\nv_lshl_add_u32 v%d, v228, 4, v229\nv_xor_b32 v%d, 16, v%d" % (vR, vR + 1, vR))
    for k in range(1, 3): a("v_add_u32 v%d, %d, v%d\nv_add_u32 v%d, %d, v%d" % (vR + 2*k, 2*k*EBS, vR, vR + 1 + 2*k, 2*k*EBS, vR + 1))
    paddr(vP, 228, 229)
    a("s_mul_i32 s3, s%d, %d\nv_add_u32 v%d, s3, v%d" % (sWV, EBS, vP, vP))
    a("s_mov_b32 s%d, %d\ns_mov_b64 exec, 0xff" % (sSpin, SPIN))
    a.label("L_pc")
    a("s_waitcnt vmcnt(0)\nv_cmp_ne_u32 vcc, s%d, v245\ns_and_b32 s3, vcc_lo, 15\ns_cbranch_scc0 L_pcd" % sTAG)
    a("s_sleep %d\nbuffer_load_dword v245, v3, %s, s%d offen%s\ns_sub_u32 s%d, s%d, 1\ns_cbranch_scc0 L_pc" % (OPT["slp"], S(S_WS), sT3, PLD, sSpin, sSpin))
    a.label("L_pcd")
    a("s_mov_b64 exec, -1\ns_mov_b32 s%d, vcc_lo" % sK1)
    stamp(9); stamp(6, 1); stamp(1, 2)
    if OPT["qk"]:
        if OPT["qk"] == 1: a("s_cmp_lg_u32 s%d, 0\ns_cbranch_scc1 L_nqk" % sTY)
        lds_wait(LF_Q, None, 4, 230)
        a.label("L_nqk")
    for s in range(4): loadA(s, False); vm.add("A%d" % s, 4)
    P2 = OPT["qq"] if OPT["qq"] < 4 else 3
    if OPT["yld"]: lds_addr(255, LF_PQ, sWV)
    def yield_check():
        l = a.newlabel("Ly")
        a("s_waitcnt lgkmcnt(0)\nv_cmp_eq_u32 vcc, 2, v2\ns_cbranch_vccnz %s" % l)
        a.label(l + "_b")
        OUTLINE.extend([l + ":", "  s_mov_b32 s%d, %d" % (sSpin, SPIN), l + "_l:", "  s_sleep 1", "  ds_read_b32 v2, v255", "  s_waitcnt lgkmcnt(0)", "  v_cmp_eq_u32 vcc, 2, v2",
                        "  s_cbranch_vccz %s_b" % l, "  s_sub_u32 s%d, s%d, 1" % (sSpin, sSpin), "  s_cbranch_scc0 %s_l" % l, "  s_branch %s_b" % l])
    carry = []
    def defer(fn, lab, n):
        if OPT["il"]: carry.append((capture(fn), lab, n))
        else: fn(); vm.add(lab, n)
    for s in range(6):
        vm.wait("A%d" % s)
        a("s_waitcnt lgkmcnt(%d)" % (5 if s < 5 else 0))
        mm = capture(lambda: g2_step(s, False))
        fill = []
        for (lines, lab, n) in carry:
            cur = []
            for ln in lines:
                cur.append(ln)
                if ln.startswith("buffer_"): fill.append("\n".join(cur)); cur = []
            vm.add(lab, n)
        carry = []
        gap = max(1, 19 // max(1, len(fill)))
        k = 0
        for x in mm:
            a(x)
            if x.startswith("v_mfma"):
                k += 1
                if fill and k % gap == 0: a(fill.pop(0))
                if OPT["yld"] and k == 13: a("ds_read_b32 v2, v255")
        for x in fill: a(x)
        if OPT["yld"]: yield_check()
        if s + 2 < 6:
            for x in readB(s + 2): a(x)
        if s == P2:
            if OPT["qq"]: lds_wait(LF_Q, None, 4, 230)
            a("s_cmp_eq_u32 s%d, 0\ns_cbranch_scc1 L_nop2" % sK1)
            poll(3, sT3, 8, 245, "he2")
            a.label("L_nop2")
            for q in range(4, min(8, 6 + s)):
                if q == s + 1: loadA(q, False); vm.add("A%d" % q, 4)
                else: defer(lambda: loadA(q, False), "A%d" % q, 4)
        elif s > P2 and 5 + s < 8:
            defer(lambda: loadA(5 + s, False), "A%d" % (5 + s), 4)
        if s == 4:
            def xl():
                for i in range(4): a("s_add_u32 s3, s%d, %d\nbuffer_load_dwordx4 %s, v%d, %s, s3 offen" % (sT1, 16*1280*i, R4(X0[i]), vG, S(S_X)))
                a("buffer_load_dwordx4 %s, v%d, %s, s%d offen" % (R4(X0[4]), vG + 1, S(S_B2), sT2))
            defer(xl, "X", 5)
    assert not carry
    lds_signal(LF_B, sWV, 244)
    vm.wait("A7", "B7")
    if OPT["wb"] == 2:
        l = a.newlabel("Lwb")
        a("s_lshr_b32 s3, s2, 3\ns_and_b32 s3, s3, %d\ns_add_u32 s3, s3, s%d\ns_cmp_lg_u32 s3, 0\ns_cbranch_scc1 %s\nbuffer_wbl2 sc1" % (OPT["wbw"], sWV, l))
        a.label(l)
    stamp(8, 2)
    pend = []
    for i in range(4):
        k = 0
        for s in (6, 7):
            for t in range(5):
                g2_mfma(Dreg(i, t, False), Breg(s, t, False), Areg(s, i, False), False)
                k += 1
                if pend and k >= 4: a(pend.pop(0))
                if OPT["yld"] and i == 1 and k == 3: a("ds_read_b32 v2, v255")
        if OPT["yld"] and i == 1: yield_check()
        pend = ["ds_write_b128 v%d, %s offset:%d" % (vP, R4(Dreg(i, t, False)), 5120*i + 64*t) for t in range(5)]
    stamp(10); stamp(7, 1); stamp(9, 2)
    vm.wait("X")
    for k in range(2): unpack(BF2(k), X0[4] + k)
    for x in pend: a(x)
    for k in range(2, 4): unpack(BF2(k), X0[4] + k)
    lds_addr(244, LF_PRE, None)
    a("v_mov_b32 v245, 1")
    for i in range(4):
        for k in range(4): unpack(XS(i, k), X0[i] + k)
        if i == 0: a("s_mov_b64 exec, 1\ns_waitcnt lgkmcnt(0)\nds_add_u32 v244, v245\ns_mov_b64 exec, -1")
        for k in range(4): padd(XS(i, k), XS(i, k), BF2(k), OPT["scp"])
    lds_wait_ge(LF_PRE, 4, 244)
    stamp(8, 1)
    RD = 4
    def loc(i, p):
        if p < 4: return p >> 1, (p & 1) * EBS + 5120*i
        p -= 4
        if i < 2: return p >> 1, (p & 1) * EBS + 20480 + 5120*i
        if i == 2: return 2, p * 5120
        return p >> 1, (p & 1) * EBS
    def rdsum(i, ps):
        for j, p in enumerate(ps):
            b, off = loc(i, p)
            a("ds_read_b128 %s, v%d offset:%d\nds_read_b128 %s, v%d offset:%d" % (R4(RD + 32*(i & 1) + 8*j), vR + 2*b, off, R4(RD + 32*(i & 1) + 8*j + 4), vR + 1 + 2*b, off))
    def addsum(i, base, last=False):
        for j in range(4):
            a("s_waitcnt lgkmcnt(%d)" % (base + 6 - 2*j))
            for k in range(4): padd(XS(i, k), XS(i, k), RD + 32*(i & 1) + 8*j + 2*k, OPT["scp"] and not last)
    a("s_mov_b32 exec_hi, 0xff")
    rdsum(0, range(4))
    for i in range(4):
        if i < 3: rdsum(i + 1, range(4))
        addsum(i, 8 if i < 3 else 0)
    stamp(11); stamp(9, 1); stamp(10, 2)
    if OPT["wb"] == 1:
        l = a.newlabel("Lwb")
        a("s_lshr_b32 s3, s2, 3\ns_and_b32 s3, s3, %d\ns_add_u32 s3, s3, s%d\ns_cmp_lg_u32 s3, 0\ns_cbranch_scc1 %s\nbuffer_wbl2 sc1" % (OPT["wbw"], sWV, l))
        a.label(l)
    a("v_mov_b32 v245, 1\ns_mov_b64 exec, 1\nds_add_u32 v244, v245\ns_mov_b32 exec_lo, -1\ns_mov_b32 exec_hi, 0xff\ns_setprio 1")
    for i in range(4):
        lds_wait(LF_T + 4*i, None, 4, 244, 1 if i < 3 else 0)
        rdsum(i, range(4, 8))
        a("s_add_u32 s3, s%d, %d" % (sT1, 16*1280*i))
        addsum(i, 0, i == 3)
        for k in range(4): a("v_cvt_pk_bf16_f32 v%d, v%d, v%d" % (XG[2*i] + k, XS(i, k), XS(i, k) + 1))
        a("buffer_store_dwordx4 %s, v%d, %s, s3 offen%s" % (R4(XG[2*i]), vG, S(S_OUT), LDF[OPT["ost"]]))
    a("s_mov_b64 exec, -1")
    stamp(12)

hdr = open("cdna_kernels/%s.s.ref" % BASE).read().split("; Override")[0]
a.raw(hdr.rstrip())
a.raw("; @launch grid=(256,1,1) block=(512,1,1) lds=163840")
a.raw('.amdgcn_target "amdgcn-amd-amdhsa--gfx950"\n.text')
kernel_header(a, KNAME)
a("s_cmp_ge_u32 s2, 256\ns_cbranch_scc1 L_end")
a("s_load_dwordx16 s[36:51], s[0:1], 0\ns_load_dwordx4 s[52:55], s[0:1], 64\ns_load_dwordx2 s[56:57], s[0:1], 80")
a("v_lshrrev_b32 v1, 6, v0\nv_and_b32 v0, 63, v0\nv_readfirstlane_b32 s%d, v1" % sWV)
if OPT["cpf"]:
    a("s_getpc_b64 s[%d:%d]\nL_pc0:\ns_and_b32 s3, s2, 0xf8\ns_add_u32 s3, s3, s%d\ns_lshl_b32 s3, s3, 7\ns_min_u32 s3, s3, L_table-L_pc0-64" % (sEX, sEX+1, sWV))
    a("s_load_dword s%d, s[%d:%d], s3" % (sSpin, sEX, sEX+1))
    if OPT["cpf"] > 1: a("s_add_u32 s3, s3, 64\ns_load_dword s%d, s[%d:%d], s3" % (sSpin, sEX, sEX+1))
stamp_init(); stamp(0)
a("s_bfe_u32 s%d, s2, 0x10006" % sTY)
if OPT["xmap"]:
    a("s_and_b32 s3, s2, 7\ns_lshl_b32 s3, s3, 1\ns_bfe_u32 s%d, s2, 0x10003\ns_add_u32 s%d, s%d, s3" % (sRB, sRB, sRB))
    a("s_bfe_u32 s3, s2, 0x20004\ns_lshr_b32 s%d, s2, 7\ns_lshl_b32 s%d, s%d, 2\ns_add_u32 s%d, s%d, s3" % (sJJ, sJJ, sJJ, sJJ, sJJ))
else:
    a("s_and_b32 s3, s2, 1\ns_lshl_b32 s3, s3, 3\ns_bfe_u32 s%d, s2, 0x30003\ns_add_u32 s%d, s%d, s3" % (sRB, sRB, sRB))
    a("s_and_b32 s3, s2, 6\ns_lshr_b32 s%d, s2, 7\ns_add_u32 s%d, s%d, s3" % (sJJ, sJJ, sJJ))
a("s_and_b32 s3, s2, 7\ns_lshl_b32 s3, s3, 2\ns_bfe_u32 s%d, s2, 0x20003\ns_add_u32 s%d, s%d, s3\ns_lshr_b32 s%d, s2, 5" % (sRT, sRT, sRT, sCT))
a("s_cmp_lt_u32 s%d, 4\ns_cbranch_scc1 L_compute" % sWV)
_m = len(a.lines)
loader()
if OPT["sco"]:
    import re
    new = []
    for ln in a.lines[_m:]:
        m = re.match(r"\s*v_pk_add_f32 v\[(\d+):\d+\], v\[(\d+):\d+\], v\[(\d+):\d+\]$", ln)
        m2 = re.match(r"\s*v_mov_b64 v\[(\d+):\d+\], v\[(\d+):\d+\]$", ln)
        m3 = re.match(r"\s*v_mov_b64 v\[(\d+):\d+\], 0$", ln)
        if m: d, x, y = map(int, m.groups()); new += ["  v_add_f32 v%d, v%d, v%d" % (d, x, y), "  v_add_f32 v%d, v%d, v%d" % (d+1, x+1, y+1)]
        elif m2: d, x = map(int, m2.groups()); new += ["  v_mov_b32 v%d, v%d" % (d, x), "  v_mov_b32 v%d, v%d" % (d+1, x+1)]
        elif m3: d = int(m3.group(1)); new += ["  v_mov_b32 v%d, 0" % d, "  v_mov_b32 v%d, 0" % (d+1)]
        else: new.append(ln)
    a.lines[_m:] = new
a.label("L_compute")
compute_prologue()
a("s_cmp_lg_u32 s%d, 0\ns_cbranch_scc1 L_cqh" % sTY)
main_loop(0); epilogue_kv(); a("s_branch L_g2early")
a.label("L_cqh")
main_loop(1); epilogue_qh()
a.label("L_g2early")
gemm2_early()
a.label("L_alldone")
stamp_store()
a("s_cmp_lg_u32 s2, 0\ns_cbranch_scc1 L_end\ns_cmp_lg_u32 s%d, 4\ns_cbranch_scc1 L_end" % sWV)
a("s_mov_b32 s3, 0x%x\nv_mov_b32 v2, s%d\nv_mov_b32 v3, 0\ns_mov_b64 exec, 1\nbuffer_store_dword v2, v3, %s, s3 offen sc1" % (EPOCH, sTAG, S(S_WS)))
a.label("L_end")
a("s_endpgm")
a.lines.extend(OUTLINE)
a.raw(".p2align 7\n.type L_table,@object\nL_table:")
T = make_table()
for i in range(0, len(T), 8): a.raw("  .long " + ", ".join(str(x) for x in T[i:i+8]))
a.raw(".size L_table, %d" % (4 * len(T)))
a.raw('.section .rodata,"a"')
kernel_desc(a, KNAME, 256, 102)
sys.stdout.write(a.text())
```

```python
import sys, struct
from asmlib import *
BASE = "parallel_sum__linear_attn_block__dense_activation_gelu__prompt"
KNAME = BASE + "_kernel"
OPT = dict(stamps=0, sm=0, probe=-1, pcls=0, da=-1, db=-1, dc=0, dwg=100, dwv=0, cp2=0, slp=2, n1=3, cpf=2, win=2, xmap=1, fast=1, kvu=0, qord=0, cprio=0, thr=0, touch=0, shift=2, nojob=0, norot=0, lst=0, kvd=6, lp=3, n2=2, ald=0, bld=0, pld=0, wb=0, wbw=0, ost=1, qk=0, qq=0, mrg=1, s1e=0, kvb=0, ap=1, afirst=1, il=1, qb=0, yld=0, sco=1, scp=1, swp=1, gh=2, bl=0, jst=1, lvm=1)
for arg in sys.argv[1:]:
    k, v = arg.split("="); assert k in OPT, k; OPT[k] = int(v)
STAMPS = OPT["stamps"]
f32 = lambda x: struct.unpack("<I", struct.pack("<f", x))[0]

B2_OFF = 0x900000
KVP_OFF = 0xC00000; KVP_STRIDE = 6912
STAT_OFF = 0xD00000
FLAG_OFF = 0xD10000
EPOCH = FLAG_OFF; FWG = FLAG_OFF + 0x1000; FH = FLAG_OFF + 0x4000
CSP_OFF = 0xD20000
RED_OFF = 0xD50000
STAMP_OFF = 0xE00000
WS_SIZE = 0x1000000
OOB = 0x7f000000
SLOT = 45184
K_OFF = 16384; V_OFF = 26640; HKV_OFF = 36992; HQ_OFF = 26624
JOBL = 2 * SLOT
IMG = 147456
LFLAG = 160000; TAGL = 160064; FASTL = 160128
LF_IMG, LF_XK, LF_PRE, LF_Q, LF_PQ, LF_B, LF_T = 0, 4, 8, 12, 16, 32, 48
GAL = 156672; STATL = 160768; CSL = 161792
EBS = 30720
XK = 122880; PQL = 122880
SPIN = 200000
NKVU = 128 * OPT["kvu"]; NQU = 680 - NKVU; QPER = -(-NQU // 512)
S_X, S_J, S_W1, S_WS, S_P, S_OUT, S_B1, S_B2 = 4, 8, 12, 16, 20, 24, 28, 32
sRB, sJJ, sTY, sWV, sTAG, sM, sN = 58, 59, 60, 61, 62, 63, 64
sT1, sT2, sT3 = 65, 66, 67
sLA, sLP, sLP4, sLH, sIncP, sA, sP, sH, sSlot, sCnt = 68, 69, 70, 71, 72, 73, 74, 75, 76, 77
sORD = 76
sEX = 78; sSpin = 80; sRT, sCT = 81, 82
sK0, sK1, sK2 = 83, 84, 85
sST = 86
sAo0, sAo1, sAo2, sBo0, sBo1, sBo2 = 36, 37, 38, 39, 42, 43
TB = [40, 41, 48, 49]
sDL = 56
sAoF, sBoF, sBoE = 44, 45, 55
sFAST = 54; sPC = 46

a = Asm()
LDF = {0: ' sc1', 1: '', 2: ' nt'}
ALD = LDF[OPT['ald']]; BLD = LDF[OPT['bld']]; PLD = LDF[OPT['pld']]
OUTLINE = []
def srd(d, p, n): a("s_mov_b32 s%d, s%d\ns_mov_b32 s%d, s%d\ns_mov_b32 s%d, 0x%x\ns_mov_b32 s%d, 0x20000" % (d, p, d+1, p+1, d+2, n, d+3))
def S(d): return "s[%d:%d]" % (d, d+3)
def R4(b): return "v[%d:%d]" % (b, b + 3)
def R2(b): return "v[%d:%d]" % (b, b + 1)
def align8(): a.raw(".p2align 3")

def stamp(idx, mode=0):
    if mode == 0 and OPT["da"] >= 0:
        if idx == 0: a("s_memrealtime s[%d:%d]\ns_waitcnt lgkmcnt(0)\ns_mov_b32 s%d, s%d" % (sST, sST+1, sST + 2, sST))
        if idx in (OPT["da"], OPT["db"]): a("%s s[%d:%d]\ns_waitcnt lgkmcnt(0)\ns_mov_b32 s%d, s%d" % ("s_memtime" if OPT["dc"] else "s_memrealtime", sST, sST+1, sST + (3 if idx == OPT["da"] else 4), sST))
    if mode == 0 and OPT["probe"] == idx:
        a("s_memrealtime s[%d:%d]\ns_waitcnt lgkmcnt(0)\ns_mov_b32 s%d, s%d" % (sST, sST+1, sST + 2, sST))
    if not STAMPS or (mode != OPT["sm"] and idx not in (0, 13)): return
    a("s_memrealtime s[%d:%d]\ns_waitcnt lgkmcnt(0)\ns_mov_b32 s%d, s%d" % (sST, sST+1, sST + 2 + idx, sST))
def stamp_init():
    if STAMPS:
        for i in range(14): a("s_mov_b32 s%d, 0" % (sST + 2 + i))
def stamp_store():
    if OPT["da"] >= 0:
        a("s_cmp_lg_u32 s2, %d\ns_cbranch_scc1 L_dd\ns_cmp_lg_u32 s%d, %d\ns_cbranch_scc1 L_dd" % (OPT["dwg"], sWV, OPT["dwv"]))
        a("s_sub_u32 s%d, s%d, s%d" % (sST + 4, sST + 4, sST + 3))
        a(("s_lshr_b32 s%d, s%d, 1" if OPT["dc"] else "s_mul_i32 s%d, s%d, 10") % (sST + 4, sST + 4))
        a("s_add_u32 s%d, s%d, 5000\ns_min_u32 s%d, s%d, 100000" % (sST + 4, sST + 4, sST + 4, sST + 4))
        a.label("L_dsp")
        a("s_memrealtime s[%d:%d]\ns_waitcnt lgkmcnt(0)\ns_sub_u32 s3, s%d, s%d\ns_cmp_lt_u32 s3, s%d\ns_cbranch_scc1 L_dsp" % (sST, sST+1, sST, sST + 2, sST + 4))
        a.label("L_dd")
    if OPT["probe"] >= 0:
        a("s_waitcnt vmcnt(0)")
        stamp(13)
        a("s_lshr_b32 s3, s%d, 2\ns_cmp_lg_u32 s3, %d\ns_cbranch_scc1 L_pspd" % (sWV, OPT["pcls"]))
        a.label("L_psp")
        a("s_memrealtime s[%d:%d]\ns_waitcnt lgkmcnt(0)\ns_sub_u32 s3, s%d, s%d\ns_cmp_lt_u32 s3, 10000\ns_cbranch_scc1 L_psp" % (sST, sST+1, sST, sST + 2))
        a.label("L_pspd")
    if not STAMPS: return
    a("s_waitcnt vmcnt(0)")
    stamp(13)
    for i in range(14): a("v_mov_b32 v%d, s%d" % (4 + i, sST + 2 + i))
    a("v_mov_b32 v18, 0\nv_mov_b32 v19, 0\nv_mov_b32 v2, 0\ns_lshl_b32 s3, s2, 3\ns_add_u32 s3, s3, s%d\ns_lshl_b32 s3, s3, 6\ns_add_u32 s3, s3, 0x%x\ns_mov_b64 exec, 1" % (sWV, STAMP_OFF))
    for i in range(4): a("buffer_store_dwordx4 v[%d:%d], v2, %s, s3 offen offset:%d" % (4 + 4*i, 7 + 4*i, S(S_WS), 16*i))
    a("s_mov_b64 exec, -1")

class VM:
    def __init__(self): self.q = []
    def add(self, lab, n=1): self.q += [lab] * n
    def wait(self, *labs):
        idx = [i for i, x in enumerate(self.q) if x in labs]
        if not idx: return
        n = len(self.q) - 1 - max(idx)
        assert n <= 63
        a("s_waitcnt vmcnt(%d)" % n); self.q = self.q[max(idx) + 1:]
def capture(fn):
    n = len(a.lines); fn(); out = a.lines[n:]; del a.lines[n:]; return [x.strip() for x in out]

def st_a2(ops):
    if isinstance(ops, str): ops = [ops]
    if not OPT["fast"]:
        for o in ops: a(o + " sc1")
        return
    l = a.newlabel("Lsl")
    a("s_cmp_lg_u32 s%d, 0\ns_cbranch_scc0 %s" % (sFAST, l))
    for o in ops: a(o)
    a.label(l + "_b")
    OUTLINE.append(l + ":")
    for o in ops: OUTLINE.append("  " + o + " sc1")
    OUTLINE.append("  s_branch %s_b" % l)

def poll(voff, soff, nlanes, vt, name):
    lp = a.newlabel("Lpoll_" + name)
    a("s_mov_b32 s%d, %d\ns_mov_b64 exec, 0x%x" % (sSpin, SPIN, (1 << nlanes) - 1))
    a.label(lp)
    a("buffer_load_dword v%d, v%d, %s, s%d offen%s\ns_waitcnt vmcnt(0)" % (vt, voff, S(S_WS), soff, PLD))
    a("v_cmp_ne_u32 vcc, s%d, v%d\ns_cbranch_vccz %s_d" % (sTAG, vt, lp))
    a("s_sleep %d\ns_sub_u32 s%d, s%d, 1\ns_cbranch_scc0 %s" % (OPT["slp"], sSpin, sSpin, lp))
    a.label(lp + "_d")
    a("s_mov_b64 exec, -1")
def lds_addr(v, off, sw):
    if sw is None: a("v_mov_b32 v%d, %d" % (v, LFLAG + off))
    else: a("s_lshl_b32 s3, s%d, 2\ns_add_u32 s3, s3, %d\nv_mov_b32 v%d, s3" % (sw, LFLAG + off, v))
def lds_signal(off, sw, v):
    lds_addr(v, off, sw)
    a("v_mov_b32 v%d, 1\ns_mov_b64 exec, 1\nds_add_u32 v%d, v%d\ns_mov_b64 exec, -1" % (v + 1, v, v + 1))
def lds_wait(off, sw, cnt, v, slp=1):
    lp = a.newlabel("Llw"); lds_addr(v, off, sw)
    a("s_mov_b32 s%d, %d" % (sSpin, 20 * SPIN))
    a.label(lp)
    a("ds_read_b32 v%d, v%d\ns_waitcnt lgkmcnt(0)\nv_cmp_ne_u32 vcc, %d, v%d\ns_cbranch_vccz %s_d" % (v + 1, v, cnt, v + 1, lp))
    if slp: a("s_sleep %d" % slp)
    a("s_sub_u32 s%d, s%d, 1\ns_cbranch_scc0 %s" % (sSpin, sSpin, lp))
    a.label(lp + "_d")
def lds_wait_ge(off, cnt, v, slp=1):
    lp = a.newlabel("Llg"); lds_addr(v, off, None)
    a("s_mov_b32 s%d, %d" % (sSpin, 20 * SPIN))
    a.label(lp)
    a("ds_read_b32 v%d, v%d\ns_waitcnt lgkmcnt(0)\nv_cmp_gt_u32 vcc, %d, v%d\ns_cbranch_vccz %s_d" % (v + 1, v, cnt, v + 1, lp))
    if slp: a("s_sleep %d" % slp)
    a("s_sub_u32 s%d, s%d, 1\ns_cbranch_scc0 %s" % (sSpin, sSpin, lp))
    a.label(lp + "_d")
def bf16_round(v): a("v_cvt_pk_bf16_f32 v%d, v%d, v%d\nv_lshlrev_b32 v%d, 16, v%d" % (v, v, v, v, v))
def unpack(dst, src): a("v_lshlrev_b32 v%d, 16, v%d\nv_and_b32 v%d, 0xffff0000, v%d" % (dst, src, dst + 1, src))
def padd(d, x, y, scalar):
    if scalar: a("v_add_f32 v%d, v%d, v%d\nv_add_f32 v%d, v%d, v%d" % (d, x, y, d + 1, x + 1, y + 1))
    else: a("v_pk_add_f32 %s, %s, %s" % (R2(d), R2(x), R2(y)))
def tagchk(acc_, regs):
    a("v_xor_b32 v%d, s%d, v%d" % (acc_, TB[0], regs[0]))
    for k, r in enumerate(regs):
        if k: a("v_bitop3_b32 v%d, v%d, v%d, s%d bitop3:0xf6" % (acc_, acc_, r, TB[k % 4]))
    a("v_and_b32 v%d, 0xff, v%d\nv_cmp_ne_u32 vcc, 0, v%d" % (acc_, acc_, acc_))

G_ACC = 4
KS_C = [2, 4, 8, 10, 0, 1, 6, 7]; KS_L = [2, 4, 8, 10]
def g2_setup(late):
    w = sM if late else sWV
    a("v_lshlrev_b32 v1, 4, v0\nv_add_u32 v2, 4096, v1")
    a("s_mul_i32 s%d, s%d, 12" % (sK0, w))
    if late: a("s_lshl_b32 s%d, s%d, 2\ns_add_u32 s%d, s%d, 48\ns_add_u32 s%d, s%d, 64" % (sK1, w, sK1, sK1, sK2, w))
    a("s_mul_i32 s3, s%d, 68" % sRT)
    for (d, k) in ((sAo0, sK0),) + (((sAo1, sK1), (sAo2, sK2)) if late else ()):
        a("s_add_u32 s%d, s3, s%d\ns_lshl_b32 s%d, s%d, 12" % (d, k, d, d))
    a("s_mul_i32 s3, s%d, 5120\ns_add_u32 s3, s3, 0x%x" % (sCT, B2_OFF))
    for (d, k) in ((sBo0, sK0),) + (((sBo1, sK1), (sBo2, sK2)) if late else ()):
        a("s_mul_i32 s%d, s%d, 40960\ns_add_u32 s%d, s%d, s3" % (d, k, d, d))
    if OPT["swp"]: a("s_xor_b32 s%d, s%d, %d" % (sDL, sTY, 1 if late else 0))
    else: a("s_mov_b32 s%d, %d" % (sDL, 0 if late else 1))
    a("s_lshl_b32 s3, s%d, 12\ns_add_u32 s%d, s%d, s3\ns_mul_i32 s3, s%d, 40960\ns_add_u32 s%d, s%d, s3" % (sDL, sAoF, sAo0, sDL, sBoF, sBo0))
    if late: a("s_sub_u32 s%d, s%d, s3\ns_add_u32 s%d, s%d, 40960" % (sBoE, sBo0, sBoE, sBoE))
def step_off(s, late, bases, stride, dst=3):
    if s < 4: b, k = bases[3], KS_L[s]
    elif not late: b, k = bases[0], KS_C[s]
    elif s < 8: b, k = bases[1], s - 4
    else: b, k = bases[2], 0
    a("s_add_u32 s%d, s%d, %d" % (dst, b, stride * k))
CB67 = [20, 24, 48, 52, 76, 80, 104, 108, 216, 220]
_free = [g for g in range(4, 244, 4) if g not in CB67]
CACC = _free[:20]; CDB = _free[20:30]; CA_ = _free[30:50]
def Dreg(i, t, late): return G_ACC + (i*5 + t) * 4 if late else CACC[i*5 + t]
def Breg(s, t, late):
    if late: return 84 + 20 * (s % 7) + 4*t
    return CDB[5*(s & 1) + t] if s < 6 else CB67[5*(s - 6) + t]
def Areg(s, i, late): return 224 + 16 * (s & 1) + 4*i if late else CA_[4*(s % 5) + i]
def loadB(s, late):
    step_off(s, late, (sBo0, sBo1, sBo2, sBoF), 40960)
    for t in range(4): a("buffer_load_dwordx4 %s, v1, %s, s3 offen offset:%d%s" % (R4(Breg(s, t, late)), S(S_WS), 1024*t, BLD))
    a("buffer_load_dwordx4 %s, v2, %s, s3 offen%s" % (R4(Breg(s, 4, late)), S(S_WS), BLD))
def loadA(s, late):
    step_off(s, late, (sAo0, sAo1, sAo2, sAoF), 4096)
    for i in range(4): a("buffer_load_dwordx4 %s, v1, %s, s3 offen offset:%d%s" % (R4(Areg(s, i, late)), S(S_WS), 1024*i, ALD))
def dmaB(s):
    step_off(s, False, (sBo0, 0, 0, sBoE), 40960)
    a("s_mul_i32 m0, s%d, %d\ns_add_u32 m0, m0, %d\ns_nop 0" % (sM, EBS, 5120*s))
    for t in range(4): a("buffer_load_dwordx4 v1, %s, s3 offen offset:%d%s lds" % (S(S_WS), 1024*t, BLD))
    a("s_add_u32 m0, m0, 4096\ns_nop 0\nbuffer_load_dwordx4 v2, %s, s3 offen%s lds" % (S(S_WS), BLD))
    if OPT["thr"]: a("s_waitcnt vmcnt(%d)" % OPT["thr"])
def a2_soff(dst, m, ks_emit):
    ks_emit()
    a("s_lshl_b32 s%d, s%d, 1\ns_add_u32 s%d, s%d, s%d\ns_mul_i32 s%d, s%d, 68\ns_add_u32 s%d, s%d, s3\ns_lshl_b32 s%d, s%d, 12" % (dst, sRB, dst, dst, m, dst, dst, dst, dst, dst, dst))
def ks_flag(sOff, m, waitn, vt):
    a("s_lshl_b32 s3, s%d, 1\ns_add_u32 s3, s3, s%d\ns_mul_i32 s3, s3, %d\ns_lshr_b32 s%d, s%d, 10\ns_add_u32 s3, s3, s%d\ns_add_u32 s3, s3, 0x%x" % (sRB, m, 512 - 272, sSpin, sOff, sSpin, FH))
    a("v_mov_b32 v%d, s%d\nv_mov_b32 v%d, 0\ns_mov_b64 exec, 1\ns_waitcnt vmcnt(%d)" % (vt, sTAG, vt + 1, waitn))
    st_a2("buffer_store_dword v%d, v%d, %s, s3 offen" % (vt, vt + 1, S(S_WS)))
    a("s_mov_b64 exec, -1\ns_nop 0")
def g2_mfma(D, B, A, first): a("v_mfma_f32_16x16x32_bf16 %s, %s, %s, %s" % (R4(D), R4(B), R4(A), "0" if first else R4(D)))
def g2_flagoff(v, ks):
    packed = sum(k << (4*j) for j, k in enumerate(ks))
    a("v_lshlrev_b32 v%d, 2, v0\ns_mul_i32 s3, s56, 0x1111\ns_add_u32 s3, s3, 0x%x\nv_bfe_u32 v%d, s3, v%d, 4\nv_lshlrev_b32 v%d, 2, v%d" % (v, packed, v, v, v, v))
def g2_step(s, late):
    stamp(2 + s, 2)
    for t in range(5):
        for i in range(4): g2_mfma(Dreg(i, t, late), Breg(s, t, late), Areg(s, i, late), s == 0)
def paddr(v, t1, t2):
    a("v_and_b32 v%d, 15, v0\nv_lshrrev_b32 v%d, 4, v0\nv_bfe_u32 v%d, v0, 1, 2\nv_xor_b32 v%d, v%d, v%d\nv_mul_u32_u24 v%d, 320, v%d\nv_lshl_add_u32 v%d, v%d, 4, v%d" % (v, t1, t2, t1, t1, t2, v, v, v, t1, v))

def make_table():
    T = []
    for ty in range(2):
        for t in range(256):
            ga = []
            for rnd in range(2):
                gi = t + 256 * rnd
                if gi >= 420: ga.append(ga[0]); continue
                n, gi = divmod(gi, 210); hh, gi = divmod(gi, 105); e, dg = divmod(gi, 5)
                DG = 5 * hh + dg; ti, g = DG >> 2, DG & 3
                if ty == 0:
                    col = 0 if e == 20 else 20 * hh + e + 8
                    idx = 3 * ti + (col >> 4) - (1 if ti > 0 else 0)
                    ga.append(XK + n * 8192 + idx * 1024 + (g * 16 + (col & 15)) * 16)
                else:
                    c = 40 + hh if e == 20 else 20 * hh + e
                    ga.append(IMG + n * 4608 + ((c * 4 + g) * 16 + ti * 8 if ti < 2 else 3072 + (c * 4 + g) * 8))
            l = t & 63
            if l >= 56: l = 0
            n, u4 = divmod(l, 28)
            if ty == 0: c4, mul = ((160 + 10*n + u4, 20) if u4 < 10 else (320 + 10*n + u4 - 10, 20) if u4 < 20 else (480 + 8*n + u4 - 20, 48))
            else: c4, mul = ((10*n + u4, 20) if u4 < 10 else (10*n + u4 - 2, 20) if u4 < 12 else (480 + 16 + 16*n + u4 - 12, 48))
            T += [ga[0], ga[1]]
    return T

def order_table(ph):
    wins = {1: [1]*10, 2: [2]*5, 3: [3,3,4], 4: [4,3,3]}[OPT["win"]]
    o = []; b = 0
    for w in wins:
        o += [b + (i + ph) % w for i in range(w)]; b += w
    return sum(x << (4*i) for i, x in enumerate(o))

FLC = 6 if OPT["shift"] >= 2 else 7
def loader():
    lw = sM
    def issue(base, part=(0, 11), filler=()):
        def m0(reg, i, first):
            if base is not None: return "s_add_u32 m0, s%d, %d" % (reg, base + 1024*i)
            return "s_add_u32 m0, s%d, s%d" % (reg, sK2) if first else "s_add_u32 m0, m0, 0x400"
        L = []
        for i in range(4): L.append((m0(sLA, i, i == 0), "buffer_load_dwordx4 v%d, %s, s%d offen lds" % (10+i, S(S_X), sA)))
        for i in range(2): L.append((m0(sLH, i, i == 0), "buffer_load_dwordx4 v%d, %s, s%d offen lds" % (19+i, S(S_W1), sH)))
        for i in range(5): L.append((m0(sLP, i, i == 0), "buffer_load_dwordx4 v%d, %s, s%d offen lds" % (14+i, S(S_P), sP)))
        filler = list(filler)
        for k in range(*part):
            m, d = L[k]
            if k == 10:
                l = a.newlabel("Lnop4")
                a("s_cmp_lg_u32 s%d, 0\ns_cbranch_scc1 %s" % (sLP4, l)); a(m); a("s_nop 0"); a(d); a.label(l)
            else: a(m); a("s_nop 0"); a(d)
            if filler: a(filler.pop(0))
    def nextstage(): a("s_lshr_b64 s[%d:%d], s[%d:%d], 4\ns_and_b32 s3, s%d, 15\ns_add_u32 s3, s3, s64\ns_sub_u32 s73, s3, 10\ns_min_u32 s3, s3, s73\ns_lshl_b32 s%d, s3, 7\ns_mul_i32 s%d, s3, s%d\ns_mul_i32 s%d, s3, %d" % (sORD, sORD+1, sORD, sORD+1, sORD, sA, sP, sIncP, sH, 64*3072))
    def bar(k): stamp(k + 1, 4); a("s_barrier"); stamp(k + 1, 3)
    a("s_sub_u32 s%d, s%d, 4" % (lw, sWV))
    a("v_lshrrev_b32 v2, 3, v0\nv_lshrrev_b32 v3, 4, v0\nv_and_b32 v4, 7, v0")
    a("v_xor_b32 v5, v4, v3\nv_lshlrev_b32 v5, 4, v5")
    a("s_lshl_b32 s3, s%d, 7\ns_lshl_b32 s%d, s%d, 5\ns_add_u32 s3, s3, s%d\ns_mul_i32 s3, s3, 1280" % (sRB, sT1, lw, sT1))
    a("v_mul_u32_u24 v6, 1280, v2\nv_add3_u32 v10, v6, v5, s3")
    a("v_xor_b32 v11, 64, v10\nv_add_u32 v11, 10240, v11\nv_add_u32 v12, 20480, v10\nv_add_u32 v13, 20480, v11")
    a("s_lshl_b32 s%d, s%d, 12" % (sLA, lw))
    def rel(ty, par):
        if OPT["shift"] == 3: o = [(i ^ par) if i < 2 else i for i in range(10)]
        elif ty == OPT["shift"]: o = [par, 1 - par, 2] + [3 + (i ^ par) for i in range(6)] + [9]
        else: o = [i ^ par for i in range(10)]
        return sum(x << (4*i) for i, x in enumerate(o))
    a("s_xor_b32 s3, s%d, s59\ns_and_b32 s3, s3, 1\ns_lshl_b32 s%d, s%d, 1\ns_add_u32 s3, s3, s%d\ns_mov_b32 s%d, 0x%x\ns_mov_b32 s%d, 0x%x" % (sRB, sT1, sTY, sT1, sORD, rel(0,0) & 0xffffffff, sORD+1, rel(0,0) >> 32))
    for k in range(1, 4):
        r = rel(k >> 1, k & 1)
        a("s_cmp_eq_u32 s3, %d\ns_cselect_b32 s%d, 0x%x, s%d\ns_cselect_b32 s%d, 0x%x, s%d" % (k, sORD, r & 0xffffffff, sORD, sORD+1, r >> 32, sORD+1))
    a("s_and_b32 s3, s2, 7\ns_sub_u32 s%d, s3, 5\ns_min_u32 s3, s3, s%d\ns_lshl_b32 s%d, s3, 1" % (sT1, sT1, sN))
    if OPT["norot"]: a("s_mov_b32 s%d, 0" % sN)
    a("s_and_b32 s%d, s%d, 15\ns_add_u32 s%d, s%d, s%d\ns_sub_u32 s3, s%d, 10\ns_min_u32 s%d, s%d, s3\ns_lshl_b32 s%d, s%d, 7\ns_mul_i32 s%d, s%d, %d" % (sP, sORD, sP, sP, sN, sP, sP, sP, sA, sP, sH, sP, 64*3072))
    a("s_mov_b32 s%d, 0x%x\ns_mov_b32 s%d, 0x20000" % (S_X+2, 2048*1280, S_X+3))
    a("s_waitcnt lgkmcnt(0)")
    a("s_mov_b32 s%d, s36\ns_mov_b32 s%d, s37" % (S_X, S_X+1))
    stamp(1)
    issue(0, (0, 4))
    a("v_and_b32 v6, 3, v2\nv_lshrrev_b32 v7, 2, v2\nv_lshl_add_u32 v6, v7, 3, v6\nv_mul_u32_u24 v6, 3072, v6")
    a("v_and_b32 v7, 6, v2\nv_xor_b32 v7, v4, v7\nv_lshl_add_u32 v6, v7, 4, v6")
    a("s_mul_i32 s%d, s%d, 384\ns_lshl_b32 s3, s%d, 7\ns_add_u32 s%d, s%d, s3" % (sT1, sJJ, sTY, sT1, sT1))
    a("s_and_b32 s%d, s%d, 1" % (sT2, lw))
    a("s_lshr_b32 s3, s%d, 1\ns_lshl_b32 s3, s3, 3\ns_add_u32 s3, s3, s%d\ns_mul_i32 s3, s3, 12288\ns_add_u32 s3, s3, s%d" % (lw, sT2, sT1))
    a("v_add_u32 v19, s3, v6\nv_add_u32 v20, 49152, v19")
    a("s_movk_i32 s%d, %d\ns_cmp_eq_u32 s%d, 0\ns_cselect_b32 s%d, %d, s%d\ns_lshl_b32 s3, s%d, 11\ns_add_u32 s%d, s%d, s3" % (sLH, HQ_OFF, sTY, sLH, HKV_OFF, sLH, lw, sLH, sLH))
    srd(S_W1, 44, 640*3072)
    issue(0, (4, 6))
    a("s_lshr_b32 s3, s%d, 1\ns_and_b32 s%d, s3, s%d\ns_cbranch_scc1 L_phmode" % (lw, sLP4, sTY))
    a("s_mov_b32 s%d, %d" % (sIncP, 64*3840))
    a("s_lshr_b32 s3, s%d, 1\ns_add_u32 s3, s3, 1\ns_cmp_eq_u32 s%d, 0\ns_cselect_b32 s3, s3, 0" % (lw, sTY))
    a("s_mul_i32 s%d, s3, 1280\ns_mul_i32 s%d, s%d, 160\ns_add_u32 s%d, s%d, s%d\ns_mul_i32 s%d, s%d, %d\ns_add_u32 s%d, s%d, s%d" % (sT1, sT3, sJJ, sT1, sT1, sT3, sT3, sT2, 32*3840, sT1, sT1, sT3))
    a("s_movk_i32 s%d, %d\ns_cmp_eq_u32 s3, 2\ns_cselect_b32 s%d, %d, s%d\ns_mul_i32 s%d, s%d, 5120\ns_add_u32 s%d, s%d, s%d" % (sLP, K_OFF, sLP, V_OFF, sLP, sT3, sT2, sLP, sLP, sT3))
    a("v_mul_u32_u24 v7, 6554, v0\nv_lshl_add_u32 v5, v0, 4, s%d\ns_movk_i32 s3, 3680\ns_movk_i32 s%d, 3840" % (sT1, sT3))
    for i in range(5):
        a("v_add_u32 v8, %d, v7\nv_lshrrev_b32 v8, 16, v8\nv_and_b32 v9, 12, v8" % (64*i*6554))
        c = 1024*i - (46080 if i >= 3 else 0)
        a("v_add_u32 v%d, 0x%x, v5\nv_mad_u32_u24 v%d, v8, s3, v%d\nv_mad_u32_u24 v%d, v9, s%d, v%d" % (14+i, c & 0xffffffff, 14+i, 14+i, 14+i, sT3, 14+i))
        if i == 2: a("v_lshrrev_b32 v8, 4, v8\nv_mul_u32_u24 v8, 46080, v8\nv_sub_u32 v16, v16, v8")
    srd(S_P, 38, 640*3840)
    a("s_branch L_pdone")
    a.label("L_phmode")
    a("s_mov_b32 s%d, %d" % (sIncP, 64*3072))
    a("s_mul_i32 s3, s%d, %d\ns_add_u32 s3, s3, s%d\ns_add_u32 s3, s3, 128" % (sT2, 32*3072, sT1))
    a("v_add_u32 v14, s3, v6\nv_add_u32 v15, 49152, v14\nv_add_u32 v16, 12288, v14\nv_add_u32 v17, 61440, v14\nv_mov_b32 v18, 0x%x" % OOB)
    a("s_lshl_b32 s3, s%d, 12\ns_add_u32 s%d, s3, %d" % (sT2, sLP, HQ_OFF + 8192))
    srd(S_P, 44, 640*3072)
    a.label("L_pdone")
    a("s_mul_i32 s%d, s%d, s%d" % (sP, sP, sIncP))
    issue(0, (6, 11)); nextstage()
    srd(S_WS, 56, WS_SIZE)
    a("s_getpc_b64 s[%d:%d]\nL_pc1:\ns_add_u32 s%d, s%d, L_table-L_pc1\ns_addc_u32 s%d, s%d, 0" % (sPC, sPC+1, sPC, sPC, sPC+1, sPC+1))
    a("v_lshlrev_b32 v1, 4, v0\ns_lshl_b32 s3, s%d, 10\nv_add_u32 v254, s3, v1\ns_lshl_b32 s3, s%d, 12\nv_add_u32 v5, s3, v254\nv_lshrrev_b32 v21, 1, v5" % (lw, sTY))
    a("v_mov_b32 v22, %d\ns_getreg_b32 s%d, hwreg(HW_REG_XCC_ID, 0, 4)\ns_and_b32 s3, s2, 7\ns_lshl_b32 s3, s3, 5\ns_lshr_b32 s%d, s2, 3\ns_add_u32 s3, s3, s%d\ns_lshl_b32 s3, s3, 2\ns_add_u32 s3, s3, 0x%x\nv_mov_b32 v23, s3" % (TAGL, sFAST, sT1, sT1, FWG))
    a("s_mov_b32 s%d, %d\ns_mov_b32 s%d, 1\ns_branch L_kvi" % (sK2, SLOT, sK1))
    a.label("L_kvl")
    a("s_waitcnt vmcnt(10)\ns_barrier")
    if STAMPS and OPT["sm"] == 3:
        a("s_memrealtime s[%d:%d]\ns_waitcnt lgkmcnt(0)" % (sST, sST+1))
        for k in range(7): a("s_cmp_eq_u32 s%d, %d\ns_cselect_b32 s%d, s%d, s%d" % (sK1, k + 2, sST + 3 + k, sST, sST + 3 + k))
    a("s_lshl_b32 s3, s%d, 2\ns_add_u32 s3, s3, s%d\ns_cmp_lg_u32 s3, %d\ns_cbranch_scc1 L_kvi" % (sK1, lw, 4 * 4 + 3))
    a("ds_read_b32 v6, v22\ns_mov_b64 exec, 1\ns_waitcnt lgkmcnt(0)\nv_xor_b32 v6, s%d, v6\nbuffer_store_dword v6, v23, %s, 0 offen sc1\ns_mov_b64 exec, -1" % (sFAST, S(S_WS)))
    a.label("L_kvi")
    if OPT["cp2"]:
        a("s_cmp_lg_u32 s%d, %d\ns_cbranch_scc1 L_nocp2" % (sK1, OPT["cp2"]))
        a("s_lshr_b32 s3, s2, 3\ns_lshl_b32 s3, s3, 2\ns_add_u32 s3, s3, s%d\ns_lshl_b32 s3, s3, 8\ns_min_u32 s3, s3, L_table-L_pc0-256" % lw)
        for k in range(4): a("s_load_dword s%d, s[%d:%d], s3\ns_add_u32 s3, s3, 64" % (sSpin, sEX, sEX+1))
        a.label("L_nocp2")
    issue(None); nextstage()
    a("s_add_u32 s%d, s%d, %d\ns_cmp_eq_u32 s%d, %d\ns_cselect_b32 s%d, 0, s%d\ns_add_u32 s%d, s%d, 1\ns_cmp_lt_u32 s%d, 9\ns_cbranch_scc1 L_kvl" % (sK2, sK2, SLOT, sK2, 3*SLOT, sK2, sK2, sK1, sK1, sK1))
    if OPT["lp"]: a("s_setprio %d" % OPT["lp"])
    a("global_load_dwordx2 v[252:253], v21, s[%d:%d]" % (sPC, sPC+1))
    a("v_mov_b32 v6, %d\nds_read_b32 v6, v6" % TAGL)
    g2_setup(True)
    a("v_and_b32 v29, 15, v0\nv_min_u32 v29, 13, v29\nv_lshlrev_b32 v29, 4, v29\ns_mul_i32 s3, s%d, 224\nv_add_u32 v29, s3, v29\nv_lshrrev_b32 v30, 4, v0\nv_lshl_add_u32 v31, v30, 10, v29\nv_and_b32 v30, 0x7ff, v31\nv_add_u32 v29, %d, v29\ns_lshl_b32 s3, s%d, 3\ns_add_u32 s3, s3, s%d\ns_mul_i32 s%d, s3, 10240\ns_add_u32 s%d, s%d, 0x%x" % (lw, CSL, sTY, sJJ, sPC, sPC, sPC, CSP_OFF))
    a("v_add_u32 v255, 4096, v254\nv_cmp_gt_u32 vcc, %d, v254\nv_mov_b32 v3, 0x%x\ns_mov_b64 s[%d:%d], vcc\nv_cndmask_b32 v255, v3, v255, vcc" % ((420 - 256) * 16, OOB, sEX, sEX+1))
    a("s_lshl_b32 s%d, s%d, 10\ns_lshl_b32 s3, s%d, 11\ns_add_u32 s%d, s%d, s3\ns_add_u32 s%d, s%d, 0x%x" % (sT1, lw, sRB, sT1, sT1, sT1, sT1, STAT_OFF - 1024))
    a("s_cmp_eq_u32 s%d, 3\ns_cselect_b32 s%d, 0x%x, s%d\ns_cselect_b32 s%d, -16, 0\ns_cselect_b32 s%d, -16, -1" % (lw, sT1, FWG, sT1, sT2, sT3))
    a("s_waitcnt lgkmcnt(0)\nv_readfirstlane_b32 s%d, v6\ns_waitcnt vmcnt(11)" % sTAG)
    bar(7)
    def csloads():
        for p in range(3): a("s_add_u32 s3, s%d, %d\nbuffer_load_dwordx4 %s, v%d, %s, s3 offen sc1" % (sPC, 4096 * p, R4(36 + 4*p), 31 if p < 2 else 30, S(S_WS)))
    a("s_cmp_eq_u32 s%d, 0\ns_cbranch_scc1 L_ck1\nbuffer_load_dwordx4 v[24:27], v1, %s, s%d offen sc1" % (lw, S(S_WS), sT1))
    a.label("L_ck1")
    issue(0, filler=["\n".join("s_lshr_b32 s%d, s%d, %d" % (TB[k], sTAG, 8*k) for k in range(4)),
          "v_mov_b64 v[4:5], 0\nv_mov_b64 v[6:7], 0\nv_add_u32 v8, %d, v254\nv_add_u32 v9, %d, v1" % (IMG, IMG + 8192),
          "ds_write_b128 v8, v[4:7]\nds_write_b128 v8, v[4:7] offset:4096\nds_write_b128 v9, v[4:7]"])
    a("s_mov_b32 s%d, %d\ns_waitcnt vmcnt(10)\ns_cmp_eq_u32 s%d, 3\ns_cbranch_scc1 L_chk" % (sSpin, SPIN, lw))
    bar(8)
    a("s_cmp_eq_u32 s%d, 0\ns_cbranch_scc1 L_chkok" % lw)
    a.label("L_chk")
    for k in range(4): a("v_xor_b32 v%d, s%d, v%d" % (32 + k, sTAG, 24 + k))
    a("v_or_b32 v3, v32, v34\nv_or_b32 v4, v33, v35\nv_and_b32 v3, s%d, v3\nv_and_b32 v4, s%d, v4\nv_or_b32 v3, v3, v4\nv_cmp_ne_u32 vcc, 0, v3\ns_cbranch_vccz L_chkw" % (sT2, sT3))
    a("s_sleep 8\nbuffer_load_dwordx4 v[24:27], v1, %s, s%d offen sc1\ns_waitcnt vmcnt(0)\ns_sub_u32 s%d, s%d, 1\ns_cbranch_scc0 L_chk" % (S(S_WS), sT1, sSpin, sSpin))
    a.label("L_chkw")
    a("s_cmp_eq_u32 s%d, 3\ns_cbranch_scc1 L_chk3" % lw)
    a("s_lshl_b32 s3, s%d, 8\ns_add_u32 s3, s3, %d\nv_lshl_add_u32 v3, v0, 2, s3\nds_write2st64_b32 v3, v24, v26 offset0:0 offset1:2\ns_branch L_chkok" % (lw, STATL - 256))
    a.label("L_chk3")
    a("s_getreg_b32 s3, hwreg(HW_REG_XCC_ID, 0, 4)\nv_xor_b32 v3, s3, v32")
    for k in range(1, 4): a("v_bitop3_b32 v3, v3, v%d, s3 bitop3:0xf6" % (32 + k))
    a("v_cmp_ne_u32 vcc, 0, v3\ns_and_b32 s3, s2, 7\ns_lshl_b32 s3, s3, 3\ns_lshr_b64 vcc, vcc, s3\ns_and_b32 s3, vcc_lo, 0xff\ns_cselect_b32 s3, 0, 1")
    a("v_mov_b32 v3, %d\nv_mov_b32 v4, s3\nds_write_b32 v3, v4\ns_barrier\ns_branch L_chkok" % FASTL)
    a.label("L_chkok")
    csloads()
    n1 = OPT["n1"]
    for s in range(n1): loadB(s, True)
    a("s_waitcnt vmcnt(%d) lgkmcnt(0)" % (5 * n1 + 3))
    bar(9)
    a("v_mov_b32 v6, %d\nds_read_b32 v6, v6\ns_mov_b32 s%d, %d\ns_waitcnt vmcnt(%d)" % (FASTL, sSpin, SPIN, 5 * n1))
    a.label("L_cchk")
    tagchk(3, list(range(36, 48)))
    a("s_cbranch_vccz L_cchkok\ns_sleep 8")
    csloads()
    a("s_waitcnt vmcnt(0)\ns_sub_u32 s%d, s%d, 1\ns_cbranch_scc0 L_cchk" % (sSpin, sSpin))
    a.label("L_cchkok")
    a("v_pk_add_f32 v[36:37], v[36:37], v[40:41]\nv_pk_add_f32 v[38:39], v[38:39], v[42:43]\ns_mov_b32 exec_hi, 0\nv_pk_add_f32 v[36:37], v[36:37], v[44:45]\nv_pk_add_f32 v[38:39], v[38:39], v[46:47]\ns_mov_b64 exec, -1")
    for op in ("v_permlane16_swap_b32", "v_permlane32_swap_b32"):
        a("v_mov_b64 v[40:41], v[36:37]\nv_mov_b64 v[42:43], v[38:39]\ns_nop 1")
        for k in range(4): a("%s v%d, v%d" % (op, 36 + k, 40 + k))
        a("s_nop 0\nv_pk_add_f32 v[36:37], v[36:37], v[40:41]\nv_pk_add_f32 v[38:39], v[38:39], v[42:43]")
    a("ds_write_b128 v29, v[36:39]")
    stamp(4)
    nb = min(7, n1 + OPT["n2"])
    for s in range(n1, nb): loadB(s, True)
    a("s_mul_i32 s%d, s%d, %d\ns_add_u32 s%d, s%d, 0x%x\ns_waitcnt lgkmcnt(0)\nv_readfirstlane_b32 s%d, v6" % (sH, sJJ, KVP_STRIDE, sH, sH, RED_OFF, sFAST))
    stamp(5)
    a("s_barrier")
    if OPT["lp"]: a("s_setprio 0")
    stamp(6)
    for s in range(nb, 4): loadB(s, True)
    for s in range(OPT["kvd"]): dmaB(s)
    a("s_lshl_b32 s%d, s%d, 9\ns_add_u32 s%d, s%d, 0x%x\ns_lshl_b32 s3, s%d, 2\ns_add_u32 s%d, s%d, s3\ns_lshl_b32 s3, s%d, 2\ns_add_u32 s%d, s%d, s3" % (sORD+1, sRT, sORD+1, sORD+1, FH, sK0, sORD, sORD+1, sK1, sORD+1, sORD+1))
    for k in range(4): step_off(4 + k, True, (sAo0, sAo1, sAo2, sAoF), 4096, sLA + k)
    nb2 = max(nb, 4)
    nbq = nb2
    if not (OPT["bl"] and OPT["afirst"]):
        for s in range(nb2, 7): loadB(s, True)
        nbq = 7
    a("s_cmp_lg_u32 s%d, 0\ns_cbranch_scc1 L_lq1" % sTY)
    for s in range(nbq, 7): loadB(s, True)
    nb2 = 7
    a("s_lshl_b32 s%d, s%d, 4\ns_mul_i32 s%d, s%d, %d\ns_add_u32 s%d, s%d, 0x%x\ns_mul_i32 s3, s%d, %d\ns_add_u32 s%d, s%d, s3\nv_mov_b32 v3, 0xff" % (sT2, sJJ, sT2, sT2, KVP_STRIDE, sT2, sT2, KVP_OFF, sRB, KVP_STRIDE, sT1, sT2))
    a("s_lshl_b32 s%d, s%d, 2\ns_add_u32 s%d, s%d, s%d\ns_lshl_b32 s3, s%d, 7\ns_add_u32 s%d, s%d, s3\ns_add_u32 s%d, s%d, s3\ns_add_u32 s%d, s%d, %d" % (sA, sRB, sA, sA, lw, sA, sT2, sT2, sH, sH, sT3, sT2, 8*KVP_STRIDE))
    a("s_cmp_eq_u32 s%d, 52\ns_cselect_b32 s3, 3, 7\nv_and_b32 v21, s3, v0\nv_lshlrev_b32 v21, 4, v21\nv_lshrrev_b32 v20, 3, v0\nv_mul_u32_u24 v20, %d, v20\nv_add_u32 v20, v20, v21" % (sA, KVP_STRIDE))
    stamp(1, 1)
    a("s_setprio 2")
    lds_wait(LF_XK, None, 4, 4)
    stamp(7); stamp(3, 1)
    a("ds_read_b128 v[4:7], v252\nds_read_b128 v[8:11], v252 offset:16384\nds_read_b128 v[12:15], v253\nds_read_b128 v[16:19], v253 offset:16384")
    a("s_waitcnt lgkmcnt(2)\nv_pk_add_f32 v[4:5], v[4:5], v[8:9]\nv_pk_add_f32 v[6:7], v[6:7], v[10:11]")
    for k in range(4): a("v_bfi_b32 v%d, v3, s%d, v%d" % (4 + k, TB[k], 4 + k))
    a("buffer_store_dwordx4 v[4:7], v254, %s, s%d offen sc1" % (S(S_WS), sT1))
    a("s_waitcnt lgkmcnt(0)\nv_pk_add_f32 v[12:13], v[12:13], v[16:17]\nv_pk_add_f32 v[14:15], v[14:15], v[18:19]")
    for k in range(4): a("v_bfi_b32 v%d, v3, s%d, v%d" % (12 + k, TB[k], 12 + k))
    a("buffer_store_dwordx4 v[12:15], v255, %s, s%d offen sc1" % (S(S_WS), sT1))
    for s in range(OPT["kvd"], 6): dmaB(s)
    a("s_waitcnt vmcnt(%d)" % (2 if OPT["kvd"] == 6 else 0))
    lds_signal(LF_B, lw, 22)
    nkb = min(7, nb2 + OPT["kvb"])
    for s in range(nb2, nkb): loadB(s, True)
    stamp(4, 1)
    a("s_cmp_gt_u32 s%d, 52\ns_cbranch_scc1 L_nored\ns_mov_b32 s%d, %d\ns_waitcnt vmcnt(0)" % (sA, sSpin, SPIN))
    a.label("L_red")
    a("buffer_load_dwordx4 v[4:7], v20, %s, s%d offen sc1\nbuffer_load_dwordx4 v[8:11], v20, %s, s%d offen sc1\ns_waitcnt vmcnt(0)" % (S(S_WS), sT2, S(S_WS), sT3))
    tagchk(12, list(range(4, 12)))
    a("s_cbranch_vccz L_redok\ns_sleep 1\ns_sub_u32 s%d, s%d, 1\ns_cbranch_scc0 L_red" % (sSpin, sSpin))
    a.label("L_redok")
    stamp(5, 1)
    a("v_pk_add_f32 v[4:5], v[4:5], v[8:9]\nv_pk_add_f32 v[6:7], v[6:7], v[10:11]\ns_nop 1")
    for k in range(4): a("v_add_f32_dpp v%d, v%d, v%d row_ror:8 row_mask:0xf bank_mask:0xf" % (4 + k, 4 + k, 4 + k))
    for op in ("v_permlane16_swap_b32", "v_permlane32_swap_b32"):
        a("v_mov_b64 v[8:9], v[4:5]\nv_mov_b64 v[10:11], v[6:7]\ns_nop 1")
        for k in range(4): a("%s v%d, v%d" % (op, 4 + k, 8 + k))
        a("s_nop 0\nv_pk_add_f32 v[4:5], v[4:5], v[8:9]\nv_pk_add_f32 v[6:7], v[6:7], v[10:11]")
    for k in range(4): a("v_bfi_b32 v%d, v3, s%d, v%d" % (4 + k, TB[k], 4 + k))
    a("s_mov_b64 exec, 0xff\nbuffer_store_dwordx4 v[4:7], v21, %s, s%d offen sc1\ns_mov_b64 exec, -1" % (S(S_WS), sH))
    a.label("L_nored")
    lds_signal(LF_Q, None, 22)
    if OPT["qk"]: lds_wait(LF_Q, None, 4, 22)
    a("s_setprio 0")
    for s in range(nkb, 7): loadB(s, True)
    a("s_branch L_la")
    a.label("L_lq1")
    for s in range(OPT["kvd"], 6): dmaB(s)
    for s in range(nb2, 7): loadB(s, True)
    a("s_lshr_b32 s%d, s%d, 1\ns_and_b32 s%d, s%d, 1" % (sA, lw, sP, lw))
    a2_soff(sT2, sA, lambda: a("s_lshl_b32 s3, s%d, 1\ns_add_u32 s3, s3, s%d\ns_add_u32 s3, s3, 48" % (sJJ, sP)))
    a2_soff(sT3, sA, lambda: a("s_lshr_b32 s3, s%d, 1\ns_add_u32 s3, s3, 64" % sJJ))
    a("s_lshl_b32 s3, s%d, 1\ns_add_u32 s3, s3, s%d\ns_and_b32 s3, s3, 3\ns_lshl_b32 s3, s3, 8\ns_add_u32 s%d, s%d, s3" % (sJJ, sP, sT3, sT3))
    a("s_lshl_b32 s3, s%d, 10\ns_add_u32 s%d, s%d, s3" % (lw, sH, sH))
    stamp(1, 1)
    a("s_waitcnt vmcnt(%d)" % (5 * (7 - nb2)))
    lds_signal(LF_B, lw, 22)
    AF = OPT["afirst"]
    if AF:
        a("v_lshrrev_b32 v4, 1, v254\nv_add_u32 v4, %d, v4\nds_write_b64 v4, v[252:253]" % GAL)
        stamp(8); stamp(6, 1)
        g2_flagoff(3, KS_L)
        poll(3, sORD, 4, 4, "hq")
        stamp(9); stamp(7, 1); stamp(1, 2)
        if OPT["ap"]: a("s_setprio %d" % OPT["ap"])
        vq = VM(); G = 108
        loadA(0, True); loadA(1, True); vq.add("A0", 4); vq.add("A1", 4)
        lateB = list(range(nbq, 7))
        if lateB: loadB(lateB.pop(0), True); vq.add("B", 5)
        for s in range(4):
            vq.wait("A%d" % s)
            g2_step(s, True)
            if s < 2: loadA(s + 2, True); vq.add("A%d" % (s + 2), 4)
            if lateB and s < 2: loadB(lateB.pop(0), True); vq.add("B", 5)
            if s == OPT["gh"]:
                a("v_cndmask_b32 v%d, v1, v2, s[%d:%d]" % (G + 10, sEX, sEX+1))
                a("buffer_load_dwordx4 %s, v1, %s, s%d offen sc1\nbuffer_load_dwordx4 %s, v%d, %s, s%d offen sc1" % (R4(G), S(S_WS), sH, R4(G + 4), G + 10, S(S_WS), sH)); vq.add("G", 2)
        assert not lateB
        stamp(8, 1)
    PQ = 224; AD = 248
    W32, W16, O, RM, G = (84, 98, 108, 156, 108) if AF else (4, 18, 28, 76, 28)
    if not AF: a("v_cndmask_b32 v%d, v1, v2, s[%d:%d]" % (G + 10, sEX, sEX+1))
    def gl(): a("buffer_load_dwordx4 %s, v1, %s, s%d offen sc1\nbuffer_load_dwordx4 %s, v%d, %s, s%d offen sc1" % (R4(G), S(S_WS), sH, R4(G + 4), G + 10, S(S_WS), sH))
    if AF:
        a("s_lshl_b32 s3, s%d, 9\ns_add_u32 s3, s3, %d\nv_lshl_add_u32 v%d, v0, 3, s3\nds_read_b64 %s, v%d" % (lw, GAL, G + 12, R2(G + 12), G + 12))
    else: a("v_mov_b64 %s, v[252:253]" % R2(G + 12))
    import re
    def ag(x): a(re.sub(r"@(\d+)@", lambda m: str(G + int(m.group(1))), x))
    ag("v_and_b32 v@16@, 15, v0\nv_lshrrev_b32 v@15@, 4, v0\ns_mul_i32 s3, s%d, 4608\ns_add_u32 s3, s3, %d" % (sP, IMG))
    ag("v_lshl_add_u32 v@17@, v@16@, 2, v@15@\nv_lshl_add_u32 v%d, v@17@, 3, s3\nv_lshl_add_u32 v%d, v@17@, 4, s3" % (AD+1, AD))
    ag("v_and_b32 v@18@, 3, v@16@\nv_min_u32 v@18@, 1, v@18@\nv_cmp_eq_u32 vcc, 2, v@16@\nv_lshlrev_b32 v@16@, 4, v@16@\nv_lshl_add_u32 v%d, v@15@, 10, v@16@\nv_cndmask_b32 v@18@, v@18@, 0, vcc" % (AD+4))
    ag("v_add_u32 v@18@, 40, v@18@\nv_lshl_add_u32 v@18@, v@18@, 2, v@15@\nv_lshl_add_u32 v%d, v@18@, 3, s3\nv_lshl_add_u32 v%d, v@18@, 4, s3\nv_mov_b32 v%d, 0x358637bd" % (AD+3, AD+2, AD+5))
    lds_wait(LF_PQ, lw, 1, 254, 2)
    ag("s_setprio 2")
    ag("s_mul_i32 s3, s%d, 6144\ns_add_u32 s3, s3, %d\nv_add_u32 v@20@, s3, v1\nv_lshl_add_u32 v@21@, v0, 3, s3" % (lw, PQL))
    for i in range(4): ag("ds_read_b128 %s, v@20@ offset:%d\nds_read_b64 %s, v@21@ offset:%d" % (R4(PQ + 6*i), 1024*i, R2(PQ + 6*i + 4), 4096 + 512*i))
    if not AF: gl()
    ag("s_mov_b32 s%d, %d" % (sSpin, SPIN))
    a.label("L_gather")
    a("s_waitcnt vmcnt(0)")
    tagchk(G + 8, list(range(G, G + 8)))
    a("s_cbranch_vccz L_gatherok\ns_sleep %d" % OPT["slp"])
    gl()
    a("s_sub_u32 s%d, s%d, 1\ns_cbranch_scc0 L_gather\ns_waitcnt vmcnt(0)" % (sSpin, sSpin))
    a.label("L_gatherok")
    stamp(7); stamp(2, 1)
    if OPT["yld"]: lds_signal(LF_PQ, lw, 254)
    for k in range(4): a("v_cvt_pk_bf16_f32 v%d, v%d, v%d" % (G + k, G + 2*k, G + 1 + 2*k))
    a("ds_write_b64 v%d, %s\nds_write_b64 v%d, %s\ns_waitcnt lgkmcnt(0)" % (G + 12, R2(G), G + 13, R2(G + 2)))
    lds_signal(LF_IMG, None, 254)
    lds_wait(LF_IMG, None, 4, 254, 0)
    stamp(3, 1)
    for to in range(3): a("ds_read_b128 %s, v%d offset:%d" % (R4(W32 + 4*to), AD, 1024*to))
    a("ds_read_b128 %s, v%d" % (R4(W32 + 12), AD+2))
    for to in range(1, 3): a("ds_read_b64 %s, v%d offset:%d" % (R2(W16 + 2*to), AD+1, 3072 + 512*to))
    a("ds_read_b64 %s, v%d offset:3072\ns_waitcnt lgkmcnt(0)" % (R2(W16 + 6), AD+3))
    def Oreg(i, to): return O + 16*(i % 3) + 4*to
    def omfma(i):
        for to in range(4): a("v_mfma_f32_16x16x32_bf16 %s, %s, %s, 0" % (R4(Oreg(i, to)), R4(W32 + 4*to), R4(PQ + 6*i)))
    def omfma2(i):
        for to in (3, 1, 2): a("v_mfma_f32_16x16x16_bf16 %s, %s, %s, %s" % (R4(Oreg(i, to)), R2(W16 + 2*to), R2(PQ + 6*i + 4), R4(Oreg(i, to))))
    def oden(i):
        d = Oreg(i, 3)
        for j in range(3): a("v_add_f32 v%d, v%d, v%d" % (d + j, d + j, AD+5))
        for j in range(3): a("v_rcp_f32 v%d, v%d" % (d + j, d + j))
    def ofin(i):
        d = Oreg(i, 3)
        for to, sel in ((0, 0), (2, 1), (1, 2)):
            for q in range(2):
                x = Oreg(i, to) + 2*q
                if OPT["sco"]: a("v_mul_f32 v%d, v%d, v%d\nv_mul_f32 v%d, v%d, v%d" % (x, x, d + sel, x + 1, x + 1, d + sel))
                else: a("v_pk_mul_f32 %s, %s, %s op_sel:[0,%d] op_sel_hi:[1,%d]" % (R2(x), R2(x), R2(d + (sel & 2)), sel & 1, sel & 1))
        for k in (4, 5, 0, 1, 2, 3): a("v_cvt_pk_bf16_f32 v%d, v%d, v%d" % (PQ + 6*i + k if k < 4 else RM + 2*i + k - 4, Oreg(i, 0) + 2*k, Oreg(i, 0) + 2*k + 1))
    def ost(i): st_a2("buffer_store_dwordx4 %s, v1, %s, s%d offen offset:%d" % (R4(PQ + 6*i), S(S_WS), sT2, 1024*i))
    for i in range(3): omfma(i)
    for i in range(3): omfma2(i)
    oden(0); ofin(0); omfma(3); ost(0); oden(1); oden(2); omfma2(3); ofin(1); ost(1); oden(3); ofin(2); ost(2); ofin(3); ost(3)
    for k in range(2): a("v_permlane16_swap_b32 v%d, v%d" % (RM + k, RM + 2 + k))
    for k in range(2): a("v_permlane16_swap_b32 v%d, v%d" % (RM + 4 + k, RM + 6 + k))
    a("s_nop 1")
    for k in range(4): a("v_permlane32_swap_b32 v%d, v%d" % (RM + k, RM + 4 + k))
    st_a2("buffer_store_dwordx4 %s, v%d, %s, s%d offen" % (R4(RM), AD+4, S(S_WS), sT3))
    stamp(4, 1)
    if OPT["yld"]: lds_signal(LF_PQ, lw, 254)
    ks_flag(sT2, sA, 0, 254)
    lds_signal(LF_Q, None, 252)
    stamp(5, 1)
    a("s_setprio 0")
    if AF:
        loadB(7, True); loadB(8, True)
        a("s_branch L_oslow2")
    a.label("L_la")
    stamp(8); stamp(6, 1)
    g2_flagoff(3, KS_L)
    poll(3, sORD, 4, 4, "hl")
    stamp(9); stamp(7, 1); stamp(1, 2)
    if OPT["ap"]: a("s_setprio %d" % OPT["ap"])
    vm = VM()
    AO = [124, 144, 224, 124]
    so = [sLA, sLA + 1, sLA + 2, sLA + 3, sAo2]
    def ldo(i):
        for s in range(5): a("buffer_load_dwordx4 %s, v1, %s, s%d offen offset:%d%s" % (R4(AO[i] + 4*s), S(S_WS), so[s], 1024*i, ALD))
        for s in range(5): vm.add("O%d%d" % (i, s))
    loadA(0, True); loadA(1, True); vm.add("A0", 4); vm.add("A1", 4)
    for s in range(4):
        vm.wait("A%d" % s)
        g2_step(s, True)
        if s < 2: loadA(s + 2, True); vm.add("A%d" % (s + 2), 4)
        if s == 1:
            a("v_lshlrev_b32 v3, 2, v0\ns_mov_b64 exec, 15\nbuffer_load_dword v3, v3, %s, s%d offen%s\ns_mov_b64 exec, -1" % (S(S_WS), sORD + 1, PLD)); vm.add("F")
            loadB(7, True); loadB(8, True); vm.add("B", 10)
        if s == 2:
            vm.wait("F")
            a("v_cmp_ne_u32 vcc, s%d, v3\ns_and_b32 s%d, vcc_lo, 15\ns_cbranch_scc1 L_oslow" % (sTAG, sK0))
            ldo(0)
    ldo(1); ldo(2)
    a.label("L_oback")
    mark = len(a.lines)
    a.label("L_oslow")
    g2_step(3, True)
    a.label("L_oslow2")
    a("s_setprio 0\nv_lshlrev_b32 v3, 2, v0")
    stamp(9, 1)
    poll(3, sORD + 1, 4, 248, "o")
    q = list(vm.q); ldo(0); ldo(1); ldo(2); vm.q = q
    a("s_branch L_oback")
    SLOW = a.lines[mark:]; del a.lines[mark:]
    a("s_setprio 0")
    stamp(10); stamp(10, 1); stamp(6, 2)
    paddr(251, 249, 250)
    a("s_mul_i32 s3, s%d, 5120\ns_add_u32 s3, s3, %d\nv_add_u32 v250, s3, v251\ns_mul_i32 s3, s%d, %d\nv_add_u32 v251, s3, v251\nv_add_u32 v249, 20480, v251" % (sM, 4*EBS, sM, EBS))
    a("v_mov_b32 v252, %d\nv_mov_b32 v253, 1" % (LFLAG + LF_T))
    def sig(i): return "s_mov_b64 exec, 1\ns_waitcnt lgkmcnt(0)\nds_add_u32 v252, v253 offset:%d\ns_mov_b64 exec, -1" % (4*i)
    pend = []
    for i in range(4):
        k = 0
        stamp(7 + i, 2)
        for s in range(5):
            vm.wait("O%d%d" % (i, s))
            for t in range(5):
                g2_mfma(Dreg(i, t, True), Breg(4 + s, t, True), AO[i] + 4*s, False)
                k += 1
                if pend and k >= 4: a(pend.pop(0))
            if i > 0 and s == 2: a(sig(i - 1))
        if i == 0:
            ldo(3)
            lds_wait(LF_B, lw, 2, 254)
        if i == 2: lds_wait(LF_Q, None, 4, 254)
        if i == 3: lds_wait(LF_PRE, None, 8, 254)
        pend = ["ds_write_b128 v%d, %s offset:%d" % ((249, 249, 250, 251)[i], R4(Dreg(i, t, True)), (5120 if i == 1 else 0) + 64*t) for t in range(5)]
    for x in pend: a(x)
    stamp(11); stamp(11, 1); stamp(11, 2)
    a(sig(3))
    stamp(12)
    a("s_branch L_alldone")
    a.lines.extend(SLOW)

ACC = 8; F0 = 120; F1 = 164
vA0, vA1, vS, vS2, vH = 208, 209, 210, 211, 212
vB1 = 216
def acc(i, t): return ACC + (i * 7 + t) * 4

def compute_prologue():
    sQ, sU, sUe, sJ0, sJ1, sJ2, sCd = sLA, sLP, sH, sLP4, sLH, sA, sP
    a("s_lshr_b32 s%d, s%d, 1\ns_and_b32 s%d, s%d, 1" % (sM, sWV, sN, sWV))
    a("s_lshl_b32 s3, s%d, 3\ns_add_u32 s3, s3, s%d\ns_lshl_b32 s3, s3, 2\ns_add_u32 s3, s3, s%d\ns_lshl_b32 s3, s3, 1\ns_lshl_b32 s%d, s%d, 7\ns_add_u32 s3, s3, s%d" % (sTY, sJJ, sWV, sT1, sRB, sT1))
    a("s_mul_i32 s%d, s3, 1280\ns_lshl_b32 s%d, s3, 4\ns_add_u32 s%d, s%d, 0x%x" % (sT1, sT2, sT2, sT2, STAT_OFF))
    a("v_lshrrev_b32 v5, 5, v0\nv_and_b32 v6, 31, v0\nv_mul_u32_u24 v7, 1280, v5\nv_lshl_add_u32 v224, v6, 4, v7\nv_lshl_add_u32 v225, v6, 3, v7")
    a("s_lshl_b32 s%d, s%d, 7\ns_lshl_b32 s3, s%d, 3\ns_add_u32 s%d, s%d, s3\ns_add_u32 s%d, s%d, s%d" % (sQ, sWV, sRB, sQ, sQ, sQ, sQ, sJJ))
    a("s_mov_b32 s%d, s%d\ns_movk_i32 s%d, %d" % (sU, sQ, sUe, NQU))
    a("s_add_u32 s3, s%d, %d\ns_add_u32 s%d, s3, 1\ns_min_u32 s%d, s%d, 680\ns_cmp_eq_u32 s%d, 0\ns_cselect_b32 s%d, s3, s%d\ns_cselect_b32 s%d, s%d, s%d" % (sQ, NQU, sK0, sK0, sK0, sTY, sU, sU, sUe, sK0, sUe))
    if OPT["nojob"]: a("s_mov_b32 s%d, 0" % sUe)
    a("v_lshrrev_b32 v2, 3, v0\nv_and_b32 v4, 7, v0\nv_and_b32 v7, 6, v2\nv_xor_b32 v7, v4, v7\nv_lshlrev_b32 v4, 4, v7\nv_and_b32 v6, 3, v2")
    a("s_lshl_b32 s3, s%d, 13\ns_add_u32 m0, s3, %d\ns_mov_b32 s%d, 0x20000\ns_mov_b32 s%d, s%d" % (sWV, JOBL, S_J+3, sK0, sU))
    a("s_mov_b32 s%d, 0x%x\ns_mov_b32 s%d, 0x20000\ns_waitcnt lgkmcnt(0)\ns_mov_b32 s%d, s36\ns_mov_b32 s%d, s37" % (S_X+2, 2048*1280, S_X+3, S_X, S_X+1))
    XL = 124; U = 136
    a("buffer_load_dwordx4 %s, v224, %s, s%d offen\nbuffer_load_dwordx4 %s, v224, %s, s%d offen offset:512\nbuffer_load_dwordx2 %s, v225, %s, s%d offen offset:1024" % (R4(XL), S(S_X), sT1, R4(XL+4), S(S_X), sT1, R2(XL+8), S(S_X), sT1))
    a("s_add_u32 s%d, s56, 0x%x\ns_addc_u32 s%d, s57, 0\ns_load_dword s%d, s[%d:%d], 0" % (sEX, EPOCH, sEX+1, sTAG, sEX, sEX+1))
    a.label("L_jrl")
    a("s_cmp_ge_u32 s%d, s%d\ns_cbranch_scc1 L_nojob1" % (sK0, sUe))
    a("s_mul_i32 s3, s%d, 6554\ns_lshr_b32 s%d, s3, 16\ns_mul_i32 s3, s%d, 10\ns_sub_u32 s%d, s%d, s3" % (sK0, sK1, sK1, sT3, sK0))
    a("s_cmp_lt_u32 s%d, 48\ns_cselect_b32 s%d, s48, s40\ns_cselect_b32 s%d, s49, s41\ns_mov_b32 s%d, %d\ns_cselect_b32 s%d, %d, s%d" % (sK1, S_J, S_J+1, S_J+2, 640*1280, S_J+2, 1536*1280, S_J+2))
    a("s_lshl_b32 s%d, s%d, 5\ns_mul_i32 s3, s%d, 40\ns_sub_u32 s3, s3, %d\ns_cmp_lt_u32 s%d, 48\ns_cselect_b32 s%d, s%d, s3" % (sJ0, sK1, sK1, 48*40, sK1, sJ0, sJ0))
    a("s_mul_i32 s3, s%d, 160\ns_sub_u32 s3, s3, %d\ns_cmp_lt_u32 s%d, 64\ns_cselect_b32 s%d, s%d, s3\ns_cselect_b32 s%d, 4, 40\ns_cselect_b32 s%d, 16, 4" % (sK1, 64*160 - 32, sK1, sJ0, sJ0, sJ1, sJ2))
    a("v_mad_u32_u24 v7, s%d, v5, v6\nv_mul_u32_u24 v7, 1280, v7\nv_add_u32 v3, v4, v7" % sJ1)
    a("s_mul_i32 s%d, s%d, 1280\ns_lshl_b32 s3, s%d, 7\ns_add_u32 s%d, s%d, s3\ns_mul_i32 s%d, s%d, 2560\ns_mul_i32 s%d, s%d, 1280" % (sJ0, sJ0, sT3, sJ0, sJ0, sJ1, sJ1, sJ2, sJ2))
    a("s_add_u32 s3, s%d, s%d\nbuffer_load_dwordx4 v3, %s, s%d offen lds" % (sJ0, sJ1, S(S_J), sJ0))
    a("s_add_u32 m0, m0, 0x400\ns_add_u32 s%d, s%d, s%d\nbuffer_load_dwordx4 v3, %s, s3 offen lds" % (sJ0, sJ0, sJ2, S(S_J)))
    a("s_add_u32 m0, m0, 0x400\ns_add_u32 s3, s%d, s%d\nbuffer_load_dwordx4 v3, %s, s%d offen lds" % (sJ0, sJ1, S(S_J), sJ0))
    a("s_add_u32 m0, m0, 0x400\ns_add_u32 s%d, s%d, 512\nbuffer_load_dwordx4 v3, %s, s3 offen lds" % (sK0, sK0, S(S_J)))
    a("s_add_u32 m0, m0, 0x400\ns_branch L_jrl")
    a.label("L_nojob1")
    srd(S_B1, 46, 3072); srd(S_WS, 56, WS_SIZE); srd(S_OUT, 52, 2048*1280); srd(S_B2, 50, 1280)
    a("v_and_b32 v2, 15, v0\nv_lshrrev_b32 v3, 4, v0\nv_lshrrev_b32 v4, 1, v2\nv_xor_b32 v4, v4, v3\nv_lshlrev_b32 v4, 4, v4\nv_lshl_add_u32 v4, v2, 7, v4\nv_lshlrev_b32 v1, 3, v3")
    a("s_lshl_b32 s3, s%d, 13\nv_add_u32 v%d, s3, v4\nv_xor_b32 v%d, 64, v%d" % (sM, vA0, vA1, vA0))
    a("v_lshlrev_b32 v226, 2, v2\nv_add_u32 v226, %d, v226" % LFLAG)
    a("v_lshrrev_b32 v2, 2, v0\nv_and_b32 v3, 3, v0\nv_mul_u32_u24 v4, 160, v2\ns_mul_i32 s3, s%d, 80\nv_add_u32 v4, s3, v4\nv_lshl_add_u32 v%d, v3, 3, v4" % (sN, vS))
    a("v_and_b32 v5, 1, v3\nv_lshl_add_u32 v4, v5, 3, v4\nv_add_u32 v4, %d, v4" % (K_OFF + 64))
    a("s_cmp_eq_u32 s%d, 0\ns_cselect_b32 s3, %d, 0\nv_lshrrev_b32 v5, 1, v3\nv_mad_u32_u24 v%d, v5, s3, v4" % (sTY, V_OFF - K_OFF - 64, vS2))
    a("v_lshlrev_b32 v4, 7, v2\nv_lshl_add_u32 v4, v3, 3, v4\nv_bfe_u32 v5, v0, 3, 2\nv_lshl_add_u32 v4, v5, 5, v4")
    a("s_lshl_b32 s3, s%d, 13\ns_add_u32 s3, s3, %d\nv_add_u32 v200, s3, v4\nv_xor_b32 v201, 32, v200\nv_xor_b32 v202, 64, v200\nv_xor_b32 v203, 0x60, v200" % (sWV, JOBL))
    a("s_lshl_b32 s3, s%d, 6\ns_cmp_eq_u32 s%d, 0\ns_cselect_b32 s3, s3, 0\nv_xor_b32 v4, s3, v4" % (sN, sTY))
    a("s_lshl_b32 s3, s%d, 13\ns_add_u32 s3, s3, %d\ns_cmp_eq_u32 s%d, 0\ns_cselect_b32 s3, %d, s3" % (sN, HQ_OFF, sTY, HKV_OFF))
    for t in range(4): a("v_xor_b32 v5, %d, v4\nv_add_u32 v%d, s3, v5" % (32*t, vH + t))
    a("s_lshl_b32 s3, s%d, 6\ns_lshl_b32 s3, s3, s%d\ns_lshl_b32 s%d, s%d, 7\ns_add_u32 s3, s3, s%d\ns_mul_i32 s%d, s%d, 384\ns_add_u32 s%d, s3, s%d" % (sN, sTY, sIncP, sTY, sIncP, sIncP, sJJ, sIncP, sIncP))
    for t in range(4): a("buffer_load_dwordx2 %s, v1, %s, s%d offen offset:%d" % (R2(vB1 + 2*t), S(S_B1), sIncP, 32*t))
    for r in range(ACC, ACC + 112, 2): a("v_mov_b64 %s, 0" % R2(r))
    a("s_waitcnt lgkmcnt(0)\ns_and_b32 s3, s%d, 0x7f7f7f7f\ns_add_u32 s3, s3, 0x35251513\ns_and_b32 s%d, s%d, 0x80808080\ns_xor_b32 s%d, s%d, s3" % (sTAG, sTAG, sTAG, sTAG, sTAG))
    a("v_mov_b32 v6, 0\nv_mov_b32 v7, s%d\nds_write2_b32 v226, v6, v7 offset0:0 offset1:16" % sTAG)
    stamp(1)
    def allreduce32(v, t):
        for ctl in ("quad_perm:[1,0,3,2]", "quad_perm:[2,3,0,1]", "row_half_mirror", "row_mirror"):
            a("s_nop 1\nv_add_f32_dpp v%d, v%d, v%d %s row_mask:0xf bank_mask:0xf" % (v, v, v, ctl))
        a("v_mov_b32 v%d, v%d\ns_nop 1\nv_permlane16_swap_b32 v%d, v%d\ns_nop 1\nv_add_f32 v%d, v%d, v%d" % (t, v, v, t, v, v, t))
    a("s_cmp_lt_u32 s%d, s%d\ns_cbranch_scc1 L_w4\ns_waitcnt vmcnt(4)" % (sU, sUe))
    a.label("L_w4"); a("s_waitcnt vmcnt(8)")
    for i in range(10): unpack(U + 2*i, XL + i)
    a("v_pk_add_f32 v[2:3], %s, %s\nv_pk_add_f32 v[4:5], %s, %s" % (R2(U), R2(U + 2), R2(U + 4), R2(U + 6)))
    for i in range(4, 10): a("v_pk_add_f32 %s, %s, %s" % (R2(2 + 2*(i & 1)), R2(2 + 2*(i & 1)), R2(U + 2*i)))
    a("v_pk_add_f32 v[2:3], v[2:3], v[4:5]\nv_add_f32 v2, v2, v3")
    allreduce32(2, 3)
    a("v_mul_f32 v2, 0x3acccccd, v2")
    for i in range(10): a("v_pk_add_f32 %s, %s, v[2:3] op_sel_hi:[1,0] neg_lo:[0,1] neg_hi:[0,1]" % (R2(U + 2*i), R2(U + 2*i)))
    a("v_pk_mul_f32 v[4:5], %s, %s\nv_pk_mul_f32 v[6:7], %s, %s" % (R2(U), R2(U), R2(U + 2), R2(U + 2)))
    for i in range(2, 10): a("v_pk_fma_f32 %s, %s, %s, %s" % (R2(4 + 2*(i & 1)), R2(U + 2*i), R2(U + 2*i), R2(4 + 2*(i & 1))))
    a("v_pk_add_f32 v[4:5], v[4:5], v[6:7]\nv_add_f32 v4, v4, v5")
    allreduce32(4, 5)
    a("v_mul_f32 v4, 0x3acccccd, v4")
    bf16_round(4); a("v_add_f32 v4, 0x3727c5ac, v4"); bf16_round(4)
    a("v_sqrt_f32 v4, v4\ns_nop 0"); bf16_round(4); bf16_round(2)
    a("v_rcp_f32 v232, v4\nv_mov_b32 v233, s%d\nv_mov_b32 v235, s%d\nv_mul_f32 v234, v232, v2\nv_lshrrev_b32 v5, 1, v0" % (sTAG, sTAG))
    a("s_mov_b32 exec_lo, 1\ns_mov_b32 exec_hi, 1\nbuffer_store_dwordx4 v[232:235], v5, %s, s%d offen sc1\ns_mov_b64 exec, -1" % (S(S_WS), sT2))
    stamp(2)
    a("s_and_b32 s3, s2, 7\ns_cmp_lt_u32 s3, 5\ns_cselect_b32 s%d, 1, 0\ns_cbranch_scc0 L_nosel" % sA)
    a("s_lshl_b32 s3, s3, 1\ns_and_b32 s%d, s%d, 1\ns_add_u32 s3, s3, s%d\ns_lshl_b32 s%d, s%d, 3\ns_add_u32 s%d, s%d, s%d\ns_mul_i32 s%d, s%d, 10\ns_add_u32 s3, s3, s%d\ns_lshl_b32 s3, s3, 10\ns_mul_i32 s%d, s%d, 448\ns_add_u32 s3, s3, s%d\ns_lshl_b32 s%d, s%d, 8\ns_add_u32 s3, s3, s%d\ns_add_u32 s%d, s3, 0x%x" % (sA, sRB, sA, sA, sTY, sA, sA, sJJ, sA, sA, sA, sA, sN, sA, sA, sM, sA, sA, CSP_OFF))
    a("v_and_b32 v6, 15, v0\nv_mov_b32 v7, 0x3f803f80\nv_and_b32 v4, 48, v0\nv_lshl_add_u32 v4, v6, 6, v4\nv_mov_b32 v5, 0xff")
    for t in range(4):
        a("v_cmp_eq_u32 vcc, %d, v6\ns_lshr_b32 s%d, s%d, %d\ns_nop 0\nv_cndmask_b32 v%d, 0, v7, vcc\nv_cndmask_b32 v%d, 0, v7, vcc\nv_mov_b64 %s, %s" % (t, TB[t], sTAG, 8*t, 236 + 4*t, 237 + 4*t, R2(238 + 4*t), R2(236 + 4*t)))
    a.label("L_nosel")
    FR = 120
    a("v_lshlrev_b32 v1, 4, v0")
    for r in range(QPER):
        a("s_cmp_ge_u32 s%d, s%d\ns_cbranch_scc1 L_nojob2" % (sU, sUe))
        if r == 0: a("s_waitcnt vmcnt(5)")
        for t in range(4): a("ds_read_b64_tr_b16 %s, v%d offset:%d\nds_read_b64_tr_b16 %s, v%d offset:%d" % (R2(FR + 16*r + 4*t), 200 + t, 4096*r, R2(FR + 16*r + 2 + 4*t), 200 + t, 4096*r + 2048))
        a("s_lshl_b32 s3, s%d, 12\ns_add_u32 s3, s3, 0x%x\ns_add_u32 s%d, s%d, 512\ns_waitcnt lgkmcnt(0)" % (sU, B2_OFF, sU, sU))
        for t in range(4):
            if OPT["jst"]: a("buffer_store_dwordx4 %s, v1, %s, s3 offen offset:%d%s" % (R4(FR + 16*r + 4*t), S(S_WS), 1024*t, {1: " sc1", 2: "", 3: " nt"}[OPT["jst"]]))
    a.label("L_nojob2")

def frag_reads(ty, F, ks2):
    r = []
    for i in range(4): r.append("ds_read_b128 %s, v%d offset:%d" % (R4(F + 4*i), vA1 if ks2 else vA0, 2048*i))
    nseg = 5 if ty == 0 else 3
    for t in range(7):
        d = F + 16 + 4*t
        for rd in range(2):
            if t < nseg:
                if t == 2: reg, off = vS2, 0
                elif t < 2: reg, off = vS, K_OFF + 32*t
                else: reg, off = vS, V_OFF + 16 + 32*(t - 3)
                off += ks2 * 5120 + rd * 2560
            else: reg, off = vH + (t - nseg), ks2 * 4096 + rd * 2048
            r.append("ds_read_b64_tr_b16 %s, v%d offset:%d" % (R2(d + 2*rd), reg, off))
    return r
def transposed(ty, t): return ty == 1 or t >= 5
def mfmas(ty, F, order=None):
    r = []
    for (t, i) in (order or [(t, i) for t in range(7) for i in range(4)]):
        B = R4(F + 16 + 4*t); A = R4(F + 4*i); D = R4(acc(i, t))
        r.append("v_mfma_f32_16x16x32_bf16 %s, %s, %s, %s" % ((D, B, A, D) if transposed(ty, t) else (D, A, B, D)))
    return r
def interleave(mm, rr):
    for k, x in enumerate(mm):
        a(x)
        if k < len(rr): a(rr[k])
def addr_regs(ty): return [vA0, vA1, vS, vS2] + [vH + t for t in range(2 if ty == 0 else 4)]

CT = 120; RS = 148; BF = 156; KC = 172; TMP = 176; T2P = 208; R4S = 224

def epi_reads(ty):
    a("v_and_b32 v4, 15, v0\nv_lshlrev_b32 v4, 2, v4\ns_lshl_b32 s3, s%d, 8\ns_add_u32 s3, s3, %d\nv_add_u32 v5, s3, v4" % (sM, STATL))
    a("v_and_b32 v6, 48, v0\nv_add_u32 v3, s3, v6\ns_mul_i32 s3, s%d, 448\ns_add_u32 s3, s3, %d\nv_add_u32 v6, s3, v6\nv_add_u32 v4, s3, v4\nv_mov_b32 v7, %d" % (sN, CSL, FASTL))
    if ty == 0:
        for i in range(4): a("ds_read_b128 %s, v3 offset:%d\nds_read_b128 %s, v3 offset:%d" % (R4(R4S + 4*i), 64*i, R4(R4S + 16 + 4*i), 512 + 64*i))
    for t in range(7):
        if transposed(ty, t): a("ds_read_b128 %s, v6 offset:%d" % (R4(CT + 4*t), 64*t))
        else: a("ds_read_b32 v%d, v4 offset:%d" % (CT + 4*t, 64*t))
    for i in range(4): a("ds_read2_b32 %s, v5 offset0:%d offset1:%d" % (R2(RS + 2*i), 16*i, 128 + 16*i))
    a("ds_read_b32 v7, v7\nv_lshlrev_b32 v1, 4, v0")
    if ty == 0: a2_soff(sT2, sM, lambda: a("s_mul_i32 s3, s%d, 6\ns_add_u32 s3, s3, s%d" % (sJJ, sN)))
    else:
        a2_soff(sT2, sM, lambda: a("s_mul_i32 s3, s%d, 6\ns_lshl_b32 s%d, s%d, 1\ns_add_u32 s3, s3, s%d\ns_add_u32 s3, s3, 2" % (sJJ, sT1, sN, sT1)))
        a("s_add_u32 s%d, s%d, 4096" % (sT3, sT2))

def main_loop(ty):
    a("s_mov_b32 s%d, 0\ns_mov_b32 s%d, 0\ns_waitcnt lgkmcnt(0)" % (sCnt, sSlot))
    stamp(3)
    a("s_barrier")
    stamp(4)
    for x in frag_reads(ty, F0, 0): a(x)
    a("s_cmp_eq_u32 s%d, 0\ns_cbranch_scc1 L_ent%d\ns_cmp_lg_u32 s%d, 0\ns_cbranch_scc1 L_cs1%d" % (sA, ty, sM, ty))
    rr = frag_reads(ty, F1, 1)[4:]
    for m in range(2):
        tl = list(range(4*m, min(7, 4*m + 4)))
        for t in tl: a(rr[2*t]); a(rr[2*t + 1])
        a("s_waitcnt lgkmcnt(%d)" % (2 * len(tl)))
        for k, t in enumerate(tl): a("v_mfma_f32_16x16x32_bf16 v[252:255], %s, %s, %s" % (R4(F0 + 16 + 4*t), R4(236 + 4*k), "0" if k == 0 else "v[252:255]"))
        a("s_waitcnt lgkmcnt(0)")
        for k, t in enumerate(tl): a("v_mfma_f32_16x16x32_bf16 v[252:255], %s, %s, v[252:255]" % (R4(F1 + 16 + 4*t), R4(236 + 4*k)))
        a("s_mov_b32 s3, 0x%x" % (0x000f000f if m == 0 else 0x00070007))
        if m == 0: a("s_branch L_cs2%d" % ty); a.label("L_cs1%d" % ty)
    a.label("L_cs2%d" % ty)
    a("s_nop 6")
    for k in range(4): a("v_bfi_b32 v%d, v5, s%d, v%d" % (252 + k, TB[k], 252 + k))
    a("s_mov_b32 exec_lo, s3\ns_mov_b32 exec_hi, s3\nbuffer_store_dwordx4 v[252:255], v4, %s, s%d offen sc1\ns_mov_b64 exec, -1" % (S(S_WS), sA))
    a.label("L_ent%d" % ty)
    a("s_waitcnt lgkmcnt(0)\ns_branch L_mid%d" % ty)
    align8()
    a.label("L_top%d" % ty)
    a("s_barrier\ns_nop 0")
    interleave(mfmas(ty, F1), frag_reads(ty, F0, 0))
    a("s_waitcnt vmcnt(0) lgkmcnt(0)\ns_nop 0" if OPT["lvm"] else "s_waitcnt lgkmcnt(0)\ns_nop 0")
    a.label("L_mid%d" % ty)
    upd = ["v_add_u32_e64 v%d, s%d, v%d" % (r, sT1, r) for r in addr_regs(ty)]
    sal = "s_add_u32 s%d, s%d, 1\ns_cmp_eq_u32 s%d, 3\ns_cselect_b32 s%d, 0, s%d\ns_mov_b32 s%d, %d\ns_cselect_b32 s%d, %d, s%d\ns_add_u32 s%d, s%d, 1" % (sSlot, sSlot, sSlot, sSlot, sSlot, sT1, SLOT, sT1, (-2*SLOT) & 0xffffffff, sT1, sCnt, sCnt)
    rr = frag_reads(ty, F1, 1)
    interleave(mfmas(ty, F0), rr + [sal] + upd)
    a("s_cmp_lt_u32 s%d, 10\ns_waitcnt lgkmcnt(0)\ns_cbranch_scc1 L_top%d" % (sCnt, ty))
    a("s_barrier")
    pre = capture(lambda: epi_reads(ty))
    c0 = -2.0 * 0.7978845608028654 * 1.4426950408889634; c1 = c0 * 0.044715
    k = 0
    order = [(t, i) for i in range(4) for t in range(5)] + [(t, i) for i in range(4) for t in (5, 6)] if ty == 0 else \
            [(t, i) for g in ((3, 4), (5, 6), (0, 1, 2)) for i in range(4) for t in g]
    for x in mfmas(ty, F1, order):
        a(x)
        for y in pre[k:k+2]: a(y)
        k += 2
    for y in pre[k:]: a(y)
    stamp(5); stamp(1, 1)
    if OPT["cprio"]: a("s_setprio %d" % OPT["cprio"])
    a("s_waitcnt vmcnt(0)")
    for k in range(4 if ty == 0 else 8): unpack(BF + 2*k, vB1 + k)
    a("v_mov_b32 v%d, 0x%x\nv_mov_b32 v%d, 0x%x\nv_mov_b32 v%d, 0x%x\nv_mov_b32 v%d, 0x%x" % (KC, f32(c1), KC+2, f32(c0), KC+1, f32(1.4426950408889634), KC+3, f32(1e-6)))
    a("s_waitcnt lgkmcnt(0)\nv_readfirstlane_b32 s%d, v7" % sFAST)

def gelu_block(i, t0, bt0, soff):
    align8()
    P = [(acc(i, t0 + q//2) + 2*(q % 2), CT + 4*(t0 + q//2) + 2*(q % 2), BF + 4*(bt0 + q//2) + 2*(q % 2), TMP + 2*q) for q in range(4)]
    rs = R2(RS + 2*i)
    for (h, c, b, u) in P: a("v_pk_fma_f32 %s, %s, %s, %s op_sel:[1,0,0] op_sel_hi:[1,1,1] neg_lo:[1,0,0] neg_hi:[1,0,0]" % (R2(u), rs, R2(c), R2(b)))
    for (h, c, b, u) in P: a("v_pk_fma_f32 %s, %s, %s, %s op_sel:[0,0,0] op_sel_hi:[0,1,1]" % (R2(h), rs, R2(h), R2(u)))
    for (h, c, b, u) in P: a("v_pk_mul_f32 %s, %s, %s" % (R2(u), R2(h), R2(h)))
    for (h, c, b, u) in P: a("v_pk_fma_f32 %s, %s, %s, %s op_sel:[0,0,0] op_sel_hi:[1,0,0]" % (R2(u), R2(u), R2(KC), R2(KC + 2)))
    for (h, c, b, u) in P: a("v_pk_mul_f32 %s, %s, %s" % (R2(u), R2(u), R2(h)))
    for (h, c, b, u) in P: a("v_exp_f32 v%d, v%d\nv_exp_f32 v%d, v%d" % (u, u, u+1, u+1))
    for (h, c, b, u) in P: a("v_pk_add_f32 %s, %s, 1.0 op_sel_hi:[1,0]" % (R2(u), R2(u)))
    for (h, c, b, u) in P: a("v_rcp_f32 v%d, v%d\nv_rcp_f32 v%d, v%d" % (u, u, u+1, u+1))
    for (h, c, b, u) in P: a("v_pk_mul_f32 %s, %s, %s" % (R2(u), R2(u), R2(h)))
    o = acc(i, t0)
    for q, (h, c, b, u) in enumerate(P): a("v_cvt_pk_bf16_f32 v%d, v%d, v%d" % (o + q, u, u+1))
    st_a2("buffer_store_dwordx4 %s, v1, %s, s%d offen offset:%d" % (R4(o), S(S_WS), soff, 1024*i))

def phi_pairs(P):
    for (h, u) in P: a("v_pk_mul_f32 %s, %s, %s op_sel:[1,0] op_sel_hi:[1,1]" % (R2(u), R2(KC), R2(h)))
    for (h, u) in P: a("v_exp_f32_e64 v%d, v%d clamp\nv_exp_f32_e64 v%d, v%d clamp" % (u, u, u+1, u+1))
    for (h, u) in P: a("v_max_f32 v%d, v%d, v%d\nv_max_f32 v%d, v%d, v%d" % (h, h, KC+3, h+1, h+1, KC+3))
    for (h, u) in P: a("v_pk_add_f32 %s, %s, %s" % (R2(h), R2(h), R2(u)))

def epilogue_kv():
    a("v_and_b32 v5, 8, v0\nv_cmp_eq_u32 vcc, 0, v5\nv_mov_b32 v6, 0\nv_mov_b32 v7, 0x3f803f80\nv_cndmask_b32 v5, v6, v%d, vcc\nv_mov_b32 v4, v5" % (KC + 3))
    a("s_lshl_b32 s3, s%d, 13\ns_add_u32 s3, s3, %d\nv_add_u32 v2, s3, v1" % (sWV, XK))
    prods = [(0,2),(0,3),(1,2),(1,3),(1,4),(2,2),(2,3),(2,4)]
    KD = [acc(1, t) for t in range(5)] + [216, 220, R4S]
    def kvm(ksr):
        return ["v_mfma_f32_16x16x32_bf16 %s, %s, %s, %s" % (R4(KD[k]), R4(acc(2*ksr, ti)), R4(T2P + 4*ksr) if tj == 2 else R4(acc(2*ksr, tj)), "0" if ksr == 0 else R4(KD[k])) for k, (ti, tj) in enumerate(prods)]
    for i in range(4):
        align8()
        def body():
            for t in range(5):
                for q in range(2):
                    u = TMP + 4*t + 2*q; rm = R2(R4S + 16 + 4*i + 2*q); c = R2(CT + 4*t)
                    if t < 2: a("v_pk_fma_f32 %s, %s, %s, %s op_sel:[0,0,1] op_sel_hi:[1,0,1] neg_lo:[1,0,0] neg_hi:[1,0,0]" % (R2(u), rm, c, R2(KC + 2)))
                    elif t == 2: a("v_pk_fma_f32 %s, %s, %s, v[4:5] op_sel:[0,0,0] op_sel_hi:[1,0,1] neg_lo:[1,0,0] neg_hi:[1,0,0]" % (R2(u), rm, c))
                    else: a("v_pk_mul_f32 %s, %s, %s op_sel:[0,0] op_sel_hi:[1,0] neg_lo:[1,0] neg_hi:[1,0]" % (R2(u), rm, c))
            for t in range(5):
                for q in range(2):
                    h = acc(i, t) + 2*q; u = TMP + 4*t + 2*q
                    a("v_pk_fma_f32 %s, %s, %s, %s" % (R2(h), R2(R4S + 4*i + 2*q), R2(h), R2(u)))
            a("v_cvt_pk_bf16_f32 v%d, v%d, v%d\nv_cvt_pk_bf16_f32 v%d, v%d, v%d" % (TMP+20, acc(i,2), acc(i,2)+1, TMP+21, acc(i,2)+2, acc(i,2)+3))
            phi_pairs([(acc(i, t) + 2*q, TMP + 4*t + 2*q) for t in range(3) for q in range(2)])
            e = 2 * (i >> 1); o = 2 * (i & 1)
            a("v_cndmask_b32 v%d, v%d, v7, vcc\nv_cndmask_b32 v%d, v%d, v7, vcc" % (T2P + 4*(i>>1) + o, TMP+20, T2P + 4*(i>>1) + o + 1, TMP+21))
            for t in (3, 4, 0, 1, 2):
                a("v_cvt_pk_bf16_f32 v%d, v%d, v%d\nv_cvt_pk_bf16_f32 v%d, v%d, v%d" % (acc(e,t)+o, acc(i,t), acc(i,t)+1, acc(e,t)+o+1, acc(i,t)+2, acc(i,t)+3))
        if i == 2:
            lines = capture(body); mm = kvm(0)
            for k, ln in enumerate(lines):
                a(ln)
                if k >= 28 and k % 2 == 1 and mm: a(mm.pop(0))
            assert not mm
        else: body()
    a("s_nop 1")
    for x in kvm(1): a(x)
    a("s_nop 0")
    for k in range(8): a("ds_write_b128 v2, %s offset:%d" % (R4(KD[k]), 1024 * k))
    stamp(2, 1)
    lds_addr(2, LF_XK, None)
    a("v_mov_b32 v3, 1\ns_mov_b64 exec, 1\ns_waitcnt lgkmcnt(0)\nds_add_u32 v2, v3\ns_mov_b64 exec, -1")
    stamp(7); stamp(3, 1)
    g2_setup(False)
    for i in range(4):
        gelu_block(i, 5, 0, sT2)
        if i in (0, 1): loadB(6 + i, False)
    stamp(4, 1)
    ks_flag(sT2, sM, 0, 6)

def epilogue_qh():
    PQ = 224
    def qpart(hook=None):
        for i in range(4):
            align8()
            rs = R2(RS + 2*i)
            P = [(acc(i, t) + 2*q, TMP + 4*t + 2*q, CT + 4*t + 2*q) for t in range(3) for q in range(2)]
            for (h, u, c) in P: a("v_pk_fma_f32 %s, %s, %s, %s op_sel:[1,0,1] op_sel_hi:[1,1,1] neg_lo:[1,0,0] neg_hi:[1,0,0]" % (R2(u), rs, R2(c), R2(KC + 2)))
            for (h, u, c) in P: a("v_pk_fma_f32 %s, %s, %s, %s op_sel:[0,0,0] op_sel_hi:[0,1,1]" % (R2(h), rs, R2(h), R2(u)))
            phi_pairs([(h, u) for (h, u, c) in P])
            for k, (h, u, c) in enumerate(P): a("v_cvt_pk_bf16_f32 v%d, v%d, v%d" % (PQ + 6*i + k, h, h + 1))
            if hook: hook(i)
        a("s_mul_i32 s3, s%d, 6144\ns_add_u32 s3, s3, %d\nv_add_u32 v4, s3, v1\nv_lshl_add_u32 v5, v0, 3, s3" % (sWV, PQL))
        for i in range(4): a("ds_write_b128 v4, %s offset:%d\nds_write_b64 v5, %s offset:%d" % (R4(PQ + 6*i), 1024*i, R2(PQ + 6*i + 4), 4096 + 512*i))
    g2_setup(False)
    for i in range(4): gelu_block(i, 3, 0, sT2)
    stamp(2, 1)
    for i in range(4):
        gelu_block(i, 5, 2, sT3)
        if i == 0: ks_flag(sT2, sM, 1, 4)
        if OPT["qb"] and i in (0, 1): loadB(6 + i, False)
    stamp(6); stamp(3, 1)
    def hk(i):
        if i == 0: ks_flag(sT3, sM, 0, 4)
        if not OPT["qb"] and i in (0, 1): loadB(6 + i, False)
    qpart(hk)
    a("s_waitcnt lgkmcnt(0)"); lds_signal(LF_PQ, sWV, 4)
    stamp(7); stamp(4, 1)

def readB(s): return ["ds_read_b128 %s, v244 offset:%d" % (R4(Breg(s, t, False)), 5120*s + 1024*t) for t in range(5)]

def gemm2_early():
    stamp(8); stamp(5, 1)
    if OPT["cprio"]: a("s_setprio 0")
    vm = VM()
    vG, vR, vP = 246, 248, 254
    X0 = CDB[0:5]; B2F = CDB[5:7]; XG = CA_[12:20]
    def XS(i, k): return XG[2*i + (k >> 1)] + 2*(k & 1)
    def BF2(k): return B2F[k >> 1] + 2*(k & 1)
    a("s_lshl_b32 s%d, s%d, 9\ns_add_u32 s%d, s%d, 0x%x\ns_lshl_b32 s3, s%d, 2\ns_add_u32 s%d, s%d, s3" % (sT3, sRT, sT3, sT3, FH, sK0, sT3, sT3))
    g2_flagoff(3, KS_C)
    a("s_mov_b64 exec, 0xff\nbuffer_load_dword v245, v3, %s, s%d offen%s\ns_mov_b64 exec, -1" % (S(S_WS), sT3, PLD))
    lds_wait(LF_B, sWV, 1, 246)
    a("s_mul_i32 s3, s%d, %d\nv_add_u32 v244, s3, v1" % (sWV, EBS))
    for x in readB(0) + readB(1): a(x)
    a("s_mul_i32 s3, s%d, 40\nv_add_u32 v228, s3, v0\nv_mul_u32_u24 v229, 6554, v228\nv_lshrrev_b32 v229, 16, v229\nv_mul_u32_u24 v230, 10, v229\nv_sub_u32 v228, v228, v230" % sWV)
    a("v_mul_u32_u24 v230, 1280, v229\nv_lshl_add_u32 v%d, v228, 4, v230\nv_lshlrev_b32 v%d, 4, v228" % (vG, vG + 1))
    a("v_mov_b32 v230, 0x%x\nv_cmp_gt_u32 vcc, 40, v0\ns_mul_i32 s%d, s%d, %d\ns_mul_i32 s%d, s%d, 160\nv_cndmask_b32 v%d, v230, v%d, vcc\ns_add_u32 s%d, s%d, s%d" % (OOB, sT1, sRT, 64*1280, sT2, sCT, vG, vG, sT1, sT1, sT2))
    a("v_and_b32 v229, 15, v229\nv_bfe_u32 v230, v229, 1, 2\nv_lshlrev_b32 v228, 1, v228\nv_xor_b32 v228, v228, v230\nv_mul_u32_u24 v229, 320, v229\nv_lshl_add_u32 v%d, v228, 4, v229\nv_xor_b32 v%d, 16, v%d" % (vR, vR + 1, vR))
    for k in range(1, 3): a("v_add_u32 v%d, %d, v%d\nv_add_u32 v%d, %d, v%d" % (vR + 2*k, 2*k*EBS, vR, vR + 1 + 2*k, 2*k*EBS, vR + 1))
    paddr(vP, 228, 229)
    a("s_mul_i32 s3, s%d, %d\nv_add_u32 v%d, s3, v%d" % (sWV, EBS, vP, vP))
    a("s_mov_b32 s%d, %d\ns_mov_b64 exec, 0xff" % (sSpin, SPIN))
    a.label("L_pc")
    a("s_waitcnt vmcnt(0)\nv_cmp_ne_u32 vcc, s%d, v245\ns_and_b32 s3, vcc_lo, 15\ns_cbranch_scc0 L_pcd" % sTAG)
    a("s_sleep %d\nbuffer_load_dword v245, v3, %s, s%d offen%s\ns_sub_u32 s%d, s%d, 1\ns_cbranch_scc0 L_pc" % (OPT["slp"], S(S_WS), sT3, PLD, sSpin, sSpin))
    a.label("L_pcd")
    a("s_mov_b64 exec, -1\ns_mov_b32 s%d, vcc_lo" % sK1)
    stamp(9); stamp(6, 1); stamp(1, 2)
    if OPT["qk"]:
        if OPT["qk"] == 1: a("s_cmp_lg_u32 s%d, 0\ns_cbranch_scc1 L_nqk" % sTY)
        lds_wait(LF_Q, None, 4, 230)
        a.label("L_nqk")
    for s in range(4): loadA(s, False); vm.add("A%d" % s, 4)
    P2 = OPT["qq"] if OPT["qq"] < 4 else 3
    if OPT["yld"]: lds_addr(255, LF_PQ, sWV)
    def yield_check():
        l = a.newlabel("Ly")
        a("s_waitcnt lgkmcnt(0)\nv_cmp_eq_u32 vcc, 2, v2\ns_cbranch_vccnz %s" % l)
        a.label(l + "_b")
        OUTLINE.extend([l + ":", "  s_mov_b32 s%d, %d" % (sSpin, SPIN), l + "_l:", "  s_sleep 1", "  ds_read_b32 v2, v255", "  s_waitcnt lgkmcnt(0)", "  v_cmp_eq_u32 vcc, 2, v2",
                        "  s_cbranch_vccz %s_b" % l, "  s_sub_u32 s%d, s%d, 1" % (sSpin, sSpin), "  s_cbranch_scc0 %s_l" % l, "  s_branch %s_b" % l])
    carry = []
    def defer(fn, lab, n):
        if OPT["il"]: carry.append((capture(fn), lab, n))
        else: fn(); vm.add(lab, n)
    for s in range(6):
        vm.wait("A%d" % s)
        a("s_waitcnt lgkmcnt(%d)" % (5 if s < 5 else 0))
        mm = capture(lambda: g2_step(s, False))
        fill = []
        for (lines, lab, n) in carry:
            cur = []
            for ln in lines:
                cur.append(ln)
                if ln.startswith("buffer_"): fill.append("\n".join(cur)); cur = []
            vm.add(lab, n)
        carry = []
        gap = max(1, 19 // max(1, len(fill)))
        k = 0
        for x in mm:
            a(x)
            if x.startswith("v_mfma"):
                k += 1
                if fill and k % gap == 0: a(fill.pop(0))
                if OPT["yld"] and k == 13: a("ds_read_b32 v2, v255")
        for x in fill: a(x)
        if OPT["yld"]: yield_check()
        if s + 2 < 6:
            for x in readB(s + 2): a(x)
        if s == P2:
            if OPT["qq"]: lds_wait(LF_Q, None, 4, 230)
            a("s_cmp_eq_u32 s%d, 0\ns_cbranch_scc1 L_nop2" % sK1)
            poll(3, sT3, 8, 245, "he2")
            a.label("L_nop2")
            for q in range(4, min(8, 6 + s)):
                if q == s + 1: loadA(q, False); vm.add("A%d" % q, 4)
                else: defer(lambda: loadA(q, False), "A%d" % q, 4)
        elif s > P2 and 5 + s < 8:
            defer(lambda: loadA(5 + s, False), "A%d" % (5 + s), 4)
        if s == 4:
            def xl():
                for i in range(4): a("s_add_u32 s3, s%d, %d\nbuffer_load_dwordx4 %s, v%d, %s, s3 offen" % (sT1, 16*1280*i, R4(X0[i]), vG, S(S_X)))
                a("buffer_load_dwordx4 %s, v%d, %s, s%d offen" % (R4(X0[4]), vG + 1, S(S_B2), sT2))
            defer(xl, "X", 5)
    assert not carry
    lds_signal(LF_B, sWV, 244)
    vm.wait("A7", "B7")
    if OPT["wb"] == 2:
        l = a.newlabel("Lwb")
        a("s_lshr_b32 s3, s2, 3\ns_and_b32 s3, s3, %d\ns_add_u32 s3, s3, s%d\ns_cmp_lg_u32 s3, 0\ns_cbranch_scc1 %s\nbuffer_wbl2 sc1" % (OPT["wbw"], sWV, l))
        a.label(l)
    stamp(8, 2)
    pend = []
    for i in range(4):
        k = 0
        for s in (6, 7):
            for t in range(5):
                g2_mfma(Dreg(i, t, False), Breg(s, t, False), Areg(s, i, False), False)
                k += 1
                if pend and k >= 4: a(pend.pop(0))
                if OPT["yld"] and i == 1 and k == 3: a("ds_read_b32 v2, v255")
        if OPT["yld"] and i == 1: yield_check()
        pend = ["ds_write_b128 v%d, %s offset:%d" % (vP, R4(Dreg(i, t, False)), 5120*i + 64*t) for t in range(5)]
    stamp(10); stamp(7, 1); stamp(9, 2)
    vm.wait("X")
    for k in range(2): unpack(BF2(k), X0[4] + k)
    for x in pend: a(x)
    for k in range(2, 4): unpack(BF2(k), X0[4] + k)
    lds_addr(244, LF_PRE, None)
    a("v_mov_b32 v245, 1")
    for i in range(4):
        for k in range(4): unpack(XS(i, k), X0[i] + k)
        if i == 0: a("s_mov_b64 exec, 1\ns_waitcnt lgkmcnt(0)\nds_add_u32 v244, v245\ns_mov_b64 exec, -1")
        for k in range(4): padd(XS(i, k), XS(i, k), BF2(k), OPT["scp"])
    lds_wait_ge(LF_PRE, 4, 244)
    stamp(8, 1)
    RD = 4
    def loc(i, p):
        if p < 4: return p >> 1, (p & 1) * EBS + 5120*i
        p -= 4
        if i < 2: return p >> 1, (p & 1) * EBS + 20480 + 5120*i
        if i == 2: return 2, p * 5120
        return p >> 1, (p & 1) * EBS
    def rdsum(i, ps):
        for j, p in enumerate(ps):
            b, off = loc(i, p)
            a("ds_read_b128 %s, v%d offset:%d\nds_read_b128 %s, v%d offset:%d" % (R4(RD + 32*(i & 1) + 8*j), vR + 2*b, off, R4(RD + 32*(i & 1) + 8*j + 4), vR + 1 + 2*b, off))
    def addsum(i, base, last=False):
        for j in range(4):
            a("s_waitcnt lgkmcnt(%d)" % (base + 6 - 2*j))
            for k in range(4): padd(XS(i, k), XS(i, k), RD + 32*(i & 1) + 8*j + 2*k, OPT["scp"] and not last)
    a("s_mov_b32 exec_hi, 0xff")
    rdsum(0, range(4))
    for i in range(4):
        if i < 3: rdsum(i + 1, range(4))
        addsum(i, 8 if i < 3 else 0)
    stamp(11); stamp(9, 1); stamp(10, 2)
    if OPT["wb"] == 1:
        l = a.newlabel("Lwb")
        a("s_lshr_b32 s3, s2, 3\ns_and_b32 s3, s3, %d\ns_add_u32 s3, s3, s%d\ns_cmp_lg_u32 s3, 0\ns_cbranch_scc1 %s\nbuffer_wbl2 sc1" % (OPT["wbw"], sWV, l))
        a.label(l)
    a("v_mov_b32 v245, 1\ns_mov_b64 exec, 1\nds_add_u32 v244, v245\ns_mov_b32 exec_lo, -1\ns_mov_b32 exec_hi, 0xff\ns_setprio 1")
    for i in range(4):
        lds_wait(LF_T + 4*i, None, 4, 244, 1 if i < 3 else 0)
        rdsum(i, range(4, 8))
        a("s_add_u32 s3, s%d, %d" % (sT1, 16*1280*i))
        addsum(i, 0, i == 3)
        for k in range(4): a("v_cvt_pk_bf16_f32 v%d, v%d, v%d" % (XG[2*i] + k, XS(i, k), XS(i, k) + 1))
        a("buffer_store_dwordx4 %s, v%d, %s, s3 offen%s" % (R4(XG[2*i]), vG, S(S_OUT), LDF[OPT["ost"]]))
    a("s_mov_b64 exec, -1")
    stamp(12)

hdr = open("cdna_kernels/%s.s.ref" % BASE).read().split("; Override")[0]
a.raw(hdr.rstrip())
a.raw("; @launch grid=(256,1,1) block=(512,1,1) lds=163840")
a.raw('.amdgcn_target "amdgcn-amd-amdhsa--gfx950"\n.text')
kernel_header(a, KNAME)
a("s_cmp_ge_u32 s2, 256\ns_cbranch_scc1 L_end")
a("s_load_dwordx16 s[36:51], s[0:1], 0\ns_load_dwordx4 s[52:55], s[0:1], 64\ns_load_dwordx2 s[56:57], s[0:1], 80")
a("v_lshrrev_b32 v1, 6, v0\nv_and_b32 v0, 63, v0\nv_readfirstlane_b32 s%d, v1" % sWV)
if OPT["cpf"]:
    a("s_getpc_b64 s[%d:%d]\nL_pc0:\ns_and_b32 s3, s2, 0xf8\ns_add_u32 s3, s3, s%d\ns_lshl_b32 s3, s3, 7\ns_min_u32 s3, s3, L_table-L_pc0-64" % (sEX, sEX+1, sWV))
    a("s_load_dword s%d, s[%d:%d], s3" % (sSpin, sEX, sEX+1))
    if OPT["cpf"] > 1: a("s_add_u32 s3, s3, 64\ns_load_dword s%d, s[%d:%d], s3" % (sSpin, sEX, sEX+1))
stamp_init(); stamp(0)
a("s_bfe_u32 s%d, s2, 0x10006" % sTY)
if OPT["xmap"]:
    a("s_and_b32 s3, s2, 7\ns_lshl_b32 s3, s3, 1\ns_bfe_u32 s%d, s2, 0x10003\ns_add_u32 s%d, s%d, s3" % (sRB, sRB, sRB))
    a("s_bfe_u32 s3, s2, 0x20004\ns_lshr_b32 s%d, s2, 7\ns_lshl_b32 s%d, s%d, 2\ns_add_u32 s%d, s%d, s3" % (sJJ, sJJ, sJJ, sJJ, sJJ))
else:
    a("s_and_b32 s3, s2, 1\ns_lshl_b32 s3, s3, 3\ns_bfe_u32 s%d, s2, 0x30003\ns_add_u32 s%d, s%d, s3" % (sRB, sRB, sRB))
    a("s_and_b32 s3, s2, 6\ns_lshr_b32 s%d, s2, 7\ns_add_u32 s%d, s%d, s3" % (sJJ, sJJ, sJJ))
a("s_and_b32 s3, s2, 7\ns_lshl_b32 s3, s3, 2\ns_bfe_u32 s%d, s2, 0x20003\ns_add_u32 s%d, s%d, s3\ns_lshr_b32 s%d, s2, 5" % (sRT, sRT, sRT, sCT))
a("s_cmp_lt_u32 s%d, 4\ns_cbranch_scc1 L_compute" % sWV)
_m = len(a.lines)
loader()
if OPT["sco"]:
    import re
    new = []
    for ln in a.lines[_m:]:
        m = re.match(r"\s*v_pk_add_f32 v\[(\d+):\d+\], v\[(\d+):\d+\], v\[(\d+):\d+\]$", ln)
        m2 = re.match(r"\s*v_mov_b64 v\[(\d+):\d+\], v\[(\d+):\d+\]$", ln)
        m3 = re.match(r"\s*v_mov_b64 v\[(\d+):\d+\], 0$", ln)
        if m: d, x, y = map(int, m.groups()); new += ["  v_add_f32 v%d, v%d, v%d" % (d, x, y), "  v_add_f32 v%d, v%d, v%d" % (d+1, x+1, y+1)]
        elif m2: d, x = map(int, m2.groups()); new += ["  v_mov_b32 v%d, v%d" % (d, x), "  v_mov_b32 v%d, v%d" % (d+1, x+1)]
        elif m3: d = int(m3.group(1)); new += ["  v_mov_b32 v%d, 0" % d, "  v_mov_b32 v%d, 0" % (d+1)]
        else: new.append(ln)
    a.lines[_m:] = new
a.label("L_compute")
compute_prologue()
a("s_cmp_lg_u32 s%d, 0\ns_cbranch_scc1 L_cqh" % sTY)
main_loop(0); epilogue_kv(); a("s_branch L_g2early")
a.label("L_cqh")
main_loop(1); epilogue_qh()
a.label("L_g2early")
gemm2_early()
a.label("L_alldone")
stamp_store()
a("s_cmp_lg_u32 s2, 0\ns_cbranch_scc1 L_end\ns_cmp_lg_u32 s%d, 4\ns_cbranch_scc1 L_end" % sWV)
a("s_mov_b32 s3, 0x%x\nv_mov_b32 v2, s%d\nv_mov_b32 v3, 0\ns_mov_b64 exec, 1\nbuffer_store_dword v2, v3, %s, s3 offen sc1" % (EPOCH, sTAG, S(S_WS)))
a.label("L_end")
a("s_endpgm")
a.lines.extend(OUTLINE)
a.raw(".p2align 7\n.type L_table,@object\nL_table:")
T = make_table()
for i in range(0, len(T), 8): a.raw("  .long " + ", ".join(str(x) for x in T[i:i+8]))
a.raw(".size L_table, %d" % (4 * len(T)))
a.raw('.section .rodata,"a"')
kernel_desc(a, KNAME, 256, 102)
sys.stdout.write(a.text())
```

```python
class Asm:
    def __init__(self):
        self.lines = []
        self.nlab = 0
    def __call__(self, s, *a):
        if a: s = s % a
        for ln in s.split("\n"):
            self.lines.append("  " + ln.strip() if not ln.strip().endswith(":") else ln.strip())
    def raw(self, s): self.lines.append(s)
    def c(self, s): self.lines.append("  ; " + s)
    def label(self, name): self.lines.append(name + ":")
    def newlabel(self, p="L"):
        self.nlab += 1
        return "%s_%d" % (p, self.nlab)
    def text(self): return "\n".join(self.lines) + "\n"

def vr(b, n=1): return "v%d" % b if n == 1 else "v[%d:%d]" % (b, b + n - 1)
def sr(b, n=1): return "s%d" % b if n == 1 else "s[%d:%d]" % (b, b + n - 1)

class Regs:
    def __init__(self, start, limit, kind="v"):
        self.p = start; self.limit = limit; self.kind = kind; self.names = {}
    def alloc(self, name, n=1, align=1):
        self.p = (self.p + align - 1) // align * align
        b = self.p; self.p += n
        assert self.p <= self.limit, "out of %s regs at %s (%d)" % (self.kind, name, self.p)
        self.names[name] = b
        return b

def kernel_header(a, name):
    a.raw(".globl %s\n.p2align 8\n.type %s,@function\n%s:" % (name, name, name))

def kernel_desc(a, name, vgpr, sgpr):
    a.raw('''.p2align 6
.amdhsa_kernel %s
  .amdhsa_next_free_vgpr %d
  .amdhsa_next_free_sgpr %d
  .amdhsa_accum_offset %d
  .amdhsa_group_segment_fixed_size 0
  .amdhsa_kernarg_size 88
  .amdhsa_user_sgpr_count 2
  .amdhsa_user_sgpr_kernarg_segment_ptr 1
  .amdhsa_system_sgpr_workgroup_id_x 1
.end_amdhsa_kernel''' % (name, vgpr, sgpr, (vgpr + 3) // 4 * 4))

import re as _re
def est_size(ln):
    t = ln.strip()
    if not t or t.endswith(":") or t.startswith(";") or t.startswith("."): return 0
    op = t.split()[0]
    if op.startswith(("buffer_", "global_", "ds_", "v_mfma", "v_pk_", "s_load", "s_mem", "v_cvt_pk", "v_fma", "v_mad", "v_lshl_add", "v_add3", "v_or3", "v_bitop3", "v_bfi", "v_bfe", "v_and_or", "v_readlane")): return 8
    if "_e64" in op or "dpp" in op or "clamp" in t: return 8
    if op.startswith("v_cndmask") or op.startswith("v_cmp"): return 8
    if op.startswith(("s_nop", "s_waitcnt", "s_branch", "s_cbranch", "s_barrier", "s_sleep", "s_setprio", "s_endpgm", "s_movk")): return 4
    for m in _re.finditer(r"(?<![\w\[:])(-?0x[0-9a-fA-F]+|-?\d+)(?![\w\]:])", t[len(op):]):
        v = int(m.group(1), 0)
        if v > 64 or v < -16: return 8
    if "L_" in t: return 8
    return 4

_SCC_READ = ("s_cbranch_scc", "s_cselect", "s_addc", "s_subb", "s_cmov")
_SCC_WRITE = ("s_cmp", "s_add_", "s_sub_", "s_and_", "s_or_", "s_xor_", "s_lshl", "s_lshr", "s_min", "s_max", "s_bfe", "s_andn2", "s_not", "s_bitcmp", "s_ashr")
def scc_dead(lines, i):
    for ln in lines[i:i + 400]:
        t = ln.strip()
        if t.startswith(_SCC_READ): return False
        if t.startswith(_SCC_WRITE) or t.startswith("s_endpgm"): return True
        if t.startswith("s_branch"): return True
    return True

def add_pads(lines, stride, nchain, sflag, on="PADS_ON", off="PADS_OFF"):
    out = []; active = False; acc = 10**9; pads = []
    for i, ln in enumerate(lines):
        t = ln.strip()
        if t == "; " + on: active = True; acc = 10**9; continue
        if t == "; " + off: active = False; continue
        sz = est_size(ln)
        if active and sz and acc + sz > stride - 40 and scc_dead(lines, i):
            pads.append(len(out)); out.append(None); acc = 8
        out.append(ln); acc += sz
    n = len(pads); per = -(-n // nchain); res = list(out)
    for k, idx in enumerate(pads):
        last = (k % per == per - 1) or k == n - 1
        res[idx] = "Lpad%d:\n  s_cmp_eq_u32 s%d, 1\n  s_cbranch_scc1 %s" % (k, sflag, "L_hopd" if last else "Lpad%d" % (k + 1))
    heads = [min(c * per, n - 1) for c in range(nchain)]
    return res, heads
```

```python
import sys, struct
from asmlib import *
BASE = "parallel_sum__linear_attn_block__dense_activation_gelu__prompt"
KNAME = BASE + "_kernel"
OPT = dict(stamps=0, sm=0, probe=-1, pcls=0, hop=0, hpos=1, da=-1, db=-1, dc=0, dwg=100, dwv=0, cp2=0, slp=2, n1=3, cpf=2, win=2, xmap=1, fast=1, kvu=0, qord=0, cprio=0, thr=0, touch=0, shift=2, nojob=0, norot=0, lst=0, kvd=6, lp=3, n2=2, ald=0, bld=0, pld=0, wb=0, wbw=0, ost=1, qk=0, qq=0, mrg=1, s1e=0, kvb=0, ap=1, afirst=1, il=1, qb=0, yld=0, sco=1, scp=1, swp=1, gh=2, bl=0, jst=1, lvm=1)
for arg in sys.argv[1:]:
    k, v = arg.split("="); assert k in OPT, k; OPT[k] = int(v)
STAMPS = OPT["stamps"]
f32 = lambda x: struct.unpack("<I", struct.pack("<f", x))[0]

B2_OFF = 0x900000
KVP_OFF = 0xC00000; KVP_STRIDE = 6912
STAT_OFF = 0xD00000
FLAG_OFF = 0xD10000
EPOCH = FLAG_OFF; FWG = FLAG_OFF + 0x1000; FH = FLAG_OFF + 0x4000
CSP_OFF = 0xD20000
RED_OFF = 0xD50000
STAMP_OFF = 0xE00000
WS_SIZE = 0x1000000
OOB = 0x7f000000
SLOT = 45184
K_OFF = 16384; V_OFF = 26640; HKV_OFF = 36992; HQ_OFF = 26624
JOBL = 2 * SLOT
IMG = 147456
LFLAG = 160000; TAGL = 160064; FASTL = 160128
LF_IMG, LF_XK, LF_PRE, LF_Q, LF_PQ, LF_B, LF_T = 0, 4, 8, 12, 16, 32, 48
GAL = 156672; STATL = 160768; CSL = 161792
EBS = 30720
XK = 122880; PQL = 122880
SPIN = 200000
NKVU = 128 * OPT["kvu"]; NQU = 680 - NKVU; QPER = -(-NQU // 512)
S_X, S_J, S_W1, S_WS, S_P, S_OUT, S_B1, S_B2 = 4, 8, 12, 16, 20, 24, 28, 32
sRB, sJJ, sTY, sWV, sTAG, sM, sN = 58, 59, 60, 61, 62, 63, 64
sT1, sT2, sT3 = 65, 66, 67
sLA, sLP, sLP4, sLH, sIncP, sA, sP, sH, sSlot, sCnt = 68, 69, 70, 71, 72, 73, 74, 75, 76, 77
sORD = 76
sEX = 78; sSpin = 80; sRT, sCT = 81, 82
sK0, sK1, sK2 = 83, 84, 85
sST = 86
sAo0, sAo1, sAo2, sBo0, sBo1, sBo2 = 36, 37, 38, 39, 42, 43
TB = [40, 41, 48, 49]
sDL = 56
sAoF, sBoF, sBoE = 44, 45, 55
sFAST = 54; sPC = 46

a = Asm()
LDF = {0: ' sc1', 1: '', 2: ' nt'}
ALD = LDF[OPT['ald']]; BLD = LDF[OPT['bld']]; PLD = LDF[OPT['pld']]
OUTLINE = []
def srd(d, p, n): a("s_mov_b32 s%d, s%d\ns_mov_b32 s%d, s%d\ns_mov_b32 s%d, 0x%x\ns_mov_b32 s%d, 0x20000" % (d, p, d+1, p+1, d+2, n, d+3))
def S(d): return "s[%d:%d]" % (d, d+3)
def R4(b): return "v[%d:%d]" % (b, b + 3)
def R2(b): return "v[%d:%d]" % (b, b + 1)
def align8(): a.raw(".p2align 3")

def stamp(idx, mode=0):
    if mode == 0 and OPT["da"] >= 0:
        if idx == 0: a("s_memrealtime s[%d:%d]\ns_waitcnt lgkmcnt(0)\ns_mov_b32 s%d, s%d" % (sST, sST+1, sST + 2, sST))
        if idx in (OPT["da"], OPT["db"]): a("%s s[%d:%d]\ns_waitcnt lgkmcnt(0)\ns_mov_b32 s%d, s%d" % ("s_memtime" if OPT["dc"] else "s_memrealtime", sST, sST+1, sST + (3 if idx == OPT["da"] else 4), sST))
    if mode == 0 and OPT["probe"] == idx:
        a("s_memrealtime s[%d:%d]\ns_waitcnt lgkmcnt(0)\ns_mov_b32 s%d, s%d" % (sST, sST+1, sST + 2, sST))
    if not STAMPS or (mode != OPT["sm"] and idx not in (0, 13)): return
    a("s_memrealtime s[%d:%d]\ns_waitcnt lgkmcnt(0)\ns_mov_b32 s%d, s%d" % (sST, sST+1, sST + 2 + idx, sST))
def stamp_init():
    if STAMPS:
        for i in range(14): a("s_mov_b32 s%d, 0" % (sST + 2 + i))
def stamp_store():
    if OPT["da"] >= 0:
        a("s_cmp_lg_u32 s2, %d\ns_cbranch_scc1 L_dd\ns_cmp_lg_u32 s%d, %d\ns_cbranch_scc1 L_dd" % (OPT["dwg"], sWV, OPT["dwv"]))
        a("s_sub_u32 s%d, s%d, s%d" % (sST + 4, sST + 4, sST + 3))
        a(("s_lshr_b32 s%d, s%d, 1" if OPT["dc"] else "s_mul_i32 s%d, s%d, 10") % (sST + 4, sST + 4))
        a("s_add_u32 s%d, s%d, 5000\ns_min_u32 s%d, s%d, 100000" % (sST + 4, sST + 4, sST + 4, sST + 4))
        a.label("L_dsp")
        a("s_memrealtime s[%d:%d]\ns_waitcnt lgkmcnt(0)\ns_sub_u32 s3, s%d, s%d\ns_cmp_lt_u32 s3, s%d\ns_cbranch_scc1 L_dsp" % (sST, sST+1, sST, sST + 2, sST + 4))
        a.label("L_dd")
    if OPT["probe"] >= 0:
        a("s_waitcnt vmcnt(0)")
        stamp(13)
        a("s_lshr_b32 s3, s%d, 2\ns_cmp_lg_u32 s3, %d\ns_cbranch_scc1 L_pspd" % (sWV, OPT["pcls"]))
        a.label("L_psp")
        a("s_memrealtime s[%d:%d]\ns_waitcnt lgkmcnt(0)\ns_sub_u32 s3, s%d, s%d\ns_cmp_lt_u32 s3, 10000\ns_cbranch_scc1 L_psp" % (sST, sST+1, sST, sST + 2))
        a.label("L_pspd")
    if not STAMPS: return
    a("s_waitcnt vmcnt(0)")
    stamp(13)
    for i in range(14): a("v_mov_b32 v%d, s%d" % (4 + i, sST + 2 + i))
    a("v_mov_b32 v18, 0\nv_mov_b32 v19, 0\nv_mov_b32 v2, 0\ns_lshl_b32 s3, s2, 3\ns_add_u32 s3, s3, s%d\ns_lshl_b32 s3, s3, 6\ns_add_u32 s3, s3, 0x%x\ns_mov_b64 exec, 1" % (sWV, STAMP_OFF))
    for i in range(4): a("buffer_store_dwordx4 v[%d:%d], v2, %s, s3 offen offset:%d" % (4 + 4*i, 7 + 4*i, S(S_WS), 16*i))
    a("s_mov_b64 exec, -1")

class VM:
    def __init__(self): self.q = []
    def add(self, lab, n=1): self.q += [lab] * n
    def wait(self, *labs):
        idx = [i for i, x in enumerate(self.q) if x in labs]
        if not idx: return
        n = len(self.q) - 1 - max(idx)
        assert n <= 63
        a("s_waitcnt vmcnt(%d)" % n); self.q = self.q[max(idx) + 1:]
def capture(fn):
    n = len(a.lines); fn(); out = a.lines[n:]; del a.lines[n:]; return [x.strip() for x in out]

def st_a2(ops):
    if isinstance(ops, str): ops = [ops]
    if not OPT["fast"]:
        for o in ops: a(o + " sc1")
        return
    l = a.newlabel("Lsl")
    a("s_cmp_lg_u32 s%d, 0\ns_cbranch_scc0 %s" % (sFAST, l))
    for o in ops: a(o)
    a.label(l + "_b")
    OUTLINE.append(l + ":")
    for o in ops: OUTLINE.append("  " + o + " sc1")
    OUTLINE.append("  s_branch %s_b" % l)

def poll(voff, soff, nlanes, vt, name):
    lp = a.newlabel("Lpoll_" + name)
    a("s_mov_b32 s%d, %d\ns_mov_b64 exec, 0x%x" % (sSpin, SPIN, (1 << nlanes) - 1))
    a.label(lp)
    a("buffer_load_dword v%d, v%d, %s, s%d offen%s\ns_waitcnt vmcnt(0)" % (vt, voff, S(S_WS), soff, PLD))
    a("v_cmp_ne_u32 vcc, s%d, v%d\ns_cbranch_vccz %s_d" % (sTAG, vt, lp))
    a("s_sleep %d\ns_sub_u32 s%d, s%d, 1\ns_cbranch_scc0 %s" % (OPT["slp"], sSpin, sSpin, lp))
    a.label(lp + "_d")
    a("s_mov_b64 exec, -1")
def lds_addr(v, off, sw):
    if sw is None: a("v_mov_b32 v%d, %d" % (v, LFLAG + off))
    else: a("s_lshl_b32 s3, s%d, 2\ns_add_u32 s3, s3, %d\nv_mov_b32 v%d, s3" % (sw, LFLAG + off, v))
def lds_signal(off, sw, v):
    lds_addr(v, off, sw)
    a("v_mov_b32 v%d, 1\ns_mov_b64 exec, 1\nds_add_u32 v%d, v%d\ns_mov_b64 exec, -1" % (v + 1, v, v + 1))
def lds_wait(off, sw, cnt, v, slp=1):
    lp = a.newlabel("Llw"); lds_addr(v, off, sw)
    a("s_mov_b32 s%d, %d" % (sSpin, 20 * SPIN))
    a.label(lp)
    a("ds_read_b32 v%d, v%d\ns_waitcnt lgkmcnt(0)\nv_cmp_ne_u32 vcc, %d, v%d\ns_cbranch_vccz %s_d" % (v + 1, v, cnt, v + 1, lp))
    if slp: a("s_sleep %d" % slp)
    a("s_sub_u32 s%d, s%d, 1\ns_cbranch_scc0 %s" % (sSpin, sSpin, lp))
    a.label(lp + "_d")
def lds_wait_ge(off, cnt, v, slp=1):
    lp = a.newlabel("Llg"); lds_addr(v, off, None)
    a("s_mov_b32 s%d, %d" % (sSpin, 20 * SPIN))
    a.label(lp)
    a("ds_read_b32 v%d, v%d\ns_waitcnt lgkmcnt(0)\nv_cmp_gt_u32 vcc, %d, v%d\ns_cbranch_vccz %s_d" % (v + 1, v, cnt, v + 1, lp))
    if slp: a("s_sleep %d" % slp)
    a("s_sub_u32 s%d, s%d, 1\ns_cbranch_scc0 %s" % (sSpin, sSpin, lp))
    a.label(lp + "_d")
def bf16_round(v): a("v_cvt_pk_bf16_f32 v%d, v%d, v%d\nv_lshlrev_b32 v%d, 16, v%d" % (v, v, v, v, v))
def unpack(dst, src): a("v_lshlrev_b32 v%d, 16, v%d\nv_and_b32 v%d, 0xffff0000, v%d" % (dst, src, dst + 1, src))
def padd(d, x, y, scalar):
    if scalar: a("v_add_f32 v%d, v%d, v%d\nv_add_f32 v%d, v%d, v%d" % (d, x, y, d + 1, x + 1, y + 1))
    else: a("v_pk_add_f32 %s, %s, %s" % (R2(d), R2(x), R2(y)))
def tagchk(acc_, regs):
    a("v_xor_b32 v%d, s%d, v%d" % (acc_, TB[0], regs[0]))
    for k, r in enumerate(regs):
        if k: a("v_bitop3_b32 v%d, v%d, v%d, s%d bitop3:0xf6" % (acc_, acc_, r, TB[k % 4]))
    a("v_and_b32 v%d, 0xff, v%d\nv_cmp_ne_u32 vcc, 0, v%d" % (acc_, acc_, acc_))

G_ACC = 4
KS_C = [2, 4, 8, 10, 0, 1, 6, 7]; KS_L = [2, 4, 8, 10]
def g2_setup(late):
    w = sM if late else sWV
    a("v_lshlrev_b32 v1, 4, v0\nv_add_u32 v2, 4096, v1")
    a("s_mul_i32 s%d, s%d, 12" % (sK0, w))
    if late: a("s_lshl_b32 s%d, s%d, 2\ns_add_u32 s%d, s%d, 48\ns_add_u32 s%d, s%d, 64" % (sK1, w, sK1, sK1, sK2, w))
    a("s_mul_i32 s3, s%d, 68" % sRT)
    for (d, k) in ((sAo0, sK0),) + (((sAo1, sK1), (sAo2, sK2)) if late else ()):
        a("s_add_u32 s%d, s3, s%d\ns_lshl_b32 s%d, s%d, 12" % (d, k, d, d))
    a("s_mul_i32 s3, s%d, 5120\ns_add_u32 s3, s3, 0x%x" % (sCT, B2_OFF))
    for (d, k) in ((sBo0, sK0),) + (((sBo1, sK1), (sBo2, sK2)) if late else ()):
        a("s_mul_i32 s%d, s%d, 40960\ns_add_u32 s%d, s%d, s3" % (d, k, d, d))
    if OPT["swp"]: a("s_xor_b32 s%d, s%d, %d" % (sDL, sTY, 1 if late else 0))
    else: a("s_mov_b32 s%d, %d" % (sDL, 0 if late else 1))
    a("s_lshl_b32 s3, s%d, 12\ns_add_u32 s%d, s%d, s3\ns_mul_i32 s3, s%d, 40960\ns_add_u32 s%d, s%d, s3" % (sDL, sAoF, sAo0, sDL, sBoF, sBo0))
    if late: a("s_sub_u32 s%d, s%d, s3\ns_add_u32 s%d, s%d, 40960" % (sBoE, sBo0, sBoE, sBoE))
def step_off(s, late, bases, stride, dst=3):
    if s < 4: b, k = bases[3], KS_L[s]
    elif not late: b, k = bases[0], KS_C[s]
    elif s < 8: b, k = bases[1], s - 4
    else: b, k = bases[2], 0
    a("s_add_u32 s%d, s%d, %d" % (dst, b, stride * k))
CB67 = [20, 24, 48, 52, 76, 80, 104, 108, 216, 220]
_free = [g for g in range(4, 244, 4) if g not in CB67]
CACC = _free[:20]; CDB = _free[20:30]; CA_ = _free[30:50]
def Dreg(i, t, late): return G_ACC + (i*5 + t) * 4 if late else CACC[i*5 + t]
def Breg(s, t, late):
    if late: return 84 + 20 * (s % 7) + 4*t
    return CDB[5*(s & 1) + t] if s < 6 else CB67[5*(s - 6) + t]
def Areg(s, i, late): return 224 + 16 * (s & 1) + 4*i if late else CA_[4*(s % 5) + i]
def loadB(s, late):
    step_off(s, late, (sBo0, sBo1, sBo2, sBoF), 40960)
    for t in range(4): a("buffer_load_dwordx4 %s, v1, %s, s3 offen offset:%d%s" % (R4(Breg(s, t, late)), S(S_WS), 1024*t, BLD))
    a("buffer_load_dwordx4 %s, v2, %s, s3 offen%s" % (R4(Breg(s, 4, late)), S(S_WS), BLD))
def loadA(s, late):
    step_off(s, late, (sAo0, sAo1, sAo2, sAoF), 4096)
    for i in range(4): a("buffer_load_dwordx4 %s, v1, %s, s3 offen offset:%d%s" % (R4(Areg(s, i, late)), S(S_WS), 1024*i, ALD))
def dmaB(s):
    step_off(s, False, (sBo0, 0, 0, sBoE), 40960)
    a("s_mul_i32 m0, s%d, %d\ns_add_u32 m0, m0, %d\ns_nop 0" % (sM, EBS, 5120*s))
    for t in range(4): a("buffer_load_dwordx4 v1, %s, s3 offen offset:%d%s lds" % (S(S_WS), 1024*t, BLD))
    a("s_add_u32 m0, m0, 4096\ns_nop 0\nbuffer_load_dwordx4 v2, %s, s3 offen%s lds" % (S(S_WS), BLD))
    if OPT["thr"]: a("s_waitcnt vmcnt(%d)" % OPT["thr"])
def a2_soff(dst, m, ks_emit):
    ks_emit()
    a("s_lshl_b32 s%d, s%d, 1\ns_add_u32 s%d, s%d, s%d\ns_mul_i32 s%d, s%d, 68\ns_add_u32 s%d, s%d, s3\ns_lshl_b32 s%d, s%d, 12" % (dst, sRB, dst, dst, m, dst, dst, dst, dst, dst, dst))
def ks_flag(sOff, m, waitn, vt):
    a("s_lshl_b32 s3, s%d, 1\ns_add_u32 s3, s3, s%d\ns_mul_i32 s3, s3, %d\ns_lshr_b32 s%d, s%d, 10\ns_add_u32 s3, s3, s%d\ns_add_u32 s3, s3, 0x%x" % (sRB, m, 512 - 272, sSpin, sOff, sSpin, FH))
    a("v_mov_b32 v%d, s%d\nv_mov_b32 v%d, 0\ns_mov_b64 exec, 1\ns_waitcnt vmcnt(%d)" % (vt, sTAG, vt + 1, waitn))
    st_a2("buffer_store_dword v%d, v%d, %s, s3 offen" % (vt, vt + 1, S(S_WS)))
    a("s_mov_b64 exec, -1\ns_nop 0")
def g2_mfma(D, B, A, first): a("v_mfma_f32_16x16x32_bf16 %s, %s, %s, %s" % (R4(D), R4(B), R4(A), "0" if first else R4(D)))
def g2_flagoff(v, ks):
    packed = sum(k << (4*j) for j, k in enumerate(ks))
    a("v_lshlrev_b32 v%d, 2, v0\ns_mul_i32 s3, s56, 0x1111\ns_add_u32 s3, s3, 0x%x\nv_bfe_u32 v%d, s3, v%d, 4\nv_lshlrev_b32 v%d, 2, v%d" % (v, packed, v, v, v, v))
def g2_step(s, late):
    stamp(2 + s, 2)
    for t in range(5):
        for i in range(4): g2_mfma(Dreg(i, t, late), Breg(s, t, late), Areg(s, i, late), s == 0)
def paddr(v, t1, t2):
    a("v_and_b32 v%d, 15, v0\nv_lshrrev_b32 v%d, 4, v0\nv_bfe_u32 v%d, v0, 1, 2\nv_xor_b32 v%d, v%d, v%d\nv_mul_u32_u24 v%d, 320, v%d\nv_lshl_add_u32 v%d, v%d, 4, v%d" % (v, t1, t2, t1, t1, t2, v, v, v, t1, v))

def make_table():
    T = []
    for ty in range(2):
        for t in range(256):
            ga = []
            for rnd in range(2):
                gi = t + 256 * rnd
                if gi >= 420: ga.append(ga[0]); continue
                n, gi = divmod(gi, 210); hh, gi = divmod(gi, 105); e, dg = divmod(gi, 5)
                DG = 5 * hh + dg; ti, g = DG >> 2, DG & 3
                if ty == 0:
                    col = 0 if e == 20 else 20 * hh + e + 8
                    idx = 3 * ti + (col >> 4) - (1 if ti > 0 else 0)
                    ga.append(XK + n * 8192 + idx * 1024 + (g * 16 + (col & 15)) * 16)
                else:
                    c = 40 + hh if e == 20 else 20 * hh + e
                    ga.append(IMG + n * 4608 + ((c * 4 + g) * 16 + ti * 8 if ti < 2 else 3072 + (c * 4 + g) * 8))
            l = t & 63
            if l >= 56: l = 0
            n, u4 = divmod(l, 28)
            if ty == 0: c4, mul = ((160 + 10*n + u4, 20) if u4 < 10 else (320 + 10*n + u4 - 10, 20) if u4 < 20 else (480 + 8*n + u4 - 20, 48))
            else: c4, mul = ((10*n + u4, 20) if u4 < 10 else (10*n + u4 - 2, 20) if u4 < 12 else (480 + 16 + 16*n + u4 - 12, 48))
            T += [ga[0], ga[1]]
    return T

def order_table(ph):
    wins = {1: [1]*10, 2: [2]*5, 3: [3,3,4], 4: [4,3,3]}[OPT["win"]]
    o = []; b = 0
    for w in wins:
        o += [b + (i + ph) % w for i in range(w)]; b += w
    return sum(x << (4*i) for i, x in enumerate(o))

FLC = 6 if OPT["shift"] >= 2 else 7
def loader():
    lw = sM
    def issue(base, part=(0, 11), filler=()):
        def m0(reg, i, first):
            if base is not None: return "s_add_u32 m0, s%d, %d" % (reg, base + 1024*i)
            return "s_add_u32 m0, s%d, s%d" % (reg, sK2) if first else "s_add_u32 m0, m0, 0x400"
        L = []
        for i in range(4): L.append((m0(sLA, i, i == 0), "buffer_load_dwordx4 v%d, %s, s%d offen lds" % (10+i, S(S_X), sA)))
        for i in range(2): L.append((m0(sLH, i, i == 0), "buffer_load_dwordx4 v%d, %s, s%d offen lds" % (19+i, S(S_W1), sH)))
        for i in range(5): L.append((m0(sLP, i, i == 0), "buffer_load_dwordx4 v%d, %s, s%d offen lds" % (14+i, S(S_P), sP)))
        filler = list(filler)
        for k in range(*part):
            m, d = L[k]
            if k == 10:
                l = a.newlabel("Lnop4")
                a("s_cmp_lg_u32 s%d, 0\ns_cbranch_scc1 %s" % (sLP4, l)); a(m); a("s_nop 0"); a(d); a.label(l)
            else: a(m); a("s_nop 0"); a(d)
            if filler: a(filler.pop(0))
    def nextstage(): a("s_lshr_b64 s[%d:%d], s[%d:%d], 4\ns_and_b32 s3, s%d, 15\ns_add_u32 s3, s3, s64\ns_sub_u32 s73, s3, 10\ns_min_u32 s3, s3, s73\ns_lshl_b32 s%d, s3, 7\ns_mul_i32 s%d, s3, s%d\ns_mul_i32 s%d, s3, %d" % (sORD, sORD+1, sORD, sORD+1, sORD, sA, sP, sIncP, sH, 64*3072))
    def bar(k): stamp(k + 1, 4); a("s_barrier"); stamp(k + 1, 3)
    a("s_sub_u32 s%d, s%d, 4" % (lw, sWV))
    a("v_lshrrev_b32 v2, 3, v0\nv_lshrrev_b32 v3, 4, v0\nv_and_b32 v4, 7, v0")
    a("v_xor_b32 v5, v4, v3\nv_lshlrev_b32 v5, 4, v5")
    a("s_lshl_b32 s3, s%d, 7\ns_lshl_b32 s%d, s%d, 5\ns_add_u32 s3, s3, s%d\ns_mul_i32 s3, s3, 1280" % (sRB, sT1, lw, sT1))
    a("v_mul_u32_u24 v6, 1280, v2\nv_add3_u32 v10, v6, v5, s3")
    a("v_xor_b32 v11, 64, v10\nv_add_u32 v11, 10240, v11\nv_add_u32 v12, 20480, v10\nv_add_u32 v13, 20480, v11")
    a("s_lshl_b32 s%d, s%d, 12" % (sLA, lw))
    def rel(ty, par):
        if OPT["shift"] == 3: o = [(i ^ par) if i < 2 else i for i in range(10)]
        elif ty == OPT["shift"]: o = [par, 1 - par, 2] + [3 + (i ^ par) for i in range(6)] + [9]
        else: o = [i ^ par for i in range(10)]
        return sum(x << (4*i) for i, x in enumerate(o))
    a("s_xor_b32 s3, s%d, s59\ns_and_b32 s3, s3, 1\ns_lshl_b32 s%d, s%d, 1\ns_add_u32 s3, s3, s%d\ns_mov_b32 s%d, 0x%x\ns_mov_b32 s%d, 0x%x" % (sRB, sT1, sTY, sT1, sORD, rel(0,0) & 0xffffffff, sORD+1, rel(0,0) >> 32))
    for k in range(1, 4):
        r = rel(k >> 1, k & 1)
        a("s_cmp_eq_u32 s3, %d\ns_cselect_b32 s%d, 0x%x, s%d\ns_cselect_b32 s%d, 0x%x, s%d" % (k, sORD, r & 0xffffffff, sORD, sORD+1, r >> 32, sORD+1))
    a("s_and_b32 s3, s2, 7\ns_sub_u32 s%d, s3, 5\ns_min_u32 s3, s3, s%d\ns_lshl_b32 s%d, s3, 1" % (sT1, sT1, sN))
    if OPT["norot"]: a("s_mov_b32 s%d, 0" % sN)
    a("s_and_b32 s%d, s%d, 15\ns_add_u32 s%d, s%d, s%d\ns_sub_u32 s3, s%d, 10\ns_min_u32 s%d, s%d, s3\ns_lshl_b32 s%d, s%d, 7\ns_mul_i32 s%d, s%d, %d" % (sP, sORD, sP, sP, sN, sP, sP, sP, sA, sP, sH, sP, 64*3072))
    a("s_mov_b32 s%d, 0x%x\ns_mov_b32 s%d, 0x20000" % (S_X+2, 2048*1280, S_X+3))
    a("s_waitcnt lgkmcnt(0)")
    a("s_mov_b32 s%d, s36\ns_mov_b32 s%d, s37" % (S_X, S_X+1))
    stamp(1)
    issue(0, (0, 4))
    a("v_and_b32 v6, 3, v2\nv_lshrrev_b32 v7, 2, v2\nv_lshl_add_u32 v6, v7, 3, v6\nv_mul_u32_u24 v6, 3072, v6")
    a("v_and_b32 v7, 6, v2\nv_xor_b32 v7, v4, v7\nv_lshl_add_u32 v6, v7, 4, v6")
    a("s_mul_i32 s%d, s%d, 384\ns_lshl_b32 s3, s%d, 7\ns_add_u32 s%d, s%d, s3" % (sT1, sJJ, sTY, sT1, sT1))
    a("s_and_b32 s%d, s%d, 1" % (sT2, lw))
    a("s_lshr_b32 s3, s%d, 1\ns_lshl_b32 s3, s3, 3\ns_add_u32 s3, s3, s%d\ns_mul_i32 s3, s3, 12288\ns_add_u32 s3, s3, s%d" % (lw, sT2, sT1))
    a("v_add_u32 v19, s3, v6\nv_add_u32 v20, 49152, v19")
    a("s_movk_i32 s%d, %d\ns_cmp_eq_u32 s%d, 0\ns_cselect_b32 s%d, %d, s%d\ns_lshl_b32 s3, s%d, 11\ns_add_u32 s%d, s%d, s3" % (sLH, HQ_OFF, sTY, sLH, HKV_OFF, sLH, lw, sLH, sLH))
    srd(S_W1, 44, 640*3072)
    issue(0, (4, 6))
    a("s_lshr_b32 s3, s%d, 1\ns_and_b32 s%d, s3, s%d\ns_cbranch_scc1 L_phmode" % (lw, sLP4, sTY))
    a("s_mov_b32 s%d, %d" % (sIncP, 64*3840))
    a("s_lshr_b32 s3, s%d, 1\ns_add_u32 s3, s3, 1\ns_cmp_eq_u32 s%d, 0\ns_cselect_b32 s3, s3, 0" % (lw, sTY))
    a("s_mul_i32 s%d, s3, 1280\ns_mul_i32 s%d, s%d, 160\ns_add_u32 s%d, s%d, s%d\ns_mul_i32 s%d, s%d, %d\ns_add_u32 s%d, s%d, s%d" % (sT1, sT3, sJJ, sT1, sT1, sT3, sT3, sT2, 32*3840, sT1, sT1, sT3))
    a("s_movk_i32 s%d, %d\ns_cmp_eq_u32 s3, 2\ns_cselect_b32 s%d, %d, s%d\ns_mul_i32 s%d, s%d, 5120\ns_add_u32 s%d, s%d, s%d" % (sLP, K_OFF, sLP, V_OFF, sLP, sT3, sT2, sLP, sLP, sT3))
    a("v_mul_u32_u24 v7, 6554, v0\nv_lshl_add_u32 v5, v0, 4, s%d\ns_movk_i32 s3, 3680\ns_movk_i32 s%d, 3840" % (sT1, sT3))
    for i in range(5):
        a("v_add_u32 v8, %d, v7\nv_lshrrev_b32 v8, 16, v8\nv_and_b32 v9, 12, v8" % (64*i*6554))
        c = 1024*i - (46080 if i >= 3 else 0)
        a("v_add_u32 v%d, 0x%x, v5\nv_mad_u32_u24 v%d, v8, s3, v%d\nv_mad_u32_u24 v%d, v9, s%d, v%d" % (14+i, c & 0xffffffff, 14+i, 14+i, 14+i, sT3, 14+i))
        if i == 2: a("v_lshrrev_b32 v8, 4, v8\nv_mul_u32_u24 v8, 46080, v8\nv_sub_u32 v16, v16, v8")
    srd(S_P, 38, 640*3840)
    a("s_branch L_pdone")
    a.label("L_phmode")
    a("s_mov_b32 s%d, %d" % (sIncP, 64*3072))
    a("s_mul_i32 s3, s%d, %d\ns_add_u32 s3, s3, s%d\ns_add_u32 s3, s3, 128" % (sT2, 32*3072, sT1))
    a("v_add_u32 v14, s3, v6\nv_add_u32 v15, 49152, v14\nv_add_u32 v16, 12288, v14\nv_add_u32 v17, 61440, v14\nv_mov_b32 v18, 0x%x" % OOB)
    a("s_lshl_b32 s3, s%d, 12\ns_add_u32 s%d, s3, %d" % (sT2, sLP, HQ_OFF + 8192))
    srd(S_P, 44, 640*3072)
    a.label("L_pdone")
    a("s_mul_i32 s%d, s%d, s%d" % (sP, sP, sIncP))
    issue(0, (6, 11)); nextstage()
    srd(S_WS, 56, WS_SIZE)
    a("s_getpc_b64 s[%d:%d]\nL_pc1:\ns_add_u32 s%d, s%d, L_table-L_pc1\ns_addc_u32 s%d, s%d, 0" % (sPC, sPC+1, sPC, sPC, sPC+1, sPC+1))
    a("v_lshlrev_b32 v1, 4, v0\ns_lshl_b32 s3, s%d, 10\nv_add_u32 v254, s3, v1\ns_lshl_b32 s3, s%d, 12\nv_add_u32 v5, s3, v254\nv_lshrrev_b32 v21, 1, v5" % (lw, sTY))
    a("v_mov_b32 v22, %d\ns_getreg_b32 s%d, hwreg(HW_REG_XCC_ID, 0, 4)\ns_and_b32 s3, s2, 7\ns_lshl_b32 s3, s3, 5\ns_lshr_b32 s%d, s2, 3\ns_add_u32 s3, s3, s%d\ns_lshl_b32 s3, s3, 2\ns_add_u32 s3, s3, 0x%x\nv_mov_b32 v23, s3" % (TAGL, sFAST, sT1, sT1, FWG))
    a("s_mov_b32 s%d, %d\ns_mov_b32 s%d, 1\ns_branch L_kvi" % (sK2, SLOT, sK1))
    a.label("L_kvl")
    a("s_waitcnt vmcnt(10)\ns_barrier")
    if STAMPS and OPT["sm"] == 3:
        a("s_memrealtime s[%d:%d]\ns_waitcnt lgkmcnt(0)" % (sST, sST+1))
        for k in range(7): a("s_cmp_eq_u32 s%d, %d\ns_cselect_b32 s%d, s%d, s%d" % (sK1, k + 2, sST + 3 + k, sST, sST + 3 + k))
    a("s_lshl_b32 s3, s%d, 2\ns_add_u32 s3, s3, s%d\ns_cmp_lg_u32 s3, %d\ns_cbranch_scc1 L_kvi" % (sK1, lw, 4 * 4 + 3))
    a("ds_read_b32 v6, v22\ns_mov_b64 exec, 1\ns_waitcnt lgkmcnt(0)\nv_xor_b32 v6, s%d, v6\nbuffer_store_dword v6, v23, %s, 0 offen sc1\ns_mov_b64 exec, -1" % (sFAST, S(S_WS)))
    a.label("L_kvi")
    if OPT["cp2"]:
        a("s_cmp_lg_u32 s%d, %d\ns_cbranch_scc1 L_nocp2" % (sK1, OPT["cp2"]))
        a("s_lshr_b32 s3, s2, 3\ns_lshl_b32 s3, s3, 2\ns_add_u32 s3, s3, s%d\ns_lshl_b32 s3, s3, 8\ns_min_u32 s3, s3, L_table-L_pc0-256" % lw)
        for k in range(4): a("s_load_dword s%d, s[%d:%d], s3\ns_add_u32 s3, s3, 64" % (sSpin, sEX, sEX+1))
        a.label("L_nocp2")
    issue(None); nextstage()
    a("s_add_u32 s%d, s%d, %d\ns_cmp_eq_u32 s%d, %d\ns_cselect_b32 s%d, 0, s%d\ns_add_u32 s%d, s%d, 1\ns_cmp_lt_u32 s%d, 9\ns_cbranch_scc1 L_kvl" % (sK2, sK2, SLOT, sK2, 3*SLOT, sK2, sK2, sK1, sK1, sK1))
    a.c("PADS_ON")
    if OPT["lp"]: a("s_setprio %d" % OPT["lp"])
    a("global_load_dwordx2 v[252:253], v21, s[%d:%d]" % (sPC, sPC+1))
    a("v_mov_b32 v6, %d\nds_read_b32 v6, v6" % TAGL)
    g2_setup(True)
    a("v_and_b32 v29, 15, v0\nv_min_u32 v29, 13, v29\nv_lshlrev_b32 v29, 4, v29\ns_mul_i32 s3, s%d, 224\nv_add_u32 v29, s3, v29\nv_lshrrev_b32 v30, 4, v0\nv_lshl_add_u32 v31, v30, 10, v29\nv_and_b32 v30, 0x7ff, v31\nv_add_u32 v29, %d, v29\ns_lshl_b32 s3, s%d, 3\ns_add_u32 s3, s3, s%d\ns_mul_i32 s%d, s3, 10240\ns_add_u32 s%d, s%d, 0x%x" % (lw, CSL, sTY, sJJ, sPC, sPC, sPC, CSP_OFF))
    a("v_add_u32 v255, 4096, v254\nv_cmp_gt_u32 vcc, %d, v254\nv_mov_b32 v3, 0x%x\ns_mov_b64 s[%d:%d], vcc\nv_cndmask_b32 v255, v3, v255, vcc" % ((420 - 256) * 16, OOB, sEX, sEX+1))
    a("s_lshl_b32 s%d, s%d, 10\ns_lshl_b32 s3, s%d, 11\ns_add_u32 s%d, s%d, s3\ns_add_u32 s%d, s%d, 0x%x" % (sT1, lw, sRB, sT1, sT1, sT1, sT1, STAT_OFF - 1024))
    a("s_cmp_eq_u32 s%d, 3\ns_cselect_b32 s%d, 0x%x, s%d\ns_cselect_b32 s%d, -16, 0\ns_cselect_b32 s%d, -16, -1" % (lw, sT1, FWG, sT1, sT2, sT3))
    a("s_waitcnt lgkmcnt(0)\nv_readfirstlane_b32 s%d, v6\ns_waitcnt vmcnt(11)" % sTAG)
    bar(7)
    def csloads():
        for p in range(3): a("s_add_u32 s3, s%d, %d\nbuffer_load_dwordx4 %s, v%d, %s, s3 offen sc1" % (sPC, 4096 * p, R4(36 + 4*p), 31 if p < 2 else 30, S(S_WS)))
    a("s_cmp_eq_u32 s%d, 0\ns_cbranch_scc1 L_ck1\nbuffer_load_dwordx4 v[24:27], v1, %s, s%d offen sc1" % (lw, S(S_WS), sT1))
    a.label("L_ck1")
    issue(0, filler=["\n".join("s_lshr_b32 s%d, s%d, %d" % (TB[k], sTAG, 8*k) for k in range(4)),
          "v_mov_b64 v[4:5], 0\nv_mov_b64 v[6:7], 0\nv_add_u32 v8, %d, v254\nv_add_u32 v9, %d, v1" % (IMG, IMG + 8192),
          "ds_write_b128 v8, v[4:7]\nds_write_b128 v8, v[4:7] offset:4096\nds_write_b128 v9, v[4:7]"])
    a("s_mov_b32 s%d, %d\ns_waitcnt vmcnt(10)\ns_cmp_eq_u32 s%d, 3\ns_cbranch_scc1 L_chk" % (sSpin, SPIN, lw))
    bar(8)
    a("s_cmp_eq_u32 s%d, 0\ns_cbranch_scc1 L_chkok" % lw)
    a.label("L_chk")
    for k in range(4): a("v_xor_b32 v%d, s%d, v%d" % (32 + k, sTAG, 24 + k))
    a("v_or_b32 v3, v32, v34\nv_or_b32 v4, v33, v35\nv_and_b32 v3, s%d, v3\nv_and_b32 v4, s%d, v4\nv_or_b32 v3, v3, v4\nv_cmp_ne_u32 vcc, 0, v3\ns_cbranch_vccz L_chkw" % (sT2, sT3))
    a("s_sleep 8\nbuffer_load_dwordx4 v[24:27], v1, %s, s%d offen sc1\ns_waitcnt vmcnt(0)\ns_sub_u32 s%d, s%d, 1\ns_cbranch_scc0 L_chk" % (S(S_WS), sT1, sSpin, sSpin))
    a.label("L_chkw")
    a("s_cmp_eq_u32 s%d, 3\ns_cbranch_scc1 L_chk3" % lw)
    a("s_lshl_b32 s3, s%d, 8\ns_add_u32 s3, s3, %d\nv_lshl_add_u32 v3, v0, 2, s3\nds_write2st64_b32 v3, v24, v26 offset0:0 offset1:2\ns_branch L_chkok" % (lw, STATL - 256))
    a.label("L_chk3")
    a("s_getreg_b32 s3, hwreg(HW_REG_XCC_ID, 0, 4)\nv_xor_b32 v3, s3, v32")
    for k in range(1, 4): a("v_bitop3_b32 v3, v3, v%d, s3 bitop3:0xf6" % (32 + k))
    a("v_cmp_ne_u32 vcc, 0, v3\ns_and_b32 s3, s2, 7\ns_lshl_b32 s3, s3, 3\ns_lshr_b64 vcc, vcc, s3\ns_and_b32 s3, vcc_lo, 0xff\ns_cselect_b32 s3, 0, 1")
    a("v_mov_b32 v3, %d\nv_mov_b32 v4, s3\nds_write_b32 v3, v4\ns_barrier\ns_branch L_chkok" % FASTL)
    a.label("L_chkok")
    csloads()
    n1 = OPT["n1"]
    for s in range(n1): loadB(s, True)
    a("s_waitcnt vmcnt(%d) lgkmcnt(0)" % (5 * n1 + 3))
    bar(9)
    a("v_mov_b32 v6, %d\nds_read_b32 v6, v6\ns_mov_b32 s%d, %d\ns_waitcnt vmcnt(%d)" % (FASTL, sSpin, SPIN, 5 * n1))
    a.label("L_cchk")
    tagchk(3, list(range(36, 48)))
    a("s_cbranch_vccz L_cchkok\ns_sleep 8")
    csloads()
    a("s_waitcnt vmcnt(0)\ns_sub_u32 s%d, s%d, 1\ns_cbranch_scc0 L_cchk" % (sSpin, sSpin))
    a.label("L_cchkok")
    a("v_pk_add_f32 v[36:37], v[36:37], v[40:41]\nv_pk_add_f32 v[38:39], v[38:39], v[42:43]\ns_mov_b32 exec_hi, 0\nv_pk_add_f32 v[36:37], v[36:37], v[44:45]\nv_pk_add_f32 v[38:39], v[38:39], v[46:47]\ns_mov_b64 exec, -1")
    for op in ("v_permlane16_swap_b32", "v_permlane32_swap_b32"):
        a("v_mov_b64 v[40:41], v[36:37]\nv_mov_b64 v[42:43], v[38:39]\ns_nop 1")
        for k in range(4): a("%s v%d, v%d" % (op, 36 + k, 40 + k))
        a("s_nop 0\nv_pk_add_f32 v[36:37], v[36:37], v[40:41]\nv_pk_add_f32 v[38:39], v[38:39], v[42:43]")
    a("ds_write_b128 v29, v[36:39]")
    stamp(4)
    nb = min(7, n1 + OPT["n2"])
    for s in range(n1, nb): loadB(s, True)
    a("s_mul_i32 s%d, s%d, %d\ns_add_u32 s%d, s%d, 0x%x\ns_waitcnt lgkmcnt(0)\nv_readfirstlane_b32 s%d, v6" % (sH, sJJ, KVP_STRIDE, sH, sH, RED_OFF, sFAST))
    stamp(5)
    a("s_barrier")
    if OPT["lp"]: a("s_setprio 0")
    stamp(6)
    for s in range(nb, 4): loadB(s, True)
    for s in range(OPT["kvd"]): dmaB(s)
    a("s_lshl_b32 s%d, s%d, 9\ns_add_u32 s%d, s%d, 0x%x\ns_lshl_b32 s3, s%d, 2\ns_add_u32 s%d, s%d, s3\ns_lshl_b32 s3, s%d, 2\ns_add_u32 s%d, s%d, s3" % (sORD+1, sRT, sORD+1, sORD+1, FH, sK0, sORD, sORD+1, sK1, sORD+1, sORD+1))
    for k in range(4): step_off(4 + k, True, (sAo0, sAo1, sAo2, sAoF), 4096, sLA + k)
    nb2 = max(nb, 4)
    nbq = nb2
    if not (OPT["bl"] and OPT["afirst"]):
        for s in range(nb2, 7): loadB(s, True)
        nbq = 7
    a("s_cmp_lg_u32 s%d, 0\ns_cbranch_scc1 L_lq1" % sTY)
    for s in range(nbq, 7): loadB(s, True)
    nb2 = 7
    a("s_lshl_b32 s%d, s%d, 4\ns_mul_i32 s%d, s%d, %d\ns_add_u32 s%d, s%d, 0x%x\ns_mul_i32 s3, s%d, %d\ns_add_u32 s%d, s%d, s3\nv_mov_b32 v3, 0xff" % (sT2, sJJ, sT2, sT2, KVP_STRIDE, sT2, sT2, KVP_OFF, sRB, KVP_STRIDE, sT1, sT2))
    a("s_lshl_b32 s%d, s%d, 2\ns_add_u32 s%d, s%d, s%d\ns_lshl_b32 s3, s%d, 7\ns_add_u32 s%d, s%d, s3\ns_add_u32 s%d, s%d, s3\ns_add_u32 s%d, s%d, %d" % (sA, sRB, sA, sA, lw, sA, sT2, sT2, sH, sH, sT3, sT2, 8*KVP_STRIDE))
    a("s_cmp_eq_u32 s%d, 52\ns_cselect_b32 s3, 3, 7\nv_and_b32 v21, s3, v0\nv_lshlrev_b32 v21, 4, v21\nv_lshrrev_b32 v20, 3, v0\nv_mul_u32_u24 v20, %d, v20\nv_add_u32 v20, v20, v21" % (sA, KVP_STRIDE))
    stamp(1, 1)
    a("s_setprio 2")
    lds_wait(LF_XK, None, 4, 4)
    stamp(7); stamp(3, 1)
    a("ds_read_b128 v[4:7], v252\nds_read_b128 v[8:11], v252 offset:16384\nds_read_b128 v[12:15], v253\nds_read_b128 v[16:19], v253 offset:16384")
    a("s_waitcnt lgkmcnt(2)\nv_pk_add_f32 v[4:5], v[4:5], v[8:9]\nv_pk_add_f32 v[6:7], v[6:7], v[10:11]")
    for k in range(4): a("v_bfi_b32 v%d, v3, s%d, v%d" % (4 + k, TB[k], 4 + k))
    a("buffer_store_dwordx4 v[4:7], v254, %s, s%d offen sc1" % (S(S_WS), sT1))
    a("s_waitcnt lgkmcnt(0)\nv_pk_add_f32 v[12:13], v[12:13], v[16:17]\nv_pk_add_f32 v[14:15], v[14:15], v[18:19]")
    for k in range(4): a("v_bfi_b32 v%d, v3, s%d, v%d" % (12 + k, TB[k], 12 + k))
    a("buffer_store_dwordx4 v[12:15], v255, %s, s%d offen sc1" % (S(S_WS), sT1))
    for s in range(OPT["kvd"], 6): dmaB(s)
    a("s_waitcnt vmcnt(%d)" % (2 if OPT["kvd"] == 6 else 0))
    lds_signal(LF_B, lw, 22)
    nkb = min(7, nb2 + OPT["kvb"])
    for s in range(nb2, nkb): loadB(s, True)
    stamp(4, 1)
    a("s_cmp_gt_u32 s%d, 52\ns_cbranch_scc1 L_nored\ns_mov_b32 s%d, %d\ns_waitcnt vmcnt(0)" % (sA, sSpin, SPIN))
    a.label("L_red")
    a("buffer_load_dwordx4 v[4:7], v20, %s, s%d offen sc1\nbuffer_load_dwordx4 v[8:11], v20, %s, s%d offen sc1\ns_waitcnt vmcnt(0)" % (S(S_WS), sT2, S(S_WS), sT3))
    tagchk(12, list(range(4, 12)))
    a("s_cbranch_vccz L_redok\ns_sleep 1\ns_sub_u32 s%d, s%d, 1\ns_cbranch_scc0 L_red" % (sSpin, sSpin))
    a.label("L_redok")
    stamp(5, 1)
    a("v_pk_add_f32 v[4:5], v[4:5], v[8:9]\nv_pk_add_f32 v[6:7], v[6:7], v[10:11]\ns_nop 1")
    for k in range(4): a("v_add_f32_dpp v%d, v%d, v%d row_ror:8 row_mask:0xf bank_mask:0xf" % (4 + k, 4 + k, 4 + k))
    for op in ("v_permlane16_swap_b32", "v_permlane32_swap_b32"):
        a("v_mov_b64 v[8:9], v[4:5]\nv_mov_b64 v[10:11], v[6:7]\ns_nop 1")
        for k in range(4): a("%s v%d, v%d" % (op, 4 + k, 8 + k))
        a("s_nop 0\nv_pk_add_f32 v[4:5], v[4:5], v[8:9]\nv_pk_add_f32 v[6:7], v[6:7], v[10:11]")
    for k in range(4): a("v_bfi_b32 v%d, v3, s%d, v%d" % (4 + k, TB[k], 4 + k))
    a("s_mov_b64 exec, 0xff\nbuffer_store_dwordx4 v[4:7], v21, %s, s%d offen sc1\ns_mov_b64 exec, -1" % (S(S_WS), sH))
    a.label("L_nored")
    lds_signal(LF_Q, None, 22)
    if OPT["qk"]: lds_wait(LF_Q, None, 4, 22)
    a("s_setprio 0")
    for s in range(nkb, 7): loadB(s, True)
    a("s_branch L_la")
    a.label("L_lq1")
    for s in range(OPT["kvd"], 6): dmaB(s)
    for s in range(nb2, 7): loadB(s, True)
    a("s_lshr_b32 s%d, s%d, 1\ns_and_b32 s%d, s%d, 1" % (sA, lw, sP, lw))
    a2_soff(sT2, sA, lambda: a("s_lshl_b32 s3, s%d, 1\ns_add_u32 s3, s3, s%d\ns_add_u32 s3, s3, 48" % (sJJ, sP)))
    a2_soff(sT3, sA, lambda: a("s_lshr_b32 s3, s%d, 1\ns_add_u32 s3, s3, 64" % sJJ))
    a("s_lshl_b32 s3, s%d, 1\ns_add_u32 s3, s3, s%d\ns_and_b32 s3, s3, 3\ns_lshl_b32 s3, s3, 8\ns_add_u32 s%d, s%d, s3" % (sJJ, sP, sT3, sT3))
    a("s_lshl_b32 s3, s%d, 10\ns_add_u32 s%d, s%d, s3" % (lw, sH, sH))
    stamp(1, 1)
    a("s_waitcnt vmcnt(%d)" % (5 * (7 - nb2)))
    lds_signal(LF_B, lw, 22)
    AF = OPT["afirst"]
    if AF:
        a("v_lshrrev_b32 v4, 1, v254\nv_add_u32 v4, %d, v4\nds_write_b64 v4, v[252:253]" % GAL)
        stamp(8); stamp(6, 1)
        g2_flagoff(3, KS_L)
        poll(3, sORD, 4, 4, "hq")
        stamp(9); stamp(7, 1); stamp(1, 2)
        if OPT["ap"]: a("s_setprio %d" % OPT["ap"])
        vq = VM(); G = 108
        loadA(0, True); loadA(1, True); vq.add("A0", 4); vq.add("A1", 4)
        lateB = list(range(nbq, 7))
        if lateB: loadB(lateB.pop(0), True); vq.add("B", 5)
        for s in range(4):
            vq.wait("A%d" % s)
            g2_step(s, True)
            if s < 2: loadA(s + 2, True); vq.add("A%d" % (s + 2), 4)
            if lateB and s < 2: loadB(lateB.pop(0), True); vq.add("B", 5)
            if s == OPT["gh"]:
                a("v_cndmask_b32 v%d, v1, v2, s[%d:%d]" % (G + 10, sEX, sEX+1))
                a("buffer_load_dwordx4 %s, v1, %s, s%d offen sc1\nbuffer_load_dwordx4 %s, v%d, %s, s%d offen sc1" % (R4(G), S(S_WS), sH, R4(G + 4), G + 10, S(S_WS), sH)); vq.add("G", 2)
        assert not lateB
        stamp(8, 1)
    PQ = 224; AD = 248
    W32, W16, O, RM, G = (84, 98, 108, 156, 108) if AF else (4, 18, 28, 76, 28)
    if not AF: a("v_cndmask_b32 v%d, v1, v2, s[%d:%d]" % (G + 10, sEX, sEX+1))
    def gl(): a("buffer_load_dwordx4 %s, v1, %s, s%d offen sc1\nbuffer_load_dwordx4 %s, v%d, %s, s%d offen sc1" % (R4(G), S(S_WS), sH, R4(G + 4), G + 10, S(S_WS), sH))
    if AF:
        a("s_lshl_b32 s3, s%d, 9\ns_add_u32 s3, s3, %d\nv_lshl_add_u32 v%d, v0, 3, s3\nds_read_b64 %s, v%d" % (lw, GAL, G + 12, R2(G + 12), G + 12))
    else: a("v_mov_b64 %s, v[252:253]" % R2(G + 12))
    import re
    def ag(x): a(re.sub(r"@(\d+)@", lambda m: str(G + int(m.group(1))), x))
    ag("v_and_b32 v@16@, 15, v0\nv_lshrrev_b32 v@15@, 4, v0\ns_mul_i32 s3, s%d, 4608\ns_add_u32 s3, s3, %d" % (sP, IMG))
    ag("v_lshl_add_u32 v@17@, v@16@, 2, v@15@\nv_lshl_add_u32 v%d, v@17@, 3, s3\nv_lshl_add_u32 v%d, v@17@, 4, s3" % (AD+1, AD))
    ag("v_and_b32 v@18@, 3, v@16@\nv_min_u32 v@18@, 1, v@18@\nv_cmp_eq_u32 vcc, 2, v@16@\nv_lshlrev_b32 v@16@, 4, v@16@\nv_lshl_add_u32 v%d, v@15@, 10, v@16@\nv_cndmask_b32 v@18@, v@18@, 0, vcc" % (AD+4))
    ag("v_add_u32 v@18@, 40, v@18@\nv_lshl_add_u32 v@18@, v@18@, 2, v@15@\nv_lshl_add_u32 v%d, v@18@, 3, s3\nv_lshl_add_u32 v%d, v@18@, 4, s3\nv_mov_b32 v%d, 0x358637bd" % (AD+3, AD+2, AD+5))
    lds_wait(LF_PQ, lw, 1, 254, 2)
    ag("s_setprio 2")
    ag("s_mul_i32 s3, s%d, 6144\ns_add_u32 s3, s3, %d\nv_add_u32 v@20@, s3, v1\nv_lshl_add_u32 v@21@, v0, 3, s3" % (lw, PQL))
    for i in range(4): ag("ds_read_b128 %s, v@20@ offset:%d\nds_read_b64 %s, v@21@ offset:%d" % (R4(PQ + 6*i), 1024*i, R2(PQ + 6*i + 4), 4096 + 512*i))
    if not AF: gl()
    ag("s_mov_b32 s%d, %d" % (sSpin, SPIN))
    a.label("L_gather")
    a("s_waitcnt vmcnt(0)")
    tagchk(G + 8, list(range(G, G + 8)))
    a("s_cbranch_vccz L_gatherok\ns_sleep %d" % OPT["slp"])
    gl()
    a("s_sub_u32 s%d, s%d, 1\ns_cbranch_scc0 L_gather\ns_waitcnt vmcnt(0)" % (sSpin, sSpin))
    a.label("L_gatherok")
    stamp(7); stamp(2, 1)
    if OPT["yld"]: lds_signal(LF_PQ, lw, 254)
    for k in range(4): a("v_cvt_pk_bf16_f32 v%d, v%d, v%d" % (G + k, G + 2*k, G + 1 + 2*k))
    a("ds_write_b64 v%d, %s\nds_write_b64 v%d, %s\ns_waitcnt lgkmcnt(0)" % (G + 12, R2(G), G + 13, R2(G + 2)))
    lds_signal(LF_IMG, None, 254)
    lds_wait(LF_IMG, None, 4, 254, 0)
    stamp(3, 1)
    for to in range(3): a("ds_read_b128 %s, v%d offset:%d" % (R4(W32 + 4*to), AD, 1024*to))
    a("ds_read_b128 %s, v%d" % (R4(W32 + 12), AD+2))
    for to in range(1, 3): a("ds_read_b64 %s, v%d offset:%d" % (R2(W16 + 2*to), AD+1, 3072 + 512*to))
    a("ds_read_b64 %s, v%d offset:3072\ns_waitcnt lgkmcnt(0)" % (R2(W16 + 6), AD+3))
    def Oreg(i, to): return O + 16*(i % 3) + 4*to
    def omfma(i):
        for to in range(4): a("v_mfma_f32_16x16x32_bf16 %s, %s, %s, 0" % (R4(Oreg(i, to)), R4(W32 + 4*to), R4(PQ + 6*i)))
    def omfma2(i):
        for to in (3, 1, 2): a("v_mfma_f32_16x16x16_bf16 %s, %s, %s, %s" % (R4(Oreg(i, to)), R2(W16 + 2*to), R2(PQ + 6*i + 4), R4(Oreg(i, to))))
    def oden(i):
        d = Oreg(i, 3)
        for j in range(3): a("v_add_f32 v%d, v%d, v%d" % (d + j, d + j, AD+5))
        for j in range(3): a("v_rcp_f32 v%d, v%d" % (d + j, d + j))
    def ofin(i):
        d = Oreg(i, 3)
        for to, sel in ((0, 0), (2, 1), (1, 2)):
            for q in range(2):
                x = Oreg(i, to) + 2*q
                if OPT["sco"]: a("v_mul_f32 v%d, v%d, v%d\nv_mul_f32 v%d, v%d, v%d" % (x, x, d + sel, x + 1, x + 1, d + sel))
                else: a("v_pk_mul_f32 %s, %s, %s op_sel:[0,%d] op_sel_hi:[1,%d]" % (R2(x), R2(x), R2(d + (sel & 2)), sel & 1, sel & 1))
        for k in (4, 5, 0, 1, 2, 3): a("v_cvt_pk_bf16_f32 v%d, v%d, v%d" % (PQ + 6*i + k if k < 4 else RM + 2*i + k - 4, Oreg(i, 0) + 2*k, Oreg(i, 0) + 2*k + 1))
    def ost(i): st_a2("buffer_store_dwordx4 %s, v1, %s, s%d offen offset:%d" % (R4(PQ + 6*i), S(S_WS), sT2, 1024*i))
    for i in range(3): omfma(i)
    for i in range(3): omfma2(i)
    oden(0); ofin(0); omfma(3); ost(0); oden(1); oden(2); omfma2(3); ofin(1); ost(1); oden(3); ofin(2); ost(2); ofin(3); ost(3)
    for k in range(2): a("v_permlane16_swap_b32 v%d, v%d" % (RM + k, RM + 2 + k))
    for k in range(2): a("v_permlane16_swap_b32 v%d, v%d" % (RM + 4 + k, RM + 6 + k))
    a("s_nop 1")
    for k in range(4): a("v_permlane32_swap_b32 v%d, v%d" % (RM + k, RM + 4 + k))
    st_a2("buffer_store_dwordx4 %s, v%d, %s, s%d offen" % (R4(RM), AD+4, S(S_WS), sT3))
    stamp(4, 1)
    if OPT["yld"]: lds_signal(LF_PQ, lw, 254)
    ks_flag(sT2, sA, 0, 254)
    lds_signal(LF_Q, None, 252)
    stamp(5, 1)
    a("s_setprio 0")
    if AF:
        loadB(7, True); loadB(8, True)
        a("s_branch L_oslow2")
    a.label("L_la")
    stamp(8); stamp(6, 1)
    g2_flagoff(3, KS_L)
    poll(3, sORD, 4, 4, "hl")
    stamp(9); stamp(7, 1); stamp(1, 2)
    if OPT["ap"]: a("s_setprio %d" % OPT["ap"])
    vm = VM()
    AO = [124, 144, 224, 124]
    so = [sLA, sLA + 1, sLA + 2, sLA + 3, sAo2]
    def ldo(i):
        for s in range(5): a("buffer_load_dwordx4 %s, v1, %s, s%d offen offset:%d%s" % (R4(AO[i] + 4*s), S(S_WS), so[s], 1024*i, ALD))
        for s in range(5): vm.add("O%d%d" % (i, s))
    loadA(0, True); loadA(1, True); vm.add("A0", 4); vm.add("A1", 4)
    for s in range(4):
        vm.wait("A%d" % s)
        g2_step(s, True)
        if s < 2: loadA(s + 2, True); vm.add("A%d" % (s + 2), 4)
        if s == 1:
            a("v_lshlrev_b32 v3, 2, v0\ns_mov_b64 exec, 15\nbuffer_load_dword v3, v3, %s, s%d offen%s\ns_mov_b64 exec, -1" % (S(S_WS), sORD + 1, PLD)); vm.add("F")
            loadB(7, True); loadB(8, True); vm.add("B", 10)
        if s == 2:
            vm.wait("F")
            a("v_cmp_ne_u32 vcc, s%d, v3\ns_and_b32 s%d, vcc_lo, 15\ns_cbranch_scc1 L_oslow" % (sTAG, sK0))
            ldo(0)
    ldo(1); ldo(2)
    a.label("L_oback")
    mark = len(a.lines)
    a.label("L_oslow")
    g2_step(3, True)
    a.label("L_oslow2")
    a("s_setprio 0\nv_lshlrev_b32 v3, 2, v0")
    stamp(9, 1)
    poll(3, sORD + 1, 4, 248, "o")
    q = list(vm.q); ldo(0); ldo(1); ldo(2); vm.q = q
    a("s_branch L_oback")
    SLOW = a.lines[mark:]; del a.lines[mark:]
    a("s_setprio 0")
    stamp(10); stamp(10, 1); stamp(6, 2)
    paddr(251, 249, 250)
    a("s_mul_i32 s3, s%d, 5120\ns_add_u32 s3, s3, %d\nv_add_u32 v250, s3, v251\ns_mul_i32 s3, s%d, %d\nv_add_u32 v251, s3, v251\nv_add_u32 v249, 20480, v251" % (sM, 4*EBS, sM, EBS))
    a("v_mov_b32 v252, %d\nv_mov_b32 v253, 1" % (LFLAG + LF_T))
    def sig(i): return "s_mov_b64 exec, 1\ns_waitcnt lgkmcnt(0)\nds_add_u32 v252, v253 offset:%d\ns_mov_b64 exec, -1" % (4*i)
    pend = []
    for i in range(4):
        k = 0
        stamp(7 + i, 2)
        for s in range(5):
            vm.wait("O%d%d" % (i, s))
            for t in range(5):
                g2_mfma(Dreg(i, t, True), Breg(4 + s, t, True), AO[i] + 4*s, False)
                k += 1
                if pend and k >= 4: a(pend.pop(0))
            if i > 0 and s == 2: a(sig(i - 1))
        if i == 0:
            ldo(3)
            lds_wait(LF_B, lw, 2, 254)
        if i == 2: lds_wait(LF_Q, None, 4, 254)
        if i == 3: lds_wait(LF_PRE, None, 8, 254)
        pend = ["ds_write_b128 v%d, %s offset:%d" % ((249, 249, 250, 251)[i], R4(Dreg(i, t, True)), (5120 if i == 1 else 0) + 64*t) for t in range(5)]
    for x in pend: a(x)
    stamp(11); stamp(11, 1); stamp(11, 2)
    a(sig(3))
    stamp(12)
    a("s_branch L_alldone")
    a.lines.extend(SLOW)

ACC = 8; F0 = 120; F1 = 164
vA0, vA1, vS, vS2, vH = 208, 209, 210, 211, 212
vB1 = 216
def acc(i, t): return ACC + (i * 7 + t) * 4

def hop_call():
    if not OPT["hop"]: return
    a("s_mov_b32 s1, 1")
    for c in range(3): a("s_cmp_eq_u32 s%d, %d\ns_cbranch_scc1 @HEAD%d@" % (sWV, c, c))
    a("s_branch @HEAD3@")
    a.label("L_hopd")
    a("s_mov_b32 s1, 0")
def compute_prologue():
    sQ, sU, sUe, sJ0, sJ1, sJ2, sCd = sLA, sLP, sH, sLP4, sLH, sA, sP
    a("s_lshr_b32 s%d, s%d, 1\ns_and_b32 s%d, s%d, 1" % (sM, sWV, sN, sWV))
    a("s_lshl_b32 s3, s%d, 3\ns_add_u32 s3, s3, s%d\ns_lshl_b32 s3, s3, 2\ns_add_u32 s3, s3, s%d\ns_lshl_b32 s3, s3, 1\ns_lshl_b32 s%d, s%d, 7\ns_add_u32 s3, s3, s%d" % (sTY, sJJ, sWV, sT1, sRB, sT1))
    a("s_mul_i32 s%d, s3, 1280\ns_lshl_b32 s%d, s3, 4\ns_add_u32 s%d, s%d, 0x%x" % (sT1, sT2, sT2, sT2, STAT_OFF))
    a("v_lshrrev_b32 v5, 5, v0\nv_and_b32 v6, 31, v0\nv_mul_u32_u24 v7, 1280, v5\nv_lshl_add_u32 v224, v6, 4, v7\nv_lshl_add_u32 v225, v6, 3, v7")
    a("s_lshl_b32 s%d, s%d, 7\ns_lshl_b32 s3, s%d, 3\ns_add_u32 s%d, s%d, s3\ns_add_u32 s%d, s%d, s%d" % (sQ, sWV, sRB, sQ, sQ, sQ, sQ, sJJ))
    a("s_mov_b32 s%d, s%d\ns_movk_i32 s%d, %d" % (sU, sQ, sUe, NQU))
    a("s_add_u32 s3, s%d, %d\ns_add_u32 s%d, s3, 1\ns_min_u32 s%d, s%d, 680\ns_cmp_eq_u32 s%d, 0\ns_cselect_b32 s%d, s3, s%d\ns_cselect_b32 s%d, s%d, s%d" % (sQ, NQU, sK0, sK0, sK0, sTY, sU, sU, sUe, sK0, sUe))
    if OPT["nojob"]: a("s_mov_b32 s%d, 0" % sUe)
    a("v_lshrrev_b32 v2, 3, v0\nv_and_b32 v4, 7, v0\nv_and_b32 v7, 6, v2\nv_xor_b32 v7, v4, v7\nv_lshlrev_b32 v4, 4, v7\nv_and_b32 v6, 3, v2")
    a("s_lshl_b32 s3, s%d, 13\ns_add_u32 m0, s3, %d\ns_mov_b32 s%d, 0x20000\ns_mov_b32 s%d, s%d" % (sWV, JOBL, S_J+3, sK0, sU))
    a("s_mov_b32 s%d, 0x%x\ns_mov_b32 s%d, 0x20000\ns_waitcnt lgkmcnt(0)\ns_mov_b32 s%d, s36\ns_mov_b32 s%d, s37" % (S_X+2, 2048*1280, S_X+3, S_X, S_X+1))
    XL = 124; U = 136
    a("buffer_load_dwordx4 %s, v224, %s, s%d offen\nbuffer_load_dwordx4 %s, v224, %s, s%d offen offset:512\nbuffer_load_dwordx2 %s, v225, %s, s%d offen offset:1024" % (R4(XL), S(S_X), sT1, R4(XL+4), S(S_X), sT1, R2(XL+8), S(S_X), sT1))
    a("s_add_u32 s%d, s56, 0x%x\ns_addc_u32 s%d, s57, 0\ns_load_dword s%d, s[%d:%d], 0" % (sEX, EPOCH, sEX+1, sTAG, sEX, sEX+1))
    a.label("L_jrl")
    a("s_cmp_ge_u32 s%d, s%d\ns_cbranch_scc1 L_nojob1" % (sK0, sUe))
    a("s_mul_i32 s3, s%d, 6554\ns_lshr_b32 s%d, s3, 16\ns_mul_i32 s3, s%d, 10\ns_sub_u32 s%d, s%d, s3" % (sK0, sK1, sK1, sT3, sK0))
    a("s_cmp_lt_u32 s%d, 48\ns_cselect_b32 s%d, s48, s40\ns_cselect_b32 s%d, s49, s41\ns_mov_b32 s%d, %d\ns_cselect_b32 s%d, %d, s%d" % (sK1, S_J, S_J+1, S_J+2, 640*1280, S_J+2, 1536*1280, S_J+2))
    a("s_lshl_b32 s%d, s%d, 5\ns_mul_i32 s3, s%d, 40\ns_sub_u32 s3, s3, %d\ns_cmp_lt_u32 s%d, 48\ns_cselect_b32 s%d, s%d, s3" % (sJ0, sK1, sK1, 48*40, sK1, sJ0, sJ0))
    a("s_mul_i32 s3, s%d, 160\ns_sub_u32 s3, s3, %d\ns_cmp_lt_u32 s%d, 64\ns_cselect_b32 s%d, s%d, s3\ns_cselect_b32 s%d, 4, 40\ns_cselect_b32 s%d, 16, 4" % (sK1, 64*160 - 32, sK1, sJ0, sJ0, sJ1, sJ2))
    a("v_mad_u32_u24 v7, s%d, v5, v6\nv_mul_u32_u24 v7, 1280, v7\nv_add_u32 v3, v4, v7" % sJ1)
    a("s_mul_i32 s%d, s%d, 1280\ns_lshl_b32 s3, s%d, 7\ns_add_u32 s%d, s%d, s3\ns_mul_i32 s%d, s%d, 2560\ns_mul_i32 s%d, s%d, 1280" % (sJ0, sJ0, sT3, sJ0, sJ0, sJ1, sJ1, sJ2, sJ2))
    a("s_add_u32 s3, s%d, s%d\nbuffer_load_dwordx4 v3, %s, s%d offen lds" % (sJ0, sJ1, S(S_J), sJ0))
    a("s_add_u32 m0, m0, 0x400\ns_add_u32 s%d, s%d, s%d\nbuffer_load_dwordx4 v3, %s, s3 offen lds" % (sJ0, sJ0, sJ2, S(S_J)))
    a("s_add_u32 m0, m0, 0x400\ns_add_u32 s3, s%d, s%d\nbuffer_load_dwordx4 v3, %s, s%d offen lds" % (sJ0, sJ1, S(S_J), sJ0))
    a("s_add_u32 m0, m0, 0x400\ns_add_u32 s%d, s%d, 512\nbuffer_load_dwordx4 v3, %s, s3 offen lds" % (sK0, sK0, S(S_J)))
    a("s_add_u32 m0, m0, 0x400\ns_branch L_jrl")
    a.label("L_nojob1")
    srd(S_B1, 46, 3072); srd(S_WS, 56, WS_SIZE); srd(S_OUT, 52, 2048*1280); srd(S_B2, 50, 1280)
    a("v_and_b32 v2, 15, v0\nv_lshrrev_b32 v3, 4, v0\nv_lshrrev_b32 v4, 1, v2\nv_xor_b32 v4, v4, v3\nv_lshlrev_b32 v4, 4, v4\nv_lshl_add_u32 v4, v2, 7, v4\nv_lshlrev_b32 v1, 3, v3")
    a("s_lshl_b32 s3, s%d, 13\nv_add_u32 v%d, s3, v4\nv_xor_b32 v%d, 64, v%d" % (sM, vA0, vA1, vA0))
    a("v_lshlrev_b32 v226, 2, v2\nv_add_u32 v226, %d, v226" % LFLAG)
    a("v_lshrrev_b32 v2, 2, v0\nv_and_b32 v3, 3, v0\nv_mul_u32_u24 v4, 160, v2\ns_mul_i32 s3, s%d, 80\nv_add_u32 v4, s3, v4\nv_lshl_add_u32 v%d, v3, 3, v4" % (sN, vS))
    a("v_and_b32 v5, 1, v3\nv_lshl_add_u32 v4, v5, 3, v4\nv_add_u32 v4, %d, v4" % (K_OFF + 64))
    a("s_cmp_eq_u32 s%d, 0\ns_cselect_b32 s3, %d, 0\nv_lshrrev_b32 v5, 1, v3\nv_mad_u32_u24 v%d, v5, s3, v4" % (sTY, V_OFF - K_OFF - 64, vS2))
    a("v_lshlrev_b32 v4, 7, v2\nv_lshl_add_u32 v4, v3, 3, v4\nv_bfe_u32 v5, v0, 3, 2\nv_lshl_add_u32 v4, v5, 5, v4")
    a("s_lshl_b32 s3, s%d, 13\ns_add_u32 s3, s3, %d\nv_add_u32 v200, s3, v4\nv_xor_b32 v201, 32, v200\nv_xor_b32 v202, 64, v200\nv_xor_b32 v203, 0x60, v200" % (sWV, JOBL))
    a("s_lshl_b32 s3, s%d, 6\ns_cmp_eq_u32 s%d, 0\ns_cselect_b32 s3, s3, 0\nv_xor_b32 v4, s3, v4" % (sN, sTY))
    a("s_lshl_b32 s3, s%d, 13\ns_add_u32 s3, s3, %d\ns_cmp_eq_u32 s%d, 0\ns_cselect_b32 s3, %d, s3" % (sN, HQ_OFF, sTY, HKV_OFF))
    for t in range(4): a("v_xor_b32 v5, %d, v4\nv_add_u32 v%d, s3, v5" % (32*t, vH + t))
    a("s_lshl_b32 s3, s%d, 6\ns_lshl_b32 s3, s3, s%d\ns_lshl_b32 s%d, s%d, 7\ns_add_u32 s3, s3, s%d\ns_mul_i32 s%d, s%d, 384\ns_add_u32 s%d, s3, s%d" % (sN, sTY, sIncP, sTY, sIncP, sIncP, sJJ, sIncP, sIncP))
    for t in range(4): a("buffer_load_dwordx2 %s, v1, %s, s%d offen offset:%d" % (R2(vB1 + 2*t), S(S_B1), sIncP, 32*t))
    for r in range(ACC, ACC + 112, 2): a("v_mov_b64 %s, 0" % R2(r))
    a("s_waitcnt lgkmcnt(0)\ns_and_b32 s3, s%d, 0x7f7f7f7f\ns_add_u32 s3, s3, 0x35251513\ns_and_b32 s%d, s%d, 0x80808080\ns_xor_b32 s%d, s%d, s3" % (sTAG, sTAG, sTAG, sTAG, sTAG))
    a("v_mov_b32 v6, 0\nv_mov_b32 v7, s%d\nds_write2_b32 v226, v6, v7 offset0:0 offset1:16" % sTAG)
    stamp(1)
    if OPT["hpos"] == 0: hop_call()
    def allreduce32(v, t):
        for ctl in ("quad_perm:[1,0,3,2]", "quad_perm:[2,3,0,1]", "row_half_mirror", "row_mirror"):
            a("s_nop 1\nv_add_f32_dpp v%d, v%d, v%d %s row_mask:0xf bank_mask:0xf" % (v, v, v, ctl))
        a("v_mov_b32 v%d, v%d\ns_nop 1\nv_permlane16_swap_b32 v%d, v%d\ns_nop 1\nv_add_f32 v%d, v%d, v%d" % (t, v, v, t, v, v, t))
    a("s_cmp_lt_u32 s%d, s%d\ns_cbranch_scc1 L_w4\ns_waitcnt vmcnt(4)" % (sU, sUe))
    a.label("L_w4"); a("s_waitcnt vmcnt(8)")
    for i in range(10): unpack(U + 2*i, XL + i)
    a("v_pk_add_f32 v[2:3], %s, %s\nv_pk_add_f32 v[4:5], %s, %s" % (R2(U), R2(U + 2), R2(U + 4), R2(U + 6)))
    for i in range(4, 10): a("v_pk_add_f32 %s, %s, %s" % (R2(2 + 2*(i & 1)), R2(2 + 2*(i & 1)), R2(U + 2*i)))
    a("v_pk_add_f32 v[2:3], v[2:3], v[4:5]\nv_add_f32 v2, v2, v3")
    allreduce32(2, 3)
    a("v_mul_f32 v2, 0x3acccccd, v2")
    for i in range(10): a("v_pk_add_f32 %s, %s, v[2:3] op_sel_hi:[1,0] neg_lo:[0,1] neg_hi:[0,1]" % (R2(U + 2*i), R2(U + 2*i)))
    a("v_pk_mul_f32 v[4:5], %s, %s\nv_pk_mul_f32 v[6:7], %s, %s" % (R2(U), R2(U), R2(U + 2), R2(U + 2)))
    for i in range(2, 10): a("v_pk_fma_f32 %s, %s, %s, %s" % (R2(4 + 2*(i & 1)), R2(U + 2*i), R2(U + 2*i), R2(4 + 2*(i & 1))))
    a("v_pk_add_f32 v[4:5], v[4:5], v[6:7]\nv_add_f32 v4, v4, v5")
    allreduce32(4, 5)
    a("v_mul_f32 v4, 0x3acccccd, v4")
    bf16_round(4); a("v_add_f32 v4, 0x3727c5ac, v4"); bf16_round(4)
    a("v_sqrt_f32 v4, v4\ns_nop 0"); bf16_round(4); bf16_round(2)
    a("v_rcp_f32 v232, v4\nv_mov_b32 v233, s%d\nv_mov_b32 v235, s%d\nv_mul_f32 v234, v232, v2\nv_lshrrev_b32 v5, 1, v0" % (sTAG, sTAG))
    a("s_mov_b32 exec_lo, 1\ns_mov_b32 exec_hi, 1\nbuffer_store_dwordx4 v[232:235], v5, %s, s%d offen sc1\ns_mov_b64 exec, -1" % (S(S_WS), sT2))
    stamp(2)
    if OPT["hpos"] == 1: hop_call()
    a("s_and_b32 s3, s2, 7\ns_cmp_lt_u32 s3, 5\ns_cselect_b32 s%d, 1, 0\ns_cbranch_scc0 L_nosel" % sA)
    a("s_lshl_b32 s3, s3, 1\ns_and_b32 s%d, s%d, 1\ns_add_u32 s3, s3, s%d\ns_lshl_b32 s%d, s%d, 3\ns_add_u32 s%d, s%d, s%d\ns_mul_i32 s%d, s%d, 10\ns_add_u32 s3, s3, s%d\ns_lshl_b32 s3, s3, 10\ns_mul_i32 s%d, s%d, 448\ns_add_u32 s3, s3, s%d\ns_lshl_b32 s%d, s%d, 8\ns_add_u32 s3, s3, s%d\ns_add_u32 s%d, s3, 0x%x" % (sA, sRB, sA, sA, sTY, sA, sA, sJJ, sA, sA, sA, sA, sN, sA, sA, sM, sA, sA, CSP_OFF))
    a("v_and_b32 v6, 15, v0\nv_mov_b32 v7, 0x3f803f80\nv_and_b32 v4, 48, v0\nv_lshl_add_u32 v4, v6, 6, v4\nv_mov_b32 v5, 0xff")
    for t in range(4):
        a("v_cmp_eq_u32 vcc, %d, v6\ns_lshr_b32 s%d, s%d, %d\ns_nop 0\nv_cndmask_b32 v%d, 0, v7, vcc\nv_cndmask_b32 v%d, 0, v7, vcc\nv_mov_b64 %s, %s" % (t, TB[t], sTAG, 8*t, 236 + 4*t, 237 + 4*t, R2(238 + 4*t), R2(236 + 4*t)))
    a.label("L_nosel")
    FR = 120
    a("v_lshlrev_b32 v1, 4, v0")
    for r in range(QPER):
        a("s_cmp_ge_u32 s%d, s%d\ns_cbranch_scc1 L_nojob2" % (sU, sUe))
        if r == 0: a("s_waitcnt vmcnt(5)")
        for t in range(4): a("ds_read_b64_tr_b16 %s, v%d offset:%d\nds_read_b64_tr_b16 %s, v%d offset:%d" % (R2(FR + 16*r + 4*t), 200 + t, 4096*r, R2(FR + 16*r + 2 + 4*t), 200 + t, 4096*r + 2048))
        a("s_lshl_b32 s3, s%d, 12\ns_add_u32 s3, s3, 0x%x\ns_add_u32 s%d, s%d, 512\ns_waitcnt lgkmcnt(0)" % (sU, B2_OFF, sU, sU))
        for t in range(4):
            if OPT["jst"]: a("buffer_store_dwordx4 %s, v1, %s, s3 offen offset:%d%s" % (R4(FR + 16*r + 4*t), S(S_WS), 1024*t, {1: " sc1", 2: "", 3: " nt"}[OPT["jst"]]))
    a.label("L_nojob2")

def frag_reads(ty, F, ks2):
    r = []
    for i in range(4): r.append("ds_read_b128 %s, v%d offset:%d" % (R4(F + 4*i), vA1 if ks2 else vA0, 2048*i))
    nseg = 5 if ty == 0 else 3
    for t in range(7):
        d = F + 16 + 4*t
        for rd in range(2):
            if t < nseg:
                if t == 2: reg, off = vS2, 0
                elif t < 2: reg, off = vS, K_OFF + 32*t
                else: reg, off = vS, V_OFF + 16 + 32*(t - 3)
                off += ks2 * 5120 + rd * 2560
            else: reg, off = vH + (t - nseg), ks2 * 4096 + rd * 2048
            r.append("ds_read_b64_tr_b16 %s, v%d offset:%d" % (R2(d + 2*rd), reg, off))
    return r
def transposed(ty, t): return ty == 1 or t >= 5
def mfmas(ty, F, order=None):
    r = []
    for (t, i) in (order or [(t, i) for t in range(7) for i in range(4)]):
        B = R4(F + 16 + 4*t); A = R4(F + 4*i); D = R4(acc(i, t))
        r.append("v_mfma_f32_16x16x32_bf16 %s, %s, %s, %s" % ((D, B, A, D) if transposed(ty, t) else (D, A, B, D)))
    return r
def interleave(mm, rr):
    for k, x in enumerate(mm):
        a(x)
        if k < len(rr): a(rr[k])
def addr_regs(ty): return [vA0, vA1, vS, vS2] + [vH + t for t in range(2 if ty == 0 else 4)]

CT = 120; RS = 148; BF = 156; KC = 172; TMP = 176; T2P = 208; R4S = 224

def epi_reads(ty):
    a("v_and_b32 v4, 15, v0\nv_lshlrev_b32 v4, 2, v4\ns_lshl_b32 s3, s%d, 8\ns_add_u32 s3, s3, %d\nv_add_u32 v5, s3, v4" % (sM, STATL))
    a("v_and_b32 v6, 48, v0\nv_add_u32 v3, s3, v6\ns_mul_i32 s3, s%d, 448\ns_add_u32 s3, s3, %d\nv_add_u32 v6, s3, v6\nv_add_u32 v4, s3, v4\nv_mov_b32 v7, %d" % (sN, CSL, FASTL))
    if ty == 0:
        for i in range(4): a("ds_read_b128 %s, v3 offset:%d\nds_read_b128 %s, v3 offset:%d" % (R4(R4S + 4*i), 64*i, R4(R4S + 16 + 4*i), 512 + 64*i))
    for t in range(7):
        if transposed(ty, t): a("ds_read_b128 %s, v6 offset:%d" % (R4(CT + 4*t), 64*t))
        else: a("ds_read_b32 v%d, v4 offset:%d" % (CT + 4*t, 64*t))
    for i in range(4): a("ds_read2_b32 %s, v5 offset0:%d offset1:%d" % (R2(RS + 2*i), 16*i, 128 + 16*i))
    a("ds_read_b32 v7, v7\nv_lshlrev_b32 v1, 4, v0")
    if ty == 0: a2_soff(sT2, sM, lambda: a("s_mul_i32 s3, s%d, 6\ns_add_u32 s3, s3, s%d" % (sJJ, sN)))
    else:
        a2_soff(sT2, sM, lambda: a("s_mul_i32 s3, s%d, 6\ns_lshl_b32 s%d, s%d, 1\ns_add_u32 s3, s3, s%d\ns_add_u32 s3, s3, 2" % (sJJ, sT1, sN, sT1)))
        a("s_add_u32 s%d, s%d, 4096" % (sT3, sT2))

def main_loop(ty):
    a("s_mov_b32 s%d, 0\ns_mov_b32 s%d, 0\ns_waitcnt lgkmcnt(0)" % (sCnt, sSlot))
    stamp(3)
    a("s_barrier")
    stamp(4)
    for x in frag_reads(ty, F0, 0): a(x)
    a("s_cmp_eq_u32 s%d, 0\ns_cbranch_scc1 L_ent%d\ns_cmp_lg_u32 s%d, 0\ns_cbranch_scc1 L_cs1%d" % (sA, ty, sM, ty))
    rr = frag_reads(ty, F1, 1)[4:]
    for m in range(2):
        tl = list(range(4*m, min(7, 4*m + 4)))
        for t in tl: a(rr[2*t]); a(rr[2*t + 1])
        a("s_waitcnt lgkmcnt(%d)" % (2 * len(tl)))
        for k, t in enumerate(tl): a("v_mfma_f32_16x16x32_bf16 v[252:255], %s, %s, %s" % (R4(F0 + 16 + 4*t), R4(236 + 4*k), "0" if k == 0 else "v[252:255]"))
        a("s_waitcnt lgkmcnt(0)")
        for k, t in enumerate(tl): a("v_mfma_f32_16x16x32_bf16 v[252:255], %s, %s, v[252:255]" % (R4(F1 + 16 + 4*t), R4(236 + 4*k)))
        a("s_mov_b32 s3, 0x%x" % (0x000f000f if m == 0 else 0x00070007))
        if m == 0: a("s_branch L_cs2%d" % ty); a.label("L_cs1%d" % ty)
    a.label("L_cs2%d" % ty)
    a("s_nop 6")
    for k in range(4): a("v_bfi_b32 v%d, v5, s%d, v%d" % (252 + k, TB[k], 252 + k))
    a("s_mov_b32 exec_lo, s3\ns_mov_b32 exec_hi, s3\nbuffer_store_dwordx4 v[252:255], v4, %s, s%d offen sc1\ns_mov_b64 exec, -1" % (S(S_WS), sA))
    a.label("L_ent%d" % ty)
    a("s_waitcnt lgkmcnt(0)\ns_branch L_mid%d" % ty)
    align8()
    a.label("L_top%d" % ty)
    a("s_barrier\ns_nop 0")
    interleave(mfmas(ty, F1), frag_reads(ty, F0, 0))
    a("s_waitcnt vmcnt(0) lgkmcnt(0)\ns_nop 0" if OPT["lvm"] else "s_waitcnt lgkmcnt(0)\ns_nop 0")
    a.label("L_mid%d" % ty)
    upd = ["v_add_u32_e64 v%d, s%d, v%d" % (r, sT1, r) for r in addr_regs(ty)]
    sal = "s_add_u32 s%d, s%d, 1\ns_cmp_eq_u32 s%d, 3\ns_cselect_b32 s%d, 0, s%d\ns_mov_b32 s%d, %d\ns_cselect_b32 s%d, %d, s%d\ns_add_u32 s%d, s%d, 1" % (sSlot, sSlot, sSlot, sSlot, sSlot, sT1, SLOT, sT1, (-2*SLOT) & 0xffffffff, sT1, sCnt, sCnt)
    rr = frag_reads(ty, F1, 1)
    interleave(mfmas(ty, F0), rr + [sal] + upd)
    a("s_cmp_lt_u32 s%d, 10\ns_waitcnt lgkmcnt(0)\ns_cbranch_scc1 L_top%d" % (sCnt, ty))
    a.c("PADS_ON")
    a("s_barrier")
    pre = capture(lambda: epi_reads(ty))
    c0 = -2.0 * 0.7978845608028654 * 1.4426950408889634; c1 = c0 * 0.044715
    k = 0
    order = [(t, i) for i in range(4) for t in range(5)] + [(t, i) for i in range(4) for t in (5, 6)] if ty == 0 else \
            [(t, i) for g in ((3, 4), (5, 6), (0, 1, 2)) for i in range(4) for t in g]
    for x in mfmas(ty, F1, order):
        a(x)
        for y in pre[k:k+2]: a(y)
        k += 2
    for y in pre[k:]: a(y)
    stamp(5); stamp(1, 1)
    if OPT["cprio"]: a("s_setprio %d" % OPT["cprio"])
    a("s_waitcnt vmcnt(0)")
    for k in range(4 if ty == 0 else 8): unpack(BF + 2*k, vB1 + k)
    a("v_mov_b32 v%d, 0x%x\nv_mov_b32 v%d, 0x%x\nv_mov_b32 v%d, 0x%x\nv_mov_b32 v%d, 0x%x" % (KC, f32(c1), KC+2, f32(c0), KC+1, f32(1.4426950408889634), KC+3, f32(1e-6)))
    a("s_waitcnt lgkmcnt(0)\nv_readfirstlane_b32 s%d, v7" % sFAST)

def gelu_block(i, t0, bt0, soff):
    align8()
    P = [(acc(i, t0 + q//2) + 2*(q % 2), CT + 4*(t0 + q//2) + 2*(q % 2), BF + 4*(bt0 + q//2) + 2*(q % 2), TMP + 2*q) for q in range(4)]
    rs = R2(RS + 2*i)
    for (h, c, b, u) in P: a("v_pk_fma_f32 %s, %s, %s, %s op_sel:[1,0,0] op_sel_hi:[1,1,1] neg_lo:[1,0,0] neg_hi:[1,0,0]" % (R2(u), rs, R2(c), R2(b)))
    for (h, c, b, u) in P: a("v_pk_fma_f32 %s, %s, %s, %s op_sel:[0,0,0] op_sel_hi:[0,1,1]" % (R2(h), rs, R2(h), R2(u)))
    for (h, c, b, u) in P: a("v_pk_mul_f32 %s, %s, %s" % (R2(u), R2(h), R2(h)))
    for (h, c, b, u) in P: a("v_pk_fma_f32 %s, %s, %s, %s op_sel:[0,0,0] op_sel_hi:[1,0,0]" % (R2(u), R2(u), R2(KC), R2(KC + 2)))
    for (h, c, b, u) in P: a("v_pk_mul_f32 %s, %s, %s" % (R2(u), R2(u), R2(h)))
    for (h, c, b, u) in P: a("v_exp_f32 v%d, v%d\nv_exp_f32 v%d, v%d" % (u, u, u+1, u+1))
    for (h, c, b, u) in P: a("v_pk_add_f32 %s, %s, 1.0 op_sel_hi:[1,0]" % (R2(u), R2(u)))
    for (h, c, b, u) in P: a("v_rcp_f32 v%d, v%d\nv_rcp_f32 v%d, v%d" % (u, u, u+1, u+1))
    for (h, c, b, u) in P: a("v_pk_mul_f32 %s, %s, %s" % (R2(u), R2(u), R2(h)))
    o = acc(i, t0)
    for q, (h, c, b, u) in enumerate(P): a("v_cvt_pk_bf16_f32 v%d, v%d, v%d" % (o + q, u, u+1))
    st_a2("buffer_store_dwordx4 %s, v1, %s, s%d offen offset:%d" % (R4(o), S(S_WS), soff, 1024*i))

def phi_pairs(P):
    for (h, u) in P: a("v_pk_mul_f32 %s, %s, %s op_sel:[1,0] op_sel_hi:[1,1]" % (R2(u), R2(KC), R2(h)))
    for (h, u) in P: a("v_exp_f32_e64 v%d, v%d clamp\nv_exp_f32_e64 v%d, v%d clamp" % (u, u, u+1, u+1))
    for (h, u) in P: a("v_max_f32 v%d, v%d, v%d\nv_max_f32 v%d, v%d, v%d" % (h, h, KC+3, h+1, h+1, KC+3))
    for (h, u) in P: a("v_pk_add_f32 %s, %s, %s" % (R2(h), R2(h), R2(u)))

def epilogue_kv():
    a("v_and_b32 v5, 8, v0\nv_cmp_eq_u32 vcc, 0, v5\nv_mov_b32 v6, 0\nv_mov_b32 v7, 0x3f803f80\nv_cndmask_b32 v5, v6, v%d, vcc\nv_mov_b32 v4, v5" % (KC + 3))
    a("s_lshl_b32 s3, s%d, 13\ns_add_u32 s3, s3, %d\nv_add_u32 v2, s3, v1" % (sWV, XK))
    prods = [(0,2),(0,3),(1,2),(1,3),(1,4),(2,2),(2,3),(2,4)]
    KD = [acc(1, t) for t in range(5)] + [216, 220, R4S]
    def kvm(ksr):
        return ["v_mfma_f32_16x16x32_bf16 %s, %s, %s, %s" % (R4(KD[k]), R4(acc(2*ksr, ti)), R4(T2P + 4*ksr) if tj == 2 else R4(acc(2*ksr, tj)), "0" if ksr == 0 else R4(KD[k])) for k, (ti, tj) in enumerate(prods)]
    for i in range(4):
        align8()
        def body():
            for t in range(5):
                for q in range(2):
                    u = TMP + 4*t + 2*q; rm = R2(R4S + 16 + 4*i + 2*q); c = R2(CT + 4*t)
                    if t < 2: a("v_pk_fma_f32 %s, %s, %s, %s op_sel:[0,0,1] op_sel_hi:[1,0,1] neg_lo:[1,0,0] neg_hi:[1,0,0]" % (R2(u), rm, c, R2(KC + 2)))
                    elif t == 2: a("v_pk_fma_f32 %s, %s, %s, v[4:5] op_sel:[0,0,0] op_sel_hi:[1,0,1] neg_lo:[1,0,0] neg_hi:[1,0,0]" % (R2(u), rm, c))
                    else: a("v_pk_mul_f32 %s, %s, %s op_sel:[0,0] op_sel_hi:[1,0] neg_lo:[1,0] neg_hi:[1,0]" % (R2(u), rm, c))
            for t in range(5):
                for q in range(2):
                    h = acc(i, t) + 2*q; u = TMP + 4*t + 2*q
                    a("v_pk_fma_f32 %s, %s, %s, %s" % (R2(h), R2(R4S + 4*i + 2*q), R2(h), R2(u)))
            a("v_cvt_pk_bf16_f32 v%d, v%d, v%d\nv_cvt_pk_bf16_f32 v%d, v%d, v%d" % (TMP+20, acc(i,2), acc(i,2)+1, TMP+21, acc(i,2)+2, acc(i,2)+3))
            phi_pairs([(acc(i, t) + 2*q, TMP + 4*t + 2*q) for t in range(3) for q in range(2)])
            e = 2 * (i >> 1); o = 2 * (i & 1)
            a("v_cndmask_b32 v%d, v%d, v7, vcc\nv_cndmask_b32 v%d, v%d, v7, vcc" % (T2P + 4*(i>>1) + o, TMP+20, T2P + 4*(i>>1) + o + 1, TMP+21))
            for t in (3, 4, 0, 1, 2):
                a("v_cvt_pk_bf16_f32 v%d, v%d, v%d\nv_cvt_pk_bf16_f32 v%d, v%d, v%d" % (acc(e,t)+o, acc(i,t), acc(i,t)+1, acc(e,t)+o+1, acc(i,t)+2, acc(i,t)+3))
        if i == 2:
            lines = capture(body); mm = kvm(0)
            for k, ln in enumerate(lines):
                a(ln)
                if k >= 28 and k % 2 == 1 and mm: a(mm.pop(0))
            assert not mm
        else: body()
    a("s_nop 1")
    for x in kvm(1): a(x)
    a("s_nop 0")
    for k in range(8): a("ds_write_b128 v2, %s offset:%d" % (R4(KD[k]), 1024 * k))
    stamp(2, 1)
    lds_addr(2, LF_XK, None)
    a("v_mov_b32 v3, 1\ns_mov_b64 exec, 1\ns_waitcnt lgkmcnt(0)\nds_add_u32 v2, v3\ns_mov_b64 exec, -1")
    stamp(7); stamp(3, 1)
    g2_setup(False)
    for i in range(4):
        gelu_block(i, 5, 0, sT2)
        if i in (0, 1): loadB(6 + i, False)
    stamp(4, 1)
    ks_flag(sT2, sM, 0, 6)

def epilogue_qh():
    PQ = 224
    def qpart(hook=None):
        for i in range(4):
            align8()
            rs = R2(RS + 2*i)
            P = [(acc(i, t) + 2*q, TMP + 4*t + 2*q, CT + 4*t + 2*q) for t in range(3) for q in range(2)]
            for (h, u, c) in P: a("v_pk_fma_f32 %s, %s, %s, %s op_sel:[1,0,1] op_sel_hi:[1,1,1] neg_lo:[1,0,0] neg_hi:[1,0,0]" % (R2(u), rs, R2(c), R2(KC + 2)))
            for (h, u, c) in P: a("v_pk_fma_f32 %s, %s, %s, %s op_sel:[0,0,0] op_sel_hi:[0,1,1]" % (R2(h), rs, R2(h), R2(u)))
            phi_pairs([(h, u) for (h, u, c) in P])
            for k, (h, u, c) in enumerate(P): a("v_cvt_pk_bf16_f32 v%d, v%d, v%d" % (PQ + 6*i + k, h, h + 1))
            if hook: hook(i)
        a("s_mul_i32 s3, s%d, 6144\ns_add_u32 s3, s3, %d\nv_add_u32 v4, s3, v1\nv_lshl_add_u32 v5, v0, 3, s3" % (sWV, PQL))
        for i in range(4): a("ds_write_b128 v4, %s offset:%d\nds_write_b64 v5, %s offset:%d" % (R4(PQ + 6*i), 1024*i, R2(PQ + 6*i + 4), 4096 + 512*i))
    g2_setup(False)
    for i in range(4): gelu_block(i, 3, 0, sT2)
    stamp(2, 1)
    for i in range(4):
        gelu_block(i, 5, 2, sT3)
        if i == 0: ks_flag(sT2, sM, 1, 4)
        if OPT["qb"] and i in (0, 1): loadB(6 + i, False)
    stamp(6); stamp(3, 1)
    def hk(i):
        if i == 0: ks_flag(sT3, sM, 0, 4)
        if not OPT["qb"] and i in (0, 1): loadB(6 + i, False)
    qpart(hk)
    a("s_waitcnt lgkmcnt(0)"); lds_signal(LF_PQ, sWV, 4)
    stamp(7); stamp(4, 1)

def readB(s): return ["ds_read_b128 %s, v244 offset:%d" % (R4(Breg(s, t, False)), 5120*s + 1024*t) for t in range(5)]

def gemm2_early():
    stamp(8); stamp(5, 1)
    if OPT["cprio"]: a("s_setprio 0")
    vm = VM()
    vG, vR, vP = 246, 248, 254
    X0 = CDB[0:5]; B2F = CDB[5:7]; XG = CA_[12:20]
    def XS(i, k): return XG[2*i + (k >> 1)] + 2*(k & 1)
    def BF2(k): return B2F[k >> 1] + 2*(k & 1)
    a("s_lshl_b32 s%d, s%d, 9\ns_add_u32 s%d, s%d, 0x%x\ns_lshl_b32 s3, s%d, 2\ns_add_u32 s%d, s%d, s3" % (sT3, sRT, sT3, sT3, FH, sK0, sT3, sT3))
    g2_flagoff(3, KS_C)
    a("s_mov_b64 exec, 0xff\nbuffer_load_dword v245, v3, %s, s%d offen%s\ns_mov_b64 exec, -1" % (S(S_WS), sT3, PLD))
    lds_wait(LF_B, sWV, 1, 246)
    a("s_mul_i32 s3, s%d, %d\nv_add_u32 v244, s3, v1" % (sWV, EBS))
    for x in readB(0) + readB(1): a(x)
    a("s_mul_i32 s3, s%d, 40\nv_add_u32 v228, s3, v0\nv_mul_u32_u24 v229, 6554, v228\nv_lshrrev_b32 v229, 16, v229\nv_mul_u32_u24 v230, 10, v229\nv_sub_u32 v228, v228, v230" % sWV)
    a("v_mul_u32_u24 v230, 1280, v229\nv_lshl_add_u32 v%d, v228, 4, v230\nv_lshlrev_b32 v%d, 4, v228" % (vG, vG + 1))
    a("v_mov_b32 v230, 0x%x\nv_cmp_gt_u32 vcc, 40, v0\ns_mul_i32 s%d, s%d, %d\ns_mul_i32 s%d, s%d, 160\nv_cndmask_b32 v%d, v230, v%d, vcc\ns_add_u32 s%d, s%d, s%d" % (OOB, sT1, sRT, 64*1280, sT2, sCT, vG, vG, sT1, sT1, sT2))
    a("v_and_b32 v229, 15, v229\nv_bfe_u32 v230, v229, 1, 2\nv_lshlrev_b32 v228, 1, v228\nv_xor_b32 v228, v228, v230\nv_mul_u32_u24 v229, 320, v229\nv_lshl_add_u32 v%d, v228, 4, v229\nv_xor_b32 v%d, 16, v%d" % (vR, vR + 1, vR))
    for k in range(1, 3): a("v_add_u32 v%d, %d, v%d\nv_add_u32 v%d, %d, v%d" % (vR + 2*k, 2*k*EBS, vR, vR + 1 + 2*k, 2*k*EBS, vR + 1))
    paddr(vP, 228, 229)
    a("s_mul_i32 s3, s%d, %d\nv_add_u32 v%d, s3, v%d" % (sWV, EBS, vP, vP))
    a("s_mov_b32 s%d, %d\ns_mov_b64 exec, 0xff" % (sSpin, SPIN))
    a.label("L_pc")
    a("s_waitcnt vmcnt(0)\nv_cmp_ne_u32 vcc, s%d, v245\ns_and_b32 s3, vcc_lo, 15\ns_cbranch_scc0 L_pcd" % sTAG)
    a("s_sleep %d\nbuffer_load_dword v245, v3, %s, s%d offen%s\ns_sub_u32 s%d, s%d, 1\ns_cbranch_scc0 L_pc" % (OPT["slp"], S(S_WS), sT3, PLD, sSpin, sSpin))
    a.label("L_pcd")
    a("s_mov_b64 exec, -1\ns_mov_b32 s%d, vcc_lo" % sK1)
    stamp(9); stamp(6, 1); stamp(1, 2)
    if OPT["qk"]:
        if OPT["qk"] == 1: a("s_cmp_lg_u32 s%d, 0\ns_cbranch_scc1 L_nqk" % sTY)
        lds_wait(LF_Q, None, 4, 230)
        a.label("L_nqk")
    for s in range(4): loadA(s, False); vm.add("A%d" % s, 4)
    P2 = OPT["qq"] if OPT["qq"] < 4 else 3
    if OPT["yld"]: lds_addr(255, LF_PQ, sWV)
    def yield_check():
        l = a.newlabel("Ly")
        a("s_waitcnt lgkmcnt(0)\nv_cmp_eq_u32 vcc, 2, v2\ns_cbranch_vccnz %s" % l)
        a.label(l + "_b")
        OUTLINE.extend([l + ":", "  s_mov_b32 s%d, %d" % (sSpin, SPIN), l + "_l:", "  s_sleep 1", "  ds_read_b32 v2, v255", "  s_waitcnt lgkmcnt(0)", "  v_cmp_eq_u32 vcc, 2, v2",
                        "  s_cbranch_vccz %s_b" % l, "  s_sub_u32 s%d, s%d, 1" % (sSpin, sSpin), "  s_cbranch_scc0 %s_l" % l, "  s_branch %s_b" % l])
    carry = []
    def defer(fn, lab, n):
        if OPT["il"]: carry.append((capture(fn), lab, n))
        else: fn(); vm.add(lab, n)
    for s in range(6):
        vm.wait("A%d" % s)
        a("s_waitcnt lgkmcnt(%d)" % (5 if s < 5 else 0))
        mm = capture(lambda: g2_step(s, False))
        fill = []
        for (lines, lab, n) in carry:
            cur = []
            for ln in lines:
                cur.append(ln)
                if ln.startswith("buffer_"): fill.append("\n".join(cur)); cur = []
            vm.add(lab, n)
        carry = []
        gap = max(1, 19 // max(1, len(fill)))
        k = 0
        for x in mm:
            a(x)
            if x.startswith("v_mfma"):
                k += 1
                if fill and k % gap == 0: a(fill.pop(0))
                if OPT["yld"] and k == 13: a("ds_read_b32 v2, v255")
        for x in fill: a(x)
        if OPT["yld"]: yield_check()
        if s + 2 < 6:
            for x in readB(s + 2): a(x)
        if s == P2:
            if OPT["qq"]: lds_wait(LF_Q, None, 4, 230)
            a("s_cmp_eq_u32 s%d, 0\ns_cbranch_scc1 L_nop2" % sK1)
            poll(3, sT3, 8, 245, "he2")
            a.label("L_nop2")
            for q in range(4, min(8, 6 + s)):
                if q == s + 1: loadA(q, False); vm.add("A%d" % q, 4)
                else: defer(lambda: loadA(q, False), "A%d" % q, 4)
        elif s > P2 and 5 + s < 8:
            defer(lambda: loadA(5 + s, False), "A%d" % (5 + s), 4)
        if s == 4:
            def xl():
                for i in range(4): a("s_add_u32 s3, s%d, %d\nbuffer_load_dwordx4 %s, v%d, %s, s3 offen" % (sT1, 16*1280*i, R4(X0[i]), vG, S(S_X)))
                a("buffer_load_dwordx4 %s, v%d, %s, s%d offen" % (R4(X0[4]), vG + 1, S(S_B2), sT2))
            defer(xl, "X", 5)
    assert not carry
    lds_signal(LF_B, sWV, 244)
    vm.wait("A7", "B7")
    if OPT["wb"] == 2:
        l = a.newlabel("Lwb")
        a("s_lshr_b32 s3, s2, 3\ns_and_b32 s3, s3, %d\ns_add_u32 s3, s3, s%d\ns_cmp_lg_u32 s3, 0\ns_cbranch_scc1 %s\nbuffer_wbl2 sc1" % (OPT["wbw"], sWV, l))
        a.label(l)
    stamp(8, 2)
    pend = []
    for i in range(4):
        k = 0
        for s in (6, 7):
            for t in range(5):
                g2_mfma(Dreg(i, t, False), Breg(s, t, False), Areg(s, i, False), False)
                k += 1
                if pend and k >= 4: a(pend.pop(0))
                if OPT["yld"] and i == 1 and k == 3: a("ds_read_b32 v2, v255")
        if OPT["yld"] and i == 1: yield_check()
        pend = ["ds_write_b128 v%d, %s offset:%d" % (vP, R4(Dreg(i, t, False)), 5120*i + 64*t) for t in range(5)]
    stamp(10); stamp(7, 1); stamp(9, 2)
    vm.wait("X")
    for k in range(2): unpack(BF2(k), X0[4] + k)
    for x in pend: a(x)
    for k in range(2, 4): unpack(BF2(k), X0[4] + k)
    lds_addr(244, LF_PRE, None)
    a("v_mov_b32 v245, 1")
    for i in range(4):
        for k in range(4): unpack(XS(i, k), X0[i] + k)
        if i == 0: a("s_mov_b64 exec, 1\ns_waitcnt lgkmcnt(0)\nds_add_u32 v244, v245\ns_mov_b64 exec, -1")
        for k in range(4): padd(XS(i, k), XS(i, k), BF2(k), OPT["scp"])
    lds_wait_ge(LF_PRE, 4, 244)
    stamp(8, 1)
    RD = 4
    def loc(i, p):
        if p < 4: return p >> 1, (p & 1) * EBS + 5120*i
        p -= 4
        if i < 2: return p >> 1, (p & 1) * EBS + 20480 + 5120*i
        if i == 2: return 2, p * 5120
        return p >> 1, (p & 1) * EBS
    def rdsum(i, ps):
        for j, p in enumerate(ps):
            b, off = loc(i, p)
            a("ds_read_b128 %s, v%d offset:%d\nds_read_b128 %s, v%d offset:%d" % (R4(RD + 32*(i & 1) + 8*j), vR + 2*b, off, R4(RD + 32*(i & 1) + 8*j + 4), vR + 1 + 2*b, off))
    def addsum(i, base, last=False):
        for j in range(4):
            a("s_waitcnt lgkmcnt(%d)" % (base + 6 - 2*j))
            for k in range(4): padd(XS(i, k), XS(i, k), RD + 32*(i & 1) + 8*j + 2*k, OPT["scp"] and not last)
    a("s_mov_b32 exec_hi, 0xff")
    rdsum(0, range(4))
    for i in range(4):
        if i < 3: rdsum(i + 1, range(4))
        addsum(i, 8 if i < 3 else 0)
    stamp(11); stamp(9, 1); stamp(10, 2)
    if OPT["wb"] == 1:
        l = a.newlabel("Lwb")
        a("s_lshr_b32 s3, s2, 3\ns_and_b32 s3, s3, %d\ns_add_u32 s3, s3, s%d\ns_cmp_lg_u32 s3, 0\ns_cbranch_scc1 %s\nbuffer_wbl2 sc1" % (OPT["wbw"], sWV, l))
        a.label(l)
    a("v_mov_b32 v245, 1\ns_mov_b64 exec, 1\nds_add_u32 v244, v245\ns_mov_b32 exec_lo, -1\ns_mov_b32 exec_hi, 0xff\ns_setprio 1")
    for i in range(4):
        lds_wait(LF_T + 4*i, None, 4, 244, 1 if i < 3 else 0)
        rdsum(i, range(4, 8))
        a("s_add_u32 s3, s%d, %d" % (sT1, 16*1280*i))
        addsum(i, 0, i == 3)
        for k in range(4): a("v_cvt_pk_bf16_f32 v%d, v%d, v%d" % (XG[2*i] + k, XS(i, k), XS(i, k) + 1))
        a("buffer_store_dwordx4 %s, v%d, %s, s3 offen%s" % (R4(XG[2*i]), vG, S(S_OUT), LDF[OPT["ost"]]))
    a("s_mov_b64 exec, -1")
    stamp(12)

hdr = open("cdna_kernels/%s.s.ref" % BASE).read().split("; Override")[0]
a.raw(hdr.rstrip())
a.raw("; @launch grid=(256,1,1) block=(512,1,1) lds=163840")
a.raw('.amdgcn_target "amdgcn-amd-amdhsa--gfx950"\n.text')
kernel_header(a, KNAME)
a("s_cmp_ge_u32 s2, 256\ns_cbranch_scc1 L_end")
a("s_load_dwordx16 s[36:51], s[0:1], 0\ns_load_dwordx4 s[52:55], s[0:1], 64\ns_load_dwordx2 s[56:57], s[0:1], 80")
a("v_lshrrev_b32 v1, 6, v0\nv_and_b32 v0, 63, v0\nv_readfirstlane_b32 s%d, v1" % sWV)
if OPT["cpf"]:
    a("s_getpc_b64 s[%d:%d]\nL_pc0:\ns_and_b32 s3, s2, 0xf8\ns_add_u32 s3, s3, s%d\ns_lshl_b32 s3, s3, 7\ns_min_u32 s3, s3, L_table-L_pc0-64" % (sEX, sEX+1, sWV))
    a("s_load_dword s%d, s[%d:%d], s3" % (sSpin, sEX, sEX+1))
    if OPT["cpf"] > 1: a("s_add_u32 s3, s3, 64\ns_load_dword s%d, s[%d:%d], s3" % (sSpin, sEX, sEX+1))
stamp_init(); stamp(0)
a("s_bfe_u32 s%d, s2, 0x10006\ns_mov_b32 s1, 0" % sTY)
if OPT["xmap"]:
    a("s_and_b32 s3, s2, 7\ns_lshl_b32 s3, s3, 1\ns_bfe_u32 s%d, s2, 0x10003\ns_add_u32 s%d, s%d, s3" % (sRB, sRB, sRB))
    a("s_bfe_u32 s3, s2, 0x20004\ns_lshr_b32 s%d, s2, 7\ns_lshl_b32 s%d, s%d, 2\ns_add_u32 s%d, s%d, s3" % (sJJ, sJJ, sJJ, sJJ, sJJ))
else:
    a("s_and_b32 s3, s2, 1\ns_lshl_b32 s3, s3, 3\ns_bfe_u32 s%d, s2, 0x30003\ns_add_u32 s%d, s%d, s3" % (sRB, sRB, sRB))
    a("s_and_b32 s3, s2, 6\ns_lshr_b32 s%d, s2, 7\ns_add_u32 s%d, s%d, s3" % (sJJ, sJJ, sJJ))
a("s_and_b32 s3, s2, 7\ns_lshl_b32 s3, s3, 2\ns_bfe_u32 s%d, s2, 0x20003\ns_add_u32 s%d, s%d, s3\ns_lshr_b32 s%d, s2, 5" % (sRT, sRT, sRT, sCT))
a("s_cmp_lt_u32 s%d, 4\ns_cbranch_scc1 L_compute" % sWV)
_m = len(a.lines)
loader()
if OPT["sco"]:
    import re
    new = []
    for ln in a.lines[_m:]:
        m = re.match(r"\s*v_pk_add_f32 v\[(\d+):\d+\], v\[(\d+):\d+\], v\[(\d+):\d+\]$", ln)
        m2 = re.match(r"\s*v_mov_b64 v\[(\d+):\d+\], v\[(\d+):\d+\]$", ln)
        m3 = re.match(r"\s*v_mov_b64 v\[(\d+):\d+\], 0$", ln)
        if m: d, x, y = map(int, m.groups()); new += ["  v_add_f32 v%d, v%d, v%d" % (d, x, y), "  v_add_f32 v%d, v%d, v%d" % (d+1, x+1, y+1)]
        elif m2: d, x = map(int, m2.groups()); new += ["  v_mov_b32 v%d, v%d" % (d, x), "  v_mov_b32 v%d, v%d" % (d+1, x+1)]
        elif m3: d = int(m3.group(1)); new += ["  v_mov_b32 v%d, 0" % d, "  v_mov_b32 v%d, 0" % (d+1)]
        else: new.append(ln)
    a.lines[_m:] = new
a.c("PADS_OFF")
a.label("L_compute")
compute_prologue()
a("s_cmp_lg_u32 s%d, 0\ns_cbranch_scc1 L_cqh" % sTY)
main_loop(0); epilogue_kv(); a("s_branch L_g2early")
a.c("PADS_OFF")
a.label("L_cqh")
main_loop(1); epilogue_qh()
a.label("L_g2early")
gemm2_early()
a.c("PADS_OFF")
a.label("L_alldone")
stamp_store()
a("s_cmp_lg_u32 s2, 0\ns_cbranch_scc1 L_end\ns_cmp_lg_u32 s%d, 4\ns_cbranch_scc1 L_end" % sWV)
a("s_mov_b32 s3, 0x%x\nv_mov_b32 v2, s%d\nv_mov_b32 v3, 0\ns_mov_b64 exec, 1\nbuffer_store_dword v2, v3, %s, s3 offen sc1" % (EPOCH, sTAG, S(S_WS)))
a.label("L_end")
a("s_endpgm")
a.lines.extend(OUTLINE)
a.raw(".p2align 7\n.type L_table,@object\nL_table:")
T = make_table()
for i in range(0, len(T), 8): a.raw("  .long " + ", ".join(str(x) for x in T[i:i+8]))
a.raw(".size L_table, %d" % (4 * len(T)))
a.raw('.section .rodata,"a"')
kernel_desc(a, KNAME, 256, 102)
if OPT["hop"]:
    a.lines, heads = add_pads(a.lines, OPT["hop"], 4, 1)
txt = a.text()
if OPT["hop"]:
    for c in range(4): txt = txt.replace("@HEAD%d@" % c, "Lpad%d" % heads[c])
sys.stdout.write(txt)
```

```python
import sys, struct, re
from asmlib import *
BASE = "parallel_sum__linear_attn_block__dense_activation_gelu__prompt"
KNAME = BASE + "_kernel"
OPT = dict(stamps=0, sm=0, probe=-1, pcls=0, hnt=0, hop=0, hpos=1, da=-1, db=-1, dc=0, dwg=100, dwv=0, cp2=0, pty=-1, slp=2, cpf=2, fast=1, kvu=0, shift=2, nojob=0, ald=0, bld=0, pld=0, ost=1,
           go=2, p2p=1, lp=3, nbe=4, lbp=1, sc2=3, jty=1, hz=0, yld=0, gk=6)
for arg in sys.argv[1:]:
    k, v = arg.split("="); assert k in OPT, k; OPT[k] = int(v)
STAMPS = OPT["stamps"]
f32 = lambda x: struct.unpack("<I", struct.pack("<f", x))[0]

B2_OFF = 0x900000
KVP_OFF = 0xC00000; KVP_STRIDE = 6912
STAT_OFF = 0xD00000
FLAG_OFF = 0xD10000
EPOCH = FLAG_OFF; FWG = FLAG_OFF + 0x1000; FH = FLAG_OFF + 0x4000
CSP_OFF = 0xD20000
RED_OFF = 0xD50000
STAMP_OFF = 0xE00000
WS_SIZE = 0x1000000
OOB = 0x7f000000
SLOT = 36992
K_OFF = 16384; V_OFF = 26640; H_OFF = 16384
P2A = 3 * SLOT
def p2loc(j): return P2A + 10240*j if j < 4 else (SLOT + 10240*(j - 4) if j < 7 else 2*SLOT + 10240*(j - 7))
JOBL = P2A + 20480
XK = 0; IMG = 0; IMG23 = 6144; IMG4 = 12288
LFLAG = 160256; TAGL = LFLAG + 128; FASTL = LFLAG + 256
LF_IMG, LF_XK, LF_PRE, LF_Q, LF_GO, LF_Z, LF_ST, LF_RING, LF_T, LF_P2, LF_Y = 0, 4, 8, 12, 16, 20, 24, 28, 32, 48, 80
STATL = 160768; CSL = 161792
PREG = 20480; LPART = 81920
SPIN = 100000
S_X, S_J, S_P2, S_WS, S_P, S_OUT, S_B1, S_B2 = 4, 8, 12, 16, 20, 24, 28, 32
sRB, sJJ, sTY, sWV, sTAG, sM, sN = 58, 59, 60, 61, 62, 63, 64
sT1, sT2, sT3 = 65, 66, 67
sLA, sLP, sLP4, sLH, sIncP, sA, sP, sH, sSlot, sCnt = 68, 69, 70, 71, 72, 73, 74, 75, 76, 77
sORD = 76; sOR2 = 8
sInc2, sL2 = 10, 11
sEX = 78; sSpin = 80; sRT, sCT = 81, 82
sK0, sK1, sK2 = 83, 84, 85
sST = 86
sAo0, sAo1, sAo2, sBo0, sBo1, sBo2 = 36, 37, 38, 39, 42, 43
TB = [40, 41, 48, 49]
sFAST = 54; sPC = 44; sCD = 55

a = Asm()
LDF = {0: ' sc1', 1: '', 2: ' nt'}
ALD = LDF[OPT['ald']]; BLD = LDF[OPT['bld']]; PLD = LDF[OPT['pld']]
OUTLINE = []
def srd(d, p, n): a("s_mov_b32 s%d, s%d\ns_mov_b32 s%d, s%d\ns_mov_b32 s%d, 0x%x\ns_mov_b32 s%d, 0x20000" % (d, p, d+1, p+1, d+2, n, d+3))
def S(d): return "s[%d:%d]" % (d, d+3)
def R4(b): return "v[%d:%d]" % (b, b + 3)
def R2(b): return "v[%d:%d]" % (b, b + 1)
def align8(): a.raw(".p2align 3")

def stamp(idx, mode=0):
    if mode == 0 and OPT["da"] >= 0:
        if idx == 0: a("s_memrealtime s[%d:%d]\ns_waitcnt lgkmcnt(0)\ns_mov_b32 s%d, s%d" % (sST, sST+1, sST + 2, sST))
        if idx in (OPT["da"], OPT["db"]): a("%s s[%d:%d]\ns_waitcnt lgkmcnt(0)\ns_mov_b32 s%d, s%d" % ("s_memtime" if OPT["dc"] else "s_memrealtime", sST, sST+1, sST + (3 if idx == OPT["da"] else 4), sST))
    if mode == 0 and OPT["probe"] == idx:
        a("s_memrealtime s[%d:%d]\ns_waitcnt lgkmcnt(0)\ns_mov_b32 s%d, s%d" % (sST, sST+1, sST + 2, sST))
    if not STAMPS or (mode != OPT["sm"] and idx not in (0, 13)): return
    a("s_memrealtime s[%d:%d]\ns_waitcnt lgkmcnt(0)\ns_mov_b32 s%d, s%d" % (sST, sST+1, sST + 2 + idx, sST))
def stamp_init():
    if STAMPS:
        for i in range(14): a("s_mov_b32 s%d, 0" % (sST + 2 + i))
def stamp_store():
    if OPT["da"] >= 0:
        a("s_cmp_lg_u32 s2, %d\ns_cbranch_scc1 L_dd\ns_cmp_lg_u32 s%d, %d\ns_cbranch_scc1 L_dd" % (OPT["dwg"], sWV, OPT["dwv"]))
        a("s_sub_u32 s%d, s%d, s%d" % (sST + 4, sST + 4, sST + 3))
        a(("s_lshr_b32 s%d, s%d, 1" if OPT["dc"] else "s_mul_i32 s%d, s%d, 10") % (sST + 4, sST + 4))
        a("s_add_u32 s%d, s%d, 5000\ns_min_u32 s%d, s%d, 100000" % (sST + 4, sST + 4, sST + 4, sST + 4))
        a.label("L_dsp")
        a("s_memrealtime s[%d:%d]\ns_waitcnt lgkmcnt(0)\ns_sub_u32 s3, s%d, s%d\ns_cmp_lt_u32 s3, s%d\ns_cbranch_scc1 L_dsp" % (sST, sST+1, sST, sST + 2, sST + 4))
        a.label("L_dd")
    if OPT["probe"] >= 0:
        a("s_waitcnt vmcnt(0)")
        stamp(13)
        a("s_lshr_b32 s3, s%d, 2\ns_cmp_lg_u32 s3, %d\ns_cbranch_scc1 L_pspd" % (sWV, OPT["pcls"]))
        if OPT["pty"] >= 0: a("s_cmp_lg_u32 s%d, %d\ns_cbranch_scc1 L_pspd" % (sTY, OPT["pty"]))
        a.label("L_psp")
        a("s_memrealtime s[%d:%d]\ns_waitcnt lgkmcnt(0)\ns_sub_u32 s3, s%d, s%d\ns_cmp_lt_u32 s3, 10000\ns_cbranch_scc1 L_psp" % (sST, sST+1, sST, sST + 2))
        a.label("L_pspd")
    if not STAMPS: return
    a("s_waitcnt vmcnt(0)")
    stamp(13)
    for i in range(14): a("v_mov_b32 v%d, s%d" % (4 + i, sST + 2 + i))
    a("v_mov_b32 v18, 0\nv_mov_b32 v19, 0\nv_mov_b32 v2, 0\ns_lshl_b32 s3, s2, 3\ns_add_u32 s3, s3, s%d\ns_lshl_b32 s3, s3, 6\ns_add_u32 s3, s3, 0x%x\ns_mov_b64 exec, 1" % (sWV, STAMP_OFF))
    for i in range(4): a("buffer_store_dwordx4 v[%d:%d], v2, %s, s3 offen offset:%d" % (4 + 4*i, 7 + 4*i, S(S_WS), 16*i))
    a("s_mov_b64 exec, -1")

class VM:
    def __init__(self): self.q = []
    def add(self, lab, n=1): self.q += [(lab, 1)] * n
    def add_opt(self, lab, n=1): self.q += [(lab, 0)] * n
    def wait(self, *labs):
        idx = [i for i, x in enumerate(self.q) if x[0] in labs]
        if not idx: return
        n = sum(x[1] for x in self.q[max(idx) + 1:])
        assert n <= 63
        a("s_waitcnt vmcnt(%d)" % n); self.q = self.q[max(idx) + 1:]
def capture(fn):
    n = len(a.lines); fn(); out = a.lines[n:]; del a.lines[n:]; return [x.strip() for x in out]

def st_a2(ops, cls=0):
    if isinstance(ops, str): ops = [ops]
    if not OPT["fast"]:
        for o in ops: a(o + " sc1")
        return
    l = a.newlabel("Lsl")
    a("s_cmp_lg_u32 s%d, 0\ns_cbranch_scc0 %s" % (sFAST, l))
    for o in ops: a(o + (" nt" if OPT["hnt"] & cls else ""))
    a.label(l + "_b")
    OUTLINE.append(l + ":")
    for o in ops: OUTLINE.append("  " + o + " sc1")
    OUTLINE.append("  s_branch %s_b" % l)

def poll(voff, soff, nlanes, vt, name):
    lp = a.newlabel("Lpoll_" + name)
    a("s_mov_b32 s%d, %d\ns_mov_b64 exec, 0x%x" % (sSpin, SPIN, (1 << nlanes) - 1))
    a.label(lp)
    a("buffer_load_dword v%d, v%d, %s, s%d offen%s\ns_waitcnt vmcnt(0)" % (vt, voff, S(S_WS), soff, PLD))
    a("v_cmp_ne_u32 vcc, s%d, v%d\ns_cbranch_vccz %s_d" % (sTAG, vt, lp))
    a("s_sleep %d\ns_sub_u32 s%d, s%d, 1\ns_cbranch_scc0 %s" % (OPT["slp"], sSpin, sSpin, lp))
    a.label(lp + "_d")
    a("s_mov_b64 exec, -1")
def lds_addr(v, off, sw):
    if sw is None: a("v_mov_b32 v%d, %d" % (v, LFLAG + off))
    else: a("s_lshl_b32 s3, s%d, 2\ns_add_u32 s3, s3, %d\nv_mov_b32 v%d, s3" % (sw, LFLAG + off, v))
def lds_signal(off, sw, v):
    lds_addr(v, off, sw)
    a("v_mov_b32 v%d, 1\ns_mov_b64 exec, 1\nds_add_u32 v%d, v%d\ns_mov_b64 exec, -1" % (v + 1, v, v + 1))
def lds_wait(off, sw, cnt, v, slp=1):
    lp = a.newlabel("Llw"); lds_addr(v, off, sw)
    a("s_mov_b32 s%d, %d" % (sSpin, 20 * SPIN))
    a.label(lp)
    a("ds_read_b32 v%d, v%d\ns_waitcnt lgkmcnt(0)\nv_cmp_ne_u32 vcc, %d, v%d\ns_cbranch_vccz %s_d" % (v + 1, v, cnt, v + 1, lp))
    if slp: a("s_sleep %d" % slp)
    a("s_sub_u32 s%d, s%d, 1\ns_cbranch_scc0 %s" % (sSpin, sSpin, lp))
    a.label(lp + "_d")
def lds_wait_ge(off, cnt, v, slp=1):
    lp = a.newlabel("Llg"); lds_addr(v, off, None)
    a("s_mov_b32 s%d, %d" % (sSpin, 20 * SPIN))
    a.label(lp)
    a("ds_read_b32 v%d, v%d\ns_waitcnt lgkmcnt(0)\nv_cmp_gt_u32 vcc, %d, v%d\ns_cbranch_vccz %s_d" % (v + 1, v, cnt, v + 1, lp))
    if slp: a("s_sleep %d" % slp)
    a("s_sub_u32 s%d, s%d, 1\ns_cbranch_scc0 %s" % (sSpin, sSpin, lp))
    a.label(lp + "_d")
def bf16_round(v): a("v_cvt_pk_bf16_f32 v%d, v%d, v%d\nv_lshlrev_b32 v%d, 16, v%d" % (v, v, v, v, v))
def unpack(dst, src): a("v_lshlrev_b32 v%d, 16, v%d\nv_and_b32 v%d, 0xffff0000, v%d" % (dst, src, dst + 1, src))
def padd(d, x, y, scalar):
    if scalar: a("v_add_f32 v%d, v%d, v%d\nv_add_f32 v%d, v%d, v%d" % (d, x, y, d + 1, x + 1, y + 1))
    else: a("v_pk_add_f32 %s, %s, %s" % (R2(d), R2(x), R2(y)))
def tagchk(acc_, regs):
    a("v_xor_b32 v%d, s%d, v%d" % (acc_, TB[0], regs[0]))
    for k, r in enumerate(regs):
        if k: a("v_bitop3_b32 v%d, v%d, v%d, s%d bitop3:0xf6" % (acc_, acc_, r, TB[k % 4]))
    a("v_and_b32 v%d, 0xff, v%d\nv_cmp_ne_u32 vcc, 0, v%d" % (acc_, acc_, acc_))

KS_C = [2, 4, 8, 10, 3, 5, 9, 11, 0, 1]; KS_L = [6, 7]
def g2_setup(late):
    w = sM if late else sWV
    a("s_mul_i32 s%d, s%d, 12" % (sK0, w))
    if late: a("s_lshl_b32 s%d, s%d, 2\ns_add_u32 s%d, s%d, 48\ns_add_u32 s%d, s%d, 64" % (sK1, w, sK1, sK1, sK2, w))
    a("s_mul_i32 s3, s%d, 68" % sRT)
    for (d, k) in ((sAo0, sK0),) + (((sAo1, sK1), (sAo2, sK2)) if late else ()):
        a("s_add_u32 s%d, s3, s%d\ns_lshl_b32 s%d, s%d, 12" % (d, k, d, d))
    a("s_mul_i32 s3, s%d, 5120\ns_add_u32 s3, s3, 0x%x" % (sCT, B2_OFF))
    for (d, k) in ((sBo0, sK0),) + (((sBo1, sK1), (sBo2, sK2)) if late else ()):
        a("s_mul_i32 s%d, s%d, 40960\ns_add_u32 s%d, s%d, s3" % (d, k, d, d))
def step_off(s, late, bases, stride, dst=3):
    if not late: b, k = bases[0], KS_C[s]
    elif s < 2: b, k = bases[0], KS_L[s]
    elif s < 6: b, k = bases[1], s - 2
    else: b, k = bases[2], 0
    a("s_add_u32 s%d, s%d, %d" % (dst, b, stride * k))
def Dreg(i, t): return 4 + (i*5 + t) * 4
def Breg(s, t, late): return (84 + 20*s if late else 176 + 20*(s % 4)) + 4*t
def Areg(s, i, late): return (224 + 16*s if late else 84 + 16*(s % 4)) + 4*i
def loadB(s, late):
    step_off(s, late, (sBo0, sBo1, sBo2), 40960)
    for t in range(4): a("buffer_load_dwordx4 %s, v1, %s, s3 offen offset:%d%s" % (R4(Breg(s, t, late)), S(S_WS), 1024*t, BLD))
    a("buffer_load_dwordx4 %s, v2, %s, s3 offen%s" % (R4(Breg(s, 4, late)), S(S_WS), BLD))
def loadA(s, late):
    step_off(s, late, (sAo0, sAo1, sAo2), 4096)
    for i in range(4): a("buffer_load_dwordx4 %s, v1, %s, s3 offen offset:%d%s" % (R4(Areg(s, i, late)), S(S_WS), 1024*i, ALD))
def a2_soff(dst, m, ks_emit):
    ks_emit()
    a("s_lshl_b32 s%d, s%d, 1\ns_add_u32 s%d, s%d, s%d\ns_mul_i32 s%d, s%d, 68\ns_add_u32 s%d, s%d, s3\ns_lshl_b32 s%d, s%d, 12" % (dst, sRB, dst, dst, m, dst, dst, dst, dst, dst, dst))
def flag_off(dst, sOff, m):
    a("s_lshl_b32 s3, s%d, 1\ns_add_u32 s3, s3, s%d\ns_mul_i32 s3, s3, %d\ns_lshr_b32 s%d, s%d, 10\ns_add_u32 s%d, s%d, s3\ns_add_u32 s%d, s%d, 0x%x" % (sRB, m, 512 - 272, dst, sOff, dst, dst, dst, dst, FH))
def put_flag(sF, waitn, vt):
    a("v_mov_b32 v%d, s%d\nv_mov_b32 v%d, 0\ns_mov_b64 exec, 1\ns_waitcnt vmcnt(%d)" % (vt, sTAG, vt + 1, waitn))
    st_a2("buffer_store_dword v%d, v%d, %s, s%d offen" % (vt, vt + 1, S(S_WS), sF))
    a("s_mov_b64 exec, -1\ns_nop 0")
def mf(D, A, B, first=False): a("v_mfma_f32_16x16x32_bf16 %s, %s, %s, %s" % (R4(D), R4(A), R4(B), "0" if first else R4(D)))
def g2_step(s, late):
    for t in range(5):
        for i in range(4): mf(Dreg(i, t), Breg(s, t, late), Areg(s, i, late), s == 0)
def paddr(v, t1, t2):
    a("v_and_b32 v%d, 15, v0\nv_lshrrev_b32 v%d, 4, v0\nv_bfe_u32 v%d, v0, 1, 2\nv_xor_b32 v%d, v%d, v%d\nv_mul_u32_u24 v%d, 320, v%d\nv_lshl_add_u32 v%d, v%d, 4, v%d" % (v, t1, t2, t1, t1, t2, v, v, v, t1, v))
def memchunks(lines):
    out = []; cur = []
    for ln in lines:
        cur.append(ln)
        if ln.startswith("buffer_"): out.append("\n".join(cur)); cur = []
    assert not cur
    return out
GC0 = -2.0 * 0.7978845608028654 * 1.4426950408889634; GC1 = GC0 * 0.044715
def consts(KC): a("v_mov_b32 v%d, 0x%x\nv_mov_b32 v%d, 0x%x\nv_mov_b32 v%d, 0x%x\nv_mov_b32 v%d, 0x%x" % (KC, f32(GC1), KC+2, f32(GC0), KC+1, f32(1.4426950408889634), KC+3, f32(1e-6)))

def gelu(P, rs, KC, out, scalar):
    align8()
    if not scalar:
        r_ = R2(rs)
        for (h, c, b, u) in P: a("v_pk_fma_f32 %s, %s, %s, %s op_sel:[1,0,0] op_sel_hi:[1,1,1] neg_lo:[1,0,0] neg_hi:[1,0,0]" % (R2(u), r_, R2(c), R2(b)))
        def gap():
            if OPT["hz"] & 256: a("s_nop 7\ns_nop 7")
        gap()
        for (h, c, b, u) in P: a("v_pk_fma_f32 %s, %s, %s, %s op_sel:[0,0,0] op_sel_hi:[0,1,1]" % (R2(h), r_, R2(h), R2(u)))
        gap()
        for (h, c, b, u) in P:
            if OPT["hz"] & 128: a("v_mul_f32 v%d, v%d, v%d\nv_mul_f32 v%d, v%d, v%d" % (u, h, h, u+1, h+1, h+1))
            else: a("v_pk_mul_f32 %s, %s, %s" % (R2(u), R2(h), R2(h)))
        gap()
        for (h, c, b, u) in P:
            if OPT["hz"] & 64: a("v_fma_f32 v%d, v%d, v%d, v%d\nv_fma_f32 v%d, v%d, v%d, v%d" % (u, u, KC, KC+2, u+1, u+1, KC, KC+2))
            elif OPT["hz"] & 512: a("v_pk_fma_f32 %s, %s, %s, v[254:255] op_sel:[0,0,1] op_sel_hi:[1,0,1]" % (R2(u), R2(u), R2(KC)))
            else: a("v_pk_fma_f32 %s, %s, %s, %s op_sel:[0,0,0] op_sel_hi:[1,0,0]" % (R2(u), R2(u), R2(KC), R2(KC + 2)))
        gap()
        for (h, c, b, u) in P: a("v_pk_mul_f32 %s, %s, %s" % (R2(u), R2(u), R2(h)))
        hz = OPT["hz"]
        if hz & 1: a("s_nop 7\ns_nop 7")
        for (h, c, b, u) in P: a("v_exp_f32 v%d, v%d\nv_exp_f32 v%d, v%d" % (u, u, u+1, u+1))
        if hz & 2: a("s_nop 7\ns_nop 7")
        for (h, c, b, u) in P:
            if hz & 8: a("v_add_f32 v%d, 1.0, v%d\nv_add_f32 v%d, 1.0, v%d" % (u, u, u+1, u+1))
            else: a("v_pk_add_f32 %s, %s, 1.0 op_sel_hi:[1,0]" % (R2(u), R2(u)))
        if hz & 1: a("s_nop 7\ns_nop 7")
        for (h, c, b, u) in P: a("v_rcp_f32 v%d, v%d\nv_rcp_f32 v%d, v%d" % (u, u, u+1, u+1))
        if hz & 2: a("s_nop 7\ns_nop 7")
        for (h, c, b, u) in P:
            if hz & 16: a("v_mul_f32 v%d, v%d, v%d\nv_mul_f32 v%d, v%d, v%d" % (u, u, h, u+1, u+1, h+1))
            else: a("v_pk_mul_f32 %s, %s, %s" % (R2(u), R2(u), R2(h)))
        if hz & 4: a("s_nop 7\ns_nop 7")
    else:
        E = [(h + k, c + k, b + k, u + k) for (h, c, b, u) in P for k in range(2)]
        for (h, c, b, u) in E: a("v_fma_f32 v%d, -v%d, v%d, v%d" % (u, rs + 1, c, b))
        for (h, c, b, u) in E: a("v_fma_f32 v%d, v%d, v%d, v%d" % (h, rs, h, u))
        for (h, c, b, u) in E: a("v_mul_f32 v%d, v%d, v%d" % (u, h, h))
        for (h, c, b, u) in E: a("v_fma_f32 v%d, v%d, v%d, v%d" % (u, u, KC, KC + 2))
        for (h, c, b, u) in E: a("v_mul_f32 v%d, v%d, v%d" % (u, u, h))
        for (h, c, b, u) in E: a("v_exp_f32 v%d, v%d" % (u, u))
        for (h, c, b, u) in E: a("v_add_f32 v%d, 1.0, v%d" % (u, u))
        for (h, c, b, u) in E: a("v_rcp_f32 v%d, v%d" % (u, u))
        for (h, c, b, u) in E: a("v_mul_f32 v%d, v%d, v%d" % (u, u, h))
    for q, (h, c, b, u) in enumerate(P): a("v_cvt_pk_bf16_f32 v%d, v%d, v%d" % (out + q, u, u+1))
    if OPT["hz"] & 32: a("s_nop 7\ns_nop 7")
def phi_pairs(P, KC, scalar=False):
    if scalar:
        for (h, u) in P: a("v_mul_f32 v%d, v%d, v%d\nv_mul_f32 v%d, v%d, v%d" % (u, h, KC + 1, u + 1, h + 1, KC + 1))
    else:
        for (h, u) in P: a("v_pk_mul_f32 %s, %s, %s op_sel:[1,0] op_sel_hi:[1,1]" % (R2(u), R2(KC), R2(h)))
    for (h, u) in P: a("v_exp_f32_e64 v%d, v%d clamp\nv_exp_f32_e64 v%d, v%d clamp" % (u, u, u+1, u+1))
    for (h, u) in P: a("v_max_f32 v%d, v%d, v%d\nv_max_f32 v%d, v%d, v%d" % (h, h, KC+3, h+1, h+1, KC+3))
    for (h, u) in P: padd(h, h, u, scalar)

def make_table():
    T = []
    for ty in range(2):
        for t in range(256):
            ga = []
            for rnd in range(2):
                gi = t + 256 * rnd
                if gi >= 420: ga.append(ga[0]); continue
                n, gi = divmod(gi, 210); hh, gi = divmod(gi, 105); e, dg = divmod(gi, 5)
                if ty == 0:
                    DG = 5 * hh + dg; ti, g = DG >> 2, DG & 3
                    col = 0 if e == 20 else 20 * hh + e + 8
                    idx = 3 * ti + (col >> 4) - (1 if ti > 0 else 0)
                    ga.append(XK + n * 8192 + idx * 1024 + (g * 16 + (col & 15)) * 16)
                else:
                    hd = 2 * n + hh; DG = 5 * hd + dg; ti, g = DG >> 2, DG & 3
                    c = 80 + hd if e == 20 else 20 * hd + e
                    ga.append(IMG4 + (c * 4 + g) * 8 if ti == 4 else (IMG, IMG23)[ti >> 1] + (c * 4 + g) * 16 + (ti & 1) * 8)
            T += ga
    return T
def table_load(dst, vt, w):
    l = a.newlabel("Lpc")
    a("s_getpc_b64 s[%d:%d]\n%s:\ns_add_u32 s%d, s%d, L_table-%s\ns_addc_u32 s%d, s%d, 0" % (sPC, sPC+1, l, sPC, sPC, l, sPC+1, sPC+1))
    a("s_lshl_b32 s3, s%d, 2\ns_add_u32 s3, s3, s%d\ns_lshl_b32 s3, s3, 9\nv_lshl_add_u32 v%d, v0, 3, s3\nglobal_load_dwordx2 %s, v%d, s[%d:%d]" % (sTY, w, vt, R2(dst), vt, sPC, sPC+1))

XR = 84
def xreg(k, i): return XR + 8*k + 4*i
NT2 = (4, 5)
def loader():
    lw = sM
    vm = VM()
    def issue(c, part=(0, 9)):
        base = (c % 3) * SLOT
        L = [("s_add_u32 m0, s%d, %d" % (sLA, base + 1024*i), "buffer_load_dwordx4 v%d, %s, s%d offen lds" % (10+i, S(S_X), sA)) for i in range(4)]
        L += [("s_add_u32 m0, s%d, %d" % (sLP, base + 1024*i), "buffer_load_dwordx4 v%d, %s, s%d offen lds" % (14+i, S(S_P), sP)) for i in range(5)]
        for k in range(*part):
            m, d = L[k]
            if k == 8:
                l = a.newlabel("Lnop")
                a("s_cmp_lg_u32 s%d, 0\ns_cbranch_scc1 %s" % (sTY, l)); a(m); a("s_nop 0"); a(d); a.label(l); vm.add_opt("S%d" % c)
            else: a(m); a("s_nop 0"); a(d); vm.add("S%d" % c)
    def stage_id(reg, dst): a("s_and_b32 s%d, s%d, 15\ns_add_u32 s%d, s%d, s%d\ns_sub_u32 s3, s%d, 10\ns_min_u32 s%d, s%d, s3" % (dst, reg, dst, dst, sN, dst, dst, dst))
    def nextstage():
        a("s_lshr_b64 s[%d:%d], s[%d:%d], 4" % (sORD, sORD+1, sORD, sORD+1)); stage_id(sORD, sP)
        a("s_lshl_b32 s%d, s%d, 7\ns_mul_i32 s%d, s%d, s%d" % (sA, sP, sP, sP, sIncP))
    def p2round(r):
        stage_id(sOR2, sH)
        a("s_lshr_b64 s[%d:%d], s[%d:%d], 8\ns_mul_i32 s%d, s%d, s%d" % (sOR2, sOR2+1, sOR2, sOR2+1, sH, sH, sInc2))
        a("s_mov_b32 s3, %d\ns_cmp_ge_u32 s%d, 2\ns_cselect_b32 s3, %d, s3\ns_add_u32 m0, s3, s%d" % (p2loc(2*r), lw, p2loc(2*r + 1), sL2))
        for i in range(5):
            if i == 4:
                l = a.newlabel("Lnop"); a("s_cmp_eq_u32 s%d, 0\ns_cbranch_scc1 %s" % (sTY, l))
            if i: a("s_add_u32 m0, m0, 0x400")
            a("s_nop 0\nbuffer_load_dwordx4 v%d, %s, s%d offen lds" % (24 + i, S(S_P2), sH))
            if i == 4: a.label(l); vm.add_opt("R%d" % r)
            else: vm.add("R%d" % r)
    def capture_x(s):
        sl = s % 3
        for ks2 in range(2):
            for i in range(2): a("ds_read_b128 %s, v%d offset:%d" % (R4(xreg(2*s + ks2, i)), 20 + ks2 + (2 if sl == 2 else 0), (SLOT if sl == 1 else 0) + 2048*i))
    def bar(k, *labs):
        vm.wait(*labs); a("s_waitcnt lgkmcnt(0)"); stamp(k + 1, 4); a("s_barrier"); stamp(k + 1, 3)
    def seg_calc(dst, sbase):
        a("v_mul_u32_u24 v7, 6554, v0\nv_lshl_add_u32 v5, v0, 4, s%d\ns_movk_i32 s3, 3680\ns_movk_i32 s%d, 3840" % (sbase, sT3))
        for i in range(5):
            a("v_add_u32 v8, %d, v7\nv_lshrrev_b32 v8, 16, v8\nv_and_b32 v9, 12, v8" % (64*i*6554))
            c = 1024*i - (46080 if i >= 3 else 0)
            a("v_add_u32 v%d, 0x%x, v5\nv_mad_u32_u24 v%d, v8, s3, v%d\nv_mad_u32_u24 v%d, v9, s%d, v%d" % (dst+i, c & 0xffffffff, dst+i, dst+i, dst+i, sT3, dst+i))
            if i == 2: a("v_lshrrev_b32 v8, 4, v8\nv_mul_u32_u24 v8, 46080, v8\nv_sub_u32 v%d, v%d, v8" % (dst+2, dst+2))
    def line_calc(dst, sbase):
        a("v_and_b32 v6, 3, v2\nv_lshrrev_b32 v7, 2, v2\nv_lshl_add_u32 v6, v7, 3, v6\nv_mul_u32_u24 v6, 3072, v6\nv_and_b32 v7, 6, v2\nv_xor_b32 v7, v4, v7\nv_lshl_add_u32 v6, v7, 4, v6")
        a("v_add_u32 v%d, s%d, v6\nv_add_u32 v%d, 49152, v%d\nv_add_u32 v%d, 12288, v%d\nv_add_u32 v%d, 61440, v%d\nv_mov_b32 v%d, 0x%x" % (dst, sbase, dst+1, dst, dst+2, dst, dst+3, dst, dst+4, OOB))
    a("s_sub_u32 s%d, s%d, 4" % (lw, sWV))
    a("v_lshrrev_b32 v2, 3, v0\nv_lshrrev_b32 v3, 4, v0\nv_and_b32 v4, 7, v0")
    a("v_xor_b32 v5, v4, v3\nv_lshlrev_b32 v5, 4, v5")
    a("s_lshl_b32 s3, s%d, 7\ns_lshl_b32 s%d, s%d, 5\ns_add_u32 s3, s3, s%d\ns_mul_i32 s3, s3, 1280" % (sRB, sT1, lw, sT1))
    a("v_mul_u32_u24 v6, 1280, v2\nv_add3_u32 v10, v6, v5, s3")
    a("v_xor_b32 v11, 64, v10\nv_add_u32 v11, 10240, v11\nv_add_u32 v12, 20480, v10\nv_add_u32 v13, 20480, v11")
    a("s_lshl_b32 s%d, s%d, 12" % (sLA, lw))
    a("s_xor_b32 s3, s%d, s%d\ns_and_b32 s3, s3, 1\ns_mul_i32 s3, s3, 0x11111111\ns_xor_b32 s%d, s3, 0x76543210\ns_xor_b32 s%d, s3, 0x98" % (sRB, sJJ, sORD, sORD+1))
    a("s_and_b32 s3, s2, 7\ns_sub_u32 s%d, s3, 5\ns_min_u32 s3, s3, s%d\ns_lshl_b32 s%d, s3, 1" % (sT1, sT1, sN))
    stage_id(sORD, sP)
    a("s_lshl_b32 s%d, s%d, 7\ns_mov_b32 s%d, 0x%x\ns_mov_b32 s%d, 0x20000\ns_waitcnt lgkmcnt(0)\ns_mov_b32 s%d, s36\ns_mov_b32 s%d, s37" % (sA, sP, S_X+2, 2048*1280, S_X+3, S_X, S_X+1))
    stamp(1)
    issue(0, (0, 4))
    a("s_and_b32 s%d, s%d, 1\ns_lshr_b32 s%d, s%d, 1" % (sT2, lw, sLH, lw))
    a("s_mul_i32 s%d, s%d, 160\ns_mul_i32 s3, s%d, %d\ns_add_u32 s%d, s%d, s3\ns_mul_i32 s%d, s%d, 384\ns_mul_i32 s3, s%d, %d\ns_add_u32 s%d, s%d, s3" % (sK0, sJJ, sT2, 32*3840, sK0, sK0, sK1, sJJ, sT2, 32*3072, sK1, sK1))
    a("s_cmp_lg_u32 s%d, 0\ns_cbranch_scc1 L_p1q" % sTY)
    a("s_add_u32 s3, s%d, 1\ns_mul_i32 s3, s3, 1280\ns_add_u32 s%d, s%d, s3\ns_mov_b32 s%d, %d" % (sLH, sT1, sK0, sIncP, 64*3840))
    a("s_mul_i32 s%d, s%d, %d\ns_mul_i32 s3, s%d, 5120\ns_add_u32 s%d, s%d, s3\ns_add_u32 s%d, s%d, %d" % (sLP, sLH, V_OFF - K_OFF, sT2, sLP, sLP, sLP, sLP, K_OFF))
    seg_calc(14, sT1)
    srd(S_P, 38, 640*3840)
    a("s_branch L_p1d")
    a.label("L_p1q")
    a("s_add_u32 s3, s%d, 1\ns_lshl_b32 s3, s3, 7\ns_add_u32 s%d, s%d, s3\ns_mov_b32 s%d, %d\ns_add_u32 s%d, s%d, %d" % (sLH, sT1, sK1, sIncP, 64*3072, sLP, sLA, H_OFF))
    line_calc(14, sT1)
    srd(S_P, 44, 640*3072)
    a.label("L_p1d")
    a("s_mul_i32 s%d, s%d, s%d\ns_lshl_b32 s3, s%d, 2\ns_lshr_b64 s[%d:%d], s[%d:%d], s3" % (sP, sP, sIncP, sLH, sOR2, sOR2+1, sORD, sORD+1))
    issue(0, (4, 9)); nextstage()
    issue(1); nextstage()
    srd(S_WS, 56, WS_SIZE); srd(S_B1, 46, 3072)
    a("v_lshrrev_b32 v5, 2, v0\nv_and_b32 v6, 3, v0")
    a("s_cmp_lg_u32 s%d, 0\ns_cbranch_scc1 L_p2q" % sTY)
    a("v_lshlrev_b32 v7, 7, v5\nv_lshl_add_u32 v7, v6, 3, v7\nv_bfe_u32 v5, v0, 3, 2\nv_lshl_add_u32 v244, v5, 5, v7\nv_add_u32 v244, %d, v244\nv_xor_b32 v245, 32, v244\nv_xor_b32 v246, 64, v244\nv_xor_b32 v247, 0x60, v244" % P2A)
    a("s_lshl_b32 s3, s%d, 5\nv_xor_b32 v29, s3, v244\ns_mov_b32 s%d, %d\ns_lshl_b32 s%d, s%d, 12" % (lw, sInc2, 64*3072, sL2, sT2))
    line_calc(24, sK1)
    srd(S_P2, 44, 640*3072)
    a("s_branch L_p2d")
    a.label("L_p2q")
    a("v_mul_u32_u24 v7, 160, v5\nv_lshl_add_u32 v244, v6, 3, v7\nv_add_u32 v244, %d, v244\ns_lshl_b32 s3, s%d, 5\nv_add_u32 v29, s3, v244\ns_mov_b32 s%d, %d\ns_mul_i32 s%d, s%d, 5120" % (P2A, lw, sInc2, 64*3840, sL2, sT2))
    seg_calc(24, sK0)
    srd(S_P2, 38, 640*3840)
    a.label("L_p2d")
    a("v_and_b32 v5, 15, v0\nv_lshrrev_b32 v6, 1, v5\nv_xor_b32 v6, v6, v3\nv_lshlrev_b32 v6, 4, v6\nv_lshl_add_u32 v6, v5, 7, v6\nv_add_u32 v20, s%d, v6\nv_xor_b32 v21, 64, v20\nv_add_u32 v22, %d, v20\nv_add_u32 v23, %d, v21" % (sLA, 2*SLOT, 2*SLOT))
    a("v_lshlrev_b32 v1, 4, v0\nv_add_u32 v2, 4096, v1")
    g2_setup(True)
    a("v_min_u32 v32, 13, v5\nv_lshlrev_b32 v32, 4, v32\ns_mul_i32 s3, s%d, 224\nv_add_u32 v32, s3, v32\ns_mul_i32 s3, s%d, 64\ns_sub_u32 s3, 880, s3\nv_min_u32 v31, s3, v32\nv_lshl_add_u32 v31, v3, 10, v31\nv_and_b32 v30, 0x7ff, v31\nv_add_u32 v32, %d, v32" % (lw, sTY, CSL))
    a("s_lshl_b32 s%d, s%d, 10\ns_lshl_b32 s3, s%d, 11\ns_add_u32 s%d, s%d, s3\ns_add_u32 s%d, s%d, 0x%x" % (sT1, sT2, sRB, sT1, sT1, sT1, sT1, STAT_OFF))
    a("s_lshl_b32 s3, s%d, 3\ns_add_u32 s3, s3, s%d\ns_mul_i32 s%d, s3, 10240\ns_add_u32 s%d, s%d, 0x%x\ns_mov_b32 s%d, 0x%x" % (sTY, sJJ, sT2, sT2, sT2, CSP_OFF, sT3, FWG))
    a("s_and_b32 s3, s2, 7\ns_lshl_b32 s%d, s3, 1\ns_and_b32 s%d, s%d, 1\ns_add_u32 s%d, s%d, s%d\ns_lshl_b32 s%d, s%d, 10\ns_add_u32 s%d, s%d, s%d" % (sCD, sLP4, sRB, sCD, sCD, sLP4, sCD, sCD, sCD, sCD, sT2))
    a("s_lshl_b32 s%d, s%d, 1\ns_sub_u32 s%d, s%d, s%d\ns_add_u32 s%d, s%d, 10\ns_lshl_b32 s%d, s%d, 6\ns_add_u32 s%d, s%d, s%d\ns_cmp_lt_u32 s3, 5\ns_cselect_b32 s%d, s%d, 0" % (sLP4, sTY, sLP4, lw, sLP4, sLP4, sLP4, sLP4, sLP4, sCD, sCD, sLP4, sCD, sCD))
    a("v_mov_b32 v33, %d\nv_mov_b32 v34, 1\ns_getreg_b32 s%d, hwreg(HW_REG_XCC_ID, 0, 4)\ns_and_b32 s3, s2, 7\ns_lshl_b32 s3, s3, 5\ns_lshr_b32 s%d, s2, 3\ns_add_u32 s3, s3, s%d\ns_lshl_b32 s3, s3, 2\ns_add_u32 s3, s3, 0x%x\nv_mov_b32 v35, s3" % (LFLAG, sFAST, sLP4, sLP4, FWG))
    for k in range(4): a("v_mov_b32 v%d, 0x3f803f80" % (36 + k))
    a("v_and_b32 v19, 48, v0\nv_mov_b32 v9, 0xff")
    def sig(off): a("s_mov_b64 exec, 1\nds_add_u32 v33, v34 offset:%d\ns_mov_b64 exec, -1" % off)
    bar(0, "S0")
    a.c("PADS_ON")
    for c in range(2, 10):
        capture_x(c - 2)
        if c == 2: a("ds_read_b32 v6, v33 offset:%d" % (TAGL - LFLAG))
        if c == OPT["cp2"]:
            a("s_lshr_b32 s3, s2, 3\ns_lshl_b32 s3, s3, 2\ns_add_u32 s3, s3, s%d\ns_mul_i32 s3, s3, 384\ns_min_u32 s3, s3, L_tend-L_pc0-384" % lw)
            for k in range(6): a("s_load_dword s%d, s[%d:%d], s3\ns_add_u32 s3, s3, 64" % (sSpin, sEX, sEX+1))
        if c == 3: p2round(0)
        if c == 4:
            a("s_cmp_lg_u32 s%d, 3\ns_cbranch_scc1 L_nowf\nv_mov_b32 v6, s%d\nv_xor_b32 v6, s%d, v6\ns_mov_b64 exec, 1\nbuffer_store_dword v6, v35, %s, 0 offen sc1\ns_mov_b64 exec, -1" % (lw, sTAG, sFAST, S(S_WS)))
            a.label("L_nowf"); vm.add_opt("W")
            a("s_cmp_eq_u32 s%d, 0\ns_cbranch_scc1 L_nocd\ns_cmp_lg_u32 s%d, 0\ns_cbranch_scc1 L_cdq" % (sCD, sTY))
            for (ko, ro) in ((4096, 2048), (5120, 2560)):
                for ks2 in range(2):
                    for rd in range(2): a("ds_read_b64_tr_b16 %s, v29 offset:%d" % (R2(44 + 4*ks2 + 2*rd), ks2*ko + rd*ro))
                if ko == 4096: a("s_branch L_nocd"); a.label("L_cdq")
            for ks2 in range(2):
                for rd in range(2): a("ds_read_b64_tr_b16 %s, v29 offset:%d" % (R2(52 + 4*ks2 + 2*rd), ks2*5120 + rd*2560 + 32))
            a.label("L_nocd")
        if c == 5:
            a("s_cmp_eq_u32 s%d, 0\ns_cbranch_scc1 L_nocd2" % sCD)
            mf(60, 44, 36, True); mf(64, 52, 36, True); mf(60, 48, 36); mf(64, 56, 36)
            a.label("L_nocd2")
        if c == 9:
            a("buffer_load_dwordx4 v[68:71], v1, %s, s%d offen sc1" % (S(S_WS), sT3)); vm.add("FW")
        issue(c)
        if c < 9: nextstage()
        if c == 2:
            a("s_waitcnt lgkmcnt(0)\nv_readfirstlane_b32 s%d, v6\ns_nop 3" % sTAG)
            for k in range(4): a("s_lshr_b32 s%d, s%d, %d" % (TB[k], sTAG, 8*k))
        if c == 5:
            a("s_cmp_eq_u32 s%d, 0\ns_cbranch_scc1 L_nocd3" % sCD)
            for k in range(8): a("v_bfi_b32 v%d, v9, s%d, v%d" % (60 + k, TB[k % 4], 60 + k))
            a("s_mov_b32 exec_lo, 0x00010001\ns_mov_b32 exec_hi, 0x00010001\nbuffer_store_dwordx4 v[60:63], v19, %s, s%d offen sc1" % (S(S_WS), sCD))
            a("s_lshl_b32 s3, s%d, 2\ns_add_u32 s3, s3, s%d\ns_cmp_lg_u32 s3, 7\ns_cbranch_scc1 L_nocd4\nbuffer_store_dwordx4 v[64:67], v19, %s, s%d offen offset:64 sc1" % (sTY, lw, S(S_WS), sCD))
            a.label("L_nocd4"); a("s_mov_b64 exec, -1")
            a.label("L_nocd3"); vm.add_opt("CD", 2)
        if c == 9: break
        bar(c - 1, "S%d" % (c - 1), "R0" if c == 3 else "-")
    if OPT["lp"]: a("s_setprio %d" % OPT["lp"])
    def csloads():
        a("buffer_load_dwordx4 v[40:43], v1, %s, s%d offen sc1" % (S(S_WS), sT1))
        for p in range(3): a("s_add_u32 s3, s%d, %d\nbuffer_load_dwordx4 %s, v%d, %s, s3 offen sc1" % (sT2, 4096 * p, R4(44 + 4*p), 31 if p < 2 else 30, S(S_WS)))
    csloads(); vm.add("CK", 4)
    bar(8, "S8", "FW")
    capture_x(8)
    p2round(1); p2round(2)
    bar(9, "S9", "CK")
    capture_x(9)
    a("s_mov_b32 s%d, %d" % (sSpin, SPIN))
    a.label("L_chk")
    for k in range(4): a("v_xor_b32 v%d, s%d, v%d" % (72 + k, sTAG, 68 + k))
    tagchk(3, list(range(44, 56)))
    a("v_or3_b32 v4, v72, v73, v74\nv_or_b32 v4, v4, v75\nv_and_b32 v4, -16, v4\nv_bitop3_b32 v3, v3, v41, s%d bitop3:0xf6\nv_bitop3_b32 v3, v3, v43, s%d bitop3:0xf6\nv_or_b32 v3, v3, v4\nv_cmp_ne_u32 vcc, 0, v3\ns_cbranch_vccnz L_chkslow" % (sTAG, sTAG))
    a.label("L_chkok")
    mark = len(a.lines)
    a.label("L_chkslow"); a("s_sleep 4\nbuffer_load_dwordx4 v[68:71], v1, %s, s%d offen sc1" % (S(S_WS), sT3)); csloads()
    a("s_waitcnt vmcnt(0)\ns_sub_u32 s%d, s%d, 1\ns_cbranch_scc0 L_chk\ns_branch L_chkok" % (sSpin, sSpin))
    OUTLINE.extend(a.lines[mark:]); del a.lines[mark:]
    a("s_and_b32 s3, s%d, 1\ns_lshl_b32 s3, s3, 8\ns_add_u32 s3, s3, %d\nv_lshl_add_u32 v3, v0, 2, s3\nds_write2st64_b32 v3, v40, v42 offset0:0 offset1:2" % (lw, STATL))
    a("v_xor_b32 v3, s%d, v72" % sFAST)
    for k in range(1, 4): a("v_bitop3_b32 v3, v3, v%d, s%d bitop3:0xf6" % (72 + k, sFAST))
    a("v_cmp_ne_u32 vcc, 0, v3\ns_and_b32 s3, s2, 7\ns_lshl_b32 s3, s3, 3\ns_lshr_b64 vcc, vcc, s3\ns_and_b32 s3, vcc_lo, 0xff\ns_cselect_b32 s%d, 0, 1" % sFAST)
    for k in range(2): padd(44 + 2*k, 44 + 2*k, 48 + 2*k, True)
    a("s_mov_b32 exec_hi, 0")
    for k in range(2): padd(44 + 2*k, 44 + 2*k, 52 + 2*k, True)
    a("s_mov_b64 exec, -1\nv_mov_b32 v4, s%d\nds_write_b32 v33, v4 offset:%d" % (sFAST, FASTL - LFLAG))
    for op in ("v_permlane16_swap_b32", "v_permlane32_swap_b32"):
        for k in range(4): a("v_mov_b32 v%d, v%d" % (48 + k, 44 + k))
        a("s_nop 1")
        for k in range(4): a("%s v%d, v%d" % (op, 44 + k, 48 + k))
        a("s_nop 0")
        for k in range(2): padd(44 + 2*k, 44 + 2*k, 48 + 2*k, True)
    a("ds_write_b128 v32, v[44:47]\ns_waitcnt lgkmcnt(0)")
    sig(LF_ST); sig(LF_RING)
    if OPT["lp"]: a("s_setprio 0")
    stamp(4)
    p2round(3); p2round(4)
    a("v_mov_b32 v248, v33\nv_mov_b32 v249, 1")
    a("s_mul_i32 s3, s%d, 384\nv_lshrrev_b32 v3, 1, v19" % sJJ)
    a("s_cmp_lg_u32 s%d, 0\ns_cbranch_scc1 L_tq" % sTY)
    def sig2(off): a("s_mov_b64 exec, 1\nds_add_u32 v248, v249 offset:%d\ns_mov_b64 exec, -1" % off)
    def pass2(ty):
        nt = NT2[ty]; q0 = list(vm.q)
        vm.wait("R4"); sig2(LF_P2 + 16)
        stamp(5); stamp(1, 1)
        lds_wait(LF_P2 + 16, None, 4, 250, 1)
        FB = [44, 64]
        cur = [P2A]
        def reads(k):
            j, ks2 = k >> 1, k & 1
            reg0 = P2A if j < 4 else (SLOT if j < 7 else 2*SLOT)
            out = []
            if reg0 != cur[0]:
                out.append("\n".join("v_add_u32 v%d, 0x%x, v%d" % (244 + q, (reg0 - cur[0]) & 0xffffffff, 244 + q) for q in range(4 if ty == 0 else 1))); cur[0] = reg0
            o = p2loc(j) - reg0
            for t in range(nt):
                for rd in range(2):
                    x = "ds_read_b64_tr_b16 %s, v%d offset:%d" % (R2(FB[k & 1] + 4*t + 2*rd), 244 + t if ty == 0 else 244, o + (ks2*4096 + rd*2048 if ty == 0 else ks2*5120 + rd*2560 + 32*t))
                    if out and out[-1].startswith("v_add") and "ds_" not in out[-1]: out[-1] += "\n" + x
                    else: out.append(x)
            return out
        for x in reads(0): a(x)
        if ty == 0: lds_wait(LF_XK, None, 4, 250, 1)
        elif OPT["go"]: lds_wait(LF_GO, None, 4, 250, 1)
        else: lds_wait(LF_ST, None, 4, 250, 1)
        stamp(6); stamp(2, 1)
        if OPT["p2p"]: a("s_setprio %d" % OPT["p2p"])
        bq = []; nextb = [0]
        for k in range(20):
            a("s_waitcnt lgkmcnt(0)\ns_nop 0")
            if k == 18 and (OPT["yld"] >> ty) & 1: lds_signal(LF_Y, lw, 250)
            rr = reads(k + 1) if k < 19 else []
            if OPT["lbp"]:
                while nextb[0] < 6 and Breg(nextb[0], 4, True) + 4 <= xreg(k, 0) and not bq:
                    bq = memchunks(capture(lambda: loadB(nextb[0], True))); nextb[0] += 1
            n = 0
            for t in range(nt):
                for i in range(2):
                    mf(4 + (i*nt + t)*4, FB[k & 1] + 4*t, xreg(k, i), k == 0)
                    for _ in range(2):
                        if rr: a(rr.pop(0))
                    n += 1
                    if bq and n in (6, 8): a(bq.pop(0))
        for x in bq: a(x)
        a("s_setprio 0")
        sig2(LF_Z)
        stamp(7); stamp(3, 1)
        vm.q = q0
        return nextb[0]
    def epi2_reads(ty, CT, RS):
        a("v_and_b32 v3, 15, v0\nv_lshlrev_b32 v3, 2, v3\ns_lshl_b32 s3, s%d, 7\ns_add_u32 s3, s3, %d\nv_add_u32 v3, s3, v3\nv_and_b32 v250, 48, v0\nv_add_u32 v250, %d, v250" % (lw, STATL, CSL + 64*(10 - 2*ty)))
        for t in range(NT2[ty]): a("ds_read_b128 %s, v250 offset:%d" % (R4(CT + 4*t), 64*t))
        for i in range(2): a("ds_read2_b32 %s, v3 offset0:%d offset1:%d" % (R2(RS + 2*i), 16*i, 128 + 16*i))
    SC = OPT["sc2"]
    B1 = 36
    for t in range(4): a("buffer_load_dwordx2 %s, v3, %s, s3 offen offset:%d" % (R2(B1 + 2*t), S(S_B1), 32*t))
    vm.add("b1", 4)
    nb = pass2(0)
    CT, RS, BF, KC, TMP = 44, 60, 224, 64, 68
    epi2_reads(0, CT, RS)
    a("s_lshr_b32 s%d, s%d, 1\ns_and_b32 s%d, s%d, 1" % (sA, lw, sP, lw))
    a2_soff(sT2, sA, lambda: a("s_mul_i32 s3, s%d, 6" % sJJ))
    flag_off(sT1, sT2, sA)
    a("s_lshl_b32 s3, s%d, 2\ns_add_u32 s%d, s%d, s3\ns_lshl_b32 s3, s%d, 11\ns_add_u32 s%d, s%d, s3\ns_add_u32 s%d, s%d, 4096" % (sP, sT1, sT1, sP, sT2, sT2, sT3, sT2))
    a("s_waitcnt vmcnt(%d)" % (5 * nb))
    for k in range(8): unpack(BF + 2*k, B1 + k)
    consts(KC)
    if OPT["hz"] & 512: a("v_mov_b32 v255, v%d\nv_mov_b32 v254, 0x40400000" % (KC + 2))
    a("s_waitcnt lgkmcnt(0)")
    for u in range(2):
        for i in range(2):
            P = [(4 + (i*4 + 2*u + q//2)*4 + 2*(q % 2), CT + 4*(2*u + q//2) + 2*(q % 2), BF + 4*(2*u + q//2) + 2*(q % 2), TMP + 2*q) for q in range(4)]
            gelu(P, RS + 2*i, KC, P[0][0], SC & 1)
            st_a2("buffer_store_dwordx4 %s, v1, %s, s%d offen offset:%d" % (R4(P[0][0]), S(S_WS), (sT2, sT3)[u], 1024*i), 4)
    stamp(4, 1)
    if OPT["yld"] & 1: lds_signal(LF_Y, lw, 250)
    put_flag(sT1, 0, 250)
    for s in range(nb, 7): loadB(s, True)
    a("s_branch L_lg2")
    a.label("L_tq")
    vm.q = [x for x in vm.q if x[0] != "b1"]
    table_load(252, 3, lw); vm.add("tb")
    nb = pass2(1)
    CT, RS, KC, TMP, PQ = 44, 64, 68, 224, 4
    epi2_reads(1, CT, RS)
    a("s_mul_i32 s%d, s%d, %d\ns_lshl_b32 s3, s%d, 10\ns_add_u32 s%d, s%d, s3\ns_add_u32 s%d, s%d, 0x%x" % (sH, sJJ, KVP_STRIDE, lw, sH, sH, sH, sH, RED_OFF))
    a("v_add_u32 v251, s3, v1\nv_cmp_gt_u32 vcc, %d, v251\ns_lshr_b32 s%d, s%d, 1\ns_and_b32 s%d, s%d, 1\nv_cndmask_b32 v251, v1, v2, vcc" % ((420 - 256)*16, sA, lw, sP, lw))
    G = 72
    def gl(): a("buffer_load_dwordx4 %s, v1, %s, s%d offen sc1\nbuffer_load_dwordx4 %s, v251, %s, s%d offen sc1" % (R4(G), S(S_WS), sH, R4(G + 4), S(S_WS), sH))
    a2_soff(sT2, sA, lambda: a("s_lshl_b32 s3, s%d, 1\ns_add_u32 s3, s3, 48" % sJJ))
    flag_off(sT1, sT2, sA)
    a2_soff(sT3, sA, lambda: a("s_lshr_b32 s3, s%d, 1\ns_add_u32 s3, s3, 64" % sJJ))
    a("s_lshl_b32 s3, s%d, 2\ns_add_u32 s%d, s%d, s3\ns_lshl_b32 s3, s%d, 11\ns_add_u32 s%d, s%d, s3\ns_add_u32 s%d, s%d, s3\ns_add_u32 s%d, s%d, 4096\ns_and_b32 s3, s%d, 1\ns_lshl_b32 s3, s3, 9\ns_add_u32 s%d, s%d, s3" % (sP, sT1, sT1, sP, sT2, sT2, sT3, sT3, sLP4, sT2, sJJ, sT3, sT3))
    consts(KC)
    a("s_waitcnt lgkmcnt(0)")
    for i in range(2):
        P = [(4 + (i*5 + t)*4 + 2*q, TMP + 4*t + 2*q, CT + 4*t + 2*q) for t in range(5) for q in range(2)]
        rs = RS + 2*i
        align8()
        if SC & 2:
            for (h, u, c) in P: a("v_fma_f32 v%d, -v%d, v%d, v%d\nv_fma_f32 v%d, -v%d, v%d, v%d" % (u, rs+1, c, KC+3, u+1, rs+1, c+1, KC+3))
            for (h, u, c) in P: a("v_fma_f32 v%d, v%d, v%d, v%d\nv_fma_f32 v%d, v%d, v%d, v%d" % (h, rs, h, u, h+1, rs, h+1, u+1))
        else:
            for (h, u, c) in P: a("v_pk_fma_f32 %s, %s, %s, %s op_sel:[1,0,1] op_sel_hi:[1,1,1] neg_lo:[1,0,0] neg_hi:[1,0,0]" % (R2(u), R2(rs), R2(c), R2(KC + 2)))
            for (h, u, c) in P: a("v_pk_fma_f32 %s, %s, %s, %s op_sel:[0,0,0] op_sel_hi:[0,1,1]" % (R2(h), R2(rs), R2(h), R2(u)))
        phi_pairs([(h, u) for (h, u, c) in P], KC, SC & 2)
        for k, (h, u, c) in enumerate(P): a("v_cvt_pk_bf16_f32 v%d, v%d, v%d" % (PQ + 10*i + k, h, h + 1))
        if i == 0: gl()
    if OPT["yld"] & 2: lds_signal(LF_Y, lw, 24)
    stamp(4, 1)
    a("v_and_b32 v24, 15, v0\nv_lshrrev_b32 v25, 4, v0\nv_lshl_add_u32 v26, v24, 2, v25\nv_lshlrev_b32 v244, 4, v26\nv_lshlrev_b32 v245, 3, v26")
    a("v_and_b32 v26, 3, v24\nv_add_u32 v26, 80, v26\nv_lshl_add_u32 v26, v26, 2, v25\nv_lshlrev_b32 v246, 4, v26\nv_lshlrev_b32 v247, 3, v26")
    a("v_and_b32 v26, 1, v25\nv_lshlrev_b32 v254, 4, v24\nv_lshl_add_u32 v254, v26, 10, v254\nv_lshrrev_b32 v26, 1, v25\nv_lshl_add_u32 v254, v26, 8, v254")
    for k in range(3): a("v_cmp_gt_u32 s[%d:%d], %d, v25" % (24 + 2*k, 25 + 2*k, k + 1))
    lds_wait_ge(LF_IMG, 4, 26, 1)
    a("s_setprio 2\ns_mov_b32 s%d, %d" % (sSpin, SPIN))
    a.label("L_gather")
    a("s_waitcnt vmcnt(0)")
    tagchk(80, list(range(G, G + 8)))
    a("s_cbranch_vccz L_gatherok\ns_sleep %d" % OPT["slp"])
    gl()
    a("s_sub_u32 s%d, s%d, 1\ns_cbranch_scc0 L_gather\ns_waitcnt vmcnt(0)" % (sSpin, sSpin))
    a.label("L_gatherok")
    stamp(5, 1)
    for k in range(4): a("v_cvt_pk_bf16_f32 v%d, v%d, v%d" % (G + k, G + 2*k, G + 1 + 2*k))
    a("ds_write_b64 v252, %s\nds_write_b64 v253, %s\ns_waitcnt lgkmcnt(0)" % (R2(G), R2(G + 2)))
    sig2(LF_IMG)
    lds_wait(LF_IMG, None, 8, 26, 0)
    stamp(6, 1)
    WA = {0: 24, 1: 28, 2: 32, 5: 36}; WB = {1: 40, 2: 44, 3: 48, 4: 52, 5: 56}; WC = {3: 60, 4: 62, 5: 64}
    for to, r in WA.items(): a("ds_read_b128 %s, v%d offset:%d" % (R4(r), 246 if to == 5 else 244, IMG + (0 if to == 5 else 1024*to)))
    for to, r in WB.items(): a("ds_read_b128 %s, v%d offset:%d" % (R4(r), 246 if to == 5 else 244, IMG23 + (0 if to == 5 else 1024*to)))
    for to, r in WC.items(): a("ds_read_b64 %s, v%d offset:%d" % (R2(r), 247 if to == 5 else 245, IMG4 + (0 if to == 5 else 512*to)))
    a("s_waitcnt lgkmcnt(0)")
    OR = [{0: 224, 1: 228, 2: 232, 3: 236, 4: 240, 5: 72}, {0: 204, 1: 208, 2: 212, 3: 76, 4: 80, 5: 216}]
    RM = 244
    def omf(i):
        O = OR[i]; pq = PQ + 10*i
        for to in (3, 4): mf(O[to], WB[to], pq + 4, True)
        for to in (5, 0, 1, 2): mf(O[to], WA[to], pq, True)
        for to in (5, 1, 2): mf(O[to], WB[to], pq + 4)
    def omf2(i):
        O = OR[i]; pq = PQ + 10*i
        for to in (3, 4, 5): a("v_mfma_f32_16x16x16_bf16 %s, %s, %s, %s" % (R4(O[to]), R2(WC[to]), R2(pq + 8), R4(O[to])))
    def ofin(i):
        O = OR[i]; d = O[5]
        for j in range(4): a("v_add_f32 v%d, v%d, v%d" % (d + j, d + j, KC + 3))
        for j in range(4): a("v_rcp_f32 v%d, v%d" % (d + j, d + j))
        for x in range(4): a("v_mul_f32 v%d, v%d, v%d" % (O[0] + x, O[0] + x, d))
        for x in range(4): a("v_mul_f32 v%d, v%d, v%d" % (O[4] + x, O[4] + x, d + 3))
        for k in range(3): a("v_cndmask_b32 v%d, v%d, v%d, s[%d:%d]" % (d + k, d + k + 1, d + k, 24 + 2*k, 25 + 2*k))
        for k in range(3):
            for x in range(4): a("v_mul_f32 v%d, v%d, v%d" % (O[k + 1] + x, O[k + 1] + x, d + k))
        for k in range(2): a("v_cvt_pk_bf16_f32 v%d, v%d, v%d" % (RM + 2*i + k, O[4] + 2*k, O[4] + 2*k + 1))
        for u in range(2):
            for k in range(4): a("v_cvt_pk_bf16_f32 v%d, v%d, v%d" % (O[2*u] + k, O[2*u + (k >> 1)] + 2*(k & 1), O[2*u + (k >> 1)] + 2*(k & 1) + 1))
            st_a2("buffer_store_dwordx4 %s, v1, %s, s%d offen offset:%d" % (R4(O[2*u]), S(S_WS), (sT2, sLP4)[u], 1024*i))
    omf(0); omf(1); omf2(0); omf2(1)
    a("s_nop 4")
    ofin(0); ofin(1)
    for k in range(2): a("v_permlane16_swap_b32 v%d, v%d" % (RM + k, RM + 2 + k))
    st_a2("buffer_store_dwordx4 %s, v254, %s, s%d offen" % (R4(RM), S(S_WS), sT3))
    stamp(7, 1)
    put_flag(sT1, 0, 250)
    sig2(LF_Q)
    a("s_setprio 0")
    for s in range(nb, 7): loadB(s, True)
    a.label("L_lg2")
    stamp(8); stamp(8, 1)
    a("s_lshl_b32 s%d, s%d, 9\ns_add_u32 s%d, s%d, 0x%x\ns_lshl_b32 s3, s%d, 2\ns_add_u32 s%d, s%d, s3\ns_add_u32 s%d, s%d, 24\ns_lshl_b32 s3, s%d, 2\ns_add_u32 s%d, s%d, s3" % (sORD+1, sRT, sORD+1, sORD+1, FH, sK0, sORD, sORD+1, sORD, sORD, sK1, sORD+1, sORD+1))
    for k in range(4): step_off(2 + k, True, (sAo0, sAo1, sAo2), 4096, sLA + k)
    a("v_lshlrev_b32 v3, 2, v0")
    poll(3, sORD, 2, 4, "hl")
    stamp(9); stamp(9, 1)
    vm = VM()
    AO = [84, 104, 224, 84]
    so = [sLA, sLA + 1, sLA + 2, sLA + 3, sAo2]
    def ldo(i):
        for s in range(5): a("buffer_load_dwordx4 %s, v1, %s, s%d offen offset:%d%s" % (R4(AO[i] + 4*s), S(S_WS), so[s], 1024*i, ALD))
        for s in range(5): vm.add("O%d%d" % (i, s))
    loadA(0, True); loadA(1, True); vm.add("A0", 4); vm.add("A1", 4)
    a("s_mov_b64 exec, 15\nbuffer_load_dword v3, v3, %s, s%d offen%s\ns_mov_b64 exec, -1" % (S(S_WS), sORD + 1, PLD)); vm.add("F")
    vm.wait("A0"); g2_step(0, True)
    vm.wait("F")
    a("v_cmp_ne_u32 vcc, s%d, v3\ns_and_b32 s3, vcc_lo, 15\ns_cbranch_scc1 L_oslow" % sTAG)
    ldo(0); g2_step(1, True); ldo(1); ldo(2)
    a.label("L_oback")
    mark = len(a.lines)
    a.label("L_oslow")
    g2_step(1, True)
    a("v_lshlrev_b32 v3, 2, v0")
    poll(3, sORD + 1, 4, 248, "o")
    q = list(vm.q); ldo(0); ldo(1); ldo(2); vm.q = q
    a("s_branch L_oback")
    SLOW = a.lines[mark:]; del a.lines[mark:]
    stamp(10); stamp(10, 1)
    paddr(251, 249, 250)
    a("s_mul_i32 s3, s%d, 15360\ns_add_u32 s3, s3, %d\nv_add_u32 v250, s3, v251\ns_mul_i32 s3, s%d, %d\nv_add_u32 v251, s3, v251" % (lw, LPART, lw, PREG))
    a("v_mov_b32 v252, %d\nv_mov_b32 v253, 1" % (LFLAG + LF_T))
    def sg(i): return "s_mov_b64 exec, 1\ns_waitcnt lgkmcnt(0)\nds_add_u32 v252, v253 offset:%d\ns_mov_b64 exec, -1" % (4*i)
    pend = []
    for i in range(4):
        k = 0
        for s in range(5):
            vm.wait("O%d%d" % (i, s))
            for t in range(5):
                mf(Dreg(i, t), Breg(2 + s, t, True), AO[i] + 4*s)
                k += 1
                if pend and k >= 4: a(pend.pop(0))
            if i > 0 and s == 2: a(sg(i - 1))
        if i == 0:
            ldo(3)
            lds_wait(LF_Z, None, 4, 254)
        if i == 3: lds_wait(LF_PRE, None, 8, 254)
        pend = ["ds_write_b128 v%d, %s offset:%d" % (250 if i < 3 else 251, R4(Dreg(i, t)), (5120*i if i < 3 else 0) + 64*t) for t in range(5)]
    for x in pend: a(x)
    stamp(11); stamp(11, 1)
    a(sg(3))
    stamp(12)
    a("s_branch L_alldone")
    a.lines.extend(SLOW)

NT1 = (5, 4)
ACC = 8; F0 = 88; F1 = 124
vA0, vA1, vW = 160, 161, 162
vB1 = 168
def acc(i, t): return ACC + (i * 5 + t) * 4
NQU = 680
def hop_call():
    if not OPT["hop"]: return
    a("s_mov_b32 s1, 1")
    for c in range(3): a("s_cmp_eq_u32 s%d, %d\ns_cbranch_scc1 @HEAD%d@" % (sWV, c, c))
    a("s_branch @HEAD3@")
    a.label("L_hopd")
    a("s_mov_b32 s1, 0")
def compute_prologue():
    sU, sUe, sJ0, sJ1, sJ2, sJ3 = sLP, sH, sLP4, sLH, sA, sP
    a("s_lshr_b32 s%d, s%d, 1\ns_and_b32 s%d, s%d, 1" % (sM, sWV, sN, sWV))
    a("s_lshl_b32 s3, s%d, 3\ns_add_u32 s3, s3, s%d\ns_lshl_b32 s3, s3, 2\ns_add_u32 s3, s3, s%d\ns_lshl_b32 s3, s3, 1\ns_lshl_b32 s%d, s%d, 7\ns_add_u32 s3, s3, s%d" % (sTY, sJJ, sWV, sT1, sRB, sT1))
    a("s_mul_i32 s%d, s3, 1280\ns_lshl_b32 s%d, s3, 4\ns_add_u32 s%d, s%d, 0x%x" % (sT1, sT2, sT2, sT2, STAT_OFF))
    a("v_lshrrev_b32 v5, 5, v0\nv_and_b32 v6, 31, v0\nv_mul_u32_u24 v7, 1280, v5\nv_lshl_add_u32 v224, v6, 4, v7\nv_lshl_add_u32 v225, v6, 3, v7")
    a("s_lshl_b32 s%d, s%d, 7\ns_lshl_b32 s3, s%d, 3\ns_add_u32 s%d, s%d, s3\ns_add_u32 s%d, s%d, s%d" % (sU, sWV, sRB, sU, sU, sU, sU, sJJ))
    a("s_cmp_eq_u32 s%d, %d\ns_cselect_b32 s%d, %d, 0" % (sTY, OPT["jty"], sUe, 0 if OPT["nojob"] else 680))
    a("v_lshrrev_b32 v2, 3, v0\nv_and_b32 v4, 7, v0\nv_and_b32 v7, 6, v2\nv_xor_b32 v7, v4, v7\nv_lshlrev_b32 v4, 4, v7\nv_and_b32 v6, 3, v2")
    a("s_lshl_b32 s3, s%d, 12\ns_add_u32 m0, s3, %d\ns_mov_b32 s%d, 0x20000\ns_mov_b32 s%d, s%d" % (sWV, JOBL, S_J+3, sK0, sU))
    a("s_mov_b32 s%d, 0x%x\ns_mov_b32 s%d, 0x20000\ns_waitcnt lgkmcnt(0)\ns_mov_b32 s%d, s36\ns_mov_b32 s%d, s37" % (S_X+2, 2048*1280, S_X+3, S_X, S_X+1))
    XL = 92; U = 104
    a("buffer_load_dwordx4 %s, v224, %s, s%d offen\nbuffer_load_dwordx4 %s, v224, %s, s%d offen offset:512\nbuffer_load_dwordx2 %s, v225, %s, s%d offen offset:1024" % (R4(XL), S(S_X), sT1, R4(XL+4), S(S_X), sT1, R2(XL+8), S(S_X), sT1))
    a("s_add_u32 s%d, s56, 0x%x\ns_addc_u32 s%d, s57, 0\ns_load_dword s%d, s[%d:%d], 0" % (sEX, EPOCH, sEX+1, sTAG, sEX, sEX+1))
    a.label("L_jrl")
    a("s_cmp_ge_u32 s%d, s%d\ns_cbranch_scc1 L_nojob1" % (sK0, sUe))
    a("s_mul_i32 s3, s%d, 6554\ns_lshr_b32 s%d, s3, 16\ns_mul_i32 s3, s%d, 10\ns_sub_u32 s%d, s%d, s3" % (sK0, sK1, sK1, sT3, sK0))
    a("s_cmp_lt_u32 s%d, 48\ns_cselect_b32 s%d, s48, s40\ns_cselect_b32 s%d, s49, s41\ns_mov_b32 s%d, %d\ns_cselect_b32 s%d, %d, s%d" % (sK1, S_J, S_J+1, S_J+2, 640*1280, S_J+2, 1536*1280, S_J+2))
    a("s_lshl_b32 s%d, s%d, 5\ns_mul_i32 s3, s%d, 40\ns_and_b32 s%d, s%d, 1\ns_lshl_b32 s%d, s%d, 3\ns_sub_u32 s3, s3, s%d\ns_sub_u32 s3, s3, %d\ns_cmp_lt_u32 s%d, 48\ns_cselect_b32 s%d, s%d, s3" % (sJ0, sK1, sK1, sJ1, sK1, sJ1, sJ1, sJ1, 48*40, sK1, sJ0, sJ0))
    a("s_mul_i32 s3, s%d, 160\ns_sub_u32 s3, s3, %d\ns_cmp_lt_u32 s%d, 64\ns_cselect_b32 s%d, s%d, s3\ns_cselect_b32 s%d, 4, 8\ns_cselect_b32 s%d, 16, 4\ns_cselect_b32 s%d, 8, 80" % (sK1, 64*160 - 64, sK1, sJ0, sJ0, sJ3, sJ2, sJ1))
    a("v_mad_u32_u24 v7, s%d, v5, v6\nv_mul_u32_u24 v7, 1280, v7\nv_add_u32 v3, v4, v7" % sJ3)
    a("s_mul_i32 s%d, s%d, 1280\ns_lshl_b32 s3, s%d, 7\ns_add_u32 s%d, s%d, s3\ns_mul_i32 s%d, s%d, 1280\ns_mul_i32 s%d, s%d, 1280" % (sJ0, sJ0, sT3, sJ0, sJ0, sJ1, sJ1, sJ2, sJ2))
    a("s_add_u32 s3, s%d, s%d\nbuffer_load_dwordx4 v3, %s, s%d offen lds" % (sJ0, sJ1, S(S_J), sJ0))
    a("s_add_u32 m0, m0, 0x400\ns_add_u32 s%d, s%d, s%d\nbuffer_load_dwordx4 v3, %s, s3 offen lds" % (sJ0, sJ0, sJ2, S(S_J)))
    a("s_add_u32 m0, m0, 0x400\ns_add_u32 s3, s%d, s%d\nbuffer_load_dwordx4 v3, %s, s%d offen lds" % (sJ0, sJ1, S(S_J), sJ0))
    a("s_add_u32 m0, m0, 0x400\ns_add_u32 s%d, s%d, 512\nbuffer_load_dwordx4 v3, %s, s3 offen lds" % (sK0, sK0, S(S_J)))
    a("s_add_u32 m0, m0, 0x3400\ns_branch L_jrl")
    a.label("L_nojob1")
    srd(S_B1, 46, 3072); srd(S_WS, 56, WS_SIZE); srd(S_OUT, 52, 2048*1280); srd(S_B2, 50, 1280)
    a("v_and_b32 v2, 15, v0\nv_lshrrev_b32 v3, 4, v0\nv_lshrrev_b32 v4, 1, v2\nv_xor_b32 v4, v4, v3\nv_lshlrev_b32 v4, 4, v4\nv_lshl_add_u32 v4, v2, 7, v4\nv_lshlrev_b32 v1, 3, v3")
    a("s_lshl_b32 s3, s%d, 13\nv_add_u32 v%d, s3, v4\nv_xor_b32 v%d, 64, v%d" % (sM, vA0, vA1, vA0))
    a("v_and_b32 v226, 31, v0\nv_lshlrev_b32 v226, 2, v226\nv_add_u32 v226, %d, v226" % LFLAG)
    a("v_lshrrev_b32 v2, 2, v0\nv_and_b32 v3, 3, v0\nv_lshlrev_b32 v4, 7, v2\nv_lshl_add_u32 v4, v3, 3, v4\nv_bfe_u32 v5, v0, 3, 2\nv_lshl_add_u32 v4, v5, 5, v4")
    a("s_lshl_b32 s3, s%d, 12\ns_add_u32 s3, s3, %d\nv_add_u32 v228, s3, v4\nv_xor_b32 v229, 32, v228\nv_xor_b32 v230, 64, v228\nv_xor_b32 v231, 0x60, v228" % (sWV, JOBL))
    a("s_cmp_lg_u32 s%d, 0\ns_cbranch_scc1 L_adq" % sTY)
    a("v_mul_u32_u24 v4, 160, v2\ns_mul_i32 s3, s%d, 80\nv_add_u32 v4, s3, v4\nv_lshl_add_u32 v%d, v3, 3, v4" % (sN, vW))
    a("v_and_b32 v5, 1, v3\nv_lshl_add_u32 v4, v5, 3, v4\nv_add_u32 v4, %d, v4\nv_lshrrev_b32 v5, 1, v3\nv_mul_u32_u24 v5, %d, v5\nv_add_u32 v%d, v4, v5" % (K_OFF + 64, V_OFF - K_OFF - 64, vW + 1))
    table_load(174, 5, sWV)
    a("s_branch L_add")
    a.label("L_adq")
    a("s_lshl_b32 s3, s%d, 13\ns_add_u32 s3, s3, %d\nv_add_u32 v%d, s3, v4" % (sN, H_OFF, vW))
    for t in range(1, 4): a("v_xor_b32 v%d, %d, v%d" % (vW + t, 32*t, vW))
    a("s_lshl_b32 s3, s%d, 7\ns_mul_i32 s%d, s%d, 384\ns_add_u32 s3, s3, s%d\ns_add_u32 s3, s3, 128" % (sN, sIncP, sJJ, sIncP))
    for t in range(4): a("buffer_load_dwordx2 %s, v1, %s, s3 offen offset:%d" % (R2(vB1 + 2*t), S(S_B1), 32*t))
    a.label("L_add")
    for r in range(ACC, ACC + 80, 2): a("v_mov_b64 %s, 0" % R2(r))
    a("s_waitcnt lgkmcnt(0)\ns_and_b32 s3, s%d, 0x7f7f7f7f\ns_add_u32 s3, s3, 0x35251513\ns_and_b32 s%d, s%d, 0x80808080\ns_xor_b32 s%d, s%d, s3" % (sTAG, sTAG, sTAG, sTAG, sTAG))
    a("v_mov_b32 v6, 0\nv_mov_b32 v7, s%d\nds_write2_b32 v226, v6, v7 offset0:0 offset1:32" % sTAG)
    for k in range(4): a("s_lshr_b32 s%d, s%d, %d" % (TB[k], sTAG, 8*k))
    g2_setup(False)
    stamp(1)
    if OPT["hpos"] == 0: hop_call()
    def allreduce32(v, t):
        for ctl in ("quad_perm:[1,0,3,2]", "quad_perm:[2,3,0,1]", "row_half_mirror", "row_mirror"):
            a("s_nop 1\nv_add_f32_dpp v%d, v%d, v%d %s row_mask:0xf bank_mask:0xf" % (v, v, v, ctl))
        a("v_mov_b32 v%d, v%d\ns_nop 1\nv_permlane16_swap_b32 v%d, v%d\ns_nop 1\nv_add_f32 v%d, v%d, v%d" % (t, v, v, t, v, v, t))
    a("s_cmp_lt_u32 s%d, s%d\ns_cbranch_scc1 L_w4\ns_waitcnt vmcnt(1)" % (sU, sUe))
    a.label("L_w4"); a("s_waitcnt vmcnt(5)")
    for i in range(10): unpack(U + 2*i, XL + i)
    a("v_pk_add_f32 v[2:3], %s, %s\nv_pk_add_f32 v[4:5], %s, %s" % (R2(U), R2(U + 2), R2(U + 4), R2(U + 6)))
    for i in range(4, 10): a("v_pk_add_f32 %s, %s, %s" % (R2(2 + 2*(i & 1)), R2(2 + 2*(i & 1)), R2(U + 2*i)))
    a("v_pk_add_f32 v[2:3], v[2:3], v[4:5]\nv_add_f32 v2, v2, v3")
    allreduce32(2, 3)
    a("v_mul_f32 v2, 0x3acccccd, v2")
    for i in range(10): a("v_pk_add_f32 %s, %s, v[2:3] op_sel_hi:[1,0] neg_lo:[0,1] neg_hi:[0,1]" % (R2(U + 2*i), R2(U + 2*i)))
    a("v_pk_mul_f32 v[4:5], %s, %s\nv_pk_mul_f32 v[6:7], %s, %s" % (R2(U), R2(U), R2(U + 2), R2(U + 2)))
    for i in range(2, 10): a("v_pk_fma_f32 %s, %s, %s, %s" % (R2(4 + 2*(i & 1)), R2(U + 2*i), R2(U + 2*i), R2(4 + 2*(i & 1))))
    a("v_pk_add_f32 v[4:5], v[4:5], v[6:7]\nv_add_f32 v4, v4, v5")
    allreduce32(4, 5)
    a("v_mul_f32 v4, 0x3acccccd, v4")
    bf16_round(4); a("v_add_f32 v4, 0x3727c5ac, v4"); bf16_round(4)
    a("v_sqrt_f32 v4, v4\ns_nop 0"); bf16_round(4); bf16_round(2)
    a("v_rcp_f32 v232, v4\nv_mov_b32 v233, s%d\nv_mov_b32 v235, s%d\nv_mul_f32 v234, v232, v2\nv_lshrrev_b32 v5, 1, v0" % (sTAG, sTAG))
    a("s_mov_b32 exec_lo, 1\ns_mov_b32 exec_hi, 1\nbuffer_store_dwordx4 v[232:235], v5, %s, s%d offen sc1\ns_mov_b64 exec, -1" % (S(S_WS), sT2))
    stamp(2)
    if OPT["hpos"] == 1: hop_call()
    a("s_and_b32 s3, s2, 7\ns_cmp_lt_u32 s3, 5\ns_cselect_b32 s%d, 1, 0\ns_cbranch_scc0 L_nosel" % sA)
    a("s_lshl_b32 s3, s3, 1\ns_and_b32 s%d, s%d, 1\ns_add_u32 s3, s3, s%d\ns_lshl_b32 s%d, s%d, 3\ns_add_u32 s%d, s%d, s%d\ns_mul_i32 s%d, s%d, 10\ns_add_u32 s3, s3, s%d\ns_lshl_b32 s3, s3, 4" % (sA, sRB, sA, sA, sTY, sA, sA, sJJ, sA, sA, sA))
    a("s_sub_u32 s%d, 5, s%d\ns_mul_i32 s%d, s%d, s%d\ns_add_u32 s3, s3, s%d\ns_sub_u32 s%d, 3, s%d\ns_mul_i32 s%d, s%d, s%d\ns_add_u32 s3, s3, s%d\ns_lshl_b32 s3, s3, 6\ns_add_u32 s%d, s3, 0x%x" % (sA, sTY, sA, sA, sN, sA, sA, sTY, sA, sA, sM, sA, sA, CSP_OFF))
    a("v_and_b32 v6, 15, v0\nv_mov_b32 v7, 0x3f803f80\nv_and_b32 v4, 48, v0\nv_lshl_add_u32 v4, v6, 6, v4\nv_mov_b32 v5, 0xff")
    for t in range(3):
        a("v_cmp_eq_u32 vcc, %d, v6\ns_nop 1\nv_cndmask_b32 v%d, 0, v7, vcc\nv_cndmask_b32 v%d, 0, v7, vcc\nv_mov_b64 %s, %s" % (t, 176 + 4*t, 177 + 4*t, R2(178 + 4*t), R2(176 + 4*t)))
    a.label("L_nosel")
    a("v_lshlrev_b32 v1, 4, v0\nv_add_u32 v2, 4096, v1")
    for r in range(2):
        a("s_cmp_ge_u32 s%d, s%d\ns_cbranch_scc1 L_nojob2" % (sU, sUe))
        if r == 0: a("s_waitcnt vmcnt(2)")
        for t in range(4): a("ds_read_b64_tr_b16 %s, v%d offset:%d\nds_read_b64_tr_b16 %s, v%d offset:%d" % (R2(F0 + 16*r + 4*t), 228 + t, 16384*r, R2(F0 + 16*r + 2 + 4*t), 228 + t, 16384*r + 2048))
        a("s_lshl_b32 s3, s%d, 12\ns_add_u32 s3, s3, 0x%x\ns_add_u32 s%d, s%d, 512\ns_waitcnt lgkmcnt(0)" % (sU, B2_OFF, sU, sU))
        for t in range(4): a("buffer_store_dwordx4 %s, v1, %s, s3 offen offset:%d sc1" % (R4(F0 + 16*r + 4*t), S(S_WS), 1024*t))
    a.label("L_nojob2")

def frag_reads(ty, F, ks2):
    r = ["ds_read_b128 %s, v%d offset:%d" % (R4(F + 4*i), vA1 if ks2 else vA0, 2048*i) for i in range(4)]
    for t in range(NT1[ty]):
        d = F + 16 + 4*t
        for rd in range(2):
            if ty == 0:
                if t == 2: reg, off = vW + 1, 0
                elif t < 2: reg, off = vW, K_OFF + 32*t
                else: reg, off = vW, V_OFF + 16 + 32*(t - 3)
                off += ks2 * 5120 + rd * 2560
            else: reg, off = vW + t, ks2 * 4096 + rd * 2048
            r.append("ds_read_b64_tr_b16 %s, v%d offset:%d" % (R2(d + 2*rd), reg, off))
    return r
def mfmas(ty, F, order=None):
    r = []
    for (t, i) in (order or [(t, i) for t in range(NT1[ty]) for i in range(4)]):
        B = R4(F + 16 + 4*t); A = R4(F + 4*i); D = R4(acc(i, t))
        r.append("v_mfma_f32_16x16x32_bf16 %s, %s, %s, %s" % ((D, B, A, D) if ty == 1 else (D, A, B, D)))
    return r
def interleave(mm, rr, per=2):
    rr = list(rr)
    for x in mm:
        a(x)
        for _ in range(per):
            if rr: a(rr.pop(0))
    assert not rr

def main_loop(ty):
    nt = NT1[ty]
    a("s_mov_b32 s%d, 0\ns_mov_b32 s%d, 0\ns_waitcnt lgkmcnt(0)" % (sCnt, sSlot))
    stamp(3)
    a("s_barrier")
    stamp(4)
    for x in frag_reads(ty, F0, 0): a(x)
    a("s_cmp_eq_u32 s%d, 0\ns_cbranch_scc1 L_ent%d\ns_cmp_lg_u32 s%d, 0\ns_cbranch_scc1 L_cs1%d" % (sA, ty, sM, ty))
    rr = frag_reads(ty, F1, 1)[4:]
    for m in range(2):
        tl = list(range(0, 3 - ty)) if m == 0 else list(range(3 - ty, nt))
        for t in tl: a(rr[2*t]); a(rr[2*t + 1])
        a("s_waitcnt lgkmcnt(%d)" % (2 * len(tl)))
        for k, t in enumerate(tl): mf(252, F0 + 16 + 4*t, 176 + 4*k, k == 0)
        a("s_waitcnt lgkmcnt(0)")
        for k, t in enumerate(tl): mf(252, F1 + 16 + 4*t, 176 + 4*k)
        a("s_mov_b32 s3, 0x%x" % (((1 << len(tl)) - 1) * 0x10001))
        if m == 0: a("s_branch L_cs2%d" % ty); a.label("L_cs1%d" % ty)
    a.label("L_cs2%d" % ty)
    a("s_nop 6")
    for k in range(4): a("v_bfi_b32 v%d, v5, s%d, v%d" % (252 + k, TB[k], 252 + k))
    a("s_mov_b32 exec_lo, s3\ns_mov_b32 exec_hi, s3\nbuffer_store_dwordx4 v[252:255], v4, %s, s%d offen sc1\ns_mov_b64 exec, -1" % (S(S_WS), sA))
    a.label("L_ent%d" % ty)
    a("s_waitcnt lgkmcnt(0)\ns_branch L_mid%d" % ty)
    upd = ["v_add_u32_e64 v%d, s%d, v%d" % (r, sT1, r) for r in [vA0, vA1] + [vW + t for t in range(2 if ty == 0 else 4)]]
    sal = "s_add_u32 s%d, s%d, 1\ns_cmp_eq_u32 s%d, 3\ns_cselect_b32 s%d, 0, s%d\ns_mov_b32 s%d, %d\ns_cselect_b32 s%d, %d, s%d\ns_add_u32 s%d, s%d, 1" % (sSlot, sSlot, sSlot, sSlot, sSlot, sT1, SLOT, sT1, (-2*SLOT) & 0xffffffff, sT1, sCnt, sCnt)
    align8()
    a.label("L_top%d" % ty)
    a("s_barrier\ns_nop 0")
    interleave(mfmas(ty, F1), frag_reads(ty, F0, 0))
    a("s_waitcnt %slgkmcnt(0)\ns_nop 0" % ("vmcnt(0) " if ty == OPT["jty"] else ""))
    a.label("L_mid%d" % ty)
    interleave(mfmas(ty, F0), frag_reads(ty, F1, 1) + [sal] + upd)
    a("s_cmp_lt_u32 s%d, 10\ns_waitcnt lgkmcnt(0)\ns_cbranch_scc1 L_top%d" % (sCnt, ty))
    a.c("PADS_ON")
    a("v_mov_b32 v6, %d\nv_mov_b32 v7, 1\ns_mov_b64 exec, 1\nds_add_u32 v6, v7 offset:%d\ns_mov_b64 exec, -1" % (LFLAG, LF_RING))
    order = [(t, i) for i in range(4) for t in range(5)] if ty == 0 else [(t, i) for g in ((0, 1), (2, 3)) for i in range(4) for t in g]
    for x in mfmas(ty, F1, order): a(x)
    stamp(5); stamp(1, 1)
    lds_wait(LF_ST, None, 4, 4, 0)
    stamp(2, 1)
def csig(off): a("s_mov_b64 exec, 1\nds_add_u32 v6, v7 offset:%d\ns_mov_b64 exec, -1" % off)

def epilogue_kv():
    R4S = 88; CTs = [120, 122, 166, 168, 170]; KC = 124; TMP = 128; T2P = 152
    a("v_and_b32 v4, 15, v0\nv_lshlrev_b32 v4, 2, v4\ns_lshl_b32 s3, s%d, 8\ns_add_u32 s3, s3, %d\nv_and_b32 v3, 48, v0\nv_add_u32 v3, s3, v3\ns_mul_i32 s3, s%d, 320\ns_add_u32 s3, s3, %d\nv_add_u32 v4, s3, v4" % (sM, STATL, sN, CSL))
    for t in range(5): a("ds_read_b32 v%d, v4 offset:%d" % (CTs[t], 64*t))
    for i in range(4): a("ds_read_b128 %s, v3 offset:%d\nds_read_b128 %s, v3 offset:%d" % (R4(R4S + 16 + 4*i), 512 + 64*i, R4(R4S + 4*i), 64*i))
    a("ds_read_b32 v172, v6 offset:%d\ns_waitcnt vmcnt(0)" % LF_RING)
    consts(KC)
    a("v_and_b32 v5, 8, v0\nv_cmp_eq_u32 vcc, 0, v5\nv_mov_b32 v160, 0x3f803f80\ns_lshl_b32 s3, s%d, 13\nv_cndmask_b32 v5, 0, v%d, vcc\nv_add_u32 v161, s3, v1\nv_mov_b32 v4, v5" % (sWV, KC + 3))
    prods = [(0,2),(0,3),(1,2),(1,3),(1,4),(2,2),(2,3),(2,4)]
    KD = [acc(1, t) for t in range(5)] + [R4S, R4S + 4, R4S + 16]
    def kvm(ksr):
        return ["v_mfma_f32_16x16x32_bf16 %s, %s, %s, %s" % (R4(KD[k]), R4(acc(2*ksr, ti)), R4(T2P + 4*ksr) if tj == 2 else R4(acc(2*ksr, tj)), "0" if ksr == 0 else R4(KD[k])) for k, (ti, tj) in enumerate(prods)]
    for i in range(4):
        a("s_waitcnt lgkmcnt(%d)" % (7 - 2*i))
        align8()
        def body():
            for t in range(5):
                for q in range(2):
                    u = TMP + 4*t + 2*q; rm = R2(R4S + 16 + 4*i + 2*q); c = R2(CTs[t])
                    if t < 2: a("v_pk_fma_f32 %s, %s, %s, %s op_sel:[0,0,1] op_sel_hi:[1,0,1] neg_lo:[1,0,0] neg_hi:[1,0,0]" % (R2(u), rm, c, R2(KC + 2)))
                    elif t == 2: a("v_pk_fma_f32 %s, %s, %s, v[4:5] op_sel:[0,0,0] op_sel_hi:[1,0,1] neg_lo:[1,0,0] neg_hi:[1,0,0]" % (R2(u), rm, c))
                    else: a("v_pk_mul_f32 %s, %s, %s op_sel:[0,0] op_sel_hi:[1,0] neg_lo:[1,0] neg_hi:[1,0]" % (R2(u), rm, c))
            for t in range(5):
                for q in range(2):
                    h = acc(i, t) + 2*q; u = TMP + 4*t + 2*q
                    a("v_pk_fma_f32 %s, %s, %s, %s" % (R2(h), R2(R4S + 4*i + 2*q), R2(h), R2(u)))
            a("v_cvt_pk_bf16_f32 v%d, v%d, v%d\nv_cvt_pk_bf16_f32 v%d, v%d, v%d" % (TMP+20, acc(i,2), acc(i,2)+1, TMP+21, acc(i,2)+2, acc(i,2)+3))
            phi_pairs([(acc(i, t) + 2*q, TMP + 4*t + 2*q) for t in range(3) for q in range(2)], KC)
            e = 2 * (i >> 1); o = 2 * (i & 1)
            a("v_cndmask_b32 v%d, v%d, v160, vcc\nv_cndmask_b32 v%d, v%d, v160, vcc" % (T2P + 4*(i>>1) + o, TMP+20, T2P + 4*(i>>1) + o + 1, TMP+21))
            for t in (3, 4, 0, 1, 2):
                a("v_cvt_pk_bf16_f32 v%d, v%d, v%d\nv_cvt_pk_bf16_f32 v%d, v%d, v%d" % (acc(e,t)+o, acc(i,t), acc(i,t)+1, acc(e,t)+o+1, acc(i,t)+2, acc(i,t)+3))
        lines = capture(body); mm = kvm(0) if i == 2 else []
        bq = memchunks(capture(lambda: loadB(i, False))) if i < OPT["nbe"] else []
        for k, ln in enumerate(lines):
            a(ln)
            if k >= 28 and k % 2 == 1 and mm: a(mm.pop(0))
            if bq and k % 12 == 11: a(bq.pop(0))
        assert not mm and not bq
    a("s_nop 1")
    for x in kvm(1): a(x)
    lds_wait(LF_RING, None, 8, 162, 0)
    for k in range(8): a("ds_write_b128 v161, %s offset:%d" % (R4(KD[k]), XK + 1024 * k))
    a("s_lshl_b32 s%d, s%d, 4\ns_mul_i32 s%d, s%d, %d\ns_add_u32 s%d, s%d, 0x%x\ns_mul_i32 s3, s%d, %d\ns_add_u32 s%d, s%d, s3\ns_lshl_b32 s3, s%d, 10\ns_add_u32 s%d, s%d, s3" % (sT2, sJJ, sT2, sT2, KVP_STRIDE, sT2, sT2, KVP_OFF, sRB, KVP_STRIDE, sT1, sT2, sWV, sT1, sT1))
    a("v_add_u32 v3, s3, v1\nv_cmp_gt_u32 vcc, %d, v3\nv_mov_b32 v4, 0x%x\nv_mov_b32 v3, 0xff\nv_cndmask_b32 v4, v4, v2, vcc\ns_waitcnt lgkmcnt(0)" % ((420 - 256)*16, OOB))
    csig(LF_XK)
    stamp(7); stamp(3, 1)
    a("s_mul_i32 s%d, s%d, %d\ns_add_u32 s%d, s%d, 0x%x" % (sH, sJJ, KVP_STRIDE, sH, sH, RED_OFF))
    a("s_lshl_b32 s%d, s%d, 2\ns_add_u32 s%d, s%d, s%d\ns_lshl_b32 s3, s%d, 7\ns_add_u32 s%d, s%d, s3\ns_add_u32 s%d, s%d, s3\ns_add_u32 s%d, s%d, %d" % (sA, sRB, sA, sA, sWV, sA, sT2, sT2, sH, sH, sT3, sT2, 8*KVP_STRIDE))
    a("s_cmp_eq_u32 s%d, 52\ns_cselect_b32 s3, 3, 7\nv_and_b32 v165, s3, v0\nv_lshlrev_b32 v165, 4, v165\nv_lshrrev_b32 v164, 3, v0\nv_mul_u32_u24 v164, %d, v164\nv_add_u32 v164, v164, v165" % (sA, KVP_STRIDE))
    lds_wait(LF_XK, None, 4, 162, 0)
    a("ds_read_b128 v[8:11], v174\nds_read_b128 v[12:15], v174 offset:16384\nds_read_b128 v[16:19], v175\nds_read_b128 v[20:23], v175 offset:16384\ns_waitcnt lgkmcnt(2)")
    for k in range(2): padd(8 + 2*k, 8 + 2*k, 12 + 2*k, True)
    for k in range(4): a("v_bfi_b32 v%d, v3, s%d, v%d" % (8 + k, TB[k], 8 + k))
    a("buffer_store_dwordx4 v[8:11], v1, %s, s%d offen sc1\ns_waitcnt lgkmcnt(0)" % (S(S_WS), sT1))
    for k in range(2): padd(16 + 2*k, 16 + 2*k, 20 + 2*k, True)
    for k in range(4): a("v_bfi_b32 v%d, v3, s%d, v%d" % (16 + k, TB[k], 16 + k))
    a("buffer_store_dwordx4 v[16:19], v4, %s, s%d offen sc1" % (S(S_WS), sT1))
    csig(LF_Q)
    stamp(4, 1)
    a("s_cmp_gt_u32 s%d, 52\ns_cbranch_scc1 L_nored\ns_mov_b32 s%d, %d\ns_waitcnt vmcnt(0)" % (sA, sSpin, SPIN))
    a.label("L_red")
    a("buffer_load_dwordx4 v[8:11], v164, %s, s%d offen sc1\nbuffer_load_dwordx4 v[12:15], v164, %s, s%d offen sc1\ns_waitcnt vmcnt(0)" % (S(S_WS), sT2, S(S_WS), sT3))
    tagchk(16, list(range(8, 16)))
    a("s_cbranch_vccz L_redok\ns_sleep 1\ns_sub_u32 s%d, s%d, 1\ns_cbranch_scc0 L_red" % (sSpin, sSpin))
    a.label("L_redok")
    for k in range(2): padd(8 + 2*k, 8 + 2*k, 12 + 2*k, True)
    a("s_nop 1")
    for k in range(4): a("v_add_f32_dpp v%d, v%d, v%d row_ror:8 row_mask:0xf bank_mask:0xf" % (8 + k, 8 + k, 8 + k))
    for op in ("v_permlane16_swap_b32", "v_permlane32_swap_b32"):
        for k in range(4): a("v_mov_b32 v%d, v%d" % (12 + k, 8 + k))
        a("s_nop 1")
        for k in range(4): a("%s v%d, v%d" % (op, 8 + k, 12 + k))
        a("s_nop 0")
        for k in range(2): padd(8 + 2*k, 8 + 2*k, 12 + 2*k, True)
    for k in range(4): a("v_bfi_b32 v%d, v3, s%d, v%d" % (8 + k, TB[k], 8 + k))
    a("s_mov_b64 exec, 0xff\nbuffer_store_dwordx4 v[8:11], v165, %s, s%d offen sc1\ns_mov_b64 exec, -1" % (S(S_WS), sH))
    a.label("L_nored")
    for s in range(OPT["nbe"], 4): loadB(s, False)

def epilogue_qh():
    CT = 88; RS = 104; BF = 124; KC = 140; TMP = 144
    a("v_and_b32 v4, 15, v0\nv_lshlrev_b32 v4, 2, v4\ns_lshl_b32 s3, s%d, 8\ns_add_u32 s3, s3, %d\nv_add_u32 v4, s3, v4\ns_lshl_b32 s3, s%d, 8\ns_add_u32 s3, s3, %d\nv_and_b32 v3, 48, v0\nv_add_u32 v3, s3, v3" % (sM, STATL, sN, CSL))
    for t in range(4): a("ds_read_b128 %s, v3 offset:%d" % (R4(CT + 4*t), 64*t))
    for i in range(4): a("ds_read2_b32 %s, v4 offset0:%d offset1:%d" % (R2(RS + 2*i), 16*i, 128 + 16*i))
    a("ds_read_b32 v5, v6 offset:%d" % (FASTL - LFLAG))
    a2_soff(sT2, sM, lambda: a("s_mul_i32 s3, s%d, 6\ns_lshl_b32 s%d, s%d, 1\ns_add_u32 s3, s3, s%d\ns_add_u32 s3, s3, 2" % (sJJ, sT1, sN, sT1)))
    flag_off(sT1, sT2, sM)
    a("s_add_u32 s%d, s%d, 4096\ns_add_u32 s%d, s%d, 4\ns_waitcnt vmcnt(0)" % (sT3, sT2, sA, sT1))
    for k in range(8): unpack(BF + 2*k, vB1 + k)
    consts(KC)
    a("s_waitcnt lgkmcnt(0)\nv_readfirstlane_b32 s%d, v5" % sFAST)
    vm = VM(); nb = 0
    for u in range(2):
        for i in range(4):
            P = [(acc(i, 2*u + q//2) + 2*(q % 2), CT + 4*(2*u + q//2) + 2*(q % 2), BF + 4*(2*u + q//2) + 2*(q % 2), TMP + 2*q) for q in range(4)]
            sv = OPT["hz"]; OPT["hz"] = sv & ~512
            lines = capture(lambda: gelu(P, RS + 2*i, KC, P[0][0], False)); OPT["hz"] = sv
            bq = []
            if i in (1, 2) and nb < OPT["nbe"]: bq = memchunks(capture(lambda: loadB(nb, False))); nb += 1; vm.add("B", 5)
            for k, ln in enumerate(lines):
                if ln.startswith(".p2"): a.raw(ln)
                else: a(ln)
                if bq and k % 8 == 0 and k: a(bq.pop(0))
            assert not bq
            st_a2("buffer_store_dwordx4 %s, v1, %s, s%d offen offset:%d" % (R4(P[0][0]), S(S_WS), (sT2, sT3)[u], 1024*i), 1 + u); vm.add("H%d" % u)
            if u == 1 and i == 0: put_flag(sT1, 1, 152)
        if u == 0:
            stamp(3, 1)
            if OPT["go"] == 1: csig(LF_GO)
    if OPT["go"] == 2: csig(LF_GO)
    stamp(6); stamp(4, 1)
    lds_wait(LF_RING, None, 8, 152, 0)
    a("v_mov_b32 v152, 0\nv_mov_b32 v153, 0\nv_mov_b32 v154, 0\nv_mov_b32 v155, 0\ns_lshl_b32 s3, s%d, 12\nv_add_u32 v3, s3, v1" % sWV)
    for k in range(4): a("ds_write_b128 v3, v[152:155] offset:%d" % (IMG + 1024*k))
    put_flag(sA, 0, 156)
    a("s_waitcnt lgkmcnt(0)"); csig(LF_IMG)
    for s in range(nb, 4): loadB(s, False)
    stamp(7)

def gemm2_early():
    stamp(8); stamp(5, 1)
    vm = VM()
    vF, vG, vR, vP, vL = 148, 150, 152, 158, 159
    X0 = 160; XB = Breg(6, 0, False); B2F = XB + 4; XS0 = Areg(6, 0, False)
    def XS(i, k): return XS0 + 8*i + 2*k
    a("s_lshl_b32 s%d, s%d, 9\ns_add_u32 s%d, s%d, 0x%x\ns_lshl_b32 s3, s%d, 2\ns_add_u32 s%d, s%d, s3" % (sT3, sRT, sT3, sT3, FH, sK0, sT3, sT3))
    a("v_lshlrev_b32 v3, 2, v0\ns_mov_b64 exec, 0xfff\nbuffer_load_dword v%d, v3, %s, s%d offen%s\ns_mov_b64 exec, -1" % (vF, S(S_WS), sT3, PLD))
    a("s_mul_i32 s3, s%d, 40\nv_add_u32 v84, s3, v0\nv_mul_u32_u24 v85, 6554, v84\nv_lshrrev_b32 v85, 16, v85\nv_mul_u32_u24 v86, 10, v85\nv_sub_u32 v84, v84, v86" % sWV)
    a("v_mul_u32_u24 v86, 1280, v85\nv_lshl_add_u32 v%d, v84, 4, v86\nv_lshlrev_b32 v%d, 4, v84" % (vG, vG + 1))
    a("v_mov_b32 v86, 0x%x\nv_cmp_gt_u32 vcc, 40, v0\ns_mul_i32 s%d, s%d, %d\ns_mul_i32 s%d, s%d, 160\nv_cndmask_b32 v%d, v86, v%d, vcc\ns_add_u32 s%d, s%d, s%d" % (OOB, sT1, sRT, 64*1280, sT2, sCT, vG, vG, sT1, sT1, sT2))
    a("v_and_b32 v85, 15, v85\nv_bfe_u32 v86, v85, 1, 2\nv_lshlrev_b32 v84, 1, v84\nv_xor_b32 v84, v84, v86\nv_mul_u32_u24 v85, 320, v85\nv_lshl_add_u32 v%d, v84, 4, v85\nv_xor_b32 v%d, 16, v%d" % (vR, vR + 1, vR))
    for k in range(1, 3): a("v_add_u32 v%d, %d, v%d\nv_add_u32 v%d, %d, v%d" % (vR + 2*k, 2*k*PREG, vR, vR + 1 + 2*k, 2*k*PREG, vR + 1))
    paddr(vP, 84, 85)
    a("s_mul_i32 s3, s%d, %d\nv_add_u32 v%d, s3, v%d\ns_waitcnt vmcnt(0)\nv_cmp_ne_u32 vcc, s%d, v%d\ns_mov_b32 s%d, vcc_lo" % (sWV, PREG, vP, vP, sTAG, vF, sK1))
    def gate(ks, name):
        mask = sum(1 << k for k in ks)
        a("s_and_b32 s3, s%d, 0x%x\ns_cbranch_scc1 L_g%s" % (sK1, mask, name))
        a.label("L_g%s_b" % name)
        OUTLINE.extend(["L_g%s:" % name, "  s_mov_b32 s%d, %d" % (sSpin, SPIN), "  s_mov_b64 exec, 0xfff", "L_g%s_l:" % name,
            "  buffer_load_dword v%d, v3, %s, s%d offen%s" % (vF, S(S_WS), sT3, PLD), "  s_waitcnt vmcnt(0)", "  v_cmp_ne_u32 vcc, s%d, v%d" % (sTAG, vF), "  s_mov_b32 s%d, vcc_lo" % sK1,
            "  s_and_b32 s3, s%d, 0x%x" % (sK1, mask), "  s_cbranch_scc0 L_g%s_d" % name, "  s_sleep %d" % OPT["slp"], "  s_sub_u32 s%d, s%d, 1" % (sSpin, sSpin), "  s_cbranch_scc0 L_g%s_l" % name,
            "L_g%s_d:" % name, "  s_mov_b64 exec, -1", "  s_branch L_g%s_b" % name])
    gate(KS_C[:4], "a")
    stamp(9); stamp(6, 1); stamp(1, 2)
    for s in range(4): loadA(s, False); vm.add("A%d" % s, 4)
    carry = []
    if OPT["yld"]: lds_addr(vL, LF_Y, sWV); a("ds_read_b32 v%d, v%d" % (vF + 1, vL))
    def yield_check():
        l = a.newlabel("Ly")
        a("s_waitcnt lgkmcnt(0)\nv_cmp_eq_u32 vcc, 1, v%d\ns_cbranch_vccnz %s" % (vF + 1, l))
        a.label(l + "_b")
        OUTLINE.extend([l + ":", "  s_mov_b32 s%d, %d" % (sSpin, SPIN), l + "_l:", "  s_sleep 1", "  ds_read_b32 v%d, v%d" % (vF + 1, vL), "  s_waitcnt lgkmcnt(0)", "  v_cmp_eq_u32 vcc, 1, v%d" % (vF + 1),
                        "  s_cbranch_vccz %s_b" % l, "  s_sub_u32 s%d, s%d, 1" % (sSpin, sSpin), "  s_cbranch_scc0 %s_l" % l, "  s_branch %s_b" % l])
    GK = OPT["gk"]
    for s in range(8):
        vm.wait("A%d" % s, "B%d" % s)
        if OPT["yld"]:
            a("ds_read_b32 v%d, v%d" % (vF + 1, vL)); yield_check()
        stamp(2 + s, 2)
        mm = capture(lambda: g2_step(s, False))
        fill = []
        for (lines, lab, n) in carry: fill += memchunks(lines); vm.add(lab, n)
        carry = []
        gap = max(1, 19 // max(1, len(fill)))
        for k, x in enumerate(mm):
            a(x)
            if fill and (k + 1) % gap == 0: a(fill.pop(0))
        for x in fill: a(x)
        if s == GK - 1:
            vm.wait("F2")
            a("v_cmp_ne_u32 vcc, s%d, v%d\ns_mov_b32 s%d, vcc_lo" % (sTAG, vF, sK1))
        if s + 4 < 10:
            if s == 0: gate(KS_C[4:8], "b")
            carry.append((capture(lambda: loadB(s + 4, False)), "B%d" % (s + 4), 5))
            if s + 4 < 8 or s > GK: carry.append((capture(lambda: loadA(s + 4, False)), "A%d" % (s + 4), 4))
        if s == GK:
            gate(KS_C[8:10], "k")
            for q in range(8, min(10, s + 5)):
                if s < 7: carry.append((capture(lambda: loadA(q, False)), "A%d" % q, 4))
                else: loadA(q, False); vm.add("A%d" % q, 4)
        if s == GK - 3:
            a("s_mov_b64 exec, 0xfff\nbuffer_load_dword v%d, v3, %s, s%d offen%s\ns_mov_b64 exec, -1" % (vF, S(S_WS), sT3, PLD)); vm.add("F2")
        if s == 6:
            def xl():
                for i in range(4): a("s_add_u32 s3, s%d, %d\nbuffer_load_dwordx4 %s, v%d, %s, s3 offen" % (sT1, 16*1280*i, R4(X0 + 4*i), vG, S(S_X)))
                a("buffer_load_dwordx4 %s, v%d, %s, s%d offen" % (R4(XB), vG + 1, S(S_B2), sT2))
            carry.append((capture(xl), "X", 5))
    assert not carry
    lds_wait(LF_Z, None, 4, vF, 1)
    lds_wait(LF_Q, None, 4, vF, 1)
    vm.wait("A9", "B9")
    stamp(10, 2)
    pend = []
    for i in range(4):
        k = 0
        for s in (8, 9):
            for t in range(5):
                mf(Dreg(i, t), Breg(s, t, False), Areg(s, i, False))
                k += 1
                if pend and k >= 4: a(pend.pop(0))
        pend = ["ds_write_b128 v%d, %s offset:%d" % (vP, R4(Dreg(i, t)), 5120*i + 64*t) for t in range(5)]
    stamp(10); stamp(7, 1); stamp(11, 2)
    vm.wait("X")
    for k in range(2): unpack(B2F + 2*k, XB + k)
    for x in pend: a(x)
    for k in range(2, 4): unpack(B2F + 2*k, XB + k)
    lds_addr(vF, LF_PRE, None)
    a("v_mov_b32 v%d, 1" % vL)
    for i in range(4):
        for k in range(4): unpack(XS(i, k), X0 + 4*i + k)
        if i == 0: a("s_mov_b64 exec, 1\ns_waitcnt lgkmcnt(0)\nds_add_u32 v%d, v%d\ns_mov_b64 exec, -1" % (vF, vL))
        for k in range(4): padd(XS(i, k), XS(i, k), B2F + 2*k, True)
    lds_wait_ge(LF_PRE, 4, vF)
    stamp(8, 1)
    RD = 4
    def loc(i, p):
        if p < 4: return p >> 1, (p & 1) * PREG + 5120*i
        p -= 4
        if i < 3: return 2, p * 15360 + 5120*i
        return p >> 1, (p & 1) * PREG
    def rdsum(i, ps):
        for j, p in enumerate(ps):
            b, off = loc(i, p)
            a("ds_read_b128 %s, v%d offset:%d\nds_read_b128 %s, v%d offset:%d" % (R4(RD + 32*(i & 1) + 8*j), vR + 2*b, off, R4(RD + 32*(i & 1) + 8*j + 4), vR + 1 + 2*b, off))
    def addsum(i, base, last=False):
        for j in range(4):
            a("s_waitcnt lgkmcnt(%d)" % (base + 6 - 2*j))
            for k in range(4): padd(XS(i, k), XS(i, k), RD + 32*(i & 1) + 8*j + 2*k, not last)
    a("s_mov_b32 exec_hi, 0xff")
    rdsum(0, range(4))
    for i in range(4):
        if i < 3: rdsum(i + 1, range(4))
        addsum(i, 8 if i < 3 else 0)
        if i == 0: a("s_mov_b64 exec, 1\nds_add_u32 v%d, v%d\ns_mov_b32 exec_lo, -1\ns_mov_b32 exec_hi, 0xff\ns_waitcnt lgkmcnt(0)" % (vF, vL))
    stamp(11); stamp(9, 1); stamp(12, 2)
    a("s_setprio 1")
    for i in range(4):
        lds_wait(LF_T + 4*i, None, 4, vF, 1 if i < 3 else 0)
        rdsum(i, range(4, 8))
        a("s_add_u32 s3, s%d, %d" % (sT1, 16*1280*i))
        addsum(i, 0, i == 3)
        for k in range(4): a("v_cvt_pk_bf16_f32 v%d, v%d, v%d" % (XS(i, 0) + k, XS(i, k), XS(i, k) + 1))
        a("buffer_store_dwordx4 %s, v%d, %s, s3 offen%s" % (R4(XS(i, 0)), vG, S(S_OUT), LDF[OPT["ost"]]))
    a("s_mov_b64 exec, -1")
    stamp(12)

hdr = open("cdna_kernels/%s.s.ref" % BASE).read().split("; Override")[0]
a.raw(hdr.rstrip())
a.raw("; @launch grid=(256,1,1) block=(512,1,1) lds=163840")
a.raw('.amdgcn_target "amdgcn-amd-amdhsa--gfx950"\n.text')
kernel_header(a, KNAME)
a("s_cmp_ge_u32 s2, 256\ns_cbranch_scc1 L_end")
a("s_load_dwordx16 s[36:51], s[0:1], 0\ns_load_dwordx4 s[52:55], s[0:1], 64\ns_load_dwordx2 s[56:57], s[0:1], 80")
a("v_lshrrev_b32 v1, 6, v0\nv_and_b32 v0, 63, v0\nv_readfirstlane_b32 s%d, v1" % sWV)
if OPT["cpf"]:
    a("s_getpc_b64 s[%d:%d]\nL_pc0:\ns_and_b32 s3, s2, 0xf8\ns_add_u32 s3, s3, s%d\ns_mul_i32 s3, s3, 192\ns_min_u32 s3, s3, L_tend-L_pc0-192" % (sEX, sEX+1, sWV))
    for k in range(3): a("s_load_dword s%d, s[%d:%d], s3\ns_add_u32 s3, s3, 64" % (sSpin, sEX, sEX+1))
stamp_init(); stamp(0)
a("s_bfe_u32 s%d, s2, 0x10006\ns_mov_b32 s1, 0" % sTY)
a("s_and_b32 s3, s2, 7\ns_lshl_b32 s3, s3, 1\ns_bfe_u32 s%d, s2, 0x10003\ns_add_u32 s%d, s%d, s3" % (sRB, sRB, sRB))
a("s_bfe_u32 s3, s2, 0x20004\ns_lshr_b32 s%d, s2, 7\ns_lshl_b32 s%d, s%d, 2\ns_add_u32 s%d, s%d, s3" % (sJJ, sJJ, sJJ, sJJ, sJJ))
a("s_and_b32 s3, s2, 7\ns_lshl_b32 s3, s3, 2\ns_bfe_u32 s%d, s2, 0x20003\ns_add_u32 s%d, s%d, s3\ns_lshr_b32 s%d, s2, 5" % (sRT, sRT, sRT, sCT))
a("s_cmp_lt_u32 s%d, 4\ns_cbranch_scc1 L_compute" % sWV)
loader()
a.c("PADS_OFF")
a.label("L_compute")
compute_prologue()
a("s_cmp_lg_u32 s%d, 0\ns_cbranch_scc1 L_cqh" % sTY)
main_loop(0); epilogue_kv(); a("s_branch L_g2early")
a.c("PADS_OFF")
a.label("L_cqh")
main_loop(1); epilogue_qh()
a.label("L_g2early")
gemm2_early()
a.c("PADS_OFF")
a.label("L_alldone")
stamp_store()
a("s_cmp_lg_u32 s2, 0\ns_cbranch_scc1 L_end\ns_cmp_lg_u32 s%d, 4\ns_cbranch_scc1 L_end" % sWV)
a("s_mov_b32 s3, 0x%x\nv_mov_b32 v2, s%d\nv_mov_b32 v3, 0\ns_mov_b64 exec, 1\nbuffer_store_dword v2, v3, %s, s3 offen sc1" % (EPOCH, sTAG, S(S_WS)))
a.label("L_end")
a("s_endpgm")
a.lines.extend(OUTLINE)
a.raw(".p2align 7\n.type L_table,@object\nL_table:")
T = make_table()
for i in range(0, len(T), 8): a.raw("  .long " + ", ".join(str(x) for x in T[i:i+8]))
a.raw(".size L_table, %d\n.set L_tend, L_table + %d" % (4 * len(T), 4 * len(T)))
a.raw('.section .rodata,"a"')
kernel_desc(a, KNAME, 256, 102)
if OPT["hop"]:
    a.lines, heads = add_pads(a.lines, OPT["hop"], 4, 1)
txt = a.text()
if OPT["hop"]:
    for c in range(4): txt = txt.replace("@HEAD%d@" % c, "Lpad%d" % heads[c])
sys.stdout.write(txt)
```

```python
import sys, struct
from asmlib import *
BASE = "parallel_sum__linear_attn_block__dense_activation_gelu__prompt"
KNAME = BASE + "_kernel"
OPT = dict(stamps=0, sm=0, probe=-1, pcls=0, wso=0, hnt=0, fst=0, brot=0, fa=2, fb=1, xs=1, cyc=0, nol=0, hop=0, hpos=1, da=-1, db=-1, dc=0, dwg=100, dwv=0, cp2=0, slp=2, n1=3, cpf=2, win=2, xmap=1, fast=1, kvu=0, qord=0, cprio=0, thr=0, touch=0, shift=2, nojob=0, norot=0, lst=0, kvd=6, lp=3, n2=2, ald=0, bld=0, pld=0, wb=0, wbw=0, ost=1, qk=0, qq=0, mrg=1, s1e=0, kvb=0, ap=1, afirst=1, il=1, qb=0, yld=0, sco=1, scp=1, swp=1, gh=2, bl=0, jst=1, lvm=1)
for arg in sys.argv[1:]:
    k, v = arg.split("="); assert k in OPT, k; OPT[k] = int(v)
STAMPS = OPT["stamps"]
f32 = lambda x: struct.unpack("<I", struct.pack("<f", x))[0]

B2_OFF = 0x900000
KVP_OFF = 0xC00000; KVP_STRIDE = 6912
STAT_OFF = 0xD00000
FLAG_OFF = 0xD10000
EPOCH = FLAG_OFF; FWG = FLAG_OFF + 0x1000; FH = FLAG_OFF + 0x4000
CSP_OFF = 0xD20000
RED_OFF = 0xD50000
STAMP_OFF = 0xE00000
WS_SIZE = 0x1000000
OOB = 0x7f000000
SLOT = 45184
K_OFF = 16384; V_OFF = 26640; HKV_OFF = 36992; HQ_OFF = 26624
JOBL = 2 * SLOT
IMG = 147456
LFLAG = 160000; TAGL = 160064; FASTL = 160128
LF_IMG, LF_XK, LF_PRE, LF_Q, LF_PQ, LF_B, LF_T = 0, 4, 8, 12, 16, 32, 48
GAL = 156672; STATL = 160768; CSL = 161792
EBS = 30720
XK = 122880; PQL = 122880
SPIN = 200000
NKVU = 128 * OPT["kvu"]; NQU = 680 - NKVU; QPER = -(-NQU // 512)
S_X, S_J, S_W1, S_WS, S_P, S_OUT, S_B1, S_B2 = 4, 8, 12, 16, 20, 24, 28, 32
sRB, sJJ, sTY, sWV, sTAG, sM, sN = 58, 59, 60, 61, 62, 63, 64
sT1, sT2, sT3 = 65, 66, 67
sLA, sLP, sLP4, sLH, sIncP, sA, sP, sH, sSlot, sCnt = 68, 69, 70, 71, 72, 73, 74, 75, 76, 77
sORD = 76
sEX = 78; sSpin = 80; sRT, sCT = 81, 82
sK0, sK1, sK2 = 83, 84, 85
sST = 86
sAo0, sAo1, sAo2, sBo0, sBo1, sBo2 = 36, 37, 38, 39, 42, 43
TB = [40, 41, 48, 49]
sDL = 56
sAoF, sBoF, sBoE = 44, 45, 55
sFAST = 54; sPC = 46

a = Asm()
LDF = {0: ' sc1', 1: '', 2: ' nt'}
ALD = LDF[OPT['ald']]; BLD = LDF[OPT['bld']]; PLD = LDF[OPT['pld']]
OUTLINE = []
def srd(d, p, n):
    if p == 56 and OPT["wso"]:
        a("s_add_u32 s%d, s56, 0x%x\ns_addc_u32 s%d, s57, 0\ns_mov_b32 s%d, 0x%x\ns_mov_b32 s%d, 0x20000" % (d, OPT["wso"] << 20, d+1, d+2, n, d+3)); return
    a("s_mov_b32 s%d, s%d\ns_mov_b32 s%d, s%d\ns_mov_b32 s%d, 0x%x\ns_mov_b32 s%d, 0x20000" % (d, p, d+1, p+1, d+2, n, d+3))
def S(d): return "s[%d:%d]" % (d, d+3)
def R4(b): return "v[%d:%d]" % (b, b + 3)
def R2(b): return "v[%d:%d]" % (b, b + 1)
def align8(): a.raw(".p2align 3")

def stamp(idx, mode=0):
    if mode == 0 and OPT["da"] >= 0:
        if idx == 0: a("s_memrealtime s[%d:%d]\ns_waitcnt lgkmcnt(0)\ns_mov_b32 s%d, s%d" % (sST, sST+1, sST + 2, sST))
        if idx in (OPT["da"], OPT["db"]): a("%s s[%d:%d]\ns_waitcnt lgkmcnt(0)\ns_mov_b32 s%d, s%d" % ("s_memtime" if OPT["dc"] else "s_memrealtime", sST, sST+1, sST + (3 if idx == OPT["da"] else 4), sST))
    if mode == 0 and OPT["probe"] == idx:
        a("s_memrealtime s[%d:%d]\ns_waitcnt lgkmcnt(0)\ns_mov_b32 s%d, s%d" % (sST, sST+1, sST + 2, sST))
    if not STAMPS or (mode != OPT["sm"] and idx not in (0, 13)): return
    a("%s s[%d:%d]\ns_waitcnt lgkmcnt(0)\ns_mov_b32 s%d, s%d" % ("s_memtime" if OPT["cyc"] else "s_memrealtime", sST, sST+1, sST + 2 + idx, sST))
def stamp_init():
    if STAMPS:
        for i in range(14): a("s_mov_b32 s%d, 0" % (sST + 2 + i))
def stamp_store():
    if OPT["da"] >= 0:
        a("s_cmp_lg_u32 s2, %d\ns_cbranch_scc1 L_dd\ns_cmp_lg_u32 s%d, %d\ns_cbranch_scc1 L_dd" % (OPT["dwg"], sWV, OPT["dwv"]))
        a("s_sub_u32 s%d, s%d, s%d" % (sST + 4, sST + 4, sST + 3))
        a(("s_lshr_b32 s%d, s%d, 1" if OPT["dc"] else "s_mul_i32 s%d, s%d, 10") % (sST + 4, sST + 4))
        a("s_add_u32 s%d, s%d, 5000\ns_min_u32 s%d, s%d, 100000" % (sST + 4, sST + 4, sST + 4, sST + 4))
        a.label("L_dsp")
        a("s_memrealtime s[%d:%d]\ns_waitcnt lgkmcnt(0)\ns_sub_u32 s3, s%d, s%d\ns_cmp_lt_u32 s3, s%d\ns_cbranch_scc1 L_dsp" % (sST, sST+1, sST, sST + 2, sST + 4))
        a.label("L_dd")
    if OPT["probe"] >= 0:
        a("s_waitcnt vmcnt(0)")
        stamp(13)
        a("s_lshr_b32 s3, s%d, 2\ns_cmp_lg_u32 s3, %d\ns_cbranch_scc1 L_pspd" % (sWV, OPT["pcls"]))
        a.label("L_psp")
        a("s_memrealtime s[%d:%d]\ns_waitcnt lgkmcnt(0)\ns_sub_u32 s3, s%d, s%d\ns_cmp_lt_u32 s3, 10000\ns_cbranch_scc1 L_psp" % (sST, sST+1, sST, sST + 2))
        a.label("L_pspd")
    if not STAMPS: return
    a("s_waitcnt vmcnt(0)")
    stamp(13)
    for i in range(14): a("v_mov_b32 v%d, s%d" % (4 + i, sST + 2 + i))
    a("v_mov_b32 v18, 0\nv_mov_b32 v19, 0\nv_mov_b32 v2, 0\ns_lshl_b32 s3, s2, 3\ns_add_u32 s3, s3, s%d\ns_lshl_b32 s3, s3, 6\ns_add_u32 s3, s3, 0x%x\ns_mov_b64 exec, 1" % (sWV, STAMP_OFF))
    for i in range(4): a("buffer_store_dwordx4 v[%d:%d], v2, %s, s3 offen offset:%d" % (4 + 4*i, 7 + 4*i, S(S_WS), 16*i))
    a("s_mov_b64 exec, -1")

class VM:
    def __init__(self): self.q = []
    def add(self, lab, n=1): self.q += [lab] * n
    def wait(self, *labs):
        idx = [i for i, x in enumerate(self.q) if x in labs]
        if not idx: return
        n = len(self.q) - 1 - max(idx)
        assert n <= 63
        a("s_waitcnt vmcnt(%d)" % n); self.q = self.q[max(idx) + 1:]
def capture(fn):
    n = len(a.lines); fn(); out = a.lines[n:]; del a.lines[n:]; return [x.strip() for x in out]

def st_a2(ops, cls=0):
    if isinstance(ops, str): ops = [ops]
    if not OPT["fast"]:
        for o in ops: a(o + " sc1")
        return
    l = a.newlabel("Lsl")
    a("s_cmp_lg_u32 s%d, 0\ns_cbranch_scc0 %s" % (sFAST, l))
    for o in ops: a(o + (" nt" if OPT["hnt"] & cls else ""))
    a.label(l + "_b")
    OUTLINE.append(l + ":")
    for o in ops: OUTLINE.append("  " + o + " sc1")
    OUTLINE.append("  s_branch %s_b" % l)

def poll(voff, soff, nlanes, vt, name):
    lp = a.newlabel("Lpoll_" + name)
    a("s_mov_b32 s%d, %d\ns_mov_b64 exec, 0x%x" % (sSpin, SPIN, (1 << nlanes) - 1))
    a.label(lp)
    a("buffer_load_dword v%d, v%d, %s, s%d offen%s\ns_waitcnt vmcnt(0)" % (vt, voff, S(S_WS), soff, PLD))
    a("v_cmp_ne_u32 vcc, s%d, v%d\ns_cbranch_vccz %s_d" % (sTAG, vt, lp))
    a("s_sleep %d\ns_sub_u32 s%d, s%d, 1\ns_cbranch_scc0 %s" % (OPT["slp"], sSpin, sSpin, lp))
    a.label(lp + "_d")
    a("s_mov_b64 exec, -1")
def lds_addr(v, off, sw):
    if sw is None: a("v_mov_b32 v%d, %d" % (v, LFLAG + off))
    else: a("s_lshl_b32 s3, s%d, 2\ns_add_u32 s3, s3, %d\nv_mov_b32 v%d, s3" % (sw, LFLAG + off, v))
def lds_signal(off, sw, v):
    lds_addr(v, off, sw)
    a("v_mov_b32 v%d, 1\ns_mov_b64 exec, 1\nds_add_u32 v%d, v%d\ns_mov_b64 exec, -1" % (v + 1, v, v + 1))
def lds_wait(off, sw, cnt, v, slp=1):
    lp = a.newlabel("Llw"); lds_addr(v, off, sw)
    a("s_mov_b32 s%d, %d" % (sSpin, 20 * SPIN))
    a.label(lp)
    a("ds_read_b32 v%d, v%d\ns_waitcnt lgkmcnt(0)\nv_cmp_ne_u32 vcc, %d, v%d\ns_cbranch_vccz %s_d" % (v + 1, v, cnt, v + 1, lp))
    if slp: a("s_sleep %d" % slp)
    a("s_sub_u32 s%d, s%d, 1\ns_cbranch_scc0 %s" % (sSpin, sSpin, lp))
    a.label(lp + "_d")
def lds_wait_ge(off, cnt, v, slp=1):
    lp = a.newlabel("Llg"); lds_addr(v, off, None)
    a("s_mov_b32 s%d, %d" % (sSpin, 20 * SPIN))
    a.label(lp)
    a("ds_read_b32 v%d, v%d\ns_waitcnt lgkmcnt(0)\nv_cmp_gt_u32 vcc, %d, v%d\ns_cbranch_vccz %s_d" % (v + 1, v, cnt, v + 1, lp))
    if slp: a("s_sleep %d" % slp)
    a("s_sub_u32 s%d, s%d, 1\ns_cbranch_scc0 %s" % (sSpin, sSpin, lp))
    a.label(lp + "_d")
def bf16_round(v): a("v_cvt_pk_bf16_f32 v%d, v%d, v%d\nv_lshlrev_b32 v%d, 16, v%d" % (v, v, v, v, v))
def unpack(dst, src): a("v_lshlrev_b32 v%d, 16, v%d\nv_and_b32 v%d, 0xffff0000, v%d" % (dst, src, dst + 1, src))
def padd(d, x, y, scalar):
    if scalar: a("v_add_f32 v%d, v%d, v%d\nv_add_f32 v%d, v%d, v%d" % (d, x, y, d + 1, x + 1, y + 1))
    else: a("v_pk_add_f32 %s, %s, %s" % (R2(d), R2(x), R2(y)))
def tagchk(acc_, regs):
    a("v_xor_b32 v%d, s%d, v%d" % (acc_, TB[0], regs[0]))
    for k, r in enumerate(regs):
        if k: a("v_bitop3_b32 v%d, v%d, v%d, s%d bitop3:0xf6" % (acc_, acc_, r, TB[k % 4]))
    a("v_and_b32 v%d, 0xff, v%d\nv_cmp_ne_u32 vcc, 0, v%d" % (acc_, acc_, acc_))

G_ACC = 4
KS_C = [2, 4, 8, 10, 0, 1, 6, 7]; KS_L = [2, 4, 8, 10]
def g2_setup(late):
    w = sM if late else sWV
    a("v_lshlrev_b32 v1, 4, v0\nv_add_u32 v2, 4096, v1")
    a("s_mul_i32 s%d, s%d, 12" % (sK0, w))
    if late: a("s_lshl_b32 s%d, s%d, 2\ns_add_u32 s%d, s%d, 48\ns_add_u32 s%d, s%d, 64" % (sK1, w, sK1, sK1, sK2, w))
    a("s_mul_i32 s3, s%d, 68" % sRT)
    for (d, k) in ((sAo0, sK0),) + (((sAo1, sK1), (sAo2, sK2)) if late else ()):
        a("s_add_u32 s%d, s3, s%d\ns_lshl_b32 s%d, s%d, 12" % (d, k, d, d))
    a("s_mul_i32 s3, s%d, 5120\ns_add_u32 s3, s3, 0x%x" % (sCT, B2_OFF))
    for (d, k) in ((sBo0, sK0),) + (((sBo1, sK1), (sBo2, sK2)) if late else ()):
        a("s_mul_i32 s%d, s%d, 40960\ns_add_u32 s%d, s%d, s3" % (d, k, d, d))
    if OPT["brot"]: rot_setup(late)
    if OPT["swp"]: a("s_xor_b32 s%d, s%d, %d" % (sDL, sTY, 1 if late else 0))
    else: a("s_mov_b32 s%d, %d" % (sDL, 0 if late else 1))
    a("s_lshl_b32 s3, s%d, 12\ns_add_u32 s%d, s%d, s3\ns_mul_i32 s3, s%d, 40960\ns_add_u32 s%d, s%d, s3" % (sDL, sAoF, sAo0, sDL, sBoF, sBo0))
    if late: a("s_sub_u32 s%d, s%d, s3\ns_add_u32 s%d, s%d, 40960" % (sBoE, sBo0, sBoE, sBoE))
sRA, sRB2 = 57, 0
def rot_setup(late):
    a("s_and_b32 s3, s%d, 3\ns_lshl_b32 s3, s3, 2\ns_lshr_b32 s%d, 0xa842a842, s3\ns_lshr_b32 s%d, 0x76107610, s3" % (sRT, sRA, sRB2))
    if late: a("s_lshl_b32 s%d, s%d, 16\ns_lshr_b32 s3, 0x32103210, s3\ns_and_b32 s3, s3, 0xffff\ns_or_b32 s%d, s%d, s3" % (sRB2, sRB2, sRB2, sRB2))
def step_off(s, late, bases, stride, dst=3, dma=False):
    if OPT["brot"] and s < 8:
        b = bases[3] if s < 4 else (bases[1] if late else bases[0])
        a("s_bfe_u32 s%d, s%d, 0x%x\ns_mul_i32 s%d, s%d, %d\ns_add_u32 s%d, s%d, s%d" % (dst, sRA if s < 4 else sRB2, 0x40000 + 4*(s & 3) + (16 if (dma and s >= 4) else 0), dst, dst, stride, dst, dst, b))
        return
    if s < 4: b, k = bases[3], KS_L[s]
    elif not late: b, k = bases[0], KS_C[s]
    elif s < 8: b, k = bases[1], s - 4
    else: b, k = bases[2], 0
    a("s_add_u32 s%d, s%d, %d" % (dst, b, stride * k))
CB67 = [20, 24, 48, 52, 76, 80, 104, 108, 216, 220]
_free = [g for g in range(4, 244, 4) if g not in CB67]
CACC = _free[:20]; CDB = _free[20:30]; CA_ = _free[30:50]
def Dreg(i, t, late): return G_ACC + (i*5 + t) * 4 if late else CACC[i*5 + t]
def Breg(s, t, late):
    if late: return 84 + 20 * (s % 7) + 4*t
    return CDB[5*(s & 1) + t] if s < 6 else CB67[5*(s - 6) + t]
def Areg(s, i, late): return 224 + 16 * (s & 1) + 4*i if late else CA_[4*(s % 5) + i]
def loadB(s, late):
    step_off(s, late, (sBo0, sBo1, sBo2, sBoF), 40960)
    for t in range(4): a("buffer_load_dwordx4 %s, v1, %s, s3 offen offset:%d%s" % (R4(Breg(s, t, late)), S(S_WS), 1024*t, BLD))
    a("buffer_load_dwordx4 %s, v2, %s, s3 offen%s" % (R4(Breg(s, 4, late)), S(S_WS), BLD))
def loadA(s, late):
    step_off(s, late, (sAo0, sAo1, sAo2, sAoF), 4096)
    for i in range(4): a("buffer_load_dwordx4 %s, v1, %s, s3 offen offset:%d%s" % (R4(Areg(s, i, late)), S(S_WS), 1024*i, ALD))
def dmaB(s):
    step_off(s, False, (sBo0, 0, 0, sBoE), 40960, dma=True)
    a("s_mul_i32 m0, s%d, %d\ns_add_u32 m0, m0, %d\ns_nop 0" % (sM, EBS, 5120*s))
    for t in range(4): a("buffer_load_dwordx4 v1, %s, s3 offen offset:%d%s lds" % (S(S_WS), 1024*t, BLD))
    a("s_add_u32 m0, m0, 4096\ns_nop 0\nbuffer_load_dwordx4 v2, %s, s3 offen%s lds" % (S(S_WS), BLD))
    if OPT["thr"]: a("s_waitcnt vmcnt(%d)" % OPT["thr"])
def a2_soff(dst, m, ks_emit):
    ks_emit()
    a("s_lshl_b32 s%d, s%d, 1\ns_add_u32 s%d, s%d, s%d\ns_mul_i32 s%d, s%d, 68\ns_add_u32 s%d, s%d, s3\ns_lshl_b32 s%d, s%d, 12" % (dst, sRB, dst, dst, m, dst, dst, dst, dst, dst, dst))
def ks_flag(sOff, m, waitn, vt):
    a("s_lshl_b32 s3, s%d, 1\ns_add_u32 s3, s3, s%d\ns_mul_i32 s3, s3, %d\ns_lshr_b32 s%d, s%d, 10\ns_add_u32 s3, s3, s%d\ns_add_u32 s3, s3, 0x%x" % (sRB, m, 512 - 272, sSpin, sOff, sSpin, FH))
    a("v_mov_b32 v%d, s%d\nv_mov_b32 v%d, 0\ns_mov_b64 exec, 1\ns_waitcnt vmcnt(%d)" % (vt, sTAG, vt + 1, waitn))
    st_a2("buffer_store_dword v%d, v%d, %s, s3 offen" % (vt, vt + 1, S(S_WS)))
    a("s_mov_b64 exec, -1\ns_nop 0")
def g2_mfma(D, B, A, first): a("v_mfma_f32_16x16x32_bf16 %s, %s, %s, %s" % (R4(D), R4(B), R4(A), "0" if first else R4(D)))
def g2_flagoff(v, ks):
    packed = sum(k << (4*j) for j, k in enumerate(ks))
    a("v_lshlrev_b32 v%d, 2, v0\ns_mul_i32 s3, s56, 0x1111\ns_add_u32 s3, s3, 0x%x\nv_bfe_u32 v%d, s3, v%d, 4\nv_lshlrev_b32 v%d, 2, v%d" % (v, packed, v, v, v, v))
def g2_step(s, late):
    stamp(2 + s, 2)
    for t in range(5):
        for i in range(4): g2_mfma(Dreg(i, t, late), Breg(s, t, late), Areg(s, i, late), s == 0)
def paddr(v, t1, t2):
    a("v_and_b32 v%d, 15, v0\nv_lshrrev_b32 v%d, 4, v0\nv_bfe_u32 v%d, v0, 1, 2\nv_xor_b32 v%d, v%d, v%d\nv_mul_u32_u24 v%d, 320, v%d\nv_lshl_add_u32 v%d, v%d, 4, v%d" % (v, t1, t2, t1, t1, t2, v, v, v, t1, v))

def make_table():
    T = []
    for ty in range(2):
        for t in range(256):
            ga = []
            for rnd in range(2):
                gi = t + 256 * rnd
                if gi >= 420: ga.append(ga[0]); continue
                n, gi = divmod(gi, 210); hh, gi = divmod(gi, 105); e, dg = divmod(gi, 5)
                DG = 5 * hh + dg; ti, g = DG >> 2, DG & 3
                if ty == 0:
                    col = 0 if e == 20 else 20 * hh + e + 8
                    idx = 3 * ti + (col >> 4) - (1 if ti > 0 else 0)
                    ga.append(XK + n * 8192 + idx * 1024 + (g * 16 + (col & 15)) * 16)
                else:
                    c = 40 + hh if e == 20 else 20 * hh + e
                    ga.append(IMG + n * 4608 + ((c * 4 + g) * 16 + ti * 8 if ti < 2 else 3072 + (c * 4 + g) * 8))
            l = t & 63
            if l >= 56: l = 0
            n, u4 = divmod(l, 28)
            if ty == 0: c4, mul = ((160 + 10*n + u4, 20) if u4 < 10 else (320 + 10*n + u4 - 10, 20) if u4 < 20 else (480 + 8*n + u4 - 20, 48))
            else: c4, mul = ((10*n + u4, 20) if u4 < 10 else (10*n + u4 - 2, 20) if u4 < 12 else (480 + 16 + 16*n + u4 - 12, 48))
            T += [ga[0], ga[1]]
    return T

def order_table(ph):
    wins = {1: [1]*10, 2: [2]*5, 3: [3,3,4], 4: [4,3,3]}[OPT["win"]]
    o = []; b = 0
    for w in wins:
        o += [b + (i + ph) % w for i in range(w)]; b += w
    return sum(x << (4*i) for i, x in enumerate(o))

FLC = 6 if OPT["shift"] >= 2 else 7
def loader():
    lw = sM
    def issue(base, part=(0, 11), filler=()):
        def m0(reg, i, first):
            if base is not None: return "s_add_u32 m0, s%d, %d" % (reg, base + 1024*i)
            return "s_add_u32 m0, s%d, s%d" % (reg, sK2) if first else "s_add_u32 m0, m0, 0x400"
        L = []
        for i in range(4): L.append((m0(sLA, i, i == 0), "buffer_load_dwordx4 v%d, %s, s%d offen lds" % (10+i, S(S_X), sA)))
        for i in range(2): L.append((m0(sLH, i, i == 0), "buffer_load_dwordx4 v%d, %s, s%d offen lds" % (19+i, S(S_W1), sH)))
        for i in range(5): L.append((m0(sLP, i, i == 0), "buffer_load_dwordx4 v%d, %s, s%d offen lds" % (14+i, S(S_P), sP)))
        filler = list(filler)
        for k in range(*part):
            m, d = L[k]
            if k == 10:
                l = a.newlabel("Lnop4")
                a("s_cmp_lg_u32 s%d, 0\ns_cbranch_scc1 %s" % (sLP4, l)); a(m); a("s_nop 0"); a(d); a.label(l)
            else: a(m); a("s_nop 0"); a(d)
            if filler: a(filler.pop(0))
    def nextstage(): a("s_lshr_b64 s[%d:%d], s[%d:%d], 4\ns_and_b32 s3, s%d, 15\ns_add_u32 s3, s3, s64\ns_sub_u32 s73, s3, 10\ns_min_u32 s3, s3, s73\ns_lshl_b32 s%d, s3, 7\ns_mul_i32 s%d, s3, s%d\ns_mul_i32 s%d, s3, %d" % (sORD, sORD+1, sORD, sORD+1, sORD, sA, sP, sIncP, sH, 64*3072))
    def bar(k): stamp(k + 1, 4); a("s_barrier"); stamp(k + 1, 3)
    a("s_sub_u32 s%d, s%d, 4" % (lw, sWV))
    a("v_lshrrev_b32 v2, 3, v0\nv_lshrrev_b32 v3, 4, v0\nv_and_b32 v4, 7, v0")
    a("v_xor_b32 v5, v4, v3\nv_lshlrev_b32 v5, 4, v5")
    a("s_lshl_b32 s3, s%d, 7\ns_lshl_b32 s%d, s%d, 5\ns_add_u32 s3, s3, s%d\ns_mul_i32 s3, s3, 1280" % (sRB, sT1, lw, sT1))
    a("v_mul_u32_u24 v6, 1280, v2\nv_add3_u32 v10, v6, v5, s3")
    a("v_xor_b32 v11, 64, v10\nv_add_u32 v11, 10240, v11\nv_add_u32 v12, 20480, v10\nv_add_u32 v13, 20480, v11")
    a("s_lshl_b32 s%d, s%d, 12" % (sLA, lw))
    def rel(ty, par):
        if OPT["shift"] == 3: o = [(i ^ par) if i < 2 else i for i in range(10)]
        elif ty == OPT["shift"]: o = [par, 1 - par, 2] + [3 + (i ^ par) for i in range(6)] + [9]
        else: o = [i ^ par for i in range(10)]
        return sum(x << (4*i) for i, x in enumerate(o))
    a("s_xor_b32 s3, s%d, s59\ns_and_b32 s3, s3, 1\ns_lshl_b32 s%d, s%d, 1\ns_add_u32 s3, s3, s%d\ns_mov_b32 s%d, 0x%x\ns_mov_b32 s%d, 0x%x" % (sRB, sT1, sTY, sT1, sORD, rel(0,0) & 0xffffffff, sORD+1, rel(0,0) >> 32))
    for k in range(1, 4):
        r = rel(k >> 1, k & 1)
        a("s_cmp_eq_u32 s3, %d\ns_cselect_b32 s%d, 0x%x, s%d\ns_cselect_b32 s%d, 0x%x, s%d" % (k, sORD, r & 0xffffffff, sORD, sORD+1, r >> 32, sORD+1))
    a("s_and_b32 s3, s2, 7\ns_sub_u32 s%d, s3, 5\ns_min_u32 s3, s3, s%d\ns_lshl_b32 s%d, s3, 1" % (sT1, sT1, sN))
    if OPT["norot"]: a("s_mov_b32 s%d, 0" % sN)
    a("s_and_b32 s%d, s%d, 15\ns_add_u32 s%d, s%d, s%d\ns_sub_u32 s3, s%d, 10\ns_min_u32 s%d, s%d, s3\ns_lshl_b32 s%d, s%d, 7\ns_mul_i32 s%d, s%d, %d" % (sP, sORD, sP, sP, sN, sP, sP, sP, sA, sP, sH, sP, 64*3072))
    a("s_mov_b32 s%d, 0x%x\ns_mov_b32 s%d, 0x20000" % (S_X+2, 2048*1280, S_X+3))
    a("s_waitcnt lgkmcnt(0)")
    a("s_mov_b32 s%d, s36\ns_mov_b32 s%d, s37" % (S_X, S_X+1))
    stamp(1)
    issue(0, (0, 4))
    a("v_and_b32 v6, 3, v2\nv_lshrrev_b32 v7, 2, v2\nv_lshl_add_u32 v6, v7, 3, v6\nv_mul_u32_u24 v6, 3072, v6")
    a("v_and_b32 v7, 6, v2\nv_xor_b32 v7, v4, v7\nv_lshl_add_u32 v6, v7, 4, v6")
    a("s_mul_i32 s%d, s%d, 384\ns_lshl_b32 s3, s%d, 7\ns_add_u32 s%d, s%d, s3" % (sT1, sJJ, sTY, sT1, sT1))
    a("s_and_b32 s%d, s%d, 1" % (sT2, lw))
    a("s_lshr_b32 s3, s%d, 1\ns_lshl_b32 s3, s3, 3\ns_add_u32 s3, s3, s%d\ns_mul_i32 s3, s3, 12288\ns_add_u32 s3, s3, s%d" % (lw, sT2, sT1))
    a("v_add_u32 v19, s3, v6\nv_add_u32 v20, 49152, v19")
    a("s_movk_i32 s%d, %d\ns_cmp_eq_u32 s%d, 0\ns_cselect_b32 s%d, %d, s%d\ns_lshl_b32 s3, s%d, 11\ns_add_u32 s%d, s%d, s3" % (sLH, HQ_OFF, sTY, sLH, HKV_OFF, sLH, lw, sLH, sLH))
    srd(S_W1, 44, 640*3072)
    issue(0, (4, 6))
    a("s_lshr_b32 s3, s%d, 1\ns_and_b32 s%d, s3, s%d\ns_cbranch_scc1 L_phmode" % (lw, sLP4, sTY))
    a("s_mov_b32 s%d, %d" % (sIncP, 64*3840))
    a("s_lshr_b32 s3, s%d, 1\ns_add_u32 s3, s3, 1\ns_cmp_eq_u32 s%d, 0\ns_cselect_b32 s3, s3, 0" % (lw, sTY))
    a("s_mul_i32 s%d, s3, 1280\ns_mul_i32 s%d, s%d, 160\ns_add_u32 s%d, s%d, s%d\ns_mul_i32 s%d, s%d, %d\ns_add_u32 s%d, s%d, s%d" % (sT1, sT3, sJJ, sT1, sT1, sT3, sT3, sT2, 32*3840, sT1, sT1, sT3))
    a("s_movk_i32 s%d, %d\ns_cmp_eq_u32 s3, 2\ns_cselect_b32 s%d, %d, s%d\ns_mul_i32 s%d, s%d, 5120\ns_add_u32 s%d, s%d, s%d" % (sLP, K_OFF, sLP, V_OFF, sLP, sT3, sT2, sLP, sLP, sT3))
    a("v_mul_u32_u24 v7, 6554, v0\nv_lshl_add_u32 v5, v0, 4, s%d\ns_movk_i32 s3, 3680\ns_movk_i32 s%d, 3840" % (sT1, sT3))
    for i in range(5):
        a("v_add_u32 v8, %d, v7\nv_lshrrev_b32 v8, 16, v8\nv_and_b32 v9, 12, v8" % (64*i*6554))
        c = 1024*i - (46080 if i >= 3 else 0)
        a("v_add_u32 v%d, 0x%x, v5\nv_mad_u32_u24 v%d, v8, s3, v%d\nv_mad_u32_u24 v%d, v9, s%d, v%d" % (14+i, c & 0xffffffff, 14+i, 14+i, 14+i, sT3, 14+i))
        if i == 2: a("v_lshrrev_b32 v8, 4, v8\nv_mul_u32_u24 v8, 46080, v8\nv_sub_u32 v16, v16, v8")
    srd(S_P, 38, 640*3840)
    a("s_branch L_pdone")
    a.label("L_phmode")
    a("s_mov_b32 s%d, %d" % (sIncP, 64*3072))
    a("s_mul_i32 s3, s%d, %d\ns_add_u32 s3, s3, s%d\ns_add_u32 s3, s3, 128" % (sT2, 32*3072, sT1))
    a("v_add_u32 v14, s3, v6\nv_add_u32 v15, 49152, v14\nv_add_u32 v16, 12288, v14\nv_add_u32 v17, 61440, v14\nv_mov_b32 v18, 0x%x" % OOB)
    a("s_lshl_b32 s3, s%d, 12\ns_add_u32 s%d, s3, %d" % (sT2, sLP, HQ_OFF + 8192))
    srd(S_P, 44, 640*3072)
    a.label("L_pdone")
    a("s_mul_i32 s%d, s%d, s%d" % (sP, sP, sIncP))
    issue(0, (6, 11)); nextstage()
    srd(S_WS, 56, WS_SIZE)
    a("s_getpc_b64 s[%d:%d]\nL_pc1:\ns_add_u32 s%d, s%d, L_table-L_pc1\ns_addc_u32 s%d, s%d, 0" % (sPC, sPC+1, sPC, sPC, sPC+1, sPC+1))
    a("v_lshlrev_b32 v1, 4, v0\ns_lshl_b32 s3, s%d, 10\nv_add_u32 v254, s3, v1\ns_lshl_b32 s3, s%d, 12\nv_add_u32 v5, s3, v254\nv_lshrrev_b32 v21, 1, v5" % (lw, sTY))
    a("v_mov_b32 v22, %d\ns_getreg_b32 s%d, hwreg(HW_REG_XCC_ID, 0, 4)\ns_and_b32 s3, s2, 7\ns_lshl_b32 s3, s3, 5\ns_lshr_b32 s%d, s2, 3\ns_add_u32 s3, s3, s%d\ns_lshl_b32 s3, s3, 2\ns_add_u32 s3, s3, 0x%x\nv_mov_b32 v23, s3" % (TAGL, sFAST, sT1, sT1, FWG))
    a("s_mov_b32 s%d, %d\ns_mov_b32 s%d, 1\ns_branch L_kvi" % (sK2, SLOT, sK1))
    a.label("L_kvl")
    a("s_waitcnt vmcnt(10)\ns_barrier")
    if STAMPS and OPT["sm"] == 3:
        a("s_memrealtime s[%d:%d]\ns_waitcnt lgkmcnt(0)" % (sST, sST+1))
        for k in range(7): a("s_cmp_eq_u32 s%d, %d\ns_cselect_b32 s%d, s%d, s%d" % (sK1, k + 2, sST + 3 + k, sST, sST + 3 + k))
    a("s_lshl_b32 s3, s%d, 2\ns_add_u32 s3, s3, s%d\ns_cmp_lg_u32 s3, %d\ns_cbranch_scc1 L_kvi" % (sK1, lw, 4 * 4 + 3))
    a("ds_read_b32 v6, v22\ns_mov_b64 exec, 1\ns_waitcnt lgkmcnt(0)\nv_xor_b32 v6, s%d, v6\nbuffer_store_dword v6, v23, %s, 0 offen sc1\ns_mov_b64 exec, -1" % (sFAST, S(S_WS)))
    a.label("L_kvi")
    if OPT["cp2"]:
        a("s_cmp_lg_u32 s%d, %d\ns_cbranch_scc1 L_nocp2" % (sK1, OPT["cp2"]))
        a("s_lshr_b32 s3, s2, 3\ns_lshl_b32 s3, s3, 2\ns_add_u32 s3, s3, s%d\ns_lshl_b32 s3, s3, 8\ns_min_u32 s3, s3, L_table-L_pc0-256" % lw)
        for k in range(4): a("s_load_dword s%d, s[%d:%d], s3\ns_add_u32 s3, s3, 64" % (sSpin, sEX, sEX+1))
        a.label("L_nocp2")
    issue(None); nextstage()
    a("s_add_u32 s%d, s%d, %d\ns_cmp_eq_u32 s%d, %d\ns_cselect_b32 s%d, 0, s%d\ns_add_u32 s%d, s%d, 1\ns_cmp_lt_u32 s%d, 9\ns_cbranch_scc1 L_kvl" % (sK2, sK2, SLOT, sK2, 3*SLOT, sK2, sK2, sK1, sK1, sK1))
    a.c("PADS_ON")
    if OPT["lp"]: a("s_setprio %d" % OPT["lp"])
    a("global_load_dwordx2 v[252:253], v21, s[%d:%d]" % (sPC, sPC+1))
    a("v_mov_b32 v6, %d\nds_read_b32 v6, v6" % TAGL)
    g2_setup(True)
    a("v_and_b32 v29, 15, v0\nv_min_u32 v29, 13, v29\nv_lshlrev_b32 v29, 4, v29\ns_mul_i32 s3, s%d, 224\nv_add_u32 v29, s3, v29\nv_lshrrev_b32 v30, 4, v0\nv_lshl_add_u32 v31, v30, 10, v29\nv_and_b32 v30, 0x7ff, v31\nv_add_u32 v29, %d, v29\ns_lshl_b32 s3, s%d, 3\ns_add_u32 s3, s3, s%d\ns_mul_i32 s%d, s3, 10240\ns_add_u32 s%d, s%d, 0x%x" % (lw, CSL, sTY, sJJ, sPC, sPC, sPC, CSP_OFF))
    a("v_add_u32 v255, 4096, v254\nv_cmp_gt_u32 vcc, %d, v254\nv_mov_b32 v3, 0x%x\ns_mov_b64 s[%d:%d], vcc\nv_cndmask_b32 v255, v3, v255, vcc" % ((420 - 256) * 16, OOB, sEX, sEX+1))
    a("s_lshl_b32 s%d, s%d, 10\ns_lshl_b32 s3, s%d, 11\ns_add_u32 s%d, s%d, s3\ns_add_u32 s%d, s%d, 0x%x" % (sT1, lw, sRB, sT1, sT1, sT1, sT1, STAT_OFF - 1024))
    a("s_cmp_eq_u32 s%d, 3\ns_cselect_b32 s%d, 0x%x, s%d\ns_cselect_b32 s%d, -16, 0\ns_cselect_b32 s%d, -16, -1" % (lw, sT1, FWG, sT1, sT2, sT3))
    a("s_waitcnt lgkmcnt(0)\nv_readfirstlane_b32 s%d, v6\ns_waitcnt vmcnt(11)" % sTAG)
    bar(7)
    def csloads():
        for p in range(3): a("s_add_u32 s3, s%d, %d\nbuffer_load_dwordx4 %s, v%d, %s, s3 offen sc1" % (sPC, 4096 * p, R4(36 + 4*p), 31 if p < 2 else 30, S(S_WS)))
    a("s_cmp_eq_u32 s%d, 0\ns_cbranch_scc1 L_ck1\nbuffer_load_dwordx4 v[24:27], v1, %s, s%d offen sc1" % (lw, S(S_WS), sT1))
    a.label("L_ck1")
    issue(0, filler=["\n".join("s_lshr_b32 s%d, s%d, %d" % (TB[k], sTAG, 8*k) for k in range(4)),
          "v_mov_b64 v[4:5], 0\nv_mov_b64 v[6:7], 0\nv_add_u32 v8, %d, v254\nv_add_u32 v9, %d, v1" % (IMG, IMG + 8192),
          "ds_write_b128 v8, v[4:7]\nds_write_b128 v8, v[4:7] offset:4096\nds_write_b128 v9, v[4:7]"])
    a("s_mov_b32 s%d, %d\ns_waitcnt vmcnt(10)\ns_cmp_eq_u32 s%d, 3\ns_cbranch_scc1 L_chk" % (sSpin, SPIN, lw))
    bar(8)
    a("s_cmp_eq_u32 s%d, 0\ns_cbranch_scc1 L_chkok" % lw)
    a.label("L_chk")
    for k in range(4): a("v_xor_b32 v%d, s%d, v%d" % (32 + k, sTAG, 24 + k))
    a("v_or_b32 v3, v32, v34\nv_or_b32 v4, v33, v35\nv_and_b32 v3, s%d, v3\nv_and_b32 v4, s%d, v4\nv_or_b32 v3, v3, v4\nv_cmp_ne_u32 vcc, 0, v3\ns_cbranch_vccz L_chkw" % (sT2, sT3))
    a("s_sleep 8\nbuffer_load_dwordx4 v[24:27], v1, %s, s%d offen sc1\ns_waitcnt vmcnt(0)\ns_sub_u32 s%d, s%d, 1\ns_cbranch_scc0 L_chk" % (S(S_WS), sT1, sSpin, sSpin))
    a.label("L_chkw")
    a("s_cmp_eq_u32 s%d, 3\ns_cbranch_scc1 L_chk3" % lw)
    a("s_lshl_b32 s3, s%d, 8\ns_add_u32 s3, s3, %d\nv_lshl_add_u32 v3, v0, 2, s3\nds_write2st64_b32 v3, v24, v26 offset0:0 offset1:2\ns_branch L_chkok" % (lw, STATL - 256))
    a.label("L_chk3")
    a("s_getreg_b32 s3, hwreg(HW_REG_XCC_ID, 0, 4)\nv_xor_b32 v3, s3, v32")
    for k in range(1, 4): a("v_bitop3_b32 v3, v3, v%d, s3 bitop3:0xf6" % (32 + k))
    a("v_cmp_ne_u32 vcc, 0, v3\ns_and_b32 s3, s2, 7\ns_lshl_b32 s3, s3, 3\ns_lshr_b64 vcc, vcc, s3\ns_and_b32 s3, vcc_lo, 0xff\ns_cselect_b32 s3, 0, 1")
    a("v_mov_b32 v3, %d\nv_mov_b32 v4, s3\nds_write_b32 v3, v4\ns_barrier\ns_branch L_chkok" % FASTL)
    a.label("L_chkok")
    csloads()
    n1 = OPT["n1"]
    for s in range(n1): loadB(s, True)
    a("s_waitcnt vmcnt(%d) lgkmcnt(0)" % (5 * n1 + 3))
    bar(9)
    a("v_mov_b32 v6, %d\nds_read_b32 v6, v6\ns_mov_b32 s%d, %d\ns_waitcnt vmcnt(%d)" % (FASTL, sSpin, SPIN, 5 * n1))
    a.label("L_cchk")
    tagchk(3, list(range(36, 48)))
    a("s_cbranch_vccz L_cchkok\ns_sleep 8")
    csloads()
    a("s_waitcnt vmcnt(0)\ns_sub_u32 s%d, s%d, 1\ns_cbranch_scc0 L_cchk" % (sSpin, sSpin))
    a.label("L_cchkok")
    a("v_pk_add_f32 v[36:37], v[36:37], v[40:41]\nv_pk_add_f32 v[38:39], v[38:39], v[42:43]\ns_mov_b32 exec_hi, 0\nv_pk_add_f32 v[36:37], v[36:37], v[44:45]\nv_pk_add_f32 v[38:39], v[38:39], v[46:47]\ns_mov_b64 exec, -1")
    for op in ("v_permlane16_swap_b32", "v_permlane32_swap_b32"):
        a("v_mov_b64 v[40:41], v[36:37]\nv_mov_b64 v[42:43], v[38:39]\ns_nop 1")
        for k in range(4): a("%s v%d, v%d" % (op, 36 + k, 40 + k))
        a("s_nop 0\nv_pk_add_f32 v[36:37], v[36:37], v[40:41]\nv_pk_add_f32 v[38:39], v[38:39], v[42:43]")
    a("ds_write_b128 v29, v[36:39]")
    stamp(4)
    nb = min(7, n1 + OPT["n2"])
    for s in range(n1, nb): loadB(s, True)
    a("s_mul_i32 s%d, s%d, %d\ns_add_u32 s%d, s%d, 0x%x\ns_waitcnt lgkmcnt(0)\nv_readfirstlane_b32 s%d, v6" % (sH, sJJ, KVP_STRIDE, sH, sH, RED_OFF, sFAST))
    stamp(5)
    a("s_barrier")
    if OPT["lp"]: a("s_setprio 0")
    stamp(6)
    if OPT["nol"]: a("s_waitcnt vmcnt(0)\ns_sleep 100")
    for s in range(nb, 4): loadB(s, True)
    for s in range(OPT["kvd"]): dmaB(s)
    a("s_lshl_b32 s%d, s%d, 9\ns_add_u32 s%d, s%d, 0x%x\ns_lshl_b32 s3, s%d, 2\ns_add_u32 s%d, s%d, s3\ns_lshl_b32 s3, s%d, 2\ns_add_u32 s%d, s%d, s3" % (sORD+1, sRT, sORD+1, sORD+1, FH, sK0, sORD, sORD+1, sK1, sORD+1, sORD+1))
    for k in range(4): step_off(4 + k, True, (sAo0, sAo1, sAo2, sAoF), 4096, sLA + k)
    nb2 = max(nb, 4)
    nbq = nb2
    if not (OPT["bl"] and OPT["afirst"]):
        for s in range(nb2, 7): loadB(s, True)
        nbq = 7
    a("s_cmp_lg_u32 s%d, 0\ns_cbranch_scc1 L_lq1" % sTY)
    for s in range(nbq, 7): loadB(s, True)
    nb2 = 7
    a("s_lshl_b32 s%d, s%d, 4\ns_mul_i32 s%d, s%d, %d\ns_add_u32 s%d, s%d, 0x%x\ns_mul_i32 s3, s%d, %d\ns_add_u32 s%d, s%d, s3\nv_mov_b32 v3, 0xff" % (sT2, sJJ, sT2, sT2, KVP_STRIDE, sT2, sT2, KVP_OFF, sRB, KVP_STRIDE, sT1, sT2))
    a("s_lshl_b32 s%d, s%d, 2\ns_add_u32 s%d, s%d, s%d\ns_lshl_b32 s3, s%d, 7\ns_add_u32 s%d, s%d, s3\ns_add_u32 s%d, s%d, s3\ns_add_u32 s%d, s%d, %d" % (sA, sRB, sA, sA, lw, sA, sT2, sT2, sH, sH, sT3, sT2, 8*KVP_STRIDE))
    a("s_cmp_eq_u32 s%d, 52\ns_cselect_b32 s3, 3, 7\nv_and_b32 v21, s3, v0\nv_lshlrev_b32 v21, 4, v21\nv_lshrrev_b32 v20, 3, v0\nv_mul_u32_u24 v20, %d, v20\nv_add_u32 v20, v20, v21" % (sA, KVP_STRIDE))
    stamp(1, 1)
    a("s_setprio 2")
    lds_wait(LF_XK, None, 4, 4, OPT["xs"])
    stamp(7); stamp(3, 1)
    a("ds_read_b128 v[4:7], v252\nds_read_b128 v[8:11], v252 offset:16384\nds_read_b128 v[12:15], v253\nds_read_b128 v[16:19], v253 offset:16384")
    a("s_waitcnt lgkmcnt(2)\nv_pk_add_f32 v[4:5], v[4:5], v[8:9]\nv_pk_add_f32 v[6:7], v[6:7], v[10:11]")
    for k in range(4): a("v_bfi_b32 v%d, v3, s%d, v%d" % (4 + k, TB[k], 4 + k))
    a("buffer_store_dwordx4 v[4:7], v254, %s, s%d offen sc1" % (S(S_WS), sT1))
    a("s_waitcnt lgkmcnt(0)\nv_pk_add_f32 v[12:13], v[12:13], v[16:17]\nv_pk_add_f32 v[14:15], v[14:15], v[18:19]")
    for k in range(4): a("v_bfi_b32 v%d, v3, s%d, v%d" % (12 + k, TB[k], 12 + k))
    a("buffer_store_dwordx4 v[12:15], v255, %s, s%d offen sc1" % (S(S_WS), sT1))
    for s in range(OPT["kvd"], 6): dmaB(s)
    a("s_waitcnt vmcnt(%d)" % (2 if OPT["kvd"] == 6 else 0))
    lds_signal(LF_B, lw, 22)
    nkb = min(7, nb2 + OPT["kvb"])
    for s in range(nb2, nkb): loadB(s, True)
    stamp(4, 1)
    a("s_cmp_gt_u32 s%d, 52\ns_cbranch_scc1 L_nored\ns_mov_b32 s%d, %d\ns_waitcnt vmcnt(0)" % (sA, sSpin, SPIN))
    a.label("L_red")
    a("buffer_load_dwordx4 v[4:7], v20, %s, s%d offen sc1\nbuffer_load_dwordx4 v[8:11], v20, %s, s%d offen sc1\ns_waitcnt vmcnt(0)" % (S(S_WS), sT2, S(S_WS), sT3))
    tagchk(12, list(range(4, 12)))
    a("s_cbranch_vccz L_redok\ns_sleep 1\ns_sub_u32 s%d, s%d, 1\ns_cbranch_scc0 L_red" % (sSpin, sSpin))
    a.label("L_redok")
    stamp(5, 1)
    a("v_pk_add_f32 v[4:5], v[4:5], v[8:9]\nv_pk_add_f32 v[6:7], v[6:7], v[10:11]\ns_nop 1")
    for k in range(4): a("v_add_f32_dpp v%d, v%d, v%d row_ror:8 row_mask:0xf bank_mask:0xf" % (4 + k, 4 + k, 4 + k))
    for op in ("v_permlane16_swap_b32", "v_permlane32_swap_b32"):
        a("v_mov_b64 v[8:9], v[4:5]\nv_mov_b64 v[10:11], v[6:7]\ns_nop 1")
        for k in range(4): a("%s v%d, v%d" % (op, 4 + k, 8 + k))
        a("s_nop 0\nv_pk_add_f32 v[4:5], v[4:5], v[8:9]\nv_pk_add_f32 v[6:7], v[6:7], v[10:11]")
    for k in range(4): a("v_bfi_b32 v%d, v3, s%d, v%d" % (4 + k, TB[k], 4 + k))
    a("s_mov_b64 exec, 0xff\nbuffer_store_dwordx4 v[4:7], v21, %s, s%d offen sc1\ns_mov_b64 exec, -1" % (S(S_WS), sH))
    a.label("L_nored")
    lds_signal(LF_Q, None, 22)
    if OPT["qk"]: lds_wait(LF_Q, None, 4, 22)
    a("s_setprio 0")
    for s in range(nkb, 7): loadB(s, True)
    a("s_branch L_la")
    a.label("L_lq1")
    for s in range(OPT["kvd"], 6): dmaB(s)
    for s in range(nb2, 7): loadB(s, True)
    a("s_lshr_b32 s%d, s%d, 1\ns_and_b32 s%d, s%d, 1" % (sA, lw, sP, lw))
    a2_soff(sT2, sA, lambda: a("s_lshl_b32 s3, s%d, 1\ns_add_u32 s3, s3, s%d\ns_add_u32 s3, s3, 48" % (sJJ, sP)))
    a2_soff(sT3, sA, lambda: a("s_lshr_b32 s3, s%d, 1\ns_add_u32 s3, s3, 64" % sJJ))
    a("s_lshl_b32 s3, s%d, 1\ns_add_u32 s3, s3, s%d\ns_and_b32 s3, s3, 3\ns_lshl_b32 s3, s3, 8\ns_add_u32 s%d, s%d, s3" % (sJJ, sP, sT3, sT3))
    a("s_lshl_b32 s3, s%d, 10\ns_add_u32 s%d, s%d, s3" % (lw, sH, sH))
    stamp(1, 1)
    a("s_waitcnt vmcnt(%d)" % (5 * (7 - nb2)))
    lds_signal(LF_B, lw, 22)
    AF = OPT["afirst"]
    if AF:
        a("v_lshrrev_b32 v4, 1, v254\nv_add_u32 v4, %d, v4\nds_write_b64 v4, v[252:253]" % GAL)
        stamp(8); stamp(6, 1)
        g2_flagoff(3, KS_L)
        poll(3, sORD, 4, 4, "hq")
        stamp(9); stamp(7, 1); stamp(1, 2)
        if OPT["ap"]: a("s_setprio %d" % OPT["ap"])
        vq = VM(); G = 108
        loadA(0, True); loadA(1, True); vq.add("A0", 4); vq.add("A1", 4)
        lateB = list(range(nbq, 7))
        if lateB: loadB(lateB.pop(0), True); vq.add("B", 5)
        for s in range(4):
            vq.wait("A%d" % s)
            g2_step(s, True)
            if s < 2: loadA(s + 2, True); vq.add("A%d" % (s + 2), 4)
            if lateB and s < 2: loadB(lateB.pop(0), True); vq.add("B", 5)
            if s == OPT["gh"]:
                a("v_cndmask_b32 v%d, v1, v2, s[%d:%d]" % (G + 10, sEX, sEX+1))
                a("buffer_load_dwordx4 %s, v1, %s, s%d offen sc1\nbuffer_load_dwordx4 %s, v%d, %s, s%d offen sc1" % (R4(G), S(S_WS), sH, R4(G + 4), G + 10, S(S_WS), sH)); vq.add("G", 2)
        assert not lateB
        stamp(8, 1)
    PQ = 224; AD = 248
    W32, W16, O, RM, G = (84, 98, 108, 156, 108) if AF else (4, 18, 28, 76, 28)
    if not AF: a("v_cndmask_b32 v%d, v1, v2, s[%d:%d]" % (G + 10, sEX, sEX+1))
    def gl(): a("buffer_load_dwordx4 %s, v1, %s, s%d offen sc1\nbuffer_load_dwordx4 %s, v%d, %s, s%d offen sc1" % (R4(G), S(S_WS), sH, R4(G + 4), G + 10, S(S_WS), sH))
    if AF:
        a("s_lshl_b32 s3, s%d, 9\ns_add_u32 s3, s3, %d\nv_lshl_add_u32 v%d, v0, 3, s3\nds_read_b64 %s, v%d" % (lw, GAL, G + 12, R2(G + 12), G + 12))
    else: a("v_mov_b64 %s, v[252:253]" % R2(G + 12))
    import re
    def ag(x): a(re.sub(r"@(\d+)@", lambda m: str(G + int(m.group(1))), x))
    ag("v_and_b32 v@16@, 15, v0\nv_lshrrev_b32 v@15@, 4, v0\ns_mul_i32 s3, s%d, 4608\ns_add_u32 s3, s3, %d" % (sP, IMG))
    ag("v_lshl_add_u32 v@17@, v@16@, 2, v@15@\nv_lshl_add_u32 v%d, v@17@, 3, s3\nv_lshl_add_u32 v%d, v@17@, 4, s3" % (AD+1, AD))
    ag("v_and_b32 v@18@, 3, v@16@\nv_min_u32 v@18@, 1, v@18@\nv_cmp_eq_u32 vcc, 2, v@16@\nv_lshlrev_b32 v@16@, 4, v@16@\nv_lshl_add_u32 v%d, v@15@, 10, v@16@\nv_cndmask_b32 v@18@, v@18@, 0, vcc" % (AD+4))
    ag("v_add_u32 v@18@, 40, v@18@\nv_lshl_add_u32 v@18@, v@18@, 2, v@15@\nv_lshl_add_u32 v%d, v@18@, 3, s3\nv_lshl_add_u32 v%d, v@18@, 4, s3\nv_mov_b32 v%d, 0x358637bd" % (AD+3, AD+2, AD+5))
    lds_wait(LF_PQ, lw, 1, 254, 2)
    ag("s_setprio 2")
    ag("s_mul_i32 s3, s%d, 6144\ns_add_u32 s3, s3, %d\nv_add_u32 v@20@, s3, v1\nv_lshl_add_u32 v@21@, v0, 3, s3" % (lw, PQL))
    for i in range(4): ag("ds_read_b128 %s, v@20@ offset:%d\nds_read_b64 %s, v@21@ offset:%d" % (R4(PQ + 6*i), 1024*i, R2(PQ + 6*i + 4), 4096 + 512*i))
    if not AF: gl()
    ag("s_mov_b32 s%d, %d" % (sSpin, SPIN))
    a.label("L_gather")
    a("s_waitcnt vmcnt(0)")
    tagchk(G + 8, list(range(G, G + 8)))
    a("s_cbranch_vccz L_gatherok\ns_sleep %d" % OPT["slp"])
    gl()
    a("s_sub_u32 s%d, s%d, 1\ns_cbranch_scc0 L_gather\ns_waitcnt vmcnt(0)" % (sSpin, sSpin))
    a.label("L_gatherok")
    stamp(7); stamp(2, 1)
    if OPT["yld"]: lds_signal(LF_PQ, lw, 254)
    for k in range(4): a("v_cvt_pk_bf16_f32 v%d, v%d, v%d" % (G + k, G + 2*k, G + 1 + 2*k))
    a("ds_write_b64 v%d, %s\nds_write_b64 v%d, %s\ns_waitcnt lgkmcnt(0)" % (G + 12, R2(G), G + 13, R2(G + 2)))
    lds_signal(LF_IMG, None, 254)
    lds_wait(LF_IMG, None, 4, 254, 0)
    stamp(3, 1)
    for to in range(3): a("ds_read_b128 %s, v%d offset:%d" % (R4(W32 + 4*to), AD, 1024*to))
    a("ds_read_b128 %s, v%d" % (R4(W32 + 12), AD+2))
    for to in range(1, 3): a("ds_read_b64 %s, v%d offset:%d" % (R2(W16 + 2*to), AD+1, 3072 + 512*to))
    a("ds_read_b64 %s, v%d offset:3072\ns_waitcnt lgkmcnt(0)" % (R2(W16 + 6), AD+3))
    def Oreg(i, to): return O + 16*(i % 3) + 4*to
    def omfma(i):
        for to in range(4): a("v_mfma_f32_16x16x32_bf16 %s, %s, %s, 0" % (R4(Oreg(i, to)), R4(W32 + 4*to), R4(PQ + 6*i)))
    def omfma2(i):
        for to in (3, 1, 2): a("v_mfma_f32_16x16x16_bf16 %s, %s, %s, %s" % (R4(Oreg(i, to)), R2(W16 + 2*to), R2(PQ + 6*i + 4), R4(Oreg(i, to))))
    def oden(i):
        d = Oreg(i, 3)
        for j in range(3): a("v_add_f32 v%d, v%d, v%d" % (d + j, d + j, AD+5))
        for j in range(3): a("v_rcp_f32 v%d, v%d" % (d + j, d + j))
    def ofin(i):
        d = Oreg(i, 3)
        for to, sel in ((0, 0), (2, 1), (1, 2)):
            for q in range(2):
                x = Oreg(i, to) + 2*q
                if OPT["sco"]: a("v_mul_f32 v%d, v%d, v%d\nv_mul_f32 v%d, v%d, v%d" % (x, x, d + sel, x + 1, x + 1, d + sel))
                else: a("v_pk_mul_f32 %s, %s, %s op_sel:[0,%d] op_sel_hi:[1,%d]" % (R2(x), R2(x), R2(d + (sel & 2)), sel & 1, sel & 1))
        for k in (4, 5, 0, 1, 2, 3): a("v_cvt_pk_bf16_f32 v%d, v%d, v%d" % (PQ + 6*i + k if k < 4 else RM + 2*i + k - 4, Oreg(i, 0) + 2*k, Oreg(i, 0) + 2*k + 1))
    def ost(i): st_a2("buffer_store_dwordx4 %s, v1, %s, s%d offen offset:%d" % (R4(PQ + 6*i), S(S_WS), sT2, 1024*i))
    for i in range(3): omfma(i)
    for i in range(3): omfma2(i)
    oden(0); ofin(0); omfma(3); ost(0); oden(1); oden(2); omfma2(3); ofin(1); ost(1); oden(3); ofin(2); ost(2); ofin(3); ost(3)
    for k in range(2): a("v_permlane16_swap_b32 v%d, v%d" % (RM + k, RM + 2 + k))
    for k in range(2): a("v_permlane16_swap_b32 v%d, v%d" % (RM + 4 + k, RM + 6 + k))
    a("s_nop 1")
    for k in range(4): a("v_permlane32_swap_b32 v%d, v%d" % (RM + k, RM + 4 + k))
    st_a2("buffer_store_dwordx4 %s, v%d, %s, s%d offen" % (R4(RM), AD+4, S(S_WS), sT3))
    stamp(4, 1)
    if OPT["yld"]: lds_signal(LF_PQ, lw, 254)
    ks_flag(sT2, sA, 0, 254)
    lds_signal(LF_Q, None, 252)
    stamp(5, 1)
    a("s_setprio 0")
    if AF:
        loadB(7, True); loadB(8, True)
        a("s_branch L_oslow2")
    a.label("L_la")
    stamp(8); stamp(6, 1)
    g2_flagoff(3, KS_L)
    poll(3, sORD, 4, 4, "hl")
    stamp(9); stamp(7, 1); stamp(1, 2)
    if OPT["ap"]: a("s_setprio %d" % OPT["ap"])
    vm = VM()
    AO = [124, 144, 224, 124]
    so = [sLA, sLA + 1, sLA + 2, sLA + 3, sAo2]
    def ldo(i):
        for s in range(5): a("buffer_load_dwordx4 %s, v1, %s, s%d offen offset:%d%s" % (R4(AO[i] + 4*s), S(S_WS), so[s], 1024*i, ALD))
        for s in range(5): vm.add("O%d%d" % (i, s))
    loadA(0, True); loadA(1, True); vm.add("A0", 4); vm.add("A1", 4)
    for s in range(4):
        vm.wait("A%d" % s)
        g2_step(s, True)
        if s < 2: loadA(s + 2, True); vm.add("A%d" % (s + 2), 4)
        if s == 1:
            a("v_lshlrev_b32 v3, 2, v0\ns_mov_b64 exec, 15\nbuffer_load_dword v3, v3, %s, s%d offen%s\ns_mov_b64 exec, -1" % (S(S_WS), sORD + 1, PLD)); vm.add("F")
            loadB(7, True); loadB(8, True); vm.add("B", 10)
        if s == 2:
            vm.wait("F")
            a("v_cmp_ne_u32 vcc, s%d, v3\ns_and_b32 s%d, vcc_lo, 15\ns_cbranch_scc1 L_oslow" % (sTAG, sK0))
            ldo(0)
    ldo(1); ldo(2)
    a.label("L_oback")
    mark = len(a.lines)
    a.label("L_oslow")
    g2_step(3, True)
    a.label("L_oslow2")
    a("s_setprio 0\nv_lshlrev_b32 v3, 2, v0")
    stamp(9, 1)
    poll(3, sORD + 1, 4, 248, "o")
    q = list(vm.q); ldo(0); ldo(1); ldo(2); vm.q = q
    a("s_branch L_oback")
    SLOW = a.lines[mark:]; del a.lines[mark:]
    a("s_setprio 0")
    stamp(10); stamp(10, 1); stamp(6, 2)
    paddr(251, 249, 250)
    a("s_mul_i32 s3, s%d, 5120\ns_add_u32 s3, s3, %d\nv_add_u32 v250, s3, v251\ns_mul_i32 s3, s%d, %d\nv_add_u32 v251, s3, v251\nv_add_u32 v249, 20480, v251" % (sM, 4*EBS, sM, EBS))
    a("v_mov_b32 v252, %d\nv_mov_b32 v253, 1" % (LFLAG + LF_T))
    def sig(i): return "s_mov_b64 exec, 1\ns_waitcnt lgkmcnt(0)\nds_add_u32 v252, v253 offset:%d\ns_mov_b64 exec, -1" % (4*i)
    pend = []
    for i in range(4):
        k = 0
        stamp(7 + i, 2)
        for s in range(5):
            vm.wait("O%d%d" % (i, s))
            for t in range(5):
                g2_mfma(Dreg(i, t, True), Breg(4 + s, t, True), AO[i] + 4*s, False)
                k += 1
                if pend and k >= 4: a(pend.pop(0))
            if i > 0 and s == 2: a(sig(i - 1))
        if i == 0:
            ldo(3)
            lds_wait(LF_B, lw, 2, 254)
        if i == 2: lds_wait(LF_Q, None, 4, 254)
        if i == 3: lds_wait(LF_PRE, None, 8, 254)
        pend = ["ds_write_b128 v%d, %s offset:%d" % ((249, 249, 250, 251)[i], R4(Dreg(i, t, True)), (5120 if i == 1 else 0) + 64*t) for t in range(5)]
    for x in pend: a(x)
    stamp(11); stamp(11, 1); stamp(11, 2)
    a(sig(3))
    stamp(12)
    a("s_branch L_alldone")
    a.lines.extend(SLOW)

ACC = 8; F0 = 120; F1 = 164
vA0, vA1, vS, vS2, vH = 208, 209, 210, 211, 212
vB1 = 216
def acc(i, t): return ACC + (i * 7 + t) * 4

def hop_call():
    if not OPT["hop"]: return
    a("s_mov_b32 s1, 1")
    for c in range(3): a("s_cmp_eq_u32 s%d, %d\ns_cbranch_scc1 @HEAD%d@" % (sWV, c, c))
    a("s_branch @HEAD3@")
    a.label("L_hopd")
    a("s_mov_b32 s1, 0")
def compute_prologue():
    sQ, sU, sUe, sJ0, sJ1, sJ2, sCd = sLA, sLP, sH, sLP4, sLH, sA, sP
    a("s_lshr_b32 s%d, s%d, 1\ns_and_b32 s%d, s%d, 1" % (sM, sWV, sN, sWV))
    a("s_lshl_b32 s3, s%d, 3\ns_add_u32 s3, s3, s%d\ns_lshl_b32 s3, s3, 2\ns_add_u32 s3, s3, s%d\ns_lshl_b32 s3, s3, 1\ns_lshl_b32 s%d, s%d, 7\ns_add_u32 s3, s3, s%d" % (sTY, sJJ, sWV, sT1, sRB, sT1))
    a("s_mul_i32 s%d, s3, 1280\ns_lshl_b32 s%d, s3, 4\ns_add_u32 s%d, s%d, 0x%x" % (sT1, sT2, sT2, sT2, STAT_OFF))
    a("v_lshrrev_b32 v5, 5, v0\nv_and_b32 v6, 31, v0\nv_mul_u32_u24 v7, 1280, v5\nv_lshl_add_u32 v224, v6, 4, v7\nv_lshl_add_u32 v225, v6, 3, v7")
    a("s_lshl_b32 s%d, s%d, 7\ns_lshl_b32 s3, s%d, 3\ns_add_u32 s%d, s%d, s3\ns_add_u32 s%d, s%d, s%d" % (sQ, sWV, sRB, sQ, sQ, sQ, sQ, sJJ))
    a("s_mov_b32 s%d, s%d\ns_movk_i32 s%d, %d" % (sU, sQ, sUe, NQU))
    a("s_add_u32 s3, s%d, %d\ns_add_u32 s%d, s3, 1\ns_min_u32 s%d, s%d, 680\ns_cmp_eq_u32 s%d, 0\ns_cselect_b32 s%d, s3, s%d\ns_cselect_b32 s%d, s%d, s%d" % (sQ, NQU, sK0, sK0, sK0, sTY, sU, sU, sUe, sK0, sUe))
    if OPT["nojob"]: a("s_mov_b32 s%d, 0" % sUe)
    a("v_lshrrev_b32 v2, 3, v0\nv_and_b32 v4, 7, v0\nv_and_b32 v7, 6, v2\nv_xor_b32 v7, v4, v7\nv_lshlrev_b32 v4, 4, v7\nv_and_b32 v6, 3, v2")
    a("s_lshl_b32 s3, s%d, 13\ns_add_u32 m0, s3, %d\ns_mov_b32 s%d, 0x20000\ns_mov_b32 s%d, s%d" % (sWV, JOBL, S_J+3, sK0, sU))
    a("s_mov_b32 s%d, 0x%x\ns_mov_b32 s%d, 0x20000\ns_waitcnt lgkmcnt(0)\ns_mov_b32 s%d, s36\ns_mov_b32 s%d, s37" % (S_X+2, 2048*1280, S_X+3, S_X, S_X+1))
    XL = 124; U = 136
    a("buffer_load_dwordx4 %s, v224, %s, s%d offen\nbuffer_load_dwordx4 %s, v224, %s, s%d offen offset:512\nbuffer_load_dwordx2 %s, v225, %s, s%d offen offset:1024" % (R4(XL), S(S_X), sT1, R4(XL+4), S(S_X), sT1, R2(XL+8), S(S_X), sT1))
    a("s_add_u32 s%d, s56, 0x%x\ns_addc_u32 s%d, s57, 0\ns_load_dword s%d, s[%d:%d], 0" % (sEX, EPOCH + (OPT["wso"] << 20), sEX+1, sTAG, sEX, sEX+1))
    a.label("L_jrl")
    a("s_cmp_ge_u32 s%d, s%d\ns_cbranch_scc1 L_nojob1" % (sK0, sUe))
    a("s_mul_i32 s3, s%d, 6554\ns_lshr_b32 s%d, s3, 16\ns_mul_i32 s3, s%d, 10\ns_sub_u32 s%d, s%d, s3" % (sK0, sK1, sK1, sT3, sK0))
    a("s_cmp_lt_u32 s%d, 48\ns_cselect_b32 s%d, s48, s40\ns_cselect_b32 s%d, s49, s41\ns_mov_b32 s%d, %d\ns_cselect_b32 s%d, %d, s%d" % (sK1, S_J, S_J+1, S_J+2, 640*1280, S_J+2, 1536*1280, S_J+2))
    a("s_lshl_b32 s%d, s%d, 5\ns_mul_i32 s3, s%d, 40\ns_sub_u32 s3, s3, %d\ns_cmp_lt_u32 s%d, 48\ns_cselect_b32 s%d, s%d, s3" % (sJ0, sK1, sK1, 48*40, sK1, sJ0, sJ0))
    a("s_mul_i32 s3, s%d, 160\ns_sub_u32 s3, s3, %d\ns_cmp_lt_u32 s%d, 64\ns_cselect_b32 s%d, s%d, s3\ns_cselect_b32 s%d, 4, 40\ns_cselect_b32 s%d, 16, 4" % (sK1, 64*160 - 32, sK1, sJ0, sJ0, sJ1, sJ2))
    a("v_mad_u32_u24 v7, s%d, v5, v6\nv_mul_u32_u24 v7, 1280, v7\nv_add_u32 v3, v4, v7" % sJ1)
    a("s_mul_i32 s%d, s%d, 1280\ns_lshl_b32 s3, s%d, 7\ns_add_u32 s%d, s%d, s3\ns_mul_i32 s%d, s%d, 2560\ns_mul_i32 s%d, s%d, 1280" % (sJ0, sJ0, sT3, sJ0, sJ0, sJ1, sJ1, sJ2, sJ2))
    a("s_add_u32 s3, s%d, s%d\nbuffer_load_dwordx4 v3, %s, s%d offen lds" % (sJ0, sJ1, S(S_J), sJ0))
    a("s_add_u32 m0, m0, 0x400\ns_add_u32 s%d, s%d, s%d\nbuffer_load_dwordx4 v3, %s, s3 offen lds" % (sJ0, sJ0, sJ2, S(S_J)))
    a("s_add_u32 m0, m0, 0x400\ns_add_u32 s3, s%d, s%d\nbuffer_load_dwordx4 v3, %s, s%d offen lds" % (sJ0, sJ1, S(S_J), sJ0))
    a("s_add_u32 m0, m0, 0x400\ns_add_u32 s%d, s%d, 512\nbuffer_load_dwordx4 v3, %s, s3 offen lds" % (sK0, sK0, S(S_J)))
    a("s_add_u32 m0, m0, 0x400\ns_branch L_jrl")
    a.label("L_nojob1")
    srd(S_B1, 46, 3072); srd(S_WS, 56, WS_SIZE); srd(S_OUT, 52, 2048*1280); srd(S_B2, 50, 1280)
    a("v_and_b32 v2, 15, v0\nv_lshrrev_b32 v3, 4, v0\nv_lshrrev_b32 v4, 1, v2\nv_xor_b32 v4, v4, v3\nv_lshlrev_b32 v4, 4, v4\nv_lshl_add_u32 v4, v2, 7, v4\nv_lshlrev_b32 v1, 3, v3")
    a("s_lshl_b32 s3, s%d, 13\nv_add_u32 v%d, s3, v4\nv_xor_b32 v%d, 64, v%d" % (sM, vA0, vA1, vA0))
    a("v_lshlrev_b32 v226, 2, v2\nv_add_u32 v226, %d, v226" % LFLAG)
    a("v_lshrrev_b32 v2, 2, v0\nv_and_b32 v3, 3, v0\nv_mul_u32_u24 v4, 160, v2\ns_mul_i32 s3, s%d, 80\nv_add_u32 v4, s3, v4\nv_lshl_add_u32 v%d, v3, 3, v4" % (sN, vS))
    a("v_and_b32 v5, 1, v3\nv_lshl_add_u32 v4, v5, 3, v4\nv_add_u32 v4, %d, v4" % (K_OFF + 64))
    a("s_cmp_eq_u32 s%d, 0\ns_cselect_b32 s3, %d, 0\nv_lshrrev_b32 v5, 1, v3\nv_mad_u32_u24 v%d, v5, s3, v4" % (sTY, V_OFF - K_OFF - 64, vS2))
    a("v_lshlrev_b32 v4, 7, v2\nv_lshl_add_u32 v4, v3, 3, v4\nv_bfe_u32 v5, v0, 3, 2\nv_lshl_add_u32 v4, v5, 5, v4")
    a("s_lshl_b32 s3, s%d, 13\ns_add_u32 s3, s3, %d\nv_add_u32 v200, s3, v4\nv_xor_b32 v201, 32, v200\nv_xor_b32 v202, 64, v200\nv_xor_b32 v203, 0x60, v200" % (sWV, JOBL))
    a("s_lshl_b32 s3, s%d, 6\ns_cmp_eq_u32 s%d, 0\ns_cselect_b32 s3, s3, 0\nv_xor_b32 v4, s3, v4" % (sN, sTY))
    a("s_lshl_b32 s3, s%d, 13\ns_add_u32 s3, s3, %d\ns_cmp_eq_u32 s%d, 0\ns_cselect_b32 s3, %d, s3" % (sN, HQ_OFF, sTY, HKV_OFF))
    for t in range(4): a("v_xor_b32 v5, %d, v4\nv_add_u32 v%d, s3, v5" % (32*t, vH + t))
    a("s_lshl_b32 s3, s%d, 6\ns_lshl_b32 s3, s3, s%d\ns_lshl_b32 s%d, s%d, 7\ns_add_u32 s3, s3, s%d\ns_mul_i32 s%d, s%d, 384\ns_add_u32 s%d, s3, s%d" % (sN, sTY, sIncP, sTY, sIncP, sIncP, sJJ, sIncP, sIncP))
    for t in range(4): a("buffer_load_dwordx2 %s, v1, %s, s%d offen offset:%d" % (R2(vB1 + 2*t), S(S_B1), sIncP, 32*t))
    for r in range(ACC, ACC + 112, 2): a("v_mov_b64 %s, 0" % R2(r))
    a("s_waitcnt lgkmcnt(0)\ns_and_b32 s3, s%d, 0x7f7f7f7f\ns_add_u32 s3, s3, 0x35251513\ns_and_b32 s%d, s%d, 0x80808080\ns_xor_b32 s%d, s%d, s3" % (sTAG, sTAG, sTAG, sTAG, sTAG))
    a("v_mov_b32 v6, 0\nv_mov_b32 v7, s%d\nds_write2_b32 v226, v6, v7 offset0:0 offset1:16" % sTAG)
    stamp(1)
    if OPT["hpos"] == 0: hop_call()
    def allreduce32(v, t):
        for ctl in ("quad_perm:[1,0,3,2]", "quad_perm:[2,3,0,1]", "row_half_mirror", "row_mirror"):
            a("s_nop 1\nv_add_f32_dpp v%d, v%d, v%d %s row_mask:0xf bank_mask:0xf" % (v, v, v, ctl))
        a("v_mov_b32 v%d, v%d\ns_nop 1\nv_permlane16_swap_b32 v%d, v%d\ns_nop 1\nv_add_f32 v%d, v%d, v%d" % (t, v, v, t, v, v, t))
    a("s_cmp_lt_u32 s%d, s%d\ns_cbranch_scc1 L_w4\ns_waitcnt vmcnt(4)" % (sU, sUe))
    a.label("L_w4"); a("s_waitcnt vmcnt(8)")
    for i in range(10): unpack(U + 2*i, XL + i)
    a("v_pk_add_f32 v[2:3], %s, %s\nv_pk_add_f32 v[4:5], %s, %s" % (R2(U), R2(U + 2), R2(U + 4), R2(U + 6)))
    for i in range(4, 10): a("v_pk_add_f32 %s, %s, %s" % (R2(2 + 2*(i & 1)), R2(2 + 2*(i & 1)), R2(U + 2*i)))
    a("v_pk_add_f32 v[2:3], v[2:3], v[4:5]\nv_add_f32 v2, v2, v3")
    allreduce32(2, 3)
    a("v_mul_f32 v2, 0x3acccccd, v2")
    for i in range(10): a("v_pk_add_f32 %s, %s, v[2:3] op_sel_hi:[1,0] neg_lo:[0,1] neg_hi:[0,1]" % (R2(U + 2*i), R2(U + 2*i)))
    a("v_pk_mul_f32 v[4:5], %s, %s\nv_pk_mul_f32 v[6:7], %s, %s" % (R2(U), R2(U), R2(U + 2), R2(U + 2)))
    for i in range(2, 10): a("v_pk_fma_f32 %s, %s, %s, %s" % (R2(4 + 2*(i & 1)), R2(U + 2*i), R2(U + 2*i), R2(4 + 2*(i & 1))))
    a("v_pk_add_f32 v[4:5], v[4:5], v[6:7]\nv_add_f32 v4, v4, v5")
    allreduce32(4, 5)
    a("v_mul_f32 v4, 0x3acccccd, v4")
    bf16_round(4); a("v_add_f32 v4, 0x3727c5ac, v4"); bf16_round(4)
    a("v_sqrt_f32 v4, v4\ns_nop 0"); bf16_round(4); bf16_round(2)
    a("v_rcp_f32 v232, v4\nv_mov_b32 v233, s%d\nv_mov_b32 v235, s%d\nv_mul_f32 v234, v232, v2\nv_lshrrev_b32 v5, 1, v0" % (sTAG, sTAG))
    a("s_mov_b32 exec_lo, 1\ns_mov_b32 exec_hi, 1\nbuffer_store_dwordx4 v[232:235], v5, %s, s%d offen sc1\ns_mov_b64 exec, -1" % (S(S_WS), sT2))
    stamp(2)
    if OPT["hpos"] == 1: hop_call()
    a("s_and_b32 s3, s2, 7\ns_cmp_lt_u32 s3, 5\ns_cselect_b32 s%d, 1, 0\ns_cbranch_scc0 L_nosel" % sA)
    a("s_lshl_b32 s3, s3, 1\ns_and_b32 s%d, s%d, 1\ns_add_u32 s3, s3, s%d\ns_lshl_b32 s%d, s%d, 3\ns_add_u32 s%d, s%d, s%d\ns_mul_i32 s%d, s%d, 10\ns_add_u32 s3, s3, s%d\ns_lshl_b32 s3, s3, 10\ns_mul_i32 s%d, s%d, 448\ns_add_u32 s3, s3, s%d\ns_lshl_b32 s%d, s%d, 8\ns_add_u32 s3, s3, s%d\ns_add_u32 s%d, s3, 0x%x" % (sA, sRB, sA, sA, sTY, sA, sA, sJJ, sA, sA, sA, sA, sN, sA, sA, sM, sA, sA, CSP_OFF))
    a("v_and_b32 v6, 15, v0\nv_mov_b32 v7, 0x3f803f80\nv_and_b32 v4, 48, v0\nv_lshl_add_u32 v4, v6, 6, v4\nv_mov_b32 v5, 0xff")
    for t in range(4):
        a("v_cmp_eq_u32 vcc, %d, v6\ns_lshr_b32 s%d, s%d, %d\ns_nop 0\nv_cndmask_b32 v%d, 0, v7, vcc\nv_cndmask_b32 v%d, 0, v7, vcc\nv_mov_b64 %s, %s" % (t, TB[t], sTAG, 8*t, 236 + 4*t, 237 + 4*t, R2(238 + 4*t), R2(236 + 4*t)))
    a.label("L_nosel")
    FR = 120
    a("v_lshlrev_b32 v1, 4, v0")
    for r in range(QPER):
        a("s_cmp_ge_u32 s%d, s%d\ns_cbranch_scc1 L_nojob2" % (sU, sUe))
        if r == 0: a("s_waitcnt vmcnt(5)")
        for t in range(4): a("ds_read_b64_tr_b16 %s, v%d offset:%d\nds_read_b64_tr_b16 %s, v%d offset:%d" % (R2(FR + 16*r + 4*t), 200 + t, 4096*r, R2(FR + 16*r + 2 + 4*t), 200 + t, 4096*r + 2048))
        a("s_lshl_b32 s3, s%d, 12\ns_add_u32 s3, s3, 0x%x\ns_add_u32 s%d, s%d, 512\ns_waitcnt lgkmcnt(0)" % (sU, B2_OFF, sU, sU))
        for t in range(4):
            if OPT["jst"]: a("buffer_store_dwordx4 %s, v1, %s, s3 offen offset:%d%s" % (R4(FR + 16*r + 4*t), S(S_WS), 1024*t, {1: " sc1", 2: "", 3: " nt"}[OPT["jst"]]))
    a.label("L_nojob2")

def frag_reads(ty, F, ks2):
    r = []
    for i in range(4): r.append("ds_read_b128 %s, v%d offset:%d" % (R4(F + 4*i), vA1 if ks2 else vA0, 2048*i))
    nseg = 5 if ty == 0 else 3
    for t in range(7):
        d = F + 16 + 4*t
        for rd in range(2):
            if t < nseg:
                if t == 2: reg, off = vS2, 0
                elif t < 2: reg, off = vS, K_OFF + 32*t
                else: reg, off = vS, V_OFF + 16 + 32*(t - 3)
                off += ks2 * 5120 + rd * 2560
            else: reg, off = vH + (t - nseg), ks2 * 4096 + rd * 2048
            r.append("ds_read_b64_tr_b16 %s, v%d offset:%d" % (R2(d + 2*rd), reg, off))
    return r
def transposed(ty, t): return ty == 1 or t >= 5
def mfmas(ty, F, order=None):
    r = []
    for (t, i) in (order or [(t, i) for t in range(7) for i in range(4)]):
        B = R4(F + 16 + 4*t); A = R4(F + 4*i); D = R4(acc(i, t))
        r.append("v_mfma_f32_16x16x32_bf16 %s, %s, %s, %s" % ((D, B, A, D) if transposed(ty, t) else (D, A, B, D)))
    return r
def interleave(mm, rr):
    for k, x in enumerate(mm):
        a(x)
        if k < len(rr): a(rr[k])
def addr_regs(ty): return [vA0, vA1, vS, vS2] + [vH + t for t in range(2 if ty == 0 else 4)]

CT = 120; RS = 148; BF = 156; KC = 172; TMP = 176; T2P = 208; R4S = 224

def epi_reads(ty):
    a("v_and_b32 v4, 15, v0\nv_lshlrev_b32 v4, 2, v4\ns_lshl_b32 s3, s%d, 8\ns_add_u32 s3, s3, %d\nv_add_u32 v5, s3, v4" % (sM, STATL))
    a("v_and_b32 v6, 48, v0\nv_add_u32 v3, s3, v6\ns_mul_i32 s3, s%d, 448\ns_add_u32 s3, s3, %d\nv_add_u32 v6, s3, v6\nv_add_u32 v4, s3, v4\nv_mov_b32 v7, %d" % (sN, CSL, FASTL))
    if ty == 0:
        for i in range(4): a("ds_read_b128 %s, v3 offset:%d\nds_read_b128 %s, v3 offset:%d" % (R4(R4S + 4*i), 64*i, R4(R4S + 16 + 4*i), 512 + 64*i))
    for t in range(7):
        if transposed(ty, t): a("ds_read_b128 %s, v6 offset:%d" % (R4(CT + 4*t), 64*t))
        else: a("ds_read_b32 v%d, v4 offset:%d" % (CT + 4*t, 64*t))
    for i in range(4): a("ds_read2_b32 %s, v5 offset0:%d offset1:%d" % (R2(RS + 2*i), 16*i, 128 + 16*i))
    a("ds_read_b32 v7, v7\nv_lshlrev_b32 v1, 4, v0")
    if ty == 0: a2_soff(sT2, sM, lambda: a("s_mul_i32 s3, s%d, 6\ns_add_u32 s3, s3, s%d" % (sJJ, sN)))
    else:
        a2_soff(sT2, sM, lambda: a("s_mul_i32 s3, s%d, 6\ns_lshl_b32 s%d, s%d, 1\ns_add_u32 s3, s3, s%d\ns_add_u32 s3, s3, 2" % (sJJ, sT1, sN, sT1)))
        a("s_add_u32 s%d, s%d, 4096" % (sT3, sT2))

def main_loop(ty):
    a("s_mov_b32 s%d, 0\ns_mov_b32 s%d, 0\ns_waitcnt lgkmcnt(0)" % (sCnt, sSlot))
    stamp(3)
    a("s_barrier")
    stamp(4)
    for x in frag_reads(ty, F0, 0): a(x)
    a("s_cmp_eq_u32 s%d, 0\ns_cbranch_scc1 L_ent%d\ns_cmp_lg_u32 s%d, 0\ns_cbranch_scc1 L_cs1%d" % (sA, ty, sM, ty))
    rr = frag_reads(ty, F1, 1)[4:]
    for m in range(2):
        tl = list(range(4*m, min(7, 4*m + 4)))
        for t in tl: a(rr[2*t]); a(rr[2*t + 1])
        a("s_waitcnt lgkmcnt(%d)" % (2 * len(tl)))
        for k, t in enumerate(tl): a("v_mfma_f32_16x16x32_bf16 v[252:255], %s, %s, %s" % (R4(F0 + 16 + 4*t), R4(236 + 4*k), "0" if k == 0 else "v[252:255]"))
        a("s_waitcnt lgkmcnt(0)")
        for k, t in enumerate(tl): a("v_mfma_f32_16x16x32_bf16 v[252:255], %s, %s, v[252:255]" % (R4(F1 + 16 + 4*t), R4(236 + 4*k)))
        a("s_mov_b32 s3, 0x%x" % (0x000f000f if m == 0 else 0x00070007))
        if m == 0: a("s_branch L_cs2%d" % ty); a.label("L_cs1%d" % ty)
    a.label("L_cs2%d" % ty)
    a("s_nop 6")
    for k in range(4): a("v_bfi_b32 v%d, v5, s%d, v%d" % (252 + k, TB[k], 252 + k))
    a("s_mov_b32 exec_lo, s3\ns_mov_b32 exec_hi, s3\nbuffer_store_dwordx4 v[252:255], v4, %s, s%d offen sc1\ns_mov_b64 exec, -1" % (S(S_WS), sA))
    a.label("L_ent%d" % ty)
    a("s_waitcnt lgkmcnt(0)\ns_branch L_mid%d" % ty)
    align8()
    a.label("L_top%d" % ty)
    a("s_barrier\ns_nop 0")
    interleave(mfmas(ty, F1), frag_reads(ty, F0, 0))
    a("s_waitcnt vmcnt(0) lgkmcnt(0)\ns_nop 0" if OPT["lvm"] else "s_waitcnt lgkmcnt(0)\ns_nop 0")
    a.label("L_mid%d" % ty)
    upd = ["v_add_u32_e64 v%d, s%d, v%d" % (r, sT1, r) for r in addr_regs(ty)]
    sal = "s_add_u32 s%d, s%d, 1\ns_cmp_eq_u32 s%d, 3\ns_cselect_b32 s%d, 0, s%d\ns_mov_b32 s%d, %d\ns_cselect_b32 s%d, %d, s%d\ns_add_u32 s%d, s%d, 1" % (sSlot, sSlot, sSlot, sSlot, sSlot, sT1, SLOT, sT1, (-2*SLOT) & 0xffffffff, sT1, sCnt, sCnt)
    rr = frag_reads(ty, F1, 1)
    interleave(mfmas(ty, F0), rr + [sal] + upd)
    a("s_cmp_lt_u32 s%d, 10\ns_waitcnt lgkmcnt(0)\ns_cbranch_scc1 L_top%d" % (sCnt, ty))
    a.c("PADS_ON")
    a("s_barrier")
    pre = capture(lambda: epi_reads(ty))
    c0 = -2.0 * 0.7978845608028654 * 1.4426950408889634; c1 = c0 * 0.044715
    k = 0
    order = [(t, i) for i in range(4) for t in range(5)] + [(t, i) for i in range(4) for t in (5, 6)] if ty == 0 else \
            [(t, i) for g in ((3, 4), (5, 6), (0, 1, 2)) for i in range(4) for t in g]
    for x in mfmas(ty, F1, order):
        a(x)
        for y in pre[k:k+2]: a(y)
        k += 2
    for y in pre[k:]: a(y)
    stamp(5); stamp(1, 1); stamp(1, 5)
    if OPT["cprio"]: a("s_setprio %d" % OPT["cprio"])
    a("s_waitcnt vmcnt(0)")
    for k in range(4 if ty == 0 else 8): unpack(BF + 2*k, vB1 + k)
    a("v_mov_b32 v%d, 0x%x\nv_mov_b32 v%d, 0x%x\nv_mov_b32 v%d, 0x%x\nv_mov_b32 v%d, 0x%x" % (KC, f32(c1), KC+2, f32(c0), KC+1, f32(1.4426950408889634), KC+3, f32(1e-6)))
    a("s_waitcnt lgkmcnt(0)\nv_readfirstlane_b32 s%d, v7" % sFAST)

def gelu_block(i, t0, bt0, soff):
    align8()
    P = [(acc(i, t0 + q//2) + 2*(q % 2), CT + 4*(t0 + q//2) + 2*(q % 2), BF + 4*(bt0 + q//2) + 2*(q % 2), TMP + 2*q) for q in range(4)]
    rs = R2(RS + 2*i)
    for (h, c, b, u) in P: a("v_pk_fma_f32 %s, %s, %s, %s op_sel:[1,0,0] op_sel_hi:[1,1,1] neg_lo:[1,0,0] neg_hi:[1,0,0]" % (R2(u), rs, R2(c), R2(b)))
    for (h, c, b, u) in P: a("v_pk_fma_f32 %s, %s, %s, %s op_sel:[0,0,0] op_sel_hi:[0,1,1]" % (R2(h), rs, R2(h), R2(u)))
    for (h, c, b, u) in P: a("v_pk_mul_f32 %s, %s, %s" % (R2(u), R2(h), R2(h)))
    for (h, c, b, u) in P: a("v_pk_fma_f32 %s, %s, %s, %s op_sel:[0,0,0] op_sel_hi:[1,0,0]" % (R2(u), R2(u), R2(KC), R2(KC + 2)))
    for (h, c, b, u) in P: a("v_pk_mul_f32 %s, %s, %s" % (R2(u), R2(u), R2(h)))
    for (h, c, b, u) in P: a("v_exp_f32 v%d, v%d\nv_exp_f32 v%d, v%d" % (u, u, u+1, u+1))
    for (h, c, b, u) in P: a("v_pk_add_f32 %s, %s, 1.0 op_sel_hi:[1,0]" % (R2(u), R2(u)))
    for (h, c, b, u) in P: a("v_rcp_f32 v%d, v%d\nv_rcp_f32 v%d, v%d" % (u, u, u+1, u+1))
    for (h, c, b, u) in P: a("v_pk_mul_f32 %s, %s, %s" % (R2(u), R2(u), R2(h)))
    o = acc(i, t0)
    for q, (h, c, b, u) in enumerate(P): a("v_cvt_pk_bf16_f32 v%d, v%d, v%d" % (o + q, u, u+1))
    st_a2("buffer_store_dwordx4 %s, v1, %s, s%d offen offset:%d" % (R4(o), S(S_WS), soff, 1024*i), 1 if t0 == 3 else (2 if bt0 == 2 else 4))

def phi_pairs(P):
    for (h, u) in P: a("v_pk_mul_f32 %s, %s, %s op_sel:[1,0] op_sel_hi:[1,1]" % (R2(u), R2(KC), R2(h)))
    for (h, u) in P: a("v_exp_f32_e64 v%d, v%d clamp\nv_exp_f32_e64 v%d, v%d clamp" % (u, u, u+1, u+1))
    for (h, u) in P: a("v_max_f32 v%d, v%d, v%d\nv_max_f32 v%d, v%d, v%d" % (h, h, KC+3, h+1, h+1, KC+3))
    for (h, u) in P: a("v_pk_add_f32 %s, %s, %s" % (R2(h), R2(h), R2(u)))

def epilogue_kv():
    a("v_and_b32 v5, 8, v0\nv_cmp_eq_u32 vcc, 0, v5\nv_mov_b32 v6, 0\nv_mov_b32 v7, 0x3f803f80\nv_cndmask_b32 v5, v6, v%d, vcc\nv_mov_b32 v4, v5" % (KC + 3))
    a("s_lshl_b32 s3, s%d, 13\ns_add_u32 s3, s3, %d\nv_add_u32 v2, s3, v1" % (sWV, XK))
    prods = [(0,2),(0,3),(1,2),(1,3),(1,4),(2,2),(2,3),(2,4)]
    KD = [acc(1, t) for t in range(5)] + [216, 220, R4S]
    def kvm(ksr):
        return ["v_mfma_f32_16x16x32_bf16 %s, %s, %s, %s" % (R4(KD[k]), R4(acc(2*ksr, ti)), R4(T2P + 4*ksr) if tj == 2 else R4(acc(2*ksr, tj)), "0" if ksr == 0 else R4(KD[k])) for k, (ti, tj) in enumerate(prods)]
    for i in range(4):
        stamp(2 + i, 5)
        align8()
        def body():
            for t in range(5):
                for q in range(2):
                    u = TMP + 4*t + 2*q; rm = R2(R4S + 16 + 4*i + 2*q); c = R2(CT + 4*t)
                    if t < 2: a("v_pk_fma_f32 %s, %s, %s, %s op_sel:[0,0,1] op_sel_hi:[1,0,1] neg_lo:[1,0,0] neg_hi:[1,0,0]" % (R2(u), rm, c, R2(KC + 2)))
                    elif t == 2: a("v_pk_fma_f32 %s, %s, %s, v[4:5] op_sel:[0,0,0] op_sel_hi:[1,0,1] neg_lo:[1,0,0] neg_hi:[1,0,0]" % (R2(u), rm, c))
                    else: a("v_pk_mul_f32 %s, %s, %s op_sel:[0,0] op_sel_hi:[1,0] neg_lo:[1,0] neg_hi:[1,0]" % (R2(u), rm, c))
            for t in range(5):
                for q in range(2):
                    h = acc(i, t) + 2*q; u = TMP + 4*t + 2*q
                    a("v_pk_fma_f32 %s, %s, %s, %s" % (R2(h), R2(R4S + 4*i + 2*q), R2(h), R2(u)))
            a("v_cvt_pk_bf16_f32 v%d, v%d, v%d\nv_cvt_pk_bf16_f32 v%d, v%d, v%d" % (TMP+20, acc(i,2), acc(i,2)+1, TMP+21, acc(i,2)+2, acc(i,2)+3))
            phi_pairs([(acc(i, t) + 2*q, TMP + 4*t + 2*q) for t in range(3) for q in range(2)])
            e = 2 * (i >> 1); o = 2 * (i & 1)
            a("v_cndmask_b32 v%d, v%d, v7, vcc\nv_cndmask_b32 v%d, v%d, v7, vcc" % (T2P + 4*(i>>1) + o, TMP+20, T2P + 4*(i>>1) + o + 1, TMP+21))
            for t in (3, 4, 0, 1, 2):
                a("v_cvt_pk_bf16_f32 v%d, v%d, v%d\nv_cvt_pk_bf16_f32 v%d, v%d, v%d" % (acc(e,t)+o, acc(i,t), acc(i,t)+1, acc(e,t)+o+1, acc(i,t)+2, acc(i,t)+3))
        if i == 2:
            lines = capture(body); mm = kvm(0)
            for k, ln in enumerate(lines):
                a(ln)
                if k >= 28 and k % 2 == 1 and mm: a(mm.pop(0))
            assert not mm
        else: body()
    stamp(6, 5)
    a("s_nop 1")
    for x in kvm(1): a(x)
    a("s_nop 0")
    for k in range(8): a("ds_write_b128 v2, %s offset:%d" % (R4(KD[k]), 1024 * k))
    stamp(2, 1)
    lds_addr(2, LF_XK, None)
    a("v_mov_b32 v3, 1\ns_mov_b64 exec, 1\ns_waitcnt lgkmcnt(0)\nds_add_u32 v2, v3\ns_mov_b64 exec, -1")
    stamp(7); stamp(3, 1); stamp(7, 5)
    g2_setup(False)
    for i in range(4):
        stamp(8 + i, 5)
        gelu_block(i, 5, 0, sT2)
        if i in (0, 1): loadB(6 + i, False)
    stamp(4, 1)
    ks_flag(sT2, sM, 0, 6)

def epilogue_qh():
    PQ = 224
    def qpart(hook=None):
        for i in range(4):
            align8()
            rs = R2(RS + 2*i)
            P = [(acc(i, t) + 2*q, TMP + 4*t + 2*q, CT + 4*t + 2*q) for t in range(3) for q in range(2)]
            for (h, u, c) in P: a("v_pk_fma_f32 %s, %s, %s, %s op_sel:[1,0,1] op_sel_hi:[1,1,1] neg_lo:[1,0,0] neg_hi:[1,0,0]" % (R2(u), rs, R2(c), R2(KC + 2)))
            for (h, u, c) in P: a("v_pk_fma_f32 %s, %s, %s, %s op_sel:[0,0,0] op_sel_hi:[0,1,1]" % (R2(h), rs, R2(h), R2(u)))
            phi_pairs([(h, u) for (h, u, c) in P])
            for k, (h, u, c) in enumerate(P): a("v_cvt_pk_bf16_f32 v%d, v%d, v%d" % (PQ + 6*i + k, h, h + 1))
            if hook: hook(i)
        a("s_mul_i32 s3, s%d, 6144\ns_add_u32 s3, s3, %d\nv_add_u32 v4, s3, v1\nv_lshl_add_u32 v5, v0, 3, s3" % (sWV, PQL))
        for i in range(4): a("ds_write_b128 v4, %s offset:%d\nds_write_b64 v5, %s offset:%d" % (R4(PQ + 6*i), 1024*i, R2(PQ + 6*i + 4), 4096 + 512*i))
    g2_setup(False)
    for i in range(4): stamp(2 + i, 5); gelu_block(i, 3, 0, sT2)
    stamp(2, 1)
    for i in range(4):
        stamp(6 + i, 5)
        gelu_block(i, 5, 2, sT3)
        if i == OPT["fa"]: ks_flag(sT2, sM, i + 1, 4)
        if OPT["qb"] and i in (0, 1): loadB(6 + i, False)
    stamp(6); stamp(3, 1); stamp(10, 5)
    def hk(i):
        if i == OPT["fb"]: ks_flag(sT3, sM, 0, 4)
        if not OPT["qb"] and i in (OPT["fb"], OPT["fb"] + 1): loadB(6 + i - OPT["fb"], False)
    qpart(hk)
    a("s_waitcnt lgkmcnt(0)"); lds_signal(LF_PQ, sWV, 4)
    stamp(7); stamp(4, 1)

def readB(s): return ["ds_read_b128 %s, v244 offset:%d" % (R4(Breg(s, t, False)), 5120*s + 1024*t) for t in range(5)]

def gemm2_early():
    stamp(8); stamp(5, 1)
    if OPT["cprio"]: a("s_setprio 0")
    vm = VM()
    vG, vR, vP = 246, 248, 254
    X0 = CDB[0:5]; B2F = CDB[5:7]; XG = CA_[12:20]
    def XS(i, k): return XG[2*i + (k >> 1)] + 2*(k & 1)
    def BF2(k): return B2F[k >> 1] + 2*(k & 1)
    a("s_lshl_b32 s%d, s%d, 9\ns_add_u32 s%d, s%d, 0x%x\ns_lshl_b32 s3, s%d, 2\ns_add_u32 s%d, s%d, s3" % (sT3, sRT, sT3, sT3, FH, sK0, sT3, sT3))
    g2_flagoff(3, KS_C)
    a("s_mov_b64 exec, 0xff\nbuffer_load_dword v245, v3, %s, s%d offen%s\ns_mov_b64 exec, -1" % (S(S_WS), sT3, PLD))
    lds_wait(LF_B, sWV, 1, 246)
    a("s_mul_i32 s3, s%d, %d\nv_add_u32 v244, s3, v1" % (sWV, EBS))
    for x in readB(0) + readB(1): a(x)
    a("s_mul_i32 s3, s%d, 40\nv_add_u32 v228, s3, v0\nv_mul_u32_u24 v229, 6554, v228\nv_lshrrev_b32 v229, 16, v229\nv_mul_u32_u24 v230, 10, v229\nv_sub_u32 v228, v228, v230" % sWV)
    a("v_mul_u32_u24 v230, 1280, v229\nv_lshl_add_u32 v%d, v228, 4, v230\nv_lshlrev_b32 v%d, 4, v228" % (vG, vG + 1))
    a("v_mov_b32 v230, 0x%x\nv_cmp_gt_u32 vcc, 40, v0\ns_mul_i32 s%d, s%d, %d\ns_mul_i32 s%d, s%d, 160\nv_cndmask_b32 v%d, v230, v%d, vcc\ns_add_u32 s%d, s%d, s%d" % (OOB, sT1, sRT, 64*1280, sT2, sCT, vG, vG, sT1, sT1, sT2))
    a("v_and_b32 v229, 15, v229\nv_bfe_u32 v230, v229, 1, 2\nv_lshlrev_b32 v228, 1, v228\nv_xor_b32 v228, v228, v230\nv_mul_u32_u24 v229, 320, v229\nv_lshl_add_u32 v%d, v228, 4, v229\nv_xor_b32 v%d, 16, v%d" % (vR, vR + 1, vR))
    for k in range(1, 3): a("v_add_u32 v%d, %d, v%d\nv_add_u32 v%d, %d, v%d" % (vR + 2*k, 2*k*EBS, vR, vR + 1 + 2*k, 2*k*EBS, vR + 1))
    paddr(vP, 228, 229)
    a("s_mul_i32 s3, s%d, %d\nv_add_u32 v%d, s3, v%d" % (sWV, EBS, vP, vP))
    a("s_mov_b32 s%d, %d\ns_mov_b64 exec, 0xff" % (sSpin, SPIN))
    a.label("L_pc")
    a("s_waitcnt vmcnt(0)\nv_cmp_ne_u32 vcc, s%d, v245\ns_and_b32 s3, vcc_lo, 15\ns_cbranch_scc0 L_pcd" % sTAG)
    a("s_sleep %d\nbuffer_load_dword v245, v3, %s, s%d offen%s\ns_sub_u32 s%d, s%d, 1\ns_cbranch_scc0 L_pc" % (OPT["slp"], S(S_WS), sT3, PLD, sSpin, sSpin))
    a.label("L_pcd")
    a("s_mov_b64 exec, -1\ns_mov_b32 s%d, vcc_lo" % sK1)
    stamp(9); stamp(6, 1); stamp(1, 2)
    if OPT["qk"]:
        if OPT["qk"] == 1: a("s_cmp_lg_u32 s%d, 0\ns_cbranch_scc1 L_nqk" % sTY)
        lds_wait(LF_Q, None, 4, 230)
        a.label("L_nqk")
    for s in range(4): loadA(s, False); vm.add("A%d" % s, 4)
    P2 = OPT["qq"] if OPT["qq"] < 4 else 3
    if OPT["yld"]: lds_addr(255, LF_PQ, sWV)
    def yield_check():
        l = a.newlabel("Ly")
        a("s_waitcnt lgkmcnt(0)\nv_cmp_eq_u32 vcc, 2, v2\ns_cbranch_vccnz %s" % l)
        a.label(l + "_b")
        OUTLINE.extend([l + ":", "  s_mov_b32 s%d, %d" % (sSpin, SPIN), l + "_l:", "  s_sleep 1", "  ds_read_b32 v2, v255", "  s_waitcnt lgkmcnt(0)", "  v_cmp_eq_u32 vcc, 2, v2",
                        "  s_cbranch_vccz %s_b" % l, "  s_sub_u32 s%d, s%d, 1" % (sSpin, sSpin), "  s_cbranch_scc0 %s_l" % l, "  s_branch %s_b" % l])
    carry = []
    def defer(fn, lab, n):
        if OPT["il"]: carry.append((capture(fn), lab, n))
        else: fn(); vm.add(lab, n)
    for s in range(6):
        vm.wait("A%d" % s)
        a("s_waitcnt lgkmcnt(%d)" % (5 if s < 5 else 0))
        mm = capture(lambda: g2_step(s, False))
        fill = []
        for (lines, lab, n) in carry:
            cur = []
            for ln in lines:
                cur.append(ln)
                if ln.startswith("buffer_"): fill.append("\n".join(cur)); cur = []
            vm.add(lab, n)
        carry = []
        gap = max(1, 19 // max(1, len(fill)))
        k = 0
        for x in mm:
            a(x)
            if x.startswith("v_mfma"):
                k += 1
                if fill and k % gap == 0: a(fill.pop(0))
                if OPT["yld"] and k == 13: a("ds_read_b32 v2, v255")
        for x in fill: a(x)
        if OPT["yld"]: yield_check()
        if s + 2 < 6:
            for x in readB(s + 2): a(x)
        if s == P2:
            if OPT["qq"]: lds_wait(LF_Q, None, 4, 230)
            a("s_cmp_eq_u32 s%d, 0\ns_cbranch_scc1 L_nop2" % sK1)
            poll(3, sT3, 8, 245, "he2")
            a.label("L_nop2")
            for q in range(4, min(8, 6 + s)):
                if q == s + 1: loadA(q, False); vm.add("A%d" % q, 4)
                else: defer(lambda: loadA(q, False), "A%d" % q, 4)
        elif s > P2 and 5 + s < 8:
            defer(lambda: loadA(5 + s, False), "A%d" % (5 + s), 4)
        if s == 4:
            def xl():
                for i in range(4): a("s_add_u32 s3, s%d, %d\nbuffer_load_dwordx4 %s, v%d, %s, s3 offen" % (sT1, 16*1280*i, R4(X0[i]), vG, S(S_X)))
                a("buffer_load_dwordx4 %s, v%d, %s, s%d offen" % (R4(X0[4]), vG + 1, S(S_B2), sT2))
            defer(xl, "X", 5)
    assert not carry
    lds_signal(LF_B, sWV, 244)
    vm.wait("A7", "B7")
    if OPT["wb"] == 2:
        l = a.newlabel("Lwb")
        a("s_lshr_b32 s3, s2, 3\ns_and_b32 s3, s3, %d\ns_add_u32 s3, s3, s%d\ns_cmp_lg_u32 s3, 0\ns_cbranch_scc1 %s\nbuffer_wbl2 sc1" % (OPT["wbw"], sWV, l))
        a.label(l)
    stamp(8, 2)
    pend = []
    for i in range(4):
        k = 0
        for s in (6, 7):
            for t in range(5):
                g2_mfma(Dreg(i, t, False), Breg(s, t, False), Areg(s, i, False), False)
                k += 1
                if pend and k >= 4: a(pend.pop(0))
                if OPT["yld"] and i == 1 and k == 3: a("ds_read_b32 v2, v255")
        if OPT["yld"] and i == 1: yield_check()
        pend = ["ds_write_b128 v%d, %s offset:%d" % (vP, R4(Dreg(i, t, False)), 5120*i + 64*t) for t in range(5)]
    stamp(10); stamp(7, 1); stamp(9, 2)
    vm.wait("X")
    for k in range(2): unpack(BF2(k), X0[4] + k)
    for x in pend: a(x)
    for k in range(2, 4): unpack(BF2(k), X0[4] + k)
    lds_addr(244, LF_PRE, None)
    a("v_mov_b32 v245, 1")
    for i in range(4):
        for k in range(4): unpack(XS(i, k), X0[i] + k)
        if i == 0: a("s_mov_b64 exec, 1\ns_waitcnt lgkmcnt(0)\nds_add_u32 v244, v245\ns_mov_b64 exec, -1")
        for k in range(4): padd(XS(i, k), XS(i, k), BF2(k), OPT["scp"])
    lds_wait_ge(LF_PRE, 4, 244)
    stamp(8, 1)
    RD = 4
    def loc(i, p):
        if p < 4: return p >> 1, (p & 1) * EBS + 5120*i
        p -= 4
        if i < 2: return p >> 1, (p & 1) * EBS + 20480 + 5120*i
        if i == 2: return 2, p * 5120
        return p >> 1, (p & 1) * EBS
    def rdsum(i, ps):
        for j, p in enumerate(ps):
            b, off = loc(i, p)
            a("ds_read_b128 %s, v%d offset:%d\nds_read_b128 %s, v%d offset:%d" % (R4(RD + 32*(i & 1) + 8*j), vR + 2*b, off, R4(RD + 32*(i & 1) + 8*j + 4), vR + 1 + 2*b, off))
    def addsum(i, base, last=False):
        for j in range(4):
            a("s_waitcnt lgkmcnt(%d)" % (base + 6 - 2*j))
            for k in range(4): padd(XS(i, k), XS(i, k), RD + 32*(i & 1) + 8*j + 2*k, OPT["scp"] and not last)
    a("s_mov_b32 exec_hi, 0xff")
    rdsum(0, range(4))
    for i in range(4):
        if i < 3: rdsum(i + 1, range(4))
        addsum(i, 8 if i < 3 else 0)
    stamp(11); stamp(9, 1); stamp(10, 2)
    if OPT["wb"] == 1:
        l = a.newlabel("Lwb")
        a("s_lshr_b32 s3, s2, 3\ns_and_b32 s3, s3, %d\ns_add_u32 s3, s3, s%d\ns_cmp_lg_u32 s3, 0\ns_cbranch_scc1 %s\nbuffer_wbl2 sc1" % (OPT["wbw"], sWV, l))
        a.label(l)
    a("v_mov_b32 v245, 1\ns_mov_b64 exec, 1\nds_add_u32 v244, v245\ns_mov_b32 exec_lo, -1\ns_mov_b32 exec_hi, 0xff\ns_setprio 1")
    for i in range(4):
        lds_wait(LF_T + 4*i, None, 4, 244, 1 if i < 3 else 0)
        rdsum(i, range(4, 8))
        a("s_add_u32 s3, s%d, %d" % (sT1, 16*1280*i))
        addsum(i, 0, i == 3)
        for k in range(4): a("v_cvt_pk_bf16_f32 v%d, v%d, v%d" % (XG[2*i] + k, XS(i, k), XS(i, k) + 1))
        a("buffer_store_dwordx4 %s, v%d, %s, s3 offen%s" % (R4(XG[2*i]), vG, S(S_OUT), LDF[OPT["ost"]]))
    a("s_mov_b64 exec, -1")
    stamp(12)

hdr = open("cdna_kernels/%s.s.ref" % BASE).read().split("; Override")[0]
a.raw(hdr.rstrip())
a.raw("; @launch grid=(256,1,1) block=(512,1,1) lds=163840")
a.raw('.amdgcn_target "amdgcn-amd-amdhsa--gfx950"\n.text')
kernel_header(a, KNAME)
a("s_cmp_ge_u32 s2, 256\ns_cbranch_scc1 L_end")
a("s_load_dwordx16 s[36:51], s[0:1], 0\ns_load_dwordx4 s[52:55], s[0:1], 64\ns_load_dwordx2 s[56:57], s[0:1], 80")
a("v_lshrrev_b32 v1, 6, v0\nv_and_b32 v0, 63, v0\nv_readfirstlane_b32 s%d, v1" % sWV)
if OPT["cpf"]:
    a("s_getpc_b64 s[%d:%d]\nL_pc0:\ns_and_b32 s3, s2, 0xf8\ns_add_u32 s3, s3, s%d\ns_lshl_b32 s3, s3, 7\ns_min_u32 s3, s3, L_table-L_pc0-64" % (sEX, sEX+1, sWV))
    a("s_load_dword s%d, s[%d:%d], s3" % (sSpin, sEX, sEX+1))
    if OPT["cpf"] > 1: a("s_add_u32 s3, s3, 64\ns_load_dword s%d, s[%d:%d], s3" % (sSpin, sEX, sEX+1))
stamp_init(); stamp(0)
a("s_bfe_u32 s%d, s2, 0x10006\ns_mov_b32 s1, 0" % sTY)
if OPT["xmap"]:
    a("s_and_b32 s3, s2, 7\ns_lshl_b32 s3, s3, 1\ns_bfe_u32 s%d, s2, 0x10003\ns_add_u32 s%d, s%d, s3" % (sRB, sRB, sRB))
    a("s_bfe_u32 s3, s2, 0x20004\ns_lshr_b32 s%d, s2, 7\ns_lshl_b32 s%d, s%d, 2\ns_add_u32 s%d, s%d, s3" % (sJJ, sJJ, sJJ, sJJ, sJJ))
else:
    a("s_and_b32 s3, s2, 1\ns_lshl_b32 s3, s3, 3\ns_bfe_u32 s%d, s2, 0x30003\ns_add_u32 s%d, s%d, s3" % (sRB, sRB, sRB))
    a("s_and_b32 s3, s2, 6\ns_lshr_b32 s%d, s2, 7\ns_add_u32 s%d, s%d, s3" % (sJJ, sJJ, sJJ))
a("s_and_b32 s3, s2, 7\ns_lshl_b32 s3, s3, 2\ns_bfe_u32 s%d, s2, 0x20003\ns_add_u32 s%d, s%d, s3\ns_lshr_b32 s%d, s2, 5" % (sRT, sRT, sRT, sCT))
a("s_cmp_lt_u32 s%d, 4\ns_cbranch_scc1 L_compute" % sWV)
_m = len(a.lines)
loader()
if OPT["sco"]:
    import re
    new = []
    for ln in a.lines[_m:]:
        m = re.match(r"\s*v_pk_add_f32 v\[(\d+):\d+\], v\[(\d+):\d+\], v\[(\d+):\d+\]$", ln)
        m2 = re.match(r"\s*v_mov_b64 v\[(\d+):\d+\], v\[(\d+):\d+\]$", ln)
        m3 = re.match(r"\s*v_mov_b64 v\[(\d+):\d+\], 0$", ln)
        if m: d, x, y = map(int, m.groups()); new += ["  v_add_f32 v%d, v%d, v%d" % (d, x, y), "  v_add_f32 v%d, v%d, v%d" % (d+1, x+1, y+1)]
        elif m2: d, x = map(int, m2.groups()); new += ["  v_mov_b32 v%d, v%d" % (d, x), "  v_mov_b32 v%d, v%d" % (d+1, x+1)]
        elif m3: d = int(m3.group(1)); new += ["  v_mov_b32 v%d, 0" % d, "  v_mov_b32 v%d, 0" % (d+1)]
        else: new.append(ln)
    a.lines[_m:] = new
a.c("PADS_OFF")
a.label("L_compute")
compute_prologue()
a("s_cmp_lg_u32 s%d, 0\ns_cbranch_scc1 L_cqh" % sTY)
main_loop(0); epilogue_kv(); a("s_branch L_g2early")
a.c("PADS_OFF")
a.label("L_cqh")
main_loop(1); epilogue_qh()
a.label("L_g2early")
gemm2_early()
a.c("PADS_OFF")
a.label("L_alldone")
stamp_store()
a("s_cmp_lg_u32 s2, 0\ns_cbranch_scc1 L_end\ns_cmp_lg_u32 s%d, 4\ns_cbranch_scc1 L_end" % sWV)
a("s_mov_b32 s3, 0x%x\nv_mov_b32 v2, s%d\nv_mov_b32 v3, 0\ns_mov_b64 exec, 1\nbuffer_store_dword v2, v3, %s, s3 offen sc1" % (EPOCH, sTAG, S(S_WS)))
a.label("L_end")
a("s_endpgm")
a.lines.extend(OUTLINE)
a.raw(".p2align 7\n.type L_table,@object\nL_table:")
T = make_table()
for i in range(0, len(T), 8): a.raw("  .long " + ", ".join(str(x) for x in T[i:i+8]))
a.raw(".size L_table, %d" % (4 * len(T)))
a.raw('.section .rodata,"a"')
kernel_desc(a, KNAME, 256, 102)
if OPT["hop"]:
    a.lines, heads = add_pads(a.lines, OPT["hop"], 4, 1)
txt = a.text()
if OPT["hop"]:
    for c in range(4): txt = txt.replace("@HEAD%d@" % c, "Lpad%d" % heads[c])
sys.stdout.write(txt)
```
